```python
import torch

def _softmax(x, axis=-1):
    return torch.softmax(x, dim=axis)
def _gelu(x):
    return torch.nn.functional.gelu(x, approximate="tanh")
def _silu(x):
    return torch.nn.functional.silu(x)
def _sigmoid(x):
    return torch.sigmoid(x)
def _layernorm(x, axis=-1, eps=1e-5):
    m = x.mean(dim=axis, keepdim=True)
    v = x.var(dim=axis, keepdim=True, unbiased=False)
    return (x - m) / torch.sqrt(v + eps)
def _scatter_add(tgt, idx, src, axis=0):
    return tgt.clone().index_add_(axis, idx, src)
def _segment_sum(src, seg, n):
    out = torch.zeros((n,) + src.shape[1:], dtype=src.dtype)
    return out.index_add_(0, seg, src)
def _pad(x, pw):
    flat = tuple(v for pair in reversed(pw) for v in pair)
    return torch.nn.functional.pad(x, flat)

kernel_name = 'sequential_preLN__linear_attn_block__geglu_ffn__prompt'

def setup_inputs():

    _w = (lambda a: (lambda t: t.to(torch.bfloat16) if t.is_floating_point() else t)(torch.as_tensor(a)))
    def _A_setup():
        B, S, D = 1, 2048, 576
        return {
            "x": _w((lambda *s: torch.randn(*s, dtype=torch.bfloat16) * 0.05)(B, S, D)),
            "wqkv": _w((lambda *s: torch.randn(*s, dtype=torch.bfloat16) * 0.05)(D, 3 * D)),
            "wo": _w((lambda *s: torch.randn(*s, dtype=torch.bfloat16) * 0.05)(D, D)),
        }
    _A_in = _A_setup()

    def _B_setup():
        B, S, D, F = 1, 2048, 576, 4608
        return {
            "x": _w((lambda *s: torch.randn(*s, dtype=torch.bfloat16) * 0.05)(B, S, D)),
            "w_gate": _w((lambda *s: torch.randn(*s, dtype=torch.bfloat16) * 0.05)(D, F)),
            "w_up": _w((lambda *s: torch.randn(*s, dtype=torch.bfloat16) * 0.05)(D, F)),
            "w_down": _w((lambda *s: torch.randn(*s, dtype=torch.bfloat16) * 0.05)(F, D)),
        }
    _B_in = _B_setup()

    return {
        "A_x": _A_in["x"],
        "A_wqkv": _A_in["wqkv"],
        "A_wo": _A_in["wo"],
        "B_x": _B_in["x"],
        "B_w_gate": _B_in["w_gate"],
        "B_w_up": _B_in["w_up"],
        "B_w_down": _B_in["w_down"],
    }

def reference(A_x, A_wqkv, A_wo, B_x, B_w_gate, B_w_up, B_w_down):
    def _A_ref(x, wqkv, wo):
        B, S, D = x.shape
        H = 32; Dh = D // H
        qkv = (lambda x, *d: x.permute(*d))((x @ wqkv).reshape(B, S, 3, H, Dh), 2, 0, 3, 1, 4)
        q, k, v = qkv[0], qkv[1], qkv[2]
        phi = lambda t: torch.where(t > 0, t + 1, torch.exp(t)) + 1e-6
        pq, pk = phi(q), phi(k)
        kv = torch.einsum("bhsd,bhse->bhde", pk, v)
        z = torch.einsum("bhsd->bhd", pk)
        num = torch.einsum("bhqd,bhde->bhqe", pq, kv)
        den = torch.einsum("bhqd,bhd->bhq", pq, z)[..., None] + 1e-6
        o = num / den
        return (lambda x, *d: x.permute(*d))(o, 0, 2, 1, 3).reshape(B, S, D) @ wo

    def _B_ref(x, w_gate, w_up, w_down):
        return (_gelu(x @ w_gate) * (x @ w_up)) @ w_down

    x = A_x
    h = x + _A_ref(_layernorm(x, axis=-1), A_wqkv, A_wo)
    h2 = h + _B_ref(_layernorm(h, axis=-1), B_w_gate, B_w_up, B_w_down)
    return h2
```

```python
class Asm:
    def __init__(self):
        self.lines = []
    def __call__(self, s):
        for l in s.split("\n"):
            l = l.strip()
            if l:
                self.lines.append(("" if l.endswith(":") else "  ") + l)
    def text(self):
        return "\n".join(self.lines) + "\n"

def kernel_header(name):
    return f""".globl {name}
.p2align 8
.type {name},@function
{name}:
"""

def kernel_desc(name, vgpr, sgpr, accum, wgy=False):
    return f""".section .rodata,"a"
.p2align 6
.amdhsa_kernel {name}
  .amdhsa_next_free_vgpr {vgpr}
  .amdhsa_next_free_sgpr {sgpr}
  .amdhsa_accum_offset {accum}
  .amdhsa_group_segment_fixed_size 0
  .amdhsa_kernarg_size 80
  .amdhsa_user_sgpr_count 2
  .amdhsa_user_sgpr_kernarg_segment_ptr 1
  .amdhsa_system_sgpr_workgroup_id_x 1
  .amdhsa_float_denorm_mode_32 3
.end_amdhsa_kernel
.text
"""

def srd(a, d, b, nbytes):
    a(f"s_mov_b32 s{d}, s{b}")
    a(f"s_and_b32 s{d+1}, s{b+1}, 0xffff")
    a(f"s_mov_b32 s{d+2}, {nbytes}")
    a(f"s_mov_b32 s{d+3}, 0x20000")
```

```python
from sched import *
from layout import *
from k3 import srd, f2u
L2E = 1.4426950408889634; LN2 = 0.6931471805599453
BIG = 0x40000000
LBIG = 0x30000
SLOT = 36864
XCH = 147456

def mask64(fn):
    m = 0
    for l in range(64):
        if fn(l): m |= 1 << l
    return m
def smask(e, s, m):
    e(f"s_mov_b32 s{s}, {hex(m & 0xffffffff)}\ns_mov_b32 s{s+1}, {hex(m >> 32)}")

def ln_stats(e, vs, vq, t, rs, nm):
    inv = hex(f2u(1.0/576))
    e(f"v_mul_f32 v{vs}, {inv}, v{vs}\nv_mul_f32 v{vq}, {inv}, v{vq}")
    e(f"v_fma_f32 v{vq}, -v{vs}, v{vs}, v{vq}\nv_max_f32 v{vq}, 0, v{vq}")
    e(f"v_cvt_pk_bf16_f32 v{t}, v{vs}, v{vq}\nv_lshlrev_b32 v{vs}, 16, v{t}\nv_and_b32 v{vq}, 0xffff0000, v{t}")
    e(f"v_add_f32 v{vq}, {hex(f2u(1e-5))}, v{vq}\nv_cvt_pk_bf16_f32 v{vq}, v{vq}, v{vq}\nv_and_b32 v{vq}, 0xffff0000, v{vq}")
    e(f"v_sqrt_f32 v{vq}, v{vq}\ns_nop 0\nv_cvt_pk_bf16_f32 v{vq}, v{vq}, v{vq}\nv_and_b32 v{vq}, 0xffff0000, v{vq}")
    e(f"v_rcp_f32 v{rs}, v{vq}\ns_nop 0\nv_mul_f32 v{nm}, v{vs}, v{rs}\nv_sub_f32 v{nm}, 0, v{nm}")

def gen_k1(timing=False, prefetch=True):
    e = Em()
    VX = 4; VW = 8; AB = 13; AC = 17; ONES = 24; XF = 28; WF = 44; ACC = 116; SUM = 188; SQ = 196; CS = 204
    WA = 216
    GA = 230
    ZB = 236
    T = 21
    S_X = 8; S_W = 12; S_O = 16; S_DBG = 20
    S_I = 28; S_G = 29; S_KV = 30; S_WV = 31; S_XO = 32; S_WO = 33; S_ST = 34; S_CNT = 35; S_SL = 36; S_DS = 37; S_WB = 38; S_XB = 39; S_WOB = 52
    e("s_cmp_ge_u32 s2, 256\ns_cbranch_scc1 K1_end")
    e("s_load_dwordx4 s[40:43], s[0:1], 0\ns_load_dwordx4 s[44:47], s[0:1], 64")
    if timing: e("s_memtime s[60:61]\ns_memrealtime s[64:65]")
    e(f"v_lshrrev_b32 v1, 6, v0\nv_and_b32 v2, 63, v0\ns_cmp_ge_u32 s2, 192\nv_readfirstlane_b32 s{S_WV}, v1\ns_cbranch_scc1 K1_spare")
    e(f"""s_and_b32 s3, s2, 7
s_lshr_b32 s4, s2, 3
s_lshr_b32 s5, s3, 1
s_lshl_b32 s5, s5, 2
s_and_b32 s6, s4, 3
s_add_u32 s{S_I}, s5, s6
s_lshr_b32 s4, s4, 2
s_and_b32 s3, s3, 1
s_lshl_b32 s5, s3, 2
s_add_u32 s5, s5, s4
s_lshl_b32 s6, s3, 1
s_add_u32 s6, s6, s4
s_sub_u32 s6, s6, 4
s_cmp_lt_u32 s4, 4
s_cselect_b32 s{S_G}, s5, s6
s_cselect_b32 s{S_KV}, 1, 0""")
    e(f"s_mul_i32 s5, s3, 6\ns_add_u32 s5, s5, s4\ns_add_u32 s5, s5, s{S_I}")
    for _ in range(2):
        e(f"s_sub_u32 s6, s5, 9\ns_cmp_ge_u32 s5, 9\ns_cselect_b32 s5, s6, s5")
    e(f"s_mov_b32 s{S_ST}, s5")
    e(f"v_lshrrev_b32 v3, 3, v2\nv_and_b32 v{T}, 7, v2\nv_lshrrev_b32 v{T+1}, 1, v3\nv_xor_b32 v{T}, v{T}, v{T+1}")
    e(f"v_mul_u32_u24 v3, 1152, v3\nv_lshl_add_u32 v{VX}, v{T}, 4, v3\nv_xor_b32 v{T}, 4, v{T}\nv_lshl_add_u32 v{VX+1}, v{T}, 4, v3")
    e(f"v_add_u32 v{VX+1}, {8*1152-1024}, v{VX+1}\nv_add_u32 v{VX+2}, {16*1152-2048}, v{VX}\nv_add_u32 v{VX+3}, {16*1152-2048}, v{VX+1}")
    e(f"""s_mul_i32 s5, s{S_G}, 144
s_add_u32 s6, s5, 1152
s_add_u32 s7, s5, {2304-144}
s_lshl_b32 s5, s5, 1
s_cmp_eq_u32 s{S_KV}, 1
s_cselect_b32 s6, s6, s5
s_cselect_b32 s7, s7, s5
s_sub_u32 s7, s7, s6""")
    e(f"v_mov_b32 v{T+2}, s7")
    for i in range(5):
        r = VW + i
        e(f"v_add_u32 v3, {64*i}, v2\nv_mul_u32_u24 v{T}, 3641, v3\nv_lshrrev_b32 v{T}, 16, v{T}\nv_mul_u32_u24 v{T+1}, 18, v{T}\nv_sub_u32 v3, v3, v{T+1}")
        e(f"v_lshrrev_b32 v{T+1}, 1, v{T}\nv_and_b32 v{T+1}, 4, v{T+1}\nv_xor_b32 v{T}, v{T}, v{T+1}\nv_mul_u32_u24 v{T}, 3456, v{T}")
        e(f"v_cmp_lt_u32 s[48:49], 8, v3\nv_lshl_add_u32 v{T}, v3, 4, v{T}\nv_add_u32 v{T}, s6, v{T}\nv_cndmask_b32 v3, 0, v{T+2}, s[48:49]")
        comp = (i % 4) * 1024
        e(f"v_add_u32 v{r}, v{T}, v3")
        if comp: e(f"v_subrev_u32 v{r}, {comp}, v{r}")
    e(f"v_mov_b32 v3, {BIG}\nv_cmp_gt_u32 s[48:49], 32, v2\ns_nop 1\nv_cndmask_b32 v{VW+4}, v3, v{VW+4}, s[48:49]")
    e(f"""s_lshl_b32 s5, s{S_I}, 2
s_add_u32 s5, s5, s{S_WV}
s_mul_i32 s{S_XB}, s5, {32*1152}
s_mul_i32 s{S_WOB}, s{S_WV}, {16*3456}
s_lshl_b32 s5, s{S_ST}, 7
s_add_u32 s{S_XO}, s{S_XB}, s5
s_mul_i32 s5, s{S_ST}, {64*3456}
s_add_u32 s{S_WO}, s{S_WOB}, s5
s_mul_i32 s{S_WB}, s{S_WV}, 9216
s_mov_b32 s{S_DS}, s{S_WB}""")
    e("s_waitcnt lgkmcnt(0)")
    srd(e, S_X, 40, ACT_BYTES)
    srd(e, S_W, 42, 576*1728*2)
    def dma_stage():
        e(f"s_mov_b32 m0, s{S_DS}\ns_nop 0")
        for b in range(4):
            e(f"buffer_load_dwordx4 v{VX+b}, s[{S_X}:{S_X+3}], s{S_XO} offen" + (f" offset:{b*1024}" if b else "") + " lds")
        e(f"s_add_u32 m0, s{S_DS}, 4096\ns_nop 0")
        for i in range(4):
            e(f"buffer_load_dwordx4 v{VW+i}, s[{S_W}:{S_W+3}], s{S_WO} offen" + (f" offset:{i*1024}" if i else "") + " lds")
        e(f"s_add_u32 m0, s{S_DS}, 8192\ns_add_u32 s{S_ST}, s{S_ST}, 1")
        e(f"buffer_load_dwordx4 v{VW+4}, s[{S_W}:{S_W+3}], s{S_WO} offen lds")
        e(f"""s_add_u32 s{S_XO}, s{S_XO}, 128
s_add_u32 s{S_WO}, s{S_WO}, {64*3456}
s_cmp_eq_u32 s{S_ST}, 9
s_cselect_b32 s{S_ST}, 0, s{S_ST}
s_cselect_b32 s{S_XO}, s{S_XB}, s{S_XO}
s_cselect_b32 s{S_WO}, s{S_WOB}, s{S_WO}
s_add_u32 s{S_DS}, s{S_DS}, {SLOT}
s_cmp_ge_u32 s{S_DS}, {4*SLOT}
s_cselect_b32 s{S_DS}, s{S_WB}, s{S_DS}""")
    e(f"s_mov_b32 s{S_CNT}, 0\nK1_pro:")
    dma_stage()
    e(f"s_add_u32 s{S_CNT}, s{S_CNT}, 1\ns_cmp_lt_u32 s{S_CNT}, 3\ns_cbranch_scc1 K1_pro")
    e(f"v_and_b32 v{T}, 15, v2\nv_lshrrev_b32 v{T+1}, 4, v2")
    e(f"v_lshrrev_b32 v3, 1, v{T}\nv_xor_b32 v3, v3, v{T+1}\nv_lshlrev_b32 v3, 4, v3\nv_lshl_add_u32 v3, v{T}, 7, v3\nv_add_u32 v{AB}, s{S_WB}, v3\nv_xor_b32 v3, 64, v3\nv_add_u32 v{AB+1}, s{S_WB}, v3")
    e(f"v_and_b32 v3, 1, v{T+1}\nv_mul_u32_u24 v3, 12, v3\nv_bfe_u32 v{T+2}, v2, 2, 2\nv_add_u32 v3, v3, v{T+2}")
    e(f"v_xor_b32 v{T+2}, 4, v3\nv_mul_u32_u24 v3, 288, v3\nv_mul_u32_u24 v{T+2}, 288, v{T+2}")
    e(f"v_lshrrev_b32 v{AC}, 5, v2\nv_mul_u32_u24 v{AC}, 9216, v{AC}\nv_and_b32 v{AC+1}, 3, v2\nv_lshl_add_u32 v{AC}, v{AC+1}, 3, v{AC}\nv_add_u32 v{AC}, 4096, v{AC}")
    e(f"v_add_u32 v{AB+2}, v{AC}, v3\nv_add_u32 v{AB+3}, v{AC}, v{T+2}")
    for i in range(4): e(f"v_mov_b32 v{ONES+i}, 0x3f803f80")
    for r in range(ACC, CS + 12): e(f"v_mov_b32 v{r}, 0")
    srd(e, S_DBG, 44, 256)
    e(f"s_mov_b32 s{S_CNT}, 0\ns_mov_b32 s{S_SL}, 0")
    e(f"s_cmp_eq_u32 s{S_KV}, 0\ns_cbranch_scc1 K1_q")
    srd(e, S_O, 46, KV_BYTES, WS_KV)
    pairs = []
    for hl in range(4):
        for a in (hl, hl + 1):
            for b in (hl + 4, hl + 5):
                if (a, b) not in pairs: pairs.append((a, b))
    assert len(pairs) == 13
    e(f"s_mul_i32 s5, s{S_WV}, 6144\nv_mul_u32_u24 v3, 80, v{T}\nv_lshl_add_u32 v3, v{T+1}, 4, v3\nv_add_u32 v3, s5, v3")
    for k, (a, b) in enumerate(pairs):
        e(f"v_mov_b32 v{WA+k}, {LBIG}")
        for hl in range(4):
            def valid(l):
                n, g = l & 15, l >> 4
                ec = 16*(b-4) - 8 + n
                if ec < 0 or ec // 18 != hl: return False
                qi = 4*a + g - (9*hl)//2
                return 0 <= qi < 5
            m = mask64(valid)
            if not m: continue
            const = hl*1520 + (16*(b-4) - 8 - 18*hl)*80 + (4*a - (9*hl)//2)*16
            smask(e, 48, m)
            e(f"v_add_u32 v{T+2}, {const & 0xffffffff}, v3\nv_cndmask_b32 v{WA+k}, v{WA+k}, v{T+2}, s[48:49]")
    e(f"v_mov_b32 v{WA+13}, {LBIG}\nv_lshlrev_b32 v3, 4, v{T+1}\nv_add_u32 v3, s5, v3")
    for n0 in range(8):
        a, hl = (n0 + 1) >> 1, n0 >> 1
        m = mask64(lambda l: (l & 15) == n0 and 0 <= 4*a + (l >> 4) - (9*hl)//2 < 5)
        const = hl*1520 + 18*80 + (4*a - (9*hl)//2)*16
        smask(e, 48, m)
        e(f"v_add_u32 v{T+2}, {const & 0xffffffff}, v3\nv_cndmask_b32 v{WA+13}, v{WA+13}, v{T+2}, s[48:49]")
    for a in range(5):
        m = mask64(lambda l: (l & 15) < 8 and ((l & 15) + 1) >> 1 == a)
        smask(e, 48, m)
        e(f"v_cndmask_b32 v{ZB+4*a}, 0, v{ONES}, s[48:49]")
        for i in range(1, 4): e(f"v_mov_b32 v{ZB+4*a+i}, v{ZB+4*a}")
    e(f"s_mul_i32 s5, s{S_G}, 6080")
    for i in range(6):
        r = GA + i
        e(f"v_add_u32 v3, {256*i}, v0\nv_mul_u32_u24 v{T+2}, 3277, v3\nv_lshrrev_b32 v{T+2}, 16, v{T+2}")
        e(f"v_mul_u32_u24 v{AC}, 20, v{T+2}\nv_sub_u32 v{AC}, v3, v{AC}")
        e(f"v_mul_u32_u24 v{T+2}, 27, v{T+2}\nv_lshrrev_b32 v{T+2}, 9, v{T+2}\nv_and_b32 v{T+2}, 1, v{T+2}")
        e(f"v_lshlrev_b32 v{T+2}, 1, v{T+2}\nv_sub_u32 v{AC}, v{AC}, v{T+2}")
        e(f"v_cmp_gt_u32 s[48:49], 18, v{AC}\nv_cmp_gt_u32 vcc, 1520, v3\nv_lshlrev_b32 v3, 2, v3\nv_add_u32 v3, s5, v3\ns_and_b64 s[48:49], s[48:49], vcc\nv_mov_b32 v{r}, {BIG}\nv_cndmask_b32 v{r}, v{r}, v3, s[48:49]")

    def mainloop(kind):
        lab = f"K1_{kind}"
        e(f"s_cmp_eq_u32 s{S_WV}, 1\ns_cbranch_scc1 {lab}_l1\ns_cmp_eq_u32 s{S_WV}, 2\ns_cbranch_scc1 {lab}_l2\ns_cmp_eq_u32 s{S_WV}, 3\ns_cbranch_scc1 {lab}_l3")
        for w in range(4):
            cst = [0, 4, 8] if w == 0 else [w, w + 4]
            e(f"{lab}_l{w}:")
            e.lg = []; e.lg_done = 0
            for i in range(4): e(f"v_add_u32 v{AC+i}, s{S_SL}, v{AB+i}")
            e(f"s_add_u32 s{S_SL}, s{S_SL}, {SLOT}\ns_cmp_ge_u32 s{S_SL}, {4*SLOT}\ns_cselect_b32 s{S_SL}, 0, s{S_SL}")
            e(f"s_cmp_lt_u32 s{S_CNT}, 6\ns_cselect_b32 s{S_X+2}, s{S_X+2}, 0\ns_cselect_b32 s{S_W+2}, s{S_W+2}, 0")
            e("s_waitcnt vmcnt(18)\ns_barrier")
            rd = []
            for kk in range(2):
                for tt in range(2):
                    r = XF + 8*kk + 4*tt
                    rd.append((f"ds_read_b128 v[{r}:{r+3}], v{AC+kk} offset:{2048*tt}", ("x", kk, tt)))
                for ct in range(9):
                    r = WF + 36*kk + 4*ct
                    rd.append((f"ds_read_b64_tr_b16 v[{r}:{r+1}], v{AC+2} offset:{kk*18432 + ct*32}", ("w", kk, ct)))
                    rd.append((f"ds_read_b64_tr_b16 v[{r+2}:{r+3}], v{AC+3} offset:{kk*18432 + ct*32}", ("w", kk, ct)))
            def rdn(k):
                for _ in range(k):
                    if rd:
                        t, tag = rd.pop(0); e.ds(t, tag)
            rdn(12)
            dma_stage()
            def mf(d, a, b):
                e(f"v_mfma_f32_16x16x32_bf16 v[{d}:{d+3}], v[{a}:{a+3}], v[{b}:{b+3}], v[{d}:{d+3}]")
                rdn(1)
            for kk in range(2):
                x0, x1 = XF + 8*kk, XF + 8*kk + 4
                e.wait_lg(lambda t: t == ("x", kk, 1))
                mf(SUM, ONES, x0); mf(SUM + 4, ONES, x1); mf(SQ, x0, x0); mf(SQ + 4, x1, x1)
                for ct in range(9):
                    wf = WF + 36*kk + 4*ct
                    if ct % 3 == 0:
                        e.wait_lg(lambda t: t == ("w", kk, ct + 2))
                    for tt in range(2):
                        d = ACC + 36*tt + 4*ct; x = XF + 8*kk + 4*tt
                        if kind == "q": mf(d, wf, x)
                        else: mf(d, x, wf)
                    if ct in cst:
                        d = CS + 4*cst.index(ct)
                        if kind == "q": mf(d, wf, ONES)
                        else: mf(d, ONES, wf)
            assert not rd
            e(f"s_add_u32 s{S_CNT}, s{S_CNT}, 1\ns_cmp_lt_u32 s{S_CNT}, 9\ns_cbranch_scc1 {lab}_l{w}")
            if w < 3: e(f"s_branch {lab}_fin")
        e(f"{lab}_fin:")
        e.lg = []; e.lg_done = 0
        if timing: e("s_memtime s[72:73]")
        RS = XF
        m1 = mask64(lambda l: (l & 3) == 1); m2 = mask64(lambda l: (l & 3) == 2); m3 = mask64(lambda l: (l & 3) == 3)
        smask(e, 48, m1); smask(e, 50, m2); smask(e, 54, m3)
        smask(e, 56, mask64(lambda l: (l >> 4) == ((l & 15) >> 2)))
        e(f"s_lshl_b32 s5, s{S_WV}, 8\ns_add_u32 s5, s5, {XCH}\nv_lshlrev_b32 v3, 2, v{T}\nv_add_u32 v3, s5, v3\nv_mov_b32 v{T+2}, {LBIG}\nv_cndmask_b32 v{T+2}, v{T+2}, v3, s[56:57]")
        for tt in range(2):
            q = SQ + 4*tt
            e(f"v_cndmask_b32 v{q}, v{q}, v{q+1}, s[48:49]\nv_cndmask_b32 v{q}, v{q}, v{q+2}, s[50:51]\nv_cndmask_b32 v{q}, v{q}, v{q+3}, s[54:55]")
            ln_stats(e, SUM + 4*tt, q, q + 1, RS + 2*tt, RS + 2*tt + 1)
            e(f"ds_write_b32 v{T+2}, v{RS+2*tt} offset:{128*tt}\nds_write_b32 v{T+2}, v{RS+2*tt+1} offset:{128*tt+64}")
        CSA = XCH + 1024
        e(f"s_lshl_b32 s6, s{S_WV}, 6\ns_add_u32 s6, s6, {CSA}")
        if kind == "q":
            smask(e, 48, mask64(lambda l: (l & 15) == 0))
            e(f"v_lshlrev_b32 v{AC}, 4, v{T+1}\nv_add_u32 v{AC}, s6, v{AC}\nv_mov_b32 v{AC+1}, {LBIG}\nv_cndmask_b32 v{AC+1}, v{AC+1}, v{AC}, s[48:49]")
            for k in range(3): e(f"ds_write_b128 v{AC+1}, v[{CS+4*k}:{CS+4*k+3}] offset:{256*k}")
        else:
            smask(e, 48, mask64(lambda l: l < 16))
            e(f"v_lshlrev_b32 v{AC}, 2, v{T}\nv_add_u32 v{AC}, s6, v{AC}\nv_mov_b32 v{AC+1}, {LBIG}\nv_cndmask_b32 v{AC+1}, v{AC+1}, v{AC}, s[48:49]")
            for k in range(3): e(f"ds_write_b32 v{AC+1}, v{CS+4*k} offset:{256*k}")
        e("s_waitcnt vmcnt(0) lgkmcnt(0)\ns_barrier")
        return CSA

    c0 = hex(f2u(1e-6 * L2E))
    def phi(u, t):
        return [f"v_exp_f32_e64 v{t}, v{u} clamp", f"v_max_f32 v{u}, {c0}, v{u}", f"v_fma_f32 v{u}, v{u}, s58, v{t}"]
    CSA = mainloop("kv")
    e(f"s_lshl_b32 s5, s{S_G}, 2\nv_mov_b32 v{AC+2}, s5\nbuffer_load_dword v{AC+3}, v{AC+2}, s[{S_DBG}:{S_DBG+3}], 0 offen sc0 sc1")
    CSV = WF; RSV = WF + 12
    PK = WF + 48
    PV = XF - 4
    e(f"v_lshlrev_b32 v3, 2, v{T}\nv_add_u32 v3, {CSA}, v3\ns_lshl_b32 s5, s{S_WV}, 8\ns_add_u32 s5, s5, {XCH}\nv_lshlrev_b32 v{T+2}, 4, v{T+1}\nv_add_u32 v{T+2}, s5, v{T+2}")
    for tt in range(2):
        e(f"ds_read_b128 v[{RSV+16*tt}:{RSV+16*tt+3}], v{T+2} offset:{128*tt}\nds_read_b128 v[{RSV+16*tt+4}:{RSV+16*tt+7}], v{T+2} offset:{128*tt+64}")
    for ct in range(9): e(f"ds_read_b32 v{CSV+ct}, v3 offset:{64*ct}")
    e(f"s_mov_b32 s58, {hex(f2u(LN2))}\ns_mov_b32 s59, {c0}\ns_waitcnt lgkmcnt(0)")
    for tt in range(2):
        for i in range(8): e(f"v_mul_f32 v{RSV+16*tt+8+i}, {hex(f2u(L2E))}, v{RSV+16*tt+i}")
    TT = SUM
    for ct in range(9):
        for tt in range(2):
            a = ACC + 36*tt + 4*ct; R = RSV + 16*tt
            if ct >= 4:
                for r in range(4): e(f"v_mul_f32 v{TT+r}, v{R+4+r}, v{CSV+ct}")
                for r in range(4): e(f"v_fma_f32 v{TT+r}, v{a+r}, v{R+r}, v{TT+r}")
                d = PV + 4*(ct-4) + 2*tt
                e(f"v_cvt_pk_bf16_f32 v{d}, v{TT}, v{TT+1}\nv_cvt_pk_bf16_f32 v{d+1}, v{TT+2}, v{TT+3}")
            if ct <= 4:
                for r in range(4): e(f"v_fma_f32 v{TT+r}, v{R+12+r}, v{CSV+ct}, s59")
                for r in range(4): e(f"v_fma_f32 v{a+r}, v{a+r}, v{R+8+r}, v{TT+r}")
                for k in range(3):
                    for r in range(4): e(phi(a + r, TT + r)[k])
                d = PK + 4*ct + 2*tt
                e(f"v_cvt_pk_bf16_f32 v{d}, v{a}, v{a+1}\nv_cvt_pk_bf16_f32 v{d+1}, v{a+2}, v{a+3}")
    e("s_nop 1")
    KV = ACC
    for k, (a, b) in enumerate(pairs):
        e(f"v_mfma_f32_16x16x32_bf16 v[{KV+4*k}:{KV+4*k+3}], v[{PK+4*a}:{PK+4*a+3}], v[{PV+4*(b-4)}:{PV+4*(b-4)+3}], 0")
    z = KV + 52
    for a in range(5):
        e(f"v_mfma_f32_16x16x32_bf16 v[{z}:{z+3}], v[{PK+4*a}:{PK+4*a+3}], v[{ZB+4*a}:{ZB+4*a+3}], " + ("0" if a == 0 else f"v[{z}:{z+3}]"))
    for k in range(14):
        if k == 13: e("s_nop 0")
        e(f"ds_write_b128 v{WA+k}, v[{KV+4*k}:{KV+4*k+3}]")
    e(f"""K1_poll:
s_waitcnt vmcnt(0)
v_readfirstlane_b32 s5, v{AC+3}
s_nop 3
s_cmp_lg_u32 s5, 0
s_cbranch_scc1 K1_polled
buffer_load_dword v{AC+3}, v{AC+2}, s[{S_DBG}:{S_DBG+3}], 0 offen sc0 sc1
s_branch K1_poll
K1_polled:""")
    e(f"v_lshlrev_b32 v3, 2, v0\ns_waitcnt lgkmcnt(0)\ns_barrier")
    RB = WF
    for i in range(6):
        for w in range(4):
            e.ds(f"ds_read_b32 v{RB+4*i+w}, v3 offset:{w*6144 + i*1024}", i)
    for i in range(6):
        e.wait_lg(lambda t: t == i)
        r = RB + 4*i
        e(f"v_add_f32 v{r}, v{r}, v{r+1}\nv_add_f32 v{r+2}, v{r+2}, v{r+3}\nv_add_f32 v{r}, v{r}, v{r+2}")
        e(f"buffer_atomic_add_f32 v{r}, v{GA+i}, s[{S_O}:{S_O+3}], 0 offen sc1")
    e("s_branch K1_done")
    e("K1_q:")
    srd(e, S_O, 46, ACT_BYTES, WS_PQ)
    CSA = mainloop("q")
    CSV = WF; RSV = WF + 36; P = WA
    e(f"v_lshlrev_b32 v3, 4, v{T+1}\nv_add_u32 v3, {CSA}, v3\ns_lshl_b32 s5, s{S_WV}, 8\ns_add_u32 s5, s5, {XCH}\nv_lshlrev_b32 v{T+2}, 2, v{T}\nv_add_u32 v{T+2}, s5, v{T+2}")
    for k in range(4): e(f"ds_read_b32 v{RSV+k}, v{T+2} offset:{64*k}")
    for ct in range(9): e(f"ds_read_b128 v[{CSV+4*ct}:{CSV+4*ct+3}], v3 offset:{64*ct}")
    e(f"s_mov_b32 s58, {hex(f2u(LN2))}\ns_mov_b32 s59, {c0}")
    e(f"s_lshl_b32 s5, s{S_I}, 2\ns_add_u32 s5, s5, s{S_WV}\ns_lshl_b32 s5, s5, 2\ns_add_u32 s5, s5, s{S_G}\ns_mul_i32 s5, s5, 9216\nv_lshlrev_b32 v3, 4, v2")
    e(f"s_add_u32 s6, s5, 4096\ns_add_u32 s7, s5, 8192\ns_waitcnt lgkmcnt(0)")
    for k in range(4): e(f"v_mul_f32 v{RSV+k}, {hex(f2u(L2E))}, v{RSV+k}")
    stored = 0
    for tt in range(2):
        for ct in range(9):
            a = ACC + 36*tt + 4*ct
            for r in range(4): e(f"v_fma_f32 v{TT+r}, v{RSV+2*tt+1}, v{CSV+4*ct+r}, s59")
            for r in range(4): e(f"v_fma_f32 v{a+r}, v{a+r}, v{RSV+2*tt}, v{TT+r}")
            for k in range(3):
                for r in range(4): e(phi(a + r, TT + r)[k])
            d = P + 18*tt + 2*ct
            e(f"v_cvt_pk_bf16_f32 v{d}, v{a}, v{a+1}\nv_cvt_pk_bf16_f32 v{d+1}, v{a+2}, v{a+3}")
            while 4*stored + 3 <= 18*tt + 2*ct + 1:
                q = stored
                e(f"buffer_store_dwordx4 v[{P+4*q}:{P+4*q+3}], v3, s[{S_O}:{S_O+3}], s{5+q//4} offen" + (f" offset:{(q%4)*1024}" if q % 4 else ""))
                stored += 1
    assert stored == 9
    e("s_branch K1_done")
    e("K1_spare:")
    e("s_load_dwordx2 s[48:49], s[0:1], 16\ns_load_dwordx4 s[52:55], s[0:1], 32\ns_waitcnt lgkmcnt(0)")
    e("s_sub_u32 s3, s2, 192\ns_cmp_ge_u32 s3, 8\ns_cbranch_scc1 K1_nozero")
    srd(e, S_O, 46, KV_BYTES, WS_KV)
    srd(e, S_DBG, 44, 256)
    e(f"""s_mul_i32 s5, s3, 6080
v_mov_b32 v4, 0
v_mov_b32 v5, 0
v_mov_b32 v6, 0
v_mov_b32 v7, 0
v_lshlrev_b32 v3, 4, v0
v_mov_b32 v8, {BIG}
v_cmp_gt_u32 s[50:51], 124, v0
v_add_u32 v9, 4096, v3
v_cndmask_b32 v8, v8, v9, s[50:51]""".replace("v_cmp_gt_u32 s[50:51], 124, v0", "v_cmp_gt_u32 vcc, 124, v0\ns_nop 1\ns_mov_b64 s[50:51], vcc"))
    e(f"""buffer_store_dwordx4 v[4:7], v3, s[{S_O}:{S_O+3}], s5 offen sc0 sc1
buffer_store_dwordx4 v[4:7], v8, s[{S_O}:{S_O+3}], s5 offen sc0 sc1
s_waitcnt vmcnt(0)
s_barrier
s_cmp_lg_u32 s{S_WV}, 0
s_cbranch_scc1 K1_nozero
s_lshl_b32 s5, s3, 2
v_mov_b32 v4, 1
v_mov_b32 v3, s5
buffer_store_dword v4, v3, s[{S_DBG}:{S_DBG+3}], 0 offen sc0 sc1
K1_nozero:""")
    if prefetch:
        srd(e, S_X, 48, 576*576*2)
        e(f"s_mul_i32 s5, s3, {81*128}\nv_lshlrev_b32 v3, 7, v0\nv_mov_b32 v8, {BIG}\nv_cmp_gt_u32 vcc, 81, v0\ns_nop 1\nv_cndmask_b32 v3, v8, v3, vcc")
        e(f"buffer_load_dword v10, v3, s[{S_X}:{S_X+3}], s5 offen\ns_waitcnt vmcnt(0)")
        srd(e, S_X, 52, 576*4608*2)
        srd(e, S_W, 54, 576*4608*2)
        e(f"s_and_b32 s5, s3, 7\ns_mul_i32 s5, s5, 1152\ns_lshr_b32 s6, s3, 3\ns_mul_i32 s6, s6, {72*9216}\ns_add_u32 s5, s5, s6")
        for i in range(3):
            e(f"v_add_u32 v3, {256*i}, v0\nv_mul_u32_u24 v4, 7282, v3\nv_lshrrev_b32 v4, 16, v4\nv_mul_u32_u24 v5, 9, v4\nv_sub_u32 v5, v3, v5\nv_mul_u32_u24 v4, 9216, v4\nv_lshl_add_u32 v4, v5, 7, v4")
            e(f"v_cmp_gt_u32 vcc, 648, v3\ns_nop 1\nv_cndmask_b32 v4, v8, v4, vcc")
            e(f"buffer_load_dword v{10+2*i}, v4, s[{S_X}:{S_X+3}], s5 offen\nbuffer_load_dword v{11+2*i}, v4, s[{S_W}:{S_W+3}], s5 offen")
    e("K1_done:")
    if timing:
        e("s_waitcnt vmcnt(0)\ns_memtime s[62:63]\ns_memrealtime s[66:67]\ns_waitcnt lgkmcnt(0)")
        e(f"""s_sub_u32 s62, s62, s60
s_sub_u32 s66, s66, s64
s_sub_u32 s72, s72, s60
v_mov_b32 v4, s62
v_mov_b32 v5, s66
v_mov_b32 v6, s72
v_mov_b32 v7, s64
s_lshl_b32 s38, s2, 4
s_add_u32 s38, s38, {0x8010000}
v_mov_b32 v8, s38""")
        srd(e, 68, 46, WS_BYTES)
        e("""v_cmp_eq_u32 vcc, 0, v0
s_and_saveexec_b64 s[48:49], vcc
s_cbranch_execz K1_end
buffer_store_dwordx4 v[4:7], v8, s[68:71], 0 offen""")
    e("K1_end:\ns_endpgm")
    return e.text()
if __name__ == "__main__":
    assert all((n*3641) >> 16 == n//18 for n in range(320))
    assert all((n*3277) >> 16 == n//20 for n in range(1536))
    assert all((n*27) >> 9 == n//19 for n in range(77))
    assert all((n*7282) >> 16 == n//9 for n in range(768))
    print("ok")
```

```python
from sched import *
from layout import *
from k3 import srd, f2u
from k1 import mask64, smask, BIG, LBIG
REG = 39936; WOFF = 12288

def gen_k2(timing=False, prefetch=True):
    e = Em()
    A = 24; O = 112; ADR = 112; RAW = 184; RD = 184; NR = 216; MIX = 240; ACC = 16
    VL16 = 4; VWO = 5
    TB = 8
    VXA = 10; VST = 11; VSA = 12
    XR = 244
    PQ = 0; WFR = 72
    S_KV = 8; S_PQ = 12; S_WO = 16; S_X = 20; S_HT = 24; S_STT = 28
    S_RT = 32; S_CG = 33; S_WV = 34; S_RB = 35; S_WS = 36
    e("s_cmp_ge_u32 s2, 256\ns_cbranch_scc1 K2_end")
    e("s_load_dwordx2 s[40:41], s[0:1], 0\ns_load_dwordx2 s[42:43], s[0:1], 16\ns_load_dwordx2 s[46:47], s[0:1], 72")
    if timing: e("s_memtime s[60:61]\ns_memrealtime s[64:65]")
    e(f"v_lshrrev_b32 v1, 6, v0\nv_and_b32 v2, 63, v0\ns_cmp_ge_u32 s2, 192\nv_readfirstlane_b32 s{S_WV}, v1\ns_cbranch_scc1 K2_spare")
    e(f"""s_and_b32 s3, s2, 7
s_lshr_b32 s4, s2, 3
s_lshl_b32 s3, s3, 2
s_and_b32 s5, s4, 3
s_add_u32 s{S_RT}, s3, s5
s_lshr_b32 s{S_CG}, s4, 2
s_mul_i32 s{S_RB}, s{S_WV}, {REG}
s_mul_i32 s5, s{S_WV}, 12160
v_lshlrev_b32 v{VL16}, 4, v2
s_waitcnt lgkmcnt(0)""")
    srd(e, S_KV, 46, KV_BYTES, WS_KV)
    for i in range(12):
        if i % 4 == 0:
            e(f"s_add_u32 m0, s{S_RB}, {i*1024}\ns_add_u32 s6, s5, {i*1024}")
        e.vmem(f"buffer_load_dwordx4 v{VL16}, s[{S_KV}:{S_KV+3}], s6 offen" + (f" offset:{(i%4)*1024}" if i % 4 else "") + " lds", "kv")
    srd(e, S_PQ, 46, ACT_BYTES, WS_PQ)
    srd(e, S_WO, 42, 576*576*2)
    srd(e, S_X, 40, ACT_BYTES)
    srd(e, S_HT, 46, ACT_BYTES, WS_HT)
    srd(e, S_STT, 46, ST_BYTES, WS_ST)
    e(f"v_and_b32 v13, 15, v2\nv_lshrrev_b32 v14, 4, v2\nv_mul_u32_u24 v3, 80, v13\nv_lshl_add_u32 v3, v14, 4, v3\nv_add_u32 v3, s{S_RB}, v3\nv_mov_b32 v15, {LBIG}")
    frags = []
    na = [0]
    def addr(base, m):
        if m == 0: return None
        r = ADR + na[0]; na[0] += 1
        smask(e, 48, m)
        e(f"v_cndmask_b32 v{r}, v15, v{base}, s[48:49]")
        return r
    numf = {}
    for h in range(8):
        for j in (h, h + 1):
            L = []
            for jj in range(2):
                def valid(l):
                    m, g = l & 15, l >> 4
                    return 0 <= 16*j + m - 18*h < 18 and 0 <= g + 4*jj - (h >> 1) < 5
                off = h*1520 + (16*j - 18*h)*80 + (4*jj - (h >> 1))*16
                assert off >= 0
                L.append((addr(3, mask64(valid)), off))
            numf[(j, h)] = len(frags); frags.append(L)
    e(f"v_and_b32 v1, 3, v13\nv_mul_u32_u24 v3, 9, v1\nv_lshrrev_b32 v3, 1, v3\nv_sub_u32 v3, v14, v3\nv_lshlrev_b32 v3, 4, v3\nv_mul_u32_u24 v1, 1520, v1\nv_add3_u32 v3, v3, v1, s{S_RB}")
    zf = []
    for c, T0s in ((0, (0, 2, 4)), (1, (4, 6, 7))):
        for T0 in T0s:
            L = []
            for jj in range(2):
                T = T0 + jj
                def valid(l):
                    if c == 1 and T0 == 7 and jj == 0: return False
                    hs = 4*c + (l & 3); g = l >> 4
                    return 0 <= 4*T + g - (9*hs)//2 < 5
                off = c*(4*1520 - 18*16) + 18*80 + 64*T
                L.append((addr(3, mask64(valid)), off))
            zf.append((c, T0, len(frags))); frags.append(L)
    assert len(frags) == 22 and na[0] <= 44
    e(f"s_lshr_b32 s5, s{S_WV}, 1\ns_lshl_b32 s6, s{S_RT}, 1\ns_add_u32 s{S_WS}, s6, s5")
    for b in range(2):
        e(f"s_xor_b32 s5, s{S_WS}, {b}\ns_lshl_b32 s5, s5, 2\ns_add_u32 s5, s5, s{S_WV}\ns_mul_i32 s5, s5, 9216")
        for q in range(9):
            if q % 4 == 0 and q: e(f"s_add_u32 s5, s5, 4096")
            r = PQ + 36*b + 4*q
            e.vmem(f"buffer_load_dwordx4 a[{r}:{r+3}], v{VL16}, s[{S_PQ}:{S_PQ+3}], s5 offen" + (f" offset:{(q%4)*1024}" if q % 4 else ""), ("pq", b))
    for i in range(3):
        e(f"v_add_u32 v3, {64*i}, v2\nv_mul_u32_u24 v1, 5462, v3\nv_lshrrev_b32 v1, 16, v1\nv_mul_u32_u24 v{VWO+i}, 12, v1\nv_sub_u32 v3, v3, v{VWO+i}\nv_mul_u32_u24 v1, 1152, v1\nv_lshl_add_u32 v{VWO+i}, v3, 4, v1")
        if i: e(f"v_subrev_u32 v{VWO+i}, {i*1024}, v{VWO+i}")
    e(f"s_mul_i32 s37, s{S_WV}, {144*1152}\ns_mul_i32 s5, s{S_CG}, 192\ns_add_u32 s37, s37, s5")
    e(f"v_lshrrev_b32 v3, 2, v2\nv_mul_u32_u24 v3, 192, v3\nv_and_b32 v1, 3, v2\nv_lshl_add_u32 v3, v1, 3, v3")
    e(f"s_and_b32 s5, s{S_WV}, 1\ns_mul_i32 s38, s5, 96\ns_add_u32 s6, s{S_RB}, {WOFF}\ns_add_u32 s7, s6, s38\nv_add_u32 v{TB}, s7, v3\ns_add_u32 s7, s6, 96\ns_sub_u32 s7, s7, s38\nv_add_u32 v{TB+1}, s7, v3")
    e(f"v_lshrrev_b32 v1, 5, v2\nv_lshl_add_u32 v1, v1, 4, v13\nv_and_b32 v3, 1, v14")
    e(f"v_mul_u32_u24 v{VXA}, 1152, v1\nv_lshl_add_u32 v{VXA}, v3, 4, v{VXA}")
    e(f"v_lshlrev_b32 v{VST}, 4, v1\nv_lshl_add_u32 v{VST}, v3, 9, v{VST}")
    e(f"v_lshlrev_b32 v{VSA}, 3, v1\nv_mov_b32 v1, {BIG}\nv_cmp_eq_u32 s[48:49], 0, v3\ns_nop 1\nv_cndmask_b32 v{VSA}, v1, v{VSA}, s[48:49]")
    e(f"s_mul_i32 s39, s{S_WS}, 36864\ns_mul_i32 s5, s{S_CG}, 192\ns_add_u32 s5, s5, s38\ns_add_u32 s50, s39, s5")
    vq = []
    for i in range(27):
        pre = []
        if i % 3 == 0:
            pre = [f"s_add_u32 m0, s{S_RB}, {WOFF + i*1024}", f"s_add_u32 s51, s37, {(i//3)*16*1152}"]
        vq.append((pre, f"buffer_load_dwordx4 v{VWO+i%3}, s[{S_WO}:{S_WO+3}], s51 offen" + (f" offset:{(i%3)*1024}" if i % 3 else "") + " lds", ("wo", i//3)))
    for k in range(3):
        vq.append(([], f"buffer_load_dwordx4 v[{XR+4*k}:{XR+4*k+3}], v{VXA}, s[{S_X}:{S_X+3}], s50 offen" + (f" offset:{32*k}" if k else ""), "x"))
    state = {"last": 0}
    def pace(period=18, force=False):
        if vq and (force or e.n - state["last"] >= period):
            pre, t, tag = vq.pop(0)
            for p in pre: e(p)
            e.vmem(t, tag); state["last"] = e.n
    e.wait_vm(lambda t: t == "kv")
    if timing: e("s_memtime s[72:73]")
    state["last"] = e.n - 100
    order = [f for _, _, f in zf] + list(range(16))
    def ards(k):
        f = order[k]; rb = RAW + 8*(k % 4)
        for jj in range(2):
            ar, off = frags[f][jj]
            if ar is not None:
                e.ds(f"ds_read_b128 v[{rb+4*jj}:{rb+4*jj+3}], v{ar} offset:{off}", f)
    for k in range(3): ards(k)
    for k in range(22):
        if k + 3 < 22: ards(k + 3)
        pace()
        f = order[k]; rb = RAW + 8*(k % 4)
        e.wait_lg(lambda t: t == f)
        for jj in range(2):
            d = A + 4*f + 2*jj
            if frags[f][jj][0] is None:
                e(f"v_mov_b32 v{d}, 0\nv_mov_b32 v{d+1}, 0")
            else:
                e(f"v_cvt_pk_bf16_f32 v{d}, v{rb+4*jj}, v{rb+4*jj+1}\nv_cvt_pk_bf16_f32 v{d+1}, v{rb+4*jj+2}, v{rb+4*jj+3}")
    for t in range(1, 4): smask(e, 52 + 2*(t-1), mask64(lambda l: (l >> 4) < t))
    q = Queue(e, window=8)
    def pqf(t, tile):
        r = PQ + 36*(t >> 1) + 18*(t & 1) + 2*tile
        return f"a[{r}:{r+3}]"
    rdops = {}
    def mf(d, a, b, first, deps=()):
        o = e.op(Op(f"v_mfma_f32_16x16x32_bf16 v[{d}:{d+3}], v[{a}:{a+3}], {b}, " + ("0" if first else f"v[{d}:{d+3}]"), deps=deps))
        return o
    eps = hex(f2u(1e-6))
    for t in range(4):
        if t % 2 == 0: e.wait_vm(lambda x: x == ("pq", t >> 1))
        for k, (c, T0, f) in enumerate(zf):
            d = RD + 8*t + 4*c
            o = mf(d, A + 4*f, pqf(t, T0), k % 3 == 0)
            if k % 3 == 2:
                for r in range(4):
                    o1 = q.add(Op(f"v_add_f32 v{d+r}, {eps}, v{d+r}", deps=[(o, 10)]))
                    rdops[(t, 4*c + r)] = q.add(Op(f"v_rcp_f32 v{d+r}, v{d+r}", cost=2, deps=[(o1, 0)]))
            pace(); q.fill(2)
    ringfree = [None]*6; mixfree = [None]*4; mixi = [0]
    cnt = 0
    for t in range(4):
        for j in range(9):
            slot = cnt % 6; cnt += 1
            d = NR + 4*slot
            if ringfree[slot] is not None:
                for o in ringfree[slot]:
                    if o.pos is None: q.drain_until(o)
            hs = [h for h in (j - 1, j) if 0 <= h < 8]
            for k, h in enumerate(hs):
                o = mf(d, A + 4*numf[(j, h)], pqf(t, h), k == 0)
                pace(); q.fill(4 if len(hs) == 2 else 6)
            muls = []
            mixcache = {}
            for r in range(4):
                th = sum(1 for g in range(4) if 4*g + r < 2*j)
                if j == 8: th = 4
                if th == 0: src, dp = RD + 8*t + j, [(rdops[(t, j)], 1)]
                elif th == 4: src, dp = RD + 8*t + j - 1, [(rdops[(t, j-1)], 1)]
                else:
                    if th not in mixcache:
                        mi = mixi[0] % 4; mixi[0] += 1
                        dd = [(rdops[(t, j)], 1), (rdops[(t, j-1)], 1)] + [(x, 0) for x in (mixfree[mi] or [])]
                        s = 52 + 2*(th-1)
                        mo = q.add(Op(f"v_cndmask_b32 v{MIX+mi}, v{RD+8*t+j}, v{RD+8*t+j-1}, s[{s}:{s+1}]", deps=dd))
                        mixcache[th] = (mi, mo); mixfree[mi] = []
                    mi, mo = mixcache[th]
                    src, dp = MIX + mi, [(mo, 0)]
                m = q.add(Op(f"v_mul_f32 v{d+r}, v{d+r}, v{src}", deps=[(o, 10)] + dp))
                if th not in (0, 4): mixfree[mixcache[th][0]].append(m)
                muls.append(m)
            od = O + 18*t + 2*j
            c1 = q.add(Op(f"v_cvt_pk_bf16_f32 v{od}, v{d}, v{d+1}", deps=[(muls[0], 0), (muls[1], 0)]))
            c2 = q.add(Op(f"v_cvt_pk_bf16_f32 v{od+1}, v{d+2}, v{d+3}", deps=[(muls[2], 0), (muls[3], 0)]))
            ringfree[slot] = [c1, c2]
    while vq: pace(force=True)
    if timing: e("s_memtime s[74:75]")
    def wreads(ks):
        e.wait_vm(lambda x: x == ("wo", min(2*ks + 1, 8)))
        for ct in range(6):
            r = WFR + 24*ks + (4 if ks < 4 else 2)*ct
            for i in range(2 if ks < 4 else 1):
                e.ds(f"ds_read_b64_tr_b16 a[{r+2*i}:{r+2*i+1}], v{TB+ct//3} offset:{(2*ks+i)*3072 + (ct%3)*32}", ("w", ks))
    wreads(0)
    q.drain()
    e("s_nop 1")
    last = {}
    for ks in range(5):
        e.wait_lg(lambda x: x == ("w", ks))
        if ks < 4: wreads(ks + 1)
        for t in range(4):
            for ct in range(6):
                lq = (t >> 1)*2 + ct//3
                d = ACC + 24*lq + 12*(t & 1) + 4*(ct % 3)
                cs = "0" if ks == 0 else f"v[{d}:{d+3}]"
                if ks < 4:
                    r = WFR + 24*ks + 4*ct; o = O + 18*t + 4*ks
                    e(f"v_mfma_f32_16x16x32_bf16 v[{d}:{d+3}], a[{r}:{r+3}], v[{o}:{o+3}], {cs}")
                else:
                    pass
    EX = O
    EX = RD
    e(f"v_add_u32 v3, s{S_RB}, v{VL16}")
    for lq in (1, 2, 3, 0):
        for t in (2*(lq >> 1), 2*(lq >> 1) + 1):
            for c3 in range(3):
                ct = 3*(lq & 1) + c3
                d = ACC + 24*lq + 12*(t & 1) + 4*c3
                r = WFR + 96 + 2*ct; o = O + 18*t + 16
                e(f"v_mfma_f32_16x16x16_bf16 v[{d}:{d+3}], a[{r}:{r+1}], v[{o}:{o+1}], v[{d}:{d+3}]")
    for lq in (1, 2, 3):
        for i in range(12):
            e(f"v_cvt_pk_bf16_f32 v{EX+12*(lq-1)+i}, v{ACC+24*lq+2*i}, v{ACC+24*lq+2*i+1}")
            if i % 4 == 3:
                r = EX + 12*(lq-1) + i - 3
                e(f"ds_write_b128 v3, v[{r}:{r+3}] offset:{lq*3072 + (i//4)*1024}")
    for lq in (1, 2, 3):
        e(f"s_xor_b32 s5, s{S_WV}, {lq}\ns_mul_i32 s5, s5, {REG}\nv_add_u32 v{5+lq-1}, s5, v{VL16}")
    e.wait_vm(lambda x: x == "x")
    for k in range(3):
        e(f"v_permlane16_swap_b32 v{XR+4*k}, v{XR+4*k+2}\nv_permlane16_swap_b32 v{XR+4*k+1}, v{XR+4*k+3}")
    e("s_waitcnt lgkmcnt(0)\ns_barrier")
    e.lg = []; e.lg_done = 0
    IN = 40
    for lq in (1, 2, 3):
        for i in range(3):
            r = IN + 12*(lq-1) + 4*i
            e.ds(f"ds_read_b128 v[{r}:{r+3}], v{5+lq-1} offset:{lq*3072 + i*1024}", (lq, i))
    e(f"v_mov_b32 v13, 0x3f80\nv_mov_b32 v14, 0x3f800000\nv_mov_b32 v15, 0x3f803f80\nv_mov_b32 v8, 0\nv_mov_b32 v9, 0")
    e(f"s_mul_i32 s5, s{S_CG}, 6144\ns_lshl_b32 s6, s38, 5\ns_add_u32 s5, s5, s6\ns_add_u32 s5, s5, s39")
    e(f"s_lshl_b32 s6, s{S_CG}, 1\ns_and_b32 s7, s{S_WV}, 1\ns_add_u32 s6, s6, s7\ns_lshl_b32 s6, s6, 14\ns_lshl_b32 s7, s{S_WS}, 8\ns_add_u32 s6, s6, s7")
    for lq in (1, 2, 3):
        for i in range(3):
            e.wait_lg(lambda x: x == (lq, i))
            for k in range(4):
                r = IN + 12*(lq-1) + 4*i + k; d = ACC + 2*(4*i + k)
                e(f"v_dot2c_f32_bf16 v{d}, v{r}, v13\nv_dot2c_f32_bf16 v{d+1}, v{r}, v14")
    e("s_nop 2")
    H = 80
    for c3 in range(3):
        for tt in range(2):
            a = ACC + 12*tt + 4*c3
            e(f"v_cvt_pk_bf16_f32 v{H+4*c3+2*tt}, v{a}, v{a+1}\nv_cvt_pk_bf16_f32 v{H+4*c3+2*tt+1}, v{a+2}, v{a+3}")
    e("s_nop 1")
    for c3 in range(3):
        e(f"v_permlane32_swap_b32 v{H+4*c3}, v{H+4*c3+2}\nv_permlane32_swap_b32 v{H+4*c3+1}, v{H+4*c3+3}")
    TL = 96
    for c3 in range(3):
        for k in range(4):
            r = H + 4*c3 + k; x = XR + 4*c3 + k; t = TL + 2*k
            e(f"v_lshlrev_b32 v{t}, 16, v{x}\nv_and_b32 v{t+1}, 0xffff0000, v{x}")
        for k in range(4):
            r = H + 4*c3 + k; t = TL + 2*k
            e(f"v_dot2c_f32_bf16 v{t}, v{r}, v13\nv_dot2c_f32_bf16 v{t+1}, v{r}, v14")
        e("s_nop 2")
        for k in range(4):
            e(f"v_cvt_pk_bf16_f32 v{H+4*c3+k}, v{TL+2*k}, v{TL+2*k+1}")
        e(f"buffer_store_dwordx4 v[{H+4*c3}:{H+4*c3+3}], v{VST}, s[{S_HT}:{S_HT+3}], s5 offen" + (f" offset:{1024*c3}" if c3 else ""))
        for k in range(4):
            r = H + 4*c3 + k
            e(f"v_dot2c_f32_bf16 v8, v{r}, v15\nv_dot2c_f32_bf16 v9, v{r}, v{r}")
    e("s_nop 2\nv_mov_b32 v6, v8\nv_mov_b32 v7, v9\ns_nop 1\nv_permlane16_swap_b32 v6, v8\nv_permlane16_swap_b32 v7, v9\ns_nop 1\nv_add_f32 v6, v6, v8\nv_add_f32 v7, v7, v9")
    e(f"buffer_store_dwordx2 v[6:7], v{VSA}, s[{S_STT}:{S_STT+3}], s6 offen")
    e("s_branch K2_done")
    e("K2_spare:")
    if prefetch:
        e("s_load_dwordx2 s[48:49], s[0:1], 48\ns_waitcnt lgkmcnt(0)")
        srd(e, S_X, 48, 4608*576*2)
        e(f"s_sub_u32 s3, s2, 192\ns_and_b32 s5, s3, 7\ns_mul_i32 s5, s5, {576*1152}\ns_lshr_b32 s6, s3, 3\ns_mul_i32 s6, s6, {72*1152}\ns_add_u32 s5, s5, s6\nv_mov_b32 v8, {BIG}")
        for i in range(3):
            e(f"v_add_u32 v3, {256*i}, v0\nv_lshlrev_b32 v4, 7, v3\nv_cmp_gt_u32 vcc, 648, v3\ns_nop 1\nv_cndmask_b32 v4, v8, v4, vcc")
            e(f"buffer_load_dword v{10+i}, v4, s[{S_X}:{S_X+3}], s5 offen")
    else:
        e("s_waitcnt lgkmcnt(0)")
    e("K2_done:")
    if timing:
        e("s_waitcnt vmcnt(0)\ns_memtime s[62:63]\ns_memrealtime s[66:67]\ns_waitcnt lgkmcnt(0)")
        e(f"""s_sub_u32 s62, s62, s60
s_sub_u32 s66, s66, s64
s_sub_u32 s72, s72, s60
s_sub_u32 s74, s74, s60
v_mov_b32 v4, s62
v_mov_b32 v5, s66
v_mov_b32 v6, s72
v_mov_b32 v7, s74
s_lshl_b32 s38, s2, 4
s_add_u32 s38, s38, {0x8020000}
v_mov_b32 v8, s38""")
        srd(e, 68, 46, WS_BYTES)
        e("""v_cmp_eq_u32 vcc, 0, v0
s_and_saveexec_b64 s[48:49], vcc
s_cbranch_execz K2_end
buffer_store_dwordx4 v[4:7], v8, s[68:71], 0 offen""")
    e("K2_end:\ns_endpgm")
    return e.text()
if __name__ == "__main__":
    assert all((n*5462) >> 16 == n//12 for n in range(192))
    print("ok")
```

```python
from sched import *
from layout import *
import struct
def f2u(x): return struct.unpack("<I", struct.pack("<f", x))[0]

def srd(e, d, b, nbytes, off=0):
    if off:
        e(f"s_add_u32 s{d}, s{b}, {off}")
        e(f"s_addc_u32 s{d+1}, s{b+1}, 0")
        e(f"s_and_b32 s{d+1}, s{d+1}, 0xffff")
    else:
        e(f"s_mov_b32 s{d}, s{b}")
        e(f"s_and_b32 s{d+1}, s{b+1}, 0xffff")
    e(f"s_mov_b32 s{d+2}, {nbytes}")
    e(f"s_mov_b32 s{d+3}, 0x20000")

SLOT = 36864
STAMPS = [0, 36, 72, 144, 288, 432, 576, 648, 684, 720, 828, 971]
def gen_k3(C=2, budget=5, timing=False, p2order="simple", store_flags=""):
    e = Em()
    TRB = 8; V1 = 12; V3 = 21; V2 = 30; VK2 = 39; VRS = 40; VNM = 41; VL16 = 42
    T = 44
    B0 = 56; B1 = 120; G = 184
    def xraw(s): return 120 + 4*s if s < 34 else 48 + 4*(s-34)
    FR = 144
    S_W = 8; S_WD = 12; S_HT = 16; S_ST = 20; S_PT = 24
    S_J = 28; S_I = 29; S_WV = 30; S_WB = 31; S_CP = 32; S_CS = 33; S_SO = 34; S_XO = 35; S_PO = 36
    e("s_cmp_ge_u32 s2, 256\ns_cbranch_scc1 K3_end")
    e("s_load_dwordx4 s[40:43], s[0:1], 32\ns_load_dwordx2 s[44:45], s[0:1], 48\ns_load_dwordx2 s[46:47], s[0:1], 72")
    if timing: e("s_memtime s[60:61]\ns_memrealtime s[64:65]")
    ng = 16 // C; R = 32 // C
    import math
    lg = lambda x: int(math.log2(x))
    e(f"s_and_b32 s3, s2, 7\ns_lshr_b32 s4, s2, 3")
    e(f"s_and_b32 s5, s3, {ng-1}\ns_lshl_b32 s5, s5, {lg(C)}\ns_and_b32 s6, s4, {C-1}\ns_add_u32 s{S_J}, s5, s6")
    e(f"s_lshr_b32 s5, s3, {lg(ng)}\ns_lshl_b32 s5, s5, {lg(R)}\ns_lshr_b32 s6, s4, {lg(C)}\ns_add_u32 s{S_I}, s5, s6")
    e(f"v_lshrrev_b32 v1, 6, v0\nv_and_b32 v2, 63, v0\ns_nop 0\nv_readfirstlane_b32 s{S_WV}, v1")
    e(f"v_lshlrev_b32 v{VL16}, 4, v2")
    e(f"v_bfe_u32 v3, v2, 2, 3\nv_and_b32 v5, 3, v2\nv_lshlrev_b32 v5, 4, v5\nv_lshrrev_b32 v4, 5, v2\nv_lshl_add_u32 v4, v4, 6, v5")
    e(f"s_mul_i32 s{S_WB}, s{S_WV}, 9216")
    e(f"s_and_b32 s5, s{S_J}, 1\ns_mul_i32 s6, s{S_J}, 576\ns_lshl_b32 s7, s5, 6\ns_add_u32 s{S_CP}, s6, s7")
    e(f"s_xor_b32 s7, s5, 1\ns_lshl_b32 s7, s7, 9\ns_add_u32 s{S_CS}, s6, s7")
    e(f"s_and_b32 s37, s{S_WV}, 1\ns_mul_i32 s38, s37, 72\nv_add_u32 v6, s38, v3\nv_mul_u32_u24 v6, 9216, v6\nv_add_u32 v{V1}, v6, v4")
    for i in range(1, 9):
        e(f"v_add_u32 v{V1+i}, {8*i*9216 - (i%3)*1024}, v{V1}")
    e(f"s_lshl_b32 s38, s{S_I}, 2\ns_add_u32 s38, s38, s{S_WV}\ns_mul_i32 s{S_XO}, s38, 36864")
    e(f"s_lshl_b32 s39, s38, 8\nv_and_b32 v7, 31, v2\nv_lshlrev_b32 v7, 3, v7\nv_lshrrev_b32 v6, 5, v2\nv_mul_u32_u24 v6, {6*16384}, v6\nv_add_u32 v7, v7, v6")
    e(f"s_mul_i32 s{S_PO}, s{S_J}, {ACT_BYTES}\ns_add_u32 s{S_PO}, s{S_PO}, s{S_XO}")
    e("s_waitcnt lgkmcnt(0)")
    e(f"s_cmp_lt_u32 s{S_WV}, 2\ns_cselect_b32 s48, s40, s42\ns_cselect_b32 s49, s41, s43")
    srd(e, S_W, 48, 576*4608*2)
    srd(e, S_ST, 46, ST_BYTES, WS_ST)
    srd(e, S_HT, 46, ACT_BYTES, WS_HT)
    for g in range(6):
        e(f"s_add_u32 s50, s39, {g*16384}")
        e.vmem(f"buffer_load_dwordx2 v[{B0+2*g}:{B0+2*g+1}], v7, s[{S_ST}:{S_ST+3}], s50 offen", "st")
    NST = 27
    def dma_instrs(st):
        slot = st % 4
        if st < 16:
            p, q = st // 4, st % 4
            so = f"s_add_u32 s{S_SO}, s{S_CP}, {p*128 + q*144*9216}"; vb = V1; sr = S_W
        elif st < 18:
            q = st - 16
            so = f"s_add_u32 s{S_SO}, s{S_CS}, {q*288*9216}"; vb = V3; sr = S_W
        else:
            c = st - 18
            so = f"s_movk_i32 s{S_SO}, {c*128}"; vb = V2; sr = S_WD
        L = [(so, False)]
        for i in range(9):
            if i % 3 == 0:
                L.append((f"s_add_u32 m0, s{S_WB}, {slot*SLOT + i*1024}", False))
            off = f" offset:{(i%3)*1024}" if i % 3 else ""
            L.append((f"buffer_load_dwordx4 v{vb+i}, s[{sr}:{sr+3}], s{S_SO} offen{off} lds", True))
        return L
    def emit_dma_now(st):
        prev_m0 = False
        for t, d in dma_instrs(st):
            if d:
                if prev_m0: e("s_nop 0")
                e.vmem(t, ("dma", st)); prev_m0 = False
            else:
                e(t); prev_m0 = "m0" in t
    def xload(s):
        r = xraw(s)
        if s % 4 == 0:
            e(f"s_add_u32 s51, s{S_XO}, {s*1024}")
        off = f" offset:{(s%4)*1024}" if s % 4 else ""
        e.vmem(f"buffer_load_dwordx4 v[{r}:{r+3}], v{VL16}, s[{S_HT}:{S_HT+3}], s51 offen{off}", ("x", s))
    emit_dma_now(0)
    for s in range(0, 9): xload(s)
    emit_dma_now(1)
    for s in range(9, 36): xload(s)
    srd(e, S_WD, 44, 4608*576*2)
    srd(e, S_PT, 46, 16*ACT_BYTES, WS_PART)
    e(f"v_lshrrev_b32 v6, 5, v2\nv_lshlrev_b32 v6, 8, v6\nv_bfe_u32 v7, v2, 2, 2\nv_lshl_add_u32 v6, v7, 6, v6")
    e(f"v_bfe_u32 v7, v2, 4, 1\nv_lshl_add_u32 v6, v7, 5, v6\nv_and_b32 v7, 3, v2\nv_lshl_add_u32 v{TRB}, v7, 3, v6")
    for i in range(1, 4):
        e(f"v_add_u32 v{TRB+i}, {i*SLOT}, v{TRB}")
    e(f"s_mul_i32 s38, s37, 144\nv_lshrrev_b32 v6, 2, v2\nv_add_u32 v6, s38, v6\nv_mul_u32_u24 v6, 9216, v6\nv_add_u32 v{V3}, v6, v5")
    for i in range(1, 9):
        e(f"v_add_u32 v{V3+i}, {16*i*9216 - (i%3)*1024}, v{V3}")
    e(f"v_mul_u32_u24 v6, 1152, v3\nv_add_u32 v6, v6, v4")
    e(f"s_and_b32 s5, s{S_J}, 1\ns_lshl_b32 s5, s5, 5\ns_mul_i32 s6, s{S_WV}, 72\ns_add_u32 s5, s5, s6\ns_mul_i32 s7, s{S_J}, 288")
    for i in range(9):
        e(f"s_add_u32 s6, s5, {8*i}\ns_sub_u32 s38, s6, 288\ns_cmp_ge_u32 s6, 288\ns_cselect_b32 s6, s38, s6\ns_add_u32 s6, s6, s7\ns_mul_i32 s6, s6, 1152")
        if i % 3: e(f"s_sub_u32 s6, s6, {(i%3)*1024}")
        e(f"v_add_u32 v{V2+i}, s6, v6")
    c = 0.7978845608028654; l2e = 1.4426950408889634
    k1 = -2*c*l2e; k2 = k1*0.044715
    e(f"v_mov_b32 v{VK2}, {hex(f2u(k2))}")
    e.wait_vm(lambda t: t == "st")
    b = B0
    e(f"v_add_f32 v{b}, v{b}, v{b+2}\nv_add_f32 v{b+1}, v{b+1}, v{b+3}\nv_add_f32 v{b+4}, v{b+4}, v{b+6}\nv_add_f32 v{b+5}, v{b+5}, v{b+7}")
    e(f"v_add_f32 v{b+8}, v{b+8}, v{b+10}\nv_add_f32 v{b+9}, v{b+9}, v{b+11}")
    e(f"v_add_f32 v{b}, v{b}, v{b+4}\nv_add_f32 v{b+1}, v{b+1}, v{b+5}\nv_add_f32 v{b}, v{b}, v{b+8}\nv_add_f32 v{b+1}, v{b+1}, v{b+9}")
    e(f"v_mov_b32 v{b+2}, v{b}\nv_mov_b32 v{b+3}, v{b+1}\ns_nop 1\nv_permlane32_swap_b32 v{b}, v{b+2}\nv_permlane32_swap_b32 v{b+1}, v{b+3}\ns_nop 1\nv_add_f32 v{b}, v{b}, v{b+2}\nv_add_f32 v{b+1}, v{b+1}, v{b+3}")
    inv = hex(f2u(1.0/576))
    e(f"v_mul_f32 v{b}, {inv}, v{b}\nv_mul_f32 v{b+1}, {inv}, v{b+1}")
    e(f"v_fma_f32 v{b+1}, -v{b}, v{b}, v{b+1}\nv_max_f32 v{b+1}, 0, v{b+1}")
    e(f"v_cvt_pk_bf16_f32 v{b+2}, v{b}, v{b+1}\nv_lshlrev_b32 v{b}, 16, v{b+2}\nv_and_b32 v{b+1}, 0xffff0000, v{b+2}")
    e(f"v_add_f32 v{b+1}, {hex(f2u(1e-5))}, v{b+1}\nv_cvt_pk_bf16_f32 v{b+1}, v{b+1}, v{b+1}\nv_and_b32 v{b+1}, 0xffff0000, v{b+1}")
    e(f"v_sqrt_f32 v{b+1}, v{b+1}\ns_nop 0\nv_cvt_pk_bf16_f32 v{b+1}, v{b+1}, v{b+1}\nv_and_b32 v{b+1}, 0xffff0000, v{b+1}")
    e(f"v_rcp_f32 v{VRS}, v{b+1}\ns_nop 0\nv_mul_f32 v{VNM}, v{b}, v{VRS}\nv_sub_f32 v{VNM}, 0, v{VNM}")

    M = []
    for p in range(4):
        buf = B0 if p % 2 == 0 else B1
        for q in range(4):
            st = 4*p + q
            for s in range(9):
                ks = 9*q + s
                for uu in range(2):
                    for mat in range(2):
                        o = (mat*18 + 2*s)*1024 + uu*512
                        M.append(dict(acc=buf + 32*uu + 16*mat, b=f"a[{4*ks}:{4*ks+3}]", first=(ks == 0), last=(ks == 35),
                                      st=st, rd=(o, o + 1024), xs=ks if p == 0 else None, unit=2*p+uu, mat=mat, ph=1))
    for q in range(2):
        st = 16 + q
        for s in range(18):
            ks = 18*q + s
            for mat in range(2):
                o = (mat*18 + s)*1024
                M.append(dict(acc=B0 + 16*mat, b=f"a[{4*ks}:{4*ks+3}]", first=(ks == 0), last=(ks == 35), st=st, rd=(o, o + 512), xs=None, unit=8, mat=mat, ph=1))
    p2bufs = [B0 + 32, B1, B1 + 32, B0]
    for c in range(9):
        st = 18 + c
        for s in range(18):
            for uu in range(2):
                o = (2*s)*1024 + uu*512
                g = G + 4*s
                M.append(dict(acc=p2bufs[c % 4] + 16*uu, b=f"v[{g}:{g+3}]", first=(s == 0), last=(s == 17), st=st, rd=(o, o + 1024), xs=None, gks=s, c=c, uu=uu, ph=2))
    NM = len(M); assert NM == 972
    LA = 8
    q = Queue(e, window=10)
    xdone = {}
    gdone = {}
    tstate = {"last": [None, None]}
    def add_norm(s):
        r = xraw(s)
        w = q.add(Op(lambda s=s: e.wait_vm(lambda t: t == ("x", s)), cost=1))
        last = None
        for d in range(4):
            t = T + (d % 4)
            prev = tstate.get(("n", t))
            o1 = q.add(Op(f"v_lshlrev_b32 v{t}, 16, v{r+d}", deps=[(w, 0)] + ([(prev, 0)] if prev else [])))
            o2 = q.add(Op(f"v_and_b32 v{r+d}, 0xffff0000, v{r+d}", deps=[(o1, 0)]))
            o3 = q.add(Op(f"v_fma_f32 v{t}, v{t}, v{VRS}, v{VNM}", deps=[(o1, 0)]))
            o4 = q.add(Op(f"v_fma_f32 v{r+d}, v{r+d}, v{VRS}, v{VNM}", deps=[(o2, 0)]))
            o5 = q.add(Op(f"v_cvt_pk_bf16_f32 v{r+d}, v{t}, v{r+d}", deps=[(o3, 0), (o4, 0)]))
            tstate[("n", t)] = o5
            o6 = q.add(Op(f"v_accvgpr_write_b32 a{4*s+d}, v{r+d}", deps=[(o5, 0)]))
            last = (last or []) + [o6]
        xdone[s] = last
    pairctr = [0]
    def add_gelu(unit, gacc, uacc, mg, mu):
        for k in range(8):
            ts = pairctr[0] % 2; pairctr[0] += 1
            ta, tb = T + 2*ts, T + 2*ts + 1
            ga, gb, ua, ub = gacc + 2*k, gacc + 2*k + 1, uacc + 2*k, uacc + 2*k + 1
            prev = tstate["last"][ts]
            d0 = [(mg, 14)] + ([(prev, 0)] if prev else [])
            sa = q.add(Op(f"v_mul_f32 v{ta}, v{ga}, v{ga}", deps=d0))
            sb = q.add(Op(f"v_mul_f32 v{tb}, v{gb}, v{gb}", deps=d0))
            fa = q.add(Op(f"v_fmaak_f32 v{ta}, v{ta}, v{VK2}, {hex(f2u(k1))}", deps=[(sa, 0)]))
            fb = q.add(Op(f"v_fmaak_f32 v{tb}, v{tb}, v{VK2}, {hex(f2u(k1))}", deps=[(sb, 0)]))
            aa = q.add(Op(f"v_mul_f32 v{ta}, v{ga}, v{ta}", deps=[(fa, 0)]))
            ab = q.add(Op(f"v_mul_f32 v{tb}, v{gb}, v{tb}", deps=[(fb, 0)]))
            ea = q.add(Op(f"v_exp_f32 v{ta}, v{ta}", cost=2, deps=[(aa, 0)]))
            pa = q.add(Op(f"v_mul_f32 v{ua}, v{ga}, v{ua}", deps=[(mg, 14), (mu, 14)]))
            eb = q.add(Op(f"v_exp_f32 v{tb}, v{tb}", cost=2, deps=[(ab, 0)]))
            pb = q.add(Op(f"v_mul_f32 v{ub}, v{gb}, v{ub}", deps=[(mg, 14), (mu, 14)]))
            da = q.add(Op(f"v_add_f32 v{ta}, 1.0, v{ta}", deps=[(ea, 1)]))
            db = q.add(Op(f"v_add_f32 v{tb}, 1.0, v{tb}", deps=[(eb, 1)]))
            ra = q.add(Op(f"v_rcp_f32 v{ta}, v{ta}", cost=2, deps=[(da, 0)]))
            rb = q.add(Op(f"v_rcp_f32 v{tb}, v{tb}", cost=2, deps=[(db, 0)]))
            ya = q.add(Op(f"v_mul_f32 v{ta}, v{ua}, v{ta}", deps=[(ra, 1), (pa, 0)]))
            yb = q.add(Op(f"v_mul_f32 v{tb}, v{ub}, v{tb}", deps=[(rb, 1), (pb, 0)]))
            cv = q.add(Op(f"v_cvt_pk_bf16_f32 v{G + 8*unit + k}, v{ta}, v{tb}", deps=[(ya, 0), (yb, 0)]))
            tstate["last"][ts] = cv
            gdone.setdefault(2*unit + k//4, []).append(cv)
            bufuse.setdefault(gacc, []).append(cv); bufuse.setdefault(uacc, []).append(cv)
    bufuse = {}
    stq = []
    def add_out(c, uu, acc, mo):
        prev = None; cvs = []
        for i in range(8):
            o = q.add(Op(f"v_cvt_pk_bf16_f32 v{acc+i}, v{acc+2*i}, v{acc+2*i+1}", deps=[(mo, 14)] + ([(prev, 0)] if prev else [])))
            prev = o; cvs.append(o)
        for h in range(2):
            fr = 4*c + 2*uu + h
            stq.append(dict(fr=fr, r=acc + 4*h, dep=cvs[4*h+3], acc=acc))
    def emit_op(o, _orig=e.op):
        if callable(o.text):
            o.text(); o.pos = e.n - 1; return o
        return _orig(o)
    e.op = emit_op
    def reads(m):
        d = M[m]; fr = FR + 4*(m % 12); vb = TRB + d["st"] % 4
        e.ds(f"ds_read_b64_tr_b16 a[{fr}:{fr+1}], v{vb} offset:{d['rd'][0]}", m)
        e.ds(f"ds_read_b64_tr_b16 a[{fr+2}:{fr+3}], v{vb} offset:{d['rd'][1]}", m)
    def emit_store(sd):
        fr = sd["fr"]
        if fr % 4 == 0:
            e(f"s_add_u32 s52, s{S_PO}, {fr*1024}")
        off = f" offset:{(fr%4)*1024}" if fr % 4 else ""
        o = e.vmem(f"buffer_store_dwordx4 v[{sd['r']}:{sd['r']+3}], v{VL16}, s[{S_PT}:{S_PT+3}], s52 offen{off}{store_flags}", "store", deps=[(sd["dep"], 0)])
        sd["done"] = True
        return 2 if fr % 4 == 0 else 1
    for s in range(36): add_norm(s)
    e.wait_vm(lambda t: t == ("dma", 0))
    e("s_barrier")
    for m in range(LA): reads(m)
    q.drain_until(xdone[1][-1])
    dmaq = list(dma_instrs(2)); dma_st = 2
    lastm = {}
    e.wait_lg(lambda t: t <= 3)
    for m in range(NM):
        d = M[m]
        deps = []
        if d["xs"] is not None:
            for o in xdone[d["xs"]]:
                if o.pos is None: q.drain_until(o)
                deps.append((o, 2))
        if d["ph"] == 2:
            for o in gdone[d["gks"]]:
                if o.pos is None: q.drain_until(o)
                deps.append((o, 2))
        if d["first"]:
            for o in bufuse.get(d["acc"], []):
                if o.pos is None: q.drain_until(o)
            bufuse[d["acc"]] = []
            for sd in [x for x in stq if x["acc"] == d["acc"]]:
                if sd["dep"].pos is None: q.drain_until(sd["dep"])
                while stq and not sd.get("done"):
                    x = stq.pop(0)
                    if x["dep"].pos is None: q.drain_until(x["dep"])
                    emit_store(x)
                e("s_nop 1")
        fr = FR + 4*(m % 12); a = d["acc"]
        cs = "0" if d["first"] else f"v[{a}:{a+15}]"
        mo = e.op(Op(f"v_mfma_f32_32x32x16_bf16 v[{a}:{a+15}], a[{fr}:{fr+3}], {d['b']}, {cs}", deps=deps))
        used = 0
        if timing and m in STAMPS:
            k = STAMPS.index(m)
            e(f"s_memtime s[{72+2*k}:{73+2*k}]")
        if d["last"]:
            if d["ph"] == 1:
                lastm[(d["unit"], d["mat"])] = mo
                if d["mat"] == 1:
                    add_gelu(d["unit"], a - 16, a, lastm[(d["unit"], 0)], mo)
            else:
                add_out(d["c"], d["uu"], a, mo)
        mr = m + LA
        if mr < NM:
            if mr % 36 == 0:
                st = mr // 36
                assert not dmaq
                if e.wait_vm(lambda t: t == ("dma", st)): used += 1
                e("s_barrier"); used += 2
                if st + 2 < NST:
                    dmaq = list(dma_instrs(st + 2)); dma_st = st + 2
                reads(mr); used += 2
            else:
                reads(mr); used += 2
                if dmaq and (mr % 2 == 1):
                    t, isd = dmaq.pop(0)
                    if isd: e.vmem(t, ("dma", dma_st))
                    else: e(t)
                    used += 1
                elif stq and stq[0]["dep"].pos is not None:
                    used += emit_store(stq.pop(0))
        elif stq and stq[0]["dep"].pos is not None:
            used += emit_store(stq.pop(0))
        needwait = (m + 1) % 4 == 0 and m + 1 < NM
        bud = budget - used - (1 if needwait else 0)
        if m < 140: bud = 7
        if bud > 0: q.fill(bud)
        if needwait:
            e.wait_lg(lambda t: t <= m + 4)
    q.drain()
    while stq: emit_store(stq.pop(0))
    if timing:
        e("s_waitcnt vmcnt(0)\ns_barrier\ns_memtime s[62:63]\ns_memrealtime s[66:67]\ns_waitcnt lgkmcnt(0)")
        e(f"""s_sub_u32 s62, s62, s60
s_sub_u32 s66, s66, s64
v_mov_b32 v2, s62
v_mov_b32 v3, s66
s_lshl_b32 s38, s2, 3
s_add_u32 s38, s38, {0x8000000}
v_mov_b32 v4, s38""")
        srd(e, 68, 46, WS_BYTES)
        e("""v_cmp_eq_u32 vcc, 0, v0
s_and_saveexec_b64 s[48:49], vcc
s_cbranch_execz K3_end
buffer_store_dwordx2 v[2:3], v4, s[68:71], 0 offen""")
        e(f"s_lshl_b32 s38, s2, 6\ns_add_u32 s38, s38, {0x8001000}\nv_mov_b32 v4, s38")
        for k in range(len(STAMPS)):
            e(f"s_sub_u32 s38, s{72+2*k}, s60\nv_mov_b32 v2, s38\nbuffer_store_dword v2, v4, s[68:71], 0 offen offset:{4*k}\ns_nop 1")
    e("K3_end:\ns_endpgm")
    return e.text()
```

```python
from sched import *
from layout import *
from k3 import srd
def gen_k4(C=2, timing=False):
    e = Em()
    e("s_cmp_ge_u32 s2, 256\ns_cbranch_scc1 K4_end")
    e("s_load_dwordx2 s[44:45], s[0:1], 56\ns_load_dwordx2 s[46:47], s[0:1], 72")
    e("s_and_b32 s3, s2, 7\ns_lshr_b32 s4, s2, 3\ns_lshr_b32 s5, s4, 2\ns_lshl_b32 s3, s3, 3\ns_add_u32 s5, s5, s3\ns_and_b32 s6, s4, 3")
    e("v_lshrrev_b32 v1, 6, v0\nv_and_b32 v2, 63, v0\ns_nop 0\nv_readfirstlane_b32 s7, v1\nv_lshlrev_b32 v3, 4, v2")
    e("s_mul_i32 s6, s6, 9\ns_add_u32 s6, s6, s7")
    e("s_mul_i32 s28, s5, 36\ns_add_u32 s28, s28, s6\ns_lshl_b32 s28, s28, 10")
    e("s_waitcnt lgkmcnt(0)")
    srd(e, 8, 46, 16*ACT_BYTES, WS_PART)
    srd(e, 12, 46, ACT_BYTES, WS_HT)
    srd(e, 16, 44, ACT_BYTES)
    for j in range(16):
        e(f"s_add_u32 s29, s28, {j*ACT_BYTES}")
        e.vmem(f"buffer_load_dwordx4 v[{16+4*j}:{19+4*j}], v3, s[8:11], s29 offen", j)
    e.vmem(f"buffer_load_dwordx4 v[80:83], v3, s[12:15], s28 offen", "h")
    e("v_and_b32 v4, 31, v2\nv_mul_u32_u24 v4, 1152, v4\nv_lshrrev_b32 v5, 5, v2\nv_lshl_add_u32 v4, v5, 4, v4")
    e("s_mul_i32 s30, s5, 36864\ns_lshl_b32 s31, s6, 5\ns_add_u32 s30, s30, s31")
    e("s_mov_b32 s32, 0xffff0000")
    for j in range(16):
        e.wait_vm(lambda t: t == j)
        for d in range(4):
            r = 16 + 4*j + d
            if j == 0:
                e(f"v_lshlrev_b32 v{6+2*d}, 16, v{r}\nv_and_b32 v{7+2*d}, s32, v{r}")
            else:
                e(f"v_lshlrev_b32 v14, 16, v{r}\nv_and_b32 v15, s32, v{r}\nv_add_f32 v{6+2*d}, v{6+2*d}, v14\nv_add_f32 v{7+2*d}, v{7+2*d}, v15")
    e.wait_vm(lambda t: t == "h")
    for d in range(4):
        e(f"v_cvt_pk_bf16_f32 v14, v{6+2*d}, v{7+2*d}\nv_lshlrev_b32 v{6+2*d}, 16, v14\nv_and_b32 v{7+2*d}, s32, v14")
        e(f"v_lshlrev_b32 v14, 16, v{80+d}\nv_and_b32 v15, s32, v{80+d}\nv_add_f32 v{6+2*d}, v{6+2*d}, v14\nv_add_f32 v{7+2*d}, v{7+2*d}, v15")
        e(f"v_cvt_pk_bf16_f32 v{16+d}, v{6+2*d}, v{7+2*d}")
    e("s_nop 1\nv_permlane32_swap_b32 v16, v18\nv_permlane32_swap_b32 v17, v19\ns_nop 0")
    e("buffer_store_dwordx4 v[16:19], v4, s[16:19], s30 offen")
    e("K4_end:\ns_endpgm")
    return e.text()
```

```python
import re
class Op:
    def __init__(self, text, cost=1, deps=(), tag=None):
        self.text = text; self.cost = cost; self.deps = list(deps); self.pos = None; self.tag = tag

class Em:
    def __init__(self):
        self.lines = []
        self.n = 0
        self.vm = []
        self.vm_done = 0
        self.lg = []
        self.lg_done = 0
    def raw(self, s):
        self.lines.append(s)
    def __call__(self, s):
        for l in s.split("\n"):
            l = l.strip()
            if not l: continue
            if l.endswith(":") or l.startswith(".") or l.startswith(";"):
                self.lines.append(l); continue
            self.lines.append("  " + l)
            m = re.match(r"s_nop (\d+)", l)
            self.n += (int(m.group(1)) + 1) if m else 1
    def op(self, o):
        need = 0
        for d, ws in o.deps:
            assert d.pos is not None, f"dep not emitted for {o.text}: {d.text}"
            need = max(need, ws - (self.n - d.pos - 1))
        while need > 0:
            k = min(need, 16)
            self(f"s_nop {k-1}"); need -= k
        o.pos = self.n
        self(o.text)
        return o
    def ready(self, o):
        for d, ws in o.deps:
            if d.pos is None or (self.n - d.pos - 1) < ws: return False
        return True
    def vmem(self, text, tag=None, deps=()):
        o = self.op(Op(text, deps=deps)); self.vm.append(tag); return o
    def wait_vm(self, pred, force=False):
        idx = max([i for i, t in enumerate(self.vm) if pred(t)], default=-1)
        if idx < self.vm_done and not force: return False
        n = len(self.vm) - 1 - idx
        assert n <= 63 or True
        n = min(n, 63)
        self(f"s_waitcnt vmcnt({n})")
        self.vm_done = len(self.vm) - n
        return True
    def ds(self, text, tag=None, deps=()):
        o = self.op(Op(text, deps=deps)); self.lg.append(tag); return o
    def wait_lg(self, pred):
        idx = max([i for i, t in enumerate(self.lg) if pred(t)], default=-1)
        if idx < self.lg_done: return False
        n = min(len(self.lg) - 1 - idx, 15)
        self(f"s_waitcnt lgkmcnt({n})")
        self.lg_done = len(self.lg) - n
        return True
    def wait_all(self):
        self("s_waitcnt vmcnt(0) lgkmcnt(0)")
        self.vm_done = len(self.vm); self.lg_done = len(self.lg)
    def text(self):
        return "\n".join(self.lines) + "\n"

class Queue:
    def __init__(self, em, window=12):
        self.em = em; self.q = []; self.window = window
    def add(self, op):
        self.q.append(op); return op
    def fill(self, budget):
        used = 0
        progress = True
        while progress and used < budget and self.q:
            progress = False
            for i, o in enumerate(self.q[:self.window]):
                if o.cost <= budget - used and self.em.ready(o):
                    if o.tag == "vm":
                        continue
                    self.em.op(o); used += o.cost; self.q.pop(i); progress = True
                    break
        return used
    def drain_until(self, op):
        while op.pos is None:
            pick = None
            for i, o in enumerate(self.q[:self.window]):
                if self.em.ready(o): pick = i; break
            if pick is None:
                for i, o in enumerate(self.q):
                    if all(d.pos is not None for d, _ in o.deps): pick = i; break
            o = self.q.pop(pick)
            self.em.op(o)
    def drain(self):
        while self.q:
            self.drain_until(self.q[-1])
```

```python
import sys
from asmgen import kernel_header, kernel_desc
from k1 import gen_k1
from k2 import gen_k2
from k3 import gen_k3
from k4 import gen_k4
P = dict(C=2, budget=5, flags="", timing=0, pf=1, extra=0)
for kv in sys.argv[1:]:
    k, v = kv.split("="); P[k] = v if k == "flags" else int(v)
fl = (" " + P["flags"].replace("+", " ")) if P["flags"] else ""
T = bool(P["timing"])
hdr = open("sequential_preLN__linear_attn_block__geglu_ffn__prompt.s.ref").read().split("; Override")[0]
print(hdr, end="")
print("; @launch kernel=k1_kernel grid=(256,1,1) block=(256,1,1) lds=149504")
print("; @launch kernel=k2_kernel grid=(256,1,1) block=(256,1,1) lds=159744")
print("; @launch kernel=k3_kernel grid=(256,1,1) block=(256,1,1) lds=147456")
print("; @launch kernel=k4_kernel grid=(256,1,1) block=(576,1,1) lds=0")
for i in range(P["extra"]):
    print("; @launch kernel=nop_kernel grid=(256,1,1) block=(256,1,1) lds=0")
print('.amdgcn_target "amdgcn-amd-amdhsa--gfx950"\n.text')
print(kernel_header("k1_kernel") + gen_k1(timing=T, prefetch=P["pf"]) + kernel_desc("k1_kernel", 256, 100, 256))
print(kernel_header("k2_kernel") + gen_k2(timing=T, prefetch=P["pf"]) + kernel_desc("k2_kernel", 256+184, 100, 256))
print(kernel_header("k3_kernel") + gen_k3(C=P["C"], budget=P["budget"], timing=T, store_flags=fl) + kernel_desc("k3_kernel", 256+192, 100, 256))
print(kernel_header("k4_kernel") + gen_k4() + kernel_desc("k4_kernel", 84, 64, 84))
if P["extra"]:
    print(kernel_header("nop_kernel") + "  s_endpgm\n" + kernel_desc("nop_kernel", 8, 16, 8))
```

```python
from sched import *
from layout import *
from tim import Tim
from k3 import srd, f2u
L2E = 1.4426950408889634; LN2 = 0.6931471805599453
BIG = 0x40000000
LBIG = 0x30000
SLOT = 36864
XCH = 147456

def mask64(fn):
    m = 0
    for l in range(64):
        if fn(l): m |= 1 << l
    return m
def smask(e, s, m):
    e(f"s_mov_b32 s{s}, {hex(m & 0xffffffff)}\ns_mov_b32 s{s+1}, {hex(m >> 32)}")

def ln_stats2(e, items):
    inv = hex(f2u(1.0/576))
    seq = ["v_mul_f32 v{vs}, " + inv + ", v{vs}", "v_mul_f32 v{vq}, " + inv + ", v{vq}",
           "v_fma_f32 v{vq}, -v{vs}, v{vs}, v{vq}", "v_max_f32 v{vq}, 0, v{vq}",
           "v_cvt_pk_bf16_f32 v{t}, v{vs}, v{vq}", "v_lshlrev_b32 v{vs}, 16, v{t}", "v_and_b32 v{vq}, 0xffff0000, v{t}",
           "v_add_f32 v{vq}, " + hex(f2u(1e-5)) + ", v{vq}", "v_cvt_pk_bf16_f32 v{vq}, v{vq}, v{vq}", "v_and_b32 v{vq}, 0xffff0000, v{vq}",
           "v_sqrt_f32 v{vq}, v{vq}", "NOP", "v_cvt_pk_bf16_f32 v{vq}, v{vq}, v{vq}", "v_and_b32 v{vq}, 0xffff0000, v{vq}",
           "v_rcp_f32 v{rs}, v{vq}", "NOP", "v_mul_f32_e64 v{nm}, -v{vs}, v{rs}"]
    for s in seq:
        if s == "NOP":
            if len(items) == 1: e("s_nop 0")
            continue
        for (vs, vq, t, rs, nm) in items:
            e(s.format(vs=vs, vq=vq, t=t, rs=rs, nm=nm))

def code_prefetch(e, lab, start, endlab, lanereg, dst, soff):
    e(f"s_getpc_b64 s[4:5]\n{lab}:\ns_add_u32 s4, s4, {start}-{lab}\ns_addc_u32 s5, s5, 0")
    e(f"v_lshlrev_b32 v{dst}, 7, v{lanereg}\nv_add_u32 v{dst}, s{soff}, v{dst}\nv_min_u32 v{dst}, {endlab}-{start}, v{dst}\nv_mov_b32 v{dst+1}, 0")
    e(f"v_lshl_add_u64 v[{dst}:{dst+1}], v[{dst}:{dst+1}], 0, s[4:5]\nglobal_load_dword v{dst+2}, v[{dst}:{dst+1}], off")

def gen_k1(timing=False, prefetch=True, dbg=0, cpf=True):
    e = Em()
    tm = Tim(e, 1, timing)
    AB = 12; AC = 16; T = 20; ONES = 24; XF = 28; WF = 44; ACC = 116; SUM = 188; SQ = 196; CS = 204
    WA = 216; GA = 230; ZB = 236
    VX = 4; VW = 8
    S_X = 8; S_W = 12; S_O = 16; S_DBG = 20
    S_I = 28; S_G = 29; S_KV = 30; S_WV = 31; S_XO = 32; S_WO = 33; S_ST = 34; S_CNT = 35; S_SL = 36; S_DS = 37; S_WB = 38; S_XB = 39; S_WOB = 52
    e("s_cmp_ge_u32 s2, 256\ns_cbranch_scc1 K1_end")
    e("s_load_dwordx4 s[40:43], s[0:1], 0\ns_load_dwordx4 s[44:47], s[0:1], 64")
    tm.start()
    e(f"v_lshrrev_b32 v1, 6, v0\nv_and_b32 v2, 63, v0\ns_cmp_lt_u32 s2, 64\nv_readfirstlane_b32 s{S_WV}, v1\ns_cbranch_scc1 K1_spare")
    e(f"""s_and_b32 s3, s2, 7
s_lshr_b32 s4, s2, 3
s_sub_u32 s4, s4, 8
s_lshr_b32 s5, s3, 1
s_lshl_b32 s5, s5, 2
s_and_b32 s6, s4, 3
s_add_u32 s{S_I}, s5, s6
s_lshr_b32 s4, s4, 2
s_and_b32 s3, s3, 1
s_lshl_b32 s5, s3, 2
s_add_u32 s5, s5, s4
s_lshl_b32 s6, s3, 1
s_add_u32 s6, s6, s4
s_sub_u32 s6, s6, 4
s_cmp_lt_u32 s4, 4
s_cselect_b32 s{S_G}, s5, s6
s_cselect_b32 s{S_KV}, 1, 0
s_cmp_lt_u32 s{S_WV}, 4
s_cbranch_scc1 K1_comp""")
    e(f"s_sub_u32 s{S_WV}, s{S_WV}, 4")
    e(f"s_mul_i32 s5, s3, 6\ns_add_u32 s5, s5, s4\ns_add_u32 s5, s5, s{S_I}")
    for _ in range(2):
        e(f"s_sub_u32 s6, s5, 9\ns_cmp_ge_u32 s5, 9\ns_cselect_b32 s5, s6, s5")
    e(f"s_mov_b32 s{S_ST}, s5")
    e(f"v_lshrrev_b32 v3, 3, v2\nv_and_b32 v{T}, 7, v2\nv_lshrrev_b32 v{T+1}, 1, v3\nv_xor_b32 v{T}, v{T}, v{T+1}")
    e(f"v_mul_u32_u24 v3, 1152, v3\nv_lshl_add_u32 v{VX}, v{T}, 4, v3\nv_xor_b32 v{T}, 4, v{T}\nv_lshl_add_u32 v{VX+1}, v{T}, 4, v3")
    e(f"v_add_u32 v{VX+1}, {8*1152-1024}, v{VX+1}\nv_add_u32 v{VX+2}, {16*1152-2048}, v{VX}\nv_add_u32 v{VX+3}, {16*1152-2048}, v{VX+1}")
    e(f"""s_lshl_b32 s5, s{S_I}, 2
s_add_u32 s5, s5, s{S_WV}
s_mul_i32 s{S_XB}, s5, {32*1152}
s_lshl_b32 s5, s{S_ST}, 7
s_add_u32 s{S_XO}, s{S_XB}, s5
s_mul_i32 s{S_WB}, s{S_WV}, 9216
s_mov_b32 s{S_DS}, s{S_WB}
s_mul_i32 s5, s{S_G}, 144
s_add_u32 s6, s5, 1152
s_lshl_b32 s5, s5, 1
s_cmp_eq_u32 s{S_KV}, 1
s_cselect_b32 s6, s6, s5
s_cselect_b32 s7, {1152-144}, 0
s_mul_i32 s{S_WOB}, s{S_WV}, {16*3456}
s_add_u32 s{S_WOB}, s{S_WOB}, s6
s_mul_i32 s5, s{S_ST}, {64*3456}
s_add_u32 s{S_WO}, s{S_WOB}, s5""")
    e("s_waitcnt lgkmcnt(0)")
    srd(e, S_X, 40, ACT_BYTES)
    def dma_x():
        e(f"s_mov_b32 m0, s{S_DS}\ns_nop 0")
        for b in range(4):
            e(f"buffer_load_dwordx4 v{VX+b}, s[{S_X}:{S_X+3}], s{S_XO} offen" + (f" offset:{b*1024}" if b else "") + " lds")
    def dma_w():
        e(f"s_add_u32 m0, s{S_DS}, 4096\ns_nop 0")
        for i in range(4):
            e(f"buffer_load_dwordx4 v{VW+i}, s[{S_W}:{S_W+3}], s{S_WO} offen" + (f" offset:{i*1024}" if i else "") + " lds")
        e(f"s_add_u32 m0, s{S_DS}, 8192\ns_add_u32 s{S_ST}, s{S_ST}, 1")
        e(f"buffer_load_dwordx4 v{VW+4}, s[{S_W}:{S_W+3}], s{S_WO} offen lds")
        e(f"""s_add_u32 s{S_XO}, s{S_XO}, 128
s_add_u32 s{S_WO}, s{S_WO}, {64*3456}
s_cmp_eq_u32 s{S_ST}, 9
s_cselect_b32 s{S_ST}, 0, s{S_ST}
s_cselect_b32 s{S_XO}, s{S_XB}, s{S_XO}
s_cselect_b32 s{S_WO}, s{S_WOB}, s{S_WO}
s_add_u32 s{S_DS}, s{S_DS}, {SLOT}
s_cmp_ge_u32 s{S_DS}, {4*SLOT}
s_cselect_b32 s{S_DS}, s{S_WB}, s{S_DS}""")
    dma_x()
    srd(e, S_W, 42, 576*1728*2)
    e(f"v_mov_b32 v{T+2}, s7")
    for i in range(5):
        r = VW + i
        e(f"v_add_u32 v3, {64*i}, v2\nv_mul_u32_u24 v{T}, 3641, v3\nv_lshrrev_b32 v{T}, 16, v{T}\nv_mul_u32_u24 v{T+1}, 18, v{T}\nv_sub_u32 v3, v3, v{T+1}")
        e(f"v_cmp_lt_u32 s[48:49], 8, v3\nv_lshrrev_b32 v{T+1}, 1, v{T}\nv_and_b32 v{T+1}, 4, v{T+1}\nv_xor_b32 v{T}, v{T}, v{T+1}\nv_mul_u32_u24 v{T}, 3456, v{T}")
        e(f"v_lshl_add_u32 v{T}, v3, 4, v{T}\nv_cndmask_b32 v3, 0, v{T+2}, s[48:49]")
        comp = (i % 4) * 1024
        e(f"v_add_u32 v{r}, v{T}, v3")
        if comp: e(f"v_subrev_u32 v{r}, {comp}, v{r}")
    e(f"v_cmp_gt_u32 s[48:49], 32, v2\nv_mov_b32 v3, {BIG}\ns_nop 0\nv_cndmask_b32 v{VW+4}, v3, v{VW+4}, s[48:49]")
    dma_w()
    e(f"s_mov_b32 s{S_CNT}, 0\nK1_ld:")
    dma_x(); dma_w()
    e(f"s_waitcnt vmcnt(9)\ns_barrier\ns_add_u32 s{S_CNT}, s{S_CNT}, 1\ns_cmp_lt_u32 s{S_CNT}, 8\ns_cbranch_scc1 K1_ld")
    e("s_waitcnt vmcnt(0)\ns_barrier\ns_endpgm")
    e("K1_comp:")
    if cpf:
        e(f"s_lshl_b32 s6, s{S_WV}, 13")
        e(f"s_cmp_ge_u32 s{S_WV}, 2\ns_cbranch_scc1 K1_nocpf")
        code_prefetch(e, "K1_pc", "K1_nocpf", "K1_end", 2, 4, 6)
        e("K1_nocpf:")
    e(f"s_mul_i32 s{S_WB}, s{S_WV}, 9216")
    e(f"v_and_b32 v{T}, 15, v2\nv_lshrrev_b32 v{T+1}, 4, v2")
    e(f"v_lshrrev_b32 v3, 1, v{T}\nv_xor_b32 v3, v3, v{T+1}\nv_lshlrev_b32 v3, 4, v3\nv_lshl_add_u32 v3, v{T}, 7, v3\nv_add_u32 v{AB}, s{S_WB}, v3\nv_xor_b32 v3, 64, v3\nv_add_u32 v{AB+1}, s{S_WB}, v3")
    e(f"v_and_b32 v3, 1, v{T+1}\nv_mul_u32_u24 v3, 12, v3\nv_bfe_u32 v{T+2}, v2, 2, 2\nv_add_u32 v3, v3, v{T+2}")
    e(f"v_xor_b32 v{T+2}, 4, v3\nv_mul_u32_u24 v3, 288, v3\nv_mul_u32_u24 v{T+2}, 288, v{T+2}")
    e(f"v_lshrrev_b32 v{AC}, 5, v2\nv_mul_u32_u24 v{AC}, 9216, v{AC}\nv_and_b32 v{AC+1}, 3, v2\nv_lshl_add_u32 v{AC}, v{AC+1}, 3, v{AC}\nv_add_u32 v{AC}, 4096, v{AC}")
    e(f"v_add_u32 v{AB+2}, v{AC}, v3\nv_add_u32 v{AB+3}, v{AC}, v{T+2}")
    for i in range(4): e(f"v_mov_b32 v{ONES+i}, 0x3f803f80")
    for i in range(4): e(f"v_mov_b32 v{XF+i}, 0")
    e("s_nop 1")
    for r in range(ACC, ACC + 96, 16):
        e(f"v_mfma_f32_32x32x16_bf16 v[{r}:{r+15}], v[{XF}:{XF+3}], v[{XF}:{XF+3}], 0")
    e(f"v_mfma_f32_16x16x32_bf16 v[{ACC+96}:{ACC+99}], v[{XF}:{XF+3}], v[{XF}:{XF+3}], 0")
    e(f"s_mov_b32 s{S_CNT}, 0\ns_mov_b32 s{S_SL}, {SLOT}")
    e("s_waitcnt lgkmcnt(0)")
    e(f"s_cmp_eq_u32 s{S_KV}, 0\ns_cbranch_scc1 K1_q")
    srd(e, S_DBG, 44, 256)
    srd(e, S_O, 46, KV_BYTES, WS_KV)
    pairs = []
    for hl in range(4):
        for a in (hl, hl + 1):
            for b in (hl + 4, hl + 5):
                if (a, b) not in pairs: pairs.append((a, b))
    e(f"s_mul_i32 s5, s{S_WV}, 6144\nv_mul_u32_u24 v3, 80, v{T}\nv_lshl_add_u32 v3, v{T+1}, 4, v3\nv_add_u32 v3, s5, v3\nv_mov_b32 v{T+3}, {LBIG}")
    for k, (a, b) in enumerate(pairs):
        first = True
        for hl in range(4):
            def valid(l):
                n, g = l & 15, l >> 4
                ec = 16*(b-4) - 8 + n
                if ec < 0 or ec // 18 != hl: return False
                return 0 <= 4*a + g - (9*hl)//2 < 5
            m = mask64(valid)
            if not m: continue
            const = hl*1520 + (16*(b-4) - 8 - 18*hl)*80 + (4*a - (9*hl)//2)*16
            smask(e, 48, m)
            e(f"v_add_u32 v{T+2}, {const & 0xffffffff}, v3\nv_cndmask_b32 v{WA+k}, v{T+3 if first else WA+k}, v{T+2}, s[48:49]")
            first = False
    e(f"v_add_u32 v3, 1, v{T}\nv_lshrrev_b32 v3, 1, v3\nv_lshrrev_b32 v{T+2}, 1, v{T}\nv_lshl_add_u32 v{AC}, v3, 2, v{T+1}\nv_mul_u32_u24 v{AC+1}, 9, v{T+2}\nv_lshrrev_b32 v{AC+1}, 1, v{AC+1}\nv_sub_u32 v{AC}, v{AC}, v{AC+1}")
    smask(e, 48, mask64(lambda l: (l & 15) < 8 and 0 <= 4*(((l & 15) + 1) >> 1) + (l >> 4) - (9*((l & 15) >> 1))//2 < 5))
    e(f"v_mul_u32_u24 v{T+2}, 1520, v{T+2}\nv_lshl_add_u32 v{AC}, v{AC}, 4, v{T+2}\ns_add_u32 s5, s5, {18*80}\nv_add_u32 v{AC}, s5, v{AC}\nv_cndmask_b32 v{WA+13}, v{T+3}, v{AC}, s[48:49]")
    for a in range(5):
        smask(e, 48, mask64(lambda l: (l & 15) < 8 and ((l & 15) + 1) >> 1 == a))
        e(f"v_cndmask_b32 v{ZB+4*a}, 0, v{ONES}, s[48:49]\nv_cndmask_b32 v{ZB+4*a+1}, 0, v{ONES}, s[48:49]")
        e(f"v_pk_mov_b32 v[{ZB+4*a+2}:{ZB+4*a+3}], v[{ZB+4*a}:{ZB+4*a+1}], v[{ZB+4*a}:{ZB+4*a+1}]")
    e(f"s_mul_i32 s5, s{S_G}, 6080\nv_mov_b32 v{T+3}, {BIG}")
    for i in range(6):
        r = GA + i
        e(f"v_add_u32 v3, {256*i}, v0\nv_mul_u32_u24 v{T+2}, 3277, v3\nv_lshrrev_b32 v{T+2}, 16, v{T+2}")
        e(f"v_mul_u32_u24 v{AC}, 20, v{T+2}\nv_sub_u32 v{AC}, v3, v{AC}")
        e(f"v_mul_u32_u24 v{T+2}, 27, v{T+2}\nv_lshrrev_b32 v{T+2}, 8, v{T+2}\nv_and_b32 v{T+2}, 2, v{T+2}\nv_sub_u32 v{AC}, v{AC}, v{T+2}")
        e(f"v_cmp_gt_u32 s[48:49], 18, v{AC}\nv_lshlrev_b32 v3, 2, v3\nv_add_u32 v3, s5, v3\nv_cndmask_b32 v{r}, v{T+3}, v3, s[48:49]")
    e(f"v_cmp_gt_u32 vcc, 240, v0\ns_nop 1\nv_cndmask_b32 v{GA+5}, v{T+3}, v{GA+5}, vcc")

    def rdlist(kk, bx, bw):
        rd = []
        for tt in range(2):
            r = XF + 8*kk + 4*tt
            rd.append(f"ds_read_b128 v[{r}:{r+3}], v{bx+kk} offset:{2048*tt}")
        for ct in range(9):
            r = WF + 36*kk + 4*ct
            rd.append(f"ds_read_b64_tr_b16 v[{r}:{r+1}], v{bx+2} offset:{kk*18432 + ct*32}")
            rd.append(f"ds_read_b64_tr_b16 v[{r+2}:{r+3}], v{bx+3} offset:{kk*18432 + ct*32}")
        return rd
    def mainloop(kind):
        lab = f"K1_{kind}"
        tm.stamp(0)
        for i in range(4): e(f"v_mov_b32 v{AC+i}, v{AB+i}")
        e("s_barrier")
        tm.stamp(1)
        for t in rdlist(0, AC, AC): e(t)
        e(f"s_cmp_eq_u32 s{S_WV}, 1\ns_cbranch_scc1 {lab}_l1\ns_cmp_eq_u32 s{S_WV}, 2\ns_cbranch_scc1 {lab}_l2\ns_cmp_eq_u32 s{S_WV}, 3\ns_cbranch_scc1 {lab}_l3")
        for w in range(4):
            cst = [0, 4, 8] if w == 0 else [w, w + 4]
            e(f"{lab}_l{w}:")
            for kk in range(2):
                rd = rdlist(1 - kk, AC, AC)
                extra = []
                cnt = [0]
                def mf(d, a, b):
                    e(f"v_mfma_f32_16x16x32_bf16 v[{d}:{d+3}], v[{a}:{a+3}], v[{b}:{b+3}], v[{d}:{d+3}]")
                    cnt[0] += 1
                    if kk == 1 and cnt[0] == 1:
                        for i in range(4): e(f"v_add_u32 v{AC+i}, s{S_SL}, v{AB+i}")
                        e("s_barrier")
                    if rd: e(rd.pop(0))
                    if cnt[0] <= 3 and rd: e(rd.pop(0))
                    if not rd and extra: e(extra.pop(0))
                if kk == 1:
                    extra = [f"s_add_u32 s{S_SL}, s{S_SL}, {SLOT}", f"s_cmp_ge_u32 s{S_SL}, {4*SLOT}\ns_cselect_b32 s{S_SL}, 0, s{S_SL}",
                             f"s_add_u32 s{S_CNT}, s{S_CNT}, 1", f"s_cmp_lt_u32 s{S_CNT}, 9"]
                x0, x1 = XF + 8*kk, XF + 8*kk + 4
                e("s_waitcnt lgkmcnt(0)")
                mf(SUM, ONES, x0); mf(SUM + 4, ONES, x1); mf(SQ, x0, x0); mf(SQ + 4, x1, x1)
                for ct in cst:
                    wf = WF + 36*kk + 4*ct; d = CS + 4*cst.index(ct)
                    if kind == "q": mf(d, wf, ONES)
                    else: mf(d, ONES, wf)
                for ct in range(9):
                    wf = WF + 36*kk + 4*ct
                    for tt in range(2):
                        d = ACC + 36*tt + 4*ct; x = XF + 8*kk + 4*tt
                        if kind == "q": mf(d, wf, x)
                        else: mf(d, x, wf)
                assert not rd and not extra
            e(f"s_cbranch_scc1 {lab}_l{w}")
            if w < 3: e(f"s_branch {lab}_fin")
        e(f"{lab}_fin:")
        tm.stamp(2)
        RS = 4
        smask(e, 48, mask64(lambda l: (l & 3) == 1)); smask(e, 50, mask64(lambda l: (l & 3) == 2)); smask(e, 54, mask64(lambda l: (l & 3) == 3))
        smask(e, 56, mask64(lambda l: (l >> 4) == ((l & 15) >> 2)))
        CSA = XCH + 1024
        e(f"s_lshl_b32 s5, s{S_WV}, 8\ns_add_u32 s5, s5, {XCH}\ns_lshl_b32 s6, s{S_WV}, 6\ns_add_u32 s6, s6, {CSA}")
        e(f"v_lshlrev_b32 v3, 2, v{T}\nv_add_u32 v8, s5, v3\nv_mov_b32 v{T+3}, {LBIG}\nv_cndmask_b32 v{T+2}, v{T+3}, v8, s[56:57]")
        if kind == "q":
            smask(e, 56, mask64(lambda l: (l & 15) == 0))
            e(f"v_lshlrev_b32 v9, 4, v{T+1}\nv_add_u32 v10, s6, v9\nv_cndmask_b32 v10, v{T+3}, v10, s[56:57]")
            for k in range(3): e(f"ds_write_b128 v10, v[{CS+4*k}:{CS+4*k+3}] offset:{256*k}")
            e(f"v_add_u32 v9, {CSA}, v9")
        else:
            smask(e, 56, mask64(lambda l: l < 16))
            e(f"v_add_u32 v10, s6, v3\nv_cndmask_b32 v10, v{T+3}, v10, s[56:57]")
            for k in range(3): e(f"ds_write_b32 v10, v{CS+4*k} offset:{256*k}")
            e(f"v_add_u32 v9, {CSA}, v3\nv_lshlrev_b32 v8, 4, v{T+1}\nv_add_u32 v8, s5, v8")
        for k, s in enumerate((48, 50, 54)):
            for tt in range(2):
                q = SQ + 4*tt
                e(f"v_cndmask_b32 v{q}, v{q}, v{q+1+k}, s[{s}:{s+1}]")
        ln_stats2(e, [(SUM + 4*tt, SQ + 4*tt, SQ + 4*tt + 1, RS + 2*tt, RS + 2*tt + 1) for tt in range(2)])
        for tt in range(2):
            e(f"ds_write_b32 v{T+2}, v{RS+2*tt} offset:{128*tt}\nds_write_b32 v{T+2}, v{RS+2*tt+1} offset:{128*tt+64}")
        c0 = hex(f2u(1e-6 * L2E))
        e(f"s_mov_b32 s56, {hex(f2u(LN2))}\ns_mov_b32 s57, {hex(f2u(LN2))}\ns_mov_b32 s58, {c0}\ns_mov_b32 s59, {c0}\ns_mov_b32 s54, {hex(f2u(L2E))}\ns_mov_b32 s55, {hex(f2u(L2E))}")
        e("s_waitcnt lgkmcnt(0)\ns_barrier")
        tm.stamp(3)

    def pr(r): return f"v[{r}:{r+1}]"
    def bc(r, pos, n=3):
        base = r & ~1; hi = r & 1
        sel = [0]*n; selh = [1]*n
        sel[pos] = hi; selh[pos] = hi
        return pr(base), f" op_sel:{sel} op_sel_hi:{selh}".replace(", ", ",")
    def phi4(a, t):
        for r in range(4): e(f"v_exp_f32_e64 v{t+r}, v{a+r} clamp")
        for r in range(4): e(f"v_max_f32 v{a+r}, s58, v{a+r}")
        for r in (0, 2): e(f"v_pk_fma_f32 {pr(a+r)}, {pr(a+r)}, s[56:57], {pr(t+r)}")
    TT = SUM
    e(f"s_lshl_b32 s5, s{S_G}, 2\nv_mov_b32 v11, s5")
    mainloop("kv")
    e(f"buffer_load_dword v10, v11, s[{S_DBG}:{S_DBG+3}], 0 offen sc0 sc1")
    CSV = WF; RSV = WF + 12; PK = WF + 48; PV = ONES
    for tt in range(2):
        e(f"ds_read_b128 v[{RSV+16*tt}:{RSV+16*tt+3}], v8 offset:{128*tt}\nds_read_b128 v[{RSV+16*tt+4}:{RSV+16*tt+7}], v8 offset:{128*tt+64}")
    for ct in range(9): e(f"ds_read_b32 v{CSV+ct}, v9 offset:{64*ct}")
    e("s_waitcnt lgkmcnt(9)")
    for tt in range(2):
        for i in range(0, 8, 2): e(f"v_pk_mul_f32 {pr(RSV+16*tt+8+i)}, {pr(RSV+16*tt+i)}, s[54:55]")
    e("s_waitcnt lgkmcnt(0)")
    def ktile(ct):
        for tt in range(2):
            a = ACC + 36*tt + 4*ct; R = RSV + 16*tt; t = TT + 4*tt
            o, sel = bc(CSV + ct, 1)
            for r in (0, 2): e(f"v_pk_fma_f32 {pr(t+r)}, {pr(R+12+r)}, {o}, s[58:59]{sel}")
            for r in (0, 2): e(f"v_pk_fma_f32 {pr(a+r)}, {pr(a+r)}, {pr(R+8+r)}, {pr(t+r)}")
            phi4(a, t)
            d = PK + 4*ct + 2*tt
            e(f"v_cvt_pk_bf16_f32 v{d}, v{a}, v{a+1}\nv_cvt_pk_bf16_f32 v{d+1}, v{a+2}, v{a+3}")
    def vtile(ct):
        for tt in range(2):
            a = ACC + 36*tt + 4*ct; R = RSV + 16*tt; t = TT + 8 + 4*tt
            o, sel = bc(CSV + ct, 1, 2)
            for r in (0, 2): e(f"v_pk_mul_f32 {pr(t+r)}, {pr(R+4+r)}, {o}{sel}")
            for r in (0, 2): e(f"v_pk_fma_f32 {pr(t+r)}, {pr(a+r)}, {pr(R+r)}, {pr(t+r)}")
            d = PV + 4*(ct-4) + 2*tt
            e(f"v_cvt_pk_bf16_f32 v{d}, v{t}, v{t+1}\nv_cvt_pk_bf16_f32 v{d+1}, v{t+2}, v{t+3}")
    for ct in range(4, 9): vtile(ct)
    free = [ACC + 36*tt + 4*ct for ct in range(5, 9) for tt in range(2)]
    zreg = free.pop(0)
    kvreg = {}
    pend = []
    def flush():
        for k in pend: e(f"ds_write_b128 v{WA+k}, v[{kvreg[k]}:{kvreg[k]+3}]")
        pend.clear()
    for a in range(5):
        ktile(a)
        flush()
        free += [ACC + 4*a, ACC + 36 + 4*a]
        if not True: pass
        e("s_nop 1")
        for k, (pa, pb) in enumerate(pairs):
            if pa == a:
                d = free.pop(0); kvreg[k] = d; pend.append(k)
                e(f"v_mfma_f32_16x16x32_bf16 v[{d}:{d+3}], v[{PK+4*a}:{PK+4*a+3}], v[{PV+4*(pb-4)}:{PV+4*(pb-4)+3}], 0")
        e(f"v_mfma_f32_16x16x32_bf16 v[{zreg}:{zreg+3}], v[{PK+4*a}:{PK+4*a+3}], v[{ZB+4*a}:{ZB+4*a+3}], " + ("0" if a == 0 else f"v[{zreg}:{zreg+3}]"))
    kvreg[13] = zreg; pend.append(13)
    e(f"""v_lshlrev_b32 v3, 2, v0
K1_poll:
s_waitcnt vmcnt(0)
v_readfirstlane_b32 s5, v10
s_nop 3
s_cmp_lg_u32 s5, 0
s_cbranch_scc1 K1_polled
buffer_load_dword v10, v11, s[{S_DBG}:{S_DBG+3}], 0 offen sc0 sc1
s_branch K1_poll
K1_polled:""")
    e("s_nop 1")
    flush()
    tm.stamp(4)
    e(f"s_waitcnt lgkmcnt(0)\ns_barrier")
    RB = WF
    e.lg = []; e.lg_done = 0
    for i in range(6):
        for w in range(0, 4, 2):
            e.ds(f"ds_read2st64_b32 v[{RB+4*i+w}:{RB+4*i+w+1}], v3 offset0:{(w*6144 + i*1024)//256} offset1:{((w+1)*6144 + i*1024)//256}", i)
    for i in range(6):
        e.wait_lg(lambda t: t == i)
        r = RB + 4*i
        e(f"v_pk_add_f32 {pr(r)}, {pr(r)}, {pr(r+2)}\nv_add_f32 v{r}, v{r}, v{r+1}")
        e(f"buffer_atomic_add_f32 v{r}, v{GA+i}, s[{S_O}:{S_O+3}], 0 offen sc1")
    tm.stamp(5)
    e("s_branch K1_done")
    e("K1_q:")
    srd(e, S_O, 46, ACT_BYTES, WS_PQ)
    e(f"s_lshl_b32 s5, s{S_I}, 2\ns_add_u32 s5, s5, s{S_WV}\ns_lshl_b32 s5, s5, 2\ns_add_u32 s5, s5, s{S_G}\ns_mul_i32 s20, s5, 9216\nv_lshlrev_b32 v11, 4, v2")
    e(f"s_add_u32 s21, s20, 4096\ns_add_u32 s22, s20, 8192")
    mainloop("q")
    CSV = WF; RSV = WF + 36; P = WA
    for k in range(4): e(f"ds_read_b32 v{RSV+k}, v8 offset:{64*k}")
    for ct in range(9): e(f"ds_read_b128 v[{CSV+4*ct}:{CSV+4*ct+3}], v9 offset:{64*ct}")
    e("s_waitcnt lgkmcnt(9)")
    for k in (0, 2): e(f"v_pk_mul_f32 {pr(RSV+k)}, {pr(RSV+k)}, s[54:55]")
    e("s_waitcnt lgkmcnt(0)")
    stored = 0
    for tt in range(2):
        for ct in range(9):
            a = ACC + 36*tt + 4*ct; t = TT + 4*(ct % 2)
            o, sel = bc(RSV + 2*tt + 1, 0)
            for r in (0, 2): e(f"v_pk_fma_f32 {pr(t+r)}, {o}, {pr(CSV+4*ct+r)}, s[58:59]{sel}")
            o, sel = bc(RSV + 2*tt, 1)
            for r in (0, 2): e(f"v_pk_fma_f32 {pr(a+r)}, {pr(a+r)}, {o}, {pr(t+r)}{sel}")
            phi4(a, t)
            d = P + 18*tt + 2*ct
            e(f"v_cvt_pk_bf16_f32 v{d}, v{a}, v{a+1}\nv_cvt_pk_bf16_f32 v{d+1}, v{a+2}, v{a+3}")
            while 4*stored + 3 <= 18*tt + 2*ct + 1:
                q = stored
                e(f"buffer_store_dwordx4 v[{P+4*q}:{P+4*q+3}], v11, s[{S_O}:{S_O+3}], s{20+q//4} offen" + (f" offset:{(q%4)*1024}" if q % 4 else ""))
                stored += 1
    tm.stamp(5)
    e("s_branch K1_done")
    e("K1_spare:")
    e("s_load_dwordx2 s[48:49], s[0:1], 16\ns_load_dwordx4 s[52:55], s[0:1], 32\ns_waitcnt lgkmcnt(0)")
    e(f"v_mov_b32 v8, {BIG}\ns_cmp_ge_u32 s2, 8\ns_cbranch_scc1 K1_nozero")
    srd(e, S_O, 46, KV_BYTES, WS_KV)
    srd(e, S_DBG, 44, 256)
    e(f"""s_mul_i32 s5, s2, 6080
v_cmp_gt_u32 vcc, 380, v0
v_mov_b32 v4, 0
v_mov_b32 v5, 0
v_mov_b32 v6, 0
v_mov_b32 v7, 0
v_lshlrev_b32 v3, 4, v0
v_cndmask_b32 v3, v8, v3, vcc
buffer_store_dwordx4 v[4:7], v3, s[{S_O}:{S_O+3}], s5 offen sc0 sc1
s_waitcnt vmcnt(0)
s_barrier
s_cmp_lg_u32 s{S_WV}, 0
s_cbranch_scc1 K1_nozero
s_lshl_b32 s5, s2, 2
v_mov_b32 v4, 1
v_mov_b32 v3, s5
buffer_store_dword v4, v3, s[{S_DBG}:{S_DBG+3}], 0 offen sc0 sc1
K1_nozero:""")
    if cpf:
        e(f"s_cmp_lg_u32 s{S_WV}, 7\ns_cbranch_scc1 K1_nocp2\ns_lshr_b32 s6, s2, 3\ns_lshl_b32 s6, s6, 13")
        code_prefetch(e, "K1_pc2", "k2_kernel", "K4_end", 2, 20, 6)
        e("K1_nocp2:")
    if prefetch:
        srd(e, S_X, 48, 576*576*2)
        e(f"s_mul_i32 s5, s2, {81*128}\nv_lshlrev_b32 v3, 7, v0\nv_cmp_gt_u32 vcc, 81, v0\ns_nop 1\nv_cndmask_b32 v3, v8, v3, vcc")
        e(f"buffer_load_dword v10, v3, s[{S_X}:{S_X+3}], s5 offen\ns_waitcnt vmcnt(0)\ns_barrier")
        srd(e, S_X, 52, 576*4608*2)
        srd(e, S_W, 54, 576*4608*2)
        e(f"s_and_b32 s5, s2, 7\ns_mul_i32 s5, s5, 1152\ns_lshr_b32 s6, s2, 3\ns_mul_i32 s6, s6, {72*9216}\ns_add_u32 s5, s5, s6")
        for i in range(2):
            e(f"v_add_u32 v3, {512*i}, v0\nv_mul_u32_u24 v4, 7282, v3\nv_lshrrev_b32 v4, 16, v4\nv_mul_u32_u24 v5, 9, v4\nv_sub_u32 v5, v3, v5\nv_mul_u32_u24 v4, 9216, v4\nv_lshl_add_u32 v4, v5, 7, v4")
            e(f"v_cmp_gt_u32 vcc, 648, v3\ns_nop 1\nv_cndmask_b32 v4, v8, v4, vcc")
            e(f"buffer_load_dword v{10+2*i}, v4, s[{S_X}:{S_X+3}], s5 offen\nbuffer_load_dword v{11+2*i}, v4, s[{S_W}:{S_W+3}], s5 offen")
    e("K1_done:")
    tm.end("K1_end")
    e("K1_end:\ns_endpgm")
    return e.text()
if __name__ == "__main__":
    assert all((n*3641) >> 16 == n//18 for n in range(320))
    assert all((n*3277) >> 16 == n//20 for n in range(1536))
    assert all((n*27) >> 9 == n//19 for n in range(77))
    assert all((n*7282) >> 16 == n//9 for n in range(1024))
    print("ok")
```

```python
from sched import *
from layout import *
from tim import Tim
from k3 import srd, f2u
from k1 import mask64, smask, BIG, LBIG
REG = 39936; WOFF = 12288

def gen_k2(timing=False, prefetch=True):
    e = Em()
    A = 24; O = 112; ADR = 112; RAW = 184; RD = 184; NR = 216; MIX = 240; ACC = 16
    VL16 = 4; VWO = 5
    TB = 8
    VXA = 10; VST = 11; VSA = 12
    XR = 244
    PQ = 0; WFR = 72
    S_KV = 8; S_PQ = 12; S_WO = 16; S_X = 20; S_HT = 24; S_STT = 28
    S_RT = 32; S_CG = 33; S_WV = 34; S_RB = 35; S_WS = 36
    e("s_cmp_ge_u32 s2, 256\ns_cbranch_scc1 K2_end")
    e("s_load_dwordx2 s[40:41], s[0:1], 0\ns_load_dwordx2 s[42:43], s[0:1], 16\ns_load_dwordx2 s[46:47], s[0:1], 72")
    tm = Tim(e, 2, timing); tm.start()
    e(f"v_lshrrev_b32 v1, 6, v0\nv_and_b32 v2, 63, v0\ns_cmp_ge_u32 s2, 192\nv_readfirstlane_b32 s{S_WV}, v1\ns_cbranch_scc1 K2_spare")
    e(f"""s_and_b32 s3, s2, 7
s_lshr_b32 s4, s2, 3
s_lshl_b32 s3, s3, 2
s_and_b32 s5, s4, 3
s_add_u32 s{S_RT}, s3, s5
s_lshr_b32 s{S_CG}, s4, 2
s_mul_i32 s{S_RB}, s{S_WV}, {REG}
s_mul_i32 s5, s{S_WV}, 12160
v_lshlrev_b32 v{VL16}, 4, v2
s_waitcnt lgkmcnt(0)""")
    srd(e, S_KV, 46, KV_BYTES, WS_KV)
    for i in range(12):
        if i % 4 == 0:
            e(f"s_add_u32 m0, s{S_RB}, {i*1024}\ns_add_u32 s6, s5, {i*1024}")
        e.vmem(f"buffer_load_dwordx4 v{VL16}, s[{S_KV}:{S_KV+3}], s6 offen" + (f" offset:{(i%4)*1024}" if i % 4 else "") + " lds", "kv")
    tm.stamp(0)
    srd(e, S_PQ, 46, ACT_BYTES, WS_PQ)
    srd(e, S_WO, 42, 576*576*2)
    srd(e, S_X, 40, ACT_BYTES)
    srd(e, S_HT, 46, ACT_BYTES, WS_HT)
    srd(e, S_STT, 46, ST_BYTES, WS_ST)
    e(f"v_and_b32 v13, 15, v2\nv_lshrrev_b32 v14, 4, v2\nv_mul_u32_u24 v3, 80, v13\nv_lshl_add_u32 v3, v14, 4, v3\nv_add_u32 v3, s{S_RB}, v3\nv_mov_b32 v15, {LBIG}")
    frags = []
    na = [0]
    def addr(base, m):
        if m == 0: return None
        r = ADR + na[0]; na[0] += 1
        smask(e, 48, m)
        e(f"v_cndmask_b32 v{r}, v15, v{base}, s[48:49]")
        return r
    numf = {}
    for h in range(8):
        for j in (h, h + 1):
            L = []
            for jj in range(2):
                def valid(l):
                    m, g = l & 15, l >> 4
                    return 0 <= 16*j + m - 18*h < 18 and 0 <= g + 4*jj - (h >> 1) < 5
                off = h*1520 + (16*j - 18*h)*80 + (4*jj - (h >> 1))*16
                assert off >= 0
                L.append((addr(3, mask64(valid)), off))
            numf[(j, h)] = len(frags); frags.append(L)
    e(f"v_and_b32 v1, 3, v13\nv_mul_u32_u24 v3, 9, v1\nv_lshrrev_b32 v3, 1, v3\nv_sub_u32 v3, v14, v3\nv_lshlrev_b32 v3, 4, v3\nv_mul_u32_u24 v1, 1520, v1\nv_add3_u32 v3, v3, v1, s{S_RB}")
    zf = []
    for c, T0s in ((0, (0, 2, 4)), (1, (4, 6, 7))):
        for T0 in T0s:
            L = []
            for jj in range(2):
                T = T0 + jj
                def valid(l):
                    if c == 1 and T0 == 7 and jj == 0: return False
                    hs = 4*c + (l & 3); g = l >> 4
                    return 0 <= 4*T + g - (9*hs)//2 < 5
                off = c*(4*1520 - 18*16) + 18*80 + 64*T
                L.append((addr(3, mask64(valid)), off))
            zf.append((c, T0, len(frags))); frags.append(L)
    assert len(frags) == 22 and na[0] <= 44
    tm.stamp(1)
    e(f"s_lshr_b32 s5, s{S_WV}, 1\ns_lshl_b32 s6, s{S_RT}, 1\ns_add_u32 s{S_WS}, s6, s5")
    for b in range(2):
        e(f"s_xor_b32 s5, s{S_WS}, {b}\ns_lshl_b32 s5, s5, 2\ns_add_u32 s5, s5, s{S_WV}\ns_mul_i32 s5, s5, 9216")
        for q in range(9):
            if q % 4 == 0 and q: e(f"s_add_u32 s5, s5, 4096")
            r = PQ + 36*b + 4*q
            e.vmem(f"buffer_load_dwordx4 a[{r}:{r+3}], v{VL16}, s[{S_PQ}:{S_PQ+3}], s5 offen" + (f" offset:{(q%4)*1024}" if q % 4 else ""), ("pq", b))
    for i in range(3):
        e(f"v_add_u32 v3, {64*i}, v2\nv_mul_u32_u24 v1, 5462, v3\nv_lshrrev_b32 v1, 16, v1\nv_mul_u32_u24 v{VWO+i}, 12, v1\nv_sub_u32 v3, v3, v{VWO+i}\nv_mul_u32_u24 v1, 1152, v1\nv_lshl_add_u32 v{VWO+i}, v3, 4, v1")
        if i: e(f"v_subrev_u32 v{VWO+i}, {i*1024}, v{VWO+i}")
    e(f"s_mul_i32 s37, s{S_WV}, {144*1152}\ns_mul_i32 s5, s{S_CG}, 192\ns_add_u32 s37, s37, s5")
    e(f"v_lshrrev_b32 v3, 2, v2\nv_mul_u32_u24 v3, 192, v3\nv_and_b32 v1, 3, v2\nv_lshl_add_u32 v3, v1, 3, v3")
    e(f"s_and_b32 s5, s{S_WV}, 1\ns_mul_i32 s38, s5, 96\ns_add_u32 s6, s{S_RB}, {WOFF}\ns_add_u32 s7, s6, s38\nv_add_u32 v{TB}, s7, v3\ns_add_u32 s7, s6, 96\ns_sub_u32 s7, s7, s38\nv_add_u32 v{TB+1}, s7, v3")
    e(f"v_lshrrev_b32 v1, 5, v2\nv_lshl_add_u32 v1, v1, 4, v13\nv_and_b32 v3, 1, v14")
    e(f"v_mul_u32_u24 v{VXA}, 1152, v1\nv_lshl_add_u32 v{VXA}, v3, 4, v{VXA}")
    e(f"v_lshlrev_b32 v{VST}, 4, v1\nv_lshl_add_u32 v{VST}, v3, 9, v{VST}")
    e(f"v_lshlrev_b32 v{VSA}, 3, v1\nv_mov_b32 v1, {BIG}\nv_cmp_eq_u32 s[48:49], 0, v3\ns_nop 1\nv_cndmask_b32 v{VSA}, v1, v{VSA}, s[48:49]")
    e(f"s_mul_i32 s39, s{S_WS}, 36864\ns_mul_i32 s5, s{S_CG}, 192\ns_add_u32 s5, s5, s38\ns_add_u32 s50, s39, s5")
    vq = []
    for i in range(27):
        pre = []
        if i % 3 == 0:
            pre = [f"s_add_u32 m0, s{S_RB}, {WOFF + i*1024}", f"s_add_u32 s51, s37, {(i//3)*16*1152}"]
        vq.append((pre, f"buffer_load_dwordx4 v{VWO+i%3}, s[{S_WO}:{S_WO+3}], s51 offen" + (f" offset:{(i%3)*1024}" if i % 3 else "") + " lds", ("wo", i//3)))
    for k in range(3):
        vq.append(([], f"buffer_load_dwordx4 v[{XR+4*k}:{XR+4*k+3}], v{VXA}, s[{S_X}:{S_X+3}], s50 offen" + (f" offset:{32*k}" if k else ""), "x"))
    state = {"last": 0}
    def pace(period=18, force=False):
        if vq and (force or e.n - state["last"] >= period):
            pre, t, tag = vq.pop(0)
            for p in pre: e(p)
            e.vmem(t, tag); state["last"] = e.n
    e.wait_vm(lambda t: t == "kv")
    tm.stamp(2)
    state["last"] = e.n - 100
    order = [f for _, _, f in zf] + list(range(16))
    def ards(k):
        f = order[k]; rb = RAW + 8*(k % 4)
        for jj in range(2):
            ar, off = frags[f][jj]
            if ar is not None:
                e.ds(f"ds_read_b128 v[{rb+4*jj}:{rb+4*jj+3}], v{ar} offset:{off}", f)
    for k in range(3): ards(k)
    for k in range(22):
        if k + 3 < 22: ards(k + 3)
        pace()
        f = order[k]; rb = RAW + 8*(k % 4)
        e.wait_lg(lambda t: t == f)
        for jj in range(2):
            d = A + 4*f + 2*jj
            if frags[f][jj][0] is None:
                e(f"v_mov_b32 v{d}, 0\nv_mov_b32 v{d+1}, 0")
            else:
                e(f"v_cvt_pk_bf16_f32 v{d}, v{rb+4*jj}, v{rb+4*jj+1}\nv_cvt_pk_bf16_f32 v{d+1}, v{rb+4*jj+2}, v{rb+4*jj+3}")
    for t in range(1, 4): smask(e, 52 + 2*(t-1), mask64(lambda l: (l >> 4) < t))
    tm.stamp(3)
    q = Queue(e, window=8)
    def pqf(t, tile):
        r = PQ + 36*(t >> 1) + 18*(t & 1) + 2*tile
        return f"a[{r}:{r+3}]"
    rdops = {}
    def mf(d, a, b, first, deps=()):
        o = e.op(Op(f"v_mfma_f32_16x16x32_bf16 v[{d}:{d+3}], v[{a}:{a+3}], {b}, " + ("0" if first else f"v[{d}:{d+3}]"), deps=deps))
        return o
    eps = hex(f2u(1e-6))
    for t in range(4):
        if t % 2 == 0: e.wait_vm(lambda x: x == ("pq", t >> 1))
        for k, (c, T0, f) in enumerate(zf):
            d = RD + 8*t + 4*c
            o = mf(d, A + 4*f, pqf(t, T0), k % 3 == 0)
            if k % 3 == 2:
                for r in range(4):
                    o1 = q.add(Op(f"v_add_f32 v{d+r}, {eps}, v{d+r}", deps=[(o, 10)]))
                    rdops[(t, 4*c + r)] = q.add(Op(f"v_rcp_f32 v{d+r}, v{d+r}", cost=2, deps=[(o1, 0)]))
            pace(); q.fill(2)
    ringfree = [None]*6; mixfree = [None]*4; mixi = [0]
    cnt = 0
    for t in range(4):
        for j in range(9):
            slot = cnt % 6; cnt += 1
            d = NR + 4*slot
            if ringfree[slot] is not None:
                for o in ringfree[slot]:
                    if o.pos is None: q.drain_until(o)
            hs = [h for h in (j - 1, j) if 0 <= h < 8]
            for k, h in enumerate(hs):
                o = mf(d, A + 4*numf[(j, h)], pqf(t, h), k == 0)
                pace(); q.fill(4 if len(hs) == 2 else 6)
            muls = []
            mixcache = {}
            for r in range(4):
                th = sum(1 for g in range(4) if 4*g + r < 2*j)
                if j == 8: th = 4
                if th == 0: src, dp = RD + 8*t + j, [(rdops[(t, j)], 1)]
                elif th == 4: src, dp = RD + 8*t + j - 1, [(rdops[(t, j-1)], 1)]
                else:
                    if th not in mixcache:
                        mi = mixi[0] % 4; mixi[0] += 1
                        dd = [(rdops[(t, j)], 1), (rdops[(t, j-1)], 1)] + [(x, 0) for x in (mixfree[mi] or [])]
                        s = 52 + 2*(th-1)
                        mo = q.add(Op(f"v_cndmask_b32 v{MIX+mi}, v{RD+8*t+j}, v{RD+8*t+j-1}, s[{s}:{s+1}]", deps=dd))
                        mixcache[th] = (mi, mo); mixfree[mi] = []
                    mi, mo = mixcache[th]
                    src, dp = MIX + mi, [(mo, 0)]
                m = q.add(Op(f"v_mul_f32 v{d+r}, v{d+r}, v{src}", deps=[(o, 10)] + dp))
                if th not in (0, 4): mixfree[mixcache[th][0]].append(m)
                muls.append(m)
            od = O + 18*t + 2*j
            c1 = q.add(Op(f"v_cvt_pk_bf16_f32 v{od}, v{d}, v{d+1}", deps=[(muls[0], 0), (muls[1], 0)]))
            c2 = q.add(Op(f"v_cvt_pk_bf16_f32 v{od+1}, v{d+2}, v{d+3}", deps=[(muls[2], 0), (muls[3], 0)]))
            ringfree[slot] = [c1, c2]
    while vq: pace(force=True)
    tm.stamp(4)
    def wreads(ks):
        e.wait_vm(lambda x: x == ("wo", min(2*ks + 1, 8)))
        for ct in range(6):
            r = WFR + 24*ks + (4 if ks < 4 else 2)*ct
            for i in range(2 if ks < 4 else 1):
                e.ds(f"ds_read_b64_tr_b16 a[{r+2*i}:{r+2*i+1}], v{TB+ct//3} offset:{(2*ks+i)*3072 + (ct%3)*32}", ("w", ks))
    wreads(0)
    q.drain()
    e("s_nop 1")
    last = {}
    for ks in range(5):
        e.wait_lg(lambda x: x == ("w", ks))
        if ks < 4: wreads(ks + 1)
        for t in range(4):
            for ct in range(6):
                lq = (t >> 1)*2 + ct//3
                d = ACC + 24*lq + 12*(t & 1) + 4*(ct % 3)
                cs = "0" if ks == 0 else f"v[{d}:{d+3}]"
                if ks < 4:
                    r = WFR + 24*ks + 4*ct; o = O + 18*t + 4*ks
                    e(f"v_mfma_f32_16x16x32_bf16 v[{d}:{d+3}], a[{r}:{r+3}], v[{o}:{o+3}], {cs}")
                else:
                    pass
    tm.stamp(5)
    EX = O
    EX = RD
    e(f"v_add_u32 v3, s{S_RB}, v{VL16}")
    for lq in (1, 2, 3, 0):
        for t in (2*(lq >> 1), 2*(lq >> 1) + 1):
            for c3 in range(3):
                ct = 3*(lq & 1) + c3
                d = ACC + 24*lq + 12*(t & 1) + 4*c3
                r = WFR + 96 + 2*ct; o = O + 18*t + 16
                e(f"v_mfma_f32_16x16x16_bf16 v[{d}:{d+3}], a[{r}:{r+1}], v[{o}:{o+1}], v[{d}:{d+3}]")
    for lq in (1, 2, 3):
        for i in range(12):
            e(f"v_cvt_pk_bf16_f32 v{EX+12*(lq-1)+i}, v{ACC+24*lq+2*i}, v{ACC+24*lq+2*i+1}")
            if i % 4 == 3:
                r = EX + 12*(lq-1) + i - 3
                e(f"ds_write_b128 v3, v[{r}:{r+3}] offset:{lq*3072 + (i//4)*1024}")
    for lq in (1, 2, 3):
        e(f"s_xor_b32 s5, s{S_WV}, {lq}\ns_mul_i32 s5, s5, {REG}\nv_add_u32 v{5+lq-1}, s5, v{VL16}")
    e.wait_vm(lambda x: x == "x")
    for k in range(3):
        e(f"v_permlane16_swap_b32 v{XR+4*k}, v{XR+4*k+2}\nv_permlane16_swap_b32 v{XR+4*k+1}, v{XR+4*k+3}")
    tm.stamp(6)
    e("s_waitcnt lgkmcnt(0)\ns_barrier")
    tm.stamp(7)
    e.lg = []; e.lg_done = 0
    IN = 40
    for lq in (1, 2, 3):
        for i in range(3):
            r = IN + 12*(lq-1) + 4*i
            e.ds(f"ds_read_b128 v[{r}:{r+3}], v{5+lq-1} offset:{lq*3072 + i*1024}", (lq, i))
    e(f"v_mov_b32 v13, 0x3f80\nv_mov_b32 v14, 0x3f800000\nv_mov_b32 v15, 0x3f803f80\nv_mov_b32 v8, 0\nv_mov_b32 v9, 0")
    e(f"s_mul_i32 s5, s{S_CG}, 6144\ns_lshl_b32 s6, s38, 5\ns_add_u32 s5, s5, s6\ns_add_u32 s5, s5, s39")
    e(f"s_lshl_b32 s6, s{S_CG}, 1\ns_and_b32 s7, s{S_WV}, 1\ns_add_u32 s6, s6, s7\ns_lshl_b32 s6, s6, 14\ns_lshl_b32 s7, s{S_WS}, 8\ns_add_u32 s6, s6, s7")
    for lq in (1, 2, 3):
        for i in range(3):
            e.wait_lg(lambda x: x == (lq, i))
            for k in range(4):
                r = IN + 12*(lq-1) + 4*i + k; d = ACC + 2*(4*i + k)
                e(f"v_dot2c_f32_bf16 v{d}, v{r}, v13\nv_dot2c_f32_bf16 v{d+1}, v{r}, v14")
    e("s_nop 2")
    H = 80
    for c3 in range(3):
        for tt in range(2):
            a = ACC + 12*tt + 4*c3
            e(f"v_cvt_pk_bf16_f32 v{H+4*c3+2*tt}, v{a}, v{a+1}\nv_cvt_pk_bf16_f32 v{H+4*c3+2*tt+1}, v{a+2}, v{a+3}")
    e("s_nop 1")
    for c3 in range(3):
        e(f"v_permlane32_swap_b32 v{H+4*c3}, v{H+4*c3+2}\nv_permlane32_swap_b32 v{H+4*c3+1}, v{H+4*c3+3}")
    TL = 96
    for c3 in range(3):
        for k in range(4):
            r = H + 4*c3 + k; x = XR + 4*c3 + k; t = TL + 2*k
            e(f"v_lshlrev_b32 v{t}, 16, v{x}\nv_and_b32 v{t+1}, 0xffff0000, v{x}")
        for k in range(4):
            r = H + 4*c3 + k; t = TL + 2*k
            e(f"v_dot2c_f32_bf16 v{t}, v{r}, v13\nv_dot2c_f32_bf16 v{t+1}, v{r}, v14")
        e("s_nop 2")
        for k in range(4):
            e(f"v_cvt_pk_bf16_f32 v{H+4*c3+k}, v{TL+2*k}, v{TL+2*k+1}")
        e(f"buffer_store_dwordx4 v[{H+4*c3}:{H+4*c3+3}], v{VST}, s[{S_HT}:{S_HT+3}], s5 offen" + (f" offset:{1024*c3}" if c3 else ""))
        for k in range(4):
            r = H + 4*c3 + k
            e(f"v_dot2c_f32_bf16 v8, v{r}, v15\nv_dot2c_f32_bf16 v9, v{r}, v{r}")
    e("s_nop 2\nv_mov_b32 v6, v8\nv_mov_b32 v7, v9\ns_nop 1\nv_permlane16_swap_b32 v6, v8\nv_permlane16_swap_b32 v7, v9\ns_nop 1\nv_add_f32 v6, v6, v8\nv_add_f32 v7, v7, v9")
    e(f"buffer_store_dwordx2 v[6:7], v{VSA}, s[{S_STT}:{S_STT+3}], s6 offen")
    tm.stamp(8)
    e("s_branch K2_done")
    e("K2_spare:")
    if prefetch:
        e("s_load_dwordx2 s[48:49], s[0:1], 48\ns_waitcnt lgkmcnt(0)")
        srd(e, S_X, 48, 4608*576*2)
        e(f"s_sub_u32 s3, s2, 192\ns_and_b32 s5, s3, 7\ns_mul_i32 s5, s5, {576*1152}\ns_lshr_b32 s6, s3, 3\ns_mul_i32 s6, s6, {72*1152}\ns_add_u32 s5, s5, s6\nv_mov_b32 v8, {BIG}")
        for i in range(3):
            e(f"v_add_u32 v3, {256*i}, v0\nv_lshlrev_b32 v4, 7, v3\nv_cmp_gt_u32 vcc, 648, v3\ns_nop 1\nv_cndmask_b32 v4, v8, v4, vcc")
            e(f"buffer_load_dword v{10+i}, v4, s[{S_X}:{S_X+3}], s5 offen")
    else:
        e("s_waitcnt lgkmcnt(0)")
    e("K2_done:")
    tm.end("K2_end")
    e("K2_end:\ns_endpgm")
    return e.text()
if __name__ == "__main__":
    assert all((n*5462) >> 16 == n//12 for n in range(192))
    print("ok")
```

```python
from sched import *
from layout import *
from tim import Tim
import struct
def f2u(x): return struct.unpack("<I", struct.pack("<f", x))[0]

def srd(e, d, b, nbytes, off=0):
    if off:
        e(f"s_add_u32 s{d}, s{b}, {off}")
        e(f"s_addc_u32 s{d+1}, s{b+1}, 0")
        e(f"s_and_b32 s{d+1}, s{d+1}, 0xffff")
    else:
        e(f"s_mov_b32 s{d}, s{b}")
        e(f"s_and_b32 s{d+1}, s{b+1}, 0xffff")
    e(f"s_mov_b32 s{d+2}, {nbytes}")
    e(f"s_mov_b32 s{d+3}, 0x20000")

SLOT = 36864
STAMPS = [0, 36, 72, 144, 288, 432, 576, 648, 684, 720, 828, 971]
def gen_k3(C=2, budget=5, timing=False, p2order="simple", store_flags=""):
    e = Em()
    TRB = 8; V1 = 12; V3 = 21; V2 = 30; VK2 = 39; VRS = 40; VNM = 41; VL16 = 42
    T = 44
    B0 = 56; B1 = 120; G = 184
    def xraw(s): return 120 + 4*s if s < 34 else 48 + 4*(s-34)
    FR = 144
    S_W = 8; S_WD = 12; S_HT = 16; S_ST = 20; S_PT = 24
    S_J = 28; S_I = 29; S_WV = 30; S_WB = 31; S_CP = 32; S_CS = 33; S_SO = 34; S_XO = 35; S_PO = 36
    e("s_cmp_ge_u32 s2, 256\ns_cbranch_scc1 K3_end")
    e("s_load_dwordx4 s[40:43], s[0:1], 32\ns_load_dwordx2 s[44:45], s[0:1], 48\ns_load_dwordx2 s[46:47], s[0:1], 72")
    tm = Tim(e, 3, timing); tm.start()
    ng = 16 // C; R = 32 // C
    import math
    lg = lambda x: int(math.log2(x))
    e(f"s_and_b32 s3, s2, 7\ns_lshr_b32 s4, s2, 3")
    e(f"s_and_b32 s5, s3, {ng-1}\ns_lshl_b32 s5, s5, {lg(C)}\ns_and_b32 s6, s4, {C-1}\ns_add_u32 s{S_J}, s5, s6")
    e(f"s_lshr_b32 s5, s3, {lg(ng)}\ns_lshl_b32 s5, s5, {lg(R)}\ns_lshr_b32 s6, s4, {lg(C)}\ns_add_u32 s{S_I}, s5, s6")
    e(f"v_lshrrev_b32 v1, 6, v0\nv_and_b32 v2, 63, v0\ns_nop 0\nv_readfirstlane_b32 s{S_WV}, v1")
    e(f"v_lshlrev_b32 v{VL16}, 4, v2")
    e(f"v_bfe_u32 v3, v2, 2, 3\nv_and_b32 v5, 3, v2\nv_lshlrev_b32 v5, 4, v5\nv_lshrrev_b32 v4, 5, v2\nv_lshl_add_u32 v4, v4, 6, v5")
    e(f"s_mul_i32 s{S_WB}, s{S_WV}, 9216")
    e(f"s_and_b32 s5, s{S_J}, 1\ns_mul_i32 s6, s{S_J}, 576\ns_lshl_b32 s7, s5, 6\ns_add_u32 s{S_CP}, s6, s7")
    e(f"s_xor_b32 s7, s5, 1\ns_lshl_b32 s7, s7, 9\ns_add_u32 s{S_CS}, s6, s7")
    e(f"s_and_b32 s37, s{S_WV}, 1\ns_mul_i32 s38, s37, 72\nv_add_u32 v6, s38, v3\nv_mul_u32_u24 v6, 9216, v6\nv_add_u32 v{V1}, v6, v4")
    for i in range(1, 9):
        e(f"v_add_u32 v{V1+i}, {8*i*9216 - (i%3)*1024}, v{V1}")
    e(f"s_lshl_b32 s38, s{S_I}, 2\ns_add_u32 s38, s38, s{S_WV}\ns_mul_i32 s{S_XO}, s38, 36864")
    e(f"s_lshl_b32 s39, s38, 8\nv_and_b32 v7, 31, v2\nv_lshlrev_b32 v7, 3, v7\nv_lshrrev_b32 v6, 5, v2\nv_mul_u32_u24 v6, {6*16384}, v6\nv_add_u32 v7, v7, v6")
    e(f"s_mul_i32 s{S_PO}, s{S_J}, {ACT_BYTES}\ns_add_u32 s{S_PO}, s{S_PO}, s{S_XO}")
    e("s_waitcnt lgkmcnt(0)")
    e(f"s_cmp_lt_u32 s{S_WV}, 2\ns_cselect_b32 s48, s40, s42\ns_cselect_b32 s49, s41, s43")
    srd(e, S_W, 48, 576*4608*2)
    srd(e, S_ST, 46, ST_BYTES, WS_ST)
    srd(e, S_HT, 46, ACT_BYTES, WS_HT)
    for g in range(6):
        e(f"s_add_u32 s50, s39, {g*16384}")
        e.vmem(f"buffer_load_dwordx2 v[{B0+2*g}:{B0+2*g+1}], v7, s[{S_ST}:{S_ST+3}], s50 offen", "st")
    NST = 27
    def dma_instrs(st):
        slot = st % 4
        if st < 16:
            p, q = st // 4, st % 4
            so = f"s_add_u32 s{S_SO}, s{S_CP}, {p*128 + q*144*9216}"; vb = V1; sr = S_W
        elif st < 18:
            q = st - 16
            so = f"s_add_u32 s{S_SO}, s{S_CS}, {q*288*9216}"; vb = V3; sr = S_W
        else:
            c = st - 18
            so = f"s_movk_i32 s{S_SO}, {c*128}"; vb = V2; sr = S_WD
        L = [(so, False)]
        for i in range(9):
            if i % 3 == 0:
                L.append((f"s_add_u32 m0, s{S_WB}, {slot*SLOT + i*1024}", False))
            off = f" offset:{(i%3)*1024}" if i % 3 else ""
            L.append((f"buffer_load_dwordx4 v{vb+i}, s[{sr}:{sr+3}], s{S_SO} offen{off} lds", True))
        return L
    def emit_dma_now(st):
        prev_m0 = False
        for t, d in dma_instrs(st):
            if d:
                if prev_m0: e("s_nop 0")
                e.vmem(t, ("dma", st)); prev_m0 = False
            else:
                e(t); prev_m0 = "m0" in t
    def xload(s):
        r = xraw(s)
        if s % 4 == 0:
            e(f"s_add_u32 s51, s{S_XO}, {s*1024}")
        off = f" offset:{(s%4)*1024}" if s % 4 else ""
        e.vmem(f"buffer_load_dwordx4 v[{r}:{r+3}], v{VL16}, s[{S_HT}:{S_HT+3}], s51 offen{off}", ("x", s))
    emit_dma_now(0)
    for s in range(0, 9): xload(s)
    emit_dma_now(1)
    for s in range(9, 36): xload(s)
    srd(e, S_WD, 44, 4608*576*2)
    srd(e, S_PT, 46, 16*ACT_BYTES, WS_PART)
    e(f"v_lshrrev_b32 v6, 5, v2\nv_lshlrev_b32 v6, 8, v6\nv_bfe_u32 v7, v2, 2, 2\nv_lshl_add_u32 v6, v7, 6, v6")
    e(f"v_bfe_u32 v7, v2, 4, 1\nv_lshl_add_u32 v6, v7, 5, v6\nv_and_b32 v7, 3, v2\nv_lshl_add_u32 v{TRB}, v7, 3, v6")
    for i in range(1, 4):
        e(f"v_add_u32 v{TRB+i}, {i*SLOT}, v{TRB}")
    e(f"s_mul_i32 s38, s37, 144\nv_lshrrev_b32 v6, 2, v2\nv_add_u32 v6, s38, v6\nv_mul_u32_u24 v6, 9216, v6\nv_add_u32 v{V3}, v6, v5")
    for i in range(1, 9):
        e(f"v_add_u32 v{V3+i}, {16*i*9216 - (i%3)*1024}, v{V3}")
    e(f"v_mul_u32_u24 v6, 1152, v3\nv_add_u32 v6, v6, v4")
    e(f"s_and_b32 s5, s{S_J}, 1\ns_lshl_b32 s5, s5, 5\ns_mul_i32 s6, s{S_WV}, 72\ns_add_u32 s5, s5, s6\ns_mul_i32 s7, s{S_J}, 288")
    for i in range(9):
        e(f"s_add_u32 s6, s5, {8*i}\ns_sub_u32 s38, s6, 288\ns_cmp_ge_u32 s6, 288\ns_cselect_b32 s6, s38, s6\ns_add_u32 s6, s6, s7\ns_mul_i32 s6, s6, 1152")
        if i % 3: e(f"s_sub_u32 s6, s6, {(i%3)*1024}")
        e(f"v_add_u32 v{V2+i}, s6, v6")
    c = 0.7978845608028654; l2e = 1.4426950408889634
    k1 = -2*c*l2e; k2 = k1*0.044715
    e(f"v_mov_b32 v{VK2}, {hex(f2u(k2))}")
    e.wait_vm(lambda t: t == "st")
    b = B0
    e(f"v_add_f32 v{b}, v{b}, v{b+2}\nv_add_f32 v{b+1}, v{b+1}, v{b+3}\nv_add_f32 v{b+4}, v{b+4}, v{b+6}\nv_add_f32 v{b+5}, v{b+5}, v{b+7}")
    e(f"v_add_f32 v{b+8}, v{b+8}, v{b+10}\nv_add_f32 v{b+9}, v{b+9}, v{b+11}")
    e(f"v_add_f32 v{b}, v{b}, v{b+4}\nv_add_f32 v{b+1}, v{b+1}, v{b+5}\nv_add_f32 v{b}, v{b}, v{b+8}\nv_add_f32 v{b+1}, v{b+1}, v{b+9}")
    e(f"v_mov_b32 v{b+2}, v{b}\nv_mov_b32 v{b+3}, v{b+1}\ns_nop 1\nv_permlane32_swap_b32 v{b}, v{b+2}\nv_permlane32_swap_b32 v{b+1}, v{b+3}\ns_nop 1\nv_add_f32 v{b}, v{b}, v{b+2}\nv_add_f32 v{b+1}, v{b+1}, v{b+3}")
    inv = hex(f2u(1.0/576))
    e(f"v_mul_f32 v{b}, {inv}, v{b}\nv_mul_f32 v{b+1}, {inv}, v{b+1}")
    e(f"v_fma_f32 v{b+1}, -v{b}, v{b}, v{b+1}\nv_max_f32 v{b+1}, 0, v{b+1}")
    e(f"v_cvt_pk_bf16_f32 v{b+2}, v{b}, v{b+1}\nv_lshlrev_b32 v{b}, 16, v{b+2}\nv_and_b32 v{b+1}, 0xffff0000, v{b+2}")
    e(f"v_add_f32 v{b+1}, {hex(f2u(1e-5))}, v{b+1}\nv_cvt_pk_bf16_f32 v{b+1}, v{b+1}, v{b+1}\nv_and_b32 v{b+1}, 0xffff0000, v{b+1}")
    e(f"v_sqrt_f32 v{b+1}, v{b+1}\ns_nop 0\nv_cvt_pk_bf16_f32 v{b+1}, v{b+1}, v{b+1}\nv_and_b32 v{b+1}, 0xffff0000, v{b+1}")
    e(f"v_rcp_f32 v{VRS}, v{b+1}\ns_nop 0\nv_mul_f32 v{VNM}, v{b}, v{VRS}\nv_sub_f32 v{VNM}, 0, v{VNM}")

    M = []
    for p in range(4):
        buf = B0 if p % 2 == 0 else B1
        for q in range(4):
            st = 4*p + q
            for s in range(9):
                ks = 9*q + s
                for uu in range(2):
                    for mat in range(2):
                        o = (mat*18 + 2*s)*1024 + uu*512
                        M.append(dict(acc=buf + 32*uu + 16*mat, b=f"a[{4*ks}:{4*ks+3}]", first=(ks == 0), last=(ks == 35),
                                      st=st, rd=(o, o + 1024), xs=ks if p == 0 else None, unit=2*p+uu, mat=mat, ph=1))
    for q in range(2):
        st = 16 + q
        for s in range(18):
            ks = 18*q + s
            for mat in range(2):
                o = (mat*18 + s)*1024
                M.append(dict(acc=B0 + 16*mat, b=f"a[{4*ks}:{4*ks+3}]", first=(ks == 0), last=(ks == 35), st=st, rd=(o, o + 512), xs=None, unit=8, mat=mat, ph=1))
    p2bufs = [B0 + 32, B1, B1 + 32, B0]
    for c in range(9):
        st = 18 + c
        for s in range(18):
            for uu in range(2):
                o = (2*s)*1024 + uu*512
                g = G + 4*s
                M.append(dict(acc=p2bufs[c % 4] + 16*uu, b=f"v[{g}:{g+3}]", first=(s == 0), last=(s == 17), st=st, rd=(o, o + 1024), xs=None, gks=s, c=c, uu=uu, ph=2))
    NM = len(M); assert NM == 972
    LA = 8
    q = Queue(e, window=10)
    xdone = {}
    gdone = {}
    tstate = {"last": [None, None]}
    def add_norm(s):
        r = xraw(s)
        w = q.add(Op(lambda s=s: e.wait_vm(lambda t: t == ("x", s)), cost=1))
        last = None
        for d in range(4):
            t = T + (d % 4)
            prev = tstate.get(("n", t))
            o1 = q.add(Op(f"v_lshlrev_b32 v{t}, 16, v{r+d}", deps=[(w, 0)] + ([(prev, 0)] if prev else [])))
            o2 = q.add(Op(f"v_and_b32 v{r+d}, 0xffff0000, v{r+d}", deps=[(o1, 0)]))
            o3 = q.add(Op(f"v_fma_f32 v{t}, v{t}, v{VRS}, v{VNM}", deps=[(o1, 0)]))
            o4 = q.add(Op(f"v_fma_f32 v{r+d}, v{r+d}, v{VRS}, v{VNM}", deps=[(o2, 0)]))
            o5 = q.add(Op(f"v_cvt_pk_bf16_f32 v{r+d}, v{t}, v{r+d}", deps=[(o3, 0), (o4, 0)]))
            tstate[("n", t)] = o5
            o6 = q.add(Op(f"v_accvgpr_write_b32 a{4*s+d}, v{r+d}", deps=[(o5, 0)]))
            last = (last or []) + [o6]
        xdone[s] = last
    pairctr = [0]
    def add_gelu(unit, gacc, uacc, mg, mu):
        for k in range(8):
            ts = pairctr[0] % 2; pairctr[0] += 1
            ta, tb = T + 2*ts, T + 2*ts + 1
            ga, gb, ua, ub = gacc + 2*k, gacc + 2*k + 1, uacc + 2*k, uacc + 2*k + 1
            prev = tstate["last"][ts]
            d0 = [(mg, 14)] + ([(prev, 0)] if prev else [])
            sa = q.add(Op(f"v_mul_f32 v{ta}, v{ga}, v{ga}", deps=d0))
            sb = q.add(Op(f"v_mul_f32 v{tb}, v{gb}, v{gb}", deps=d0))
            fa = q.add(Op(f"v_fmaak_f32 v{ta}, v{ta}, v{VK2}, {hex(f2u(k1))}", deps=[(sa, 0)]))
            fb = q.add(Op(f"v_fmaak_f32 v{tb}, v{tb}, v{VK2}, {hex(f2u(k1))}", deps=[(sb, 0)]))
            aa = q.add(Op(f"v_mul_f32 v{ta}, v{ga}, v{ta}", deps=[(fa, 0)]))
            ab = q.add(Op(f"v_mul_f32 v{tb}, v{gb}, v{tb}", deps=[(fb, 0)]))
            ea = q.add(Op(f"v_exp_f32 v{ta}, v{ta}", cost=2, deps=[(aa, 0)]))
            pa = q.add(Op(f"v_mul_f32 v{ua}, v{ga}, v{ua}", deps=[(mg, 14), (mu, 14)]))
            eb = q.add(Op(f"v_exp_f32 v{tb}, v{tb}", cost=2, deps=[(ab, 0)]))
            pb = q.add(Op(f"v_mul_f32 v{ub}, v{gb}, v{ub}", deps=[(mg, 14), (mu, 14)]))
            da = q.add(Op(f"v_add_f32 v{ta}, 1.0, v{ta}", deps=[(ea, 1)]))
            db = q.add(Op(f"v_add_f32 v{tb}, 1.0, v{tb}", deps=[(eb, 1)]))
            ra = q.add(Op(f"v_rcp_f32 v{ta}, v{ta}", cost=2, deps=[(da, 0)]))
            rb = q.add(Op(f"v_rcp_f32 v{tb}, v{tb}", cost=2, deps=[(db, 0)]))
            ya = q.add(Op(f"v_mul_f32 v{ta}, v{ua}, v{ta}", deps=[(ra, 1), (pa, 0)]))
            yb = q.add(Op(f"v_mul_f32 v{tb}, v{ub}, v{tb}", deps=[(rb, 1), (pb, 0)]))
            cv = q.add(Op(f"v_cvt_pk_bf16_f32 v{G + 8*unit + k}, v{ta}, v{tb}", deps=[(ya, 0), (yb, 0)]))
            tstate["last"][ts] = cv
            gdone.setdefault(2*unit + k//4, []).append(cv)
            bufuse.setdefault(gacc, []).append(cv); bufuse.setdefault(uacc, []).append(cv)
    bufuse = {}
    stq = []
    def add_out(c, uu, acc, mo):
        prev = None; cvs = []
        for i in range(8):
            o = q.add(Op(f"v_cvt_pk_bf16_f32 v{acc+i}, v{acc+2*i}, v{acc+2*i+1}", deps=[(mo, 14)] + ([(prev, 0)] if prev else [])))
            prev = o; cvs.append(o)
        for h in range(2):
            fr = 4*c + 2*uu + h
            stq.append(dict(fr=fr, r=acc + 4*h, dep=cvs[4*h+3], acc=acc))
    def emit_op(o, _orig=e.op):
        if callable(o.text):
            o.text(); o.pos = e.n - 1; return o
        return _orig(o)
    e.op = emit_op
    def reads(m):
        d = M[m]; fr = FR + 4*(m % 12); vb = TRB + d["st"] % 4
        e.ds(f"ds_read_b64_tr_b16 a[{fr}:{fr+1}], v{vb} offset:{d['rd'][0]}", m)
        e.ds(f"ds_read_b64_tr_b16 a[{fr+2}:{fr+3}], v{vb} offset:{d['rd'][1]}", m)
    def emit_store(sd):
        fr = sd["fr"]
        if fr % 4 == 0:
            e(f"s_add_u32 s52, s{S_PO}, {fr*1024}")
        off = f" offset:{(fr%4)*1024}" if fr % 4 else ""
        o = e.vmem(f"buffer_store_dwordx4 v[{sd['r']}:{sd['r']+3}], v{VL16}, s[{S_PT}:{S_PT+3}], s52 offen{off}{store_flags}", "store", deps=[(sd["dep"], 0)])
        sd["done"] = True
        return 2 if fr % 4 == 0 else 1
    for s in range(36): add_norm(s)
    e.wait_vm(lambda t: t == ("dma", 0))
    e("s_barrier")
    for m in range(LA): reads(m)
    q.drain_until(xdone[1][-1])
    dmaq = list(dma_instrs(2)); dma_st = 2
    lastm = {}
    e.wait_lg(lambda t: t <= 3)
    for m in range(NM):
        d = M[m]
        deps = []
        if d["xs"] is not None:
            for o in xdone[d["xs"]]:
                if o.pos is None: q.drain_until(o)
                deps.append((o, 2))
        if d["ph"] == 2:
            for o in gdone[d["gks"]]:
                if o.pos is None: q.drain_until(o)
                deps.append((o, 2))
        if d["first"]:
            for o in bufuse.get(d["acc"], []):
                if o.pos is None: q.drain_until(o)
            bufuse[d["acc"]] = []
            for sd in [x for x in stq if x["acc"] == d["acc"]]:
                if sd["dep"].pos is None: q.drain_until(sd["dep"])
                while stq and not sd.get("done"):
                    x = stq.pop(0)
                    if x["dep"].pos is None: q.drain_until(x["dep"])
                    emit_store(x)
                e("s_nop 1")
        fr = FR + 4*(m % 12); a = d["acc"]
        cs = "0" if d["first"] else f"v[{a}:{a+15}]"
        mo = e.op(Op(f"v_mfma_f32_32x32x16_bf16 v[{a}:{a+15}], a[{fr}:{fr+3}], {d['b']}, {cs}", deps=deps))
        used = 0
        if timing and m in STAMPS:
            k = STAMPS.index(m)
            tm.stamp(k)
        if d["last"]:
            if d["ph"] == 1:
                lastm[(d["unit"], d["mat"])] = mo
                if d["mat"] == 1:
                    add_gelu(d["unit"], a - 16, a, lastm[(d["unit"], 0)], mo)
            else:
                add_out(d["c"], d["uu"], a, mo)
        mr = m + LA
        if mr < NM:
            if mr % 36 == 0:
                st = mr // 36
                assert not dmaq
                if e.wait_vm(lambda t: t == ("dma", st)): used += 1
                e("s_barrier"); used += 2
                if st + 2 < NST:
                    dmaq = list(dma_instrs(st + 2)); dma_st = st + 2
                reads(mr); used += 2
            else:
                reads(mr); used += 2
                if dmaq and (mr % 2 == 1):
                    t, isd = dmaq.pop(0)
                    if isd: e.vmem(t, ("dma", dma_st))
                    else: e(t)
                    used += 1
                elif stq and stq[0]["dep"].pos is not None:
                    used += emit_store(stq.pop(0))
        elif stq and stq[0]["dep"].pos is not None:
            used += emit_store(stq.pop(0))
        needwait = (m + 1) % 4 == 0 and m + 1 < NM
        bud = budget - used - (1 if needwait else 0)
        if m < 140: bud = 7
        if bud > 0: q.fill(bud)
        if needwait:
            e.wait_lg(lambda t: t <= m + 4)
    q.drain()
    while stq: emit_store(stq.pop(0))
    tm.end("K3_end")
    e("K3_end:\ns_endpgm")
    return e.text()
```

```python
from sched import *
from layout import *
from tim import Tim
from k3 import srd
def gen_k4(C=2, timing=False):
    e = Em()
    e("s_cmp_ge_u32 s2, 256\ns_cbranch_scc1 K4_end")
    e("s_load_dwordx2 s[44:45], s[0:1], 56\ns_load_dwordx2 s[46:47], s[0:1], 72")
    tm = Tim(e, 4, timing); tm.start()
    e("s_and_b32 s3, s2, 7\ns_lshr_b32 s4, s2, 3\ns_lshr_b32 s5, s4, 2\ns_lshl_b32 s3, s3, 3\ns_add_u32 s5, s5, s3\ns_and_b32 s6, s4, 3")
    e("v_lshrrev_b32 v1, 6, v0\nv_and_b32 v2, 63, v0\ns_nop 0\nv_readfirstlane_b32 s7, v1\nv_lshlrev_b32 v3, 4, v2")
    e("s_mul_i32 s6, s6, 9\ns_add_u32 s6, s6, s7")
    e("s_mul_i32 s28, s5, 36\ns_add_u32 s28, s28, s6\ns_lshl_b32 s28, s28, 10")
    e("s_waitcnt lgkmcnt(0)")
    srd(e, 8, 46, 16*ACT_BYTES, WS_PART)
    srd(e, 12, 46, ACT_BYTES, WS_HT)
    srd(e, 16, 44, ACT_BYTES)
    for j in range(16):
        e(f"s_add_u32 s29, s28, {j*ACT_BYTES}")
        e.vmem(f"buffer_load_dwordx4 v[{16+4*j}:{19+4*j}], v3, s[8:11], s29 offen", j)
    e.vmem(f"buffer_load_dwordx4 v[80:83], v3, s[12:15], s28 offen", "h")
    tm.stamp(0)
    e("v_and_b32 v4, 31, v2\nv_mul_u32_u24 v4, 1152, v4\nv_lshrrev_b32 v5, 5, v2\nv_lshl_add_u32 v4, v5, 4, v4")
    e("s_mul_i32 s30, s5, 36864\ns_lshl_b32 s31, s6, 5\ns_add_u32 s30, s30, s31")
    e("s_mov_b32 s32, 0xffff0000")
    for j in range(16):
        e.wait_vm(lambda t: t == j)
        for d in range(4):
            r = 16 + 4*j + d
            if j == 0:
                e(f"v_lshlrev_b32 v{6+2*d}, 16, v{r}\nv_and_b32 v{7+2*d}, s32, v{r}")
            else:
                e(f"v_lshlrev_b32 v14, 16, v{r}\nv_and_b32 v15, s32, v{r}\nv_add_f32 v{6+2*d}, v{6+2*d}, v14\nv_add_f32 v{7+2*d}, v{7+2*d}, v15")
    tm.stamp(1)
    e.wait_vm(lambda t: t == "h")
    for d in range(4):
        e(f"v_cvt_pk_bf16_f32 v14, v{6+2*d}, v{7+2*d}\nv_lshlrev_b32 v{6+2*d}, 16, v14\nv_and_b32 v{7+2*d}, s32, v14")
        e(f"v_lshlrev_b32 v14, 16, v{80+d}\nv_and_b32 v15, s32, v{80+d}\nv_add_f32 v{6+2*d}, v{6+2*d}, v14\nv_add_f32 v{7+2*d}, v{7+2*d}, v15")
        e(f"v_cvt_pk_bf16_f32 v{16+d}, v{6+2*d}, v{7+2*d}")
    e("s_nop 1\nv_permlane32_swap_b32 v16, v18\nv_permlane32_swap_b32 v17, v19\ns_nop 0")
    e("buffer_store_dwordx4 v[16:19], v4, s[16:19], s30 offen")
    tm.end("K4_end")
    e("K4_end:\ns_endpgm")
    return e.text()
```

```python
from layout import *
TBASE = 0x8000000
class Tim:
    def __init__(self, e, k, on):
        self.e = e; self.k = k; self.on = on; self.n = 0
    def start(self):
        if self.on:
            self.e("s_memtime s[60:61]\ns_memrealtime s[62:63]")
            for i in range(12): self.e(f"s_mov_b32 s{72+2*i}, 0")
    def stamp(self, i):
        if self.on: self.e(f"s_memtime s[{72+2*i}:{73+2*i}]")
    def end(self, endlabel, cond="v_cmp_eq_u32 vcc, 0, v0"):
        if not self.on: return
        e = self.e
        e("s_waitcnt vmcnt(0)\ns_memtime s[64:65]\ns_memrealtime s[66:67]\ns_waitcnt lgkmcnt(0)")
        e(f"s_lshl_b32 s97, s2, 6\ns_add_u32 s97, s97, {TBASE + self.k*0x10000}\nv_mov_b32 v8, s97")
        e(f"s_mov_b32 s68, s46\ns_and_b32 s69, s47, 0xffff\ns_mov_b32 s70, {WS_BYTES}\ns_mov_b32 s71, 0x20000")
        e(f"{cond}\ns_and_saveexec_b64 s[98:99], vcc\ns_cbranch_execz {endlabel}")
        e("s_sub_u32 s64, s64, s60\nv_mov_b32 v4, s62\nv_mov_b32 v5, s66\nv_mov_b32 v6, s64\nv_mov_b32 v7, 0")
        e("buffer_store_dwordx4 v[4:7], v8, s[68:71], 0 offen")
        for j in range(3):
            for i in range(4):
                e(f"s_sub_u32 s97, s{72+2*(4*j+i)}, s60\nv_mov_b32 v{12+4*j+i}, s97")
            e(f"buffer_store_dwordx4 v[{12+4*j}:{15+4*j}], v8, s[68:71], 0 offen offset:{16+16*j}")
```

```python
import sys
from asmgen import kernel_header, kernel_desc
from k1 import gen_k1
from k2 import gen_k2
from k3 import gen_k3
from k4 import gen_k4
P = dict(C=2, budget=5, flags="", timing=0, pf=1, extra=0, dbg=0, cpf=1)
for kv in sys.argv[1:]:
    k, v = kv.split("="); P[k] = v if k == "flags" else int(v)
fl = (" " + P["flags"].replace("+", " ")) if P["flags"] else ""
T = bool(P["timing"])
hdr = open("sequential_preLN__linear_attn_block__geglu_ffn__prompt.s.ref").read().split("; Override")[0]
print(hdr, end="")
print("; @launch kernel=k1_kernel grid=(256,1,1) block=(512,1,1) lds=149504")
print("; @launch kernel=k2_kernel grid=(256,1,1) block=(256,1,1) lds=159744")
print("; @launch kernel=k3_kernel grid=(256,1,1) block=(256,1,1) lds=147456")
print("; @launch kernel=k4_kernel grid=(256,1,1) block=(576,1,1) lds=0")
for i in range(P["extra"]):
    print("; @launch kernel=nop_kernel grid=(256,1,1) block=(256,1,1) lds=0")
print('.amdgcn_target "amdgcn-amd-amdhsa--gfx950"\n.text')
print(kernel_header("k1_kernel") + gen_k1(timing=T, prefetch=P["pf"], dbg=P["dbg"], cpf=P["cpf"]) + kernel_desc("k1_kernel", 256, 100, 256))
print(kernel_header("k2_kernel") + gen_k2(timing=T, prefetch=P["pf"]) + kernel_desc("k2_kernel", 256+184, 100, 256))
print(kernel_header("k3_kernel") + gen_k3(C=P["C"], budget=P["budget"], timing=T, store_flags=fl) + kernel_desc("k3_kernel", 256+192, 100, 256))
print(kernel_header("k4_kernel") + gen_k4(timing=T) + kernel_desc("k4_kernel", 84, 100, 84))
if P["extra"]:
    print(kernel_header("nop_kernel") + "  s_endpgm\n" + kernel_desc("nop_kernel", 8, 16, 8))
```

```python
from sched import *
from layout import *
from tim import Tim
from k3 import srd, f2u
L2E = 1.4426950408889634; LN2 = 0.6931471805599453
BIG = 0x40000000
LBIG = 0x30000
SLOT = 36864
XCH = 147456
CSA = XCH + 2048

def mask64(fn):
    m = 0
    for l in range(64):
        if fn(l): m |= 1 << l
    return m
def smask(e, s, m):
    e(f"s_mov_b32 s{s}, {hex(m & 0xffffffff)}\ns_mov_b32 s{s+1}, {hex(m >> 32)}")

def ln_stats2(e, items):
    inv = hex(f2u(1.0/576))
    seq = ["v_mul_f32 v{vs}, " + inv + ", v{vs}", "v_mul_f32 v{vq}, " + inv + ", v{vq}",
           "v_fma_f32 v{vq}, -v{vs}, v{vs}, v{vq}", "v_max_f32 v{vq}, 0, v{vq}",
           "v_cvt_pk_bf16_f32 v{t}, v{vs}, v{vq}", "v_lshlrev_b32 v{vs}, 16, v{t}", "v_and_b32 v{vq}, 0xffff0000, v{t}",
           "v_add_f32 v{vq}, " + hex(f2u(1e-5)) + ", v{vq}", "v_cvt_pk_bf16_f32 v{vq}, v{vq}, v{vq}", "v_and_b32 v{vq}, 0xffff0000, v{vq}",
           "v_sqrt_f32 v{vq}, v{vq}", "NOP", "v_cvt_pk_bf16_f32 v{vq}, v{vq}, v{vq}", "v_and_b32 v{vq}, 0xffff0000, v{vq}",
           "v_rcp_f32 v{rs}, v{vq}", "NOP", "v_mul_f32_e64 v{nm}, -v{vs}, v{rs}"]
    for s in seq:
        if s == "NOP":
            if len(items) == 1: e("s_nop 0")
            continue
        for (vs, vq, t, rs, nm) in items:
            e(s.format(vs=vs, vq=vq, t=t, rs=rs, nm=nm))

def code_prefetch(e, lab, start, endlab, lanereg, dst, soff=None):
    e(f"s_getpc_b64 s[4:5]\n{lab}:\ns_add_u32 s4, s4, {start}-{lab}\ns_addc_u32 s5, s5, 0")
    e(f"v_lshlrev_b32 v{dst}, 7, v{lanereg}")
    if soff is not None: e(f"v_add_u32 v{dst}, s{soff}, v{dst}")
    e(f"v_min_u32 v{dst}, {endlab}-{start}, v{dst}\nv_mov_b32 v{dst+1}, 0")
    e(f"v_lshl_add_u64 v[{dst}:{dst+1}], v[{dst}:{dst+1}], 0, s[4:5]\nglobal_load_dword v{dst+2}, v[{dst}:{dst+1}], off")

def gen_k1(timing=False, prefetch=True, dbg=0, cpf=True, rot=0):
    e = Em()
    tm = Tim(e, 1, timing)
    AB = 12; AC = 16; T = 20; ONES = 24; XF = 28; WF = 44; ACC = 116; TT = 188
    WA = 216; GA = 230; ZB = 236
    VX = 4; VW = 8
    S_X = 8; S_W = 12; S_O = 16; S_DBG = 20; S_A = 24
    S_I = 28; S_G = 29; S_KV = 30; S_WV = 31; S_XO = 32; S_WO = 33; S_CNT = 35; S_SL = 36; S_DS = 37; S_WB = 38
    e("s_cmp_ge_u32 s2, 256\ns_cbranch_scc1 K1_end")
    e("s_load_dwordx4 s[40:43], s[0:1], 0\ns_load_dwordx4 s[44:47], s[0:1], 64")
    e(f"v_lshrrev_b32 v1, 6, v0\nv_and_b32 v2, 63, v0\ns_nop 0\nv_readfirstlane_b32 s{S_WV}, v1")
    if cpf:
        e(f"s_cmp_ge_u32 s{S_WV}, 2\ns_cbranch_scc1 K1_nocpf")
        code_prefetch(e, "K1_pc", "K1_nocpf", "K1_end", 0, 4)
        e("K1_nocpf:")
    tm.start()
    e(f"s_cmp_lt_u32 s2, 64\ns_cbranch_scc1 K1_spare")
    e(f"""s_and_b32 s3, s2, 7
s_lshr_b32 s4, s2, 3
s_sub_u32 s4, s4, 8
s_lshr_b32 s5, s3, 1
s_lshl_b32 s5, s5, 2
s_and_b32 s6, s4, 3
s_add_u32 s{S_I}, s5, s6
s_lshr_b32 s4, s4, 2
s_and_b32 s3, s3, 1
s_lshl_b32 s5, s3, 2
s_add_u32 s5, s5, s4
s_lshl_b32 s6, s3, 1
s_add_u32 s6, s6, s4
s_sub_u32 s6, s6, 4
s_cmp_lt_u32 s4, 4
s_cselect_b32 s{S_G}, s5, s6
s_cselect_b32 s{S_KV}, 1, 0
s_cmp_lt_u32 s{S_WV}, 4
s_cbranch_scc1 K1_comp""")
    tl = Tim(e, 0, timing)
    e(f"s_sub_u32 s{S_WV}, s{S_WV}, 4")
    e(f"v_lshrrev_b32 v3, 3, v2\nv_and_b32 v{T}, 7, v2\nv_lshrrev_b32 v{T+1}, 1, v3\nv_xor_b32 v{T}, v{T}, v{T+1}")
    e(f"v_mul_u32_u24 v3, 1152, v3\nv_lshl_add_u32 v{VX}, v{T}, 4, v3\nv_xor_b32 v{T}, 4, v{T}\nv_lshl_add_u32 v{VX+1}, v{T}, 4, v3")
    e(f"v_add_u32 v{VX+1}, {8*1152-1024}, v{VX+1}\nv_add_u32 v{VX+2}, {16*1152-2048}, v{VX}\nv_add_u32 v{VX+3}, {16*1152-2048}, v{VX+1}")
    e(f"""s_lshl_b32 s5, s{S_I}, 2
s_add_u32 s5, s5, s{S_WV}
s_mul_i32 s{S_XO}, s5, {32*1152}
s_mul_i32 s{S_WB}, s{S_WV}, 9216
s_mov_b32 s{S_DS}, s{S_WB}
s_mul_i32 s5, s{S_G}, 144
s_add_u32 s6, s5, 1152
s_lshl_b32 s5, s5, 1
s_cmp_eq_u32 s{S_KV}, 1
s_cselect_b32 s6, s6, s5
s_movk_i32 s7, 144
s_cselect_b32 s7, 1152, s7
s_mul_i32 s{S_WO}, s{S_WV}, {16*3456}
s_add_u32 s{S_WO}, s{S_WO}, s6
s_movk_i32 s50, 3456""")
    if rot:
        if rot == 3:
            e(f"s_and_b32 s5, s{S_I}, 3\ns_add_u32 s34, s5, s4\ns_mul_i32 s5, s34, 11\ns_lshr_b32 s5, s5, 5\ns_mul_i32 s5, s5, 3\ns_sub_u32 s34, s34, s5\ns_mul_i32 s34, s34, 3")
        elif rot == 2:
            e(f"s_add_u32 s34, s{S_I}, s4\ns_and_b32 s34, s34, 1\ns_lshl_b32 s34, s34, 2")
        elif rot == 4:
            e(f"s_add_u32 s34, s{S_I}, s4\ns_and_b32 s34, s34, 3\ns_lshl_b32 s34, s34, 1")
        e(f"s_mov_b32 s39, s{S_XO}\ns_mov_b32 s52, s{S_WO}\ns_lshl_b32 s5, s34, 7\ns_add_u32 s{S_XO}, s{S_XO}, s5\ns_mul_i32 s5, s34, {64*3456}\ns_add_u32 s{S_WO}, s{S_WO}, s5\ns_sub_u32 s34, 8, s34")
    for i in range(5):
        r = VW + i
        e(f"v_add_u32 v3, {64*i}, v2\nv_mul_u32_u24 v{T}, 7282, v3\nv_lshrrev_b32 v{T}, 16, v{T}\nv_mul_u32_u24 v{T+1}, 9, v{T}\nv_sub_u32 v3, v3, v{T+1}")
        e(f"v_and_b32 v{T+1}, 1, v{T}\nv_mul_u32_u24 v{T+1}, s7, v{T+1}\nv_lshl_add_u32 v3, v3, 4, v{T+1}")
        e(f"v_lshrrev_b32 v{T}, 1, v{T}")
        if i >= 2:
            e(f"v_lshrrev_b32 v{T+1}, 1, v{T}\nv_and_b32 v{T+1}, 4, v{T+1}\nv_xor_b32 v{T}, v{T}, v{T+1}")
        e(f"v_mad_u32_u24 v{r}, v{T}, s50, v3")
        comp = (i % 4) * 1024
        if comp: e(f"v_subrev_u32 v{r}, {comp}, v{r}")
    e(f"v_cmp_gt_u32 s[48:49], 32, v2\nv_mov_b32 v3, {BIG}\ns_mov_b32 s{S_CNT}, -1\nv_cndmask_b32 v{VW+4}, v3, v{VW+4}, s[48:49]")
    tl.stamp(0)
    e("s_waitcnt lgkmcnt(0)")
    srd(e, S_X, 40, ACT_BYTES)
    srd(e, S_W, 42, 576*1728*2)
    srd(e, S_DBG, 44, 256)
    tl.stamp(1)
    e("K1_ld:")
    e(f"s_mov_b32 m0, s{S_DS}\ns_add_u32 s{S_CNT}, s{S_CNT}, 1")
    for b in range(4):
        e(f"buffer_load_dwordx4 v{VX+b}, s[{S_X}:{S_X+3}], s{S_XO} offen" + (f" offset:{b*1024}" if b else "") + " lds")
    e(f"s_add_u32 m0, s{S_DS}, 4096\ns_add_u32 s{S_XO}, s{S_XO}, 128")
    for i in range(4):
        e(f"buffer_load_dwordx4 v{VW+i}, s[{S_W}:{S_W+3}], s{S_WO} offen" + (f" offset:{i*1024}" if i else "") + " lds")
    e(f"s_add_u32 m0, s{S_DS}, 8192\ns_add_u32 s{S_DS}, s{S_DS}, {SLOT}")
    e(f"buffer_load_dwordx4 v{VW+4}, s[{S_W}:{S_W+3}], s{S_WO} offen lds")
    e(f"s_add_u32 s{S_WO}, s{S_WO}, {64*3456}")
    if rot:
        e(f"s_cmp_eq_u32 s{S_CNT}, s34\ns_cselect_b32 s{S_XO}, s39, s{S_XO}\ns_cselect_b32 s{S_WO}, s52, s{S_WO}")
    e(f"""s_cmp_ge_u32 s{S_DS}, {4*SLOT}
s_cselect_b32 s{S_DS}, s{S_WB}, s{S_DS}
s_cmp_eq_u32 s{S_CNT}, 0
s_cbranch_scc1 K1_ld
s_waitcnt vmcnt(9) lgkmcnt(0)
s_barrier
s_cmp_lt_u32 s{S_CNT}, 5
s_cbranch_scc1 K1_ld
s_cmp_eq_u32 s{S_CNT}, 6
s_cbranch_scc1 K1_sd5
s_cmp_eq_u32 s{S_CNT}, 7
s_cbranch_scc1 K1_sd6
s_cmp_eq_u32 s{S_CNT}, 8
s_cbranch_scc1 K1_ldend""")
    e(f"v_mov_b32 v{T}, 0\nbuffer_load_dword v{T+1}, v{T}, s[{S_DBG}:{S_DBG+3}], 0 offen sc0 sc1")
    e(f"s_branch K1_ld")
    e(f"""K1_sd5:
v_readfirstlane_b32 s5, v{T+1}
s_nop 3
s_cmp_eq_u32 s5, 64
s_cbranch_scc1 K1_polled
buffer_load_dword v{T+1}, v{T}, s[{S_DBG}:{S_DBG+3}], 0 offen sc0 sc1
s_waitcnt vmcnt(0)
s_branch K1_sd5
K1_polled:
s_cmp_eq_u32 s{S_WV}, 3
s_cbranch_scc1 K1_sd5s""")
    srd(e, S_A, 46, CS_BYTES, WS_CS)
    e(f"""s_mul_i32 s5, s{S_WV}, 48
v_add_u32 v3, s5, v2
v_cmp_lt_u32 vcc, 71, v3
s_sub_u32 s5, s7, 144
s_lshl_b32 s5, s5, 1
v_mov_b32 v{T}, s5
v_cndmask_b32 v{T}, 0, v{T}, vcc
v_lshlrev_b32 v3, 2, v3
v_cmp_gt_u32 vcc, 48, v2
v_add_u32 v{T}, v{T}, v3
v_add_u32 v3, {CSA}, v3
v_mov_b32 v{T+1}, {BIG}
v_cndmask_b32 v{T}, v{T+1}, v{T}, vcc
v_mov_b32 v{T+1}, {LBIG}
s_lshl_b32 s5, s6, 1
v_cndmask_b32 v{T+2}, v{T+1}, v3, vcc""")
    for p in range(8):
        e(f"buffer_load_dword v{24+p}, v{T}, s[{S_A}:{S_A+3}], s5 offen sc0 sc1")
        if p < 7: e(f"s_add_u32 s5, s5, {1728*4}")
    e("s_branch K1_ld\nK1_sd5s:")
    srd(e, S_A, 46, S1_BYTES, WS_S1)
    e(f"s_lshl_b32 s5, s{S_I}, 10\nv_lshlrev_b32 v{T}, 4, v2\nv_lshlrev_b32 v{T+2}, 3, v2\nv_add_u32 v{T+2}, {XCH}, v{T+2}")
    e(f"buffer_load_dwordx4 v[24:27], v{T}, s[{S_A}:{S_A+3}], s5 offen sc0 sc1\ns_branch K1_ld")
    e(f"K1_sd6:\ns_cmp_eq_u32 s{S_WV}, 3\ns_cbranch_scc1 K1_sd6s")
    e("v_add_f32 v24, v24, v25\nv_add_f32 v26, v26, v27\nv_add_f32 v28, v28, v29\nv_add_f32 v30, v30, v31\nv_add_f32 v24, v24, v26\nv_add_f32 v28, v28, v30\nv_add_f32 v24, v24, v28")
    e(f"ds_write_b32 v{T+2}, v24\ns_branch K1_ld\nK1_sd6s:")
    for k in range(4): e(f"v_mul_f32 v{28+k}, {hex(f2u(L2E))}, v{24+k}")
    e(f"v_add_u32 v{T+1}, 1024, v{T+2}")
    e(f"ds_write2_b32 v{T+2}, v24, v26 offset0:0 offset1:1\nds_write2_b32 v{T+2}, v25, v27 offset0:128 offset1:129")
    e(f"ds_write2_b32 v{T+1}, v28, v30 offset0:0 offset1:1\nds_write2_b32 v{T+1}, v29, v31 offset0:128 offset1:129\ns_branch K1_ld")
    e("K1_ldend:\ns_waitcnt vmcnt(0)")
    tl.stamp(2)
    e("s_barrier")
    tl.end("K1_end", "v_cmp_eq_u32 vcc, 256, v0")
    e("s_endpgm")
    e("K1_comp:")
    e(f"s_mul_i32 s{S_WB}, s{S_WV}, 9216")
    e(f"v_and_b32 v{T}, 15, v2\nv_lshrrev_b32 v{T+1}, 4, v2")
    e(f"v_lshrrev_b32 v3, 1, v{T}\nv_xor_b32 v3, v3, v{T+1}\nv_lshlrev_b32 v3, 4, v3\nv_lshl_add_u32 v3, v{T}, 7, v3\nv_add_u32 v{AB}, s{S_WB}, v3\nv_xor_b32 v3, 64, v3\nv_add_u32 v{AB+1}, s{S_WB}, v3")
    e(f"v_and_b32 v3, 1, v{T+1}\nv_mul_u32_u24 v3, 12, v3\nv_bfe_u32 v{T+2}, v2, 2, 2\nv_add_u32 v3, v3, v{T+2}")
    e(f"v_xor_b32 v{T+2}, 4, v3\nv_mul_u32_u24 v3, 288, v3\nv_mul_u32_u24 v{T+2}, 288, v{T+2}")
    e(f"v_lshrrev_b32 v{AC}, 5, v2\nv_mul_u32_u24 v{AC}, 9216, v{AC}\nv_and_b32 v{AC+1}, 3, v2\nv_lshl_add_u32 v{AC}, v{AC+1}, 3, v{AC}\nv_add_u32 v{AC}, 4096, v{AC}")
    e(f"v_add_u32 v{AB+2}, v{AC}, v3\nv_add_u32 v{AB+3}, v{AC}, v{T+2}")
    for i in range(4): e(f"v_mov_b32 v{XF+i}, 0")
    c0 = hex(f2u(1e-6 * L2E))
    e(f"s_mov_b32 s56, {hex(f2u(LN2))}\ns_mov_b32 s57, {hex(f2u(LN2))}\ns_mov_b32 s58, {c0}\ns_mov_b32 s59, {c0}")
    for r in range(ACC, ACC + 80, 16):
        e(f"v_mfma_f32_32x32x16_bf16 v[{r}:{r+15}], v[{XF}:{XF+3}], v[{XF}:{XF+3}], 0")
    e(f"s_mov_b32 s{S_CNT}, 0\ns_mov_b32 s{S_SL}, {SLOT}\ns_lshl_b32 s6, s{S_WV}, 7\ns_add_u32 s6, s6, {XCH}")
    e("s_waitcnt lgkmcnt(0)")
    e(f"s_cmp_eq_u32 s{S_KV}, 0\ns_cbranch_scc1 K1_q")
    srd(e, S_O, 46, KV_BYTES, WS_KV)
    e(f"v_lshlrev_b32 v8, 4, v{T+1}\nv_add_u32 v8, s6, v8\nv_lshlrev_b32 v9, 2, v{T}\nv_add_u32 v9, {CSA}, v9\nv_mov_b32 v{ONES}, 0x3f803f80")
    pairs = []
    for hl in range(4):
        for a in (hl, hl + 1):
            for b in (hl + 4, hl + 5):
                if (a, b) not in pairs: pairs.append((a, b))
    e(f"s_mul_i32 s5, s{S_WV}, 6144\nv_mul_u32_u24 v3, 80, v{T}\nv_lshl_add_u32 v3, v{T+1}, 4, v3\nv_add_u32 v3, s5, v3\nv_mov_b32 v{T+3}, {LBIG}")
    for k, (a, b) in enumerate(pairs):
        first = True
        for hl in range(4):
            def valid(l):
                n, g = l & 15, l >> 4
                ec = 16*(b-4) - 8 + n
                if ec < 0 or ec // 18 != hl: return False
                return 0 <= 4*a + g - (9*hl)//2 < 5
            m = mask64(valid)
            if not m: continue
            const = hl*1520 + (16*(b-4) - 8 - 18*hl)*80 + (4*a - (9*hl)//2)*16
            smask(e, 48, m)
            e(f"v_add_u32 v{T+2}, {const & 0xffffffff}, v3\nv_cndmask_b32 v{WA+k}, v{T+3 if first else WA+k}, v{T+2}, s[48:49]")
            first = False
    e(f"v_add_u32 v3, 1, v{T}\nv_lshrrev_b32 v3, 1, v3\nv_lshrrev_b32 v{T+2}, 1, v{T}\nv_lshl_add_u32 v{AC}, v3, 2, v{T+1}\nv_mul_u32_u24 v{AC+1}, 9, v{T+2}\nv_lshrrev_b32 v{AC+1}, 1, v{AC+1}\nv_sub_u32 v{AC}, v{AC}, v{AC+1}")
    smask(e, 48, mask64(lambda l: (l & 15) < 8 and 0 <= 4*(((l & 15) + 1) >> 1) + (l >> 4) - (9*((l & 15) >> 1))//2 < 5))
    e(f"v_mul_u32_u24 v{T+2}, 1520, v{T+2}\nv_lshl_add_u32 v{AC}, v{AC}, 4, v{T+2}\ns_add_u32 s5, s5, {18*80}\nv_add_u32 v{AC}, s5, v{AC}\nv_cndmask_b32 v{WA+13}, v{T+3}, v{AC}, s[48:49]")
    for a in range(5):
        smask(e, 48, mask64(lambda l: (l & 15) < 8 and ((l & 15) + 1) >> 1 == a))
        e(f"v_cndmask_b32 v{ZB+4*a}, 0, v{ONES}, s[48:49]\nv_cndmask_b32 v{ZB+4*a+1}, 0, v{ONES}, s[48:49]")
        e(f"v_pk_mov_b32 v[{ZB+4*a+2}:{ZB+4*a+3}], v[{ZB+4*a}:{ZB+4*a+1}], v[{ZB+4*a}:{ZB+4*a+1}]")
    e(f"s_mul_i32 s5, s{S_G}, 6080\nv_mov_b32 v{T+3}, {BIG}")
    for i in range(6):
        r = GA + i
        e(f"v_add_u32 v3, {256*i}, v0\nv_mul_u32_u24 v{T+2}, 3277, v3\nv_lshrrev_b32 v{T+2}, 16, v{T+2}")
        e(f"v_mul_u32_u24 v{AC}, 20, v{T+2}\nv_sub_u32 v{AC}, v3, v{AC}")
        e(f"v_mul_u32_u24 v{T+2}, 27, v{T+2}\nv_lshrrev_b32 v{T+2}, 8, v{T+2}\nv_and_b32 v{T+2}, 2, v{T+2}\nv_sub_u32 v{AC}, v{AC}, v{T+2}")
        e(f"v_cmp_gt_u32 s[48:49], 18, v{AC}\nv_lshlrev_b32 v3, 2, v3\nv_add_u32 v3, s5, v3\nv_cndmask_b32 v{r}, v{T+3}, v3, s[48:49]")
    e(f"v_cmp_gt_u32 vcc, 240, v0\ns_nop 1\nv_cndmask_b32 v{GA+5}, v{T+3}, v{GA+5}, vcc")

    def rdlist(kk):
        rd = []
        for tt in range(2):
            r = XF + 8*kk + 4*tt
            rd.append(f"ds_read_b128 v[{r}:{r+3}], v{AC+kk} offset:{2048*tt}")
        for ct in range(9):
            r = WF + 36*kk + 4*ct
            rd.append(f"ds_read_b64_tr_b16 v[{r}:{r+1}], v{AC+2} offset:{kk*18432 + ct*32}")
            rd.append(f"ds_read_b64_tr_b16 v[{r+2}:{r+3}], v{AC+3} offset:{kk*18432 + ct*32}")
        return rd
    def mainloop(kind):
        lab = f"K1_{kind}"
        tm.stamp(0)
        for i in range(4): e(f"v_mov_b32 v{AC+i}, v{AB+i}")
        e("s_barrier")
        tm.stamp(1)
        for t in rdlist(0): e(t)
        e(f"{lab}_l:")
        for kk in range(2):
            rd = rdlist(1 - kk)
            extra = []
            if kk == 1:
                extra = [f"s_add_u32 s{S_SL}, s{S_SL}, {SLOT}", f"s_cmp_ge_u32 s{S_SL}, {4*SLOT}\ns_cselect_b32 s{S_SL}, 0, s{S_SL}",
                         f"s_add_u32 s{S_CNT}, s{S_CNT}, 1", f"s_cmp_lt_u32 s{S_CNT}, 9"]
            cnt = 0
            for ct in range(9):
                wf = WF + 36*kk + 4*ct
                for tt in range(2):
                    if cnt == 0: e("s_waitcnt lgkmcnt(6)" if kk == 0 else "s_waitcnt lgkmcnt(0)")
                    if cnt == 6 and kk == 0: e("s_waitcnt lgkmcnt(9)")
                    d = ACC + 36*tt + 4*ct; x = XF + 8*kk + 4*tt
                    a, b = (wf, x) if kind == "q" else (x, wf)
                    e(f"v_mfma_f32_16x16x32_bf16 v[{d}:{d+3}], v[{a}:{a+3}], v[{b}:{b+3}], v[{d}:{d+3}]")
                    cnt += 1
                    if kk == 1 and cnt == 1:
                        for i in range(4): e(f"v_add_u32 v{AC+i}, s{S_SL}, v{AB+i}")
                        e("s_barrier")
                    if rd: e(rd.pop(0))
                    if cnt % 2 == 1 and rd: e(rd.pop(0))
                    if not rd and extra and cnt > 13: e(extra.pop(0))
            assert not rd and not extra
        e(f"s_cbranch_scc1 {lab}_l")
        tm.stamp(2)
        e("s_waitcnt lgkmcnt(0)")

    def pr(r): return f"v[{r}:{r+1}]"
    def bc(r, pos, n=3):
        base = r & ~1; hi = r & 1
        sel = [0]*n; selh = [1]*n
        sel[pos] = hi; selh[pos] = hi
        return pr(base), f" op_sel:{sel} op_sel_hi:{selh}".replace(", ", ",")
    def phi4(a, t):
        for r in range(4): e(f"v_exp_f32_e64 v{t+r}, v{a+r} clamp")
        for r in range(4): e(f"v_max_f32 v{a+r}, s58, v{a+r}")
        for r in (0, 2): e(f"v_pk_fma_f32 {pr(a+r)}, {pr(a+r)}, s[56:57], {pr(t+r)}")
    mainloop("kv")
    CSV = WF; RSV = WF + 12; PK = WF + 48; PV = ONES
    for k in range(2):
        for tt in range(2):
            e(f"ds_read_b128 v[{RSV+16*tt+4*k}:{RSV+16*tt+4*k+3}], v8 offset:{64*tt + 512*k}")
    for ct in (4, 5, 6, 7, 8, 0, 1, 2, 3): e(f"ds_read_b32 v{CSV+ct}, v9 offset:{64*ct}")
    e("s_waitcnt lgkmcnt(4)")
    for k in range(2, 4):
        for tt in range(2):
            e(f"ds_read_b128 v[{RSV+16*tt+4*k}:{RSV+16*tt+4*k+3}], v8 offset:{64*tt + 512*k}")
    def ktile(ct):
        for tt in range(2):
            a = ACC + 36*tt + 4*ct; R = RSV + 16*tt; t = TT + 4*tt
            o, sel = bc(CSV + ct, 1)
            for r in (0, 2): e(f"v_pk_fma_f32 {pr(t+r)}, {pr(R+12+r)}, {o}, s[58:59]{sel}")
            for r in (0, 2): e(f"v_pk_fma_f32 {pr(a+r)}, {pr(a+r)}, {pr(R+8+r)}, {pr(t+r)}")
            phi4(a, t)
            d = PK + 4*ct + 2*tt
            e(f"v_cvt_pk_bf16_f32 v{d}, v{a}, v{a+1}\nv_cvt_pk_bf16_f32 v{d+1}, v{a+2}, v{a+3}")
    def vtile(ct):
        for tt in range(2):
            a = ACC + 36*tt + 4*ct; R = RSV + 16*tt; t = TT + 8 + 4*tt
            o, sel = bc(CSV + ct, 1, 2)
            for r in (0, 2): e(f"v_pk_mul_f32 {pr(t+r)}, {pr(R+4+r)}, {o}{sel}")
            for r in (0, 2): e(f"v_pk_fma_f32 {pr(t+r)}, {pr(a+r)}, {pr(R+r)}, {pr(t+r)}")
            d = PV + 4*(ct-4) + 2*tt
            e(f"v_cvt_pk_bf16_f32 v{d}, v{t}, v{t+1}\nv_cvt_pk_bf16_f32 v{d+1}, v{t+2}, v{t+3}")
    for ct in range(4, 9): vtile(ct)
    e("s_waitcnt lgkmcnt(0)")
    tm.stamp(3)
    free = [ACC + 36*tt + 4*ct for ct in range(5, 9) for tt in range(2)]
    zreg = free.pop(0)
    kvreg = {}
    pend = []
    def flush():
        for k in pend: e(f"ds_write_b128 v{WA+k}, v[{kvreg[k]}:{kvreg[k]+3}]")
        pend.clear()
    for a in range(5):
        ktile(a)
        if pend: flush()
        else: e("s_nop 1")
        free += [ACC + 4*a, ACC + 36 + 4*a]
        for k, (pa, pb) in enumerate(pairs):
            if pa == a:
                d = free.pop(0); kvreg[k] = d; pend.append(k)
                e(f"v_mfma_f32_16x16x32_bf16 v[{d}:{d+3}], v[{PK+4*a}:{PK+4*a+3}], v[{PV+4*(pb-4)}:{PV+4*(pb-4)+3}], 0")
        e(f"v_mfma_f32_16x16x32_bf16 v[{zreg}:{zreg+3}], v[{PK+4*a}:{PK+4*a+3}], v[{ZB+4*a}:{ZB+4*a+3}], " + ("0" if a == 0 else f"v[{zreg}:{zreg+3}]"))
    kvreg[13] = zreg; pend.append(13)
    e(f"v_lshlrev_b32 v3, 2, v0\ns_nop 5")
    flush()
    tm.stamp(4)
    e(f"s_waitcnt lgkmcnt(0)\ns_barrier")
    RB = WF
    e.lg = []; e.lg_done = 0
    for i in range(6):
        for w in range(0, 4, 2):
            e.ds(f"ds_read2st64_b32 v[{RB+4*i+w}:{RB+4*i+w+1}], v3 offset0:{(w*6144 + i*1024)//256} offset1:{((w+1)*6144 + i*1024)//256}", i)
    for i in range(6):
        e.wait_lg(lambda t: t == i)
        r = RB + 4*i
        e(f"v_pk_add_f32 {pr(r)}, {pr(r)}, {pr(r+2)}\nv_add_f32 v{r}, v{r}, v{r+1}")
        e(f"buffer_atomic_add_f32 v{r}, v{GA+i}, s[{S_O}:{S_O+3}], 0 offen sc1")
    tm.stamp(5)
    e("s_branch K1_done")
    e("K1_q:")
    srd(e, S_O, 46, ACT_BYTES, WS_PQ)
    e(f"v_lshlrev_b32 v8, 2, v{T}\nv_add_u32 v8, s6, v8\nv_lshlrev_b32 v9, 4, v{T+1}\nv_add_u32 v9, {CSA}, v9")
    e(f"s_lshl_b32 s5, s{S_I}, 2\ns_add_u32 s5, s5, s{S_WV}\ns_lshl_b32 s5, s5, 2\ns_add_u32 s5, s5, s{S_G}\ns_mul_i32 s20, s5, 9216\nv_lshlrev_b32 v11, 4, v2")
    e(f"s_add_u32 s21, s20, 4096\ns_add_u32 s22, s20, 8192")
    mainloop("q")
    CSV = WF; RSV = WF + 36; P = WA
    for tt in range(2):
        for k in range(2): e(f"ds_read_b32 v{RSV+2*tt+k}, v8 offset:{1024 + 64*tt + 512*k}")
    for ct in range(9): e(f"ds_read_b128 v[{CSV+4*ct}:{CSV+4*ct+3}], v9 offset:{64*ct}")
    stored = 0
    for tt in range(2):
        for ct in range(9):
            if tt == 0 and ct in (0, 2): e(f"s_waitcnt lgkmcnt({7 if ct == 0 else 0})")
            a = ACC + 36*tt + 4*ct; t = TT + 4*(ct % 2)
            o, sel = bc(RSV + 2*tt + 1, 0)
            for r in (0, 2): e(f"v_pk_fma_f32 {pr(t+r)}, {o}, {pr(CSV+4*ct+r)}, s[58:59]{sel}")
            o, sel = bc(RSV + 2*tt, 1)
            for r in (0, 2): e(f"v_pk_fma_f32 {pr(a+r)}, {pr(a+r)}, {o}, {pr(t+r)}{sel}")
            phi4(a, t)
            d = P + 18*tt + 2*ct
            e(f"v_cvt_pk_bf16_f32 v{d}, v{a}, v{a+1}\nv_cvt_pk_bf16_f32 v{d+1}, v{a+2}, v{a+3}")
            while 4*stored + 3 <= 18*tt + 2*ct + 1:
                q = stored
                e(f"buffer_store_dwordx4 v[{P+4*q}:{P+4*q+3}], v11, s[{S_O}:{S_O+3}], s{20+q//4} offen" + (f" offset:{(q%4)*1024}" if q % 4 else ""))
                stored += 1
    tm.stamp(5)
    e("s_branch K1_done")
    e("K1_spare:")
    e(f"v_lshrrev_b32 v3, 3, v2\nv_and_b32 v{T}, 7, v2\nv_lshlrev_b32 v{T}, 4, v{T}\nv_mov_b32 v8, {BIG}")
    e(f"s_cmp_ge_u32 s{S_WV}, 4\ns_cbranch_scc1 K1_sp_cs")
    e(f"v_mul_u32_u24 v9, 1152, v3\nv_add_u32 v9, v9, v{T}\ns_lshl_b32 s6, s2, 2\ns_add_u32 s6, s6, s{S_WV}\ns_mul_i32 s5, s6, {8*1152}\ns_waitcnt lgkmcnt(0)")
    srd(e, S_X, 40, ACT_BYTES)
    e.vm = []; e.vm_done = 0
    for i in range(9):
        e.vmem(f"buffer_load_dwordx4 v[{32+4*i}:{35+4*i}], v9, s[{S_X}:{S_X+3}], s5 offen" + (f" offset:{128*i}" if i else ""), i)
    srd(e, S_A, 46, S1_BYTES, WS_S1)
    e(f"v_mov_b32 v10, 0x3f803f80\nv_mov_b32 v12, 0\nv_mov_b32 v13, 0\nv_cmp_eq_u32 vcc, 0, v{T}\nv_lshlrev_b32 v3, 3, v3\ns_lshl_b32 s6, s6, 6\nv_cndmask_b32 v3, v8, v3, vcc")
    for i in range(9):
        e.wait_vm(lambda t: t == i)
        for k in range(4): e(f"v_dot2c_f32_bf16 v12, v{32+4*i+k}, v10\nv_dot2c_f32_bf16 v13, v{32+4*i+k}, v{32+4*i+k}")
    e("s_nop 2")
    for dpp in ("quad_perm:[1,0,3,2]", "quad_perm:[2,3,0,1]", "row_half_mirror"):
        e(f"v_add_f32_dpp v12, v12, v12 {dpp} row_mask:0xf bank_mask:0xf\nv_add_f32_dpp v13, v13, v13 {dpp} row_mask:0xf bank_mask:0xf\ns_nop 0")
    ln_stats2(e, [(12, 13, 14, 16, 17)])
    e(f"buffer_store_dwordx2 v[16:17], v3, s[{S_A}:{S_A+3}], s6 offen sc0 sc1")
    srd(e, S_O, 46, KV_BYTES, WS_KV)
    e(f"v_cmp_gt_u32 vcc, 95, v0\nv_lshlrev_b32 v3, 3, v0\nv_mov_b32 v18, 0\nv_mov_b32 v19, 0\nv_cndmask_b32 v3, v8, v3, vcc\ns_mul_i32 s5, s2, 760")
    e(f"buffer_store_dwordx2 v[18:19], v3, s[{S_O}:{S_O+3}], s5 offen sc0 sc1\ns_branch K1_sp_j")
    e("K1_sp_cs:\ns_waitcnt lgkmcnt(0)\ns_cmp_ge_u32 s2, 54\ns_cbranch_scc1 K1_sp_j")
    e(f"v_mul_u32_u24 v9, 3456, v3\nv_add_u32 v9, v9, v{T}\ns_and_b32 s6, s2, 1\ns_lshl_b32 s6, s6, 2\ns_add_u32 s6, s6, s{S_WV}\ns_sub_u32 s6, s6, 4\ns_lshr_b32 s7, s2, 1")
    e(f"s_mul_i32 s5, s6, {72*3456}\ns_lshl_b32 s50, s7, 7\ns_add_u32 s5, s5, s50")
    srd(e, S_W, 42, 576*1728*2)
    e.vm = []; e.vm_done = 0
    for i in range(9):
        e.vmem(f"buffer_load_dwordx4 v[{32+4*i}:{35+4*i}], v9, s[{S_W}:{S_W+3}], s5 offen", i)
        if i < 8: e(f"s_add_u32 s5, s5, {8*3456}")
    srd(e, S_A, 46, CS_BYTES, WS_CS)
    e("v_mov_b32 v10, 0x3f80\nv_mov_b32 v11, 0x3f800000")
    for k in range(8): e(f"v_mov_b32 v{12+k}, 0")
    e(f"s_lshl_b32 s50, s{S_WV}, 11\nv_lshlrev_b32 v3, 5, v2\nv_add_u32 v3, s50, v3\nv_lshlrev_b32 v9, 2, v2\nv_add_u32 v{T}, s50, v9")
    e(f"s_mul_i32 s6, s6, {1728*4}\ns_lshl_b32 s7, s7, 8\ns_add_u32 s6, s6, s7")
    for i in range(9):
        e.wait_vm(lambda t: t == i)
        for k in range(4): e(f"v_dot2c_f32_bf16 v{12+2*k}, v{32+4*i+k}, v10\nv_dot2c_f32_bf16 v{13+2*k}, v{32+4*i+k}, v11")
    e("s_nop 2\nds_write_b128 v3, v[12:15]\nds_write_b128 v3, v[16:19] offset:16\ns_waitcnt lgkmcnt(0)")
    for k in range(4): e(f"ds_read2st64_b32 v[{12+2*k}:{13+2*k}], v{T} offset0:{2*k} offset1:{2*k+1}")
    e("s_waitcnt lgkmcnt(0)\nv_pk_add_f32 v[12:13], v[12:13], v[14:15]\nv_pk_add_f32 v[16:17], v[16:17], v[18:19]\nv_pk_add_f32 v[12:13], v[12:13], v[16:17]\nv_add_f32 v12, v12, v13")
    e(f"buffer_store_dword v12, v9, s[{S_A}:{S_A+3}], s6 offen sc0 sc1")
    e("K1_sp_j:")
    e("s_load_dwordx2 s[48:49], s[0:1], 16\ns_load_dwordx4 s[52:55], s[0:1], 32")
    e(f"s_waitcnt vmcnt(0) lgkmcnt(0)\ns_barrier")
    tm.stamp(0)
    e(f"s_cmp_lg_u32 s{S_WV}, 0\ns_cbranch_scc1 K1_nosig")
    srd(e, S_DBG, 44, 256)
    e(f"v_cmp_eq_u32 vcc, 0, v2\nv_mov_b32 v4, 1\ns_nop 0\nv_cndmask_b32_e64 v3, v8, 0, vcc\nbuffer_atomic_add v4, v3, s[{S_DBG}:{S_DBG+3}], 0 offen sc1")
    e("K1_nosig:")
    if cpf:
        e(f"s_cmp_lg_u32 s{S_WV}, 7\ns_cbranch_scc1 K1_nocp2\ns_lshr_b32 s6, s2, 3\ns_lshl_b32 s6, s6, 13")
        code_prefetch(e, "K1_pc2", "k2_kernel", "K2_end", 2, 20, 6)
        e("K1_nocp2:")
    if prefetch:
        srd(e, S_X, 48, 576*576*2)
        e(f"s_mul_i32 s5, s2, {81*128}\nv_lshlrev_b32 v3, 7, v0\nv_cmp_gt_u32 vcc, 81, v0\ns_nop 1\nv_cndmask_b32 v3, v8, v3, vcc")
        e(f"buffer_load_dword v10, v3, s[{S_X}:{S_X+3}], s5 offen")
        srd(e, S_A, 52, 576*4608*2)
        srd(e, S_W, 54, 576*4608*2)
        e(f"s_and_b32 s5, s2, 7\ns_mul_i32 s5, s5, 1152\ns_lshr_b32 s6, s2, 3\ns_mul_i32 s6, s6, {72*9216}\ns_add_u32 s5, s5, s6")
        e(f"v_lshrrev_b32 v4, 2, v0\nv_mul_u32_u24 v4, 9216, v4\nv_bfe_u32 v5, v0, 1, 1\nv_mul_u32_u24 v5, 5, v5\nv_and_b32 v3, 1, v0\nv_add_u32 v5, v5, v3\nv_lshl_add_u32 v4, v5, 7, v4")
        e(f"v_cmp_gt_u32 vcc, 288, v0\ns_nop 1\nv_cndmask_b32 v4, v8, v4, vcc")
        e(f"buffer_load_dword v11, v4, s[{S_A}:{S_A+3}], s5 offen\nbuffer_load_dword v12, v4, s[{S_W}:{S_W+3}], s5 offen")
    e("K1_done:")
    tm.end("K1_end")
    e("K1_end:\ns_endpgm")
    return e.text()
if __name__ == "__main__":
    assert all((n*3277) >> 16 == n//20 for n in range(1536))
    assert all((n*27) >> 9 == n//19 for n in range(77))
    assert all((n*7282) >> 16 == n//9 for n in range(1024))
    print("ok")
```

```python
from sched import *
from layout import *
from tim import Tim
from k3 import srd, f2u
from k1 import mask64, smask, BIG, LBIG, code_prefetch
REG = 39936; WOFF = 12288

def gen_k2(timing=False, prefetch=True, cpf=True):
    e = Em()
    A = 24; O = 112; ADR = 112; RAW = 184; RD = 184; NR = 216; MIX = 240; ACC = 16
    VL16 = 4; VWO = 5
    TB = 8
    VXA = 10; VST = 11; VSA = 12
    XR = 244
    PQ = 0; WFR = 72
    S_KV = 8; S_PQ = 12; S_WO = 16; S_X = 20; S_HT = 24; S_STT = 28
    S_RT = 32; S_CG = 33; S_WV = 34; S_RB = 35; S_WS = 36
    e("s_cmp_ge_u32 s2, 256\ns_cbranch_scc1 K2_end")
    e("s_load_dwordx2 s[40:41], s[0:1], 0\ns_load_dwordx2 s[42:43], s[0:1], 16\ns_load_dwordx2 s[46:47], s[0:1], 72")
    tm = Tim(e, 2, timing); tm.start()
    e(f"v_lshrrev_b32 v1, 6, v0\nv_and_b32 v2, 63, v0\ns_cmp_ge_u32 s2, 192\nv_readfirstlane_b32 s{S_WV}, v1\ns_cbranch_scc1 K2_spare")
    e(f"""s_and_b32 s3, s2, 7
s_lshr_b32 s4, s2, 3
s_lshl_b32 s3, s3, 2
s_and_b32 s5, s4, 3
s_add_u32 s{S_RT}, s3, s5
s_lshr_b32 s{S_CG}, s4, 2
s_mul_i32 s{S_RB}, s{S_WV}, {REG}
s_mul_i32 s5, s{S_WV}, 12160
v_lshlrev_b32 v{VL16}, 4, v2
s_waitcnt lgkmcnt(0)""")
    srd(e, S_KV, 46, KV_BYTES, WS_KV)
    for i in range(12):
        if i % 4 == 0:
            e(f"s_add_u32 m0, s{S_RB}, {i*1024}\ns_add_u32 s6, s5, {i*1024}")
        e.vmem(f"buffer_load_dwordx4 v{VL16}, s[{S_KV}:{S_KV+3}], s6 offen" + (f" offset:{(i%4)*1024}" if i % 4 else "") + " lds", "kv")
    tm.stamp(0)
    srd(e, S_PQ, 46, ACT_BYTES, WS_PQ)
    srd(e, S_WO, 42, 576*576*2)
    srd(e, S_X, 40, ACT_BYTES)
    srd(e, S_HT, 46, ACT_BYTES, WS_HT)
    srd(e, S_STT, 46, ST_BYTES, WS_ST)
    e(f"v_and_b32 v13, 15, v2\nv_lshrrev_b32 v14, 4, v2\nv_mul_u32_u24 v3, 80, v13\nv_lshl_add_u32 v3, v14, 4, v3\nv_add_u32 v3, s{S_RB}, v3\nv_mov_b32 v15, {LBIG}")
    frags = []
    na = [0]
    def addr(base, m):
        if m == 0: return None
        r = ADR + na[0]; na[0] += 1
        smask(e, 48, m)
        e(f"v_cndmask_b32 v{r}, v15, v{base}, s[48:49]")
        return r
    numf = {}
    for h in range(8):
        for j in (h, h + 1):
            L = []
            for jj in range(2):
                def valid(l):
                    m, g = l & 15, l >> 4
                    return 0 <= 16*j + m - 18*h < 18 and 0 <= g + 4*jj - (h >> 1) < 5
                off = h*1520 + (16*j - 18*h)*80 + (4*jj - (h >> 1))*16
                assert off >= 0
                L.append((addr(3, mask64(valid)), off))
            numf[(j, h)] = len(frags); frags.append(L)
    e(f"v_and_b32 v1, 3, v13\nv_mul_u32_u24 v3, 9, v1\nv_lshrrev_b32 v3, 1, v3\nv_sub_u32 v3, v14, v3\nv_lshlrev_b32 v3, 4, v3\nv_mul_u32_u24 v1, 1520, v1\nv_add3_u32 v3, v3, v1, s{S_RB}")
    zf = []
    for c, T0s in ((0, (0, 2, 4)), (1, (4, 6, 7))):
        for T0 in T0s:
            L = []
            for jj in range(2):
                T = T0 + jj
                def valid(l):
                    if c == 1 and T0 == 7 and jj == 0: return False
                    hs = 4*c + (l & 3); g = l >> 4
                    return 0 <= 4*T + g - (9*hs)//2 < 5
                off = c*(4*1520 - 18*16) + 18*80 + 64*T
                L.append((addr(3, mask64(valid)), off))
            zf.append((c, T0, len(frags))); frags.append(L)
    assert len(frags) == 22 and na[0] <= 44
    tm.stamp(1)
    e(f"s_lshr_b32 s5, s{S_WV}, 1\ns_lshl_b32 s6, s{S_RT}, 1\ns_add_u32 s{S_WS}, s6, s5")
    for b in range(2):
        e(f"s_xor_b32 s5, s{S_WS}, {b}\ns_lshl_b32 s5, s5, 2\ns_add_u32 s5, s5, s{S_WV}\ns_mul_i32 s5, s5, 9216")
        for q in range(9):
            if q % 4 == 0 and q: e(f"s_add_u32 s5, s5, 4096")
            r = PQ + 36*b + 4*q
            e.vmem(f"buffer_load_dwordx4 a[{r}:{r+3}], v{VL16}, s[{S_PQ}:{S_PQ+3}], s5 offen" + (f" offset:{(q%4)*1024}" if q % 4 else ""), ("pq", b))
    for i in range(3):
        e(f"v_add_u32 v3, {64*i}, v2\nv_mul_u32_u24 v1, 5462, v3\nv_lshrrev_b32 v1, 16, v1\nv_mul_u32_u24 v{VWO+i}, 12, v1\nv_sub_u32 v3, v3, v{VWO+i}\nv_mul_u32_u24 v1, 1152, v1\nv_lshl_add_u32 v{VWO+i}, v3, 4, v1")
        if i: e(f"v_subrev_u32 v{VWO+i}, {i*1024}, v{VWO+i}")
    e(f"s_mul_i32 s37, s{S_WV}, {144*1152}\ns_mul_i32 s5, s{S_CG}, 192\ns_add_u32 s37, s37, s5")
    e(f"v_lshrrev_b32 v3, 2, v2\nv_mul_u32_u24 v3, 192, v3\nv_and_b32 v1, 3, v2\nv_lshl_add_u32 v3, v1, 3, v3")
    e(f"s_and_b32 s5, s{S_WV}, 1\ns_mul_i32 s38, s5, 96\ns_add_u32 s6, s{S_RB}, {WOFF}\ns_add_u32 s7, s6, s38\nv_add_u32 v{TB}, s7, v3\ns_add_u32 s7, s6, 96\ns_sub_u32 s7, s7, s38\nv_add_u32 v{TB+1}, s7, v3")
    e(f"v_lshrrev_b32 v1, 5, v2\nv_lshl_add_u32 v1, v1, 4, v13\nv_and_b32 v3, 1, v14")
    e(f"v_mul_u32_u24 v{VXA}, 1152, v1\nv_lshl_add_u32 v{VXA}, v3, 4, v{VXA}")
    e(f"v_lshlrev_b32 v{VST}, 4, v1\nv_lshl_add_u32 v{VST}, v3, 9, v{VST}")
    e(f"v_lshlrev_b32 v{VSA}, 3, v1\nv_mov_b32 v1, {BIG}\nv_cmp_eq_u32 s[48:49], 0, v3\ns_nop 1\nv_cndmask_b32 v{VSA}, v1, v{VSA}, s[48:49]")
    e(f"s_mul_i32 s39, s{S_WS}, 36864\ns_mul_i32 s5, s{S_CG}, 192\ns_add_u32 s5, s5, s38\ns_add_u32 s50, s39, s5")
    vq = []
    for i in range(27):
        pre = []
        if i % 3 == 0:
            pre = [f"s_add_u32 m0, s{S_RB}, {WOFF + i*1024}", f"s_add_u32 s51, s37, {(i//3)*16*1152}"]
        vq.append((pre, f"buffer_load_dwordx4 v{VWO+i%3}, s[{S_WO}:{S_WO+3}], s51 offen" + (f" offset:{(i%3)*1024}" if i % 3 else "") + " lds", ("wo", i//3)))
    for k in range(3):
        vq.append(([], f"buffer_load_dwordx4 v[{XR+4*k}:{XR+4*k+3}], v{VXA}, s[{S_X}:{S_X+3}], s50 offen" + (f" offset:{32*k}" if k else ""), "x"))
    state = {"last": 0}
    def pace(period=18, force=False):
        if vq and (force or e.n - state["last"] >= period):
            pre, t, tag = vq.pop(0)
            for p in pre: e(p)
            e.vmem(t, tag); state["last"] = e.n
    e.wait_vm(lambda t: t == "kv")
    tm.stamp(2)
    state["last"] = e.n - 100
    order = [f for _, _, f in zf] + list(range(16))
    def ards(k):
        f = order[k]; rb = RAW + 8*(k % 4)
        for jj in range(2):
            ar, off = frags[f][jj]
            if ar is not None:
                e.ds(f"ds_read_b128 v[{rb+4*jj}:{rb+4*jj+3}], v{ar} offset:{off}", f)
    for k in range(3): ards(k)
    for k in range(22):
        if k + 3 < 22: ards(k + 3)
        pace()
        f = order[k]; rb = RAW + 8*(k % 4)
        e.wait_lg(lambda t: t == f)
        for jj in range(2):
            d = A + 4*f + 2*jj
            if frags[f][jj][0] is None:
                e(f"v_mov_b32 v{d}, 0\nv_mov_b32 v{d+1}, 0")
            else:
                e(f"v_cvt_pk_bf16_f32 v{d}, v{rb+4*jj}, v{rb+4*jj+1}\nv_cvt_pk_bf16_f32 v{d+1}, v{rb+4*jj+2}, v{rb+4*jj+3}")
    for t in range(1, 4): smask(e, 52 + 2*(t-1), mask64(lambda l: (l >> 4) < t))
    tm.stamp(3)
    q = Queue(e, window=8)
    def pqf(t, tile):
        r = PQ + 36*(t >> 1) + 18*(t & 1) + 2*tile
        return f"a[{r}:{r+3}]"
    rdops = {}
    def mf(d, a, b, first, deps=()):
        o = e.op(Op(f"v_mfma_f32_16x16x32_bf16 v[{d}:{d+3}], v[{a}:{a+3}], {b}, " + ("0" if first else f"v[{d}:{d+3}]"), deps=deps))
        return o
    eps = hex(f2u(1e-6))
    for t in range(4):
        if t % 2 == 0: e.wait_vm(lambda x: x == ("pq", t >> 1))
        for k, (c, T0, f) in enumerate(zf):
            d = RD + 8*t + 4*c
            o = mf(d, A + 4*f, pqf(t, T0), k % 3 == 0)
            if k % 3 == 2:
                for r in range(4):
                    o1 = q.add(Op(f"v_add_f32 v{d+r}, {eps}, v{d+r}", deps=[(o, 10)]))
                    rdops[(t, 4*c + r)] = q.add(Op(f"v_rcp_f32 v{d+r}, v{d+r}", cost=2, deps=[(o1, 0)]))
            pace(); q.fill(2)
    ringfree = [None]*6; mixfree = [None]*4; mixi = [0]
    cnt = 0
    for t in range(4):
        for j in range(9):
            slot = cnt % 6; cnt += 1
            d = NR + 4*slot
            if ringfree[slot] is not None:
                for o in ringfree[slot]:
                    if o.pos is None: q.drain_until(o)
            hs = [h for h in (j - 1, j) if 0 <= h < 8]
            for k, h in enumerate(hs):
                o = mf(d, A + 4*numf[(j, h)], pqf(t, h), k == 0)
                pace(); q.fill(4 if len(hs) == 2 else 6)
            muls = []
            mixcache = {}
            for r in range(4):
                th = sum(1 for g in range(4) if 4*g + r < 2*j)
                if j == 8: th = 4
                if th == 0: src, dp = RD + 8*t + j, [(rdops[(t, j)], 1)]
                elif th == 4: src, dp = RD + 8*t + j - 1, [(rdops[(t, j-1)], 1)]
                else:
                    if th not in mixcache:
                        mi = mixi[0] % 4; mixi[0] += 1
                        dd = [(rdops[(t, j)], 1), (rdops[(t, j-1)], 1)] + [(x, 0) for x in (mixfree[mi] or [])]
                        s = 52 + 2*(th-1)
                        mo = q.add(Op(f"v_cndmask_b32 v{MIX+mi}, v{RD+8*t+j}, v{RD+8*t+j-1}, s[{s}:{s+1}]", deps=dd))
                        mixcache[th] = (mi, mo); mixfree[mi] = []
                    mi, mo = mixcache[th]
                    src, dp = MIX + mi, [(mo, 0)]
                m = q.add(Op(f"v_mul_f32 v{d+r}, v{d+r}, v{src}", deps=[(o, 10)] + dp))
                if th not in (0, 4): mixfree[mixcache[th][0]].append(m)
                muls.append(m)
            od = O + 18*t + 2*j
            c1 = q.add(Op(f"v_cvt_pk_bf16_f32 v{od}, v{d}, v{d+1}", deps=[(muls[0], 0), (muls[1], 0)]))
            c2 = q.add(Op(f"v_cvt_pk_bf16_f32 v{od+1}, v{d+2}, v{d+3}", deps=[(muls[2], 0), (muls[3], 0)]))
            ringfree[slot] = [c1, c2]
    while vq: pace(force=True)
    tm.stamp(4)
    def wreads(ks):
        e.wait_vm(lambda x: x == ("wo", min(2*ks + 1, 8)))
        for ct in range(6):
            r = WFR + 24*ks + (4 if ks < 4 else 2)*ct
            for i in range(2 if ks < 4 else 1):
                e.ds(f"ds_read_b64_tr_b16 a[{r+2*i}:{r+2*i+1}], v{TB+ct//3} offset:{(2*ks+i)*3072 + (ct%3)*32}", ("w", ks))
    wreads(0)
    q.drain()
    e("s_nop 1")
    last = {}
    for ks in range(5):
        e.wait_lg(lambda x: x == ("w", ks))
        if ks < 4: wreads(ks + 1)
        for t in range(4):
            for ct in range(6):
                lq = (t >> 1)*2 + ct//3
                d = ACC + 24*lq + 12*(t & 1) + 4*(ct % 3)
                cs = "0" if ks == 0 else f"v[{d}:{d+3}]"
                if ks < 4:
                    r = WFR + 24*ks + 4*ct; o = O + 18*t + 4*ks
                    e(f"v_mfma_f32_16x16x32_bf16 v[{d}:{d+3}], a[{r}:{r+3}], v[{o}:{o+3}], {cs}")
                else:
                    pass
    tm.stamp(5)
    EX = O
    EX = RD
    e(f"v_add_u32 v3, s{S_RB}, v{VL16}")
    for lq in (1, 2, 3, 0):
        for t in (2*(lq >> 1), 2*(lq >> 1) + 1):
            for c3 in range(3):
                ct = 3*(lq & 1) + c3
                d = ACC + 24*lq + 12*(t & 1) + 4*c3
                r = WFR + 96 + 2*ct; o = O + 18*t + 16
                e(f"v_mfma_f32_16x16x16_bf16 v[{d}:{d+3}], a[{r}:{r+1}], v[{o}:{o+1}], v[{d}:{d+3}]")
    for lq in (1, 2, 3):
        for i in range(12):
            e(f"v_cvt_pk_bf16_f32 v{EX+12*(lq-1)+i}, v{ACC+24*lq+2*i}, v{ACC+24*lq+2*i+1}")
            if i % 4 == 3:
                r = EX + 12*(lq-1) + i - 3
                e(f"ds_write_b128 v3, v[{r}:{r+3}] offset:{lq*3072 + (i//4)*1024}")
    for lq in (1, 2, 3):
        e(f"s_xor_b32 s5, s{S_WV}, {lq}\ns_mul_i32 s5, s5, {REG}\nv_add_u32 v{5+lq-1}, s5, v{VL16}")
    e.wait_vm(lambda x: x == "x")
    for k in range(3):
        e(f"v_permlane16_swap_b32 v{XR+4*k}, v{XR+4*k+2}\nv_permlane16_swap_b32 v{XR+4*k+1}, v{XR+4*k+3}")
    tm.stamp(6)
    e("s_waitcnt lgkmcnt(0)\ns_barrier")
    tm.stamp(7)
    e.lg = []; e.lg_done = 0
    IN = 40
    for lq in (1, 2, 3):
        for i in range(3):
            r = IN + 12*(lq-1) + 4*i
            e.ds(f"ds_read_b128 v[{r}:{r+3}], v{5+lq-1} offset:{lq*3072 + i*1024}", (lq, i))
    e(f"v_mov_b32 v13, 0x3f80\nv_mov_b32 v14, 0x3f800000\nv_mov_b32 v15, 0x3f803f80\nv_mov_b32 v8, 0\nv_mov_b32 v9, 0")
    e(f"s_mul_i32 s5, s{S_CG}, 6144\ns_lshl_b32 s6, s38, 5\ns_add_u32 s5, s5, s6\ns_add_u32 s5, s5, s39")
    e(f"s_lshl_b32 s6, s{S_CG}, 1\ns_and_b32 s7, s{S_WV}, 1\ns_add_u32 s6, s6, s7\ns_lshl_b32 s6, s6, 14\ns_lshl_b32 s7, s{S_WS}, 8\ns_add_u32 s6, s6, s7")
    for lq in (1, 2, 3):
        for i in range(3):
            e.wait_lg(lambda x: x == (lq, i))
            for k in range(4):
                r = IN + 12*(lq-1) + 4*i + k; d = ACC + 2*(4*i + k)
                e(f"v_dot2c_f32_bf16 v{d}, v{r}, v13\nv_dot2c_f32_bf16 v{d+1}, v{r}, v14")
    e("s_nop 2")
    H = 80
    for c3 in range(3):
        for tt in range(2):
            a = ACC + 12*tt + 4*c3
            e(f"v_cvt_pk_bf16_f32 v{H+4*c3+2*tt}, v{a}, v{a+1}\nv_cvt_pk_bf16_f32 v{H+4*c3+2*tt+1}, v{a+2}, v{a+3}")
    e("s_nop 1")
    for c3 in range(3):
        e(f"v_permlane32_swap_b32 v{H+4*c3}, v{H+4*c3+2}\nv_permlane32_swap_b32 v{H+4*c3+1}, v{H+4*c3+3}")
    TL = 96
    for c3 in range(3):
        for k in range(4):
            r = H + 4*c3 + k; x = XR + 4*c3 + k; t = TL + 2*k
            e(f"v_lshlrev_b32 v{t}, 16, v{x}\nv_and_b32 v{t+1}, 0xffff0000, v{x}")
        for k in range(4):
            r = H + 4*c3 + k; t = TL + 2*k
            e(f"v_dot2c_f32_bf16 v{t}, v{r}, v13\nv_dot2c_f32_bf16 v{t+1}, v{r}, v14")
        e("s_nop 2")
        for k in range(4):
            e(f"v_cvt_pk_bf16_f32 v{H+4*c3+k}, v{TL+2*k}, v{TL+2*k+1}")
        e(f"buffer_store_dwordx4 v[{H+4*c3}:{H+4*c3+3}], v{VST}, s[{S_HT}:{S_HT+3}], s5 offen" + (f" offset:{1024*c3}" if c3 else ""))
        for k in range(4):
            r = H + 4*c3 + k
            e(f"v_dot2c_f32_bf16 v8, v{r}, v15\nv_dot2c_f32_bf16 v9, v{r}, v{r}")
    e("s_nop 2\nv_mov_b32 v6, v8\nv_mov_b32 v7, v9\ns_nop 1\nv_permlane16_swap_b32 v6, v8\nv_permlane16_swap_b32 v7, v9\ns_nop 1\nv_add_f32 v6, v6, v8\nv_add_f32 v7, v7, v9")
    e(f"buffer_store_dwordx2 v[6:7], v{VSA}, s[{S_STT}:{S_STT+3}], s6 offen")
    tm.stamp(8)
    e("s_branch K2_done")
    e("K2_spare:")
    e("s_sub_u32 s3, s2, 192")
    if cpf:
        e(f"s_cmp_lg_u32 s{S_WV}, 3\ns_cbranch_scc1 K2_nocp\ns_lshr_b32 s6, s3, 3\ns_lshl_b32 s6, s6, 13")
        code_prefetch(e, "K2_pc", "k3_kernel", "K4_end", 2, 20, 6)
        e("K2_nocp:")
    if prefetch:
        e("s_load_dwordx4 s[52:55], s[0:1], 32\ns_waitcnt lgkmcnt(0)")
        srd(e, S_X, 52, 576*4608*2)
        srd(e, S_WO, 54, 576*4608*2)
        e(f"s_and_b32 s5, s3, 7\ns_mul_i32 s5, s5, 1152\ns_lshr_b32 s6, s3, 3\ns_mul_i32 s6, s6, {72*9216}\ns_add_u32 s5, s5, s6\nv_mov_b32 v8, {BIG}")
        for i in range(2):
            e(f"v_add_u32 v3, {256*i}, v0\nv_mul_u32_u24 v4, 13108, v3\nv_lshrrev_b32 v4, 16, v4\nv_mul_u32_u24 v5, 5, v4\nv_sub_u32 v5, v3, v5")
            e(f"v_add_u32 v6, 1, v5\nv_lshrrev_b32 v6, 2, v6\nv_lshl_add_u32 v5, v6, 1, v5\nv_add_u32 v5, 2, v5\nv_mul_u32_u24 v4, 9216, v4\nv_lshl_add_u32 v4, v5, 7, v4")
            e(f"v_cmp_gt_u32 vcc, 360, v3\ns_nop 1\nv_cndmask_b32 v4, v8, v4, vcc")
            e(f"buffer_load_dword v{10+2*i}, v4, s[{S_X}:{S_X+3}], s5 offen\nbuffer_load_dword v{11+2*i}, v4, s[{S_WO}:{S_WO+3}], s5 offen")
    else:
        e("s_waitcnt lgkmcnt(0)")
    e("K2_done:")
    tm.end("K2_end")
    e("K2_end:\ns_endpgm")
    return e.text()
if __name__ == "__main__":
    assert all((n*5462) >> 16 == n//12 for n in range(192))
    print("ok")
```

```python
from sched import *
from layout import *
from tim import Tim
import struct
def f2u(x): return struct.unpack("<I", struct.pack("<f", x))[0]

def srd(e, d, b, nbytes, off=0):
    if off:
        e(f"s_add_u32 s{d}, s{b}, {off}")
        e(f"s_addc_u32 s{d+1}, s{b+1}, 0")
        e(f"s_and_b32 s{d+1}, s{d+1}, 0xffff")
    else:
        e(f"s_mov_b32 s{d}, s{b}")
        e(f"s_and_b32 s{d+1}, s{b+1}, 0xffff")
    e(f"s_mov_b32 s{d+2}, {nbytes}")
    e(f"s_mov_b32 s{d+3}, 0x20000")

SLOT = 36864
STAMPS = [0, 36, 72, 144, 288, 432, 576, 648, 684, 720, 828, 971]
def gen_k3(C=2, budget=5, timing=False, p2order="simple", store_flags="", lead=30, wdpf=True):
    e = Em()
    TRB = 8; V1 = 12; V3 = 21; V2 = 30; VK2 = 39; VRS = 40; VNM = 41; VL16 = 42
    T = 44
    B0 = 56; B1 = 120; G = 184
    def xraw(s): return 120 + 4*s if s < 34 else 48 + 4*(s-34)
    FR = 144
    S_W = 8; S_WD = 12; S_HT = 16; S_ST = 20; S_PT = 24
    S_J = 28; S_I = 29; S_WV = 30; S_WB = 31; S_CP = 32; S_CS = 33; S_SO = 34; S_XO = 35; S_PO = 36
    e("s_cmp_ge_u32 s2, 256\ns_cbranch_scc1 K3_end")
    e("s_load_dwordx4 s[40:43], s[0:1], 32\ns_load_dwordx2 s[44:45], s[0:1], 48\ns_load_dwordx2 s[46:47], s[0:1], 72")
    tm = Tim(e, 3, timing); tm.start()
    ng = 16 // C; R = 32 // C
    import math
    lg = lambda x: int(math.log2(x))
    e(f"s_and_b32 s3, s2, 7\ns_lshr_b32 s4, s2, 3")
    e(f"s_and_b32 s5, s3, {ng-1}\ns_lshl_b32 s5, s5, {lg(C)}\ns_and_b32 s6, s4, {C-1}\ns_add_u32 s{S_J}, s5, s6")
    e(f"s_lshr_b32 s5, s3, {lg(ng)}\ns_lshl_b32 s5, s5, {lg(R)}\ns_lshr_b32 s6, s4, {lg(C)}\ns_add_u32 s{S_I}, s5, s6")
    e(f"v_lshrrev_b32 v1, 6, v0\nv_and_b32 v2, 63, v0\ns_nop 0\nv_readfirstlane_b32 s{S_WV}, v1")
    e(f"v_lshlrev_b32 v{VL16}, 4, v2")
    e(f"v_bfe_u32 v3, v2, 2, 3\nv_and_b32 v5, 3, v2\nv_lshlrev_b32 v5, 4, v5\nv_lshrrev_b32 v4, 5, v2\nv_lshl_add_u32 v4, v4, 6, v5")
    e(f"s_mul_i32 s{S_WB}, s{S_WV}, 9216")
    e(f"s_and_b32 s5, s{S_J}, 1\ns_mul_i32 s6, s{S_J}, 576\ns_lshl_b32 s7, s5, 6\ns_add_u32 s{S_CP}, s6, s7")
    e(f"s_xor_b32 s7, s5, 1\ns_lshl_b32 s7, s7, 9\ns_add_u32 s{S_CS}, s6, s7")
    e(f"s_and_b32 s37, s{S_WV}, 1\ns_mul_i32 s38, s37, 72\nv_add_u32 v6, s38, v3\nv_mul_u32_u24 v6, 9216, v6\nv_add_u32 v{V1}, v6, v4")
    for i in range(1, 9):
        e(f"v_add_u32 v{V1+i}, {8*i*9216 - (i%3)*1024}, v{V1}")
    e(f"s_lshl_b32 s38, s{S_I}, 2\ns_add_u32 s38, s38, s{S_WV}\ns_mul_i32 s{S_XO}, s38, 36864")
    e(f"s_lshl_b32 s39, s38, 8\nv_and_b32 v7, 31, v2\nv_lshlrev_b32 v7, 3, v7\nv_lshrrev_b32 v6, 5, v2\nv_mul_u32_u24 v6, {6*16384}, v6\nv_add_u32 v7, v7, v6")
    e(f"s_mul_i32 s{S_PO}, s{S_J}, {ACT_BYTES}\ns_add_u32 s{S_PO}, s{S_PO}, s{S_XO}")
    e("s_waitcnt lgkmcnt(0)")
    e(f"s_cmp_lt_u32 s{S_WV}, 2\ns_cselect_b32 s48, s40, s42\ns_cselect_b32 s49, s41, s43")
    srd(e, S_W, 48, 576*4608*2)
    srd(e, S_ST, 46, ST_BYTES, WS_ST)
    srd(e, S_HT, 46, ACT_BYTES, WS_HT)
    for g in range(6):
        e(f"s_add_u32 s50, s39, {g*16384}")
        e.vmem(f"buffer_load_dwordx2 v[{B0+2*g}:{B0+2*g+1}], v7, s[{S_ST}:{S_ST+3}], s50 offen", "st")
    NST = 27
    def dma_instrs(st):
        slot = st % 4
        if st < 16:
            p, q = st // 4, st % 4
            so = f"s_add_u32 s{S_SO}, s{S_CP}, {p*128 + q*144*9216}"; vb = V1; sr = S_W
        elif st < 18:
            q = st - 16
            so = f"s_add_u32 s{S_SO}, s{S_CS}, {q*288*9216}"; vb = V3; sr = S_W
        else:
            c = st - 18
            so = f"s_movk_i32 s{S_SO}, {c*128}"; vb = V2; sr = S_WD
        L = [(so, False)]
        for i in range(9):
            if i % 3 == 0:
                L.append((f"s_add_u32 m0, s{S_WB}, {slot*SLOT + i*1024}", False))
            off = f" offset:{(i%3)*1024}" if i % 3 else ""
            L.append((f"buffer_load_dwordx4 v{vb+i}, s[{sr}:{sr+3}], s{S_SO} offen{off} lds", True))
        return L
    def emit_dma_now(st):
        prev_m0 = False
        for t, d in dma_instrs(st):
            if d:
                if prev_m0: e("s_nop 0")
                e.vmem(t, ("dma", st)); prev_m0 = False
            else:
                e(t); prev_m0 = "m0" in t
    def xload_instrs(s):
        r = xraw(s)
        L = []
        if s % 4 == 0:
            L.append((f"s_add_u32 s51, s{S_XO}, {s*1024}", None))
        off = f" offset:{(s%4)*1024}" if s % 4 else ""
        L.append((f"buffer_load_dwordx4 v[{r}:{r+3}], v{VL16}, s[{S_HT}:{S_HT+3}], s51 offen{off}", ("x", s)))
        return L
    def xload(s):
        for t, tag in xload_instrs(s):
            if tag: e.vmem(t, tag)
            else: e(t)
    xload(0); xload(1)
    emit_dma_now(0)
    xload(2); xload(3)
    srd(e, S_WD, 44, 4608*576*2)
    srd(e, S_PT, 46, 16*ACT_BYTES, WS_PART)
    e(f"v_lshrrev_b32 v6, 5, v2\nv_lshlrev_b32 v6, 8, v6\nv_bfe_u32 v7, v2, 2, 2\nv_lshl_add_u32 v6, v7, 6, v6")
    e(f"v_bfe_u32 v7, v2, 4, 1\nv_lshl_add_u32 v6, v7, 5, v6\nv_and_b32 v7, 3, v2\nv_lshl_add_u32 v{TRB}, v7, 3, v6")
    for i in range(1, 4):
        e(f"v_add_u32 v{TRB+i}, {i*SLOT}, v{TRB}")
    e(f"s_mul_i32 s38, s37, 144\nv_lshrrev_b32 v6, 2, v2\nv_add_u32 v6, s38, v6\nv_mul_u32_u24 v6, 9216, v6\nv_add_u32 v{V3}, v6, v5")
    for i in range(1, 9):
        e(f"v_add_u32 v{V3+i}, {16*i*9216 - (i%3)*1024}, v{V3}")
    e(f"v_mul_u32_u24 v6, 1152, v3\nv_add_u32 v6, v6, v4")
    e(f"s_and_b32 s5, s{S_J}, 1\ns_lshl_b32 s5, s5, 5\ns_mul_i32 s6, s{S_WV}, 72\ns_add_u32 s5, s5, s6\ns_mul_i32 s7, s{S_J}, 288")
    for i in range(9):
        e(f"s_add_u32 s6, s5, {8*i}\ns_sub_u32 s38, s6, 288\ns_cmp_ge_u32 s6, 288\ns_cselect_b32 s6, s38, s6\ns_add_u32 s6, s6, s7\ns_mul_i32 s6, s6, 1152")
        if i % 3: e(f"s_sub_u32 s6, s6, {(i%3)*1024}")
        e(f"v_add_u32 v{V2+i}, s6, v6")
    pfq = {}
    if wdpf:
        e(f"s_mul_i32 s5, s{S_WV}, 44\nv_add_u32 v6, s5, v2\nv_lshlrev_b32 v6, 7, v6\nv_cmp_gt_u32 s[54:55], 11, v2\nv_mov_b32 v43, 0x40000000")
        e(f"s_mul_i32 s5, s{S_I}, 18\ns_add_u32 s5, s5, s7\ns_mul_i32 s53, s5, 1152\nv_cndmask_b32 v43, v43, v6, s[54:55]")
        for k in range(4):
            pfq[168 + 72*k] = (f"s_add_u32 s54, s53, {k*11*128}", f"buffer_load_dword v1, v43, s[{S_WD}:{S_WD+3}], s54 offen")
    c = 0.7978845608028654; l2e = 1.4426950408889634
    k1 = -2*c*l2e; k2 = k1*0.044715
    e(f"v_mov_b32 v{VK2}, {hex(f2u(k2))}")
    e.wait_vm(lambda t: t == "st")
    b = B0
    e(f"v_add_f32 v{b}, v{b}, v{b+2}\nv_add_f32 v{b+1}, v{b+1}, v{b+3}\nv_add_f32 v{b+4}, v{b+4}, v{b+6}\nv_add_f32 v{b+5}, v{b+5}, v{b+7}")
    e(f"v_add_f32 v{b+8}, v{b+8}, v{b+10}\nv_add_f32 v{b+9}, v{b+9}, v{b+11}")
    e(f"v_add_f32 v{b}, v{b}, v{b+4}\nv_add_f32 v{b+1}, v{b+1}, v{b+5}\nv_add_f32 v{b}, v{b}, v{b+8}\nv_add_f32 v{b+1}, v{b+1}, v{b+9}")
    e(f"v_mov_b32 v{b+2}, v{b}\nv_mov_b32 v{b+3}, v{b+1}\ns_nop 1\nv_permlane32_swap_b32 v{b}, v{b+2}\nv_permlane32_swap_b32 v{b+1}, v{b+3}\ns_nop 1\nv_add_f32 v{b}, v{b}, v{b+2}\nv_add_f32 v{b+1}, v{b+1}, v{b+3}")
    inv = hex(f2u(1.0/576))
    e(f"v_mul_f32 v{b}, {inv}, v{b}\nv_mul_f32 v{b+1}, {inv}, v{b+1}")
    e(f"v_fma_f32 v{b+1}, -v{b}, v{b}, v{b+1}\nv_max_f32 v{b+1}, 0, v{b+1}")
    e(f"v_cvt_pk_bf16_f32 v{b+2}, v{b}, v{b+1}\nv_lshlrev_b32 v{b}, 16, v{b+2}\nv_and_b32 v{b+1}, 0xffff0000, v{b+2}")
    e(f"v_add_f32 v{b+1}, {hex(f2u(1e-5))}, v{b+1}\nv_cvt_pk_bf16_f32 v{b+1}, v{b+1}, v{b+1}\nv_and_b32 v{b+1}, 0xffff0000, v{b+1}")
    e(f"v_sqrt_f32 v{b+1}, v{b+1}\ns_nop 0\nv_cvt_pk_bf16_f32 v{b+1}, v{b+1}, v{b+1}\nv_and_b32 v{b+1}, 0xffff0000, v{b+1}")
    e(f"v_rcp_f32 v{VRS}, v{b+1}\ns_nop 0\nv_mul_f32 v{VNM}, v{b}, v{VRS}\nv_sub_f32 v{VNM}, 0, v{VNM}")

    M = []
    for p in range(4):
        buf = B0 if p % 2 == 0 else B1
        for q in range(4):
            st = 4*p + q
            for s in range(9):
                ks = 9*q + s
                for uu in range(2):
                    for mat in range(2):
                        o = (mat*18 + 2*s)*1024 + uu*512
                        M.append(dict(acc=buf + 32*uu + 16*mat, b=f"a[{4*ks}:{4*ks+3}]", first=(ks == 0), last=(ks == 35),
                                      st=st, rd=(o, o + 1024), xs=ks if p == 0 else None, unit=2*p+uu, mat=mat, ph=1))
    for q in range(2):
        st = 16 + q
        for s in range(18):
            ks = 18*q + s
            for mat in range(2):
                o = (mat*18 + s)*1024
                M.append(dict(acc=B0 + 16*mat, b=f"a[{4*ks}:{4*ks+3}]", first=(ks == 0), last=(ks == 35), st=st, rd=(o, o + 512), xs=None, unit=8, mat=mat, ph=1))
    p2bufs = [B0 + 32, B1, B1 + 32, B0]
    for c in range(9):
        st = 18 + c
        for s in range(18):
            for uu in range(2):
                o = (2*s)*1024 + uu*512
                g = G + 4*s
                M.append(dict(acc=p2bufs[c % 4] + 16*uu, b=f"v[{g}:{g+3}]", first=(s == 0), last=(s == 17), st=st, rd=(o, o + 1024), xs=None, gks=s, c=c, uu=uu, ph=2))
    NM = len(M); assert NM == 972
    LA = 8
    q = Queue(e, window=10)
    xdone = {}
    gdone = {}
    tstate = {"last": [None, None]}
    def add_norm(s):
        r = xraw(s)
        w = q.add(Op(lambda s=s: e.wait_vm(lambda t: t == ("x", s)), cost=1))
        last = None
        for d in range(4):
            t = T + (d % 4)
            prev = tstate.get(("n", t))
            o1 = q.add(Op(f"v_lshlrev_b32 v{t}, 16, v{r+d}", deps=[(w, 0)] + ([(prev, 0)] if prev else [])))
            o2 = q.add(Op(f"v_and_b32 v{r+d}, 0xffff0000, v{r+d}", deps=[(o1, 0)]))
            o3 = q.add(Op(f"v_fma_f32 v{t}, v{t}, v{VRS}, v{VNM}", deps=[(o1, 0)]))
            o4 = q.add(Op(f"v_fma_f32 v{r+d}, v{r+d}, v{VRS}, v{VNM}", deps=[(o2, 0)]))
            o5 = q.add(Op(f"v_cvt_pk_bf16_f32 v{r+d}, v{t}, v{r+d}", deps=[(o3, 0), (o4, 0)]))
            tstate[("n", t)] = o5
            o6 = q.add(Op(f"v_accvgpr_write_b32 a{4*s+d}, v{r+d}", deps=[(o5, 0)]))
            last = (last or []) + [o6]
        xdone[s] = last
    pairctr = [0]
    def add_gelu(unit, gacc, uacc, mg, mu):
        for k in range(8):
            ts = pairctr[0] % 2; pairctr[0] += 1
            ta, tb = T + 2*ts, T + 2*ts + 1
            ga, gb, ua, ub = gacc + 2*k, gacc + 2*k + 1, uacc + 2*k, uacc + 2*k + 1
            prev = tstate["last"][ts]
            d0 = [(mg, 14)] + ([(prev, 0)] if prev else [])
            sa = q.add(Op(f"v_mul_f32 v{ta}, v{ga}, v{ga}", deps=d0))
            sb = q.add(Op(f"v_mul_f32 v{tb}, v{gb}, v{gb}", deps=d0))
            fa = q.add(Op(f"v_fmaak_f32 v{ta}, v{ta}, v{VK2}, {hex(f2u(k1))}", deps=[(sa, 0)]))
            fb = q.add(Op(f"v_fmaak_f32 v{tb}, v{tb}, v{VK2}, {hex(f2u(k1))}", deps=[(sb, 0)]))
            aa = q.add(Op(f"v_mul_f32 v{ta}, v{ga}, v{ta}", deps=[(fa, 0)]))
            ab = q.add(Op(f"v_mul_f32 v{tb}, v{gb}, v{tb}", deps=[(fb, 0)]))
            ea = q.add(Op(f"v_exp_f32 v{ta}, v{ta}", cost=2, deps=[(aa, 0)]))
            pa = q.add(Op(f"v_mul_f32 v{ua}, v{ga}, v{ua}", deps=[(mg, 14), (mu, 14)]))
            eb = q.add(Op(f"v_exp_f32 v{tb}, v{tb}", cost=2, deps=[(ab, 0)]))
            pb = q.add(Op(f"v_mul_f32 v{ub}, v{gb}, v{ub}", deps=[(mg, 14), (mu, 14)]))
            da = q.add(Op(f"v_add_f32 v{ta}, 1.0, v{ta}", deps=[(ea, 1)]))
            db = q.add(Op(f"v_add_f32 v{tb}, 1.0, v{tb}", deps=[(eb, 1)]))
            ra = q.add(Op(f"v_rcp_f32 v{ta}, v{ta}", cost=2, deps=[(da, 0)]))
            rb = q.add(Op(f"v_rcp_f32 v{tb}, v{tb}", cost=2, deps=[(db, 0)]))
            ya = q.add(Op(f"v_mul_f32 v{ta}, v{ua}, v{ta}", deps=[(ra, 1), (pa, 0)]))
            yb = q.add(Op(f"v_mul_f32 v{tb}, v{ub}, v{tb}", deps=[(rb, 1), (pb, 0)]))
            cv = q.add(Op(f"v_cvt_pk_bf16_f32 v{G + 8*unit + k}, v{ta}, v{tb}", deps=[(ya, 0), (yb, 0)]))
            tstate["last"][ts] = cv
            gdone.setdefault(2*unit + k//4, []).append(cv)
            bufuse.setdefault(gacc, []).append(cv); bufuse.setdefault(uacc, []).append(cv)
    bufuse = {}
    stq = []
    def add_out(c, uu, acc, mo):
        prev = None; cvs = []
        for i in range(8):
            o = q.add(Op(f"v_cvt_pk_bf16_f32 v{acc+i}, v{acc+2*i}, v{acc+2*i+1}", deps=[(mo, 14)] + ([(prev, 0)] if prev else [])))
            prev = o; cvs.append(o)
        for h in range(2):
            fr = 4*c + 2*uu + h
            stq.append(dict(fr=fr, r=acc + 4*h, dep=cvs[4*h+3], acc=acc))
    def emit_op(o, _orig=e.op):
        if callable(o.text):
            o.text(); o.pos = e.n - 1; return o
        return _orig(o)
    e.op = emit_op
    def reads(m):
        d = M[m]; fr = FR + 4*(m % 12); vb = TRB + d["st"] % 4
        e.ds(f"ds_read_b64_tr_b16 a[{fr}:{fr+1}], v{vb} offset:{d['rd'][0]}", m)
        e.ds(f"ds_read_b64_tr_b16 a[{fr+2}:{fr+3}], v{vb} offset:{d['rd'][1]}", m)
    def emit_store(sd):
        fr = sd["fr"]
        if fr % 4 == 0:
            e(f"s_add_u32 s52, s{S_PO}, {fr*1024}")
        off = f" offset:{(fr%4)*1024}" if fr % 4 else ""
        o = e.vmem(f"buffer_store_dwordx4 v[{sd['r']}:{sd['r']+3}], v{VL16}, s[{S_PT}:{S_PT+3}], s52 offen{off}{store_flags}", "store", deps=[(sd["dep"], 0)])
        sd["done"] = True
        return 2 if fr % 4 == 0 else 1
    early = []
    for s_ in range(4, 36): early.append((4*(s_-2), xload_instrs(s_)))
    for st in (1, 2, 3):
        L = dma_instrs(st); grp = []; k = 0
        for t, isd in L:
            grp.append((t, ("dma", st) if isd else None))
            if isd:
                early.append((36*st - 8 - 3*(8-k) - 4, grp)); grp = []; k += 1
    early.sort(key=lambda x: x[0])
    def emit_early():
        need, L = early.pop(0); n = 0
        prev_m0 = False
        for t, tag in L:
            if tag:
                if prev_m0: e("s_nop 0"); n += 1
                e.vmem(t, tag)
            else:
                e(t); prev_m0 = "m0" in t
            n += 1
        return n
    issued_x = lambda s_: any(t == ("x", s_) for t in e.vm)
    nnorm = [0]
    def more_norm():
        while nnorm[0] < 36 and issued_x(nnorm[0]):
            add_norm(nnorm[0]); nnorm[0] += 1
    more_norm()
    for k in range(4):
        q.drain_until(xdone[k//2][1 + 2*(k % 2)]); emit_early()
    e.wait_vm(lambda t: t == ("dma", 0))
    e("s_barrier")
    for m in range(LA): reads(m)
    emit_early(); emit_early()
    more_norm()
    dmaq = []; dma_st = None
    lastm = {}
    e.wait_lg(lambda t: t <= 3)
    for m in range(NM):
        d = M[m]
        deps = []
        if d["xs"] is not None:
            while d["xs"] not in xdone:
                emit_early(); more_norm()
            for o in xdone[d["xs"]]:
                if o.pos is None: q.drain_until(o)
                deps.append((o, 2))
        if d["ph"] == 2:
            for o in gdone[d["gks"]]:
                if o.pos is None: q.drain_until(o)
                deps.append((o, 2))
        if d["first"]:
            for o in bufuse.get(d["acc"], []):
                if o.pos is None: q.drain_until(o)
            bufuse[d["acc"]] = []
            for sd in [x for x in stq if x["acc"] == d["acc"]]:
                if sd["dep"].pos is None: q.drain_until(sd["dep"])
                while stq and not sd.get("done"):
                    x = stq.pop(0)
                    if x["dep"].pos is None: q.drain_until(x["dep"])
                    emit_store(x)
                e("s_nop 1")
        fr = FR + 4*(m % 12); a = d["acc"]
        cs = "0" if d["first"] else f"v[{a}:{a+15}]"
        mo = e.op(Op(f"v_mfma_f32_32x32x16_bf16 v[{a}:{a+15}], a[{fr}:{fr+3}], {d['b']}, {cs}", deps=deps))
        used = 0
        if timing and m in STAMPS:
            k = STAMPS.index(m)
            tm.stamp(k)
        if d["last"]:
            if d["ph"] == 1:
                lastm[(d["unit"], d["mat"])] = mo
                if d["mat"] == 1:
                    add_gelu(d["unit"], a - 16, a, lastm[(d["unit"], 0)], mo)
            else:
                add_out(d["c"], d["uu"], a, mo)
        mr = m + LA
        if mr < NM:
            if mr % 36 == 0:
                st = mr // 36
                assert not dmaq
                while st <= 3 and sum(1 for t in e.vm if t == ("dma", st)) < 9: emit_early()
                if e.wait_vm(lambda t: t == ("dma", st)): used += 1
                e("s_barrier"); used += 2
                if 4 <= st + 2 < NST:
                    dmaq = list(dma_instrs(st + 2)); dma_st = st + 2
                reads(mr); used += 2
            else:
                reads(mr); used += 2
                early_dma = any(tag and tag[0] == "dma" for _, L in early for _, tag in L)
                if early and (early[0][0] - lead <= m or (early_dma and dmaq)):
                    used += emit_early(); more_norm()
                elif m in pfq:
                    e(pfq[m][0]); e.vmem(pfq[m][1], "pf"); used += 2
                elif dmaq and not early_dma and (mr % 2 == 1 or len(dmaq) >= (36 - mr % 36)//2):
                    t, isd = dmaq.pop(0)
                    if isd: e.vmem(t, ("dma", dma_st))
                    else: e(t)
                    used += 1
                elif stq and stq[0]["dep"].pos is not None:
                    used += emit_store(stq.pop(0))
        elif stq and stq[0]["dep"].pos is not None:
            used += emit_store(stq.pop(0))
        needwait = (m + 1) % 4 == 0 and m + 1 < NM
        bud = budget - used - (1 if needwait else 0)
        if m < 144 and (nnorm[0] < 36 or (xdone[35][-1].pos is None)):
            tgt = min(35, m//4 + 2)
            bud = 7 if (tgt in xdone and xdone[tgt][-1].pos is None) else 0
        if bud > 0: q.fill(bud)
        if needwait:
            e.wait_lg(lambda t: t <= m + 4)
    q.drain()
    while stq: emit_store(stq.pop(0))
    tm.end("K3_end")
    e("K3_end:\ns_endpgm")
    return e.text()
```

```python
WS_KV   = 0
KV_BYTES = 32*19*20*4
WS_ST   = 0x10000
ST_BYTES = 12*2048*8
WS_PQ   = 0x40000
WS_HT   = 0x300000
ACT_BYTES = 2048*576*2
WS_PART = 0x600000
WS_BYTES = 268435456
WS_S1   = 0xC000
S1_BYTES = 2048*8
WS_CS   = 0x280000
CS_BYTES = 8*1728*4
```

```python
import sys
from asmgen import kernel_header, kernel_desc
from k1 import gen_k1
from k2 import gen_k2
from k3 import gen_k3
from k4 import gen_k4
P = dict(C=2, budget=5, flags="sc1", timing=0, pf=1, extra=0, dbg=0, cpf=1, rot=3, lead=20, dup3=0)
for kv in sys.argv[1:]:
    k, v = kv.split("="); P[k] = v if k == "flags" else int(v)
fl = (" " + P["flags"].replace("+", " ")) if P["flags"] else ""
T = bool(P["timing"])
hdr = open("sequential_preLN__linear_attn_block__geglu_ffn__prompt.s.ref").read().split("; Override")[0]
print(hdr, end="")
print("; @launch kernel=k1_kernel grid=(256,1,1) block=(512,1,1) lds=150528")
print("; @launch kernel=k2_kernel grid=(256,1,1) block=(256,1,1) lds=159744")
print("; @launch kernel=k3_kernel grid=(256,1,1) block=(256,1,1) lds=147456")
if P["dup3"]: print("; @launch kernel=k3_kernel grid=(256,1,1) block=(256,1,1) lds=147456")
print("; @launch kernel=k4_kernel grid=(256,1,1) block=(576,1,1) lds=0")
for i in range(P["extra"]):
    print("; @launch kernel=nop_kernel grid=(256,1,1) block=(256,1,1) lds=0")
print('.amdgcn_target "amdgcn-amd-amdhsa--gfx950"\n.text')
print(kernel_header("k1_kernel") + gen_k1(timing=T, prefetch=P["pf"], dbg=P["dbg"], cpf=P["cpf"], rot=P["rot"]) + kernel_desc("k1_kernel", 256, 100, 256))
print(kernel_header("k2_kernel") + gen_k2(timing=T, prefetch=P["pf"]) + kernel_desc("k2_kernel", 256+184, 100, 256))
print(kernel_header("k3_kernel") + gen_k3(C=P["C"], budget=P["budget"], timing=T, store_flags=fl, lead=P["lead"]) + kernel_desc("k3_kernel", 256+192, 100, 256))
print(kernel_header("k4_kernel") + gen_k4(timing=T) + kernel_desc("k4_kernel", 84, 100, 84))
if P["extra"]:
    print(kernel_header("nop_kernel") + "  s_endpgm\n" + kernel_desc("nop_kernel", 8, 16, 8))
```

```python
from sched import *
from layout import *
from tim import Tim
from k3 import srd, f2u
L2E = 1.4426950408889634; LN2 = 0.6931471805599453
BIG = 0x40000000
LBIG = 0x30000
SLOT = 36864
XCH = 147456
CSA = XCH + 2048

def mask64(fn):
    m = 0
    for l in range(64):
        if fn(l): m |= 1 << l
    return m
def smask(e, s, m):
    e(f"s_mov_b32 s{s}, {hex(m & 0xffffffff)}\ns_mov_b32 s{s+1}, {hex(m >> 32)}")

def ln_stats2(e, items):
    inv = hex(f2u(1.0/576))
    seq = ["v_mul_f32 v{vs}, " + inv + ", v{vs}", "v_mul_f32 v{vq}, " + inv + ", v{vq}",
           "v_fma_f32 v{vq}, -v{vs}, v{vs}, v{vq}", "v_max_f32 v{vq}, 0, v{vq}",
           "v_cvt_pk_bf16_f32 v{t}, v{vs}, v{vq}", "v_lshlrev_b32 v{vs}, 16, v{t}", "v_and_b32 v{vq}, 0xffff0000, v{t}",
           "v_add_f32 v{vq}, " + hex(f2u(1e-5)) + ", v{vq}", "v_cvt_pk_bf16_f32 v{vq}, v{vq}, v{vq}", "v_and_b32 v{vq}, 0xffff0000, v{vq}",
           "v_sqrt_f32 v{vq}, v{vq}", "NOP", "v_cvt_pk_bf16_f32 v{vq}, v{vq}, v{vq}", "v_and_b32 v{vq}, 0xffff0000, v{vq}",
           "v_rcp_f32 v{rs}, v{vq}", "NOP", "v_mul_f32_e64 v{nm}, -v{vs}, v{rs}"]
    for s in seq:
        if s == "NOP":
            if len(items) == 1: e("s_nop 0")
            continue
        for (vs, vq, t, rs, nm) in items:
            e(s.format(vs=vs, vq=vq, t=t, rs=rs, nm=nm))

def code_prefetch(e, lab, start, endlab, lanereg, dst, soff=None):
    e(f"s_getpc_b64 s[4:5]\n{lab}:\ns_add_u32 s4, s4, {start}-{lab}\ns_addc_u32 s5, s5, 0")
    e(f"v_lshlrev_b32 v{dst}, 7, v{lanereg}")
    if soff is not None: e(f"v_add_u32 v{dst}, s{soff}, v{dst}")
    e(f"v_min_u32 v{dst}, {endlab}-{start}, v{dst}\nv_mov_b32 v{dst+1}, 0")
    e(f"v_lshl_add_u64 v[{dst}:{dst+1}], v[{dst}:{dst+1}], 0, s[4:5]\nglobal_load_dword v{dst+2}, v[{dst}:{dst+1}], off")

def slice_of_xcd(e, d, src, C):
    e(f"s_and_b32 s{d}, s{src}, 7")
    if C == 4: e(f"s_lshr_b32 s6, s{d}, 2\ns_and_b32 s{d}, s{d}, 3\ns_lshl_b32 s{d}, s{d}, 1\ns_add_u32 s{d}, s{d}, s6")
    if C == 8: e(f"s_lshr_b32 s6, s{d}, 1\ns_and_b32 s{d}, s{d}, 1\ns_lshl_b32 s{d}, s{d}, 2\ns_add_u32 s{d}, s{d}, s6")

def gen_k1(timing=False, prefetch=True, dbg=0, cpf=True, rot=0, C=2, sf=' sc1', cend='K2_end'):
    e = Em()
    tm = Tim(e, 1, timing)
    AB = 12; AC = 16; T = 20; ONES = 24; XF = 28; WF = 44; ACC = 116; TT = 188
    WA = 216; GA = 230; ZB = 236
    VX = 4; VW = 8
    S_X = 8; S_W = 12; S_O = 16; S_DBG = 20; S_A = 24
    S_I = 28; S_G = 29; S_KV = 30; S_WV = 31; S_XO = 32; S_WO = 33; S_CNT = 35; S_SL = 36; S_DS = 37; S_WB = 38
    e("s_cmp_ge_u32 s2, 256\ns_cbranch_scc1 K1_end")
    e("s_load_dwordx4 s[40:43], s[0:1], 0\ns_load_dwordx4 s[44:47], s[0:1], 64")
    e(f"v_lshrrev_b32 v1, 6, v0\nv_and_b32 v2, 63, v0\ns_nop 0\nv_readfirstlane_b32 s{S_WV}, v1")
    if cpf:
        e(f"s_cmp_ge_u32 s{S_WV}, 2\ns_cbranch_scc1 K1_nocpf")
        code_prefetch(e, "K1_pc", "K1_nocpf", "K1_end", 0, 4)
        e("K1_nocpf:")
    tm.start()
    e(f"s_cmp_lt_u32 s2, 64\ns_cbranch_scc1 K1_spare")
    e(f"""s_and_b32 s3, s2, 7
s_lshr_b32 s4, s2, 3
s_sub_u32 s4, s4, 8
s_lshr_b32 s5, s3, 1
s_lshl_b32 s5, s5, 2
s_and_b32 s6, s4, 3
s_add_u32 s{S_I}, s5, s6
s_lshr_b32 s4, s4, 2
s_and_b32 s3, s3, 1
s_lshl_b32 s5, s3, 2
s_add_u32 s5, s5, s4
s_lshl_b32 s6, s3, 1
s_add_u32 s6, s6, s4
s_sub_u32 s6, s6, 4
s_cmp_lt_u32 s4, 4
s_cselect_b32 s{S_G}, s5, s6
s_cselect_b32 s{S_KV}, 1, 0
s_cmp_lt_u32 s{S_WV}, 4
s_cbranch_scc1 K1_comp""")
    tl = Tim(e, 0, timing)
    e(f"s_sub_u32 s{S_WV}, s{S_WV}, 4")
    e(f"v_lshrrev_b32 v3, 3, v2\nv_and_b32 v{T}, 7, v2\nv_lshrrev_b32 v{T+1}, 1, v3\nv_xor_b32 v{T}, v{T}, v{T+1}")
    e(f"v_mul_u32_u24 v3, 1152, v3\nv_lshl_add_u32 v{VX}, v{T}, 4, v3\nv_xor_b32 v{T}, 4, v{T}\nv_lshl_add_u32 v{VX+1}, v{T}, 4, v3")
    e(f"v_add_u32 v{VX+1}, {8*1152-1024}, v{VX+1}\nv_add_u32 v{VX+2}, {16*1152-2048}, v{VX}\nv_add_u32 v{VX+3}, {16*1152-2048}, v{VX+1}")
    e(f"""s_lshl_b32 s5, s{S_I}, 2
s_add_u32 s5, s5, s{S_WV}
s_mul_i32 s{S_XO}, s5, {32*1152}
s_mul_i32 s{S_WB}, s{S_WV}, 9216
s_mov_b32 s{S_DS}, s{S_WB}
s_mul_i32 s5, s{S_G}, 144
s_add_u32 s6, s5, 1152
s_lshl_b32 s5, s5, 1
s_cmp_eq_u32 s{S_KV}, 1
s_cselect_b32 s6, s6, s5
s_movk_i32 s7, 144
s_cselect_b32 s7, 1152, s7
s_mul_i32 s{S_WO}, s{S_WV}, {16*3456}
s_add_u32 s{S_WO}, s{S_WO}, s6
s_movk_i32 s50, 3456""")
    if rot:
        if rot == 3:
            e(f"s_and_b32 s5, s{S_I}, 3\ns_add_u32 s34, s5, s4\ns_mul_i32 s5, s34, 11\ns_lshr_b32 s5, s5, 5\ns_mul_i32 s5, s5, 3\ns_sub_u32 s34, s34, s5\ns_mul_i32 s34, s34, 3")
        elif rot == 2:
            e(f"s_add_u32 s34, s{S_I}, s4\ns_and_b32 s34, s34, 1\ns_lshl_b32 s34, s34, 2")
        elif rot == 4:
            e(f"s_add_u32 s34, s{S_I}, s4\ns_and_b32 s34, s34, 3\ns_lshl_b32 s34, s34, 1")
        e(f"s_mov_b32 s39, s{S_XO}\ns_mov_b32 s52, s{S_WO}\ns_lshl_b32 s5, s34, 7\ns_add_u32 s{S_XO}, s{S_XO}, s5\ns_mul_i32 s5, s34, {64*3456}\ns_add_u32 s{S_WO}, s{S_WO}, s5\ns_sub_u32 s34, 8, s34")
    for i in range(5):
        r = VW + i
        e(f"v_add_u32 v3, {64*i}, v2\nv_mul_u32_u24 v{T}, 7282, v3\nv_lshrrev_b32 v{T}, 16, v{T}\nv_mul_u32_u24 v{T+1}, 9, v{T}\nv_sub_u32 v3, v3, v{T+1}")
        e(f"v_and_b32 v{T+1}, 1, v{T}\nv_mul_u32_u24 v{T+1}, s7, v{T+1}\nv_lshl_add_u32 v3, v3, 4, v{T+1}")
        e(f"v_lshrrev_b32 v{T}, 1, v{T}")
        if i >= 2:
            e(f"v_lshrrev_b32 v{T+1}, 1, v{T}\nv_and_b32 v{T+1}, 4, v{T+1}\nv_xor_b32 v{T}, v{T}, v{T+1}")
        e(f"v_mad_u32_u24 v{r}, v{T}, s50, v3")
        comp = (i % 4) * 1024
        if comp: e(f"v_subrev_u32 v{r}, {comp}, v{r}")
    e(f"v_cmp_gt_u32 s[48:49], 32, v2\nv_mov_b32 v3, {BIG}\ns_mov_b32 s{S_CNT}, -1\nv_cndmask_b32 v{VW+4}, v3, v{VW+4}, s[48:49]")
    tl.stamp(0)
    e("s_waitcnt lgkmcnt(0)")
    srd(e, S_X, 40, ACT_BYTES)
    srd(e, S_W, 42, 576*1728*2)
    srd(e, S_DBG, 44, 256)
    tl.stamp(1)
    e("K1_ld:")
    e(f"s_mov_b32 m0, s{S_DS}\ns_add_u32 s{S_CNT}, s{S_CNT}, 1")
    for b in range(4):
        e(f"buffer_load_dwordx4 v{VX+b}, s[{S_X}:{S_X+3}], s{S_XO} offen" + (f" offset:{b*1024}" if b else "") + " lds")
    e(f"s_add_u32 m0, s{S_DS}, 4096\ns_add_u32 s{S_XO}, s{S_XO}, 128")
    for i in range(4):
        e(f"buffer_load_dwordx4 v{VW+i}, s[{S_W}:{S_W+3}], s{S_WO} offen" + (f" offset:{i*1024}" if i else "") + " lds")
    e(f"s_add_u32 m0, s{S_DS}, 8192\ns_add_u32 s{S_DS}, s{S_DS}, {SLOT}")
    e(f"buffer_load_dwordx4 v{VW+4}, s[{S_W}:{S_W+3}], s{S_WO} offen lds")
    e(f"s_add_u32 s{S_WO}, s{S_WO}, {64*3456}")
    if rot:
        e(f"s_cmp_eq_u32 s{S_CNT}, s34\ns_cselect_b32 s{S_XO}, s39, s{S_XO}\ns_cselect_b32 s{S_WO}, s52, s{S_WO}")
    e(f"""s_cmp_ge_u32 s{S_DS}, {4*SLOT}
s_cselect_b32 s{S_DS}, s{S_WB}, s{S_DS}
s_cmp_eq_u32 s{S_CNT}, 0
s_cbranch_scc1 K1_ld
s_waitcnt vmcnt(9) lgkmcnt(0)
s_barrier
s_cmp_lt_u32 s{S_CNT}, 5
s_cbranch_scc1 K1_ld
s_cmp_eq_u32 s{S_CNT}, 6
s_cbranch_scc1 K1_sd5
s_cmp_eq_u32 s{S_CNT}, 7
s_cbranch_scc1 K1_sd6
s_cmp_eq_u32 s{S_CNT}, 8
s_cbranch_scc1 K1_ldend""")
    e(f"v_mov_b32 v{T}, 0\nbuffer_load_dword v{T+1}, v{T}, s[{S_DBG}:{S_DBG+3}], 0 offen sc0 sc1")
    e(f"s_branch K1_ld")
    e(f"""K1_sd5:
v_readfirstlane_b32 s5, v{T+1}
s_nop 3
s_cmp_eq_u32 s5, 64
s_cbranch_scc1 K1_polled
buffer_load_dword v{T+1}, v{T}, s[{S_DBG}:{S_DBG+3}], 0 offen sc0 sc1
s_waitcnt vmcnt(0)
s_branch K1_sd5
K1_polled:
s_cmp_eq_u32 s{S_WV}, 3
s_cbranch_scc1 K1_sd5s""")
    srd(e, S_A, 46, CS_BYTES, WS_CS)
    e(f"""s_mul_i32 s5, s{S_WV}, 48
v_add_u32 v3, s5, v2
v_cmp_lt_u32 vcc, 71, v3
s_sub_u32 s5, s7, 144
s_lshl_b32 s5, s5, 1
v_mov_b32 v{T}, s5
v_cndmask_b32 v{T}, 0, v{T}, vcc
v_lshlrev_b32 v3, 2, v3
v_cmp_gt_u32 vcc, 48, v2
v_add_u32 v{T}, v{T}, v3
v_add_u32 v3, {CSA}, v3
v_mov_b32 v{T+1}, {BIG}
v_cndmask_b32 v{T}, v{T+1}, v{T}, vcc
v_mov_b32 v{T+1}, {LBIG}
s_lshl_b32 s5, s6, 1
v_cndmask_b32 v{T+2}, v{T+1}, v3, vcc""")
    for p in range(8):
        e(f"buffer_load_dword v{24+p}, v{T}, s[{S_A}:{S_A+3}], s5 offen sc0 sc1")
        if p < 7: e(f"s_add_u32 s5, s5, {1728*4}")
    e("s_branch K1_ld\nK1_sd5s:")
    srd(e, S_A, 46, S1_BYTES, WS_S1)
    e(f"s_lshl_b32 s5, s{S_I}, 10\nv_lshlrev_b32 v{T}, 4, v2\nv_lshlrev_b32 v{T+2}, 3, v2\nv_add_u32 v{T+2}, {XCH}, v{T+2}")
    e(f"buffer_load_dwordx4 v[24:27], v{T}, s[{S_A}:{S_A+3}], s5 offen sc0 sc1\ns_branch K1_ld")
    e(f"K1_sd6:\ns_cmp_eq_u32 s{S_WV}, 3\ns_cbranch_scc1 K1_sd6s")
    e("v_add_f32 v24, v24, v25\nv_add_f32 v26, v26, v27\nv_add_f32 v28, v28, v29\nv_add_f32 v30, v30, v31\nv_add_f32 v24, v24, v26\nv_add_f32 v28, v28, v30\nv_add_f32 v24, v24, v28")
    e(f"ds_write_b32 v{T+2}, v24\ns_branch K1_ld\nK1_sd6s:")
    for k in range(4): e(f"v_mul_f32 v{28+k}, {hex(f2u(L2E))}, v{24+k}")
    e(f"v_add_u32 v{T+1}, 1024, v{T+2}")
    e(f"ds_write2_b32 v{T+2}, v24, v26 offset0:0 offset1:1\nds_write2_b32 v{T+2}, v25, v27 offset0:128 offset1:129")
    e(f"ds_write2_b32 v{T+1}, v28, v30 offset0:0 offset1:1\nds_write2_b32 v{T+1}, v29, v31 offset0:128 offset1:129\ns_branch K1_ld")
    e("K1_ldend:\ns_waitcnt vmcnt(0)")
    tl.stamp(2)
    e("s_barrier")
    tl.end("K1_end", "v_cmp_eq_u32 vcc, 256, v0")
    e("s_endpgm")
    e("K1_comp:")
    e(f"s_mul_i32 s{S_WB}, s{S_WV}, 9216")
    e(f"v_and_b32 v{T}, 15, v2\nv_lshrrev_b32 v{T+1}, 4, v2")
    e(f"v_lshrrev_b32 v3, 1, v{T}\nv_xor_b32 v3, v3, v{T+1}\nv_lshlrev_b32 v3, 4, v3\nv_lshl_add_u32 v3, v{T}, 7, v3\nv_add_u32 v{AB}, s{S_WB}, v3\nv_xor_b32 v3, 64, v3\nv_add_u32 v{AB+1}, s{S_WB}, v3")
    e(f"v_and_b32 v3, 1, v{T+1}\nv_mul_u32_u24 v3, 12, v3\nv_bfe_u32 v{T+2}, v2, 2, 2\nv_add_u32 v3, v3, v{T+2}")
    e(f"v_xor_b32 v{T+2}, 4, v3\nv_mul_u32_u24 v3, 288, v3\nv_mul_u32_u24 v{T+2}, 288, v{T+2}")
    e(f"v_lshrrev_b32 v{AC}, 5, v2\nv_mul_u32_u24 v{AC}, 9216, v{AC}\nv_and_b32 v{AC+1}, 3, v2\nv_lshl_add_u32 v{AC}, v{AC+1}, 3, v{AC}\nv_add_u32 v{AC}, 4096, v{AC}")
    e(f"v_add_u32 v{AB+2}, v{AC}, v3\nv_add_u32 v{AB+3}, v{AC}, v{T+2}")
    for i in range(4): e(f"v_mov_b32 v{XF+i}, 0")
    c0 = hex(f2u(1e-6 * L2E))
    e(f"s_mov_b32 s56, {hex(f2u(LN2))}\ns_mov_b32 s57, {hex(f2u(LN2))}\ns_mov_b32 s58, {c0}\ns_mov_b32 s59, {c0}")
    for r in range(ACC, ACC + 80, 16):
        e(f"v_mfma_f32_32x32x16_bf16 v[{r}:{r+15}], v[{XF}:{XF+3}], v[{XF}:{XF+3}], 0")
    e(f"s_mov_b32 s{S_CNT}, 0\ns_mov_b32 s{S_SL}, {SLOT}\ns_lshl_b32 s6, s{S_WV}, 7\ns_add_u32 s6, s6, {XCH}")
    e("s_waitcnt lgkmcnt(0)")
    e(f"s_cmp_eq_u32 s{S_KV}, 0\ns_cbranch_scc1 K1_q")
    srd(e, S_O, 46, KV_BYTES, WS_KV)
    e(f"v_lshlrev_b32 v8, 4, v{T+1}\nv_add_u32 v8, s6, v8\nv_lshlrev_b32 v9, 2, v{T}\nv_add_u32 v9, {CSA}, v9\nv_mov_b32 v{ONES}, 0x3f803f80")
    pairs = []
    for hl in range(4):
        for a in (hl, hl + 1):
            for b in (hl + 4, hl + 5):
                if (a, b) not in pairs: pairs.append((a, b))
    e(f"s_mul_i32 s5, s{S_WV}, 6144\nv_mul_u32_u24 v3, 80, v{T}\nv_lshl_add_u32 v3, v{T+1}, 4, v3\nv_add_u32 v3, s5, v3\nv_mov_b32 v{T+3}, {LBIG}")
    for k, (a, b) in enumerate(pairs):
        first = True
        for hl in range(4):
            def valid(l):
                n, g = l & 15, l >> 4
                ec = 16*(b-4) - 8 + n
                if ec < 0 or ec // 18 != hl: return False
                return 0 <= 4*a + g - (9*hl)//2 < 5
            m = mask64(valid)
            if not m: continue
            const = hl*1520 + (16*(b-4) - 8 - 18*hl)*80 + (4*a - (9*hl)//2)*16
            smask(e, 48, m)
            e(f"v_add_u32 v{T+2}, {const & 0xffffffff}, v3\nv_cndmask_b32 v{WA+k}, v{T+3 if first else WA+k}, v{T+2}, s[48:49]")
            first = False
    e(f"v_add_u32 v3, 1, v{T}\nv_lshrrev_b32 v3, 1, v3\nv_lshrrev_b32 v{T+2}, 1, v{T}\nv_lshl_add_u32 v{AC}, v3, 2, v{T+1}\nv_mul_u32_u24 v{AC+1}, 9, v{T+2}\nv_lshrrev_b32 v{AC+1}, 1, v{AC+1}\nv_sub_u32 v{AC}, v{AC}, v{AC+1}")
    smask(e, 48, mask64(lambda l: (l & 15) < 8 and 0 <= 4*(((l & 15) + 1) >> 1) + (l >> 4) - (9*((l & 15) >> 1))//2 < 5))
    e(f"v_mul_u32_u24 v{T+2}, 1520, v{T+2}\nv_lshl_add_u32 v{AC}, v{AC}, 4, v{T+2}\ns_add_u32 s5, s5, {18*80}\nv_add_u32 v{AC}, s5, v{AC}\nv_cndmask_b32 v{WA+13}, v{T+3}, v{AC}, s[48:49]")
    for a in range(5):
        smask(e, 48, mask64(lambda l: (l & 15) < 8 and ((l & 15) + 1) >> 1 == a))
        e(f"v_cndmask_b32 v{ZB+4*a}, 0, v{ONES}, s[48:49]\nv_cndmask_b32 v{ZB+4*a+1}, 0, v{ONES}, s[48:49]")
        e(f"v_pk_mov_b32 v[{ZB+4*a+2}:{ZB+4*a+3}], v[{ZB+4*a}:{ZB+4*a+1}], v[{ZB+4*a}:{ZB+4*a+1}]")
    e(f"s_mul_i32 s5, s{S_G}, 6080\nv_mov_b32 v{T+3}, {BIG}")
    for i in range(6):
        r = GA + i
        e(f"v_add_u32 v3, {256*i}, v0\nv_mul_u32_u24 v{T+2}, 3277, v3\nv_lshrrev_b32 v{T+2}, 16, v{T+2}")
        e(f"v_mul_u32_u24 v{AC}, 20, v{T+2}\nv_sub_u32 v{AC}, v3, v{AC}")
        e(f"v_mul_u32_u24 v{T+2}, 27, v{T+2}\nv_lshrrev_b32 v{T+2}, 8, v{T+2}\nv_and_b32 v{T+2}, 2, v{T+2}\nv_sub_u32 v{AC}, v{AC}, v{T+2}")
        e(f"v_cmp_gt_u32 s[48:49], 18, v{AC}\nv_lshlrev_b32 v3, 2, v3\nv_add_u32 v3, s5, v3\nv_cndmask_b32 v{r}, v{T+3}, v3, s[48:49]")
    e(f"v_cmp_gt_u32 vcc, 240, v0\ns_nop 1\nv_cndmask_b32 v{GA+5}, v{T+3}, v{GA+5}, vcc")

    def rdlist(kk):
        rd = []
        for tt in range(2):
            r = XF + 8*kk + 4*tt
            rd.append(f"ds_read_b128 v[{r}:{r+3}], v{AC+kk} offset:{2048*tt}")
        for ct in range(9):
            r = WF + 36*kk + 4*ct
            rd.append(f"ds_read_b64_tr_b16 v[{r}:{r+1}], v{AC+2} offset:{kk*18432 + ct*32}")
            rd.append(f"ds_read_b64_tr_b16 v[{r+2}:{r+3}], v{AC+3} offset:{kk*18432 + ct*32}")
        return rd
    def mainloop(kind):
        lab = f"K1_{kind}"
        tm.stamp(0)
        for i in range(4): e(f"v_mov_b32 v{AC+i}, v{AB+i}")
        e("s_barrier")
        tm.stamp(1)
        for t in rdlist(0): e(t)
        e(f"{lab}_l:")
        for kk in range(2):
            rd = rdlist(1 - kk)
            extra = []
            if kk == 1:
                extra = [f"s_add_u32 s{S_SL}, s{S_SL}, {SLOT}", f"s_cmp_ge_u32 s{S_SL}, {4*SLOT}\ns_cselect_b32 s{S_SL}, 0, s{S_SL}",
                         f"s_add_u32 s{S_CNT}, s{S_CNT}, 1", f"s_cmp_lt_u32 s{S_CNT}, 9"]
            cnt = 0
            for ct in range(9):
                wf = WF + 36*kk + 4*ct
                for tt in range(2):
                    if cnt == 0: e("s_waitcnt lgkmcnt(6)" if kk == 0 else "s_waitcnt lgkmcnt(0)")
                    if cnt == 6 and kk == 0: e("s_waitcnt lgkmcnt(9)")
                    d = ACC + 36*tt + 4*ct; x = XF + 8*kk + 4*tt
                    a, b = (wf, x) if kind == "q" else (x, wf)
                    e(f"v_mfma_f32_16x16x32_bf16 v[{d}:{d+3}], v[{a}:{a+3}], v[{b}:{b+3}], v[{d}:{d+3}]")
                    cnt += 1
                    if kk == 1 and cnt == 1:
                        for i in range(4): e(f"v_add_u32 v{AC+i}, s{S_SL}, v{AB+i}")
                        e("s_barrier")
                    if rd: e(rd.pop(0))
                    if cnt % 2 == 1 and rd: e(rd.pop(0))
                    if not rd and extra and cnt > 13: e(extra.pop(0))
            assert not rd and not extra
        e(f"s_cbranch_scc1 {lab}_l")
        tm.stamp(2)
        e("s_waitcnt lgkmcnt(0)")

    def pr(r): return f"v[{r}:{r+1}]"
    def bc(r, pos, n=3):
        base = r & ~1; hi = r & 1
        sel = [0]*n; selh = [1]*n
        sel[pos] = hi; selh[pos] = hi
        return pr(base), f" op_sel:{sel} op_sel_hi:{selh}".replace(", ", ",")
    def phi4(a, t):
        for r in range(4): e(f"v_exp_f32_e64 v{t+r}, v{a+r} clamp")
        for r in range(4): e(f"v_max_f32 v{a+r}, s58, v{a+r}")
        for r in (0, 2): e(f"v_pk_fma_f32 {pr(a+r)}, {pr(a+r)}, s[56:57], {pr(t+r)}")
    mainloop("kv")
    CSV = WF; RSV = WF + 12; PK = WF + 48; PV = ONES
    for k in range(2):
        for tt in range(2):
            e(f"ds_read_b128 v[{RSV+16*tt+4*k}:{RSV+16*tt+4*k+3}], v8 offset:{64*tt + 512*k}")
    for ct in (4, 5, 6, 7, 8, 0, 1, 2, 3): e(f"ds_read_b32 v{CSV+ct}, v9 offset:{64*ct}")
    e("s_waitcnt lgkmcnt(4)")
    for k in range(2, 4):
        for tt in range(2):
            e(f"ds_read_b128 v[{RSV+16*tt+4*k}:{RSV+16*tt+4*k+3}], v8 offset:{64*tt + 512*k}")
    def ktile(ct):
        for tt in range(2):
            a = ACC + 36*tt + 4*ct; R = RSV + 16*tt; t = TT + 4*tt
            o, sel = bc(CSV + ct, 1)
            for r in (0, 2): e(f"v_pk_fma_f32 {pr(t+r)}, {pr(R+12+r)}, {o}, s[58:59]{sel}")
            for r in (0, 2): e(f"v_pk_fma_f32 {pr(a+r)}, {pr(a+r)}, {pr(R+8+r)}, {pr(t+r)}")
            phi4(a, t)
            d = PK + 4*ct + 2*tt
            e(f"v_cvt_pk_bf16_f32 v{d}, v{a}, v{a+1}\nv_cvt_pk_bf16_f32 v{d+1}, v{a+2}, v{a+3}")
    def vtile(ct):
        for tt in range(2):
            a = ACC + 36*tt + 4*ct; R = RSV + 16*tt; t = TT + 8 + 4*tt
            o, sel = bc(CSV + ct, 1, 2)
            for r in (0, 2): e(f"v_pk_mul_f32 {pr(t+r)}, {pr(R+4+r)}, {o}{sel}")
            for r in (0, 2): e(f"v_pk_fma_f32 {pr(t+r)}, {pr(a+r)}, {pr(R+r)}, {pr(t+r)}")
            d = PV + 4*(ct-4) + 2*tt
            e(f"v_cvt_pk_bf16_f32 v{d}, v{t}, v{t+1}\nv_cvt_pk_bf16_f32 v{d+1}, v{t+2}, v{t+3}")
    for ct in range(4, 9): vtile(ct)
    e("s_waitcnt lgkmcnt(0)")
    tm.stamp(3)
    free = [ACC + 36*tt + 4*ct for ct in range(5, 9) for tt in range(2)]
    zreg = free.pop(0)
    kvreg = {}
    pend = []
    def flush():
        for k in pend: e(f"ds_write_b128 v{WA+k}, v[{kvreg[k]}:{kvreg[k]+3}]")
        pend.clear()
    for a in range(5):
        ktile(a)
        if pend: flush()
        else: e("s_nop 1")
        free += [ACC + 4*a, ACC + 36 + 4*a]
        for k, (pa, pb) in enumerate(pairs):
            if pa == a:
                d = free.pop(0); kvreg[k] = d; pend.append(k)
                e(f"v_mfma_f32_16x16x32_bf16 v[{d}:{d+3}], v[{PK+4*a}:{PK+4*a+3}], v[{PV+4*(pb-4)}:{PV+4*(pb-4)+3}], 0")
        e(f"v_mfma_f32_16x16x32_bf16 v[{zreg}:{zreg+3}], v[{PK+4*a}:{PK+4*a+3}], v[{ZB+4*a}:{ZB+4*a+3}], " + ("0" if a == 0 else f"v[{zreg}:{zreg+3}]"))
    kvreg[13] = zreg; pend.append(13)
    e(f"v_lshlrev_b32 v3, 2, v0\ns_nop 5")
    flush()
    tm.stamp(4)
    e(f"s_waitcnt lgkmcnt(0)\ns_barrier")
    RB = WF
    e.lg = []; e.lg_done = 0
    for i in range(6):
        for w in range(0, 4, 2):
            e.ds(f"ds_read2st64_b32 v[{RB+4*i+w}:{RB+4*i+w+1}], v3 offset0:{(w*6144 + i*1024)//256} offset1:{((w+1)*6144 + i*1024)//256}", i)
    for i in range(6):
        e.wait_lg(lambda t: t == i)
        r = RB + 4*i
        e(f"v_pk_add_f32 {pr(r)}, {pr(r)}, {pr(r+2)}\nv_add_f32 v{r}, v{r}, v{r+1}")
        e(f"buffer_atomic_add_f32 v{r}, v{GA+i}, s[{S_O}:{S_O+3}], 0 offen sc1")
    tm.stamp(5)
    e("s_branch K1_done")
    e("K1_q:")
    srd(e, S_O, 46, ACT_BYTES, WS_PQ)
    e(f"v_lshlrev_b32 v8, 2, v{T}\nv_add_u32 v8, s6, v8\nv_lshlrev_b32 v9, 4, v{T+1}\nv_add_u32 v9, {CSA}, v9")
    e(f"s_lshl_b32 s5, s{S_I}, 2\ns_add_u32 s5, s5, s{S_WV}\ns_lshl_b32 s5, s5, 2\ns_add_u32 s5, s5, s{S_G}\ns_mul_i32 s20, s5, 9216\nv_lshlrev_b32 v11, 4, v2")
    e(f"s_add_u32 s21, s20, 4096\ns_add_u32 s22, s20, 8192")
    mainloop("q")
    CSV = WF; RSV = WF + 36; P = WA
    for tt in range(2):
        for k in range(2): e(f"ds_read_b32 v{RSV+2*tt+k}, v8 offset:{1024 + 64*tt + 512*k}")
    for ct in range(9): e(f"ds_read_b128 v[{CSV+4*ct}:{CSV+4*ct+3}], v9 offset:{64*ct}")
    stored = 0
    for tt in range(2):
        for ct in range(9):
            if tt == 0 and ct in (0, 2): e(f"s_waitcnt lgkmcnt({7 if ct == 0 else 0})")
            a = ACC + 36*tt + 4*ct; t = TT + 4*(ct % 2)
            o, sel = bc(RSV + 2*tt + 1, 0)
            for r in (0, 2): e(f"v_pk_fma_f32 {pr(t+r)}, {o}, {pr(CSV+4*ct+r)}, s[58:59]{sel}")
            o, sel = bc(RSV + 2*tt, 1)
            for r in (0, 2): e(f"v_pk_fma_f32 {pr(a+r)}, {pr(a+r)}, {o}, {pr(t+r)}{sel}")
            phi4(a, t)
            d = P + 18*tt + 2*ct
            e(f"v_cvt_pk_bf16_f32 v{d}, v{a}, v{a+1}\nv_cvt_pk_bf16_f32 v{d+1}, v{a+2}, v{a+3}")
            while 4*stored + 3 <= 18*tt + 2*ct + 1:
                q = stored
                e(f"buffer_store_dwordx4 v[{P+4*q}:{P+4*q+3}], v11, s[{S_O}:{S_O+3}], s{20+q//4} offen" + (f" offset:{(q%4)*1024}" if q % 4 else "") + sf)
                stored += 1
    tm.stamp(5)
    e("s_branch K1_done")
    e("K1_spare:")
    e(f"v_lshrrev_b32 v3, 3, v2\nv_and_b32 v{T}, 7, v2\nv_lshlrev_b32 v{T}, 4, v{T}\nv_mov_b32 v8, {BIG}")
    e(f"s_cmp_ge_u32 s{S_WV}, 4\ns_cbranch_scc1 K1_sp_cs")
    e(f"v_mul_u32_u24 v9, 1152, v3\nv_add_u32 v9, v9, v{T}\ns_lshl_b32 s6, s2, 2\ns_add_u32 s6, s6, s{S_WV}\ns_mul_i32 s5, s6, {8*1152}\ns_waitcnt lgkmcnt(0)")
    srd(e, S_X, 40, ACT_BYTES)
    e.vm = []; e.vm_done = 0
    for i in range(9):
        e.vmem(f"buffer_load_dwordx4 v[{32+4*i}:{35+4*i}], v9, s[{S_X}:{S_X+3}], s5 offen" + (f" offset:{128*i}" if i else ""), i)
    srd(e, S_A, 46, S1_BYTES, WS_S1)
    e(f"v_mov_b32 v10, 0x3f803f80\nv_mov_b32 v12, 0\nv_mov_b32 v13, 0\nv_cmp_eq_u32 vcc, 0, v{T}\nv_lshlrev_b32 v3, 3, v3\ns_lshl_b32 s6, s6, 6\nv_cndmask_b32 v3, v8, v3, vcc")
    for i in range(9):
        e.wait_vm(lambda t: t == i)
        for k in range(4): e(f"v_dot2c_f32_bf16 v12, v{32+4*i+k}, v10\nv_dot2c_f32_bf16 v13, v{32+4*i+k}, v{32+4*i+k}")
    e("s_nop 2")
    for dpp in ("quad_perm:[1,0,3,2]", "quad_perm:[2,3,0,1]", "row_half_mirror"):
        e(f"v_add_f32_dpp v12, v12, v12 {dpp} row_mask:0xf bank_mask:0xf\nv_add_f32_dpp v13, v13, v13 {dpp} row_mask:0xf bank_mask:0xf\ns_nop 0")
    e(f"v_mul_f32 v15, {hex(f2u(1.0/576))}, v12")
    ln_stats2(e, [(12, 13, 14, 16, 17)])
    e(f"buffer_store_dwordx2 v[16:17], v3, s[{S_A}:{S_A+3}], s6 offen sc0 sc1")
    srd(e, S_O, 46, MX_BYTES, WS_MX)
    e(f"v_lshrrev_b32 v3, 1, v3\ns_lshr_b32 s6, s6, 1\nbuffer_store_dword v15, v3, s[{S_O}:{S_O+3}], s6 offen")
    srd(e, S_O, 46, KV_BYTES, WS_KV)
    e(f"v_cmp_gt_u32 vcc, 95, v0\nv_lshlrev_b32 v3, 3, v0\nv_mov_b32 v18, 0\nv_mov_b32 v19, 0\nv_cndmask_b32 v3, v8, v3, vcc\ns_mul_i32 s5, s2, 760")
    e(f"buffer_store_dwordx2 v[18:19], v3, s[{S_O}:{S_O+3}], s5 offen sc0 sc1\ns_branch K1_sp_j")
    e("K1_sp_cs:\ns_waitcnt lgkmcnt(0)\ns_cmp_ge_u32 s2, 54\ns_cbranch_scc1 K1_sp_j")
    e(f"v_mul_u32_u24 v9, 3456, v3\nv_add_u32 v9, v9, v{T}\ns_and_b32 s6, s2, 1\ns_lshl_b32 s6, s6, 2\ns_add_u32 s6, s6, s{S_WV}\ns_sub_u32 s6, s6, 4\ns_lshr_b32 s7, s2, 1")
    e(f"s_mul_i32 s5, s6, {72*3456}\ns_lshl_b32 s50, s7, 7\ns_add_u32 s5, s5, s50")
    srd(e, S_W, 42, 576*1728*2)
    e.vm = []; e.vm_done = 0
    for i in range(9):
        e.vmem(f"buffer_load_dwordx4 v[{32+4*i}:{35+4*i}], v9, s[{S_W}:{S_W+3}], s5 offen", i)
        if i < 8: e(f"s_add_u32 s5, s5, {8*3456}")
    srd(e, S_A, 46, CS_BYTES, WS_CS)
    e("v_mov_b32 v10, 0x3f80\nv_mov_b32 v11, 0x3f800000")
    for k in range(8): e(f"v_mov_b32 v{12+k}, 0")
    e(f"s_lshl_b32 s50, s{S_WV}, 11\nv_lshlrev_b32 v3, 5, v2\nv_add_u32 v3, s50, v3\nv_lshlrev_b32 v9, 2, v2\nv_add_u32 v{T}, s50, v9")
    e(f"s_mul_i32 s6, s6, {1728*4}\ns_lshl_b32 s7, s7, 8\ns_add_u32 s6, s6, s7")
    for i in range(9):
        e.wait_vm(lambda t: t == i)
        for k in range(4): e(f"v_dot2c_f32_bf16 v{12+2*k}, v{32+4*i+k}, v10\nv_dot2c_f32_bf16 v{13+2*k}, v{32+4*i+k}, v11")
    e("s_nop 2\nds_write_b128 v3, v[12:15]\nds_write_b128 v3, v[16:19] offset:16\ns_waitcnt lgkmcnt(0)")
    for k in range(4): e(f"ds_read2st64_b32 v[{12+2*k}:{13+2*k}], v{T} offset0:{2*k} offset1:{2*k+1}")
    e("s_waitcnt lgkmcnt(0)\nv_pk_add_f32 v[12:13], v[12:13], v[14:15]\nv_pk_add_f32 v[16:17], v[16:17], v[18:19]\nv_pk_add_f32 v[12:13], v[12:13], v[16:17]\nv_add_f32 v12, v12, v13")
    e(f"buffer_store_dword v12, v9, s[{S_A}:{S_A+3}], s6 offen sc0 sc1")
    e("K1_sp_j:")
    e("s_load_dwordx2 s[48:49], s[0:1], 16\ns_load_dwordx4 s[52:55], s[0:1], 32")
    e(f"s_waitcnt vmcnt(0) lgkmcnt(0)\ns_barrier")
    tm.stamp(0)
    e(f"s_cmp_lg_u32 s{S_WV}, 0\ns_cbranch_scc1 K1_nosig")
    srd(e, S_DBG, 44, 256)
    e(f"v_cmp_eq_u32 vcc, 0, v2\nv_mov_b32 v4, 1\ns_nop 0\nv_cndmask_b32_e64 v3, v8, 0, vcc\nbuffer_atomic_add v4, v3, s[{S_DBG}:{S_DBG+3}], 0 offen sc1")
    e("K1_nosig:")
    if cpf:
        e(f"s_cmp_lg_u32 s{S_WV}, 7\ns_cbranch_scc1 K1_nocp2\ns_lshr_b32 s6, s2, 3\ns_lshl_b32 s6, s6, 13")
        code_prefetch(e, "K1_pc2", "k2_kernel", cend, 2, 20, 6)
        e("K1_nocp2:")
    if prefetch:
        srd(e, S_A, 52, 576*4608*2)
        srd(e, S_W, 54, 576*4608*2)
        slice_of_xcd(e, 5, 2, C)
        e(f"s_mul_i32 s5, s5, 1152\ns_lshr_b32 s6, s2, 3\ns_mul_i32 s6, s6, {72*9216}\ns_add_u32 s5, s5, s6")
        e(f"v_lshrrev_b32 v4, 2, v0\nv_mul_u32_u24 v4, 9216, v4\nv_bfe_u32 v5, v0, 1, 1\nv_mul_u32_u24 v5, 5, v5\nv_and_b32 v3, 1, v0\nv_add_u32 v5, v5, v3\nv_lshl_add_u32 v4, v5, 7, v4")
        e(f"v_cmp_gt_u32 vcc, 288, v0\ns_nop 1\nv_cndmask_b32 v4, v8, v4, vcc")
        e(f"buffer_load_dword v11, v4, s[{S_A}:{S_A+3}], s5 offen\nbuffer_load_dword v12, v4, s[{S_W}:{S_W+3}], s5 offen")
    e(f"s_cmp_lg_u32 s{S_WV}, 7\ns_cbranch_scc1 K1_nofl")
    srd(e, S_O, 46, FL_BYTES, WS_FL)
    e(f"v_mov_b32 v24, 0\nv_mov_b32 v25, 0\nv_mov_b32 v26, 0\nv_mov_b32 v27, 0\nv_lshlrev_b32 v3, 4, v2\ns_mul_i32 s5, s2, {NZ*1024}")
    for z in range(NZ): e(f"buffer_store_dwordx4 v[24:27], v3, s[{S_O}:{S_O+3}], s5 offen\ns_add_u32 s5, s5, 1024")
    e(f"s_branch K1_done\nK1_nofl:")
    e(f"s_cmp_lt_u32 s{S_WV}, 5\ns_cbranch_scc1 K1_done\ns_cmp_ge_u32 s2, 36\ns_cbranch_scc1 K1_done")
    e(f"v_lshrrev_b32 v3, 3, v2\nv_mul_u32_u24 v9, 1152, v3\nv_and_b32 v3, 7, v2\nv_lshl_add_u32 v9, v3, 4, v9")
    srd(e, S_X, 48, 576*576*2)
    e(f"s_lshl_b32 s6, s2, 1\ns_add_u32 s6, s6, s{S_WV}\ns_sub_u32 s6, s6, 5\ns_mul_i32 s5, s6, {8*1152}")
    e.vm = []; e.vm_done = 0
    for i in range(9):
        e.vmem(f"buffer_load_dwordx4 v[{32+4*i}:{35+4*i}], v9, s[{S_X}:{S_X+3}], s5 offen" + (f" offset:{128*i}" if i else ""), i)
    srd(e, S_O, 46, WB_BYTES, WS_WB)
    e(f"s_mul_i32 s7, s6, 57\ns_lshr_b32 s7, s7, 10\ns_mul_i32 s5, s7, 18\ns_sub_u32 s6, s6, s5\ns_mul_i32 s7, s7, 320")
    e(f"s_lshr_b32 s5, s6, 1\ns_lshl_b32 s5, s5, 3\ns_add_u32 s7, s7, s5\ns_and_b32 s5, s6, 1\ns_mul_i32 s5, s5, 160\ns_add_u32 s7, s7, s5")
    e(f"v_lshrrev_b32 v3, 5, v2\nv_mul_u32_u24 v3, 80, v3\nv_bfe_u32 v4, v2, 3, 2\nv_lshl_add_u32 v3, v4, 1, v3\nv_and_b32 v4, 7, v2\nv_cmp_eq_u32 vcc, 0, v4\nv_mov_b32 v14, 0\nv_mov_b32 v10, 0x3f803f80\nv_cndmask_b32 v3, v8, v3, vcc")
    for i in range(9):
        e.wait_vm(lambda t: t == i)
        for k in range(4): e(f"v_dot2c_f32_bf16 v14, v{32+4*i+k}, v10")
    e("s_nop 2")
    for dpp in ("quad_perm:[1,0,3,2]", "quad_perm:[2,3,0,1]", "row_half_mirror"):
        e(f"v_add_f32_dpp v14, v14, v14 {dpp} row_mask:0xf bank_mask:0xf\ns_nop 1")
    e(f"v_mul_f32 v14, {hex(f2u(1.0/576))}, v14\nv_cvt_pk_bf16_f32 v14, v14, v14\nbuffer_store_short v14, v3, s[{S_O}:{S_O+3}], s7 offen")
    e("K1_done:")
    tm.end("K1_end")
    e("K1_end:\ns_endpgm")
    return e.text()
if __name__ == "__main__":
    assert all((n*3277) >> 16 == n//20 for n in range(1536))
    assert all((n*27) >> 9 == n//19 for n in range(77))
    assert all((n*7282) >> 16 == n//9 for n in range(1024))
    print("ok")
```

```python
from sched import *
from layout import *
from tim import Tim
from k3 import srd, f2u
from k1 import mask64, smask, BIG, LBIG, code_prefetch, slice_of_xcd
REG = 39936; WOFF = 12288; MXC = 4*REG

def gen_k2(timing=False, prefetch=True, cpf=True, p1=11, p2=15, C=2, sf=' sc1', fused=None, dp=12, spread=True):
    e = fused['e'] if fused else Em()
    if fused: sf = ' sc0 sc1'
    A = 24; O = 112; ADR = 112; RAW = 184; RD = 184; NR = 216; MIX = 240; ACC = 16
    VL16 = 4; VWO = 5; TB = 8; VXA = 10; VST = 11; VSA = 12; VMX = 15
    XR = 244
    MN = 220
    ID = 236
    PQ = 0; WFR = 72; WB = 180
    S_WS_ = 8; S_WO = 16; S_X = 20
    S_RT = 32; S_CG = 33; S_WV = 34; S_RB = 35; S_WS = 36
    e("s_cmp_ge_u32 s2, 256\ns_cbranch_scc1 " + ("K3_end" if fused else "K2_end"))
    e("s_load_dwordx2 s[46:47], s[0:1], 72\ns_load_dwordx2 s[40:41], s[0:1], 0\ns_load_dwordx2 s[42:43], s[0:1], 16")
    if fused: e("s_load_dwordx4 s[12:15], s[0:1], 32")
    tm = fused['tm2'] if fused else Tim(e, 2, timing)
    tm.start()
    if spread:
        e(f"v_lshrrev_b32 v1, 6, v0\nv_and_b32 v2, 63, v0\ns_bfe_u32 s4, s2, 0x20003\ns_cmp_eq_u32 s4, 3\nv_readfirstlane_b32 s{S_WV}, v1\ns_cbranch_scc1 K2_spare")
        e(f"s_and_b32 s3, s2, 7\ns_lshl_b32 s3, s3, 2\ns_bfe_u32 s5, s2, 0x20005\ns_add_u32 s{S_RT}, s3, s5\ns_lshl_b32 s4, s4, 1\ns_lshr_b32 s5, s2, 7\ns_add_u32 s{S_CG}, s4, s5")
    else:
        e(f"v_lshrrev_b32 v1, 6, v0\nv_and_b32 v2, 63, v0\ns_cmp_ge_u32 s2, 192\nv_readfirstlane_b32 s{S_WV}, v1\ns_cbranch_scc1 K2_spare")
        e(f"s_and_b32 s3, s2, 7\ns_lshr_b32 s4, s2, 3\ns_lshl_b32 s3, s3, 2\ns_and_b32 s5, s4, 3\ns_add_u32 s{S_RT}, s3, s5\ns_lshr_b32 s{S_CG}, s4, 2")
    e(f"""s_mul_i32 s{S_RB}, s{S_WV}, {REG}
s_mul_i32 s24, s{S_WV}, 12160
v_lshlrev_b32 v{VL16}, 4, v2
s_lshr_b32 s5, s{S_WV}, 1
s_lshl_b32 s6, s{S_RT}, 1
s_add_u32 s{S_WS}, s6, s5
s_lshl_b32 s5, s{S_WS}, 2
s_add_u32 s5, s5, s{S_WV}
s_xor_b32 s6, s5, 4
s_mul_i32 s25, s5, 9216
s_mul_i32 s26, s6, 9216
s_mov_b32 s{S_WS_+2}, {WS_BYTES}
s_mov_b32 s{S_WS_+3}, 0x20000""")
    W = f"s[{S_WS_}:{S_WS_+3}]"
    e(f"v_and_b32 v13, 15, v2\nv_lshrrev_b32 v14, 4, v2\nv_mul_u32_u24 v3, 80, v13\nv_lshl_add_u32 v3, v14, 4, v3\nv_add_u32 v3, s{S_RB}, v3\nv_mov_b32 v16, {LBIG}")
    e(f"v_and_b32 v1, 3, v13\nv_mul_u32_u24 v17, 9, v1\nv_lshrrev_b32 v17, 1, v17\nv_sub_u32 v17, v14, v17\nv_lshlrev_b32 v17, 4, v17\nv_mul_u32_u24 v1, 1520, v1\nv_add3_u32 v17, v17, v1, s{S_RB}")
    frags = []; na = [0]; prep = []
    def addr(base, m):
        if m == 0: return None
        r = ADR + na[0]; na[0] += 1
        prep.append((r, base, m))
        return r
    zf = []
    for c, T0s in ((0, (0, 2, 4)), (1, (4, 6, 7))):
        for T0 in T0s:
            L = []
            for jj in range(2):
                T = T0 + jj
                def valid(l):
                    if c == 1 and T0 == 7 and jj == 0: return False
                    hs = 4*c + (l & 3); g = l >> 4
                    return 0 <= 4*T + g - (9*hs)//2 < 5
                L.append((addr(17, mask64(valid)), c*(4*1520 - 18*16) + 18*80 + 64*T))
            zf.append((c, T0, len(frags))); frags.append(L)
    numf = {}
    for h in range(8):
        for j in (h, h + 1):
            L = []
            for jj in range(2):
                def valid(l):
                    m, g = l & 15, l >> 4
                    return 0 <= 16*j + m - 18*h < 18 and 0 <= g + 4*jj - (h >> 1) < 5
                L.append((addr(3, mask64(valid)), h*1520 + (16*j - 18*h)*80 + (4*jj - (h >> 1))*16))
            numf[(j, h)] = len(frags); frags.append(L)
    def doprep(n):
        for _ in range(n):
            if prep:
                r, base, m = prep.pop(0)
                smask(e, 48, m); e(f"v_cndmask_b32 v{r}, v16, v{base}, s[48:49]")
    doprep(20)
    e(f"s_waitcnt lgkmcnt(0)\ns_mov_b32 s{S_WS_}, s46\ns_and_b32 s{S_WS_+1}, s47, 0xffff")
    for i in range(12):
        if i % 4 == 0:
            e(f"s_add_u32 m0, s{S_RB}, {i*1024}\ns_add_u32 s6, s24, {WS_KV + i*1024}")
        e.vmem(f"buffer_load_dwordx4 v{VL16}, {W}, s6 offen" + (f" offset:{(i%4)*1024}" if i % 4 else "") + " lds", "kv")
    tm.stamp(0)
    doprep(100)
    srd(e, S_WO, 42, 576*576*2)
    srd(e, S_X, 40, ACT_BYTES)
    if fused: e("s_load_dwordx4 s[40:43], s[0:1], 48")
    for i in range(3):
        e(f"v_add_u32 v3, {64*i}, v2\nv_mul_u32_u24 v1, 5462, v3\nv_lshrrev_b32 v1, 16, v1\nv_mul_u32_u24 v{VWO+i}, 12, v1\nv_sub_u32 v3, v3, v{VWO+i}\nv_mul_u32_u24 v1, 1152, v1\nv_lshl_add_u32 v{VWO+i}, v3, 4, v1")
        if i: e(f"v_subrev_u32 v{VWO+i}, {i*1024}, v{VWO+i}")
    e(f"s_mul_i32 s37, s{S_WV}, {144*1152}\ns_mul_i32 s5, s{S_CG}, 192\ns_add_u32 s37, s37, s5")
    e(f"v_lshrrev_b32 v3, 2, v2\nv_mul_u32_u24 v3, 192, v3\nv_and_b32 v1, 3, v2\nv_lshl_add_u32 v3, v1, 3, v3")
    e(f"s_and_b32 s5, s{S_WV}, 1\ns_mul_i32 s38, s5, 96\ns_add_u32 s6, s{S_RB}, {WOFF}\ns_add_u32 s7, s6, s38\nv_add_u32 v{TB}, s7, v3\ns_add_u32 s7, s6, 96\ns_sub_u32 s7, s7, s38\nv_add_u32 v{TB+1}, s7, v3")
    e(f"v_lshrrev_b32 v1, 5, v2\nv_lshl_add_u32 v1, v1, 4, v13\nv_and_b32 v3, 1, v14")
    e(f"v_mul_u32_u24 v{VXA}, 1152, v1\nv_lshl_add_u32 v{VXA}, v3, 4, v{VXA}")
    e(f"v_lshlrev_b32 v{VST}, 4, v1\nv_lshl_add_u32 v{VST}, v3, 9, v{VST}")
    e(f"v_cmp_eq_u32 s[48:49], 0, v3\nv_lshlrev_b32 v{VSA}, 3, v1\nv_lshlrev_b32 v{VMX}, 2, v1\nv_mov_b32 v1, {BIG}\nv_cndmask_b32 v{VSA}, v1, v{VSA}, s[48:49]")
    e(f"s_mul_i32 s39, s{S_WS}, 36864\ns_mul_i32 s5, s{S_CG}, 192\ns_add_u32 s5, s5, s38\ns_add_u32 s50, s39, s5")
    e(f"v_mul_u32_u24 v3, 80, v14\ns_mul_i32 s27, s{S_WV}, 320\ns_add_u32 s27, s27, {WS_WB}\ns_lshl_b32 s28, s{S_WS}, 7\ns_add_u32 s28, s28, {WS_MX}")
    for t in range(1, 4): smask(e, 52 + 2*(t-1), mask64(lambda l: (l >> 4) < t))
    vq = []
    def pql(b):
        L = []
        for q in range(9):
            pre = [f"s_add_u32 s29, s{25+b}, {WS_PQ + q*1024}"] if q % 4 == 0 else []
            r = PQ + 36*b + 4*q
            L.append((pre, f"buffer_load_dwordx4 a[{r}:{r+3}], v{VL16}, {W}, s29 offen" + (f" offset:{(q%4)*1024}" if q % 4 else ""), ("pq", b), p1))
        return L
    vq += pql(0) + pql(1)
    for i in range(27):
        pre = [f"s_add_u32 m0, s{S_RB}, {WOFF + i*1024}", f"s_add_u32 s51, s37, {(i//3)*16*1152}"] if i % 3 == 0 else []
        vq.append((pre, f"buffer_load_dwordx4 v{VWO+i%3}, s[{S_WO}:{S_WO+3}], s51 offen" + (f" offset:{(i%3)*1024}" if i % 3 else "") + " lds", ("wo", i//3), p2))
        if i == 17:
            for k in range(3):
                vq.append(([], f"buffer_load_dwordx4 v[{XR+4*k}:{XR+4*k+3}], v{VXA}, s[{S_X}:{S_X+3}], s50 offen" + (f" offset:{32*k}" if k else ""), "x", p2))
            vq.append(([], f"buffer_load_dword v1, v{VMX}, {W}, s28 offen", "x", 4))
        if i == 5:
            for k in range(5):
                vq.append(([], f"buffer_load_dwordx4 a[{WB+4*k}:{WB+4*k+3}], v3, {W}, s27 offen" + (f" offset:{16*k}" if k else ""), "wb", 4))
    state = {"last": 0}
    def pace(force=False):
        if vq and (force or e.n - state["last"] >= vq[0][3]):
            pre, t, tag, _ = vq.pop(0)
            for p in pre: e(p)
            e.vmem(t, tag); state["last"] = e.n
    tm.stamp(1)
    for _ in range(9): pace(True)
    e.wait_vm(lambda t: t == "kv")
    tm.stamp(2)
    def ards(f):
        rb = RAW + 8*(f % 6)
        for jj in range(2):
            ar, off = frags[f][jj]
            if ar is not None:
                e.ds(f"ds_read_b128 v[{rb+4*jj}:{rb+4*jj+3}], v{ar} offset:{off}", f)
    for k in range(5): ards(k)
    for f in range(22):
        if f + 5 < 22: ards(f + 5)
        pace()
        rb = RAW + 8*(f % 6)
        e.wait_lg(lambda t: t == f)
        for jj in range(2):
            d = A + 4*f + 2*jj
            if frags[f][jj][0] is None:
                e(f"v_mov_b32 v{d}, 0\nv_mov_b32 v{d+1}, 0")
            else:
                e(f"v_cvt_pk_bf16_f32 v{d}, v{rb+4*jj}, v{rb+4*jj+1}\nv_cvt_pk_bf16_f32 v{d+1}, v{rb+4*jj+2}, v{rb+4*jj+3}")
    tm.stamp(3)
    q = Queue(e, window=8)
    def pqf(t, tile):
        r = PQ + 36*(t >> 1) + 18*(t & 1) + 2*tile
        return f"a[{r}:{r+3}]"
    rdops = {}
    def mf(d, a, b, first, deps=()):
        return e.op(Op(f"v_mfma_f32_16x16x32_bf16 v[{d}:{d+3}], v[{a}:{a+3}], {b}, " + ("0" if first else f"v[{d}:{d+3}]"), deps=deps))
    eps = hex(f2u(1e-6))
    def den(t):
        while not any(x == ("pq", t >> 1) for x in e.vm) or any(v[2] == ("pq", t >> 1) for v in vq): pace(True)
        e.wait_vm(lambda x: x == ("pq", t >> 1))
        for k, (c, T0, f) in enumerate(zf):
            d = RD + 8*t + 4*c
            o = mf(d, A + 4*f, pqf(t, T0), k % 3 == 0)
            if k % 3 == 2:
                for r in range(4):
                    o1 = q.add(Op(f"v_add_f32 v{d+r}, {eps}, v{d+r}", deps=[(o, 9)]))
                    rdops[(t, 4*c + r)] = q.add(Op(f"v_rcp_f32 v{d+r}, v{d+r}", cost=2, deps=[(o1, 0)]))
            pace(); q.fill(3)
    ringfree = [None]*6; mixfree = [None]*4; mixi = [0]; cnt = [0]
    def num(t, j):
        slot = cnt[0] % 6; cnt[0] += 1
        d = NR + 4*slot
        if ringfree[slot] is not None:
            for o in ringfree[slot]:
                if o.pos is None: q.drain_until(o)
        hs = [h for h in (j - 1, j) if 0 <= h < 8]
        for k, h in enumerate(hs):
            o = mf(d, A + 4*numf[(j, h)], pqf(t, h), k == 0)
            pace(); q.fill(4 if len(hs) == 2 else 6)
        muls = []; mixcache = {}
        for r in range(4):
            th = sum(1 for g in range(4) if 4*g + r < 2*j)
            if th == 0: src, dp = RD + 8*t + j, [(rdops[(t, j)], 1)]
            elif th == 4: src, dp = RD + 8*t + j - 1, [(rdops[(t, j-1)], 1)]
            else:
                if th not in mixcache:
                    mi = mixi[0] % 4; mixi[0] += 1
                    dd = [(rdops[(t, j)], 1), (rdops[(t, j-1)], 1)] + [(x, 0) for x in (mixfree[mi] or [])]
                    s = 52 + 2*(th-1)
                    mo = q.add(Op(f"v_cndmask_b32 v{MIX+mi}, v{RD+8*t+j}, v{RD+8*t+j-1}, s[{s}:{s+1}]", deps=dd))
                    mixcache[th] = (mi, mo); mixfree[mi] = []
                mi, mo = mixcache[th]
                src, dp = MIX + mi, [(mo, 0)]
            m = q.add(Op(f"v_mul_f32 v{d+r}, v{d+r}, v{src}", deps=[(o, 9)] + dp))
            if th not in (0, 4): mixfree[mixcache[th][0]].append(m)
            muls.append(m)
        od = O + 18*t + 2*j
        c1 = q.add(Op(f"v_cvt_pk_bf16_f32 v{od}, v{d}, v{d+1}", deps=[(muls[0], 0), (muls[1], 0)]))
        c2 = q.add(Op(f"v_cvt_pk_bf16_f32 v{od+1}, v{d+2}, v{d+3}", deps=[(muls[2], 0), (muls[3], 0)]))
        ringfree[slot] = [c1, c2]
    e("s_nop 0")
    den(0); den(1)
    for t in range(4):
        for j in range(9):
            num(t, j)
            if t == 1 and j == 3: den(2)
            if t == 2 and j == 3: den(3)
    tm.stamp(4)
    def wreads(ks):
        tag = ("wo", min(2*ks + 1, 8))
        while any(v[2] == tag for v in vq): pace(True)
        e.wait_vm(lambda x: x == tag)
        L = []
        for ct in range(6):
            r = WFR + 24*ks + (4 if ks < 4 else 2)*ct
            for i in range(2 if ks < 4 else 1):
                L.append((f"ds_read_b64_tr_b16 a[{r+2*i}:{r+2*i+1}], v{TB+ct//3} offset:{(2*ks+i)*3072 + (ct%3)*32}", ("w", ks)))
        return L
    for t_, tag in wreads(0): e.ds(t_, tag)
    q.drain()
    def gm(ks, t, ct, first=False):
        lq = (t >> 1)*2 + ct//3
        d = ACC + 24*lq + 12*(t & 1) + 4*(ct % 3)
        cs = "0" if first else f"v[{d}:{d+3}]"
        if ks < 4:
            r = WFR + 24*ks + 4*ct; o = O + 18*t + 4*ks
            return e.op(Op(f"v_mfma_f32_16x16x32_bf16 v[{d}:{d+3}], a[{r}:{r+3}], v[{o}:{o+3}], {cs}"))
        r = WFR + 96 + 2*ct; o = O + 18*t + 16
        return e.op(Op(f"v_mfma_f32_16x16x16_bf16 v[{d}:{d+3}], a[{r}:{r+1}], v[{o}:{o+1}], {cs}"))
    e.wait_vm(lambda x: x == "wb")
    e("s_nop 0")
    for ks in (4, 0, 1, 2, 3):
        if ks == 0: e("s_nop 2")
        for t in range(4):
            d = MN + 4*t
            if ks < 4: mo = e.op(Op(f"v_mfma_f32_16x16x32_bf16 v[{d}:{d+3}], a[{WB+4*ks}:{WB+4*ks+3}], v[{O+18*t+4*ks}:{O+18*t+4*ks+3}], v[{d}:{d+3}]"))
            else: e(f"v_mfma_f32_16x16x16_bf16 v[{d}:{d+3}], a[{WB+16}:{WB+17}], v[{O+18*t+16}:{O+18*t+17}], 0")
            pace()
    chl = [None]
    def chain(lines, deps=()):
        prev = None
        for l in lines:
            ws = 2 if isinstance(l, str) and "permlane" in l else 0
            prev = q.add(Op(l, cost=2 if ws else 1, deps=[(prev, 0)] if prev else list(deps) + ([(chl[0], 0)] if chl[0] else [])))
        chl[0] = prev
        return prev
    def emit_op(o, _orig=e.op):
        if callable(o.text):
            o.text(); o.pos = e.n - 1; return o
        return _orig(o)
    e.op = emit_op
    XS, XB = (9216, 110592 - 3072) if fused else (REG, 0)
    mwop = chain([f"s_and_b32 s5, s{S_WV}, 2", f"v_xor_b32 v238, s5, v14", f"v_lshl_add_u32 v238, v238, 4, v13", f"s_lshl_b32 s5, s{S_WV}, 8", f"s_add_u32 s5, s5, {MXC}",
           f"v_lshl_add_u32 v238, v238, 2, s5",
           f"v_cndmask_b32 v{MN+12}, v{MN+12}, v{MN+8}, s[56:57]", f"v_cndmask_b32 v{MN+12}, v{MN+12}, v{MN+4}, s[54:55]", f"v_cndmask_b32 v{MN+12}, v{MN+12}, v{MN}, s[52:53]",
           lambda: e.ds(f"ds_write_b32 v238, v{MN+12}", "mw")], deps=[(mo, 9)])
    m0_ = mask64(lambda l: (l >> 4) == ((l & 15) >> 2) and (l & 2) == 0); m1_ = mask64(lambda l: (l >> 4) == ((l & 15) >> 2) and (l & 2) == 2)
    chain([f"v_and_b32 v239, 1, v13", f"v_lshlrev_b32 v239, 4, v239", f"v_lshlrev_b32_e64 v239, v239, s58",
           lambda: smask(e, 48, m0_), f"v_cndmask_b32 v{ID}, 0, v239, s[48:49]", lambda: smask(e, 48, m1_), f"v_cndmask_b32 v{ID+1}, 0, v239, s[48:49]",
           f"s_mul_i32 s5, s{S_WV}, {XS}", f"s_add_u32 s5, s5, {XB}", f"v_add_u32 v3, s5, v{VL16}"])
    if fused: chain(fused["early_setup"](S_WV, 220), deps=[(mwop, 0)])
    e("s_movk_i32 s58, 0x3f80")
    pend = []
    for ks in range(3):
        e.wait_lg(lambda x: x == ("w", ks))
        k = 0
        for t in range(4):
            for ct in range(6):
                gm(ks, t, ct, first=(ks == 0)); k += 1
                if k == 2: pend = wreads(ks + 1)
                if k == 14 and ks == 2: pend += wreads(4)
                if pend:
                    t_, tag = pend.pop(0); e.ds(t_, tag); q.fill(1)
                else:
                    pace(); q.fill(2)
        assert not pend
        if ks == 1:
            while vq: pace(True)
            chain([lambda: e.wait_vm(lambda x: x == "x")] +
                  [f"v_permlane16_swap_b32 v{XR+4*k+i}, v{XR+4*k+i+2}" for k in range(3) for i in range(2)] +
                  [f"v_permlane32_swap_b32 v{XR+4*k+i}, v{XR+4*k+i+2}" for k in range(3) for i in range(2)] +
                  [x for lq in (1, 2, 3) for x in (f"s_xor_b32 s5, s{S_WV}, {lq}", f"s_mul_i32 s5, s5, {XS}", f"s_add_u32 s5, s5, {XB}", f"v_add_u32 v{5+lq-1}, s5, v{VL16}")])
    tm.stamp(5)
    EX = RD
    e.wait_lg(lambda x: x == ("w", 4))
    if fused:
        q.drain()
        e("s_barrier")
        for st in (0, 1):
            pre = []
            for t_, isd in fused["early_dma"](st, 220):
                if isd: vq.append((pre + (["s_nop 0"] if pre and "m0" in pre[-1] else []), t_, ("dma", st), dp)); pre = []
                else: pre.append(t_)
    for lq in (1, 2, 3, 0):
        last = {}
        for ks in (3, 4):
            for t in (2*(lq >> 1), 2*(lq >> 1) + 1):
                for c3 in range(3):
                    last[(t & 1, c3)] = gm(ks, t, 3*(lq & 1) + c3)
                    pace(); q.fill(2)
            if ks == 3: e("s_nop 0")
        if lq:
            cv = []
            for i in range(12):
                cv.append(q.add(Op(f"v_cvt_pk_bf16_f32 v{EX+12*(lq-1)+i}, v{ACC+24*lq+2*i}, v{ACC+24*lq+2*i+1}", deps=[(last[(i//6, (i % 6)//2)], 9)])))
                if i % 4 == 3:
                    r = EX + 12*(lq-1) + i - 3
                    q.add(Op(lambda r=r, off=lq*3072 + (i//4)*1024: e.ds(f"ds_write_b128 v3, v[{r}:{r+3}] offset:{off}", "xw"), cost=2, deps=[(c, 0) for c in cv[-4:]]))
    q.drain()
    for tt in range(2):
        for c3 in range(3):
            d = ACC + 12*tt + 4*c3; x = XR + 4*c3 + 2*tt
            e(f"v_mfma_f32_16x16x16_bf16 v[{d}:{d+3}], v[{ID}:{ID+1}], v[{x}:{x+1}], v[{d}:{d+3}]")
    e(f"s_lshl_b32 s5, s{S_WV}, 6\ns_and_b32 s5, s5, 128\ns_add_u32 s5, s5, {MXC}\nv_add_u32 v{VMX}, s5, v{VMX}")
    tm.stamp(6)
    e("s_waitcnt lgkmcnt(0)\ns_barrier")
    tm.stamp(7)
    e.lg = []; e.lg_done = 0
    IN = 40
    for lq in (1, 2, 3):
        for i in range(3):
            r = IN + 12*(lq-1) + 4*i
            e.ds(f"ds_read_b128 v[{r}:{r+3}], v{5+lq-1} offset:{lq*3072 + i*1024}", (lq, i))
    e.ds(f"ds_read2st64_b32 v[104:105], v{VMX} offset0:0 offset1:1", "m"); e.ds(f"ds_read2st64_b32 v[106:107], v{VMX} offset0:2 offset1:3", "m")
    e(f"v_mov_b32 v13, 0x3f80\nv_mov_b32 v14, 0x3f800000\nv_mov_b32 v15, 0x3f803f80\nv_mov_b32 v8, 0\nv_mov_b32 v9, 0")
    e(f"s_mul_i32 s5, s{S_CG}, 6144\ns_lshl_b32 s6, s38, 5\ns_add_u32 s5, s5, s6\ns_add_u32 s5, s5, s39\ns_add_u32 s4, s5, {WS_HC}\ns_add_u32 s5, s5, {WS_HT}")
    e(f"s_lshl_b32 s6, s{S_CG}, 1\ns_and_b32 s7, s{S_WV}, 1\ns_add_u32 s6, s6, s7\ns_lshl_b32 s6, s6, 14\ns_lshl_b32 s7, s{S_WS}, 8\ns_add_u32 s6, s6, s7\ns_add_u32 s6, s6, {WS_ST}")
    for lq in (1, 2, 3):
        for i in range(3):
            e.wait_lg(lambda x: x == (lq, i))
            for k in range(4):
                r = IN + 12*(lq-1) + 4*i + k; d = ACC + 2*(4*i + k)
                e(f"v_dot2c_f32_bf16 v{d}, v{r}, v13\nv_dot2c_f32_bf16 v{d+1}, v{r}, v14")
                pace()
    e.wait_lg(lambda x: x == "m")
    e("v_pk_add_f32 v[104:105], v[104:105], v[106:107]\nv_add_f32 v1, v1, v104\nv_add_f32 v1, v1, v105\nv_cvt_pk_bf16_f32 v1, v1, v1\nv_and_b32 v1, 0xffff0000, v1\nv_xor_b32 v1, 0x80000000, v1")
    H = 80; HC = 92; TL = 40
    for c3 in range(3):
        for tt in range(2):
            a = ACC + 12*tt + 4*c3
            e(f"v_cvt_pk_bf16_f32 v{H+4*c3+2*tt}, v{a}, v{a+1}\nv_cvt_pk_bf16_f32 v{H+4*c3+2*tt+1}, v{a+2}, v{a+3}")
    for c3 in range(3):
        e(f"v_permlane32_swap_b32 v{H+4*c3}, v{H+4*c3+2}\nv_permlane32_swap_b32 v{H+4*c3+1}, v{H+4*c3+3}")
    for c3 in range(3):
        e(f"buffer_store_dwordx4 v[{H+4*c3}:{H+4*c3+3}], v{VST}, {W}, s5 offen" + (f" offset:{1024*c3}" if c3 else "") + sf)
        for k in range(4):
            r = H + 4*c3 + k; t = TL + 8*c3 + 2*k
            e(f"v_dot2_f32_bf16 v{t}, v{r}, v13, v1\nv_dot2_f32_bf16 v{t+1}, v{r}, v14, v1")
    for c3 in range(3):
        for k in range(4):
            e(f"v_cvt_pk_bf16_f32 v{HC+4*c3+k}, v{TL+8*c3+2*k}, v{TL+8*c3+2*k+1}")
        e(f"buffer_store_dwordx4 v[{HC+4*c3}:{HC+4*c3+3}], v{VST}, {W}, s4 offen" + (f" offset:{1024*c3}" if c3 else "") + sf)
    for r in range(H, H + 12):
        e(f"v_dot2c_f32_bf16 v8, v{r}, v15\nv_dot2c_f32_bf16 v9, v{r}, v{r}")
    e("s_nop 2\nv_mov_b32 v6, v8\nv_mov_b32 v7, v9\ns_nop 1\nv_permlane16_swap_b32 v6, v8\nv_permlane16_swap_b32 v7, v9\ns_nop 1\nv_pk_add_f32 v[6:7], v[6:7], v[8:9]")
    e(f"buffer_store_dwordx2 v[6:7], v{VSA}, {W}, s6 offen{sf}")
    tm.stamp(8)
    if fused:
        fused["nleft"] = len(vq)
        while vq: pace(True)
        e(f"s_lshl_b32 s59, s{S_WS}, 8\ns_add_u32 s59, s59, {WS_FA}")
    e("s_branch K2_done")
    e("K2_spare:")
    e("s_lshr_b32 s3, s2, 5\ns_lshl_b32 s3, s3, 3\ns_and_b32 s4, s2, 7\ns_add_u32 s3, s3, s4" if spread else "s_sub_u32 s3, s2, 192")
    if cpf:
        e(f"s_cmp_lg_u32 s{S_WV}, 3\ns_cbranch_scc1 K2_nocp\ns_lshr_b32 s6, s3, 3\ns_lshl_b32 s6, s6, 13")
        code_prefetch(e, "K2_pc", "K2_done" if fused else "k3_kernel", "KB_last" if fused else "K4_end", 2, 244, 6)
        e("K2_nocp:")
    if prefetch:
        e("s_load_dwordx4 s[52:55], s[0:1], 32\ns_waitcnt lgkmcnt(0)")
        srd(e, S_X, 52, 576*4608*2)
        srd(e, S_WO, 54, 576*4608*2)
        slice_of_xcd(e, 5, 3, C)
        e(f"s_mul_i32 s5, s5, 1152\ns_lshr_b32 s6, s3, 3\ns_mul_i32 s6, s6, {72*9216}\ns_add_u32 s5, s5, s6\nv_mov_b32 v8, {BIG}")
        for i in range(2):
            e(f"v_add_u32 v3, {256*i}, v0\nv_mul_u32_u24 v4, 13108, v3\nv_lshrrev_b32 v4, 16, v4\nv_mul_u32_u24 v5, 5, v4\nv_sub_u32 v5, v3, v5")
            e(f"v_add_u32 v6, 1, v5\nv_lshrrev_b32 v6, 2, v6\nv_lshl_add_u32 v5, v6, 1, v5\nv_add_u32 v5, 2, v5\nv_mul_u32_u24 v4, 9216, v4\nv_lshl_add_u32 v4, v5, 7, v4")
            e(f"v_cmp_gt_u32 vcc, 360, v3\ns_nop 1\nv_cndmask_b32 v4, v8, v4, vcc")
            e(f"buffer_load_dword v{240+2*i}, v4, s[{S_X}:{S_X+3}], s5 offen\nbuffer_load_dword v{241+2*i}, v4, s[{S_WO}:{S_WO+3}], s5 offen")
    else:
        e("s_waitcnt lgkmcnt(0)")
    if fused:
        e("s_load_dwordx4 s[40:43], s[0:1], 48")
        for l in fused["early_setup"](S_WV, 220): e(l)
        for st in (0, 1):
            for t_, isd in fused["early_dma"](st, 220):
                e(t_ + ("\ns_nop 0" if "m0" in t_ else ""))
        e("s_mov_b32 s59, -1\ns_waitcnt lgkmcnt(0)")
        e("K2_done:")
        return None
    e("K2_done:")
    tm.end("K2_end")
    e("K2_end:\ns_endpgm")
    return e.text()
if __name__ == "__main__":
    print(gen_k2())
```

```python
from sched import *
from layout import *
from tim import Tim
import struct, math
def f2u(x): return struct.unpack("<I", struct.pack("<f", x))[0]

def srd(e, d, b, nbytes, off=0):
    if off > 0:
        e(f"s_add_u32 s{d}, s{b}, {off}\ns_addc_u32 s{d+1}, s{b+1}, 0\ns_and_b32 s{d+1}, s{d+1}, 0xffff")
    elif off < 0:
        e(f"s_sub_u32 s{d}, s{b}, {-off}\ns_subb_u32 s{d+1}, s{b+1}, 0\ns_and_b32 s{d+1}, s{d+1}, 0xffff")
    else:
        e(f"s_mov_b32 s{d}, s{b}\ns_and_b32 s{d+1}, s{b+1}, 0xffff")
    e(f"s_mov_b32 s{d+2}, {nbytes}\ns_mov_b32 s{d+3}, 0x20000")

SLOT = 36864
STAMPS = [0, 135, -1, -2, 568, 648, 720, 792, 864, 900, 936, 971]
def gen_k3(C=2, budget=5, timing=False, store_flags=" sc1", lead=30, wdpf=True, roll=True, bud2=6, late0="n",
           f1=(604, 650, 686), f2=(742, 766, 792, 818), gst=' sc0 sc1', gld=' sc0 sc1', old=' sc0 sc1', slack=2.25, nogs=False, vcost=1, ldpace=8, dsp=4, dtail=1, fused=None, hpre=870, slp=8, sig0=942, pp1=2, pp2=4, ordb=1, na=6, of=''):
    e = fused['e'] if fused else Em()
    tm = fused['tm3'] if fused else Tim(e, 3, timing)
    xf = ' sc0 sc1' if fused else ''
    if fused: store_flags = ' sc0 sc1'
    TRB = 4; V1 = 8; VB = 17; VE = 26; VP1 = 29; VS = 30
    VK1 = 34; VK2 = 35; VS2 = 36; VL16 = 37; VPF = 38; VZ = 39; VF = 40; V3 = 41; VONE = 42; T = 44
    TM = 208
    ACC = 56; OLD = 120; GT = 184; GS = 200; GP = 208
    FR = 144; GO = 192; GP3 = 240; GPS = 112
    S_W = 8; S_WD = 12; S_HC = S_ST = S_PT = S_GX = S_FL = 16; S_XH = 20
    S_J = 28; S_I = 29; S_WV = 30; S_WB = 31; S_CP = 32; S_CS = 33; S_SO = 34; S_XO = 35
    S_PO = 36; S_PS = 37
    S_B0 = 38; S_B1 = 39; S_A0 = 21; S_A1 = 22; S_CNT = 49; S_GO = 50; S_XS = 51; S_SS = 52; S_PF = 53
    S_MK = 54
    S_OWN = 56; S_PAR = 57; S_SNG = 58; S_TMP = 59
    S_GW = 40; S_GR = 41; S_FW = 42; S_FR = 43
    if not fused: e("s_cmp_ge_u32 s2, 256\ns_cbranch_scc1 K3_end")
    else: e("s_mov_b32 s23, s59\ns_mov_b64 s[26:27], s[42:43]\ns_mov_b64 s[44:45], s[40:41]\ns_mov_b64 s[40:41], s[12:13]")
    if not fused: e("s_load_dwordx4 s[40:43], s[0:1], 32\ns_load_dwordx2 s[44:45], s[0:1], 48\ns_load_dwordx2 s[46:47], s[0:1], 72")
    if not fused: tm.start()
    ng = 16 // C; R = 32 // C
    lg = lambda x: int(math.log2(x))
    e(f"v_lshrrev_b32 v1, 6, v0\nv_and_b32 v2, 63, v0\ns_and_b32 s3, s2, 7\ns_lshr_b32 s4, s2, 3\nv_readfirstlane_b32 s{S_WV}, v1")
    e(f"s_and_b32 s5, s3, {ng-1}\ns_lshl_b32 s5, s5, {lg(C)}\ns_and_b32 s6, s4, {C-1}\ns_add_u32 s{S_J}, s5, s6")
    e(f"s_lshr_b32 s5, s3, {lg(ng)}\ns_lshl_b32 s5, s5, {lg(R)}\ns_lshr_b32 s6, s4, {lg(C)}\ns_add_u32 s{S_I}, s5, s6")
    e(f"v_lshlrev_b32 v{VL16}, 4, v2")
    e(f"v_bfe_u32 v3, v2, 2, 3\nv_and_b32 v{TM}, 3, v2\nv_lshlrev_b32 v{TM}, 4, v{TM}\nv_lshrrev_b32 v{TM+1}, 5, v2\nv_lshl_add_u32 v{TM+1}, v{TM+1}, 6, v{TM}")
    e(f"s_mul_i32 s{S_WB}, s{S_WV}, 9216")
    e(f"s_and_b32 s3, s{S_J}, 1\ns_mul_i32 s6, s{S_J}, 576\ns_lshl_b32 s7, s3, 6\ns_add_u32 s{S_CP}, s6, s7")
    e(f"s_and_b32 s4, s{S_WV}, 1\ns_mul_i32 s5, s4, {72*9216}\ns_add_u32 s{S_CP}, s{S_CP}, s5")
    e(f"v_mul_u32_u24 v1, 9216, v3\nv_add_u32 v{V1}, v1, v{TM+1}")
    for i in range(1, 9): e(f"v_add_u32 v{V1+i}, {8*i*9216 - (i%3)*1024}, v{V1}")
    e(f"s_lshl_b32 s5, s{S_I}, 2\ns_add_u32 s5, s5, s{S_WV}\ns_mul_i32 s{S_XO}, s5, 36864\ns_add_u32 s{S_XH}, s{S_XO}, {WS_HC}")
    e(f"v_lshrrev_b32 v1, 5, v2\nv_lshlrev_b32 v1, 8, v1\nv_bfe_u32 v{T}, v2, 2, 2\nv_lshl_add_u32 v1, v{T}, 6, v1")
    e(f"v_bfe_u32 v{T}, v2, 4, 1\nv_lshl_add_u32 v1, v{T}, 5, v1\nv_and_b32 v{T}, 3, v2\nv_lshl_add_u32 v{TRB}, v{T}, 3, v1")
    for i in range(1, 4): e(f"v_add_u32 v{TRB+i}, {i*SLOT}, v{TRB}")
    if not fused:
        e("s_waitcnt lgkmcnt(0)")
        e(f"s_cmp_lt_u32 s{S_WV}, 2\ns_cselect_b32 s40, s40, s42\ns_cselect_b32 s41, s41, s43")
    srd(e, S_W, 40, 576*4608*2)
    srd(e, S_HC, 46, WS_BYTES)

    NST = 27
    def dma_instrs(st, inbody=False):
        slot = st % 4
        L = []
        def grp(g, so, vs, sr):
            if so: L.append((so, False))
            L.append((f"s_add_u32 m0, s{S_WB}, {slot*SLOT + g*3072}", False))
            for k in range(3):
                L.append((f"buffer_load_dwordx4 v{vs[k]}, s[{sr}:{sr+3}], s{sreg} offen" + (f" offset:{k*1024}" if k else "") + " lds", True))
        sreg = S_SO
        if inbody and st < 18:
            sreg = {14: S_A0, 15: S_A1, 16: S_B0, 17: S_B1}[st]; vb = V1 if st < 16 else VB
            for g in range(3): grp(g, None, [vb+3*g, vb+3*g+1, vb+3*g+2], S_W)
            L.append((f"s_add_u32 s{sreg}, s{sreg}, 128", False))
        elif st < 16:
            p, q = st // 4, st % 4
            for g in range(3):
                grp(g, f"s_add_u32 s{S_SO}, s{S_CP}, {p*128 + q*144*9216}" if g == 0 else None, [V1+3*g, V1+3*g+1, V1+3*g+2], S_W)
        elif st < 24:
            k = st - 18; b = S_OWN if k < 3 else S_PAR; o = (k % 3)*64*1152
            grp(0, f"s_add_u32 s{S_SO}, s{b}, {o}", [VE, VE+1, VE+2], S_WD)
            grp(1, f"s_add_u32 s{S_SO}, s{b}, {o + 8*1152}", [VE, VE+1, VE+2], S_WD)
            grp(2, f"s_add_u32 s{S_SO}, s{b}, {o + 384}", [VE, VP1, VS], S_WD)
        else:
            ls = st - 24
            for g, (b, o) in enumerate(((S_OWN, 3*64*1152), (S_PAR, 3*64*1152), (S_SNG, 0))):
                grp(g, f"s_add_u32 s{S_SO}, s{b}, {o + 128*ls}", [VE, VP1, VS+1+ls], S_WD)
        return L
    def emit_list(L):
        n = 0; prev_m0 = False
        for t, tag in L:
            if tag:
                if prev_m0: e("s_nop 0"); n += 1
                e.vmem(t, tag); prev_m0 = False
            else:
                e(t); prev_m0 = "m0" in t
            n += 1
        return n
    def xload_instrs(s):
        L = []
        if s % 4 == 0: L.append((f"s_add_u32 s{S_XS}, s{S_XH}, {s*1024}", None))
        L.append((f"buffer_load_dwordx4 a[{4*s}:{4*s+3}], v{VL16}, s[{S_HC}:{S_HC+3}], s{S_XS} offen" + (f" offset:{(s%4)*1024}" if s % 4 else "") + xf, ("x", s)))
        return L
    if not fused:
        emit_list(xload_instrs(0))
        emit_list([(t, ("dma", 0) if d else None) for t, d in dma_instrs(0)])
        emit_list(xload_instrs(1)); emit_list(xload_instrs(2))
    else:
        e.vm = []; e.vm_done = 0; e.lg = []; e.lg_done = 0

    q = Queue(e, window=10)
    def emit_op(o, _orig=e.op):
        if callable(o.text):
            o.text(); o.pos = e.n - 1; return o
        return _orig(o)
    e.op = emit_op
    chl = [None]
    def chain(text, first_deps=()):
        prev = None
        for l in text.split("\n") if isinstance(text, str) else text:
            if isinstance(l, str):
                l = l.strip()
                if not l: continue
            deps = [(prev, 0)] if prev else list(first_deps) + ([(chl[0], 0)] if chl[0] and chl[0].pos is None else [])
            cost = 2 if isinstance(l, str) and re.match(r"v_(rcp|sqrt|exp|permlane)", l) else 1
            prev = q.add(Op(l, cost=cost, deps=deps))
        chl[0] = prev
        return prev
    e(f"s_lshl_b32 s{S_SS}, s5, 8\nv_and_b32 v{VZ}, 31, v2\nv_lshlrev_b32 v{VZ}, 3, v{VZ}\nv_lshrrev_b32 v1, 5, v2\nv_mul_u32_u24 v1, {6*16384}, v1\nv_add_u32 v{VZ}, v{VZ}, v1")
    srd(e, S_WD, 44, 4608*576*2 + 4096, -4096)
    e(f"s_xor_b32 s7, s3, 1\ns_lshl_b32 s7, s7, 9\ns_add_u32 s{S_CS}, s6, s7\ns_mul_i32 s4, s4, {144*9216}\ns_add_u32 s{S_CS}, s{S_CS}, s4")
    e(f"v_lshrrev_b32 v1, 2, v2\nv_mul_u32_u24 v{T}, 9216, v1\nv_add_u32 v{V3}, v{T}, v{TM}")
    e(f"s_lshl_b32 s4, s3, 6\ns_mul_i32 s5, s{S_WV}, {16*1152}\ns_add_u32 s5, s5, 4096\ns_add_u32 s{S_TMP}, s5, s4")
    e(f"v_mul_u32_u24 v{T}, 1152, v3\nv_add3_u32 v{VE}, v{T}, v{TM+1}, s{S_TMP}\nv_subrev_u32 v{VE+1}, {1024-128}, v{VE}\nv_subrev_u32 v{VE+2}, {2048-256}, v{VE}\nv_add_u32 v{VP1}, {8*1152-1024}, v{VE}")
    e(f"v_mul_u32_u24 v{T}, 1152, v1\nv_add_u32 v{T}, v{T}, v{TM}\ns_add_u32 s5, s5, s7")
    e(f"s_sub_u32 s7, s5, {2048+384}\nv_add_u32 v{VS}, s7, v{T}\ns_sub_u32 s7, s5, {2048+256}\nv_add_u32 v{VS+3}, s7, v{T}")
    e(f"s_sub_u32 s7, s{S_TMP}, {2048-384}\nv_add_u32 v{VS+1}, s7, v{T}\ns_sub_u32 s7, s{S_TMP}, {2048-320}\nv_add_u32 v{VS+2}, s7, v{T}")
    e(f"""s_lshr_b32 s5, s{S_J}, 1
s_mul_i32 s6, s5, {576*1152}
s_mul_i32 s7, s3, 576
s_add_u32 s6, s6, s7
s_mul_i32 s7, s3, {320*1152}
s_add_u32 s{S_OWN}, s6, s7
s_add_u32 s{S_PAR}, s6, {320*1152}
s_sub_u32 s{S_PAR}, s{S_PAR}, s7
s_lshl_b32 s7, s3, 1
s_xor_b32 s7, s7, s{S_WV}
s_sub_u32 s7, s7, s{S_WV}
s_add_u32 s7, s7, 16
s_mul_i32 s7, s7, {16*1152}
s_add_u32 s{S_SNG}, s6, s7""")
    e(f"""s_mul_i32 s5, s5, {ACT_BYTES}
s_add_u32 s5, s5, s{S_XO}
s_add_u32 s5, s5, {WS_PART}
s_mul_i32 s6, s3, {20*1024}
s_add_u32 s{S_PO}, s5, s6
s_lshl_b32 s6, s3, 11
s_add_u32 s6, s6, {16*1024}
s_add_u32 s{S_PS}, s5, s6""")
    e(f"""s_lshl_b32 s5, s{S_I}, 4
s_add_u32 s5, s5, s{S_J}
s_lshl_b32 s5, s5, 2
s_add_u32 s5, s5, s{S_WV}
s_xor_b32 s6, s5, 4
s_mul_i32 s{S_GW}, s5, 18432
s_mul_i32 s{S_GR}, s6, 18432
s_lshl_b32 s{S_FW}, s5, 6
s_lshl_b32 s{S_FR}, s6, 6
s_add_u32 s{S_GW}, s{S_GW}, {WS_GX}
s_add_u32 s{S_GR}, s{S_GR}, {WS_GX}
s_add_u32 s{S_FW}, s{S_FW}, {WS_FL}
s_add_u32 s{S_FR}, s{S_FR}, {WS_FL}
s_mov_b32 s{S_GO}, s{S_GW}
s_add_u32 s{S_A0}, s{S_CP}, {128 + 288*9216}
s_add_u32 s{S_A1}, s{S_CP}, {128 + 432*9216}
s_add_u32 s{S_B0}, s{S_CP}, 256
s_add_u32 s{S_B1}, s{S_CP}, {256 + 144*9216}
s_mov_b32 s{S_CNT}, 0""")
    for i in range(9): e(f"v_mov_b32 v{VB+i}, v{V1+i}")
    if wdpf:
        e(f"s_mul_i32 s5, s{S_WV}, 42\nv_add_u32 v1, s5, v2\nv_lshlrev_b32 v1, 7, v1\nv_cmp_gt_u32 s[54:55], 14, v2\nv_mov_b32 v{VPF}, 0x40000000")
        e(f"s_mul_i32 s5, s{S_I}, 18\ns_mul_i32 s6, s{S_J}, 288\ns_add_u32 s5, s5, s6\ns_mul_i32 s{S_PF}, s5, 1152\ns_add_u32 s{S_PF}, s{S_PF}, 4096\nv_cndmask_b32 v{VPF}, v{VPF}, v1, s[54:55]")

    c = 0.7978845608028654; l2e = 1.4426950408889634
    k1 = -2*c*l2e; k2 = k1*0.044715
    M = []
    for p in range(4):
        for ks in range(36):
            qq, s = ks // 9, ks % 9
            for uu in range(2):
                for mat in range(2):
                    o = (mat*18 + 2*s)*1024 + uu*512
                    M.append(dict(acc=f"v{ACC + 32*uu + 16*mat}", dst=f"v{OLD + 32*uu + 16*mat}" if ks == 35 else None, b=f"a[{4*ks}:{4*ks+3}]",
                                  first=(ks == 0), last=(ks == 35), st=4*p+qq, rd=(o, o + 1024), xs=ks if p == 0 else None, unit=2*p+uu, mat=mat, ph=1))
        t = M[-8:]; M[-8:] = [t[0], t[1], t[4], t[5], t[2], t[3], t[6], t[7]]
    for ks in range(36):
        qq, s = ks // 18, ks % 18
        for mat in range(2):
            o = (mat*18 + s)*1024
            M.append(dict(acc=f"v{ACC + 16*mat}", dst=None, b=f"a[{4*ks}:{4*ks+3}]", first=(ks == 0), last=(ks == 35), st=16+qq, rd=(o, o + 512), xs=None, unit=8, mat=mat, ph=1))
    tacc = {0: "a0", 1: "a16", 6: "a32", 2: "a48", 3: "a64", 7: "a80", 4: "a96", 5: f"v{ACC+32}", 8: f"v{ACC+48}"}
    def eoff(t):
        if t == 8: return (8*1024, 8*1024 + 512)
        cp, uu = t >> 1, t & 1
        return ((cp*1024 + uu*512, (3 + cp)*1024 + uu*512) if cp < 3 else (6*1024 + uu*512, 7*1024 + uu*512))
    for k in range(6):
        for w in range(4):
            g = (f"a[{GO+16*k+4*w}:{GO+16*k+4*w+3}]", ("go", 4*k + w)) if k < 3 else (f"v[{GP+16*(k-3)+4*w}:{GP+16*(k-3)+4*w+3}]", ("gp", 4*(k-3) + w))
            for t in range(9):
                o = eoff(t)
                M.append(dict(acc=tacc[t], dst=None, b=g[0], gsrc=g[1], first=(k == 0 and w == 0), last=False, st=18+k, rd=(w*9216 + o[0], w*9216 + o[1]), xs=None, tile=t, ph=2))
    lateks = [(0, w, f"v[{GT+4*w}:{GT+4*w+3}]", ("cv", 12 + w)) for w in range(4)] + [(2, w, f"v[{GS+4*w}:{GS+4*w+3}]", ("cv", 16 + w)) for w in range(2)] + \
             [(1, w, f"a[{GP3+4*w}:{GP3+4*w+3}]", ("gp", 12 + w)) for w in range(4)] + [(2, 2 + w, f"a[{GPS+4*w}:{GPS+4*w+3}]", ("gp", 16 + w)) for w in range(2)]
    for ls in range(3):
        tiles = [2*ls, 2*ls + 1, 6 + ls]
        if ls == 0 and late0 == "own":
            order = [(t, k) for k in range(6) for t in tiles] + [(t, k) for t in tiles for k in range(6, 12)]
        else:
            order = [(t, k) for t in tiles for k in range(12)]
        for t, k in order:
            gi, w, b, src = lateks[k]
            base = w*9216 + gi*3072
            rd = (base + (t & 1)*512, base + 1024 + (t & 1)*512) if t < 6 else (base + 2048, base + 2048 + 512)
            M.append(dict(acc=tacc[t], dst=None, b=b, gsrc=src, first=False, last=(k == 11), st=24+ls, rd=rd, xs=None, tile=t, ph=2))
    NM = len(M); assert NM == 972
    LA = 8
    def rng(r, n=16):
        return f"{r[0]}[{int(r[1:])}:{int(r[1:])+n-1}]"

    gdone = {}; tstate = {"last": [None, None]}; pairctr = [0]
    oldbusy = {}
    memq = []
    def add_gelu(unit, gacc, uacc, mg, mu, inbody):
        gb = GS if unit == 8 else GT + 8*(unit & 1)
        for k in range(8):
            ts = pairctr[0] % 2; pairctr[0] += 1
            ta, tb = T + 2*ts, T + 2*ts + 1
            ga, gb_, ua, ub = gacc + 2*k, gacc + 2*k + 1, uacc + 2*k, uacc + 2*k + 1
            prev = tstate["last"][ts]
            d0 = [(mg, 13)] + ([(prev, 0)] if prev else [])
            sa = q.add(Op(f"v_mul_f32 v{ta}, v{ga}, v{ga}", deps=d0))
            sb = q.add(Op(f"v_mul_f32 v{tb}, v{gb_}, v{gb_}", deps=d0))
            fa = q.add(Op(f"v_fma_f32 v{ta}, v{ta}, v{VK2}, v{VK1}", deps=[(sa, 0)]))
            fb = q.add(Op(f"v_fma_f32 v{tb}, v{tb}, v{VK2}, v{VK1}", deps=[(sb, 0)]))
            aa = q.add(Op(f"v_mul_f32 v{ta}, v{ga}, v{ta}", deps=[(fa, 0)]))
            ab = q.add(Op(f"v_mul_f32 v{tb}, v{gb_}, v{tb}", deps=[(fb, 0)]))
            ea = q.add(Op(f"v_exp_f32 v{ta}, v{ta}", cost=2, deps=[(aa, 0)]))
            pa = q.add(Op(f"v_mul_f32 v{ua}, v{ga}, v{ua}", deps=[(mg, 13), (mu, 13)]))
            eb = q.add(Op(f"v_exp_f32 v{tb}, v{tb}", cost=2, deps=[(ab, 0)]))
            pb = q.add(Op(f"v_mul_f32 v{ub}, v{gb_}, v{ub}", deps=[(mg, 13), (mu, 13)]))
            da = q.add(Op(f"v_fma_f32 v{ta}, v{ta}, v{VS2}, v{VS2}", deps=[(ea, 1)]))
            db = q.add(Op(f"v_fma_f32 v{tb}, v{tb}, v{VS2}, v{VS2}", deps=[(eb, 1)]))
            ra = q.add(Op(f"v_rcp_f32 v{ta}, v{ta}", cost=2, deps=[(da, 0)]))
            rb = q.add(Op(f"v_rcp_f32 v{tb}, v{tb}", cost=2, deps=[(db, 0)]))
            ya = q.add(Op(f"v_mul_f32 v{ta}, v{ua}, v{ta}", deps=[(ra, 1), (pa, 0)]))
            yb = q.add(Op(f"v_mul_f32 v{tb}, v{ub}, v{tb}", deps=[(rb, 1), (pb, 0)]))
            cv = q.add(Op(f"v_cvt_pk_bf16_f32 v{gb + k}, v{ta}, v{tb}", deps=[(ya, 0), (yb, 0)]))
            tstate["last"][ts] = cv
            fi = 2*unit + k//4
            gdone.setdefault(fi, []).append(cv)
            oldbusy.setdefault(f"v{gacc}", []).append(cv); oldbusy.setdefault(f"v{uacc}", []).append(cv)
            if k % 4 == 3:
                r = gb + k - 3
                L = []
                if unit == 8 and k == 3: L.append((f"s_add_u32 s{S_GO}, s{S_GO}, 4096", None))
                off = (fi % 4)*1024
                L.append((f"buffer_store_dwordx4 v[{r}:{r+3}], v{VL16}, s[{S_GX}:{S_GX+3}], s{S_GO} offen" + (f" offset:{off}" if off else "") + gst, ("gs", fi)))
                if nogs and unit < 6: L = [("s_nop 0", None)]
                memq.append(dict(deps=list(gdone[fi]), L=L))
    outn = [0]
    outbusy = [[], [], [], []]
    def add_out(t, acc, mo):
        def cv(i, deps): return q.add(Op(f"v_cvt_pk_bf16_f32 v{r+i}, v{r+2*i}, v{r+2*i+1}", deps=deps))
        prev = None; cvs = []
        if acc[0] == "a":
            bi = outn[0] % 4; outn[0] += 1
            assert all(x.get("done") for x in outbusy[bi])
            r = OLD + 16*bi; a = int(acc[1:])
            for i in range(8):
                r0 = q.add(Op(f"v_accvgpr_read_b32 v{r+2*i}, a{a+2*i}", deps=[(mo, 13)]))
                r1 = q.add(Op(f"v_accvgpr_read_b32 v{r+2*i+1}, a{a+2*i+1}", deps=[(mo, 13)]))
                prev = cv(i, [(r0, 0), (r1, 0)] + ([(prev, 0)] if prev else [])); cvs.append(prev)
        else:
            bi = None; r = int(acc[1:])
            for i in range(8):
                prev = cv(i, [(mo, 13)] + ([(prev, 0)] if prev else [])); cvs.append(prev)
        new = []
        for h in range(2):
            L = []
            so = S_PS if t == 8 else S_TMP
            if t != 8 and h == 0: L.append((f"s_add_u32 s{S_TMP}, s{S_PO}, {t*2048}", None))
            L.append((f"buffer_store_dwordx4 v[{r+4*h}:{r+4*h+3}], v{VL16}, s[{S_PT}:{S_PT+3}], s{so} offen" + (f" offset:1024" if h else "") + store_flags, ("store", t - 6 if t >= 6 else t >> 1)))
            x = dict(deps=[cvs[4*h+3]], L=L); memq.append(x); new.append(x)
        if bi is not None: outbusy[bi] = new
    def pop_mem():
        y = memq.pop(0); y["done"] = True
        return emit_list(y["L"])
    def mem_ready():
        return memq and all(d.pos is not None for d in memq[0]["deps"])
    def reads(m):
        d = M[m]; fr = FR + 4*(m % 12); vb = TRB + d["st"] % 4
        e.ds(f"ds_read_b64_tr_b16 a[{fr}:{fr+1}], v{vb} offset:{d['rd'][0]}", m)
        e.ds(f"ds_read_b64_tr_b16 a[{fr+2}:{fr+3}], v{vb} offset:{d['rd'][1]}", m)

    early = []
    for s_ in range(0 if fused else 3, 36): early.append((4*s_ - (4 if s_ == 35 else 0), xload_instrs(s_)))
    for st in (() if fused else (1, 2, 3)):
        grp = []; k = 0
        for t, isd in dma_instrs(st):
            grp.append((t, ("dma", st) if isd else None))
            if isd:
                early.append((36*st - 8 - 3*(8-k) - 1, grp)); grp = []; k += 1
    for g in range(6):
        early.append((112 + g, [(f"s_add_u32 s{S_TMP}, s{S_SS}, {WS_ST + g*16384}", None),
                                (f"buffer_load_dwordx2 v[{TM+2+2*g}:{TM+3+2*g}], v{VZ}, s[{S_ST}:{S_ST+3}], s{S_TMP} offen" + xf, "st")]))
    early.sort(key=lambda x: x[0])
    def emit_early():
        return emit_list(early.pop(0)[1])
    def stats_ops():
        b = TM + 2
        inv = hex(f2u(1.0/576))
        txt = [lambda: e.wait_vm(lambda t: t == "st")] + f"""v_add_f32 v{b}, v{b}, v{b+2}
v_add_f32 v{b+1}, v{b+1}, v{b+3}
v_add_f32 v{b+4}, v{b+4}, v{b+6}
v_add_f32 v{b+5}, v{b+5}, v{b+7}
v_add_f32 v{b+8}, v{b+8}, v{b+10}
v_add_f32 v{b+9}, v{b+9}, v{b+11}
v_add_f32 v{b}, v{b}, v{b+4}
v_add_f32 v{b+1}, v{b+1}, v{b+5}
v_add_f32 v{b}, v{b}, v{b+8}
v_add_f32 v{b+1}, v{b+1}, v{b+9}
v_mov_b32 v{b+2}, v{b}
v_mov_b32 v{b+3}, v{b+1}
v_mov_b32 v{VONE}, 1
v_mov_b32 v{VONE+1}, 2
v_permlane32_swap_b32 v{b}, v{b+2}
v_permlane32_swap_b32 v{b+1}, v{b+3}
v_mov_b32 v{VZ}, 0
v_add_f32 v{b}, v{b}, v{b+2}
v_add_f32 v{b+1}, v{b+1}, v{b+3}
v_mul_f32 v{b}, {inv}, v{b}
v_mul_f32 v{b+1}, {inv}, v{b+1}
v_fma_f32 v{b+1}, -v{b}, v{b}, v{b+1}
v_max_f32 v{b+1}, 0, v{b+1}
v_cvt_pk_bf16_f32 v{b+1}, v{b+1}, v{b+1}
v_and_b32 v{b+1}, 0xffff0000, v{b+1}
v_add_f32 v{b+1}, {hex(f2u(1e-5))}, v{b+1}
v_cvt_pk_bf16_f32 v{b+1}, v{b+1}, v{b+1}
v_and_b32 v{b+1}, 0xffff0000, v{b+1}
v_sqrt_f32 v{b+1}, v{b+1}
s_nop 0
v_cvt_pk_bf16_f32 v{b+1}, v{b+1}, v{b+1}
v_and_b32 v{b+1}, 0xffff0000, v{b+1}
v_rcp_f32 v{b}, v{b+1}
v_mul_f32 v{VS2}, v{b+1}, v{b+1}
v_mul_f32 v{VK1}, {hex(f2u(k1))}, v{b}
v_mul_f32 v{b+1}, v{b}, v{b}
v_mul_f32 v{b}, {hex(f2u(k2))}, v{b}
v_mul_f32 v{VK2}, v{b}, v{b+1}""".split("\n")
        chain(txt)
    spins = []
    def poll_check(val, name):
        e.wait_vm(lambda t: t == "poll" + name)
        e(f"v_readfirstlane_b32 s{S_TMP}, v{VF}\ns_nop 1\ns_cmp_ge_u32 s{S_TMP}, {val}\ns_cbranch_scc0 K3_spin{name}\nK3_ret{name}:")
        spins.append((name, val))
    def gload(kind, fi):
        L = []
        base = S_GW if kind == "go" else S_GR
        if fi % 4 == 0: L.append((f"s_add_u32 s{S_XS}, s{base}, {fi*1024}", None))
        if kind == "go": dst = f"a[{GO+4*fi}:{GO+4*fi+3}]"
        elif fi < 12: dst = f"v[{GP+4*fi}:{GP+4*fi+3}]"
        elif fi < 16: dst = f"a[{GP3+4*(fi-12)}:{GP3+4*(fi-12)+3}]"
        else: dst = f"a[{GPS+4*(fi-16)}:{GPS+4*(fi-16)+3}]"
        L.append((f"buffer_load_dwordx4 {dst}, v{VL16}, s[{S_GX}:{S_GX+3}], s{S_XS} offen" + (f" offset:{(fi%4)*1024}" if fi % 4 else "") + (old if kind == "go" else gld), (kind, fi)))
        return L
    ldq = []
    def flag_store(val):
        e.vmem(f"buffer_store_dword v{VONE+val-1}, v{VZ}, s[{S_FL}:{S_FL+3}], s{S_FW} offen sc0 sc1", "flag")
    def poll_issue(name):
        e.vmem(f"buffer_load_dword v{VF}, v{VZ}, s[{S_FL}:{S_FL+3}], s{S_FR} offen sc0 sc1", "poll" + name)
    actions = {}
    def act1():
        e.wait_vm(lambda t: t and t[0] == "gs" and t[1] < 12); flag_store(1); return 3
    actions[f1[0]] = act1
    actions[f1[1]] = lambda: poll_issue("A") or 2
    actions[f1[2]] = lambda: poll_check(1, "A") or ldq.extend(gload("gp", fi) for fi in range(12)) or 5
    def act2pre():
        q.drain()
        while memq: pop_mem()
        return 1
    def act2():
        e.wait_vm(lambda t: t and t[0] == "gs"); flag_store(2); return 2
    actions[f2[0]] = act2pre
    actions[f2[1]] = act2
    actions[f2[2]] = lambda: poll_issue("B") or 1
    actions[f2[3]] = lambda: poll_check(2, "B") or ldq.extend(gload("gp", fi) for fi in range(12, 18)) or 5

    VPA = 48; VLZ = 49; VRA = 50; VRO = 53
    def apoll(sreg, val=0):
        return f"v_mov_b32 v{VF}, {val}\nbuffer_atomic_add v{VF}, v{VLZ}, s[{S_FL}:{S_FL+3}], s{sreg} offen sc0 sc1"
    if not fused:
        emit_early(); emit_early(); emit_early()
        e.wait_vm(lambda t: t == ("dma", 0))
        e("s_barrier")
        for m in range(LA): reads(m)
        emit_early(); emit_early()
    else:
        e(f"s_lshl_b32 s5, s{S_I}, 2\ns_add_u32 s5, s5, s{S_WV}\ns_lshl_b32 s24, s5, 8\ns_add_u32 s24, s24, {WS_FA}")
        e(f"v_cmp_eq_u32 vcc, 0, v2\nv_mov_b32 v{VONE}, 1\nv_mov_b32 v1, 0x40000000\nv_mov_b32 v{VPA}, 0x100\nv_cndmask_b32_e64 v{VLZ}, v1, 0, vcc")
        tm.stamp(-10)
        e(f"s_waitcnt vmcnt({fused['nleft']})")
        tm.stamp("A0")
        e(f"s_cmp_lt_i32 s23, 0\ns_cbranch_scc1 K3_ns\nbuffer_atomic_add v{VONE}, v{VLZ}, s[{S_FL}:{S_FL+3}], s23 offen sc1\nK3_ns:")
        e("s_barrier")
        LL = [(t, ("dma", st) if d else None) for st in (2, 3) for t, d in dma_instrs(st)]
        k_ = [i for i, (t, d) in enumerate(LL) if d][na-1] + 1
        emit_list(LL[:k_])
        for m in range(LA): reads(m)
        e(f"""s_and_b32 s6, s{S_J}, 1
s_lshl_b32 s25, s5, 1
s_add_u32 s25, s25, s6
s_lshl_b32 s25, s25, 8
s_add_u32 s25, s25, {WS_FB}
s_lshr_b32 s7, s{S_J}, 1
s_mul_i32 s7, s7, 24
v_and_b32 v{T}, 31, v2
v_cmp_gt_u32 s[54:55], 24, v{T}
v_add_u32 v{T}, s7, v{T}
v_lshrrev_b32 v{T+1}, 5, v{T}
v_and_b32 v{T}, 31, v{T}
v_lshrrev_b32 v{T+2}, 5, v2
v_cmp_lt_u32 vcc, 3, v{T+1}
v_mul_u32_u24 v{T+3}, 1152, v{T}
v_lshl_add_u32 v{T+3}, v{T+2}, 4, v{T+3}
v_lshl_add_u32 v{T}, v{T+2}, 5, v{T}
v_lshlrev_b32 v{T}, 4, v{T}
v_cndmask_b32 v{T}, v1, v{T}, s[54:55]
v_cndmask_b32 v{T+3}, v1, v{T+3}, s[54:55]
s_mul_i32 s7, s6, 20
v_add_u32 v{T+1}, s7, v{T+1}
s_mul_i32 s6, s6, -18
s_add_u32 s6, s6, 12
v_mov_b32 v3, s6""" + "".join(f"""
v_cndmask_b32_e64 v{T+2}, {4*g}, {('v3' if g == 2 else 8 + 2*g)}, vcc
v_add_u32 v{T+2}, v{T+2}, v{T+1}
v_lshl_add_u32 v{VRA+g}, v{T+2}, 10, v{T}
v_lshl_add_u32 v{VRO+g}, v{T+2}, 5, v{T+3}""" for g in range(3)))
        tm.stamp("A1")
        e(apoll(24))
        emit_list(LL[k_:])
        rd = f"v_readfirstlane_b32 s5, v{VF}\ns_nop 1"
        e(f"s_waitcnt vmcnt({18-na})\n{rd}\ns_cmp_ge_u32 s5, 12\ns_cbranch_scc1 K3_pdA\nK3_plA:\n{apoll(24)}\ns_waitcnt vmcnt(0)\n{rd}")
        e(f"s_cmp_ge_u32 s5, 12\ns_cbranch_scc1 K3_pdA\ns_cmp_lg_u32 s5, 0\ns_cbranch_scc1 K3_plA\ns_sleep {slp}\ns_branch K3_plA\nK3_pdA:")
        tm.stamp(-11)
        e.vm = [("dma", k//9) for k in range(36)]; e.vm_done = 18 + na
        for _ in range(8): emit_early()
        HR = GP
        def hl(k):
            if k == 0: e(f"s_add_u32 s{S_XS}, s{S_XO}, {WS_HT}")
            e.vmem(f"buffer_load_dwordx4 v[{HR+4*k}:{HR+4*k+3}], v{VRA+k}, s[{S_HC}:{S_HC+3}], s{S_XS} offen sc0 sc1", "h"); return 2
        for k in range(3): actions[hpre + 4*k] = (lambda k=k: hl(k))
        def sigB(g):
            assert sum(1 for t in e.vm if t == ("store", g)) == 6
            e.wait_vm(lambda t: t == ("store", g))
            e.vmem(f"buffer_atomic_add v{VONE if g == 0 else VPA}, v{VLZ}, s[{S_FL}:{S_FL+3}], s25 offen sc1", "flag"); return 3
        if sig0: actions[sig0] = lambda: sigB(0)
    lastm = {}
    e.wait_lg(lambda t: t <= 3)
    B0, B1, HD = 136, 568, 7
    st8 = dict(dmaq=[], dma_st=None, stats=False, lastld=-100, qempty=None)
    godone = {}
    def moves(p):
        prev = None
        for i in range(16):
            prev = q.add(Op(f"v_accvgpr_write_b32 a{GO+16*p+i}, v{GT+i}", deps=[(prev, 0)] if prev else []))
            godone.setdefault(4*p + i//4, []).append(prev)
        return prev
    def dma_due(m, mr, left, dmaq):
        if m < B0 or dsp == 0: return mr % 2 == 1 or len(dmaq) >= left//2 + 1
        if len(dmaq) >= left: return True
        nd = sum(1 for _, isd in dmaq if isd)
        if not dmaq[0][1]:
            return nd == 0 or left <= (nd - 1)*dsp + dtail + 2
        return left <= (nd - 1)*dsp + dtail
    def gap(m, inbody, fillall=False):
        d = M[m]
        dmaq = st8["dmaq"]
        deps = []
        if d["xs"] is not None and m < B0:
            while not any(t == ("x", d["xs"]) for t in e.vm): emit_early()
            e.wait_vm(lambda t: t == ("x", d["xs"]))
        if d["ph"] == 2:
            kind, fi = d["gsrc"]
            if kind == "cv":
                for o in gdone[fi]:
                    if o.pos is None: q.drain_until(o)
                    deps.append((o, 2))
            elif kind == "gp":
                while not any(t == (kind, fi) for t in e.vm):
                    assert ldq, (m, kind, fi)
                    emit_list(ldq.pop(0))
                e.wait_vm(lambda t: t == (kind, fi))
        if d["dst"]:
            for o in oldbusy.get(d["dst"], []):
                if o.pos is None: q.drain_until(o)
            oldbusy[d["dst"]] = []
        fr = FR + 4*(m % 12)
        cs = "0" if d["first"] else rng(d["acc"])
        mo = e.op(Op(f"v_mfma_f32_32x32x16_bf16 {rng(d['dst'] or d['acc'])}, a[{fr}:{fr+3}], {d['b']}, {cs}", deps=deps))
        used = 0
        if timing and not fillall: tm.stamp(m) if fused else (tm.stamp(STAMPS.index(m)) if m in STAMPS else None)
        if d["last"]:
            if d["ph"] == 1:
                lastm[(d["unit"], d["mat"])] = mo
                if d["mat"] == 1:
                    a = int((d["dst"] or d["acc"])[1:])
                    pend_gelu.append((d["unit"], a - 16, a, lastm[(d["unit"], 0)], mo))
            else:
                add_out(d["tile"], d["acc"], mo)
        if not fillall:
            while pend_gelu: add_gelu(*pend_gelu.pop(0), inbody)
        mr = m + LA
        isbar = mr < NM and mr % 36 == 0
        if isbar:
            st = mr // 36
            assert not dmaq
            while st <= 3 and sum(1 for t in e.vm if t == ("dma", st)) < 9: emit_early()
            if e.wait_vm(lambda t: t == ("dma", st)): used += 1
            e("s_barrier"); used += 2
            if 4 <= st + 2 < NST:
                dmaq.extend(dma_instrs(st + 2, inbody)); st8["dma_st"] = st + 2
        if mr < NM:
            reads(mr); used += 2
        if not isbar and not fillall:
            early_dma = any(tag and tag[0] == "dma" for _, L in early for _, tag in L)
            left = 35 - mr % 36
            if m < B0 and dmaq and not early_dma and not dmaq[0][1]:
                while dmaq and not dmaq[0][1]:
                    e(dmaq.pop(0)[0]); used += 1
                if early and early[0][0] - lead <= m: used += emit_early()
            elif early and (early[0][0] - lead <= m or (early_dma and dmaq)) and not (dmaq and not early_dma and len(dmaq) >= left - 2):
                used += emit_early()
            elif dmaq and not early_dma and dma_due(m, mr, left, dmaq) and not (m in actions and len(dmaq) < left):
                t, isd = dmaq.pop(0)
                if isd: e.vmem(t, ("dma", st8["dma_st"])); used += vcost
                else: e(t); used += 1
            elif m in actions:
                pass
            elif wdpf and B0 <= m < B1 and m % 144 == 60:
                e.vmem(f"buffer_load_dword v1, v{VPF}, s[{S_WD}:{S_WD+3}], s{S_PF} offen", "pf")
                e(f"s_add_u32 s{S_PF}, s{S_PF}, {14*128}"); used += 1 + vcost
            elif mem_ready():
                used += pop_mem() + vcost - 1
            elif ldq and m - st8["lastld"] >= (ldpace if m < f2[3] else 2):
                used += emit_list(ldq.pop(0)) + vcost - 1; st8["lastld"] = m
        if m in actions and not fillall:
            used += actions[m]()
        if not st8["stats"] and sum(1 for t in e.vm if t == "st") == 6 and m >= 112:
            stats_ops(); st8["stats"] = True
        needwait = (m + 1) % 4 == 0 and m + 1 < NM
        bud = (bud2 if 576 <= m < f2[0] else budget) - used - (1 if needwait else 0)
        if B0 <= m < B1:
            rem = sum(o.cost for o in q.q); gl = 144 - (m - B0) % 144
            if rem > slack*gl: bud += 1
        if fillall: bud += 1
        if bud > 0: q.fill(bud)
        if m > 650 and not q.q and st8["qempty"] is None: st8["qempty"] = m
        if needwait: e.wait_lg(lambda t: t <= m + 4)
    pend_gelu = []
    def endpair():
        q.drain()
        while memq: pop_mem()
        assert not st8["dmaq"]
    def head(m0, p, extra=""):
        if p >= 0:
            chain(f"s_add_u32 s{S_GO}, s{S_GO}, 4096\n" + extra)
            moves(p)
        for m in range(m0, m0 + HD): gap(m, True, fillall=True)
        q.drain()
    for m in range(B0): gap(m, False)
    while early: emit_early()
    endpair()
    e.wait_vm(lambda t: t and t[0] == "x")
    mb = B1 - 144
    def seed():
        e.vm = [("dma", 12)]*9 + [("dma", 13)]*9; e.vm_done = 0
        e.lg = [mb + k//2 for k in range(16)]; e.lg_done = 8
        st8["dmaq"].clear(); pend_gelu.clear()
    main_lines = e.lines; e.lines = []
    for p, extra in ((0, ""), (1, f"s_mov_b32 s{S_B0}, s{S_CS}\ns_add_u32 s{S_B1}, s{S_CS}, {288*9216}\nv_mov_b32 v{VB}, v{V3}\n" +
                      "\n".join(f"v_add_u32 v{VB+i}, {16*i*9216 - (i%3)*1024}, v{V3}" for i in range(1, 9)))):
        e(f"K3_head{p}:")
        if fused: tm.stamp(-1-p)
        elif -1-p in STAMPS: tm.stamp(STAMPS.index(-1-p))
        seed(); head(mb, p, extra)
        e("s_branch K3_body")
    side_lines = e.lines; e.lines = main_lines
    seed(); head(mb, -1)
    e(".p2align 3\nK3_body:")
    tstate["last"] = [None, None]
    actions[mb + 40] = lambda: e(f"s_add_u32 s{S_CNT}, s{S_CNT}, 1") or 1
    for m in range(mb + HD, B1): gap(m, True)
    endpair()
    e(f"s_cmp_eq_u32 s{S_CNT}, 1\ns_cbranch_scc1 K3_head0\ns_cmp_eq_u32 s{S_CNT}, 2\ns_cbranch_scc1 K3_head1")
    chain(f"s_add_u32 s{S_GO}, s{S_GO}, 4096")
    lastmv = moves(2)
    tstate["last"] = [lastmv, lastmv]
    for m in range(B1, NM): gap(m, False)
    while q.q or memq:
        if mem_ready(): pop_mem()
        else: q.drain_until(q.q[0])
    if fused:
        tm.stamp(-12)
        srd(e, S_W, 26, ACT_BYTES)
        e(f"v_mov_b32 v14, 0x3f80\nv_mov_b32 v15, 0x3f800000")
        for j in range(NPART): e(f"s_add_u32 s{28+j}, s{S_XO}, {WS_PART + j*ACT_BYTES}" if j < 7 else f"s_add_u32 s36, s{S_XO}, {WS_PART + j*ACT_BYTES}")
        sj = lambda j: 28 + j if j < 7 else 36
        PB = 208 - 96
        def loads(k, js=range(NPART)):
            for j in js:
                r = PB + 32*k + 4*j
                e.vmem(f"buffer_load_dwordx4 v[{r}:{r+3}], v{VRA+k}, s[{S_HC}:{S_HC+3}], s{sj(j)} offen sc0 sc1", (k, j))
        def red(k):
            H = HR + 4*k; O_ = 16 + 4*k
            for j in range(NPART):
                e.wait_vm(lambda t: t == (k, j))
                for d in range(4):
                    r = PB + 32*k + 4*j + d
                    if j == 0: e(f"v_lshlrev_b32 v{6+2*d}, 16, v{r}\nv_and_b32 v{7+2*d}, 0xffff0000, v{r}")
                    else: e(f"v_dot2c_f32_bf16 v{6+2*d}, v{r}, v14\nv_dot2c_f32_bf16 v{7+2*d}, v{r}, v15")
            e("s_nop 1")
            for d in range(4): e(f"v_cvt_pk_bf16_f32 v{O_+d}, v{6+2*d}, v{7+2*d}")
            for d in range(4): e(f"v_lshlrev_b32 v{6+2*d}, 16, v{H+d}\nv_and_b32 v{7+2*d}, 0xffff0000, v{H+d}")
            for d in range(4): e(f"v_dot2c_f32_bf16 v{6+2*d}, v{O_+d}, v14\nv_dot2c_f32_bf16 v{7+2*d}, v{O_+d}, v15")
            e("s_nop 1")
            for d in range(4): e(f"v_cvt_pk_bf16_f32 v{O_+d}, v{6+2*d}, v{7+2*d}")
            e(f"s_nop 1\nv_permlane32_swap_b32 v{O_}, v{O_+2}\nv_permlane32_swap_b32 v{O_+1}, v{O_+3}\ns_nop 0")
            e.vmem(f"buffer_store_dwordx4 v[{O_}:{O_+3}], v{VRO+k}, s[{S_W}:{S_W+3}], s{S_XO} offen{of}", "o")
        def chk(g): return f"s_bfe_u32 s6, s5, {hex(8*g | 0x80000)}\ns_cmp_eq_u32 s6, 8"
        if not sig0: sigB(0)
        e(f"v_mov_b32 v{VF}, 0x100\nv_mov_b32 v3, 0x10000")
        e.wait_vm(lambda t: t == ("store", 1))
        e.vmem(f"buffer_atomic_add v{VF}, v{VLZ}, s[{S_FL}:{S_FL+3}], s25 offen sc0 sc1", "pl")
        e.wait_vm(lambda t: t == ("store", 2))
        e.vmem(f"buffer_atomic_add v3, v{VLZ}, s[{S_FL}:{S_FL+3}], s25 offen sc0 sc1", "pl2")
        tm.stamp("B0")
        e.wait_vm(lambda t: t == "pl")
        e(f"{rd}\ns_add_u32 s5, s5, 0x10100")
        for g in range(3):
            e(chk(g) + f"\ns_cbranch_scc1 K3_L{g}")
            e(f"s_waitcnt vmcnt({8*g})\nv_readfirstlane_b32 s7, v3\ns_nop 1\ns_add_u32 s7, s7, 0x10000\ns_max_u32 s5, s5, s7\n{chk(g)}\ns_cbranch_scc1 K3_L{g}")
            e(f"K3_P{g}:\n{apoll(25)}\ns_waitcnt vmcnt(0)\n{rd}\n{chk(g)}\ns_cbranch_scc0 K3_P{g}\nK3_L{g}:")
            tm.stamp(["B1", "B2", -13][g])
            loads(g)
        red(0); red(1); red(2)
    tm.end("K3_end")
    e("K3_end:\ns_endpgm")
    e.lines += side_lines
    for name, val in spins:
        e(f"""K3_spin{name}:
buffer_load_dword v{VF}, v{VZ}, s[{S_FL}:{S_FL+3}], s{S_FR} offen sc0 sc1
s_waitcnt vmcnt(0)
v_readfirstlane_b32 s{S_TMP}, v{VF}
s_nop 1
s_cmp_ge_u32 s{S_TMP}, {val}
s_cbranch_scc0 K3_spin{name}
s_branch K3_ret{name}""")
    if fused: e("KB_last:\ns_endpgm")
    e(f"; gelu queue empty at gap {st8['qempty']}")
    return e.text()
if __name__ == "__main__":
    t = gen_k3()
    print(t)
```

```python
from sched import *
from layout import *
from tim import Tim
from k3 import srd
def gen_k4(timing=False):
    e = Em()
    e("s_cmp_ge_u32 s2, 256\ns_cbranch_scc1 K4_end")
    e("s_load_dwordx2 s[44:45], s[0:1], 56\ns_load_dwordx2 s[46:47], s[0:1], 72")
    tm = Tim(e, 4, timing); tm.start()
    e("s_and_b32 s3, s2, 7\ns_lshr_b32 s4, s2, 3\ns_lshr_b32 s5, s4, 2\ns_lshl_b32 s3, s3, 3\ns_add_u32 s5, s5, s3\ns_and_b32 s6, s4, 3")
    e("v_lshrrev_b32 v1, 6, v0\nv_and_b32 v2, 63, v0\ns_mul_i32 s6, s6, 9\nv_readfirstlane_b32 s7, v1\nv_lshlrev_b32 v3, 4, v2")
    e("v_and_b32 v4, 31, v2\nv_mul_u32_u24 v4, 1152, v4\nv_lshrrev_b32 v5, 5, v2\nv_lshl_add_u32 v4, v5, 4, v4")
    e("s_add_u32 s6, s6, s7\ns_mul_i32 s28, s5, 36\ns_add_u32 s28, s28, s6\ns_lshl_b32 s28, s28, 10")
    for j in range(NPART): e(f"s_add_u32 s{20+j}, s28, {WS_PART + j*ACT_BYTES}")
    e(f"s_add_u32 s28, s28, {WS_HT}")
    e("s_mul_i32 s30, s5, 36864\ns_lshl_b32 s31, s6, 5\ns_add_u32 s30, s30, s31")
    e("v_mov_b32 v14, 0x3f80\nv_mov_b32 v15, 0x3f800000")
    e(f"s_mov_b32 s10, {WS_BYTES}\ns_mov_b32 s11, 0x20000")
    e("s_waitcnt lgkmcnt(0)\ns_mov_b32 s8, s46\ns_and_b32 s9, s47, 0xffff")
    for j in range(NPART):
        e.vmem(f"buffer_load_dwordx4 v[{16+4*j}:{19+4*j}], v3, s[8:11], s{20+j} offen", j)
    H = 16 + 4*NPART
    e.vmem(f"buffer_load_dwordx4 v[{H}:{H+3}], v3, s[8:11], s28 offen", "h")
    srd(e, 16, 44, ACT_BYTES)
    tm.stamp(0)
    for j in range(NPART):
        e.wait_vm(lambda t: t == j)
        for d in range(4):
            r = 16 + 4*j + d
            if j == 0: e(f"v_lshlrev_b32 v{6+2*d}, 16, v{r}\nv_and_b32 v{7+2*d}, 0xffff0000, v{r}")
            else: e(f"v_dot2c_f32_bf16 v{6+2*d}, v{r}, v14\nv_dot2c_f32_bf16 v{7+2*d}, v{r}, v15")
    tm.stamp(1)
    e.wait_vm(lambda t: t == "h")
    e("s_nop 1")
    for d in range(4): e(f"v_cvt_pk_bf16_f32 v{16+d}, v{6+2*d}, v{7+2*d}")
    for d in range(4): e(f"v_lshlrev_b32 v{6+2*d}, 16, v{H+d}\nv_and_b32 v{7+2*d}, 0xffff0000, v{H+d}")
    for d in range(4): e(f"v_dot2c_f32_bf16 v{6+2*d}, v{16+d}, v14\nv_dot2c_f32_bf16 v{7+2*d}, v{16+d}, v15")
    e("s_nop 1")
    for d in range(4): e(f"v_cvt_pk_bf16_f32 v{16+d}, v{6+2*d}, v{7+2*d}")
    e("s_nop 1\nv_permlane32_swap_b32 v16, v18\nv_permlane32_swap_b32 v17, v19\ns_nop 0")
    e("buffer_store_dwordx4 v[16:19], v4, s[16:19], s30 offen")
    tm.end("K4_end")
    e("K4_end:\ns_endpgm")
    return e.text()
```

```python
ACT_BYTES = 2048*576*2
WS_KV   = 0
KV_BYTES = 32*19*20*4
WS_S1   = 0xC000
S1_BYTES = 2048*8
WS_ST   = 0x10000
ST_BYTES = 12*2048*8
WS_PQ   = 0x40000
WS_CS   = 0x280000
CS_BYTES = 8*1728*4
WS_MX   = 0x290000
MX_BYTES = 2048*4
WS_WB   = 0x294000
WB_BYTES = 4*4*80
WS_FL   = 0x2A0000
NZ = 2
FL_BYTES = NZ*65536
WS_FA = WS_FL + 65536
WS_FB = WS_FA + 64*256
WS_HT   = 0x300000
WS_HC   = 0x600000
WS_GX   = 0x900000
GX_BYTES = 256*4*18*1024
WS_PART = 0x1C00000
NPART = 8
WS_BYTES = 268435456
WS_FK = WS_FB + 128*256
WS_S4 = 0x298000
WS_PX = WS_PART + NPART*ACT_BYTES
```

```python
from layout import *
TBASE = 0x8000000
import os
RT = bool(os.environ.get('RT'))
class Tim:
    def __init__(self, e, k, on):
        self.e = e; self.k = k; self.on = on; self.n = 0
    def start(self):
        if self.on:
            self.e("s_memtime s[60:61]\ns_memrealtime s[62:63]")
            for i in range(12): self.e(f"s_mov_b32 s{72+2*i}, 0")
    def stamp(self, i):
        if self.on: self.e(f"{'s_memrealtime' if RT else 's_memtime'} s[{72+2*i}:{73+2*i}]")
    def end(self, endlabel, cond="v_cmp_eq_u32 vcc, 0, v0"):
        if not self.on: return
        e = self.e
        e("s_waitcnt vmcnt(0)\ns_memtime s[64:65]\ns_memrealtime s[66:67]\ns_waitcnt lgkmcnt(0)")
        e(f"s_lshl_b32 s97, s2, 6\ns_add_u32 s97, s97, {TBASE + self.k*0x10000}\nv_mov_b32 v8, s97")
        e(f"s_mov_b32 s68, s46\ns_and_b32 s69, s47, 0xffff\ns_mov_b32 s70, {WS_BYTES}\ns_mov_b32 s71, 0x20000")
        e(f"{cond}\ns_and_saveexec_b64 s[98:99], vcc\ns_cbranch_execz {endlabel}")
        e("s_sub_u32 s64, s64, s60\nv_mov_b32 v4, s62\nv_mov_b32 v5, s66\nv_mov_b32 v6, s64\nv_mov_b32 v7, " + ('1' if RT else '0') + "")
        e("buffer_store_dwordx4 v[4:7], v8, s[68:71], 0 offen")
        for j in range(3):
            for i in range(4):
                e(f"s_sub_u32 s97, s{72+2*(4*j+i)}, {0 if RT else 's60'}\nv_mov_b32 v{12+4*j+i}, s97")
            e(f"buffer_store_dwordx4 v[{12+4*j}:{15+4*j}], v8, s[68:71], 0 offen offset:{16+16*j}")
```

```python
import sys
from asmgen import kernel_header, kernel_desc
from k1 import gen_k1
from k2 import gen_k2
from k3 import gen_k3
from k4 import gen_k4
P = dict(C=2, budget=5, flags="sc1", timing=0, pf=1, extra=0, dbg=0, cpf=1, rot=0, lead=20, dup3=0, dup1=0, dup2=0, dup4=0)
K = {1: {}, 2: {}, 3: {}, 4: {}}
for kv in sys.argv[1:]:
    k, v = kv.split("=")
    if k[0] == "k" and k[2] == ".": K[int(k[1])][k[3:]] = eval(v)
    else: P[k] = v if k == "flags" else int(v)
for k_ in (1, 2, 3): K[k_].setdefault("C", P["C"])
fl = (" " + P["flags"].replace("+", " ")) if P["flags"] else ""
T = bool(P["timing"])
hdr = open("sequential_preLN__linear_attn_block__geglu_ffn__prompt.s.ref").read().split("; Override")[0]
print(hdr, end="")
print("; @launch kernel=k1_kernel grid=(256,1,1) block=(512,1,1) lds=150528")
if P["dup1"]: print("; @launch kernel=k1_kernel grid=(256,1,1) block=(512,1,1) lds=150528")
if P["dup2"]: print("; @launch kernel=k2_kernel grid=(256,1,1) block=(256,1,1) lds=160768")
print("; @launch kernel=k2_kernel grid=(256,1,1) block=(256,1,1) lds=160768")
print("; @launch kernel=k3_kernel grid=(256,1,1) block=(256,1,1) lds=147456")
if P["dup3"]: print("; @launch kernel=k3_kernel grid=(256,1,1) block=(256,1,1) lds=147456")
print("; @launch kernel=k4_kernel grid=(256,1,1) block=(576,1,1) lds=0")
if P["dup4"]: print("; @launch kernel=k4_kernel grid=(256,1,1) block=(576,1,1) lds=0")
for i in range(P["extra"]):
    print("; @launch kernel=nop_kernel grid=(256,1,1) block=(256,1,1) lds=0")
print('.amdgcn_target "amdgcn-amd-amdhsa--gfx950"\n.text')
print(kernel_header("k1_kernel") + gen_k1(timing=T, prefetch=P["pf"], dbg=P["dbg"], cpf=P["cpf"], rot=P["rot"], **K[1]) + kernel_desc("k1_kernel", 256, 100, 256))
print(kernel_header("k2_kernel") + gen_k2(timing=T, prefetch=P["pf"], **K[2]) + kernel_desc("k2_kernel", 256+200, 100, 256))
print(kernel_header("k3_kernel") + gen_k3(timing=T, store_flags=fl, **K[3]) + kernel_desc("k3_kernel", 512, 100, 256))
print(kernel_header("k4_kernel") + gen_k4(timing=T) + kernel_desc("k4_kernel", 56, 100, 56))
if P["extra"]:
    print(kernel_header("nop_kernel") + "  s_endpgm\n" + kernel_desc("nop_kernel", 8, 16, 8))
```

```python
from sched import *
from layout import *
from tim import Tim
import math
from k2 import gen_k2
from k3 import gen_k3, SLOT
class TP:
    def __init__(self, tm, ids): self.tm = tm; self.ids = ids
    def start(self): self.tm.start()
    def stamp(self, i):
        if i in self.ids: self.tm.stamp(self.ids[i])
    def end(self, *a): self.tm.end(*a)
def gen_kb(timing=False, tsel=3, K2={}, K3={}, C=2, prefetch=True):
    e = Em()
    tm = Tim(e, 3, timing)
    if tsel == 2: m2 = {i: i for i in range(9)}; m3 = {-10: 9, -11: 10, 0: 11}
    elif tsel == 3: m2 = {8: 0}; m3 = {k: i + 1 for i, k in enumerate([-10, -11, 0, 135, -2, 568, 648, 864, 971, -12, -13])}
    elif tsel == 4: m2 = {8: 0}; m3 = {k: i + 1 for i, k in enumerate(['A0', 'A1', -11, 0, 135, 971, -12, 'B0', 'B1', 'B2', -13])}
    lg = lambda x: int(math.log2(x))
    def early_setup(wv, V):
        ng = 16 // C
        L = f"""s_and_b32 s3, s2, {ng-1}
s_lshl_b32 s3, s3, {lg(C)}
s_bfe_u32 s44, s2, {hex(3 | (lg(C) << 16))}
s_add_u32 s3, s3, s44
s_mul_i32 s30, s3, 576
s_and_b32 s3, s3, 1
s_lshl_b32 s3, s3, 6
s_add_u32 s30, s30, s3
s_and_b32 s3, s{wv}, 1
s_mul_i32 s3, s3, {72*9216}
s_add_u32 s30, s30, s3
s_mul_i32 s31, s{wv}, 9216
v_bfe_u32 v{V}, v2, 2, 3
v_mul_u32_u24 v{V}, 9216, v{V}
v_and_b32 v{V+1}, 3, v2
v_lshl_add_u32 v{V}, v{V+1}, 4, v{V}
v_lshrrev_b32 v{V+1}, 5, v2
v_lshl_add_u32 v{V}, v{V+1}, 6, v{V}""".split("\n")
        L += [f"v_add_u32 v{V+i}, {8*i*9216 - (i%3)*1024}, v{V}" for i in range(1, 9)]
        L += [f"s_cmp_lt_u32 s{wv}, 2\ns_cselect_b32 s12, s12, s14\ns_cselect_b32 s13, s13, s15", "s_and_b32 s13, s13, 0xffff", f"s_mov_b32 s14, {576*4608*2}", "s_mov_b32 s15, 0x20000"]
        return L
    def early_dma(st, V):
        L = [(f"s_add_u32 s44, s30, {st*144*9216}", False)]
        for i in range(9):
            if i % 3 == 0: L.append((f"s_add_u32 m0, s31, {st*SLOT + i*1024}", False))
            L.append((f"buffer_load_dwordx4 v{V+i}, s[12:15], s44 offen" + (f" offset:{(i%3)*1024}" if i % 3 else "") + " lds", True))
        return L
    F = dict(e=e, tm2=TP(tm, m2), tm3=TP(tm, m3), early_setup=early_setup, early_dma=early_dma)
    gen_k2(timing=timing, prefetch=prefetch, fused=F, C=C, **K2)
    return gen_k3(timing=timing, fused=F, C=C, **K3)
```

```python
import sys
from asmgen import kernel_header, kernel_desc
from k1 import gen_k1
from kb import gen_kb
P = dict(C=4, timing=0, pf=1, cpf=1, rot=0, tsel=3)
K = {1: {}, 2: {}, 3: {}}
for kv in sys.argv[1:]:
    k, v = kv.split("=")
    if k[0] == "k" and k[2] == ".": K[int(k[1])][k[3:]] = eval(v)
    else: P[k] = int(v)
T = bool(P["timing"])
hdr = open("sequential_preLN__linear_attn_block__geglu_ffn__prompt.s.ref").read().split("; Override")[0]
print(hdr, end="")
print("; @launch kernel=k1_kernel grid=(256,1,1) block=(512,1,1) lds=150528")
print("; @launch kernel=k2_kernel grid=(256,1,1) block=(256,1,1) lds=160768")
print('.amdgcn_target "amdgcn-amd-amdhsa--gfx950"\n.text')
print(kernel_header("k1_kernel") + gen_k1(timing=T, prefetch=P["pf"], cpf=P["cpf"], rot=P["rot"], C=P["C"], cend="K2_done", **K[1]) + kernel_desc("k1_kernel", 256, 100, 256))
print(kernel_header("k2_kernel") + gen_kb(timing=T, tsel=P["tsel"], K2=K[2], K3=K[3], C=P["C"], prefetch=P["pf"]) + kernel_desc("k2_kernel", 512, 100, 256))
```

```python
from sched import *
from layout import *
from tim import Tim
from k3 import srd, f2u
L2E = 1.4426950408889634; LN2 = 0.6931471805599453
BIG = 0x40000000
LBIG = 0x30000
SLOT = 36864
XCH = 147456
CSA = XCH + 2048

def mask64(fn):
    m = 0
    for l in range(64):
        if fn(l): m |= 1 << l
    return m
def smask(e, s, m):
    e(f"s_mov_b32 s{s}, {hex(m & 0xffffffff)}\ns_mov_b32 s{s+1}, {hex(m >> 32)}")

def ln_stats2(e, items):
    inv = hex(f2u(1.0/576))
    seq = ["v_mul_f32 v{vs}, " + inv + ", v{vs}", "v_mul_f32 v{vq}, " + inv + ", v{vq}",
           "v_fma_f32 v{vq}, -v{vs}, v{vs}, v{vq}", "v_max_f32 v{vq}, 0, v{vq}",
           "v_cvt_pk_bf16_f32 v{t}, v{vs}, v{vq}", "v_lshlrev_b32 v{vs}, 16, v{t}", "v_and_b32 v{vq}, 0xffff0000, v{t}",
           "v_add_f32 v{vq}, " + hex(f2u(1e-5)) + ", v{vq}", "v_cvt_pk_bf16_f32 v{vq}, v{vq}, v{vq}", "v_and_b32 v{vq}, 0xffff0000, v{vq}",
           "v_sqrt_f32 v{vq}, v{vq}", "NOP", "v_cvt_pk_bf16_f32 v{vq}, v{vq}, v{vq}", "v_and_b32 v{vq}, 0xffff0000, v{vq}",
           "v_rcp_f32 v{rs}, v{vq}", "NOP", "v_mul_f32_e64 v{nm}, -v{vs}, v{rs}"]
    for s in seq:
        if s == "NOP":
            if len(items) == 1: e("s_nop 0")
            continue
        for (vs, vq, t, rs, nm) in items:
            e(s.format(vs=vs, vq=vq, t=t, rs=rs, nm=nm))

def code_prefetch(e, lab, start, endlab, lanereg, dst, soff=None):
    e(f"s_getpc_b64 s[4:5]\n{lab}:\ns_add_u32 s4, s4, {start}-{lab}\ns_addc_u32 s5, s5, 0")
    e(f"v_lshlrev_b32 v{dst}, 7, v{lanereg}")
    if soff is not None: e(f"v_add_u32 v{dst}, s{soff}, v{dst}")
    e(f"v_min_u32 v{dst}, {endlab}-{start}, v{dst}\nv_mov_b32 v{dst+1}, 0")
    e(f"v_lshl_add_u64 v[{dst}:{dst+1}], v[{dst}:{dst+1}], 0, s[4:5]\nglobal_load_dword v{dst+2}, v[{dst}:{dst+1}], off")

def slice_of_xcd(e, d, src, C):
    e(f"s_and_b32 s{d}, s{src}, 7")
    if C == 4: e(f"s_lshr_b32 s6, s{d}, 2\ns_and_b32 s{d}, s{d}, 3\ns_lshl_b32 s{d}, s{d}, 1\ns_add_u32 s{d}, s{d}, s6")
    if C == 8: e(f"s_lshr_b32 s6, s{d}, 1\ns_and_b32 s{d}, s{d}, 1\ns_lshl_b32 s{d}, s{d}, 2\ns_add_u32 s{d}, s{d}, s6")

def gen_k1(timing=False, prefetch=True, dbg=0, cpf=True, rot=0, C=2, sf=' sc1', cend='K2_end', diag=False):
    e = Em()
    tm = Tim(e, 1, timing)
    AB = 12; AC = 16; T = 20; ONES = 24; XF = 28; WF = 44; ACC = 116; TT = 188
    WA = 216; GA = 230; ZB = 236
    VX = 4; VW = 8
    S_X = 8; S_W = 12; S_O = 16; S_DBG = 20; S_A = 24
    S_I = 28; S_G = 29; S_KV = 30; S_WV = 31; S_XO = 32; S_WO = 33; S_CNT = 35; S_SL = 36; S_DS = 37; S_WB = 38
    e("s_cmp_ge_u32 s2, 256\ns_cbranch_scc1 K1_end")
    e("s_load_dwordx4 s[40:43], s[0:1], 0\ns_load_dwordx4 s[44:47], s[0:1], 64")
    e(f"v_lshrrev_b32 v1, 6, v0\nv_and_b32 v2, 63, v0\ns_nop 0\nv_readfirstlane_b32 s{S_WV}, v1")
    if cpf:
        e(f"s_cmp_ge_u32 s{S_WV}, 2\ns_cbranch_scc1 K1_nocpf")
        code_prefetch(e, "K1_pc", "K1_nocpf", "K1_end", 0, 4)
        e("K1_nocpf:")
    tm.start()
    if diag: e("s_memrealtime s[72:73]")
    e(f"s_cmp_lt_u32 s2, 64\ns_cbranch_scc1 K1_spare")
    e(f"""s_and_b32 s3, s2, 7
s_lshr_b32 s4, s2, 3
s_sub_u32 s4, s4, 8
s_lshr_b32 s5, s3, 1
s_lshl_b32 s5, s5, 2
s_and_b32 s6, s4, 3
s_add_u32 s{S_I}, s5, s6
s_lshr_b32 s4, s4, 2
s_and_b32 s3, s3, 1
s_lshl_b32 s5, s3, 2
s_add_u32 s5, s5, s4
s_lshl_b32 s6, s3, 1
s_add_u32 s6, s6, s4
s_sub_u32 s6, s6, 4
s_cmp_lt_u32 s4, 4
s_cselect_b32 s{S_G}, s5, s6
s_cselect_b32 s{S_KV}, 1, 0
s_cmp_lt_u32 s{S_WV}, 4
s_cbranch_scc1 K1_comp""")
    tl = Tim(e, 0, timing)
    e(f"s_sub_u32 s{S_WV}, s{S_WV}, 4")
    e(f"v_lshrrev_b32 v3, 3, v2\nv_and_b32 v{T}, 7, v2\nv_lshrrev_b32 v{T+1}, 1, v3\nv_xor_b32 v{T}, v{T}, v{T+1}")
    e(f"v_mul_u32_u24 v3, 1152, v3\nv_lshl_add_u32 v{VX}, v{T}, 4, v3\nv_xor_b32 v{T}, 4, v{T}\nv_lshl_add_u32 v{VX+1}, v{T}, 4, v3")
    e(f"v_add_u32 v{VX+1}, {8*1152-1024}, v{VX+1}\nv_add_u32 v{VX+2}, {16*1152-2048}, v{VX}\nv_add_u32 v{VX+3}, {16*1152-2048}, v{VX+1}")
    e(f"""s_lshl_b32 s5, s{S_I}, 2
s_add_u32 s5, s5, s{S_WV}
s_mul_i32 s{S_XO}, s5, {32*1152}
s_mul_i32 s{S_WB}, s{S_WV}, 9216
s_mov_b32 s{S_DS}, s{S_WB}
s_mul_i32 s5, s{S_G}, 144
s_add_u32 s6, s5, 1152
s_lshl_b32 s5, s5, 1
s_cmp_eq_u32 s{S_KV}, 1
s_cselect_b32 s6, s6, s5
s_movk_i32 s7, 144
s_cselect_b32 s7, 1152, s7
s_mul_i32 s{S_WO}, s{S_WV}, {16*3456}
s_add_u32 s{S_WO}, s{S_WO}, s6
s_movk_i32 s50, 3456""")
    if rot:
        if rot == 3:
            e(f"s_and_b32 s5, s{S_I}, 3\ns_add_u32 s34, s5, s4\ns_mul_i32 s5, s34, 11\ns_lshr_b32 s5, s5, 5\ns_mul_i32 s5, s5, 3\ns_sub_u32 s34, s34, s5\ns_mul_i32 s34, s34, 3")
        elif rot == 2:
            e(f"s_add_u32 s34, s{S_I}, s4\ns_and_b32 s34, s34, 1\ns_lshl_b32 s34, s34, 2")
        elif rot == 4:
            e(f"s_add_u32 s34, s{S_I}, s4\ns_and_b32 s34, s34, 3\ns_lshl_b32 s34, s34, 1")
        e(f"s_mov_b32 s39, s{S_XO}\ns_mov_b32 s52, s{S_WO}\ns_lshl_b32 s5, s34, 7\ns_add_u32 s{S_XO}, s{S_XO}, s5\ns_mul_i32 s5, s34, {64*3456}\ns_add_u32 s{S_WO}, s{S_WO}, s5\ns_sub_u32 s34, 8, s34")
    for i in range(5):
        r = VW + i
        e(f"v_add_u32 v3, {64*i}, v2\nv_mul_u32_u24 v{T}, 7282, v3\nv_lshrrev_b32 v{T}, 16, v{T}\nv_mul_u32_u24 v{T+1}, 9, v{T}\nv_sub_u32 v3, v3, v{T+1}")
        e(f"v_and_b32 v{T+1}, 1, v{T}\nv_mul_u32_u24 v{T+1}, s7, v{T+1}\nv_lshl_add_u32 v3, v3, 4, v{T+1}")
        e(f"v_lshrrev_b32 v{T}, 1, v{T}")
        if i >= 2:
            e(f"v_lshrrev_b32 v{T+1}, 1, v{T}\nv_and_b32 v{T+1}, 4, v{T+1}\nv_xor_b32 v{T}, v{T}, v{T+1}")
        e(f"v_mad_u32_u24 v{r}, v{T}, s50, v3")
        comp = (i % 4) * 1024
        if comp: e(f"v_subrev_u32 v{r}, {comp}, v{r}")
    e(f"v_cmp_gt_u32 s[48:49], 32, v2\nv_mov_b32 v3, {BIG}\ns_mov_b32 s{S_CNT}, -1\nv_cndmask_b32 v{VW+4}, v3, v{VW+4}, s[48:49]")
    tl.stamp(0)
    e("s_waitcnt lgkmcnt(0)")
    srd(e, S_X, 40, ACT_BYTES)
    srd(e, S_W, 42, 576*1728*2)
    srd(e, S_DBG, 44, 256)
    tl.stamp(1)
    e("K1_ld:")
    e(f"s_mov_b32 m0, s{S_DS}\ns_add_u32 s{S_CNT}, s{S_CNT}, 1")
    for b in range(4):
        e(f"buffer_load_dwordx4 v{VX+b}, s[{S_X}:{S_X+3}], s{S_XO} offen" + (f" offset:{b*1024}" if b else "") + " lds")
    e(f"s_add_u32 m0, s{S_DS}, 4096\ns_add_u32 s{S_XO}, s{S_XO}, 128")
    for i in range(4):
        e(f"buffer_load_dwordx4 v{VW+i}, s[{S_W}:{S_W+3}], s{S_WO} offen" + (f" offset:{i*1024}" if i else "") + " lds")
    e(f"s_add_u32 m0, s{S_DS}, 8192\ns_add_u32 s{S_DS}, s{S_DS}, {SLOT}")
    e(f"buffer_load_dwordx4 v{VW+4}, s[{S_W}:{S_W+3}], s{S_WO} offen lds")
    e(f"s_add_u32 s{S_WO}, s{S_WO}, {64*3456}")
    if rot:
        e(f"s_cmp_eq_u32 s{S_CNT}, s34\ns_cselect_b32 s{S_XO}, s39, s{S_XO}\ns_cselect_b32 s{S_WO}, s52, s{S_WO}")
    e(f"""s_cmp_ge_u32 s{S_DS}, {4*SLOT}
s_cselect_b32 s{S_DS}, s{S_WB}, s{S_DS}
s_cmp_eq_u32 s{S_CNT}, 0
s_cbranch_scc1 K1_ld
s_waitcnt vmcnt(9) lgkmcnt(0)
s_barrier
s_cmp_lt_u32 s{S_CNT}, 5
s_cbranch_scc1 K1_ld
s_cmp_eq_u32 s{S_CNT}, 6
s_cbranch_scc1 K1_sd5
s_cmp_eq_u32 s{S_CNT}, 7
s_cbranch_scc1 K1_sd6
s_cmp_eq_u32 s{S_CNT}, 8
s_cbranch_scc1 K1_ldend""")
    e(f"v_mov_b32 v{T}, 0\nbuffer_load_dword v{T+1}, v{T}, s[{S_DBG}:{S_DBG+3}], 0 offen sc0 sc1")
    e(f"s_branch K1_ld")
    e(f"""K1_sd5:
v_readfirstlane_b32 s5, v{T+1}
s_nop 3
s_cmp_eq_u32 s5, 64
s_cbranch_scc1 K1_polled
buffer_load_dword v{T+1}, v{T}, s[{S_DBG}:{S_DBG+3}], 0 offen sc0 sc1
s_waitcnt vmcnt(0)
s_branch K1_sd5
K1_polled:
s_cmp_eq_u32 s{S_WV}, 3
s_cbranch_scc1 K1_sd5s""")
    srd(e, S_A, 46, CS_BYTES, WS_CS)
    e(f"""s_mul_i32 s5, s{S_WV}, 48
v_add_u32 v3, s5, v2
v_cmp_lt_u32 vcc, 71, v3
s_sub_u32 s5, s7, 144
s_lshl_b32 s5, s5, 1
v_mov_b32 v{T}, s5
v_cndmask_b32 v{T}, 0, v{T}, vcc
v_lshlrev_b32 v3, 2, v3
v_cmp_gt_u32 vcc, 48, v2
v_add_u32 v{T}, v{T}, v3
v_add_u32 v3, {CSA}, v3
v_mov_b32 v{T+1}, {BIG}
v_cndmask_b32 v{T}, v{T+1}, v{T}, vcc
v_mov_b32 v{T+1}, {LBIG}
s_lshl_b32 s5, s6, 1
v_cndmask_b32 v{T+2}, v{T+1}, v3, vcc""")
    for p in range(8):
        e(f"buffer_load_dword v{24+p}, v{T}, s[{S_A}:{S_A+3}], s5 offen sc0 sc1")
        if p < 7: e(f"s_add_u32 s5, s5, {1728*4}")
    e("s_branch K1_ld\nK1_sd5s:")
    srd(e, S_A, 46, S1_BYTES, WS_S1)
    e(f"s_lshl_b32 s5, s{S_I}, 10\nv_lshlrev_b32 v{T}, 4, v2\nv_lshlrev_b32 v{T+2}, 3, v2\nv_add_u32 v{T+2}, {XCH}, v{T+2}")
    e(f"buffer_load_dwordx4 v[24:27], v{T}, s[{S_A}:{S_A+3}], s5 offen sc0 sc1\ns_branch K1_ld")
    e(f"K1_sd6:\ns_cmp_eq_u32 s{S_WV}, 3\ns_cbranch_scc1 K1_sd6s")
    e("v_add_f32 v24, v24, v25\nv_add_f32 v26, v26, v27\nv_add_f32 v28, v28, v29\nv_add_f32 v30, v30, v31\nv_add_f32 v24, v24, v26\nv_add_f32 v28, v28, v30\nv_add_f32 v24, v24, v28")
    e(f"ds_write_b32 v{T+2}, v24\ns_branch K1_ld\nK1_sd6s:")
    for k in range(4): e(f"v_mul_f32 v{28+k}, {hex(f2u(L2E))}, v{24+k}")
    e(f"v_add_u32 v{T+1}, 1024, v{T+2}")
    e(f"ds_write2_b32 v{T+2}, v24, v26 offset0:0 offset1:1\nds_write2_b32 v{T+2}, v25, v27 offset0:128 offset1:129")
    e(f"ds_write2_b32 v{T+1}, v28, v30 offset0:0 offset1:1\nds_write2_b32 v{T+1}, v29, v31 offset0:128 offset1:129\ns_branch K1_ld")
    e("K1_ldend:\ns_waitcnt vmcnt(0)")
    tl.stamp(2)
    e("s_barrier")
    tl.end("K1_end", "v_cmp_eq_u32 vcc, 256, v0")
    e("s_endpgm")
    e("K1_comp:")
    e(f"s_mul_i32 s{S_WB}, s{S_WV}, 9216")
    e(f"v_and_b32 v{T}, 15, v2\nv_lshrrev_b32 v{T+1}, 4, v2")
    e(f"v_lshrrev_b32 v3, 1, v{T}\nv_xor_b32 v3, v3, v{T+1}\nv_lshlrev_b32 v3, 4, v3\nv_lshl_add_u32 v3, v{T}, 7, v3\nv_add_u32 v{AB}, s{S_WB}, v3\nv_xor_b32 v3, 64, v3\nv_add_u32 v{AB+1}, s{S_WB}, v3")
    e(f"v_and_b32 v3, 1, v{T+1}\nv_mul_u32_u24 v3, 12, v3\nv_bfe_u32 v{T+2}, v2, 2, 2\nv_add_u32 v3, v3, v{T+2}")
    e(f"v_xor_b32 v{T+2}, 4, v3\nv_mul_u32_u24 v3, 288, v3\nv_mul_u32_u24 v{T+2}, 288, v{T+2}")
    e(f"v_lshrrev_b32 v{AC}, 5, v2\nv_mul_u32_u24 v{AC}, 9216, v{AC}\nv_and_b32 v{AC+1}, 3, v2\nv_lshl_add_u32 v{AC}, v{AC+1}, 3, v{AC}\nv_add_u32 v{AC}, 4096, v{AC}")
    e(f"v_add_u32 v{AB+2}, v{AC}, v3\nv_add_u32 v{AB+3}, v{AC}, v{T+2}")
    for i in range(4): e(f"v_mov_b32 v{XF+i}, 0")
    c0 = hex(f2u(1e-6 * L2E))
    e(f"s_mov_b32 s56, {hex(f2u(LN2))}\ns_mov_b32 s57, {hex(f2u(LN2))}\ns_mov_b32 s58, {c0}\ns_mov_b32 s59, {c0}")
    for r in range(ACC, ACC + 80, 16):
        e(f"v_mfma_f32_32x32x16_bf16 v[{r}:{r+15}], v[{XF}:{XF+3}], v[{XF}:{XF+3}], 0")
    e(f"s_mov_b32 s{S_CNT}, 0\ns_mov_b32 s{S_SL}, {SLOT}\ns_lshl_b32 s6, s{S_WV}, 7\ns_add_u32 s6, s6, {XCH}")
    e("s_waitcnt lgkmcnt(0)")
    e(f"s_cmp_eq_u32 s{S_KV}, 0\ns_cbranch_scc1 K1_q")
    srd(e, S_O, 46, KV_BYTES, WS_KV)
    e(f"v_lshlrev_b32 v8, 4, v{T+1}\nv_add_u32 v8, s6, v8\nv_lshlrev_b32 v9, 2, v{T}\nv_add_u32 v9, {CSA}, v9\nv_mov_b32 v{ONES}, 0x3f803f80")
    pairs = []
    for hl in range(4):
        for a in (hl, hl + 1):
            for b in (hl + 4, hl + 5):
                if (a, b) not in pairs: pairs.append((a, b))
    e(f"s_mul_i32 s5, s{S_WV}, 6144\nv_mul_u32_u24 v3, 80, v{T}\nv_lshl_add_u32 v3, v{T+1}, 4, v3\nv_add_u32 v3, s5, v3\nv_mov_b32 v{T+3}, {LBIG}")
    for k, (a, b) in enumerate(pairs):
        first = True
        for hl in range(4):
            def valid(l):
                n, g = l & 15, l >> 4
                ec = 16*(b-4) - 8 + n
                if ec < 0 or ec // 18 != hl: return False
                return 0 <= 4*a + g - (9*hl)//2 < 5
            m = mask64(valid)
            if not m: continue
            const = hl*1520 + (16*(b-4) - 8 - 18*hl)*80 + (4*a - (9*hl)//2)*16
            smask(e, 48, m)
            e(f"v_add_u32 v{T+2}, {const & 0xffffffff}, v3\nv_cndmask_b32 v{WA+k}, v{T+3 if first else WA+k}, v{T+2}, s[48:49]")
            first = False
    e(f"v_add_u32 v3, 1, v{T}\nv_lshrrev_b32 v3, 1, v3\nv_lshrrev_b32 v{T+2}, 1, v{T}\nv_lshl_add_u32 v{AC}, v3, 2, v{T+1}\nv_mul_u32_u24 v{AC+1}, 9, v{T+2}\nv_lshrrev_b32 v{AC+1}, 1, v{AC+1}\nv_sub_u32 v{AC}, v{AC}, v{AC+1}")
    smask(e, 48, mask64(lambda l: (l & 15) < 8 and 0 <= 4*(((l & 15) + 1) >> 1) + (l >> 4) - (9*((l & 15) >> 1))//2 < 5))
    e(f"v_mul_u32_u24 v{T+2}, 1520, v{T+2}\nv_lshl_add_u32 v{AC}, v{AC}, 4, v{T+2}\ns_add_u32 s5, s5, {18*80}\nv_add_u32 v{AC}, s5, v{AC}\nv_cndmask_b32 v{WA+13}, v{T+3}, v{AC}, s[48:49]")
    for a in range(5):
        smask(e, 48, mask64(lambda l: (l & 15) < 8 and ((l & 15) + 1) >> 1 == a))
        e(f"v_cndmask_b32 v{ZB+4*a}, 0, v{ONES}, s[48:49]\nv_cndmask_b32 v{ZB+4*a+1}, 0, v{ONES}, s[48:49]")
        e(f"v_pk_mov_b32 v[{ZB+4*a+2}:{ZB+4*a+3}], v[{ZB+4*a}:{ZB+4*a+1}], v[{ZB+4*a}:{ZB+4*a+1}]")
    e(f"s_mul_i32 s5, s{S_G}, 6080\nv_mov_b32 v{T+3}, {BIG}")
    for i in range(6):
        r = GA + i
        e(f"v_add_u32 v3, {256*i}, v0\nv_mul_u32_u24 v{T+2}, 3277, v3\nv_lshrrev_b32 v{T+2}, 16, v{T+2}")
        e(f"v_mul_u32_u24 v{AC}, 20, v{T+2}\nv_sub_u32 v{AC}, v3, v{AC}")
        e(f"v_mul_u32_u24 v{T+2}, 27, v{T+2}\nv_lshrrev_b32 v{T+2}, 8, v{T+2}\nv_and_b32 v{T+2}, 2, v{T+2}\nv_sub_u32 v{AC}, v{AC}, v{T+2}")
        e(f"v_cmp_gt_u32 s[48:49], 18, v{AC}\nv_lshlrev_b32 v3, 2, v3\nv_add_u32 v3, s5, v3\nv_cndmask_b32 v{r}, v{T+3}, v3, s[48:49]")
    e(f"v_cmp_gt_u32 vcc, 240, v0\ns_nop 1\nv_cndmask_b32 v{GA+5}, v{T+3}, v{GA+5}, vcc")

    def rdlist(kk):
        rd = []
        for tt in range(2):
            r = XF + 8*kk + 4*tt
            rd.append(f"ds_read_b128 v[{r}:{r+3}], v{AC+kk} offset:{2048*tt}")
        for ct in range(9):
            r = WF + 36*kk + 4*ct
            rd.append(f"ds_read_b64_tr_b16 v[{r}:{r+1}], v{AC+2} offset:{kk*18432 + ct*32}")
            rd.append(f"ds_read_b64_tr_b16 v[{r+2}:{r+3}], v{AC+3} offset:{kk*18432 + ct*32}")
        return rd
    def mainloop(kind):
        lab = f"K1_{kind}"
        tm.stamp(0)
        for i in range(4): e(f"v_mov_b32 v{AC+i}, v{AB+i}")
        e("s_barrier")
        tm.stamp(1)
        for t in rdlist(0): e(t)
        e(f"{lab}_l:")
        for kk in range(2):
            rd = rdlist(1 - kk)
            extra = []
            if kk == 1:
                extra = [f"s_add_u32 s{S_SL}, s{S_SL}, {SLOT}", f"s_cmp_ge_u32 s{S_SL}, {4*SLOT}\ns_cselect_b32 s{S_SL}, 0, s{S_SL}",
                         f"s_add_u32 s{S_CNT}, s{S_CNT}, 1", f"s_cmp_lt_u32 s{S_CNT}, 9"]
            cnt = 0
            for ct in range(9):
                wf = WF + 36*kk + 4*ct
                for tt in range(2):
                    if cnt == 0: e("s_waitcnt lgkmcnt(6)" if kk == 0 else "s_waitcnt lgkmcnt(0)")
                    if cnt == 6 and kk == 0: e("s_waitcnt lgkmcnt(9)")
                    d = ACC + 36*tt + 4*ct; x = XF + 8*kk + 4*tt
                    a, b = (wf, x) if kind == "q" else (x, wf)
                    e(f"v_mfma_f32_16x16x32_bf16 v[{d}:{d+3}], v[{a}:{a+3}], v[{b}:{b+3}], v[{d}:{d+3}]")
                    cnt += 1
                    if kk == 1 and cnt == 1:
                        for i in range(4): e(f"v_add_u32 v{AC+i}, s{S_SL}, v{AB+i}")
                        e("s_barrier")
                    if rd: e(rd.pop(0))
                    if cnt % 2 == 1 and rd: e(rd.pop(0))
                    if not rd and extra and cnt > 13: e(extra.pop(0))
            assert not rd and not extra
        e(f"s_cbranch_scc1 {lab}_l")
        tm.stamp(2)
        e("s_waitcnt lgkmcnt(0)")

    def pr(r): return f"v[{r}:{r+1}]"
    def bc(r, pos, n=3):
        base = r & ~1; hi = r & 1
        sel = [0]*n; selh = [1]*n
        sel[pos] = hi; selh[pos] = hi
        return pr(base), f" op_sel:{sel} op_sel_hi:{selh}".replace(", ", ",")
    def phi4(a, t):
        for r in range(4): e(f"v_exp_f32_e64 v{t+r}, v{a+r} clamp")
        for r in range(4): e(f"v_max_f32 v{a+r}, s58, v{a+r}")
        for r in (0, 2): e(f"v_pk_fma_f32 {pr(a+r)}, {pr(a+r)}, s[56:57], {pr(t+r)}")
    mainloop("kv")
    CSV = WF; RSV = WF + 12; PK = WF + 48; PV = ONES
    for k in range(2):
        for tt in range(2):
            e(f"ds_read_b128 v[{RSV+16*tt+4*k}:{RSV+16*tt+4*k+3}], v8 offset:{64*tt + 512*k}")
    for ct in (4, 5, 6, 7, 8, 0, 1, 2, 3): e(f"ds_read_b32 v{CSV+ct}, v9 offset:{64*ct}")
    e("s_waitcnt lgkmcnt(4)")
    for k in range(2, 4):
        for tt in range(2):
            e(f"ds_read_b128 v[{RSV+16*tt+4*k}:{RSV+16*tt+4*k+3}], v8 offset:{64*tt + 512*k}")
    def ktile(ct):
        for tt in range(2):
            a = ACC + 36*tt + 4*ct; R = RSV + 16*tt; t = TT + 4*tt
            o, sel = bc(CSV + ct, 1)
            for r in (0, 2): e(f"v_pk_fma_f32 {pr(t+r)}, {pr(R+12+r)}, {o}, s[58:59]{sel}")
            for r in (0, 2): e(f"v_pk_fma_f32 {pr(a+r)}, {pr(a+r)}, {pr(R+8+r)}, {pr(t+r)}")
            phi4(a, t)
            d = PK + 4*ct + 2*tt
            e(f"v_cvt_pk_bf16_f32 v{d}, v{a}, v{a+1}\nv_cvt_pk_bf16_f32 v{d+1}, v{a+2}, v{a+3}")
    def vtile(ct):
        for tt in range(2):
            a = ACC + 36*tt + 4*ct; R = RSV + 16*tt; t = TT + 8 + 4*tt
            o, sel = bc(CSV + ct, 1, 2)
            for r in (0, 2): e(f"v_pk_mul_f32 {pr(t+r)}, {pr(R+4+r)}, {o}{sel}")
            for r in (0, 2): e(f"v_pk_fma_f32 {pr(t+r)}, {pr(a+r)}, {pr(R+r)}, {pr(t+r)}")
            d = PV + 4*(ct-4) + 2*tt
            e(f"v_cvt_pk_bf16_f32 v{d}, v{t}, v{t+1}\nv_cvt_pk_bf16_f32 v{d+1}, v{t+2}, v{t+3}")
    for ct in range(4, 9): vtile(ct)
    e("s_waitcnt lgkmcnt(0)")
    tm.stamp(3)
    free = [ACC + 36*tt + 4*ct for ct in range(5, 9) for tt in range(2)]
    zreg = free.pop(0)
    kvreg = {}
    pend = []
    def flush():
        for k in pend: e(f"ds_write_b128 v{WA+k}, v[{kvreg[k]}:{kvreg[k]+3}]")
        pend.clear()
    for a in range(5):
        ktile(a)
        if pend: flush()
        else: e("s_nop 1")
        free += [ACC + 4*a, ACC + 36 + 4*a]
        for k, (pa, pb) in enumerate(pairs):
            if pa == a:
                d = free.pop(0); kvreg[k] = d; pend.append(k)
                e(f"v_mfma_f32_16x16x32_bf16 v[{d}:{d+3}], v[{PK+4*a}:{PK+4*a+3}], v[{PV+4*(pb-4)}:{PV+4*(pb-4)+3}], 0")
        e(f"v_mfma_f32_16x16x32_bf16 v[{zreg}:{zreg+3}], v[{PK+4*a}:{PK+4*a+3}], v[{ZB+4*a}:{ZB+4*a+3}], " + ("0" if a == 0 else f"v[{zreg}:{zreg+3}]"))
    kvreg[13] = zreg; pend.append(13)
    e(f"v_lshlrev_b32 v3, 2, v0\ns_nop 5")
    flush()
    tm.stamp(4)
    e(f"s_waitcnt lgkmcnt(0)\ns_barrier")
    RB = WF
    e.lg = []; e.lg_done = 0
    for i in range(6):
        for w in range(0, 4, 2):
            e.ds(f"ds_read2st64_b32 v[{RB+4*i+w}:{RB+4*i+w+1}], v3 offset0:{(w*6144 + i*1024)//256} offset1:{((w+1)*6144 + i*1024)//256}", i)
    for i in range(6):
        e.wait_lg(lambda t: t == i)
        r = RB + 4*i
        e(f"v_pk_add_f32 {pr(r)}, {pr(r)}, {pr(r+2)}\nv_add_f32 v{r}, v{r}, v{r+1}")
        e(f"buffer_atomic_add_f32 v{r}, v{GA+i}, s[{S_O}:{S_O+3}], 0 offen sc1")
    tm.stamp(5)
    e("s_branch K1_done")
    e("K1_q:")
    srd(e, S_O, 46, ACT_BYTES, WS_PQ)
    e(f"v_lshlrev_b32 v8, 2, v{T}\nv_add_u32 v8, s6, v8\nv_lshlrev_b32 v9, 4, v{T+1}\nv_add_u32 v9, {CSA}, v9")
    e(f"s_lshl_b32 s5, s{S_I}, 2\ns_add_u32 s5, s5, s{S_WV}\ns_lshl_b32 s5, s5, 2\ns_add_u32 s5, s5, s{S_G}\ns_mul_i32 s20, s5, 9216\nv_lshlrev_b32 v11, 4, v2")
    e(f"s_add_u32 s21, s20, 4096\ns_add_u32 s22, s20, 8192")
    mainloop("q")
    CSV = WF; RSV = WF + 36; P = WA
    for tt in range(2):
        for k in range(2): e(f"ds_read_b32 v{RSV+2*tt+k}, v8 offset:{1024 + 64*tt + 512*k}")
    for ct in range(9): e(f"ds_read_b128 v[{CSV+4*ct}:{CSV+4*ct+3}], v9 offset:{64*ct}")
    stored = 0
    for tt in range(2):
        for ct in range(9):
            if tt == 0 and ct in (0, 2): e(f"s_waitcnt lgkmcnt({7 if ct == 0 else 0})")
            a = ACC + 36*tt + 4*ct; t = TT + 4*(ct % 2)
            o, sel = bc(RSV + 2*tt + 1, 0)
            for r in (0, 2): e(f"v_pk_fma_f32 {pr(t+r)}, {o}, {pr(CSV+4*ct+r)}, s[58:59]{sel}")
            o, sel = bc(RSV + 2*tt, 1)
            for r in (0, 2): e(f"v_pk_fma_f32 {pr(a+r)}, {pr(a+r)}, {o}, {pr(t+r)}{sel}")
            phi4(a, t)
            d = P + 18*tt + 2*ct
            e(f"v_cvt_pk_bf16_f32 v{d}, v{a}, v{a+1}\nv_cvt_pk_bf16_f32 v{d+1}, v{a+2}, v{a+3}")
            while 4*stored + 3 <= 18*tt + 2*ct + 1:
                q = stored
                e(f"buffer_store_dwordx4 v[{P+4*q}:{P+4*q+3}], v11, s[{S_O}:{S_O+3}], s{20+q//4} offen" + (f" offset:{(q%4)*1024}" if q % 4 else "") + sf)
                stored += 1
    tm.stamp(5)
    e("s_branch K1_done")
    e("K1_spare:")
    e(f"v_lshrrev_b32 v3, 3, v2\nv_and_b32 v{T}, 7, v2\nv_lshlrev_b32 v{T}, 4, v{T}\nv_mov_b32 v8, {BIG}")
    e(f"s_cmp_ge_u32 s{S_WV}, 4\ns_cbranch_scc1 K1_sp_cs")
    e(f"v_mul_u32_u24 v9, 1152, v3\nv_add_u32 v9, v9, v{T}\ns_lshl_b32 s6, s2, 2\ns_add_u32 s6, s6, s{S_WV}\ns_mul_i32 s5, s6, {8*1152}\ns_waitcnt lgkmcnt(0)")
    srd(e, S_X, 40, ACT_BYTES)
    e.vm = []; e.vm_done = 0
    for i in range(9):
        e.vmem(f"buffer_load_dwordx4 v[{32+4*i}:{35+4*i}], v9, s[{S_X}:{S_X+3}], s5 offen" + (f" offset:{128*i}" if i else ""), i)
    srd(e, S_A, 46, S1_BYTES, WS_S1)
    e(f"v_mov_b32 v10, 0x3f803f80\nv_mov_b32 v12, 0\nv_mov_b32 v13, 0\nv_cmp_eq_u32 vcc, 0, v{T}\nv_lshlrev_b32 v3, 3, v3\ns_lshl_b32 s6, s6, 6\nv_cndmask_b32 v3, v8, v3, vcc")
    for i in range(9):
        e.wait_vm(lambda t: t == i)
        for k in range(4): e(f"v_dot2c_f32_bf16 v12, v{32+4*i+k}, v10\nv_dot2c_f32_bf16 v13, v{32+4*i+k}, v{32+4*i+k}")
    e("s_nop 2")
    for dpp in ("quad_perm:[1,0,3,2]", "quad_perm:[2,3,0,1]", "row_half_mirror"):
        e(f"v_add_f32_dpp v12, v12, v12 {dpp} row_mask:0xf bank_mask:0xf\nv_add_f32_dpp v13, v13, v13 {dpp} row_mask:0xf bank_mask:0xf\ns_nop 0")
    e(f"v_mul_f32 v15, {hex(f2u(1.0/576))}, v12")
    ln_stats2(e, [(12, 13, 14, 16, 17)])
    e(f"buffer_store_dwordx2 v[16:17], v3, s[{S_A}:{S_A+3}], s6 offen sc0 sc1")
    srd(e, S_O, 46, MX_BYTES, WS_MX)
    e(f"v_lshrrev_b32 v3, 1, v3\ns_lshr_b32 s6, s6, 1\nbuffer_store_dword v15, v3, s[{S_O}:{S_O+3}], s6 offen")
    srd(e, S_O, 46, KV_BYTES, WS_KV)
    e(f"v_cmp_gt_u32 vcc, 95, v0\nv_lshlrev_b32 v3, 3, v0\nv_mov_b32 v18, 0\nv_mov_b32 v19, 0\nv_cndmask_b32 v3, v8, v3, vcc\ns_mul_i32 s5, s2, 760")
    e(f"buffer_store_dwordx2 v[18:19], v3, s[{S_O}:{S_O+3}], s5 offen sc0 sc1\ns_branch K1_sp_j")
    e("K1_sp_cs:\ns_waitcnt lgkmcnt(0)\ns_cmp_ge_u32 s2, 54\ns_cbranch_scc1 K1_sp_j")
    e(f"v_mul_u32_u24 v9, 3456, v3\nv_add_u32 v9, v9, v{T}\ns_and_b32 s6, s2, 1\ns_lshl_b32 s6, s6, 2\ns_add_u32 s6, s6, s{S_WV}\ns_sub_u32 s6, s6, 4\ns_lshr_b32 s7, s2, 1")
    e(f"s_mul_i32 s5, s6, {72*3456}\ns_lshl_b32 s50, s7, 7\ns_add_u32 s5, s5, s50")
    srd(e, S_W, 42, 576*1728*2)
    e.vm = []; e.vm_done = 0
    for i in range(9):
        e.vmem(f"buffer_load_dwordx4 v[{32+4*i}:{35+4*i}], v9, s[{S_W}:{S_W+3}], s5 offen", i)
        if i < 8: e(f"s_add_u32 s5, s5, {8*3456}")
    srd(e, S_A, 46, CS_BYTES, WS_CS)
    e("v_mov_b32 v10, 0x3f80\nv_mov_b32 v11, 0x3f800000")
    for k in range(8): e(f"v_mov_b32 v{12+k}, 0")
    e(f"s_lshl_b32 s50, s{S_WV}, 11\nv_lshlrev_b32 v3, 5, v2\nv_add_u32 v3, s50, v3\nv_lshlrev_b32 v9, 2, v2\nv_add_u32 v{T}, s50, v9")
    e(f"s_mul_i32 s6, s6, {1728*4}\ns_lshl_b32 s7, s7, 8\ns_add_u32 s6, s6, s7")
    for i in range(9):
        e.wait_vm(lambda t: t == i)
        for k in range(4): e(f"v_dot2c_f32_bf16 v{12+2*k}, v{32+4*i+k}, v10\nv_dot2c_f32_bf16 v{13+2*k}, v{32+4*i+k}, v11")
    e("s_nop 2\nds_write_b128 v3, v[12:15]\nds_write_b128 v3, v[16:19] offset:16\ns_waitcnt lgkmcnt(0)")
    for k in range(4): e(f"ds_read2st64_b32 v[{12+2*k}:{13+2*k}], v{T} offset0:{2*k} offset1:{2*k+1}")
    e("s_waitcnt lgkmcnt(0)\nv_pk_add_f32 v[12:13], v[12:13], v[14:15]\nv_pk_add_f32 v[16:17], v[16:17], v[18:19]\nv_pk_add_f32 v[12:13], v[12:13], v[16:17]\nv_add_f32 v12, v12, v13")
    e(f"buffer_store_dword v12, v9, s[{S_A}:{S_A+3}], s6 offen sc0 sc1")
    e("K1_sp_j:")
    e("s_load_dwordx2 s[48:49], s[0:1], 16\ns_load_dwordx4 s[52:55], s[0:1], 32")
    e(f"s_waitcnt vmcnt(0) lgkmcnt(0)\ns_barrier")
    tm.stamp(0)
    e(f"s_cmp_lg_u32 s{S_WV}, 0\ns_cbranch_scc1 K1_nosig")
    srd(e, S_DBG, 44, 256)
    e(f"v_cmp_eq_u32 vcc, 0, v2\nv_mov_b32 v4, 1\ns_nop 0\nv_cndmask_b32_e64 v3, v8, 0, vcc\nbuffer_atomic_add v4, v3, s[{S_DBG}:{S_DBG+3}], 0 offen sc1")
    e("K1_nosig:")
    if cpf:
        e(f"s_cmp_lg_u32 s{S_WV}, 7\ns_cbranch_scc1 K1_nocp2\ns_lshr_b32 s6, s2, 3\ns_lshl_b32 s6, s6, 13")
        code_prefetch(e, "K1_pc2", "k2_kernel", cend, 2, 20, 6)
        e("K1_nocp2:")
    if prefetch:
        srd(e, S_A, 52, 576*4608*2)
        srd(e, S_W, 54, 576*4608*2)
        slice_of_xcd(e, 5, 2, C)
        e(f"s_mul_i32 s5, s5, 1152\ns_lshr_b32 s6, s2, 3\ns_mul_i32 s6, s6, {72*9216}\ns_add_u32 s5, s5, s6")
        e(f"v_lshrrev_b32 v4, 2, v0\nv_mul_u32_u24 v4, 9216, v4\nv_bfe_u32 v5, v0, 1, 1\nv_mul_u32_u24 v5, 5, v5\nv_and_b32 v3, 1, v0\nv_add_u32 v5, v5, v3\nv_lshl_add_u32 v4, v5, 7, v4")
        e(f"v_cmp_gt_u32 vcc, 288, v0\ns_nop 1\nv_cndmask_b32 v4, v8, v4, vcc")
        e(f"buffer_load_dword v11, v4, s[{S_A}:{S_A+3}], s5 offen\nbuffer_load_dword v12, v4, s[{S_W}:{S_W+3}], s5 offen")
    e(f"s_cmp_lg_u32 s{S_WV}, 7\ns_cbranch_scc1 K1_nofl")
    srd(e, S_O, 46, FL_BYTES, WS_FL)
    e(f"v_mov_b32 v24, 0\nv_mov_b32 v25, 0\nv_mov_b32 v26, 0\nv_mov_b32 v27, 0\nv_lshlrev_b32 v3, 4, v2\ns_mul_i32 s5, s2, {NZ*1024}")
    for z in range(NZ): e(f"buffer_store_dwordx4 v[24:27], v3, s[{S_O}:{S_O+3}], s5 offen\ns_add_u32 s5, s5, 1024")
    e(f"s_branch K1_done\nK1_nofl:")
    e(f"s_cmp_lt_u32 s{S_WV}, 5\ns_cbranch_scc1 K1_done\ns_cmp_ge_u32 s2, 36\ns_cbranch_scc1 K1_done")
    e(f"v_lshrrev_b32 v3, 3, v2\nv_mul_u32_u24 v9, 1152, v3\nv_and_b32 v3, 7, v2\nv_lshl_add_u32 v9, v3, 4, v9")
    srd(e, S_X, 48, 576*576*2)
    e(f"s_lshl_b32 s6, s2, 1\ns_add_u32 s6, s6, s{S_WV}\ns_sub_u32 s6, s6, 5\ns_mul_i32 s5, s6, {8*1152}")
    e.vm = []; e.vm_done = 0
    for i in range(9):
        e.vmem(f"buffer_load_dwordx4 v[{32+4*i}:{35+4*i}], v9, s[{S_X}:{S_X+3}], s5 offen" + (f" offset:{128*i}" if i else ""), i)
    srd(e, S_O, 46, WB_BYTES, WS_WB)
    e(f"s_mul_i32 s7, s6, 57\ns_lshr_b32 s7, s7, 10\ns_mul_i32 s5, s7, 18\ns_sub_u32 s6, s6, s5\ns_mul_i32 s7, s7, 320")
    e(f"s_lshr_b32 s5, s6, 1\ns_lshl_b32 s5, s5, 3\ns_add_u32 s7, s7, s5\ns_and_b32 s5, s6, 1\ns_mul_i32 s5, s5, 160\ns_add_u32 s7, s7, s5")
    e(f"v_lshrrev_b32 v3, 5, v2\nv_mul_u32_u24 v3, 80, v3\nv_bfe_u32 v4, v2, 3, 2\nv_lshl_add_u32 v3, v4, 1, v3\nv_and_b32 v4, 7, v2\nv_cmp_eq_u32 vcc, 0, v4\nv_mov_b32 v14, 0\nv_mov_b32 v10, 0x3f803f80\nv_cndmask_b32 v3, v8, v3, vcc")
    for i in range(9):
        e.wait_vm(lambda t: t == i)
        for k in range(4): e(f"v_dot2c_f32_bf16 v14, v{32+4*i+k}, v10")
    e("s_nop 2")
    for dpp in ("quad_perm:[1,0,3,2]", "quad_perm:[2,3,0,1]", "row_half_mirror"):
        e(f"v_add_f32_dpp v14, v14, v14 {dpp} row_mask:0xf bank_mask:0xf\ns_nop 1")
    e(f"v_mul_f32 v14, {hex(f2u(1.0/576))}, v14\nv_cvt_pk_bf16_f32 v14, v14, v14\nbuffer_store_short v14, v3, s[{S_O}:{S_O+3}], s7 offen")
    e("K1_done:")
    if diag:
        e(f"s_cmp_lg_u32 s2, 0\ns_cbranch_scc1 K1_end\ns_cmp_lg_u32 s{S_WV}, 0\ns_cbranch_scc1 K1_end\ns_waitcnt lgkmcnt(0)\ns_mov_b32 s68, s46\ns_and_b32 s69, s47, 0xffff\ns_mov_b32 s70, {WS_BYTES}\ns_mov_b32 s71, 0x20000\nv_mov_b32 v100, {0x8000000}\nv_mov_b32 v101, s72\nbuffer_store_dword v101, v100, s[68:71], 0 offen")
    tm.end("K1_end")
    e("K1_end:\ns_endpgm")
    return e.text()
if __name__ == "__main__":
    assert all((n*3277) >> 16 == n//20 for n in range(1536))
    assert all((n*27) >> 9 == n//19 for n in range(77))
    assert all((n*7282) >> 16 == n//9 for n in range(1024))
    print("ok")
```

```python
from sched import *
from layout import *
from tim import Tim
import math
from k2 import gen_k2
from k3 import gen_k3, SLOT
class TP:
    def __init__(self, tm, ids): self.tm = tm; self.ids = ids
    def start(self): self.tm.start()
    def stamp(self, i):
        if i in self.ids: self.tm.stamp(self.ids[i])
    def end(self, *a): self.tm.end(*a)
def gen_kb(timing=False, tsel=3, K2={}, K3={}, C=2, prefetch=True, diag=None):
    e = Em()
    tm = Tim(e, 3, timing)
    if tsel == 2: m2 = {i: i for i in range(9)}; m3 = {-10: 9, -11: 10, 0: 11}
    elif tsel == 3: m2 = {8: 0}; m3 = {k: i + 1 for i, k in enumerate([-10, -11, 0, 135, -2, 568, 648, 864, 971, -12, -13])}
    elif tsel == 4: m2 = {8: 0}; m3 = {k: i + 1 for i, k in enumerate(['A0', 'A1', -11, 0, 135, 971, -12, 'B0', 'B1', 'B2', -13])}
    lg = lambda x: int(math.log2(x))
    def early_setup(wv, V):
        ng = 16 // C
        L = f"""s_and_b32 s3, s2, {ng-1}
s_lshl_b32 s3, s3, {lg(C)}
s_bfe_u32 s44, s2, {hex(3 | (lg(C) << 16))}
s_add_u32 s3, s3, s44
s_mul_i32 s30, s3, 576
s_and_b32 s3, s3, 1
s_lshl_b32 s3, s3, 6
s_add_u32 s30, s30, s3
s_and_b32 s3, s{wv}, 1
s_mul_i32 s3, s3, {72*9216}
s_add_u32 s30, s30, s3
s_mul_i32 s31, s{wv}, 9216
v_bfe_u32 v{V}, v2, 2, 3
v_mul_u32_u24 v{V}, 9216, v{V}
v_and_b32 v{V+1}, 3, v2
v_lshl_add_u32 v{V}, v{V+1}, 4, v{V}
v_lshrrev_b32 v{V+1}, 5, v2
v_lshl_add_u32 v{V}, v{V+1}, 6, v{V}""".split("\n")
        L += [f"v_add_u32 v{V+i}, {8*i*9216 - (i%3)*1024}, v{V}" for i in range(1, 9)]
        L += [f"s_cmp_lt_u32 s{wv}, 2\ns_cselect_b32 s12, s12, s14\ns_cselect_b32 s13, s13, s15", "s_and_b32 s13, s13, 0xffff", f"s_mov_b32 s14, {576*4608*2}", "s_mov_b32 s15, 0x20000"]
        return L
    def early_dma(st, V):
        L = [(f"s_add_u32 s44, s30, {st*144*9216}", False)]
        for i in range(9):
            if i % 3 == 0: L.append((f"s_add_u32 m0, s31, {st*SLOT + i*1024}", False))
            L.append((f"buffer_load_dwordx4 v{V+i}, s[12:15], s44 offen" + (f" offset:{(i%3)*1024}" if i % 3 else "") + " lds", True))
        return L
    F = dict(e=e, tm2=TP(tm, m2), tm3=TP(tm, m3), early_setup=early_setup, early_dma=early_dma)
    if diag:
        from tim import Diag
        F["tm2"] = Diag(e, *diag, 2); F["tm3"] = Diag(e, *diag, 3); timing = True
    gen_k2(timing=timing, prefetch=prefetch, fused=F, C=C, **K2)
    return gen_k3(timing=timing, fused=F, C=C, **K3)
```

```python
from layout import *
TBASE = 0x8000000
WSP = 46
import os
RT = bool(os.environ.get('RT'))
class Tim:
    def __init__(self, e, k, on):
        self.e = e; self.k = k; self.on = on; self.n = 0
    def start(self):
        if self.on:
            self.e("s_memtime s[60:61]\ns_memrealtime s[62:63]")
            for i in range(12): self.e(f"s_mov_b32 s{72+2*i}, 0")
    def stamp(self, i):
        if self.on: self.e(f"{'s_memrealtime' if RT else 's_memtime'} s[{72+2*i}:{73+2*i}]")
    def end(self, endlabel, cond="v_cmp_eq_u32 vcc, 0, v0"):
        if not self.on: return
        e = self.e
        e("s_waitcnt vmcnt(0)\ns_memtime s[64:65]\ns_memrealtime s[66:67]\ns_waitcnt lgkmcnt(0)")
        e(f"s_lshl_b32 s97, s2, 6\ns_add_u32 s97, s97, {TBASE + self.k*0x10000}\nv_mov_b32 v8, s97")
        e(f"s_mov_b32 s68, s{WSP}\ns_and_b32 s69, s{WSP+1}, 0xffff\ns_mov_b32 s70, {WS_BYTES}\ns_mov_b32 s71, 0x20000")
        e(f"{cond}\ns_and_saveexec_b64 s[98:99], vcc\ns_cbranch_execz {endlabel}")
        e("s_sub_u32 s64, s64, s60\nv_mov_b32 v4, s62\nv_mov_b32 v5, s66\nv_mov_b32 v6, s64\nv_mov_b32 v7, " + ('1' if RT else '0') + "")
        e("buffer_store_dwordx4 v[4:7], v8, s[68:71], 0 offen")
        for j in range(3):
            for i in range(4):
                e(f"s_sub_u32 s97, s{72+2*(4*j+i)}, {0 if RT else 's60'}\nv_mov_b32 v{12+4*j+i}, s97")
            e(f"buffer_store_dwordx4 v[{12+4*j}:{15+4*j}], v8, s[68:71], 0 offen offset:{16+16*j}")

class Diag:
    def __init__(self, e, a, b, amp, pref, wg=0):
        self.e = e; self.a = a; self.b = b; self.amp = amp; self.pref = pref; self.wg = wg
    def start(self): self.stamp("S", True)
    def stamp(self, i, raw=False):
        k = i if raw else (self.pref, i)
        if k == self.a: self.e("s_memrealtime s[72:73]")
        if k == self.b: self.e("s_memrealtime s[74:75]")
    def end(self, endlabel, cond=None):
        e = self.e
        e("s_waitcnt vmcnt(0)")
        self.stamp("E", True)
        e(f"s_cmp_lg_u32 s2, {self.wg}\ns_cbranch_scc1 {endlabel}")
        if self.a == "K1":
            e(f"s_mov_b32 s68, s{WSP}\ns_and_b32 s69, s{WSP+1}, 0xffff\ns_mov_b32 s70, {WS_BYTES}\ns_mov_b32 s71, 0x20000\nv_mov_b32 v8, {TBASE}")
            e("buffer_load_dword v9, v8, s[68:71], 0 offen\ns_waitcnt vmcnt(0)\nv_readfirstlane_b32 s72, v9")
        e(f"s_memrealtime s[76:77]\ns_waitcnt lgkmcnt(0)\ns_sub_u32 s74, s74, s72\ns_min_u32 s74, s74, 20000\ns_mul_i32 s74, s74, {self.amp}\nDG_sp:\ns_memrealtime s[78:79]\ns_waitcnt lgkmcnt(0)\ns_sub_u32 s78, s78, s76\ns_cmp_lt_u32 s78, s74\ns_cbranch_scc1 DG_sp")
```

```python
import sys
from asmgen import kernel_header, kernel_desc
from k1 import gen_k1
from kb import gen_kb
P = dict(diag=None, C=2, timing=0, pf=1, cpf=1, rot=0, tsel=3)
K = {1: {}, 2: {}, 3: {}}
for kv in sys.argv[1:]:
    k, v = kv.split("=")
    if k[0] == "k" and k[2] == ".": K[int(k[1])][k[3:]] = eval(v)
    else: P[k] = eval(v)
T = bool(P["timing"])
hdr = open("sequential_preLN__linear_attn_block__geglu_ffn__prompt.s.ref").read().split("; Override")[0]
print(hdr, end="")
print("; @launch kernel=k1_kernel grid=(256,1,1) block=(512,1,1) lds=150528")
print("; @launch kernel=k2_kernel grid=(256,1,1) block=(256,1,1) lds=160768")
print('.amdgcn_target "amdgcn-amd-amdhsa--gfx950"\n.text')
print(kernel_header("k1_kernel") + gen_k1(timing=T, prefetch=P["pf"], cpf=P["cpf"], rot=P["rot"], C=P["C"], cend="K2_done", diag=bool(P["diag"]), **K[1]) + kernel_desc("k1_kernel", 256, 100, 256))
print(kernel_header("k2_kernel") + gen_kb(timing=T, tsel=P["tsel"], K2=K[2], K3=K[3], C=P["C"], prefetch=P["pf"], diag=P["diag"]) + kernel_desc("k2_kernel", 512, 100, 256))
```

```python
import sys
from asmgen import kernel_header, kernel_desc
from k1 import gen_k1
from kb import gen_kb
P = dict(pre=0, post=0, diag=None, C=2, timing=0, pf=1, cpf=1, rot=0, tsel=3)
K = {1: {}, 2: {}, 3: {}}
for kv in sys.argv[1:]:
    k, v = kv.split("=")
    if k[0] == "k" and k[2] == ".": K[int(k[1])][k[3:]] = eval(v)
    else: P[k] = eval(v)
T = bool(P["timing"])
hdr = open("sequential_preLN__linear_attn_block__geglu_ffn__prompt.s.ref").read().split("; Override")[0]
print(hdr, end="")
for _ in range(P["pre"]): print("; @launch kernel=nop_kernel grid=(256,1,1) block=(64,1,1) lds=0")
print("; @launch kernel=k1_kernel grid=(256,1,1) block=(512,1,1) lds=150528")
print("; @launch kernel=k2_kernel grid=(256,1,1) block=(256,1,1) lds=160768")
for _ in range(P["post"]): print("; @launch kernel=nop_kernel grid=(256,1,1) block=(64,1,1) lds=0")
print('.amdgcn_target "amdgcn-amd-amdhsa--gfx950"\n.text')
print(kernel_header("k1_kernel") + gen_k1(timing=T, prefetch=P["pf"], cpf=P["cpf"], rot=P["rot"], C=P["C"], cend="K2_done", diag=bool(P["diag"]), **K[1]) + kernel_desc("k1_kernel", 256, 100, 256))
print(kernel_header("k2_kernel") + gen_kb(timing=T, tsel=P["tsel"], K2=K[2], K3=K[3], C=P["C"], prefetch=P["pf"], diag=P["diag"]) + kernel_desc("k2_kernel", 512, 100, 256))
if P["pre"] or P["post"]:
    print(kernel_header("nop_kernel") + "  s_endpgm\n" + kernel_desc("nop_kernel", 8, 16, 8))
```

```python
from sched import *
from layout import *
from tim import Tim
import struct, math
def f2u(x): return struct.unpack("<I", struct.pack("<f", x))[0]

def srd(e, d, b, nbytes, off=0):
    if off > 0:
        e(f"s_add_u32 s{d}, s{b}, {off}\ns_addc_u32 s{d+1}, s{b+1}, 0\ns_and_b32 s{d+1}, s{d+1}, 0xffff")
    elif off < 0:
        e(f"s_sub_u32 s{d}, s{b}, {-off}\ns_subb_u32 s{d+1}, s{b+1}, 0\ns_and_b32 s{d+1}, s{d+1}, 0xffff")
    else:
        e(f"s_mov_b32 s{d}, s{b}\ns_and_b32 s{d+1}, s{b+1}, 0xffff")
    e(f"s_mov_b32 s{d+2}, {nbytes}\ns_mov_b32 s{d+3}, 0x20000")

SLOT = 36864
STAMPS = [0, 135, -1, -2, 568, 648, 720, 792, 864, 900, 936, 971]
def gen_k3(C=2, budget=5, timing=False, store_flags=" sc1", lead=30, wdpf=True, roll=True, bud2=6, late0="n",
           f1=(604, 650, 686), f2=(742, 766, 792, 818), gst=' sc0 sc1', gld=' sc0 sc1', old=' sc0 sc1', slack=2.25, nogs=False, vcost=1, ldpace=8, dsp=4, dtail=1, fused=None, hpre=870, slp=8, sig0=942, pp1=2, pp2=4, ordb=1, na=6, of=' sc1'):
    e = fused['e'] if fused else Em()
    tm = fused['tm3'] if fused else Tim(e, 3, timing)
    xf = ' sc0 sc1' if fused else ''
    if fused: store_flags = ' sc0 sc1'
    TRB = 4; V1 = 8; VB = 17; VE = 26; VP1 = 29; VS = 30
    VK1 = 34; VK2 = 35; VS2 = 36; VL16 = 37; VPF = 38; VZ = 39; VF = 40; V3 = 41; VONE = 42; T = 44
    TM = 208
    ACC = 56; OLD = 120; GT = 184; GS = 200; GP = 208
    FR = 144; GO = 192; GP3 = 240; GPS = 112
    S_W = 8; S_WD = 12; S_HC = S_ST = S_PT = S_GX = S_FL = 16; S_XH = 20
    S_J = 28; S_I = 29; S_WV = 30; S_WB = 31; S_CP = 32; S_CS = 33; S_SO = 34; S_XO = 35
    S_PO = 36; S_PS = 37
    S_B0 = 38; S_B1 = 39; S_A0 = 21; S_A1 = 22; S_CNT = 49; S_GO = 50; S_XS = 51; S_SS = 52; S_PF = 53
    S_MK = 54
    S_OWN = 56; S_PAR = 57; S_SNG = 58; S_TMP = 59
    S_GW = 40; S_GR = 41; S_FW = 42; S_FR = 43
    if not fused: e("s_cmp_ge_u32 s2, 256\ns_cbranch_scc1 K3_end")
    else: e("s_mov_b32 s23, s59\ns_mov_b64 s[26:27], s[42:43]\ns_mov_b64 s[44:45], s[40:41]\ns_mov_b64 s[40:41], s[12:13]")
    if not fused: e("s_load_dwordx4 s[40:43], s[0:1], 32\ns_load_dwordx2 s[44:45], s[0:1], 48\ns_load_dwordx2 s[46:47], s[0:1], 72")
    if not fused: tm.start()
    ng = 16 // C; R = 32 // C
    lg = lambda x: int(math.log2(x))
    e(f"v_lshrrev_b32 v1, 6, v0\nv_and_b32 v2, 63, v0\ns_and_b32 s3, s2, 7\ns_lshr_b32 s4, s2, 3\nv_readfirstlane_b32 s{S_WV}, v1")
    e(f"s_and_b32 s5, s3, {ng-1}\ns_lshl_b32 s5, s5, {lg(C)}\ns_and_b32 s6, s4, {C-1}\ns_add_u32 s{S_J}, s5, s6")
    e(f"s_lshr_b32 s5, s3, {lg(ng)}\ns_lshl_b32 s5, s5, {lg(R)}\ns_lshr_b32 s6, s4, {lg(C)}\ns_add_u32 s{S_I}, s5, s6")
    e(f"v_lshlrev_b32 v{VL16}, 4, v2")
    e(f"v_bfe_u32 v3, v2, 2, 3\nv_and_b32 v{TM}, 3, v2\nv_lshlrev_b32 v{TM}, 4, v{TM}\nv_lshrrev_b32 v{TM+1}, 5, v2\nv_lshl_add_u32 v{TM+1}, v{TM+1}, 6, v{TM}")
    e(f"s_mul_i32 s{S_WB}, s{S_WV}, 9216")
    e(f"s_and_b32 s3, s{S_J}, 1\ns_mul_i32 s6, s{S_J}, 576\ns_lshl_b32 s7, s3, 6\ns_add_u32 s{S_CP}, s6, s7")
    e(f"s_and_b32 s4, s{S_WV}, 1\ns_mul_i32 s5, s4, {72*9216}\ns_add_u32 s{S_CP}, s{S_CP}, s5")
    e(f"v_mul_u32_u24 v1, 9216, v3\nv_add_u32 v{V1}, v1, v{TM+1}")
    for i in range(1, 9): e(f"v_add_u32 v{V1+i}, {8*i*9216 - (i%3)*1024}, v{V1}")
    e(f"s_lshl_b32 s5, s{S_I}, 2\ns_add_u32 s5, s5, s{S_WV}\ns_mul_i32 s{S_XO}, s5, 36864\ns_add_u32 s{S_XH}, s{S_XO}, {WS_HC}")
    e(f"v_lshrrev_b32 v1, 5, v2\nv_lshlrev_b32 v1, 8, v1\nv_bfe_u32 v{T}, v2, 2, 2\nv_lshl_add_u32 v1, v{T}, 6, v1")
    e(f"v_bfe_u32 v{T}, v2, 4, 1\nv_lshl_add_u32 v1, v{T}, 5, v1\nv_and_b32 v{T}, 3, v2\nv_lshl_add_u32 v{TRB}, v{T}, 3, v1")
    for i in range(1, 4): e(f"v_add_u32 v{TRB+i}, {i*SLOT}, v{TRB}")
    if not fused:
        e("s_waitcnt lgkmcnt(0)")
        e(f"s_cmp_lt_u32 s{S_WV}, 2\ns_cselect_b32 s40, s40, s42\ns_cselect_b32 s41, s41, s43")
    srd(e, S_W, 40, 576*4608*2)
    srd(e, S_HC, 46, WS_BYTES)

    NST = 27
    def dma_instrs(st, inbody=False):
        slot = st % 4
        L = []
        def grp(g, so, vs, sr):
            if so: L.append((so, False))
            L.append((f"s_add_u32 m0, s{S_WB}, {slot*SLOT + g*3072}", False))
            for k in range(3):
                L.append((f"buffer_load_dwordx4 v{vs[k]}, s[{sr}:{sr+3}], s{sreg} offen" + (f" offset:{k*1024}" if k else "") + " lds", True))
        sreg = S_SO
        if inbody and st < 18:
            sreg = {14: S_A0, 15: S_A1, 16: S_B0, 17: S_B1}[st]; vb = V1 if st < 16 else VB
            for g in range(3): grp(g, None, [vb+3*g, vb+3*g+1, vb+3*g+2], S_W)
            L.append((f"s_add_u32 s{sreg}, s{sreg}, 128", False))
        elif st < 16:
            p, q = st // 4, st % 4
            for g in range(3):
                grp(g, f"s_add_u32 s{S_SO}, s{S_CP}, {p*128 + q*144*9216}" if g == 0 else None, [V1+3*g, V1+3*g+1, V1+3*g+2], S_W)
        elif st < 24:
            k = st - 18; b = S_OWN if k < 3 else S_PAR; o = (k % 3)*64*1152
            grp(0, f"s_add_u32 s{S_SO}, s{b}, {o}", [VE, VE+1, VE+2], S_WD)
            grp(1, f"s_add_u32 s{S_SO}, s{b}, {o + 8*1152}", [VE, VE+1, VE+2], S_WD)
            grp(2, f"s_add_u32 s{S_SO}, s{b}, {o + 384}", [VE, VP1, VS], S_WD)
        else:
            ls = st - 24
            for g, (b, o) in enumerate(((S_OWN, 3*64*1152), (S_PAR, 3*64*1152), (S_SNG, 0))):
                grp(g, f"s_add_u32 s{S_SO}, s{b}, {o + 128*ls}", [VE, VP1, VS+1+ls], S_WD)
        return L
    def emit_list(L):
        n = 0; prev_m0 = False
        for t, tag in L:
            if tag:
                if prev_m0: e("s_nop 0"); n += 1
                e.vmem(t, tag); prev_m0 = False
            else:
                e(t); prev_m0 = "m0" in t
            n += 1
        return n
    def xload_instrs(s):
        L = []
        if s % 4 == 0: L.append((f"s_add_u32 s{S_XS}, s{S_XH}, {s*1024}", None))
        L.append((f"buffer_load_dwordx4 a[{4*s}:{4*s+3}], v{VL16}, s[{S_HC}:{S_HC+3}], s{S_XS} offen" + (f" offset:{(s%4)*1024}" if s % 4 else "") + xf, ("x", s)))
        return L
    if not fused:
        emit_list(xload_instrs(0))
        emit_list([(t, ("dma", 0) if d else None) for t, d in dma_instrs(0)])
        emit_list(xload_instrs(1)); emit_list(xload_instrs(2))
    else:
        e.vm = []; e.vm_done = 0; e.lg = []; e.lg_done = 0

    q = Queue(e, window=10)
    def emit_op(o, _orig=e.op):
        if callable(o.text):
            o.text(); o.pos = e.n - 1; return o
        return _orig(o)
    e.op = emit_op
    chl = [None]
    def chain(text, first_deps=()):
        prev = None
        for l in text.split("\n") if isinstance(text, str) else text:
            if isinstance(l, str):
                l = l.strip()
                if not l: continue
            deps = [(prev, 0)] if prev else list(first_deps) + ([(chl[0], 0)] if chl[0] and chl[0].pos is None else [])
            cost = 2 if isinstance(l, str) and re.match(r"v_(rcp|sqrt|exp|permlane)", l) else 1
            prev = q.add(Op(l, cost=cost, deps=deps))
        chl[0] = prev
        return prev
    e(f"s_lshl_b32 s{S_SS}, s5, 8\nv_and_b32 v{VZ}, 31, v2\nv_lshlrev_b32 v{VZ}, 3, v{VZ}\nv_lshrrev_b32 v1, 5, v2\nv_mul_u32_u24 v1, {6*16384}, v1\nv_add_u32 v{VZ}, v{VZ}, v1")
    srd(e, S_WD, 44, 4608*576*2 + 4096, -4096)
    e(f"s_xor_b32 s7, s3, 1\ns_lshl_b32 s7, s7, 9\ns_add_u32 s{S_CS}, s6, s7\ns_mul_i32 s4, s4, {144*9216}\ns_add_u32 s{S_CS}, s{S_CS}, s4")
    e(f"v_lshrrev_b32 v1, 2, v2\nv_mul_u32_u24 v{T}, 9216, v1\nv_add_u32 v{V3}, v{T}, v{TM}")
    e(f"s_lshl_b32 s4, s3, 6\ns_mul_i32 s5, s{S_WV}, {16*1152}\ns_add_u32 s5, s5, 4096\ns_add_u32 s{S_TMP}, s5, s4")
    e(f"v_mul_u32_u24 v{T}, 1152, v3\nv_add3_u32 v{VE}, v{T}, v{TM+1}, s{S_TMP}\nv_subrev_u32 v{VE+1}, {1024-128}, v{VE}\nv_subrev_u32 v{VE+2}, {2048-256}, v{VE}\nv_add_u32 v{VP1}, {8*1152-1024}, v{VE}")
    e(f"v_mul_u32_u24 v{T}, 1152, v1\nv_add_u32 v{T}, v{T}, v{TM}\ns_add_u32 s5, s5, s7")
    e(f"s_sub_u32 s7, s5, {2048+384}\nv_add_u32 v{VS}, s7, v{T}\ns_sub_u32 s7, s5, {2048+256}\nv_add_u32 v{VS+3}, s7, v{T}")
    e(f"s_sub_u32 s7, s{S_TMP}, {2048-384}\nv_add_u32 v{VS+1}, s7, v{T}\ns_sub_u32 s7, s{S_TMP}, {2048-320}\nv_add_u32 v{VS+2}, s7, v{T}")
    e(f"""s_lshr_b32 s5, s{S_J}, 1
s_mul_i32 s6, s5, {576*1152}
s_mul_i32 s7, s3, 576
s_add_u32 s6, s6, s7
s_mul_i32 s7, s3, {320*1152}
s_add_u32 s{S_OWN}, s6, s7
s_add_u32 s{S_PAR}, s6, {320*1152}
s_sub_u32 s{S_PAR}, s{S_PAR}, s7
s_lshl_b32 s7, s3, 1
s_xor_b32 s7, s7, s{S_WV}
s_sub_u32 s7, s7, s{S_WV}
s_add_u32 s7, s7, 16
s_mul_i32 s7, s7, {16*1152}
s_add_u32 s{S_SNG}, s6, s7""")
    e(f"""s_mul_i32 s5, s5, {ACT_BYTES}
s_add_u32 s5, s5, s{S_XO}
s_add_u32 s5, s5, {WS_PART}
s_mul_i32 s6, s3, {18*1024 if fused else 20*1024}
s_add_u32 s{S_PO}, s5, s6
s_lshl_b32 s6, s3, 11
s_add_u32 s6, s6, {16*1024}
s_add_u32 s{S_PS}, s5, s6""")
    e(f"""s_lshl_b32 s5, s{S_I}, 4
s_add_u32 s5, s5, s{S_J}
s_lshl_b32 s5, s5, 2
s_add_u32 s5, s5, s{S_WV}
s_xor_b32 s6, s5, 4
s_mul_i32 s{S_GW}, s5, 18432
s_mul_i32 s{S_GR}, s6, 18432
s_lshl_b32 s{S_FW}, s5, 6
s_lshl_b32 s{S_FR}, s6, 6
s_add_u32 s{S_GW}, s{S_GW}, {WS_GX}
s_add_u32 s{S_GR}, s{S_GR}, {WS_GX}
s_add_u32 s{S_FW}, s{S_FW}, {WS_FL}
s_add_u32 s{S_FR}, s{S_FR}, {WS_FL}
s_mov_b32 s{S_GO}, s{S_GW}
s_add_u32 s{S_A0}, s{S_CP}, {128 + 288*9216}
s_add_u32 s{S_A1}, s{S_CP}, {128 + 432*9216}
s_add_u32 s{S_B0}, s{S_CP}, 256
s_add_u32 s{S_B1}, s{S_CP}, {256 + 144*9216}
s_mov_b32 s{S_CNT}, 0""")
    for i in range(9): e(f"v_mov_b32 v{VB+i}, v{V1+i}")
    if wdpf:
        e(f"s_mul_i32 s5, s{S_WV}, 42\nv_add_u32 v1, s5, v2\nv_lshlrev_b32 v1, 7, v1\nv_cmp_gt_u32 s[54:55], 14, v2\nv_mov_b32 v{VPF}, 0x40000000")
        e(f"s_mul_i32 s5, s{S_I}, 18\ns_mul_i32 s6, s{S_J}, 288\ns_add_u32 s5, s5, s6\ns_mul_i32 s{S_PF}, s5, 1152\ns_add_u32 s{S_PF}, s{S_PF}, 4096\nv_cndmask_b32 v{VPF}, v{VPF}, v1, s[54:55]")

    c = 0.7978845608028654; l2e = 1.4426950408889634
    k1 = -2*c*l2e; k2 = k1*0.044715
    M = []
    for p in range(4):
        for ks in range(36):
            qq, s = ks // 9, ks % 9
            for uu in range(2):
                for mat in range(2):
                    o = (mat*18 + 2*s)*1024 + uu*512
                    M.append(dict(acc=f"v{ACC + 32*uu + 16*mat}", dst=f"v{OLD + 32*uu + 16*mat}" if ks == 35 else None, b=f"a[{4*ks}:{4*ks+3}]",
                                  first=(ks == 0), last=(ks == 35), st=4*p+qq, rd=(o, o + 1024), xs=ks if p == 0 else None, unit=2*p+uu, mat=mat, ph=1))
        t = M[-8:]; M[-8:] = [t[0], t[1], t[4], t[5], t[2], t[3], t[6], t[7]]
    for ks in range(36):
        qq, s = ks // 18, ks % 18
        for mat in range(2):
            o = (mat*18 + s)*1024
            M.append(dict(acc=f"v{ACC + 16*mat}", dst=None, b=f"a[{4*ks}:{4*ks+3}]", first=(ks == 0), last=(ks == 35), st=16+qq, rd=(o, o + 512), xs=None, unit=8, mat=mat, ph=1))
    tacc = {0: "a0", 1: "a16", 6: "a32", 2: "a48", 3: "a64", 7: "a80", 4: "a96", 5: f"v{ACC+32}", 8: f"v{ACC+48}"}
    def eoff(t):
        if t == 8: return (8*1024, 8*1024 + 512)
        cp, uu = t >> 1, t & 1
        return ((cp*1024 + uu*512, (3 + cp)*1024 + uu*512) if cp < 3 else (6*1024 + uu*512, 7*1024 + uu*512))
    for k in range(6):
        for w in range(4):
            g = (f"a[{GO+16*k+4*w}:{GO+16*k+4*w+3}]", ("go", 4*k + w)) if k < 3 else (f"v[{GP+16*(k-3)+4*w}:{GP+16*(k-3)+4*w+3}]", ("gp", 4*(k-3) + w))
            for t in range(9):
                o = eoff(t)
                M.append(dict(acc=tacc[t], dst=None, b=g[0], gsrc=g[1], first=(k == 0 and w == 0), last=False, st=18+k, rd=(w*9216 + o[0], w*9216 + o[1]), xs=None, tile=t, ph=2))
    lateks = [(0, w, f"v[{GT+4*w}:{GT+4*w+3}]", ("cv", 12 + w)) for w in range(4)] + [(2, w, f"v[{GS+4*w}:{GS+4*w+3}]", ("cv", 16 + w)) for w in range(2)] + \
             [(1, w, f"a[{GP3+4*w}:{GP3+4*w+3}]", ("gp", 12 + w)) for w in range(4)] + [(2, 2 + w, f"a[{GPS+4*w}:{GPS+4*w+3}]", ("gp", 16 + w)) for w in range(2)]
    for ls in range(3):
        tiles = [2*ls, 2*ls + 1, 6 + ls]
        if ls == 0 and late0 == "own":
            order = [(t, k) for k in range(6) for t in tiles] + [(t, k) for t in tiles for k in range(6, 12)]
        else:
            order = [(t, k) for t in tiles for k in range(12)]
        for t, k in order:
            gi, w, b, src = lateks[k]
            base = w*9216 + gi*3072
            rd = (base + (t & 1)*512, base + 1024 + (t & 1)*512) if t < 6 else (base + 2048, base + 2048 + 512)
            M.append(dict(acc=tacc[t], dst=None, b=b, gsrc=src, first=False, last=(k == 11), st=24+ls, rd=rd, xs=None, tile=t, ph=2))
    NM = len(M); assert NM == 972
    LA = 8
    def rng(r, n=16):
        return f"{r[0]}[{int(r[1:])}:{int(r[1:])+n-1}]"

    gdone = {}; tstate = {"last": [None, None]}; pairctr = [0]
    oldbusy = {}
    memq = []
    def add_gelu(unit, gacc, uacc, mg, mu, inbody):
        gb = GS if unit == 8 else GT + 8*(unit & 1)
        for k in range(8):
            ts = pairctr[0] % 2; pairctr[0] += 1
            ta, tb = T + 2*ts, T + 2*ts + 1
            ga, gb_, ua, ub = gacc + 2*k, gacc + 2*k + 1, uacc + 2*k, uacc + 2*k + 1
            prev = tstate["last"][ts]
            d0 = [(mg, 13)] + ([(prev, 0)] if prev else [])
            sa = q.add(Op(f"v_mul_f32 v{ta}, v{ga}, v{ga}", deps=d0))
            sb = q.add(Op(f"v_mul_f32 v{tb}, v{gb_}, v{gb_}", deps=d0))
            fa = q.add(Op(f"v_fma_f32 v{ta}, v{ta}, v{VK2}, v{VK1}", deps=[(sa, 0)]))
            fb = q.add(Op(f"v_fma_f32 v{tb}, v{tb}, v{VK2}, v{VK1}", deps=[(sb, 0)]))
            aa = q.add(Op(f"v_mul_f32 v{ta}, v{ga}, v{ta}", deps=[(fa, 0)]))
            ab = q.add(Op(f"v_mul_f32 v{tb}, v{gb_}, v{tb}", deps=[(fb, 0)]))
            ea = q.add(Op(f"v_exp_f32 v{ta}, v{ta}", cost=2, deps=[(aa, 0)]))
            pa = q.add(Op(f"v_mul_f32 v{ua}, v{ga}, v{ua}", deps=[(mg, 13), (mu, 13)]))
            eb = q.add(Op(f"v_exp_f32 v{tb}, v{tb}", cost=2, deps=[(ab, 0)]))
            pb = q.add(Op(f"v_mul_f32 v{ub}, v{gb_}, v{ub}", deps=[(mg, 13), (mu, 13)]))
            da = q.add(Op(f"v_fma_f32 v{ta}, v{ta}, v{VS2}, v{VS2}", deps=[(ea, 1)]))
            db = q.add(Op(f"v_fma_f32 v{tb}, v{tb}, v{VS2}, v{VS2}", deps=[(eb, 1)]))
            ra = q.add(Op(f"v_rcp_f32 v{ta}, v{ta}", cost=2, deps=[(da, 0)]))
            rb = q.add(Op(f"v_rcp_f32 v{tb}, v{tb}", cost=2, deps=[(db, 0)]))
            ya = q.add(Op(f"v_mul_f32 v{ta}, v{ua}, v{ta}", deps=[(ra, 1), (pa, 0)]))
            yb = q.add(Op(f"v_mul_f32 v{tb}, v{ub}, v{tb}", deps=[(rb, 1), (pb, 0)]))
            cv = q.add(Op(f"v_cvt_pk_bf16_f32 v{gb + k}, v{ta}, v{tb}", deps=[(ya, 0), (yb, 0)]))
            tstate["last"][ts] = cv
            fi = 2*unit + k//4
            gdone.setdefault(fi, []).append(cv)
            oldbusy.setdefault(f"v{gacc}", []).append(cv); oldbusy.setdefault(f"v{uacc}", []).append(cv)
            if k % 4 == 3:
                r = gb + k - 3
                L = []
                if unit == 8 and k == 3: L.append((f"s_add_u32 s{S_GO}, s{S_GO}, 4096", None))
                off = (fi % 4)*1024
                L.append((f"buffer_store_dwordx4 v[{r}:{r+3}], v{VL16}, s[{S_GX}:{S_GX+3}], s{S_GO} offen" + (f" offset:{off}" if off else "") + gst, ("gs", fi)))
                if nogs and unit < 6: L = [("s_nop 0", None)]
                memq.append(dict(deps=list(gdone[fi]), L=L))
    outn = [0]
    VPS = 48; VLZ = 49; VRH = 50; VRO = 53; VRA = 3
    outbusy = [[], [], [], []]
    def add_out(t, acc, mo):
        def cv(i, deps): return q.add(Op(f"v_cvt_pk_bf16_f32 v{r+i}, v{r+2*i}, v{r+2*i+1}", deps=deps))
        prev = None; cvs = []
        if acc[0] == "a":
            bi = outn[0] % 4; outn[0] += 1
            assert all(x.get("done") for x in outbusy[bi])
            r = OLD + 16*bi; a = int(acc[1:])
            for i in range(8):
                r0 = q.add(Op(f"v_accvgpr_read_b32 v{r+2*i}, a{a+2*i}", deps=[(mo, 13)]))
                r1 = q.add(Op(f"v_accvgpr_read_b32 v{r+2*i+1}, a{a+2*i+1}", deps=[(mo, 13)]))
                prev = cv(i, [(r0, 0), (r1, 0)] + ([(prev, 0)] if prev else [])); cvs.append(prev)
        else:
            bi = None; r = int(acc[1:])
            for i in range(8):
                prev = cv(i, [(mo, 13)] + ([(prev, 0)] if prev else [])); cvs.append(prev)
        new = []
        for h in range(2):
            L = []
            if fused:
                g_, fi_ = (t - 6, 4 + h) if t >= 6 else (t >> 1, 2*(t & 1) + h)
                if fi_ == 0: L.append((f"s_add_u32 s{S_TMP}, s{S_PO}, {g_*6144}", None))
                L.append((f"buffer_store_dwordx4 v[{r+4*h}:{r+4*h+3}], v{VPS}, s[{S_PT}:{S_PT+3}], s{S_TMP} offen" + (f" offset:{fi_*128}" if fi_ else "") + store_flags, ("store", g_)))
                x = dict(deps=[cvs[4*h+3]], L=L); memq.append(x); new.append(x)
                continue
            so = S_PS if t == 8 else S_TMP
            if t != 8 and h == 0: L.append((f"s_add_u32 s{S_TMP}, s{S_PO}, {t*2048}", None))
            L.append((f"buffer_store_dwordx4 v[{r+4*h}:{r+4*h+3}], v{VL16}, s[{S_PT}:{S_PT+3}], s{so} offen" + (f" offset:1024" if h else "") + store_flags, ("store", t - 6 if t >= 6 else t >> 1)))
            x = dict(deps=[cvs[4*h+3]], L=L); memq.append(x); new.append(x)
        if bi is not None: outbusy[bi] = new
    def pop_mem():
        y = memq.pop(0); y["done"] = True
        return emit_list(y["L"])
    def mem_ready():
        return memq and all(d.pos is not None for d in memq[0]["deps"])
    def reads(m):
        d = M[m]; fr = FR + 4*(m % 12); vb = TRB + d["st"] % 4
        e.ds(f"ds_read_b64_tr_b16 a[{fr}:{fr+1}], v{vb} offset:{d['rd'][0]}", m)
        e.ds(f"ds_read_b64_tr_b16 a[{fr+2}:{fr+3}], v{vb} offset:{d['rd'][1]}", m)

    early = []
    for s_ in range(0 if fused else 3, 36): early.append((4*s_ - (4 if s_ == 35 else 0), xload_instrs(s_)))
    for st in (() if fused else (1, 2, 3)):
        grp = []; k = 0
        for t, isd in dma_instrs(st):
            grp.append((t, ("dma", st) if isd else None))
            if isd:
                early.append((36*st - 8 - 3*(8-k) - 1, grp)); grp = []; k += 1
    for g in range(6):
        early.append((112 + g, [(f"s_add_u32 s{S_TMP}, s{S_SS}, {WS_ST + g*16384}", None),
                                (f"buffer_load_dwordx2 v[{TM+2+2*g}:{TM+3+2*g}], v{VZ}, s[{S_ST}:{S_ST+3}], s{S_TMP} offen" + xf, "st")]))
    early.sort(key=lambda x: x[0])
    def emit_early():
        return emit_list(early.pop(0)[1])
    def stats_ops():
        b = TM + 2
        inv = hex(f2u(1.0/576))
        txt = [lambda: e.wait_vm(lambda t: t == "st")] + f"""v_add_f32 v{b}, v{b}, v{b+2}
v_add_f32 v{b+1}, v{b+1}, v{b+3}
v_add_f32 v{b+4}, v{b+4}, v{b+6}
v_add_f32 v{b+5}, v{b+5}, v{b+7}
v_add_f32 v{b+8}, v{b+8}, v{b+10}
v_add_f32 v{b+9}, v{b+9}, v{b+11}
v_add_f32 v{b}, v{b}, v{b+4}
v_add_f32 v{b+1}, v{b+1}, v{b+5}
v_add_f32 v{b}, v{b}, v{b+8}
v_add_f32 v{b+1}, v{b+1}, v{b+9}
v_mov_b32 v{b+2}, v{b}
v_mov_b32 v{b+3}, v{b+1}
v_mov_b32 v{VONE}, 1
v_mov_b32 v{VONE+1}, 2
v_permlane32_swap_b32 v{b}, v{b+2}
v_permlane32_swap_b32 v{b+1}, v{b+3}
v_mov_b32 v{VZ}, 0
v_add_f32 v{b}, v{b}, v{b+2}
v_add_f32 v{b+1}, v{b+1}, v{b+3}
v_mul_f32 v{b}, {inv}, v{b}
v_mul_f32 v{b+1}, {inv}, v{b+1}
v_fma_f32 v{b+1}, -v{b}, v{b}, v{b+1}
v_max_f32 v{b+1}, 0, v{b+1}
v_cvt_pk_bf16_f32 v{b+1}, v{b+1}, v{b+1}
v_and_b32 v{b+1}, 0xffff0000, v{b+1}
v_add_f32 v{b+1}, {hex(f2u(1e-5))}, v{b+1}
v_cvt_pk_bf16_f32 v{b+1}, v{b+1}, v{b+1}
v_and_b32 v{b+1}, 0xffff0000, v{b+1}
v_sqrt_f32 v{b+1}, v{b+1}
s_nop 0
v_cvt_pk_bf16_f32 v{b+1}, v{b+1}, v{b+1}
v_and_b32 v{b+1}, 0xffff0000, v{b+1}
v_rcp_f32 v{b}, v{b+1}
v_mul_f32 v{VS2}, v{b+1}, v{b+1}
v_mul_f32 v{VK1}, {hex(f2u(k1))}, v{b}
v_mul_f32 v{b+1}, v{b}, v{b}
v_mul_f32 v{b}, {hex(f2u(k2))}, v{b}
v_mul_f32 v{VK2}, v{b}, v{b+1}""".split("\n")
        chain(txt)
    spins = []
    def poll_check(val, name):
        e.wait_vm(lambda t: t == "poll" + name)
        e(f"v_readfirstlane_b32 s{S_TMP}, v{VF}\ns_nop 1\ns_cmp_ge_u32 s{S_TMP}, {val}\ns_cbranch_scc0 K3_spin{name}\nK3_ret{name}:")
        spins.append((name, val))
    def gload(kind, fi):
        L = []
        base = S_GW if kind == "go" else S_GR
        if fi % 4 == 0: L.append((f"s_add_u32 s{S_XS}, s{base}, {fi*1024}", None))
        if kind == "go": dst = f"a[{GO+4*fi}:{GO+4*fi+3}]"
        elif fi < 12: dst = f"v[{GP+4*fi}:{GP+4*fi+3}]"
        elif fi < 16: dst = f"a[{GP3+4*(fi-12)}:{GP3+4*(fi-12)+3}]"
        else: dst = f"a[{GPS+4*(fi-16)}:{GPS+4*(fi-16)+3}]"
        L.append((f"buffer_load_dwordx4 {dst}, v{VL16}, s[{S_GX}:{S_GX+3}], s{S_XS} offen" + (f" offset:{(fi%4)*1024}" if fi % 4 else "") + (old if kind == "go" else gld), (kind, fi)))
        return L
    ldq = []
    def flag_store(val):
        e.vmem(f"buffer_store_dword v{VONE+val-1}, v{VZ}, s[{S_FL}:{S_FL+3}], s{S_FW} offen sc0 sc1", "flag")
    def poll_issue(name):
        e.vmem(f"buffer_load_dword v{VF}, v{VZ}, s[{S_FL}:{S_FL+3}], s{S_FR} offen sc0 sc1", "poll" + name)
    actions = {}
    def act1():
        e.wait_vm(lambda t: t and t[0] == "gs" and t[1] < 12); flag_store(1); return 3
    actions[f1[0]] = act1
    actions[f1[1]] = lambda: poll_issue("A") or 2
    actions[f1[2]] = lambda: poll_check(1, "A") or ldq.extend(gload("gp", fi) for fi in range(12)) or 5
    def act2pre():
        q.drain()
        while memq: pop_mem()
        return 1
    def act2():
        e.wait_vm(lambda t: t and t[0] == "gs"); flag_store(2); return 2
    actions[f2[0]] = act2pre
    actions[f2[1]] = act2
    actions[f2[2]] = lambda: poll_issue("B") or 1
    actions[f2[3]] = lambda: poll_check(2, "B") or ldq.extend(gload("gp", fi) for fi in range(12, 18)) or 5

    def apoll(sreg, val=0):
        return f"v_mov_b32 v{VF}, {val}\nbuffer_atomic_add v{VF}, v{VLZ}, s[{S_FL}:{S_FL+3}], s{sreg} offen sc0 sc1"
    if not fused:
        emit_early(); emit_early(); emit_early()
        e.wait_vm(lambda t: t == ("dma", 0))
        e("s_barrier")
        for m in range(LA): reads(m)
        emit_early(); emit_early()
    else:
        e(f"s_lshl_b32 s5, s{S_I}, 2\ns_add_u32 s5, s5, s{S_WV}\ns_lshl_b32 s24, s5, 8\ns_add_u32 s24, s24, {WS_FA}")
        e(f"v_cmp_eq_u32 vcc, 0, v2\nv_mov_b32 v{VONE}, 1\nv_mov_b32 v1, 0x40000000\nv_cndmask_b32_e64 v{VLZ}, v1, 0, vcc")
        tm.stamp(-10)
        e(f"s_waitcnt vmcnt({fused['nleft']})")
        tm.stamp("A0")
        e(f"s_cmp_lt_i32 s23, 0\ns_cbranch_scc1 K3_ns\nbuffer_atomic_add v{VONE}, v{VLZ}, s[{S_FL}:{S_FL+3}], s23 offen sc1\nK3_ns:")
        e("s_barrier")
        ps = fused.get("pre_stages", 2); nrem = 9*(4 - ps)
        LL = [(t, ("dma", st) if d else None) for st in range(ps, 4) for t, d in dma_instrs(st)]
        k_ = [i for i, (t, d) in enumerate(LL) if d][na-1] + 1
        emit_list(LL[:k_])
        for m in range(LA): reads(m)
        e(f"""s_and_b32 s6, s{S_J}, 1
s_lshl_b32 s25, s5, 1
s_add_u32 s25, s25, s6
s_lshl_b32 s25, s25, 8
s_add_u32 s25, s25, {WS_FB}
s_lshr_b32 s7, s{S_J}, 1
s_mul_i32 s48, s7, 768
s_mul_i32 s4, s6, {18*1024}
s_add_u32 s48, s48, s4
s_add_u32 s48, s48, s{S_XO}
s_lshl_b32 s7, s7, 2
v_cmp_lt_u32 vcc, 31, v2
v_cmp_gt_u32 s[54:55], 48, v2
v_bfe_u32 v{T}, v2, 2, 3
v_mul_u32_u24 v{VPS}, 768, v{T}
v_lshrrev_b32 v{T}, 5, v2
v_lshl_add_u32 v{VPS}, v{T}, 6, v{VPS}
v_and_b32 v{T}, 3, v2
v_lshl_add_u32 v{VPS}, v{T}, 4, v{VPS}
v_lshrrev_b32 v{T}, 3, v2
v_bfe_u32 v{T+1}, v2, 2, 2
v_cndmask_b32_e64 v{T}, v{T}, v{T+1}, vcc
v_bfe_u32 v{T+1}, v2, 1, 2
v_bfe_u32 v{T+2}, v2, 1, 1
v_add_u32 v{T+2}, 4, v{T+2}
v_cndmask_b32_e64 v{T+1}, v{T+1}, v{T+2}, vcc
v_and_b32 v{T+2}, 1, v2
v_lshlrev_b32 v{VRA}, 4, v{T}
v_lshl_add_u32 v{VRA}, v{T+2}, 6, v{VRA}
v_lshl_add_u32 v{VRA}, v{T+1}, 7, v{VRA}
v_cndmask_b32 v{VRA}, v1, v{VRA}, s[54:55]
v_add_u32 v{T}, s7, v{T}
v_mul_u32_u24 v{T+3}, 1152, v{T}
v_lshl_add_u32 v{T+3}, v{T+2}, 4, v{T+3}
v_lshl_add_u32 v{T}, v{T+2}, 5, v{T}
v_lshlrev_b32 v{T}, 4, v{T}
v_cndmask_b32 v{T}, v1, v{T}, s[54:55]
v_cndmask_b32 v{T+3}, v1, v{T+3}, s[54:55]
s_mul_i32 s7, s6, 20
v_add_u32 v{T+1}, s7, v{T+1}
s_mul_i32 s6, s6, -18
s_add_u32 s6, s6, 12
v_mov_b32 v1, s6""" + "".join(f"""
v_cndmask_b32_e64 v{T+2}, {4*g}, {('v1' if g == 2 else 8 + 2*g)}, vcc
v_add_u32 v{T+2}, v{T+2}, v{T+1}
v_lshl_add_u32 v{VRH+g}, v{T+2}, 10, v{T}
v_lshl_add_u32 v{VRO+g}, v{T+2}, 5, v{T+3}""" for g in range(3)))
        tm.stamp("A1")
        e(apoll(24))
        emit_list(LL[k_:])
        rd = f"v_readfirstlane_b32 s5, v{VF}\ns_nop 1"
        e(f"s_waitcnt vmcnt({nrem-na})\n{rd}\ns_cmp_ge_u32 s5, 12\ns_cbranch_scc1 K3_pdA\nK3_plA:\n{apoll(24)}\ns_waitcnt vmcnt(0)\n{rd}")
        e(f"s_cmp_ge_u32 s5, 12\ns_cbranch_scc1 K3_pdA\ns_cmp_lg_u32 s5, 0\ns_cbranch_scc1 K3_plA\ns_sleep {slp}\ns_branch K3_plA\nK3_pdA:")
        tm.stamp(-11)
        e.vm = [("dma", k//9) for k in range(36)]; e.vm_done = 9*ps + na
        for _ in range(8): emit_early()
        HR = GP
        def hl(k):
            if k == 0: e(f"s_add_u32 s{S_XS}, s{S_XO}, {WS_HT}")
            e.vmem(f"buffer_load_dwordx4 v[{HR+4*k}:{HR+4*k+3}], v{VRH+k}, s[{S_HC}:{S_HC+3}], s{S_XS} offen sc0 sc1", "h"); return 2
        for k in range(3): actions[hpre + 4*k] = (lambda k=k: hl(k))
        def sigB(g):
            assert sum(1 for t in e.vm if t == ("store", g)) == 6
            e.wait_vm(lambda t: t == ("store", g))
            e.vmem(f"buffer_atomic_add v{VONE}, v{VLZ}, s[{S_FL}:{S_FL+3}], s25 offen sc1", "flag"); return 3
        if sig0: actions[sig0] = lambda: sigB(0)
    lastm = {}
    e.wait_lg(lambda t: t <= 3)
    B0, B1, HD = 136, 568, 7
    st8 = dict(dmaq=[], dma_st=None, stats=False, lastld=-100, qempty=None)
    godone = {}
    def moves(p):
        prev = None
        for i in range(16):
            prev = q.add(Op(f"v_accvgpr_write_b32 a{GO+16*p+i}, v{GT+i}", deps=[(prev, 0)] if prev else []))
            godone.setdefault(4*p + i//4, []).append(prev)
        return prev
    def dma_due(m, mr, left, dmaq):
        if m < B0 or dsp == 0: return mr % 2 == 1 or len(dmaq) >= left//2 + 1
        if len(dmaq) >= left: return True
        nd = sum(1 for _, isd in dmaq if isd)
        if not dmaq[0][1]:
            return nd == 0 or left <= (nd - 1)*dsp + dtail + 2
        return left <= (nd - 1)*dsp + dtail
    def gap(m, inbody, fillall=False):
        d = M[m]
        dmaq = st8["dmaq"]
        deps = []
        if d["xs"] is not None and m < B0:
            while not any(t == ("x", d["xs"]) for t in e.vm): emit_early()
            e.wait_vm(lambda t: t == ("x", d["xs"]))
        if d["ph"] == 2:
            kind, fi = d["gsrc"]
            if kind == "cv":
                for o in gdone[fi]:
                    if o.pos is None: q.drain_until(o)
                    deps.append((o, 2))
            elif kind == "gp":
                while not any(t == (kind, fi) for t in e.vm):
                    assert ldq, (m, kind, fi)
                    emit_list(ldq.pop(0))
                e.wait_vm(lambda t: t == (kind, fi))
        if d["dst"]:
            for o in oldbusy.get(d["dst"], []):
                if o.pos is None: q.drain_until(o)
            oldbusy[d["dst"]] = []
        fr = FR + 4*(m % 12)
        cs = "0" if d["first"] else rng(d["acc"])
        mo = e.op(Op(f"v_mfma_f32_32x32x16_bf16 {rng(d['dst'] or d['acc'])}, a[{fr}:{fr+3}], {d['b']}, {cs}", deps=deps))
        used = 0
        if timing and not fillall: tm.stamp(m) if fused else (tm.stamp(STAMPS.index(m)) if m in STAMPS else None)
        if d["last"]:
            if d["ph"] == 1:
                lastm[(d["unit"], d["mat"])] = mo
                if d["mat"] == 1:
                    a = int((d["dst"] or d["acc"])[1:])
                    pend_gelu.append((d["unit"], a - 16, a, lastm[(d["unit"], 0)], mo))
            else:
                add_out(d["tile"], d["acc"], mo)
        if not fillall:
            while pend_gelu: add_gelu(*pend_gelu.pop(0), inbody)
        mr = m + LA
        isbar = mr < NM and mr % 36 == 0
        if isbar:
            st = mr // 36
            assert not dmaq
            while st <= 3 and sum(1 for t in e.vm if t == ("dma", st)) < 9: emit_early()
            if e.wait_vm(lambda t: t == ("dma", st)): used += 1
            e("s_barrier"); used += 2
            if 4 <= st + 2 < NST:
                dmaq.extend(dma_instrs(st + 2, inbody)); st8["dma_st"] = st + 2
        if mr < NM:
            reads(mr); used += 2
        if not isbar and not fillall:
            early_dma = any(tag and tag[0] == "dma" for _, L in early for _, tag in L)
            left = 35 - mr % 36
            if m < B0 and dmaq and not early_dma and not dmaq[0][1]:
                while dmaq and not dmaq[0][1]:
                    e(dmaq.pop(0)[0]); used += 1
                if early and early[0][0] - lead <= m: used += emit_early()
            elif early and (early[0][0] - lead <= m or (early_dma and dmaq)) and not (dmaq and not early_dma and len(dmaq) >= left - 2):
                used += emit_early()
            elif dmaq and not early_dma and dma_due(m, mr, left, dmaq) and not (m in actions and len(dmaq) < left):
                t, isd = dmaq.pop(0)
                if isd: e.vmem(t, ("dma", st8["dma_st"])); used += vcost
                else: e(t); used += 1
            elif m in actions:
                pass
            elif wdpf and B0 <= m < B1 and m % 144 == 60:
                e.vmem(f"buffer_load_dword v1, v{VPF}, s[{S_WD}:{S_WD+3}], s{S_PF} offen", "pf")
                e(f"s_add_u32 s{S_PF}, s{S_PF}, {14*128}"); used += 1 + vcost
            elif mem_ready():
                used += pop_mem() + vcost - 1
            elif ldq and m - st8["lastld"] >= (ldpace if m < f2[3] else 2):
                used += emit_list(ldq.pop(0)) + vcost - 1; st8["lastld"] = m
        if m in actions and not fillall:
            used += actions[m]()
        if not st8["stats"] and sum(1 for t in e.vm if t == "st") == 6 and m >= 112:
            stats_ops(); st8["stats"] = True
        needwait = (m + 1) % 4 == 0 and m + 1 < NM
        bud = (bud2 if 576 <= m < f2[0] else budget) - used - (1 if needwait else 0)
        if B0 <= m < B1:
            rem = sum(o.cost for o in q.q); gl = 144 - (m - B0) % 144
            if rem > slack*gl: bud += 1
        if fillall: bud += 1
        if bud > 0: q.fill(bud)
        if m > 650 and not q.q and st8["qempty"] is None: st8["qempty"] = m
        if needwait: e.wait_lg(lambda t: t <= m + 4)
    pend_gelu = []
    def endpair():
        q.drain()
        while memq: pop_mem()
        assert not st8["dmaq"]
    def head(m0, p, extra=""):
        if p >= 0:
            chain(f"s_add_u32 s{S_GO}, s{S_GO}, 4096\n" + extra)
            moves(p)
        for m in range(m0, m0 + HD): gap(m, True, fillall=True)
        q.drain()
    for m in range(B0): gap(m, False)
    while early: emit_early()
    endpair()
    e.wait_vm(lambda t: t and t[0] == "x")
    mb = B1 - 144
    def seed():
        e.vm = [("dma", 12)]*9 + [("dma", 13)]*9; e.vm_done = 0
        e.lg = [mb + k//2 for k in range(16)]; e.lg_done = 8
        st8["dmaq"].clear(); pend_gelu.clear()
    main_lines = e.lines; e.lines = []
    for p, extra in ((0, ""), (1, f"s_mov_b32 s{S_B0}, s{S_CS}\ns_add_u32 s{S_B1}, s{S_CS}, {288*9216}\nv_mov_b32 v{VB}, v{V3}\n" +
                      "\n".join(f"v_add_u32 v{VB+i}, {16*i*9216 - (i%3)*1024}, v{V3}" for i in range(1, 9)))):
        e(f"K3_head{p}:")
        if fused: tm.stamp(-1-p)
        elif -1-p in STAMPS: tm.stamp(STAMPS.index(-1-p))
        seed(); head(mb, p, extra)
        e("s_branch K3_body")
    side_lines = e.lines; e.lines = main_lines
    seed(); head(mb, -1)
    e(".p2align 3\nK3_body:")
    tstate["last"] = [None, None]
    actions[mb + 40] = lambda: e(f"s_add_u32 s{S_CNT}, s{S_CNT}, 1") or 1
    for m in range(mb + HD, B1): gap(m, True)
    endpair()
    e(f"s_cmp_eq_u32 s{S_CNT}, 1\ns_cbranch_scc1 K3_head0\ns_cmp_eq_u32 s{S_CNT}, 2\ns_cbranch_scc1 K3_head1")
    chain(f"s_add_u32 s{S_GO}, s{S_GO}, 4096")
    lastmv = moves(2)
    tstate["last"] = [lastmv, lastmv]
    for m in range(B1, NM): gap(m, False)
    while q.q or memq:
        if mem_ready(): pop_mem()
        else: q.drain_until(q.q[0])
    if fused:
        tm.stamp(-12)
        srd(e, S_W, 26, ACT_BYTES)
        e(f"v_mov_b32 v14, 0x3f80\nv_mov_b32 v15, 0x3f800000")
        for j in range(NPART): e(f"s_add_u32 s{28+j if j < 7 else 36}, s48, {WS_PART + j*ACT_BYTES}")
        e(f"v_add_u32 v4, 6144, v{VRA}\nv_add_u32 v5, 12288, v{VRA}\ns_mov_b32 s54, 0xaaaaaaaa\ns_mov_b32 s55, 0xaaaaaaaa")
        sj = lambda j: 28 + j if j < 7 else 36
        PB = 208 - 96
        def loads(k, js=range(NPART)):
            for j in js:
                r = PB + 32*k + 4*j
                e.vmem(f"buffer_load_dwordx4 v[{r}:{r+3}], v{3+k}, s[{S_HC}:{S_HC+3}], s{sj(j)} offen sc0 sc1", (k, j))
        def red(k):
            H = HR + 4*k; O_ = 16 + 4*k
            for j in range(NPART):
                e.wait_vm(lambda t: t == (k, j))
                for d in range(4):
                    r = PB + 32*k + 4*j + d
                    if j == 0: e(f"v_lshlrev_b32 v{6+2*d}, 16, v{r}\nv_and_b32 v{7+2*d}, 0xffff0000, v{r}")
                    else: e(f"v_dot2c_f32_bf16 v{6+2*d}, v{r}, v14\nv_dot2c_f32_bf16 v{7+2*d}, v{r}, v15")
            e("s_nop 1")
            for d in range(4): e(f"v_cvt_pk_bf16_f32 v{O_+d}, v{6+2*d}, v{7+2*d}")
            for d in range(4): e(f"v_lshlrev_b32 v{6+2*d}, 16, v{H+d}\nv_and_b32 v{7+2*d}, 0xffff0000, v{H+d}")
            for d in range(4): e(f"v_dot2c_f32_bf16 v{6+2*d}, v{O_+d}, v14\nv_dot2c_f32_bf16 v{7+2*d}, v{O_+d}, v15")
            e("s_nop 1")
            for d in range(4): e(f"v_cvt_pk_bf16_f32 v{O_+d}, v{6+2*d}, v{7+2*d}")
            e("s_nop 0")
            for d in range(4): e(f"v_mov_b32_dpp v{6+d}, v{O_+d} quad_perm:[1,0,3,2] row_mask:0xf bank_mask:0xf")
            for d in range(2): e(f"v_cndmask_b32 v{O_+d}, v{O_+d}, v{8+d}, s[54:55]\nv_cndmask_b32 v{O_+2+d}, v{6+d}, v{O_+2+d}, s[54:55]")
            e.vmem(f"buffer_store_dwordx4 v[{O_}:{O_+3}], v{VRO+k}, s[{S_W}:{S_W+3}], s{S_XO} offen{of}", "o")
        def chk(g): return f"s_bfe_u32 s6, s5, {hex(8*g | 0x80000)}\ns_cmp_eq_u32 s6, 8"
        if not sig0: sigB(0)
        e(f"v_mov_b32 v{VF}, 0x100\nv_mov_b32 v1, 0x10000")
        e.wait_vm(lambda t: t == ("store", 1))
        e.vmem(f"buffer_atomic_add v{VF}, v{VLZ}, s[{S_FL}:{S_FL+3}], s25 offen sc0 sc1", "pl")
        e.wait_vm(lambda t: t == ("store", 2))
        e.vmem(f"buffer_atomic_add v1, v{VLZ}, s[{S_FL}:{S_FL+3}], s25 offen sc0 sc1", "pl2")
        tm.stamp("B0")
        e.wait_vm(lambda t: t == "pl")
        e(f"{rd}\ns_add_u32 s5, s5, 0x10100")
        for g in range(3):
            e(chk(g) + f"\ns_cbranch_scc1 K3_L{g}")
            e(f"s_waitcnt vmcnt({8*g})\nv_readfirstlane_b32 s7, v1\ns_nop 1\ns_add_u32 s7, s7, 0x10000\ns_max_u32 s5, s5, s7\n{chk(g)}\ns_cbranch_scc1 K3_L{g}")
            e(f"K3_P{g}:\n{apoll(25)}\ns_waitcnt vmcnt(0)\n{rd}\n{chk(g)}\ns_cbranch_scc0 K3_P{g}\nK3_L{g}:")
            tm.stamp(["B1", "B2", -13][g])
            loads(g)
        red(0); red(1); red(2)
    tm.end("K3_end")
    e("K3_end:\ns_endpgm")
    e.lines += side_lines
    for name, val in spins:
        e(f"""K3_spin{name}:
buffer_load_dword v{VF}, v{VZ}, s[{S_FL}:{S_FL+3}], s{S_FR} offen sc0 sc1
s_waitcnt vmcnt(0)
v_readfirstlane_b32 s{S_TMP}, v{VF}
s_nop 1
s_cmp_ge_u32 s{S_TMP}, {val}
s_cbranch_scc0 K3_spin{name}
s_branch K3_ret{name}""")
    if fused: e("KB_last:\ns_endpgm")
    e(f"; gelu queue empty at gap {st8['qempty']}")
    return e.text()
if __name__ == "__main__":
    t = gen_k3()
    print(t)
```

```python
from sched import *
from layout import *
from k3 import srd, f2u
from k1 import mask64, smask, ln_stats2, code_prefetch, slice_of_xcd, BIG, LBIG, L2E, LN2
SLOT = 36864
KVB = 110592
S_WS_ = 8; S_W = 12; S_WO = 16; S_X = 20; S_DBG = 24
S_I = 28; S_G = 29; S_KV = 30; S_XO = 31; S_RT = 32; S_CG = 33; S_WV = 34; S_WB = 35; S_WF = 36; S_WOO = 37; S_WL = 38; S_SIG = 39
VWO = 5

def gen_f1(e, tm, C=2, prefetch=True, cpf=True, gate_at=(5, 6), wp=14, pf1=(0, 1, 5, 6)):
    W = f"s[{S_WS_}:{S_WS_+3}]"
    AB = 12; T = 20; ONES = 24; PV = 24; CSV = 44; RSV = 80; PK = 54; ACC = 116; TT = 188
    VX = 204; VW = 208; WA = 216; GA = 230; ZB = 236
    XF = 0; WF = 16
    e("s_cmp_ge_u32 s2, 256\ns_cbranch_scc1 K3_end")
    e("s_load_dwordx4 s[40:43], s[0:1], 0\ns_load_dwordx4 s[44:47], s[0:1], 64\ns_load_dwordx2 s[48:49], s[0:1], 16")
    e(f"v_lshrrev_b32 v1, 6, v0\nv_and_b32 v2, 63, v0\ns_nop 0\nv_readfirstlane_b32 s{S_WV}, v1")
    if cpf: code_prefetch(e, "F_pc", "F_pc", "F_k2", 0, 252)
    tm.start()
    e(f"""s_lshr_b32 s4, s2, 3
s_sub_u32 s5, s4, 8
s_cmp_lt_u32 s4, 8
s_cselect_b32 s5, s4, s5
s_lshr_b32 s{S_CG}, s5, 2
s_and_b32 s5, s5, 3
s_and_b32 s3, s2, 7
s_lshl_b32 s6, s3, 2
s_add_u32 s{S_RT}, s6, s5
s_mov_b32 s{S_WS_+2}, {WS_BYTES}
s_mov_b32 s{S_WS_+3}, 0x20000
s_cmp_lt_u32 s2, 64
s_cbranch_scc1 F_spare
s_sub_u32 s4, s4, 8
s_lshr_b32 s5, s3, 1
s_lshl_b32 s5, s5, 2
s_and_b32 s6, s4, 3
s_add_u32 s{S_I}, s5, s6
s_lshr_b32 s4, s4, 2
s_and_b32 s3, s3, 1
s_lshl_b32 s5, s3, 2
s_add_u32 s5, s5, s4
s_lshl_b32 s6, s3, 1
s_add_u32 s6, s6, s4
s_sub_u32 s6, s6, 4
s_cmp_lt_u32 s4, 4
s_cselect_b32 s{S_G}, s5, s6
s_cselect_b32 s{S_KV}, 1, 0""")
    e(f"v_lshrrev_b32 v3, 3, v2\nv_and_b32 v{T}, 7, v2\nv_lshrrev_b32 v{T+1}, 1, v3\nv_xor_b32 v{T}, v{T}, v{T+1}")
    e(f"v_mul_u32_u24 v3, 1152, v3\nv_lshl_add_u32 v{VX}, v{T}, 4, v3\nv_xor_b32 v{T}, 4, v{T}\nv_lshl_add_u32 v{VX+1}, v{T}, 4, v3")
    e(f"v_add_u32 v{VX+1}, {8*1152-1024}, v{VX+1}\nv_add_u32 v{VX+2}, {16*1152-2048}, v{VX}\nv_add_u32 v{VX+3}, {16*1152-2048}, v{VX+1}")
    e(f"""s_lshl_b32 s5, s{S_I}, 2
s_add_u32 s52, s5, s{S_WV}
s_mul_i32 s{S_XO}, s52, {32*1152}
s_mul_i32 s{S_WB}, s{S_WV}, 9216
s_mul_i32 s5, s{S_G}, 144
s_add_u32 s6, s5, 1152
s_lshl_b32 s5, s5, 1
s_cmp_eq_u32 s{S_KV}, 1
s_cselect_b32 s53, s6, s5
s_movk_i32 s7, 144
s_cselect_b32 s7, 1152, s7
s_mul_i32 s{S_WF}, s{S_WV}, {16*3456}
s_add_u32 s{S_WF}, s{S_WF}, s53
s_movk_i32 s50, 3456""")
    for i in range(5):
        r = VW + i
        e(f"v_add_u32 v3, {64*i}, v2\nv_mul_u32_u24 v{T}, 7282, v3\nv_lshrrev_b32 v{T}, 16, v{T}\nv_mul_u32_u24 v{T+1}, 9, v{T}\nv_sub_u32 v3, v3, v{T+1}")
        e(f"v_and_b32 v{T+1}, 1, v{T}\nv_mul_u32_u24 v{T+1}, s7, v{T+1}\nv_lshl_add_u32 v3, v3, 4, v{T+1}\nv_lshrrev_b32 v{T}, 1, v{T}")
        if i >= 2: e(f"v_lshrrev_b32 v{T+1}, 1, v{T}\nv_and_b32 v{T+1}, 4, v{T+1}\nv_xor_b32 v{T}, v{T}, v{T+1}")
        e(f"v_mad_u32_u24 v{r}, v{T}, s50, v3")
        if i % 4: e(f"v_subrev_u32 v{r}, {(i%4)*1024}, v{r}")
    e(f"v_cmp_gt_u32 s[50:51], 32, v2\nv_mov_b32 v3, {BIG}\ns_waitcnt lgkmcnt(0)\nv_cndmask_b32 v{VW+4}, v3, v{VW+4}, s[50:51]")
    srd(e, S_X, 40, ACT_BYTES)
    srd(e, S_W, 42, 576*1728*2)
    def dma(st):
        b = (st % 4)*SLOT
        L = [([f"s_add_u32 m0, s{S_WB}, {b}", f"s_add_u32 s54, s{S_XO}, {128*st}"] if k == 0 else [],
              f"buffer_load_dwordx4 v{VX+k}, s[{S_X}:{S_X+3}], s54 offen" + (f" offset:{k*1024}" if k else "") + " lds") for k in range(4)]
        L += [([f"s_add_u32 m0, s{S_WB}, {b+4096}", f"s_add_u32 s55, s{S_WF}, {64*3456*st}"] if k == 0 else [],
               f"buffer_load_dwordx4 v{VW+k}, s[{S_W}:{S_W+3}], s55 offen" + (f" offset:{k*1024}" if k else "") + " lds") for k in range(4)]
        L += [([f"s_add_u32 m0, s{S_WB}, {b+8192}", "s_nop 0"], f"buffer_load_dwordx4 v{VW+4}, s[{S_W}:{S_W+3}], s55 offen lds")]
        return [(pre, t, ("dma", st)) for pre, t in L]
    def issue(x):
        for p in x[0]: e(p)
        e.vmem(x[1], x[2])
    e.vm = []; e.vm_done = 0
    for x in dma(0): issue(x)
    tm.stamp(0)
    e(f"s_mov_b32 s{S_WS_}, s46\ns_and_b32 s{S_WS_+1}, s47, 0xffff")
    srd(e, S_DBG, 44, 256)
    d1 = dma(1)
    e(f"v_and_b32 v{T}, 15, v2\nv_lshrrev_b32 v{T+1}, 4, v2")
    e(f"v_lshrrev_b32 v3, 1, v{T}\nv_xor_b32 v3, v3, v{T+1}\nv_lshlrev_b32 v3, 4, v3\nv_lshl_add_u32 v3, v{T}, 7, v3\nv_add_u32 v{AB}, s{S_WB}, v3\nv_xor_b32 v3, 64, v3\nv_add_u32 v{AB+1}, s{S_WB}, v3")
    e(f"v_and_b32 v3, 1, v{T+1}\nv_mul_u32_u24 v3, 12, v3\nv_bfe_u32 v{T+2}, v2, 2, 2\nv_add_u32 v3, v3, v{T+2}")
    e(f"v_xor_b32 v{T+2}, 4, v3\nv_mul_u32_u24 v3, 288, v3\nv_mul_u32_u24 v{T+2}, 288, v{T+2}")
    e(f"v_lshrrev_b32 v1, 5, v2\nv_mul_u32_u24 v1, 9216, v1\nv_and_b32 v{T+3}, 3, v2\nv_lshl_add_u32 v1, v{T+3}, 3, v1\nv_add_u32 v1, 4096, v1")
    e(f"v_add_u32 v{AB+2}, v1, v3\nv_add_u32 v{AB+3}, v1, v{T+2}")
    for i in range(4): e(f"v_add_u32 v{AB+4+i}, {2*SLOT}, v{AB+i}")
    c0 = hex(f2u(1e-6 * L2E))
    e(f"s_mov_b32 s56, {hex(f2u(LN2))}\ns_mov_b32 s57, {hex(f2u(LN2))}\ns_mov_b32 s58, {c0}\ns_mov_b32 s59, {c0}")
    def wo_setup():
        L = []
        for i in range(3):
            L += f"v_add_u32 v3, {64*i}, v2\nv_mul_u32_u24 v1, 5462, v3\nv_lshrrev_b32 v1, 16, v1\nv_mul_u32_u24 v{VWO+i}, 12, v1\nv_sub_u32 v3, v3, v{VWO+i}\nv_mul_u32_u24 v1, 1152, v1\nv_lshl_add_u32 v{VWO+i}, v3, 4, v1".split("\n")
            if i: L.append(f"v_subrev_u32 v{VWO+i}, {i*1024}, v{VWO+i}")
        L += f"""s_mul_i32 s{S_WOO}, s{S_WV}, {144*1152}
s_mul_i32 s5, s{S_CG}, 192
s_add_u32 s{S_WOO}, s{S_WOO}, s5
s_mul_i32 s{S_WL}, s{S_WV}, 27648
s_mov_b32 s{S_WO}, s48
s_and_b32 s{S_WO+1}, s49, 0xffff
s_mov_b32 s{S_WO+3}, 0x20000
s_lshr_b32 s5, s2, 6""".split("\n")
        L.append(f"s_cmp_eq_u32 s5, 1\ns_cselect_b32 s{S_WO+2}, 0, {576*576*2}")
        return L
    def wo_dma():
        return [([f"s_add_u32 m0, s{S_WL}, {i*1024}", f"s_add_u32 s54, s{S_WOO}, {(i//3)*16*1152}"] if i % 3 == 0 else [],
                 f"buffer_load_dwordx4 v{VWO+i%3}, s[{S_WO}:{S_WO+3}], s54 offen" + (f" offset:{(i%3)*1024}" if i % 3 else "") + " lds", "wo") for i in range(27)]
    for l in wo_setup(): e(l)
    for x in d1: issue(x)
    e(f"s_cmp_eq_u32 s{S_KV}, 0\ns_cbranch_scc1 F_q")
    vm0 = (list(e.vm), e.vm_done)

    q = Queue(e, window=1)
    def emit_op(o, _orig=e.op):
        if callable(o.text):
            o.text(); o.pos = e.n - 1; return o
        return _orig(o)
    e.op = emit_op
    def fill_lines(text):
        for l in (text.split("\n") if isinstance(text, str) else text):
            n = l.count("\n") + 1
            q.add(Op(l, cost=n))
    def rdlist(st, kk):
        b = AB + 4*((st % 4) >> 1); o = (st & 1)*SLOT
        rd = [f"ds_read_b128 a[{XF+8*kk+4*tt}:{XF+8*kk+4*tt+3}], v{b+kk} offset:{o + 2048*tt}" for tt in range(2)]
        for ct in range(9):
            r = WF + 36*kk + 4*ct
            rd.append(f"ds_read_b64_tr_b16 a[{r}:{r+1}], v{b+2} offset:{o + kk*18432 + ct*32}")
            rd.append(f"ds_read_b64_tr_b16 a[{r+2}:{r+3}], v{b+3} offset:{o + kk*18432 + ct*32}")
        return rd
    wq = []
    st_ = {"last": 0}
    def wpace(force=False):
        if wq and (force or e.n - st_["last"] >= wp):
            issue(wq.pop(0)); st_["last"] = e.n
    def mainloop(kind, side):
        e.vm, e.vm_done = list(vm0[0]), vm0[1]; e.lg = []; e.lg_done = 0
        e.wait_vm(lambda t: t == ("dma", 0))
        e("s_barrier")
        tm.stamp(1)
        for i, t in enumerate(rdlist(0, 0)): e.ds(t, (0, 0, i))
        dq = dma(2)
        for _ in range(4): issue(dq.pop(0))
        for st in range(9):
            for kk in range(2):
                nst = st if kk == 0 else st + 1
                rd = rdlist(nst, 1 - kk) if nst < 9 else []
                ri = 0; cnt = 0
                for ct in range(9):
                    for tt in range(2):
                        if cnt == 0: e.wait_lg(lambda t: t == (st, kk, 13 if kk == 0 else 19))
                        if cnt == 8: e.wait_lg(lambda t: t == (st, kk, 19))
                        d = ACC + 36*tt + 4*ct; x = f"a[{XF+8*kk+4*tt}:{XF+8*kk+4*tt+3}]"; wf = f"a[{WF+36*kk+4*ct}:{WF+36*kk+4*ct+3}]"
                        a, b = (wf, x) if kind == "q" else (x, wf)
                        e(f"v_mfma_f32_16x16x32_bf16 v[{d}:{d+3}], {a}, {b}, " + ("0" if st == 0 and kk == 0 else f"v[{d}:{d+3}]"))
                        cnt += 1
                        if kk == 1 and cnt == 1:
                            while dq: issue(dq.pop(0))
                            if nst < 9: e.wait_vm(lambda t: t == ("dma", nst))
                            e("s_barrier")
                            if nst == gate_at[0]:
                                e.vmem(f"buffer_load_dword v10, v11, s[{S_DBG}:{S_DBG+3}], 0 offen sc0 sc1", "gate")
                            if nst == gate_at[1]:
                                e.wait_vm(lambda t: t == "gate")
                                e(f"v_readfirstlane_b32 s5, v10\ns_nop 1\ns_cmp_eq_u32 s5, 64\ns_cbranch_scc0 F_sp{kind}\nF_rt{kind}:")
                            if nst + 2 < 9: dq = dma(nst + 2)
                            if nst == gate_at[1] + 1: dq = dq + side
                            if nst == 9: wq.extend(wo_dma())
                        for _ in range(2 if cnt % 2 == 1 else 1):
                            if rd: e.ds(rd.pop(0), (nst, 1 - kk, ri)); ri += 1
                        per = 4 if len(dq) <= 9 and nst < gate_at[1] + 1 else 2
                        if dq and cnt % per == 0: issue(dq.pop(0))
                        elif nst == 9 and cnt % 4 == 0: wpace(True)
                        else: q.fill(2 if not rd else 1)
        assert not dq
        q.drain()
        tm.stamp(2)
    def pr(r): return f"v[{r}:{r+1}]"
    def bc(r, pos, n=3):
        base = r & ~1; hi = r & 1
        sel = [0]*n; selh = [1]*n
        sel[pos] = hi; selh[pos] = hi
        return pr(base), f" op_sel:{sel} op_sel_hi:{selh}".replace(", ", ",")
    def zipemit(*seqs):
        for k in range(max(map(len, seqs))):
            for s_ in seqs:
                if k < len(s_): e(s_[k])
            wpace()
    def phi4(a, t):
        return [f"v_exp_f32_e64 v{t+r}, v{a+r} clamp" for r in range(4)] + [f"v_max_f32 v{a+r}, s58, v{a+r}" for r in range(4)] + \
               [f"v_pk_fma_f32 {pr(a+r)}, {pr(a+r)}, s[56:57], {pr(t+r)}" for r in (0, 2)]
    pairs = []
    for hl in range(4):
        for a in (hl, hl + 1):
            for b in (hl + 4, hl + 5):
                if (a, b) not in pairs: pairs.append((a, b))
    def sm(m): return f"s_mov_b32 s50, {hex(m & 0xffffffff)}\ns_mov_b32 s51, {hex(m >> 32)}".split("\n")
    L = f"v_mov_b32 v11, 0\nv_mov_b32 v{ONES}, 0x3f803f80\ns_mul_i32 s6, s{S_WV}, 12288\ns_add_u32 s6, s6, {KVB}\nv_mul_u32_u24 v3, 80, v{T}\nv_lshl_add_u32 v3, v{T+1}, 4, v3\nv_add_u32 v3, s6, v3\nv_mov_b32 v{T+3}, {LBIG}".split("\n")
    L += f"v_lshlrev_b32 v8, 4, v{T+1}\nv_lshlrev_b32 v9, 2, v{T}\nv_lshrrev_b32 v4, 3, v{T}\nv_mul_u32_u24 v4, 2016, v4\nv_add_u32 v4, v4, v9".split("\n")
    for k, (a, b) in enumerate(pairs):
        first = True
        for hl in range(4):
            def valid(l):
                n, g = l & 15, l >> 4
                ec = 16*(b-4) - 8 + n
                if ec < 0 or ec // 18 != hl: return False
                return 0 <= 4*a + g - (9*hl)//2 < 5
            m = mask64(valid)
            if not m: continue
            const = hl*1520 + (16*(b-4) - 8 - 18*hl)*80 + (4*a - (9*hl)//2)*16
            L += sm(m) + [f"v_add_u32 v{T+2}, {const & 0xffffffff}, v3", f"v_cndmask_b32 v{WA+k}, v{T+3 if first else WA+k}, v{T+2}, s[50:51]"]
            first = False
    L += f"v_add_u32 v3, 1, v{T}\nv_lshrrev_b32 v3, 1, v3\nv_lshrrev_b32 v{T+2}, 1, v{T}\nv_lshl_add_u32 v3, v3, 2, v{T+1}\nv_mul_u32_u24 v1, 9, v{T+2}\nv_lshrrev_b32 v1, 1, v1\nv_sub_u32 v3, v3, v1".split("\n")
    L += sm(mask64(lambda l: (l & 15) < 8 and 0 <= 4*(((l & 15) + 1) >> 1) + (l >> 4) - (9*((l & 15) >> 1))//2 < 5))
    L += f"v_mul_u32_u24 v{T+2}, 1520, v{T+2}\nv_lshl_add_u32 v3, v3, 4, v{T+2}\ns_add_u32 s6, s6, {18*80}\nv_add_u32 v3, s6, v3\nv_cndmask_b32 v{WA+13}, v{T+3}, v3, s[50:51]".split("\n")
    for a in range(5):
        L += sm(mask64(lambda l: (l & 15) < 8 and ((l & 15) + 1) >> 1 == a))
        L += [f"v_cndmask_b32 v{ZB+4*a+i}, 0, v{ONES}, s[50:51]" for i in range(4)]
    L += f"s_mul_i32 s6, s{S_G}, 6080\nv_mov_b32 v{T+3}, {BIG}".split("\n")
    for i in range(6):
        L += f"""v_add_u32 v3, {256*i}, v0
v_mul_u32_u24 v{T+2}, 3277, v3
v_lshrrev_b32 v{T+2}, 16, v{T+2}
v_mul_u32_u24 v1, 20, v{T+2}
v_sub_u32 v1, v3, v1
v_mul_u32_u24 v{T+2}, 27, v{T+2}
v_lshrrev_b32 v{T+2}, 8, v{T+2}
v_and_b32 v{T+2}, 2, v{T+2}
v_sub_u32 v1, v1, v{T+2}
v_cmp_gt_u32 s[50:51], 18, v1
v_lshlrev_b32 v3, 2, v3
v_add_u32 v3, s6, v3
v_cndmask_b32 v{GA+i}, v{T+3}, v3, s[50:51]""".split("\n")
    L += f"v_cmp_gt_u32 vcc, 240, v0\ns_lshr_b32 s{S_SIG}, s{S_G}, 1\ns_lshl_b32 s{S_SIG}, s{S_SIG}, 12\nv_cndmask_b32 v{GA+5}, v{T+3}, v{GA+5}, vcc\ns_add_u32 s{S_SIG}, s{S_SIG}, {WS_FK}".split("\n")
    for l in L[:60]: e(l)
    fill_lines(L[60:])
    side = []
    pre = [f"s_lshl_b32 s52, s52, 7", f"s_lshl_b32 s53, s53, 1", f"s_add_u32 s53, s53, {WS_CS}"]
    for ct in (4, 5, 6, 7, 8, 0, 1, 2, 3):
        off = 64*ct + (2016 if ct > 4 else 0)
        side.append((pre, f"buffer_load_dword v{CSV+ct}, v{4 if ct == 4 else 9}, {W}, s53 offen offset:{off} sc0 sc1", "sd")); pre = []
    for k in range(4):
        for tt in range(2):
            r = RSV + 16*tt + 4*k
            side.append(([f"s_add_u32 s7, s52, {WS_S4 + 8192*k}"] if tt == 0 else [], f"buffer_load_dwordx4 v[{r}:{r+3}], v8, {W}, s7 offen" + (" offset:64" if tt else "") + " sc0 sc1", "sd"))
    mainloop("kv", side)
    e.wait_vm(lambda t: t == "sd")
    def kseq(ct, tt):
        a = ACC + 36*tt + 4*ct; R = RSV + 16*tt; t = TT + 4*tt
        o, sel = bc(CSV + ct, 1); d = PK + 4*ct + 2*tt
        return [f"v_pk_fma_f32 {pr(t+r)}, {pr(R+12+r)}, {o}, s[58:59]{sel}" for r in (0, 2)] + \
               [f"v_pk_fma_f32 {pr(a+r)}, {pr(a+r)}, {pr(R+8+r)}, {pr(t+r)}" for r in (0, 2)] + phi4(a, t) + \
               [f"v_cvt_pk_bf16_f32 v{d}, v{a}, v{a+1}", f"v_cvt_pk_bf16_f32 v{d+1}, v{a+2}, v{a+3}"]
    def vseq(ct, tt):
        a = ACC + 36*tt + 4*ct; R = RSV + 16*tt; t = TT + 8 + 4*tt
        o, sel = bc(CSV + ct, 1, 2); d = PV + 4*(ct-4) + 2*tt
        return [f"v_pk_mul_f32 {pr(t+r)}, {pr(R+4+r)}, {o}{sel}" for r in (0, 2)] + \
               [f"v_pk_fma_f32 {pr(t+r)}, {pr(a+r)}, {pr(R+r)}, {pr(t+r)}" for r in (0, 2)] + \
               [f"v_cvt_pk_bf16_f32 v{d}, v{t}, v{t+1}", f"v_cvt_pk_bf16_f32 v{d+1}, v{t+2}, v{t+3}"]
    e("s_nop 1")
    for ct in range(4, 9): zipemit(vseq(ct, 0), vseq(ct, 1))
    tm.stamp(3)
    free = [ACC + 36*tt + 4*ct for ct in range(5, 9) for tt in range(2)]
    zreg = free.pop(0)
    kvreg = {}; pend = []
    for a in range(5):
        wr = [f"ds_write_b128 v{WA+k}, v[{kvreg[k]}:{kvreg[k]+3}]" for k in pend]; pend = []
        ws_ = [""]*16
        for i, w_ in enumerate(wr): ws_[5 + 4*i] = w_
        zipemit(kseq(a, 0), kseq(a, 1), ws_)
        e("s_nop 1")
        free += [ACC + 4*a, ACC + 36 + 4*a]
        for k, (pa, pb) in enumerate(pairs):
            if pa == a:
                d = free.pop(0); kvreg[k] = d; pend.append(k)
                e(f"v_mfma_f32_16x16x32_bf16 v[{d}:{d+3}], v[{PK+4*a}:{PK+4*a+3}], v[{PV+4*(pb-4)}:{PV+4*(pb-4)+3}], 0")
        e(f"v_mfma_f32_16x16x32_bf16 v[{zreg}:{zreg+3}], v[{PK+4*a}:{PK+4*a+3}], v[{ZB+4*a}:{ZB+4*a+3}], " + ("0" if a == 0 else f"v[{zreg}:{zreg+3}]"))
    kvreg[13] = zreg; pend.append(13)
    e(f"v_lshlrev_b32 v3, 2, v0\nv_add_u32 v3, {KVB}, v3\ns_nop 4")
    for k in pend: e(f"ds_write_b128 v{WA+k}, v[{kvreg[k]}:{kvreg[k]+3}]")
    while wq: wpace(True)
    tm.stamp(4)
    e(f"s_waitcnt lgkmcnt(0)\ns_barrier")
    RB = RSV
    e.lg = []; e.lg_done = 0
    for i in range(6):
        for w in range(0, 4, 2):
            e.ds(f"ds_read2st64_b32 v[{RB+4*i+w}:{RB+4*i+w+1}], v3 offset0:{(w*12288 + i*1024)//256} offset1:{((w+1)*12288 + i*1024)//256}", i)
    for i in range(6):
        e.wait_lg(lambda t: t == i)
        r = RB + 4*i
        e(f"v_pk_add_f32 {pr(r)}, {pr(r)}, {pr(r+2)}\nv_add_f32 v{r}, v{r}, v{r+1}")
        e(f"buffer_atomic_add_f32 v{r}, v{GA+i}, {W}, 0 offen sc1")
    e(f"v_cmp_gt_u32 vcc, 32, v0\nv_lshlrev_b32 v23, 7, v0\nv_mov_b32 v22, {BIG}\nv_cndmask_b32 v23, v22, v23, vcc")
    tm.stamp(5)
    e("s_branch F_k2")
    e("F_q:")
    P = WA; CSQ = CSV; RSQ = RSV
    e(f"v_mov_b32 v11, 0\nv_lshlrev_b32 v8, 2, v{T}\nv_lshlrev_b32 v9, 4, v{T+1}\nv_lshlrev_b32 v4, 4, v2")
    e(f"s_lshl_b32 s5, s52, 2\ns_add_u32 s5, s5, s{S_G}\ns_mul_i32 s5, s5, 9216\ns_add_u32 s40, s5, {WS_PQ}\ns_add_u32 s41, s40, 4096\ns_add_u32 s42, s40, 8192")
    e(f"s_lshl_b32 s{S_SIG}, s{S_G}, 5\ns_lshr_b32 s5, s52, 1\ns_add_u32 s{S_SIG}, s{S_SIG}, s5\ns_lshl_b32 s{S_SIG}, s{S_SIG}, 7\ns_add_u32 s{S_SIG}, s{S_SIG}, {WS_FK}")
    side = []
    pre = [f"s_lshl_b32 s52, s52, 7", f"s_lshl_b32 s53, s53, 1", f"s_add_u32 s53, s53, {WS_CS}"]
    for ct in range(9):
        side.append((pre, f"buffer_load_dwordx4 v[{CSQ+4*ct}:{CSQ+4*ct+3}], v9, {W}, s53 offen" + (f" offset:{64*ct}" if ct else "") + " sc0 sc1", "sd")); pre = []
    for k in range(2):
        for tt in range(2):
            side.append(([f"s_add_u32 s7, s52, {WS_S4 + 8192*(2+k)}"] if tt == 0 else [], f"buffer_load_dword v{RSQ+2*tt+k}, v8, {W}, s7 offen" + (" offset:64" if tt else "") + " sc0 sc1", "sd"))
    mainloop("q", side)
    e.wait_vm(lambda t: t == "sd")
    def qseq(n):
        tt, ct = n // 9, n % 9
        a = ACC + 36*tt + 4*ct; t = TT + 4*(n % 2); d = P + 2*n
        o1, s1 = bc(RSQ + 2*tt + 1, 0); o2, s2 = bc(RSQ + 2*tt, 1)
        return [f"v_pk_fma_f32 {pr(t+r)}, {o1}, {pr(CSQ+4*ct+r)}, s[58:59]{s1}" for r in (0, 2)] + \
               [f"v_pk_fma_f32 {pr(a+r)}, {pr(a+r)}, {o2}, {pr(t+r)}{s2}" for r in (0, 2)] + phi4(a, t) + \
               [f"v_cvt_pk_bf16_f32 v{d}, v{a}, v{a+1}", f"v_cvt_pk_bf16_f32 v{d+1}, v{a+2}, v{a+3}"]
    for k in range(9):
        zipemit(qseq(2*k), qseq(2*k + 1))
        e(f"buffer_store_dwordx4 v[{P+4*k}:{P+4*k+3}], v4, {W}, s{40+k//4} offen" + (f" offset:{(k%4)*1024}" if k % 4 else "") + " sc0 sc1")
    while wq: wpace(True)
    e(f"v_cmp_eq_u32 vcc, 0, v2\nv_mov_b32 v22, {BIG}\ns_nop 0\nv_cndmask_b32_e64 v23, v22, 0, vcc")
    tm.stamp(5)
    e("s_branch F_k2")
    for kind in ("kv", "q"):
        e(f"F_sp{kind}:\nbuffer_load_dword v10, v11, s[{S_DBG}:{S_DBG+3}], 0 offen sc0 sc1\ns_waitcnt vmcnt(0)\nv_readfirstlane_b32 s5, v10\ns_nop 1\ns_cmp_eq_u32 s5, 64\ns_cbranch_scc0 F_sp{kind}\ns_branch F_rt{kind}")
    e("F_spare:")
    e(f"v_lshrrev_b32 v3, 3, v2\nv_and_b32 v{T}, 7, v2\nv_lshlrev_b32 v{T}, 4, v{T}\nv_mov_b32 v8, {BIG}\nv_mov_b32 v10, 0x3f803f80\nv_cmp_eq_u32 s[52:53], 0, v{T}")
    e(f"s_waitcnt lgkmcnt(0)\ns_mov_b32 s{S_WS_}, s46\ns_and_b32 s{S_WS_+1}, s47, 0xffff")
    srd(e, S_X, 40, ACT_BYTES)
    e(f"s_cmp_ge_u32 s2, 37\ns_cbranch_scc1 F_cs")
    e(f"v_mul_u32_u24 v9, 1152, v3\nv_add_u32 v9, v9, v{T}\ns_lshl_b32 s6, s2, 2\ns_add_u32 s6, s6, s{S_WV}")
    for l in wo_setup(): e(l)
    e(f"v_lshrrev_b32 v3, 3, v2")
    def rowloads(base, sr, so):
        for i in range(9):
            e.vmem(f"buffer_load_dwordx4 v[{base+4*i}:{base+4*i+3}], v9, s[{sr}:{sr+3}], s{so} offen" + (f" offset:{128*i}" if i else ""), (base, i))
    def rowsums(base, sq):
        e("v_mov_b32 v12, 0\nv_mov_b32 v13, 0")
        for i in range(9):
            e.wait_vm(lambda t: t == (base, i))
            for k in range(4):
                e(f"v_dot2c_f32_bf16 v12, v{base+4*i+k}, v10")
                if sq: e(f"v_dot2c_f32_bf16 v13, v{base+4*i+k}, v{base+4*i+k}")
        e("s_nop 2")
        for dpp in ("quad_perm:[1,0,3,2]", "quad_perm:[2,3,0,1]", "row_half_mirror"):
            e(f"v_add_f32_dpp v12, v12, v12 {dpp} row_mask:0xf bank_mask:0xf\nv_add_f32_dpp v13, v13, v13 {dpp} row_mask:0xf bank_mask:0xf\ns_nop 0")
    def wbar(base, su):
        e(f"s_mul_i32 s7, s{su}, 57\ns_lshr_b32 s7, s7, 10\ns_mul_i32 s5, s7, 18\ns_sub_u32 s4, s{su}, s5\ns_mul_i32 s7, s7, 320")
        e(f"s_lshr_b32 s5, s4, 1\ns_lshl_b32 s5, s5, 3\ns_add_u32 s7, s7, s5\ns_and_b32 s5, s4, 1\ns_mul_i32 s5, s5, 160\ns_add_u32 s7, s7, s5\ns_add_u32 s7, s7, {WS_WB}")
        e(f"v_lshrrev_b32 v14, 5, v2\nv_mul_u32_u24 v14, 80, v14\nv_bfe_u32 v15, v2, 3, 2\nv_lshl_add_u32 v14, v15, 1, v14\nv_cndmask_b32 v14, v8, v14, s[52:53]")
        rowsums(base, False)
        e(f"v_mul_f32 v12, {hex(f2u(1.0/576))}, v12\nv_cvt_pk_bf16_f32 v12, v12, v12")
        e.vmem(f"buffer_store_short v12, v14, {W}, s7 offen sc0 sc1", "st")
    e(f"s_cmp_ge_u32 s2, 32\ns_cbranch_scc1 F_wb2")
    e.vm = []; e.vm_done = 0
    e(f"s_mul_i32 s54, s6, {8*1152}\ns_add_u32 s55, s54, {128*8*1152}")
    rowloads(32, S_X, 54); rowloads(68, S_X, 55)
    e(f"v_lshlrev_b32 v3, 2, v3\nv_cndmask_b32 v3, v8, v3, s[52:53]\ns_lshl_b32 s6, s6, 5")
    for u, base in enumerate((32, 68)):
        rowsums(base, True)
        e(f"v_mul_f32 v15, {hex(f2u(1.0/576))}, v12")
        ln_stats2(e, [(12, 13, 14, 16, 17)])
        e(f"v_mul_f32 v18, {hex(f2u(L2E))}, v16\nv_mul_f32 v19, {hex(f2u(L2E))}, v17")
        for k in range(4):
            e(f"s_add_u32 s5, s6, {WS_S4 + 8192*k + 4096*u}")
            e.vmem(f"buffer_store_dword v{16+k}, v3, {W}, s5 offen sc0 sc1", "st")
        e(f"s_add_u32 s5, s6, {WS_MX + 4096*u}")
        e.vmem(f"buffer_store_dword v15, v3, {W}, s5 offen sc0 sc1", "st")
    e(f"s_cmp_lg_u32 s{S_WV}, 0\ns_cbranch_scc1 F_sj\ns_add_u32 s6, s2, 40\ns_mul_i32 s54, s6, {8*1152}")
    e.vm = []; e.vm_done = 0
    rowloads(32, S_WO, 54); wbar(32, 6)
    e("s_branch F_sj\nF_wb2:")
    e.vm = []; e.vm_done = 0
    e(f"s_sub_u32 s6, s6, 128\ns_lshl_b32 s6, s6, 1\ns_add_u32 s3, s6, 1\ns_mul_i32 s54, s6, {8*1152}\ns_add_u32 s55, s54, {8*1152}")
    rowloads(32, S_WO, 54); rowloads(68, S_WO, 55)
    wbar(32, 6); wbar(68, 3)
    e("s_branch F_sj")
    e("F_cs:")
    srd(e, S_W, 42, 576*1728*2)
    e(f"v_mul_u32_u24 v9, 3456, v3\nv_add_u32 v9, v9, v{T}\ns_sub_u32 s6, s2, 37\ns_mul_i32 s54, s{S_WV}, {144*3456}\ns_lshl_b32 s5, s6, 7\ns_add_u32 s54, s54, s5")
    e.vm = []; e.vm_done = 0
    for i in range(18):
        e.vmem(f"buffer_load_dwordx4 v[{32+4*i}:{35+4*i}], v9, s[{S_W}:{S_W+3}], s54 offen", i)
        if i < 17: e(f"s_add_u32 s54, s54, {8*3456}")
    for l in wo_setup(): e(l)
    e("v_mov_b32 v10, 0x3f80\nv_mov_b32 v11, 0x3f800000")
    for k in range(8): e(f"v_mov_b32 v{12+k}, 0")
    e(f"v_lshlrev_b32 v3, 5, v0\nv_add_u32 v3, {KVB}, v3\nv_lshlrev_b32 v9, 2, v2\nv_add_u32 v{T}, {KVB}, v9\ns_lshl_b32 s6, s6, 8\ns_add_u32 s6, s6, {WS_CS}")
    for i in range(18):
        e.wait_vm(lambda t: t == i)
        for k in range(4): e(f"v_dot2c_f32_bf16 v{12+2*k}, v{32+4*i+k}, v10\nv_dot2c_f32_bf16 v{13+2*k}, v{32+4*i+k}, v11")
    e(f"s_nop 2\nds_write_b128 v3, v[12:15]\nds_write_b128 v3, v[16:19] offset:16\ns_waitcnt lgkmcnt(0)\ns_barrier\ns_cmp_lg_u32 s{S_WV}, 0\ns_cbranch_scc1 F_sj")
    for h in range(2):
        for k in range(8): e(f"ds_read2st64_b32 v[{32+16*h+2*k}:{33+16*h+2*k}], v{T} offset0:{16*h+2*k} offset1:{16*h+2*k+1}")
    e("s_waitcnt lgkmcnt(0)")
    for n in (8, 4, 2, 1):
        for k in range(n): e(f"v_pk_add_f32 v[{32+2*k}:{33+2*k}], v[{32+2*k}:{33+2*k}], v[{32+2*k+2*n}:{33+2*k+2*n}]")
    e(f"v_add_f32 v32, v32, v33\nbuffer_store_dword v32, v9, {W}, s6 offen sc0 sc1")
    e("F_sj:")
    e(f"s_load_dwordx4 s[12:15], s[0:1], 32\nv_cmp_gt_u32 vcc, 95, v0\nv_lshlrev_b32 v3, 3, v0\nv_mov_b32 v30, 0\nv_mov_b32 v31, 0\nv_cndmask_b32 v4, v8, v3, vcc\ns_mul_i32 s5, s2, 760\ns_lshl_b32 s6, s2, 11\ns_add_u32 s6, s6, {WS_FL}")
    e(f"buffer_store_dwordx2 v[30:31], v4, {W}, s5 offen sc0 sc1\nbuffer_store_dwordx2 v[30:31], v3, {W}, s6 offen sc0 sc1")
    srd(e, S_DBG, 44, 256)
    e(f"v_cmp_eq_u32 vcc, 0, v0\nv_mov_b32 v4, 1\nv_mov_b32 v11, 0\nv_cndmask_b32_e64 v3, v8, 0, vcc\ns_waitcnt vmcnt(0) lgkmcnt(0)\ns_barrier")
    tm.stamp(0)
    e(f"buffer_atomic_add v4, v3, s[{S_DBG}:{S_DBG+3}], 0 offen sc1")
    if cpf:
        e(f"s_lshr_b32 s6, s2, 3\ns_lshl_b32 s6, s6, 13\ns_cmp_lg_u32 s{S_WV}, 3\ns_cbranch_scc1 F_ncp")
        code_prefetch(e, "F_pc2", "F_k2", "KB_last", 2, 248, 6)
        e("F_ncp:")
    if prefetch:
        srd(e, 52, 12, 576*4608*2); srd(e, 56, 14, 576*4608*2)
        slice_of_xcd(e, 5, 2, C)
        e(f"s_mul_i32 s5, s5, 1152\ns_lshr_b32 s6, s2, 3\ns_mul_i32 s6, s6, {72*9216}\ns_add_u32 s5, s5, s6")
        e(f"v_mul_u32_u24 v4, 911, v0\nv_lshrrev_b32 v4, 16, v4\nv_mul_u32_u24 v3, 72, v4\nv_sub_u32 v3, v0, v3\nv_mul_u32_u24 v3, 9216, v3")
        for k in range(0, len(pf1), 3):
            ls = list(pf1[k:k+3])
            e(f"v_mov_b32 v12, {BIG}")
            for i, ln in enumerate(ls):
                e(f"v_cmp_eq_u32 vcc, {i}, v4\nv_add_u32 v13, {ln*128}, v3\ns_nop 0\nv_cndmask_b32 v12, v12, v13, vcc")
            e(f"buffer_load_dword v244, v12, s[52:55], s5 offen\nbuffer_load_dword v245, v12, s[56:59], s5 offen")
    for x in wo_dma(): issue(x)
    e(f"F_gate:\nbuffer_load_dword v10, v11, s[{S_DBG}:{S_DBG+3}], 0 offen sc0 sc1\ns_waitcnt vmcnt(0)\nv_readfirstlane_b32 s5, v10\ns_nop 1\ns_cmp_eq_u32 s5, 64\ns_cbranch_scc1 F_gated\ns_sleep 4\ns_branch F_gate\nF_gated:")
    e(f"v_mov_b32 v23, {BIG}\ns_mov_b32 s{S_SIG}, 0")
    tm.stamp(5)
    e("F_k2:")
assert all((n*911) >> 16 == n//72 for n in range(256))
```

```python
from sched import *
from layout import *
from k3 import srd, f2u, SLOT
from k1 import mask64, smask, BIG, LBIG, slice_of_xcd
from kf1 import KVB, S_WS_, S_WO, S_X, S_RT, S_CG, S_WV, S_WL, S_SIG
import math
MXC = KVB + 4*12288

def gen_f2(e, tm, F, C=2, prefetch=True, p1=11, dp=16, slp=4, pf2=(2, 3, 4, 7, 8), npre=30):
    A = 24; O = 112; ADR = 112; RAW = 184; RD = 184; NR = 216; MIX = 240; ACC = 16
    VL16 = 4; TB = 8; VXA = 10; VST = 11; VSA = 12; VMX = 15; VD = 18; VLZ = 21; VF = 22
    XR = 244; MN = 220; ID = 5
    PQ = 0; WFR = 72; WB = 180
    S_RB = 35; S_WS = 36
    W = f"s[{S_WS_}:{S_WS_+3}]"
    sf = " sc0 sc1"
    lg = lambda x: int(math.log2(x))
    e.vm = []; e.vm_done = 0; e.lg = []; e.lg_done = 0
    e("s_load_dwordx4 s[12:15], s[0:1], 32\ns_load_dwordx4 s[40:43], s[0:1], 48")
    e(f"""s_mul_i32 s{S_RB}, s{S_WV}, 12288
s_add_u32 s{S_RB}, s{S_RB}, {KVB}
s_mul_i32 s24, s{S_WV}, 12160
v_lshlrev_b32 v{VL16}, 4, v2
s_lshr_b32 s5, s{S_WV}, 1
s_lshl_b32 s6, s{S_RT}, 1
s_add_u32 s{S_WS}, s6, s5
s_lshl_b32 s5, s{S_WS}, 2
s_add_u32 s5, s5, s{S_WV}
s_xor_b32 s6, s5, 4
s_mul_i32 s25, s5, 9216
s_mul_i32 s26, s6, 9216
s_lshl_b32 s45, s{S_WV}, 5
s_add_u32 s45, s45, s{S_RT}
s_lshl_b32 s45, s45, 7
s_add_u32 s45, s45, {WS_FK}
v_cmp_eq_u32 vcc, 0, v2
v_mov_b32 v1, {BIG}
v_mov_b32 v{VF}, 1
v_cndmask_b32_e64 v{VLZ}, v1, 0, vcc""")
    e(f"v_and_b32 v13, 15, v2\nv_lshrrev_b32 v14, 4, v2\nv_mul_u32_u24 v3, 80, v13\nv_lshl_add_u32 v3, v14, 4, v3\nv_add_u32 v3, s{S_RB}, v3\nv_mov_b32 v16, {LBIG}")
    e(f"v_and_b32 v1, 3, v13\nv_mul_u32_u24 v17, 9, v1\nv_lshrrev_b32 v17, 1, v17\nv_sub_u32 v17, v14, v17\nv_lshlrev_b32 v17, 4, v17\nv_mul_u32_u24 v1, 1520, v1\nv_add3_u32 v17, v17, v1, s{S_RB}")
    frags = []; na = [0]; prep = []
    def addr(base, m):
        if m == 0: return None
        r = ADR + na[0]; na[0] += 1
        prep.append((r, base, m))
        return r
    zf = []
    for c, T0s in ((0, (0, 2, 4)), (1, (4, 6, 7))):
        for T0 in T0s:
            L = []
            for jj in range(2):
                T = T0 + jj
                def valid(l):
                    if c == 1 and T0 == 7 and jj == 0: return False
                    hs = 4*c + (l & 3); g = l >> 4
                    return 0 <= 4*T + g - (9*hs)//2 < 5
                L.append((addr(17, mask64(valid)), c*(4*1520 - 18*16) + 18*80 + 64*T))
            zf.append((c, T0, len(frags))); frags.append(L)
    numf = {}
    for h in range(8):
        for j in (h, h + 1):
            L = []
            for jj in range(2):
                def valid(l):
                    m, g = l & 15, l >> 4
                    return 0 <= 16*j + m - 18*h < 18 and 0 <= g + 4*jj - (h >> 1) < 5
                L.append((addr(3, mask64(valid)), h*1520 + (16*j - 18*h)*80 + (4*jj - (h >> 1))*16))
            numf[(j, h)] = len(frags); frags.append(L)
    def doprep(n):
        for _ in range(n):
            if prep:
                r, base, m = prep.pop(0)
                smask(e, 48, m); e(f"v_cndmask_b32 v{r}, v16, v{base}, s[48:49]")
    doprep(npre)
    e("s_waitcnt vmcnt(0)")
    tm.stamp(0)
    e(f"s_barrier\nbuffer_atomic_add v{VF}, v23, {W}, s{S_SIG} offen sc1")
    ng = 16 // C
    e(f"""s_and_b32 s3, s2, {ng-1}
s_lshl_b32 s3, s3, {lg(C)}
s_bfe_u32 s44, s2, {hex(3 | (lg(C) << 16))}
s_add_u32 s3, s3, s44
s_mul_i32 s30, s3, 576
s_and_b32 s3, s3, 1
s_lshl_b32 s3, s3, 6
s_add_u32 s30, s30, s3
s_and_b32 s3, s{S_WV}, 1
s_mul_i32 s3, s3, {72*9216}
s_add_u32 s30, s30, s3
s_mul_i32 s31, s{S_WV}, 9216
v_bfe_u32 v{VD}, v2, 2, 3
v_mul_u32_u24 v{VD}, 9216, v{VD}
v_and_b32 v{VD+1}, 3, v2
v_lshl_add_u32 v{VD}, v{VD+1}, 4, v{VD}
v_lshrrev_b32 v{VD+1}, 5, v2
v_lshl_add_u32 v{VD}, v{VD+1}, 6, v{VD}
v_add_u32 v{VD+1}, {8*9216-1024}, v{VD}
v_add_u32 v{VD+2}, {16*9216-2048}, v{VD}
s_lshr_b32 s5, s2, 6
s_cmp_eq_u32 s5, 1
s_waitcnt lgkmcnt(0)
s_cbranch_scc1 F2_idle""")
    gusel = f"s_cmp_lt_u32 s{S_WV}, 2\ns_cselect_b32 s12, s12, s14\ns_cselect_b32 s13, s13, s15\ns_and_b32 s13, s13, 0xffff\ns_mov_b32 s14, {576*4608*2}\ns_mov_b32 s15, 0x20000"
    def kdma(st):
        return [([f"s_add_u32 m0, s31, {st*SLOT + i*1024}", f"s_add_u32 s44, s30, {(st*144 + 8*i)*9216}"] if i % 3 == 0 else [],
                 f"buffer_load_dwordx4 v{VD+i%3}, s[12:15], s44 offen" + (f" offset:{(i%3)*1024}" if i % 3 else "") + " lds", ("dma", st), dp) for i in range(9)]
    e(f"v_lshrrev_b32 v1, 2, v2\nv_mul_u32_u24 v1, 192, v1\nv_and_b32 v{TB}, 3, v2\nv_lshl_add_u32 v1, v{TB}, 3, v1")
    e(f"s_and_b32 s5, s{S_WV}, 1\ns_mul_i32 s37, s5, 96\ns_add_u32 s7, s{S_WL}, s37\nv_add_u32 v{TB}, s7, v1\ns_add_u32 s7, s{S_WL}, 96\ns_sub_u32 s7, s7, s37\nv_add_u32 v{TB+1}, s7, v1")
    wr = []
    for ks in range(5):
        for ct in range(6):
            r = WFR + 24*ks + (4 if ks < 4 else 2)*ct
            for i in range(2 if ks < 4 else 1):
                wr.append(f"ds_read_b64_tr_b16 a[{r+2*i}:{r+2*i+1}], v{TB+ct//3} offset:{(2*ks+i)*3072 + (ct%3)*32}")
    for t_ in wr[:14]: e(t_)
    e(f"v_lshrrev_b32 v1, 5, v2\nv_lshl_add_u32 v1, v1, 4, v13\nv_and_b32 v7, 1, v14")
    e(f"v_mul_u32_u24 v{VXA}, 1152, v1\nv_lshl_add_u32 v{VXA}, v7, 4, v{VXA}")
    e(f"v_lshlrev_b32 v{VST}, 4, v1\nv_lshl_add_u32 v{VST}, v7, 9, v{VST}")
    e(f"v_cmp_eq_u32 s[48:49], 0, v7\nv_lshlrev_b32 v{VSA}, 3, v1\nv_lshlrev_b32 v{VMX}, 2, v1\nv_mov_b32 v1, {BIG}\nv_cndmask_b32 v{VSA}, v1, v{VSA}, s[48:49]")
    e(f"s_mul_i32 s39, s{S_WS}, 36864\ns_mul_i32 s5, s{S_CG}, 192\ns_add_u32 s5, s5, s37\ns_add_u32 s50, s39, s5")
    e(f"v_mul_u32_u24 v7, 80, v14\ns_mul_i32 s27, s{S_WV}, 320\ns_add_u32 s27, s27, {WS_WB}\ns_lshl_b32 s28, s{S_WS}, 7\ns_add_u32 s28, s28, {WS_MX}")
    for k in range(3): e(f"buffer_load_dwordx4 v[{XR+4*k}:{XR+4*k+3}], v{VXA}, s[{S_X}:{S_X+3}], s50 offen" + (f" offset:{32*k}" if k else ""))
    for k in range(5): e(f"buffer_load_dwordx4 a[{WB+4*k}:{WB+4*k+3}], v7, {W}, s27 offen" + (f" offset:{16*k}" if k else "") + sf)
    e(f"buffer_load_dword v1, v{VMX}, {W}, s28 offen{sf}")
    apoll = f"v_mov_b32 v{VF}, 0\nbuffer_atomic_add v{VF}, v{VLZ}, {W}, s45 offen sc0 sc1"
    e(apoll)
    for t_ in wr[14:]: e(t_)
    doprep(100)
    e(gusel)
    for t in range(1, 4): smask(e, 52 + 2*(t-1), mask64(lambda l: (l >> 4) < t))
    m0_ = mask64(lambda l: (l >> 4) == ((l & 15) >> 2) and (l & 2) == 0); m1_ = mask64(lambda l: (l >> 4) == ((l & 15) >> 2) and (l & 2) == 2)
    ID = 6
    e(f"s_movk_i32 s58, 0x3f80\nv_and_b32 v5, 1, v13\nv_lshlrev_b32 v5, 4, v5\nv_lshlrev_b32_e64 v5, v5, s58")
    smask(e, 48, m0_); e(f"v_cndmask_b32 v{ID}, 0, v5, s[48:49]"); smask(e, 48, m1_); e(f"v_cndmask_b32 v{ID+1}, 0, v5, s[48:49]")
    tm.stamp(1)
    rd = f"s_waitcnt vmcnt(0)\nv_readfirstlane_b32 s5, v{VF}\ns_nop 1\ns_cmp_ge_u32 s5, 34\ns_cbranch_scc1 F2_go"
    e(f"{rd}\nF2_pl:\n{apoll}\n{rd}\ns_cmp_ge_u32 s5, 8\ns_cbranch_scc1 F2_pl\ns_sleep {slp}\ns_branch F2_pl\nF2_go:")
    tm.stamp(2)
    for i in range(12):
        if i % 4 == 0: e(f"s_add_u32 m0, s{S_RB}, {i*1024}\ns_add_u32 s6, s24, {WS_KV + i*1024}")
        e.vmem(f"buffer_load_dwordx4 v{VL16}, {W}, s6 offen" + (f" offset:{(i%4)*1024}" if i % 4 else "") + sf + " lds", "kv")
    vq = []
    for b in range(2):
        for q_ in range(9):
            pre = [f"s_add_u32 s29, s{25+b}, {WS_PQ + q_*1024}"] if q_ % 4 == 0 else []
            r = PQ + 36*b + 4*q_
            vq.append((pre, f"buffer_load_dwordx4 a[{r}:{r+3}], v{VL16}, {W}, s29 offen" + (f" offset:{(q_%4)*1024}" if q_ % 4 else "") + sf, ("pq", b), p1))
    vq += kdma(0) + kdma(1) + kdma(2)
    state = {"last": 0}
    def pace(force=False):
        if vq and (force or e.n - state["last"] >= vq[0][3]):
            pre, t, tag, _ = vq.pop(0)
            for p in pre: e(p)
            e.vmem(t, tag); state["last"] = e.n
    for k in range(3):
        for i in range(2): e(f"v_permlane16_swap_b32 v{XR+4*k+i}, v{XR+4*k+i+2}")
    for k in range(3):
        for i in range(2): e(f"v_permlane32_swap_b32 v{XR+4*k+i}, v{XR+4*k+i+2}")
    for _ in range(9): pace(True)
    e("s_waitcnt lgkmcnt(0)\ns_barrier")
    e.wait_vm(lambda t: t == "kv")
    tm.stamp(3)
    def ards(f):
        rb = RAW + 8*(f % 6)
        for jj in range(2):
            ar, off = frags[f][jj]
            if ar is not None:
                e.ds(f"ds_read_b128 v[{rb+4*jj}:{rb+4*jj+3}], v{ar} offset:{off}", f)
    for k in range(5): ards(k)
    for f in range(22):
        if f + 5 < 22: ards(f + 5)
        pace()
        rb = RAW + 8*(f % 6)
        e.wait_lg(lambda t: t == f)
        for jj in range(2):
            d = A + 4*f + 2*jj
            if frags[f][jj][0] is None: e(f"v_mov_b32 v{d}, 0\nv_mov_b32 v{d+1}, 0")
            else: e(f"v_cvt_pk_bf16_f32 v{d}, v{rb+4*jj}, v{rb+4*jj+1}\nv_cvt_pk_bf16_f32 v{d+1}, v{rb+4*jj+2}, v{rb+4*jj+3}")
    tm.stamp(4)
    q = Queue(e, window=8)
    def pqf(t, tile):
        r = PQ + 36*(t >> 1) + 18*(t & 1) + 2*tile
        return f"a[{r}:{r+3}]"
    rdops = {}
    def mf(d, a, b, first, deps=()):
        return e.op(Op(f"v_mfma_f32_16x16x32_bf16 v[{d}:{d+3}], v[{a}:{a+3}], {b}, " + ("0" if first else f"v[{d}:{d+3}]"), deps=deps))
    eps = hex(f2u(1e-6))
    def den(t):
        while any(v[2] == ("pq", t >> 1) for v in vq): pace(True)
        e.wait_vm(lambda x: x == ("pq", t >> 1))
        for k, (c, T0, f) in enumerate(zf):
            d = RD + 8*t + 4*c
            o = mf(d, A + 4*f, pqf(t, T0), k % 3 == 0)
            if k % 3 == 2:
                for r in range(4):
                    o1 = q.add(Op(f"v_add_f32 v{d+r}, {eps}, v{d+r}", deps=[(o, 9)]))
                    rdops[(t, 4*c + r)] = q.add(Op(f"v_rcp_f32 v{d+r}, v{d+r}", cost=2, deps=[(o1, 0)]))
            pace(); q.fill(3)
    ringfree = [None]*6; mixfree = [None]*4; mixi = [0]; cnt = [0]
    def num(t, j):
        slot = cnt[0] % 6; cnt[0] += 1
        d = NR + 4*slot
        if ringfree[slot] is not None:
            for o in ringfree[slot]:
                if o.pos is None: q.drain_until(o)
        hs = [h for h in (j - 1, j) if 0 <= h < 8]
        for k, h in enumerate(hs):
            o = mf(d, A + 4*numf[(j, h)], pqf(t, h), k == 0)
            pace(); q.fill(4 if len(hs) == 2 else 6)
        muls = []; mixcache = {}
        for r in range(4):
            th = sum(1 for g in range(4) if 4*g + r < 2*j)
            if th == 0: src, dp_ = RD + 8*t + j, [(rdops[(t, j)], 1)]
            elif th == 4: src, dp_ = RD + 8*t + j - 1, [(rdops[(t, j-1)], 1)]
            else:
                if th not in mixcache:
                    mi = mixi[0] % 4; mixi[0] += 1
                    dd = [(rdops[(t, j)], 1), (rdops[(t, j-1)], 1)] + [(x, 0) for x in (mixfree[mi] or [])]
                    s = 52 + 2*(th-1)
                    mo = q.add(Op(f"v_cndmask_b32 v{MIX+mi}, v{RD+8*t+j}, v{RD+8*t+j-1}, s[{s}:{s+1}]", deps=dd))
                    mixcache[th] = (mi, mo); mixfree[mi] = []
                mi, mo = mixcache[th]
                src, dp_ = MIX + mi, [(mo, 0)]
            m = q.add(Op(f"v_mul_f32 v{d+r}, v{d+r}, v{src}", deps=[(o, 9)] + dp_))
            if th not in (0, 4): mixfree[mixcache[th][0]].append(m)
            muls.append(m)
        od = O + 18*t + 2*j
        c1 = q.add(Op(f"v_cvt_pk_bf16_f32 v{od}, v{d}, v{d+1}", deps=[(muls[0], 0), (muls[1], 0)]))
        c2 = q.add(Op(f"v_cvt_pk_bf16_f32 v{od+1}, v{d+2}, v{d+3}", deps=[(muls[2], 0), (muls[3], 0)]))
        ringfree[slot] = [c1, c2]
    e("s_nop 0")
    den(0); den(1)
    for t in range(4):
        for j in range(9):
            num(t, j)
            if t == 1 and j == 3: den(2)
            if t == 2 and j == 3: den(3)
    tm.stamp(5)
    def gm(ks, t, ct, first=False):
        lq = (t >> 1)*2 + ct//3
        d = ACC + 24*lq + 12*(t & 1) + 4*(ct % 3)
        cs = "0" if first else f"v[{d}:{d+3}]"
        if ks < 4:
            r = WFR + 24*ks + 4*ct; o = O + 18*t + 4*ks
            return e.op(Op(f"v_mfma_f32_16x16x32_bf16 v[{d}:{d+3}], a[{r}:{r+3}], v[{o}:{o+3}], {cs}"))
        r = WFR + 96 + 2*ct; o = O + 18*t + 16
        return e.op(Op(f"v_mfma_f32_16x16x16_bf16 v[{d}:{d+3}], a[{r}:{r+1}], v[{o}:{o+1}], {cs}"))
    chl = [None]
    def chain(lines, deps=()):
        prev = None
        for l in lines:
            prev = q.add(Op(l, deps=[(prev, 0)] if prev else list(deps) + ([(chl[0], 0)] if chl[0] else [])))
        chl[0] = prev
        return prev
    EX = RD
    otail = list(q.q)
    xa = chain([f"v_add_u32 v3, s{S_RB}, v{VL16}"] +
          [x for lq in (1, 2, 3) for x in (f"s_xor_b32 s5, s{S_WV}, {lq}", f"s_mul_i32 s5, s5, 12288", f"s_add_u32 s5, s5, {KVB}", f"v_add_u32 v{8+lq-1}, s5, v{VL16}")] +
          [f"s_and_b32 s5, s{S_WV}, 2", f"v_xor_b32 v13, s5, v14", f"v_and_b32 v14, 15, v2", f"v_lshl_add_u32 v13, v13, 4, v14", f"s_lshl_b32 s5, s{S_WV}, 8", f"s_add_u32 s5, s5, {MXC}",
           f"v_lshl_add_u32 v13, v13, 2, s5", f"s_lshl_b32 s5, s{S_WV}, 6", "s_and_b32 s5, s5, 128", f"s_add_u32 s5, s5, {MXC}", f"v_add_u32 v{VMX}, s5, v{VMX}"])
    for lq in (1, "m", 2, 3, 0):
        if lq == "m":
            for o in otail:
                if o.pos is None: q.drain_until(o)
            e("s_nop 1")
            for ks in (4, 0, 1, 2, 3):
                if ks == 0: e("s_nop 2")
                for t in range(4):
                    d = MN + 4*t
                    if ks < 4: mo = e.op(Op(f"v_mfma_f32_16x16x32_bf16 v[{d}:{d+3}], a[{WB+4*ks}:{WB+4*ks+3}], v[{O+18*t+4*ks}:{O+18*t+4*ks+3}], v[{d}:{d+3}]"))
                    else: e(f"v_mfma_f32_16x16x16_bf16 v[{d}:{d+3}], a[{WB+16}:{WB+17}], v[{O+18*t+16}:{O+18*t+17}], 0")
                    pace(); q.fill(2)
            chain([f"v_cndmask_b32 v{MN+12}, v{MN+12}, v{MN+8}, s[56:57]", f"v_cndmask_b32 v{MN+12}, v{MN+12}, v{MN+4}, s[54:55]", f"v_cndmask_b32 v{MN+12}, v{MN+12}, v{MN}, s[52:53]",
                   lambda: e.ds(f"ds_write_b32 v13, v{MN+12}", "mw")], deps=[(mo, 9)])
            continue
        if lq == 0:
            while vq: pace(True)
        last = {}
        for ks in (4, 0, 1, 2, 3):
            for t in (2*(lq >> 1), 2*(lq >> 1) + 1):
                for c3 in range(3):
                    last[(t & 1, c3)] = gm(ks, t, 3*(lq & 1) + c3, first=(ks == 4))
                    pace(); q.fill(2)
            if ks == 4:
                if lq == 0:
                    for tt in range(2):
                        for c3 in range(3):
                            d = ACC + 12*tt + 4*c3; x = XR + 4*c3 + 2*tt
                            e(f"v_mfma_f32_16x16x16_bf16 v[{d}:{d+3}], v[{ID}:{ID+1}], v[{x}:{x+1}], v[{d}:{d+3}]"); q.fill(2)
                e("s_nop 0")
            if lq == 0 and ks == 1:
                q.drain()
                tm.stamp(6)
                e("s_waitcnt lgkmcnt(0)\ns_barrier")
                e.lg = []; e.lg_done = 0
                IN = 40
                for l2 in (1, 2, 3):
                    for i in range(3):
                        r = IN + 12*(l2-1) + 4*i
                        q.add(Op(lambda r=r, l2=l2, i=i: e.ds(f"ds_read_b128 v[{r}:{r+3}], v{8+l2-1} offset:{l2*3072 + i*1024}", (l2, i))))
                q.add(Op(lambda: e.ds(f"ds_read2st64_b32 v[104:105], v{VMX} offset0:0 offset1:1", "m")))
                q.add(Op(lambda: e.ds(f"ds_read2st64_b32 v[106:107], v{VMX} offset0:2 offset1:3", "m")))
                chl[0] = q.q[-1]
                chain(["v_mov_b32 v13, 0x3f80", "v_mov_b32 v14, 0x3f800000", "v_mov_b32 v15, 0x3f803f80", "v_mov_b32 v8, 0", "v_mov_b32 v9, 0"])
        if lq:
            cv = []
            for i in range(12):
                cv.append(q.add(Op(f"v_cvt_pk_bf16_f32 v{EX+12*(lq-1)+i}, v{ACC+24*lq+2*i}, v{ACC+24*lq+2*i+1}", deps=[(last[(i//6, (i % 6)//2)], 9)] + [(o, 0) for o in otail])))
                if i % 4 == 3:
                    r = EX + 12*(lq-1) + i - 3
                    q.add(Op(lambda r=r, off=lq*3072 + (i//4)*1024: e.ds(f"ds_write_b128 v3, v[{r}:{r+3}] offset:{off}", "xw"), cost=2, deps=[(c, 0) for c in cv[-4:]] + [(xa, 0)]))
    q.drain()
    tm.stamp(7)
    e(f"s_mul_i32 s5, s{S_CG}, 6144\ns_lshl_b32 s6, s37, 5\ns_add_u32 s5, s5, s6\ns_add_u32 s5, s5, s39\ns_add_u32 s4, s5, {WS_HC}\ns_add_u32 s5, s5, {WS_HT}")
    e(f"s_lshl_b32 s6, s{S_CG}, 1\ns_and_b32 s7, s{S_WV}, 1\ns_add_u32 s6, s6, s7\ns_lshl_b32 s6, s6, 14\ns_lshl_b32 s7, s{S_WS}, 8\ns_add_u32 s6, s6, s7\ns_add_u32 s6, s6, {WS_ST}")
    e("s_waitcnt lgkmcnt(0)")
    for lq in (1, 2, 3):
        for i in range(3):
            for k in range(4):
                r = IN + 12*(lq-1) + 4*i + k; d = ACC + 2*(4*i + k)
                e(f"v_dot2c_f32_bf16 v{d}, v{r}, v13\nv_dot2c_f32_bf16 v{d+1}, v{r}, v14")
    e("v_pk_add_f32 v[104:105], v[104:105], v[106:107]\nv_add_f32 v1, v1, v104\nv_add_f32 v1, v1, v105\nv_cvt_pk_bf16_f32 v1, v1, v1\nv_and_b32 v1, 0xffff0000, v1\nv_xor_b32 v1, 0x80000000, v1")
    H = 80; HC = 92; TL = 40
    for c3 in range(3):
        for tt in range(2):
            a = ACC + 12*tt + 4*c3
            e(f"v_cvt_pk_bf16_f32 v{H+4*c3+2*tt}, v{a}, v{a+1}\nv_cvt_pk_bf16_f32 v{H+4*c3+2*tt+1}, v{a+2}, v{a+3}")
    for c3 in range(3):
        e(f"v_permlane32_swap_b32 v{H+4*c3}, v{H+4*c3+2}\nv_permlane32_swap_b32 v{H+4*c3+1}, v{H+4*c3+3}")
    for c3 in range(3):
        e(f"buffer_store_dwordx4 v[{H+4*c3}:{H+4*c3+3}], v{VST}, {W}, s5 offen" + (f" offset:{1024*c3}" if c3 else "") + sf)
        for r in range(H + 4*c3, H + 4*c3 + 4): e(f"v_dot2c_f32_bf16 v8, v{r}, v15\nv_dot2c_f32_bf16 v9, v{r}, v{r}")
    for c3 in range(3):
        for k in range(4):
            r = H + 4*c3 + k; t = TL + 8*c3 + 2*k
            e(f"v_dot2_f32_bf16 v{t}, v{r}, v13, v1\nv_dot2_f32_bf16 v{t+1}, v{r}, v14, v1")
        if c3 == 0: e("v_mov_b32 v6, v8\nv_mov_b32 v7, v9")
        if c3 == 1: e("v_permlane16_swap_b32 v6, v8\nv_permlane16_swap_b32 v7, v9")
    e(f"v_pk_add_f32 v[6:7], v[6:7], v[8:9]\nbuffer_store_dwordx2 v[6:7], v{VSA}, {W}, s6 offen{sf}")
    for c3 in range(3):
        for k in range(4): e(f"v_cvt_pk_bf16_f32 v{HC+4*c3+k}, v{TL+8*c3+2*k}, v{TL+8*c3+2*k+1}")
        e(f"buffer_store_dwordx4 v[{HC+4*c3}:{HC+4*c3+3}], v{VST}, {W}, s4 offen" + (f" offset:{1024*c3}" if c3 else "") + sf)
    tm.stamp(8)
    e(f"s_lshl_b32 s59, s{S_WS}, 8\ns_add_u32 s59, s59, {WS_FA}\ns_branch K2_done")
    e("F2_idle:")
    if prefetch and pf2:
        srd(e, 52, 12, 576*4608*2); srd(e, 56, 14, 576*4608*2)
        slice_of_xcd(e, 5, 2, C)
        e(f"s_mul_i32 s5, s5, 1152\ns_bfe_u32 s6, s2, 0x30003\ns_mul_i32 s6, s6, {72*9216}\ns_add_u32 s5, s5, s6")
        e(f"v_mul_u32_u24 v4, 911, v0\nv_lshrrev_b32 v4, 16, v4\nv_mul_u32_u24 v3, 72, v4\nv_sub_u32 v3, v0, v3\nv_mul_u32_u24 v3, 9216, v3")
        for k in range(0, len(pf2), 3):
            e(f"v_mov_b32 v12, {BIG}")
            for i, ln in enumerate(pf2[k:k+3]):
                e(f"v_cmp_eq_u32 vcc, {i}, v4\nv_add_u32 v13, {ln*128}, v3\ns_nop 0\nv_cndmask_b32 v12, v12, v13, vcc")
            e(f"buffer_load_dword v244, v12, s[52:55], s5 offen\nbuffer_load_dword v245, v12, s[56:59], s5 offen")
    e(gusel)
    for st in range(3):
        for pre, t_, _, _ in kdma(st):
            for p in pre: e(p)
            e(t_)
    e("s_mov_b32 s59, -1\nK2_done:")
    F["nleft"] = 0; F["pre_stages"] = 3
```

```python
import sys
from asmgen import kernel_header, kernel_desc
from sched import Em
from tim import Tim, Diag
from kb import TP
from kf1 import gen_f1
from kf2 import gen_f2
from k3 import gen_k3
P = dict(C=2, timing=0, pf=1, cpf=1, tsel=3, diag=None, aslist=0)
K = {1: {}, 2: {}, 3: {"na": 9}}
for kv in sys.argv[1:]:
    k, v = kv.split("=")
    if k[0] == "k" and k[2] == ".": K[int(k[1])][k[3:]] = eval(v)
    else: P[k] = eval(v)
T = bool(P["timing"])
NAME = "sequential_preLN__linear_attn_block__geglu_ffn__prompt_kernel"
hdr = open("sequential_preLN__linear_attn_block__geglu_ffn__prompt.s.ref").read().split("; Override")[0]
print(hdr, end="")
print(f"; @launch {'kernel=' + NAME + ' ' if P['aslist'] else ''}grid=(256,1,1) block=(256,1,1) lds=160768")
print('.amdgcn_target "amdgcn-amd-amdhsa--gfx950"\n.text')
e = Em()
tm = Tim(e, 3, T)
sel = {1: ({i: i for i in range(6)}, {0: 6, 1: 7, 2: 8, 3: 9, 8: 10}, {0: 11}),
       2: ({5: 0}, {i: i + 1 for i in range(9)}, {-11: 10, 0: 11}),
       3: ({5: 0}, {2: 1, 8: 2}, {k: i + 3 for i, k in enumerate([0, 135, -2, 568, 648, 864, 971, 'B0', -13])}),
       5: ({}, {}, {k: i for i, k in enumerate([0, 135, -1, -2, 568, 648, 720, 792, 864, 900, 936, 971])}),
       4: ({}, {8: 0}, {k: i + 1 for i, k in enumerate(['A0', 'A1', -11, 0, 135, 971, -12, 'B0', 'B1', 'B2', -13])})}[P["tsel"]]
tps = [TP(tm, m) for m in sel]
if P["diag"]: tps = [Diag(e, *P["diag"], k) for k in (1, 2, 3)]; T = True
F = dict(e=e, tm3=tps[2])
left = gen_f1(e, tps[0], C=P["C"], prefetch=P["pf"], cpf=P["cpf"], **K[1])
gen_f2(e, tps[1], F, left, C=P["C"], prefetch=P["pf"], **K[2])
print(kernel_header(NAME) + gen_k3(timing=T, fused=F, C=P["C"], **K[3]) + kernel_desc(NAME, 512, 100, 256))
```

```python
from sched import *
from layout import *
from tim import Tim
import struct, math
def f2u(x): return struct.unpack("<I", struct.pack("<f", x))[0]

def srd(e, d, b, nbytes, off=0):
    if off > 0:
        e(f"s_add_u32 s{d}, s{b}, {off}\ns_addc_u32 s{d+1}, s{b+1}, 0\ns_and_b32 s{d+1}, s{d+1}, 0xffff")
    elif off < 0:
        e(f"s_sub_u32 s{d}, s{b}, {-off}\ns_subb_u32 s{d+1}, s{b+1}, 0\ns_and_b32 s{d+1}, s{d+1}, 0xffff")
    else:
        e(f"s_mov_b32 s{d}, s{b}\ns_and_b32 s{d+1}, s{b+1}, 0xffff")
    e(f"s_mov_b32 s{d+2}, {nbytes}\ns_mov_b32 s{d+3}, 0x20000")

SLOT = 36864
STAMPS = [0, 135, -1, -2, 568, 648, 720, 792, 864, 900, 936, 971]
def gen_k3(C=2, budget=5, timing=False, store_flags=" sc1", lead=30, wdpf=True, roll=True, bud2=6, late0="n",
           f1=(604, 650, 686), f2=(742, 766, 792, 818), gst=' sc0 sc1', gld=' sc0 sc1', old=' sc0 sc1', slack=2.25, nogs=False, vcost=1, ldpace=8, dsp=4, dtail=1, fused=None, hpre=870, slp=8, sig0=942, pp1=2, pp2=4, ordb=1, na=6, of=' sc1', ctouch=(20, 470, 600, 700, 800), hd=7):
    e = fused['e'] if fused else Em()
    tm = fused['tm3'] if fused else Tim(e, 3, timing)
    xf = ' sc0 sc1' if fused else ''
    if fused: store_flags = ' sc0 sc1'
    TRB = 4; V1 = 8; VB = 17; VE = 26; VP1 = 29; VS = 30
    VK1 = 34; VK2 = 35; VS2 = 36; VL16 = 37; VPF = 38; VZ = 39; VF = 40; V3 = 41; VONE = 42; T = 44
    TM = 208
    ACC = 56; OLD = 120; GT = 184; GS = 200; GP = 208
    FR = 144; GO = 192; GP3 = 240; GPS = 112
    S_W = 8; S_WD = 12; S_HC = S_ST = S_PT = S_GX = S_FL = 16; S_XH = 20
    S_J = 28; S_I = 29; S_WV = 30; S_WB = 31; S_CP = 32; S_CS = 33; S_SO = 34; S_XO = 35
    S_PO = 36; S_PS = 37
    S_B0 = 38; S_B1 = 39; S_A0 = 21; S_A1 = 22; S_CNT = 49; S_GO = 50; S_XS = 51; S_SS = 52; S_PF = 53
    S_MK = 54
    S_OWN = 56; S_PAR = 57; S_SNG = 58; S_TMP = 59
    S_GW = 40; S_GR = 41; S_FW = 42; S_FR = 43
    if not fused: e("s_cmp_ge_u32 s2, 256\ns_cbranch_scc1 K3_end")
    else: e("s_mov_b32 s23, s59\ns_mov_b64 s[26:27], s[42:43]\ns_mov_b64 s[44:45], s[40:41]\ns_mov_b64 s[40:41], s[12:13]")
    if not fused: e("s_load_dwordx4 s[40:43], s[0:1], 32\ns_load_dwordx2 s[44:45], s[0:1], 48\ns_load_dwordx2 s[46:47], s[0:1], 72")
    if not fused: tm.start()
    ng = 16 // C; R = 32 // C
    lg = lambda x: int(math.log2(x))
    e(f"v_lshrrev_b32 v1, 6, v0\nv_and_b32 v2, 63, v0\ns_and_b32 s3, s2, 7\ns_lshr_b32 s4, s2, 3\nv_readfirstlane_b32 s{S_WV}, v1")
    e(f"s_and_b32 s5, s3, {ng-1}\ns_lshl_b32 s5, s5, {lg(C)}\ns_and_b32 s6, s4, {C-1}\ns_add_u32 s{S_J}, s5, s6")
    e(f"s_lshr_b32 s5, s3, {lg(ng)}\ns_lshl_b32 s5, s5, {lg(R)}\ns_lshr_b32 s6, s4, {lg(C)}\ns_add_u32 s{S_I}, s5, s6")
    e(f"v_lshlrev_b32 v{VL16}, 4, v2")
    e(f"v_bfe_u32 v3, v2, 2, 3\nv_and_b32 v{TM}, 3, v2\nv_lshlrev_b32 v{TM}, 4, v{TM}\nv_lshrrev_b32 v{TM+1}, 5, v2\nv_lshl_add_u32 v{TM+1}, v{TM+1}, 6, v{TM}")
    e(f"s_mul_i32 s{S_WB}, s{S_WV}, 9216")
    e(f"s_and_b32 s3, s{S_J}, 1\ns_mul_i32 s6, s{S_J}, 576\ns_lshl_b32 s7, s3, 6\ns_add_u32 s{S_CP}, s6, s7")
    e(f"s_and_b32 s4, s{S_WV}, 1\ns_mul_i32 s5, s4, {72*9216}\ns_add_u32 s{S_CP}, s{S_CP}, s5")
    e(f"v_mul_u32_u24 v1, 9216, v3\nv_add_u32 v{V1}, v1, v{TM+1}")
    for i in range(1, 9): e(f"v_add_u32 v{V1+i}, {8*i*9216 - (i%3)*1024}, v{V1}")
    e(f"s_lshl_b32 s5, s{S_I}, 2\ns_add_u32 s5, s5, s{S_WV}\ns_mul_i32 s{S_XO}, s5, 36864\ns_add_u32 s{S_XH}, s{S_XO}, {WS_HC}")
    e(f"v_lshrrev_b32 v1, 5, v2\nv_lshlrev_b32 v1, 8, v1\nv_bfe_u32 v{T}, v2, 2, 2\nv_lshl_add_u32 v1, v{T}, 6, v1")
    e(f"v_bfe_u32 v{T}, v2, 4, 1\nv_lshl_add_u32 v1, v{T}, 5, v1\nv_and_b32 v{T}, 3, v2\nv_lshl_add_u32 v{TRB}, v{T}, 3, v1")
    for i in range(1, 4): e(f"v_add_u32 v{TRB+i}, {i*SLOT}, v{TRB}")
    if not fused:
        e("s_waitcnt lgkmcnt(0)")
        e(f"s_cmp_lt_u32 s{S_WV}, 2\ns_cselect_b32 s40, s40, s42\ns_cselect_b32 s41, s41, s43")
    srd(e, S_W, 40, 576*4608*2)
    srd(e, S_HC, 46, WS_BYTES)

    NST = 27
    def dma_instrs(st, inbody=False):
        slot = st % 4
        L = []
        def grp(g, so, vs, sr):
            if so: L.append((so, False))
            L.append((f"s_add_u32 m0, s{S_WB}, {slot*SLOT + g*3072}", False))
            for k in range(3):
                L.append((f"buffer_load_dwordx4 v{vs[k]}, s[{sr}:{sr+3}], s{sreg} offen" + (f" offset:{k*1024}" if k else "") + " lds", True))
        sreg = S_SO
        if inbody and st < 18:
            sreg = {14: S_A0, 15: S_A1, 16: S_B0, 17: S_B1}[st]; vb = V1 if st < 16 else VB
            for g in range(3): grp(g, None, [vb+3*g, vb+3*g+1, vb+3*g+2], S_W)
            L.append((f"s_add_u32 s{sreg}, s{sreg}, 128", False))
        elif st < 16:
            p, q = st // 4, st % 4
            for g in range(3):
                grp(g, f"s_add_u32 s{S_SO}, s{S_CP}, {p*128 + q*144*9216}" if g == 0 else None, [V1+3*g, V1+3*g+1, V1+3*g+2], S_W)
        elif st < 24:
            k = st - 18; b = S_OWN if k < 3 else S_PAR; o = (k % 3)*64*1152
            grp(0, f"s_add_u32 s{S_SO}, s{b}, {o}", [VE, VE+1, VE+2], S_WD)
            grp(1, f"s_add_u32 s{S_SO}, s{b}, {o + 8*1152}", [VE, VE+1, VE+2], S_WD)
            grp(2, f"s_add_u32 s{S_SO}, s{b}, {o + 384}", [VE, VP1, VS], S_WD)
        else:
            ls = st - 24
            for g, (b, o) in enumerate(((S_OWN, 3*64*1152), (S_PAR, 3*64*1152), (S_SNG, 0))):
                grp(g, f"s_add_u32 s{S_SO}, s{b}, {o + 128*ls}", [VE, VP1, VS+1+ls], S_WD)
        return L
    def emit_list(L):
        n = 0; prev_m0 = False
        for t, tag in L:
            if tag:
                if prev_m0: e("s_nop 0"); n += 1
                e.vmem(t, tag); prev_m0 = False
            else:
                e(t); prev_m0 = "m0" in t
            n += 1
        return n
    def xload_instrs(s):
        L = []
        if s % 4 == 0: L.append((f"s_add_u32 s{S_XS}, s{S_XH}, {s*1024}", None))
        L.append((f"buffer_load_dwordx4 a[{4*s}:{4*s+3}], v{VL16}, s[{S_HC}:{S_HC+3}], s{S_XS} offen" + (f" offset:{(s%4)*1024}" if s % 4 else "") + xf, ("x", s)))
        return L
    if not fused:
        emit_list(xload_instrs(0))
        emit_list([(t, ("dma", 0) if d else None) for t, d in dma_instrs(0)])
        emit_list(xload_instrs(1)); emit_list(xload_instrs(2))
    else:
        e.vm = []; e.vm_done = 0; e.lg = []; e.lg_done = 0

    q = Queue(e, window=10)
    def emit_op(o, _orig=e.op):
        if callable(o.text):
            o.text(); o.pos = e.n - 1; return o
        return _orig(o)
    e.op = emit_op
    chl = [None]
    def chain(text, first_deps=()):
        prev = None
        for l in text.split("\n") if isinstance(text, str) else text:
            if isinstance(l, str):
                l = l.strip()
                if not l: continue
            deps = [(prev, 0)] if prev else list(first_deps) + ([(chl[0], 0)] if chl[0] and chl[0].pos is None else [])
            cost = 2 if isinstance(l, str) and re.match(r"v_(rcp|sqrt|exp|permlane)", l) else 1
            prev = q.add(Op(l, cost=cost, deps=deps))
        chl[0] = prev
        return prev
    e(f"s_lshl_b32 s{S_SS}, s5, 8\nv_and_b32 v{VZ}, 31, v2\nv_lshlrev_b32 v{VZ}, 3, v{VZ}\nv_lshrrev_b32 v1, 5, v2\nv_mul_u32_u24 v1, {6*16384}, v1\nv_add_u32 v{VZ}, v{VZ}, v1")
    srd(e, S_WD, 44, 4608*576*2 + 4096, -4096)
    e(f"s_xor_b32 s7, s3, 1\ns_lshl_b32 s7, s7, 9\ns_add_u32 s{S_CS}, s6, s7\ns_mul_i32 s4, s4, {144*9216}\ns_add_u32 s{S_CS}, s{S_CS}, s4")
    e(f"v_lshrrev_b32 v1, 2, v2\nv_mul_u32_u24 v{T}, 9216, v1\nv_add_u32 v{V3}, v{T}, v{TM}")
    e(f"s_lshl_b32 s4, s3, 6\ns_mul_i32 s5, s{S_WV}, {16*1152}\ns_add_u32 s5, s5, 4096\ns_add_u32 s{S_TMP}, s5, s4")
    e(f"v_mul_u32_u24 v{T}, 1152, v3\nv_add3_u32 v{VE}, v{T}, v{TM+1}, s{S_TMP}\nv_subrev_u32 v{VE+1}, {1024-128}, v{VE}\nv_subrev_u32 v{VE+2}, {2048-256}, v{VE}\nv_add_u32 v{VP1}, {8*1152-1024}, v{VE}")
    e(f"v_mul_u32_u24 v{T}, 1152, v1\nv_add_u32 v{T}, v{T}, v{TM}\ns_add_u32 s5, s5, s7")
    e(f"s_sub_u32 s7, s5, {2048+384}\nv_add_u32 v{VS}, s7, v{T}\ns_sub_u32 s7, s5, {2048+256}\nv_add_u32 v{VS+3}, s7, v{T}")
    e(f"s_sub_u32 s7, s{S_TMP}, {2048-384}\nv_add_u32 v{VS+1}, s7, v{T}\ns_sub_u32 s7, s{S_TMP}, {2048-320}\nv_add_u32 v{VS+2}, s7, v{T}")
    e(f"""s_lshr_b32 s5, s{S_J}, 1
s_mul_i32 s6, s5, {576*1152}
s_mul_i32 s7, s3, 576
s_add_u32 s6, s6, s7
s_mul_i32 s7, s3, {320*1152}
s_add_u32 s{S_OWN}, s6, s7
s_add_u32 s{S_PAR}, s6, {320*1152}
s_sub_u32 s{S_PAR}, s{S_PAR}, s7
s_lshl_b32 s7, s3, 1
s_xor_b32 s7, s7, s{S_WV}
s_sub_u32 s7, s7, s{S_WV}
s_add_u32 s7, s7, 16
s_mul_i32 s7, s7, {16*1152}
s_add_u32 s{S_SNG}, s6, s7""")
    e(f"""s_mul_i32 s5, s5, {ACT_BYTES}
s_add_u32 s5, s5, s{S_XO}
s_add_u32 s5, s5, {WS_PART}
s_mul_i32 s6, s3, {18*1024 if fused else 20*1024}
s_add_u32 s{S_PO}, s5, s6
s_lshl_b32 s6, s3, 11
s_add_u32 s6, s6, {16*1024}
s_add_u32 s{S_PS}, s5, s6""")
    e(f"""s_lshl_b32 s5, s{S_I}, 4
s_add_u32 s5, s5, s{S_J}
s_lshl_b32 s5, s5, 2
s_add_u32 s5, s5, s{S_WV}
s_xor_b32 s6, s5, 4
s_mul_i32 s{S_GW}, s5, 18432
s_mul_i32 s{S_GR}, s6, 18432
s_lshl_b32 s{S_FW}, s5, 6
s_lshl_b32 s{S_FR}, s6, 6
s_add_u32 s{S_GW}, s{S_GW}, {WS_GX}
s_add_u32 s{S_GR}, s{S_GR}, {WS_GX}
s_add_u32 s{S_FW}, s{S_FW}, {WS_FL}
s_add_u32 s{S_FR}, s{S_FR}, {WS_FL}
s_mov_b32 s{S_GO}, s{S_GW}
s_add_u32 s{S_A0}, s{S_CP}, {128 + 288*9216}
s_add_u32 s{S_A1}, s{S_CP}, {128 + 432*9216}
s_add_u32 s{S_B0}, s{S_CP}, 256
s_add_u32 s{S_B1}, s{S_CP}, {256 + 144*9216}
s_mov_b32 s{S_CNT}, 0""")
    for i in range(9): e(f"v_mov_b32 v{VB+i}, v{V1+i}")
    if wdpf:
        e(f"s_mul_i32 s5, s{S_WV}, 42\nv_add_u32 v1, s5, v2\nv_lshlrev_b32 v1, 7, v1\nv_cmp_gt_u32 s[54:55], 14, v2\nv_mov_b32 v{VPF}, 0x40000000")
        e(f"s_mul_i32 s5, s{S_I}, 18\ns_mul_i32 s6, s{S_J}, 288\ns_add_u32 s5, s5, s6\ns_mul_i32 s{S_PF}, s5, 1152\ns_add_u32 s{S_PF}, s{S_PF}, 4096\nv_cndmask_b32 v{VPF}, v{VPF}, v1, s[54:55]")

    c = 0.7978845608028654; l2e = 1.4426950408889634
    k1 = -2*c*l2e; k2 = k1*0.044715
    M = []
    for p in range(4):
        for ks in range(36):
            qq, s = ks // 9, ks % 9
            for uu in range(2):
                for mat in range(2):
                    o = (mat*18 + 2*s)*1024 + uu*512
                    M.append(dict(acc=f"v{ACC + 32*uu + 16*mat}", dst=f"v{OLD + 32*uu + 16*mat}" if ks == 35 else None, b=f"a[{4*ks}:{4*ks+3}]",
                                  first=(ks == 0), last=(ks == 35), st=4*p+qq, rd=(o, o + 1024), xs=ks if p == 0 else None, unit=2*p+uu, mat=mat, ph=1))
        t = M[-8:]; M[-8:] = [t[0], t[1], t[4], t[5], t[2], t[3], t[6], t[7]]
    for ks in range(36):
        qq, s = ks // 18, ks % 18
        for mat in range(2):
            o = (mat*18 + s)*1024
            M.append(dict(acc=f"v{ACC + 16*mat}", dst=None, b=f"a[{4*ks}:{4*ks+3}]", first=(ks == 0), last=(ks == 35), st=16+qq, rd=(o, o + 512), xs=None, unit=8, mat=mat, ph=1))
    tacc = {0: "a0", 1: "a16", 6: "a32", 2: "a48", 3: "a64", 7: "a80", 4: "a96", 5: f"v{ACC+32}", 8: f"v{ACC+48}"}
    def eoff(t):
        if t == 8: return (8*1024, 8*1024 + 512)
        cp, uu = t >> 1, t & 1
        return ((cp*1024 + uu*512, (3 + cp)*1024 + uu*512) if cp < 3 else (6*1024 + uu*512, 7*1024 + uu*512))
    for k in range(6):
        for w in range(4):
            g = (f"a[{GO+16*k+4*w}:{GO+16*k+4*w+3}]", ("go", 4*k + w)) if k < 3 else (f"v[{GP+16*(k-3)+4*w}:{GP+16*(k-3)+4*w+3}]", ("gp", 4*(k-3) + w))
            for t in range(9):
                o = eoff(t)
                M.append(dict(acc=tacc[t], dst=None, b=g[0], gsrc=g[1], first=(k == 0 and w == 0), last=False, st=18+k, rd=(w*9216 + o[0], w*9216 + o[1]), xs=None, tile=t, ph=2))
    lateks = [(0, w, f"v[{GT+4*w}:{GT+4*w+3}]", ("cv", 12 + w)) for w in range(4)] + [(2, w, f"v[{GS+4*w}:{GS+4*w+3}]", ("cv", 16 + w)) for w in range(2)] + \
             [(1, w, f"a[{GP3+4*w}:{GP3+4*w+3}]", ("gp", 12 + w)) for w in range(4)] + [(2, 2 + w, f"a[{GPS+4*w}:{GPS+4*w+3}]", ("gp", 16 + w)) for w in range(2)]
    for ls in range(3):
        tiles = [2*ls, 2*ls + 1, 6 + ls]
        if ls == 0 and late0 == "own":
            order = [(t, k) for k in range(6) for t in tiles] + [(t, k) for t in tiles for k in range(6, 12)]
        else:
            order = [(t, k) for t in tiles for k in range(12)]
        for t, k in order:
            gi, w, b, src = lateks[k]
            base = w*9216 + gi*3072
            rd = (base + (t & 1)*512, base + 1024 + (t & 1)*512) if t < 6 else (base + 2048, base + 2048 + 512)
            M.append(dict(acc=tacc[t], dst=None, b=b, gsrc=src, first=False, last=(k == 11), st=24+ls, rd=rd, xs=None, tile=t, ph=2))
    NM = len(M); assert NM == 972
    LA = 8
    def rng(r, n=16):
        return f"{r[0]}[{int(r[1:])}:{int(r[1:])+n-1}]"

    gdone = {}; tstate = {"last": [None, None]}; pairctr = [0]
    oldbusy = {}
    memq = []
    def add_gelu(unit, gacc, uacc, mg, mu, inbody):
        gb = GS if unit == 8 else GT + 8*(unit & 1)
        for k in range(8):
            ts = pairctr[0] % 2; pairctr[0] += 1
            ta, tb = T + 2*ts, T + 2*ts + 1
            ga, gb_, ua, ub = gacc + 2*k, gacc + 2*k + 1, uacc + 2*k, uacc + 2*k + 1
            prev = tstate["last"][ts]
            d0 = [(mg, 13)] + ([(prev, 0)] if prev else [])
            sa = q.add(Op(f"v_mul_f32 v{ta}, v{ga}, v{ga}", deps=d0))
            sb = q.add(Op(f"v_mul_f32 v{tb}, v{gb_}, v{gb_}", deps=d0))
            fa = q.add(Op(f"v_fma_f32 v{ta}, v{ta}, v{VK2}, v{VK1}", deps=[(sa, 0)]))
            fb = q.add(Op(f"v_fma_f32 v{tb}, v{tb}, v{VK2}, v{VK1}", deps=[(sb, 0)]))
            aa = q.add(Op(f"v_mul_f32 v{ta}, v{ga}, v{ta}", deps=[(fa, 0)]))
            ab = q.add(Op(f"v_mul_f32 v{tb}, v{gb_}, v{tb}", deps=[(fb, 0)]))
            ea = q.add(Op(f"v_exp_f32 v{ta}, v{ta}", cost=2, deps=[(aa, 0)]))
            pa = q.add(Op(f"v_mul_f32 v{ua}, v{ga}, v{ua}", deps=[(mg, 13), (mu, 13)]))
            eb = q.add(Op(f"v_exp_f32 v{tb}, v{tb}", cost=2, deps=[(ab, 0)]))
            pb = q.add(Op(f"v_mul_f32 v{ub}, v{gb_}, v{ub}", deps=[(mg, 13), (mu, 13)]))
            da = q.add(Op(f"v_fma_f32 v{ta}, v{ta}, v{VS2}, v{VS2}", deps=[(ea, 1)]))
            db = q.add(Op(f"v_fma_f32 v{tb}, v{tb}, v{VS2}, v{VS2}", deps=[(eb, 1)]))
            ra = q.add(Op(f"v_rcp_f32 v{ta}, v{ta}", cost=2, deps=[(da, 0)]))
            rb = q.add(Op(f"v_rcp_f32 v{tb}, v{tb}", cost=2, deps=[(db, 0)]))
            ya = q.add(Op(f"v_mul_f32 v{ta}, v{ua}, v{ta}", deps=[(ra, 1), (pa, 0)]))
            yb = q.add(Op(f"v_mul_f32 v{tb}, v{ub}, v{tb}", deps=[(rb, 1), (pb, 0)]))
            cv = q.add(Op(f"v_cvt_pk_bf16_f32 v{gb + k}, v{ta}, v{tb}", deps=[(ya, 0), (yb, 0)]))
            tstate["last"][ts] = cv
            fi = 2*unit + k//4
            gdone.setdefault(fi, []).append(cv)
            oldbusy.setdefault(f"v{gacc}", []).append(cv); oldbusy.setdefault(f"v{uacc}", []).append(cv)
            if k % 4 == 3:
                r = gb + k - 3
                L = []
                if unit == 8 and k == 3: L.append((f"s_add_u32 s{S_GO}, s{S_GO}, 4096", None))
                off = (fi % 4)*1024
                L.append((f"buffer_store_dwordx4 v[{r}:{r+3}], v{VL16}, s[{S_GX}:{S_GX+3}], s{S_GO} offen" + (f" offset:{off}" if off else "") + gst, ("gs", fi)))
                if nogs and unit < 6: L = [("s_nop 0", None)]
                memq.append(dict(deps=list(gdone[fi]), L=L))
    outn = [0]
    VPS = 48; VLZ = 49; VRH = 50; VRO = 53; VRA = 3
    outbusy = [[], [], [], []]
    def add_out(t, acc, mo):
        def cv(i, deps): return q.add(Op(f"v_cvt_pk_bf16_f32 v{r+i}, v{r+2*i}, v{r+2*i+1}", deps=deps))
        prev = None; cvs = []
        if acc[0] == "a":
            bi = outn[0] % 4; outn[0] += 1
            assert all(x.get("done") for x in outbusy[bi])
            r = OLD + 16*bi; a = int(acc[1:])
            for i in range(8):
                r0 = q.add(Op(f"v_accvgpr_read_b32 v{r+2*i}, a{a+2*i}", deps=[(mo, 13)]))
                r1 = q.add(Op(f"v_accvgpr_read_b32 v{r+2*i+1}, a{a+2*i+1}", deps=[(mo, 13)]))
                prev = cv(i, [(r0, 0), (r1, 0)] + ([(prev, 0)] if prev else [])); cvs.append(prev)
        else:
            bi = None; r = int(acc[1:])
            for i in range(8):
                prev = cv(i, [(mo, 13)] + ([(prev, 0)] if prev else [])); cvs.append(prev)
        new = []
        for h in range(2):
            L = []
            if fused:
                g_, fi_ = (t - 6, 4 + h) if t >= 6 else (t >> 1, 2*(t & 1) + h)
                if fi_ == 0: L.append((f"s_add_u32 s{S_TMP}, s{S_PO}, {g_*6144}", None))
                L.append((f"buffer_store_dwordx4 v[{r+4*h}:{r+4*h+3}], v{VPS}, s[{S_PT}:{S_PT+3}], s{S_TMP} offen" + (f" offset:{fi_*128}" if fi_ else "") + store_flags, ("store", g_)))
                x = dict(deps=[cvs[4*h+3]], L=L); memq.append(x); new.append(x)
                continue
            so = S_PS if t == 8 else S_TMP
            if t != 8 and h == 0: L.append((f"s_add_u32 s{S_TMP}, s{S_PO}, {t*2048}", None))
            L.append((f"buffer_store_dwordx4 v[{r+4*h}:{r+4*h+3}], v{VL16}, s[{S_PT}:{S_PT+3}], s{so} offen" + (f" offset:1024" if h else "") + store_flags, ("store", t - 6 if t >= 6 else t >> 1)))
            x = dict(deps=[cvs[4*h+3]], L=L); memq.append(x); new.append(x)
        if bi is not None: outbusy[bi] = new
    def pop_mem():
        y = memq.pop(0); y["done"] = True
        return emit_list(y["L"])
    def mem_ready():
        return memq and all(d.pos is not None for d in memq[0]["deps"])
    def reads(m):
        d = M[m]; fr = FR + 4*(m % 12); vb = TRB + d["st"] % 4
        e.ds(f"ds_read_b64_tr_b16 a[{fr}:{fr+1}], v{vb} offset:{d['rd'][0]}", m)
        e.ds(f"ds_read_b64_tr_b16 a[{fr+2}:{fr+3}], v{vb} offset:{d['rd'][1]}", m)

    early = []
    for s_ in range(0 if fused else 3, 36): early.append((4*s_ - (4 if s_ == 35 else 0), xload_instrs(s_)))
    for st in (() if fused else (1, 2, 3)):
        grp = []; k = 0
        for t, isd in dma_instrs(st):
            grp.append((t, ("dma", st) if isd else None))
            if isd:
                early.append((36*st - 8 - 3*(8-k) - 1, grp)); grp = []; k += 1
    for g in range(6):
        early.append((112 + g, [(f"s_add_u32 s{S_TMP}, s{S_SS}, {WS_ST + g*16384}", None),
                                (f"buffer_load_dwordx2 v[{TM+2+2*g}:{TM+3+2*g}], v{VZ}, s[{S_ST}:{S_ST+3}], s{S_TMP} offen" + xf, "st")]))
    early.sort(key=lambda x: x[0])
    def emit_early():
        return emit_list(early.pop(0)[1])
    def stats_ops():
        b = TM + 2
        inv = hex(f2u(1.0/576))
        txt = [lambda: e.wait_vm(lambda t: t == "st")] + f"""v_add_f32 v{b}, v{b}, v{b+2}
v_add_f32 v{b+1}, v{b+1}, v{b+3}
v_add_f32 v{b+4}, v{b+4}, v{b+6}
v_add_f32 v{b+5}, v{b+5}, v{b+7}
v_add_f32 v{b+8}, v{b+8}, v{b+10}
v_add_f32 v{b+9}, v{b+9}, v{b+11}
v_add_f32 v{b}, v{b}, v{b+4}
v_add_f32 v{b+1}, v{b+1}, v{b+5}
v_add_f32 v{b}, v{b}, v{b+8}
v_add_f32 v{b+1}, v{b+1}, v{b+9}
v_mov_b32 v{b+2}, v{b}
v_mov_b32 v{b+3}, v{b+1}
v_mov_b32 v{VONE}, 1
v_mov_b32 v{VONE+1}, 2
v_permlane32_swap_b32 v{b}, v{b+2}
v_permlane32_swap_b32 v{b+1}, v{b+3}
v_mov_b32 v{VZ}, 0
v_add_f32 v{b}, v{b}, v{b+2}
v_add_f32 v{b+1}, v{b+1}, v{b+3}
v_mul_f32 v{b}, {inv}, v{b}
v_mul_f32 v{b+1}, {inv}, v{b+1}
v_fma_f32 v{b+1}, -v{b}, v{b}, v{b+1}
v_max_f32 v{b+1}, 0, v{b+1}
v_cvt_pk_bf16_f32 v{b+1}, v{b+1}, v{b+1}
v_and_b32 v{b+1}, 0xffff0000, v{b+1}
v_add_f32 v{b+1}, {hex(f2u(1e-5))}, v{b+1}
v_cvt_pk_bf16_f32 v{b+1}, v{b+1}, v{b+1}
v_and_b32 v{b+1}, 0xffff0000, v{b+1}
v_sqrt_f32 v{b+1}, v{b+1}
s_nop 0
v_cvt_pk_bf16_f32 v{b+1}, v{b+1}, v{b+1}
v_and_b32 v{b+1}, 0xffff0000, v{b+1}
v_rcp_f32 v{b}, v{b+1}
v_mul_f32 v{VS2}, v{b+1}, v{b+1}
v_mul_f32 v{VK1}, {hex(f2u(k1))}, v{b}
v_mul_f32 v{b+1}, v{b}, v{b}
v_mul_f32 v{b}, {hex(f2u(k2))}, v{b}
v_mul_f32 v{VK2}, v{b}, v{b+1}""".split("\n")
        chain(txt)
    spins = []
    def poll_check(val, name):
        e.wait_vm(lambda t: t == "poll" + name)
        e(f"v_readfirstlane_b32 s{S_TMP}, v{VF}\ns_nop 1\ns_cmp_ge_u32 s{S_TMP}, {val}\ns_cbranch_scc0 K3_spin{name}\nK3_ret{name}:")
        spins.append((name, val))
    def gload(kind, fi):
        L = []
        base = S_GW if kind == "go" else S_GR
        if fi % 4 == 0: L.append((f"s_add_u32 s{S_XS}, s{base}, {fi*1024}", None))
        if kind == "go": dst = f"a[{GO+4*fi}:{GO+4*fi+3}]"
        elif fi < 12: dst = f"v[{GP+4*fi}:{GP+4*fi+3}]"
        elif fi < 16: dst = f"a[{GP3+4*(fi-12)}:{GP3+4*(fi-12)+3}]"
        else: dst = f"a[{GPS+4*(fi-16)}:{GPS+4*(fi-16)+3}]"
        L.append((f"buffer_load_dwordx4 {dst}, v{VL16}, s[{S_GX}:{S_GX+3}], s{S_XS} offen" + (f" offset:{(fi%4)*1024}" if fi % 4 else "") + (old if kind == "go" else gld), (kind, fi)))
        return L
    ldq = []
    def flag_store(val):
        e.vmem(f"buffer_store_dword v{VONE+val-1}, v{VZ}, s[{S_FL}:{S_FL+3}], s{S_FW} offen sc0 sc1", "flag")
    def poll_issue(name):
        e.vmem(f"buffer_load_dword v{VF}, v{VZ}, s[{S_FL}:{S_FL+3}], s{S_FR} offen sc0 sc1", "poll" + name)
    actions = {}
    def act1():
        e.wait_vm(lambda t: t and t[0] == "gs" and t[1] < 12); flag_store(1); return 3
    actions[f1[0]] = act1
    actions[f1[1]] = lambda: poll_issue("A") or 2
    actions[f1[2]] = lambda: poll_check(1, "A") or ldq.extend(gload("gp", fi) for fi in range(12)) or 5
    def act2pre():
        q.drain()
        while memq: pop_mem()
        return 1
    def act2():
        e.wait_vm(lambda t: t and t[0] == "gs"); flag_store(2); return 2
    actions[f2[0]] = act2pre
    actions[f2[1]] = act2
    actions[f2[2]] = lambda: poll_issue("B") or 1
    actions[f2[3]] = lambda: poll_check(2, "B") or ldq.extend(gload("gp", fi) for fi in range(12, 18)) or 5

    def apoll(sreg, val=0):
        return f"v_mov_b32 v{VF}, {val}\nbuffer_atomic_add v{VF}, v{VLZ}, s[{S_FL}:{S_FL+3}], s{sreg} offen sc0 sc1"
    if not fused:
        emit_early(); emit_early(); emit_early()
        e.wait_vm(lambda t: t == ("dma", 0))
        e("s_barrier")
        for m in range(LA): reads(m)
        emit_early(); emit_early()
    else:
        e(f"s_lshl_b32 s5, s{S_I}, 2\ns_add_u32 s5, s5, s{S_WV}\ns_lshl_b32 s24, s5, 8\ns_add_u32 s24, s24, {WS_FA}")
        e(f"v_cmp_eq_u32 vcc, 0, v2\nv_mov_b32 v{VONE}, 1\nv_mov_b32 v1, 0x40000000\nv_cndmask_b32_e64 v{VLZ}, v1, 0, vcc")
        tm.stamp(-10)
        e(f"s_waitcnt vmcnt({fused['nleft']})")
        tm.stamp("A0")
        e(f"s_cmp_lt_i32 s23, 0\ns_cbranch_scc1 K3_ns\nbuffer_atomic_add v{VONE}, v{VLZ}, s[{S_FL}:{S_FL+3}], s23 offen sc1\nK3_ns:")
        e("s_barrier")
        ps = fused.get("pre_stages", 2); nrem = 9*(4 - ps)
        LL = [(t, ("dma", st) if d else None) for st in range(ps, 4) for t, d in dma_instrs(st)]
        k_ = [i for i, (t, d) in enumerate(LL) if d][na-1] + 1
        emit_list(LL[:k_])
        for m in range(LA): reads(m)
        e(f"""s_and_b32 s6, s{S_J}, 1
s_lshl_b32 s25, s5, 1
s_add_u32 s25, s25, s6
s_lshl_b32 s25, s25, 8
s_add_u32 s25, s25, {WS_FB}
s_lshr_b32 s7, s{S_J}, 1
s_mul_i32 s48, s7, 768
s_mul_i32 s4, s6, {18*1024}
s_add_u32 s48, s48, s4
s_add_u32 s48, s48, s{S_XO}
s_lshl_b32 s7, s7, 2
v_cmp_lt_u32 vcc, 31, v2
v_cmp_gt_u32 s[54:55], 48, v2
v_bfe_u32 v{T}, v2, 2, 3
v_mul_u32_u24 v{VPS}, 768, v{T}
v_lshrrev_b32 v{T}, 5, v2
v_lshl_add_u32 v{VPS}, v{T}, 6, v{VPS}
v_and_b32 v{T}, 3, v2
v_lshl_add_u32 v{VPS}, v{T}, 4, v{VPS}
v_lshrrev_b32 v{T}, 3, v2
v_bfe_u32 v{T+1}, v2, 2, 2
v_cndmask_b32_e64 v{T}, v{T}, v{T+1}, vcc
v_bfe_u32 v{T+1}, v2, 1, 2
v_bfe_u32 v{T+2}, v2, 1, 1
v_add_u32 v{T+2}, 4, v{T+2}
v_cndmask_b32_e64 v{T+1}, v{T+1}, v{T+2}, vcc
v_and_b32 v{T+2}, 1, v2
v_lshlrev_b32 v{VRA}, 4, v{T}
v_lshl_add_u32 v{VRA}, v{T+2}, 6, v{VRA}
v_lshl_add_u32 v{VRA}, v{T+1}, 7, v{VRA}
v_cndmask_b32 v{VRA}, v1, v{VRA}, s[54:55]
v_add_u32 v{T}, s7, v{T}
v_mul_u32_u24 v{T+3}, 1152, v{T}
v_lshl_add_u32 v{T+3}, v{T+2}, 4, v{T+3}
v_lshl_add_u32 v{T}, v{T+2}, 5, v{T}
v_lshlrev_b32 v{T}, 4, v{T}
v_cndmask_b32 v{T}, v1, v{T}, s[54:55]
v_cndmask_b32 v{T+3}, v1, v{T+3}, s[54:55]
s_mul_i32 s7, s6, 20
v_add_u32 v{T+1}, s7, v{T+1}
s_mul_i32 s6, s6, -18
s_add_u32 s6, s6, 12
v_mov_b32 v1, s6""" + "".join(f"""
v_cndmask_b32_e64 v{T+2}, {4*g}, {('v1' if g == 2 else 8 + 2*g)}, vcc
v_add_u32 v{T+2}, v{T+2}, v{T+1}
v_lshl_add_u32 v{VRH+g}, v{T+2}, 10, v{T}
v_lshl_add_u32 v{VRO+g}, v{T+2}, 5, v{T+3}""" for g in range(3)))
        if ctouch:
            e(f"s_getpc_b64 s[6:7]\nK3_pc:\ns_add_u32 s6, s6, K3_pdA-K3_pc\ns_addc_u32 s7, s7, 0\ns_lshr_b32 s4, s2, 3\ns_lshl_b32 s4, s4, 2\ns_add_u32 s4, s4, s{S_WV}\ns_lshl_b32 s4, s4, 8")
            e(f"v_and_b32 v2, 1, v2\nv_lshlrev_b32 v2, 7, v2\nv_add_u32 v2, s4, v2\nv_min_u32 v2, KB_last-K3_pdA, v2")
        tm.stamp("A1")
        e(apoll(24))
        emit_list(LL[k_:])
        rd = f"v_readfirstlane_b32 s5, v{VF}\ns_nop 1"
        e(f"s_waitcnt vmcnt({nrem-na})\n{rd}\ns_cmp_ge_u32 s5, 12\ns_cbranch_scc1 K3_pdA\nK3_plA:\n{apoll(24)}\ns_waitcnt vmcnt(0)\n{rd}")
        e(f"s_cmp_ge_u32 s5, 12\ns_cbranch_scc1 K3_pdA\ns_cmp_lg_u32 s5, 0\ns_cbranch_scc1 K3_plA\ns_sleep {slp}\ns_branch K3_plA\nK3_pdA:")
        tm.stamp(-11)
        e.vm = [("dma", k//9) for k in range(36)]; e.vm_done = 9*ps + na
        for _ in range(8): emit_early()
        for m_ in ctouch:
            actions[m_] = lambda: e.vmem(f"global_load_dword v1, v2, s[6:7]", "ct") and 2
        HR = GP
        def hl(k):
            if k == 0: e(f"s_add_u32 s{S_XS}, s{S_XO}, {WS_HT}")
            e.vmem(f"buffer_load_dwordx4 v[{HR+4*k}:{HR+4*k+3}], v{VRH+k}, s[{S_HC}:{S_HC+3}], s{S_XS} offen sc0 sc1", "h"); return 2
        for k in range(3): actions[hpre + 4*k] = (lambda k=k: hl(k))
        def sigB(g):
            assert sum(1 for t in e.vm if t == ("store", g)) == 6
            e.wait_vm(lambda t: t == ("store", g))
            e.vmem(f"buffer_atomic_add v{VONE}, v{VLZ}, s[{S_FL}:{S_FL+3}], s25 offen sc1", "flag"); return 3
        if sig0: actions[sig0] = lambda: sigB(0)
    lastm = {}
    e.wait_lg(lambda t: t <= 3)
    B0, B1, HD = 136, 568, hd
    st8 = dict(dmaq=[], dma_st=None, stats=False, lastld=-100, qempty=None)
    godone = {}
    def moves(p):
        prev = None
        for i in range(16):
            prev = q.add(Op(f"v_accvgpr_write_b32 a{GO+16*p+i}, v{GT+i}", deps=[(prev, 0)] if prev else []))
            godone.setdefault(4*p + i//4, []).append(prev)
        return prev
    def dma_due(m, mr, left, dmaq):
        if m < B0 or dsp == 0: return mr % 2 == 1 or len(dmaq) >= left//2 + 1
        if len(dmaq) >= left: return True
        nd = sum(1 for _, isd in dmaq if isd)
        if not dmaq[0][1]:
            return nd == 0 or left <= (nd - 1)*dsp + dtail + 2
        return left <= (nd - 1)*dsp + dtail
    def gap(m, inbody, fillall=False):
        d = M[m]
        dmaq = st8["dmaq"]
        deps = []
        if d["xs"] is not None and m < B0:
            while not any(t == ("x", d["xs"]) for t in e.vm): emit_early()
            e.wait_vm(lambda t: t == ("x", d["xs"]))
        if d["ph"] == 2:
            kind, fi = d["gsrc"]
            if kind == "cv":
                for o in gdone[fi]:
                    if o.pos is None: q.drain_until(o)
                    deps.append((o, 2))
            elif kind == "gp":
                while not any(t == (kind, fi) for t in e.vm):
                    assert ldq, (m, kind, fi)
                    emit_list(ldq.pop(0))
                e.wait_vm(lambda t: t == (kind, fi))
        if d["dst"]:
            for o in oldbusy.get(d["dst"], []):
                if o.pos is None: q.drain_until(o)
            oldbusy[d["dst"]] = []
        fr = FR + 4*(m % 12)
        cs = "0" if d["first"] else rng(d["acc"])
        mo = e.op(Op(f"v_mfma_f32_32x32x16_bf16 {rng(d['dst'] or d['acc'])}, a[{fr}:{fr+3}], {d['b']}, {cs}", deps=deps))
        used = 0
        if timing and not fillall: tm.stamp(m) if fused else (tm.stamp(STAMPS.index(m)) if m in STAMPS else None)
        if d["last"]:
            if d["ph"] == 1:
                lastm[(d["unit"], d["mat"])] = mo
                if d["mat"] == 1:
                    a = int((d["dst"] or d["acc"])[1:])
                    pend_gelu.append((d["unit"], a - 16, a, lastm[(d["unit"], 0)], mo))
            else:
                add_out(d["tile"], d["acc"], mo)
        if not fillall:
            while pend_gelu: add_gelu(*pend_gelu.pop(0), inbody)
        mr = m + LA
        isbar = mr < NM and mr % 36 == 0
        if isbar:
            st = mr // 36
            assert not dmaq
            while st <= 3 and sum(1 for t in e.vm if t == ("dma", st)) < 9: emit_early()
            if e.wait_vm(lambda t: t == ("dma", st)): used += 1
            e("s_barrier"); used += 2
            if 4 <= st + 2 < NST:
                dmaq.extend(dma_instrs(st + 2, inbody)); st8["dma_st"] = st + 2
        if mr < NM:
            reads(mr); used += 2
        if not isbar and not fillall:
            early_dma = any(tag and tag[0] == "dma" for _, L in early for _, tag in L)
            left = 35 - mr % 36
            if m < B0 and dmaq and not early_dma and not dmaq[0][1]:
                while dmaq and not dmaq[0][1]:
                    e(dmaq.pop(0)[0]); used += 1
                if early and early[0][0] - lead <= m: used += emit_early()
            elif early and (early[0][0] - lead <= m or (early_dma and dmaq)) and not (dmaq and not early_dma and len(dmaq) >= left - 2):
                used += emit_early()
            elif dmaq and not early_dma and dma_due(m, mr, left, dmaq) and not (m in actions and len(dmaq) < left):
                t, isd = dmaq.pop(0)
                if isd: e.vmem(t, ("dma", st8["dma_st"])); used += vcost
                else: e(t); used += 1
            elif m in actions:
                pass
            elif wdpf and B0 <= m < B1 and m % 144 == 60:
                e.vmem(f"buffer_load_dword v1, v{VPF}, s[{S_WD}:{S_WD+3}], s{S_PF} offen", "pf")
                e(f"s_add_u32 s{S_PF}, s{S_PF}, {14*128}"); used += 1 + vcost
            elif mem_ready():
                used += pop_mem() + vcost - 1
            elif ldq and m - st8["lastld"] >= (ldpace if m < f2[3] else 2):
                used += emit_list(ldq.pop(0)) + vcost - 1; st8["lastld"] = m
        if m in actions and not fillall:
            used += actions[m]()
        if not st8["stats"] and sum(1 for t in e.vm if t == "st") == 6 and m >= 112:
            stats_ops(); st8["stats"] = True
        needwait = (m + 1) % 4 == 0 and m + 1 < NM
        bud = (bud2 if 576 <= m < f2[0] else budget) - used - (1 if needwait else 0)
        if B0 <= m < B1:
            rem = sum(o.cost for o in q.q); gl = 144 - (m - B0) % 144
            if rem > slack*gl: bud += 1
        if fillall: bud += 1
        if bud > 0: q.fill(bud)
        if m > 650 and not q.q and st8["qempty"] is None: st8["qempty"] = m
        if needwait: e.wait_lg(lambda t: t <= m + 4)
    pend_gelu = []
    def endpair():
        q.drain()
        while memq: pop_mem()
        assert not st8["dmaq"]
    def head(m0, p, extra=""):
        if p >= 0:
            chain(f"s_add_u32 s{S_GO}, s{S_GO}, 4096\n" + extra)
            moves(p)
        for m in range(m0, m0 + HD): gap(m, True, fillall=True)
        q.drain()
    for m in range(B0): gap(m, False)
    while early: emit_early()
    endpair()
    e.wait_vm(lambda t: t and t[0] == "x")
    mb = B1 - 144
    def seed():
        e.vm = [("dma", 12)]*9 + [("dma", 13)]*9; e.vm_done = 0
        e.lg = [mb + k//2 for k in range(16)]; e.lg_done = 8
        st8["dmaq"].clear(); pend_gelu.clear()
    main_lines = e.lines; e.lines = []
    for p, extra in ((0, ""), (1, f"s_mov_b32 s{S_B0}, s{S_CS}\ns_add_u32 s{S_B1}, s{S_CS}, {288*9216}\nv_mov_b32 v{VB}, v{V3}\n" +
                      "\n".join(f"v_add_u32 v{VB+i}, {16*i*9216 - (i%3)*1024}, v{V3}" for i in range(1, 9)))):
        e(f"K3_head{p}:")
        if fused: tm.stamp(-1-p)
        elif -1-p in STAMPS: tm.stamp(STAMPS.index(-1-p))
        seed(); head(mb, p, extra)
        e("s_branch K3_body")
    side_lines = e.lines; e.lines = main_lines
    seed(); head(mb, -1)
    e(".p2align 3\nK3_body:")
    tstate["last"] = [None, None]
    actions[mb + 40] = lambda: e(f"s_add_u32 s{S_CNT}, s{S_CNT}, 1") or 1
    for m in range(mb + HD, B1): gap(m, True)
    endpair()
    e(f"s_cmp_eq_u32 s{S_CNT}, 1\ns_cbranch_scc1 K3_head0\ns_cmp_eq_u32 s{S_CNT}, 2\ns_cbranch_scc1 K3_head1")
    chain(f"s_add_u32 s{S_GO}, s{S_GO}, 4096")
    lastmv = moves(2)
    tstate["last"] = [lastmv, lastmv]
    for m in range(B1, NM): gap(m, False)
    while q.q or memq:
        if mem_ready(): pop_mem()
        else: q.drain_until(q.q[0])
    if fused:
        tm.stamp(-12)
        srd(e, S_W, 26, ACT_BYTES)
        e(f"v_mov_b32 v14, 0x3f80\nv_mov_b32 v15, 0x3f800000")
        for j in range(NPART): e(f"s_add_u32 s{28+j if j < 7 else 36}, s48, {WS_PART + j*ACT_BYTES}")
        e(f"v_add_u32 v4, 6144, v{VRA}\nv_add_u32 v5, 12288, v{VRA}\ns_mov_b32 s54, 0xaaaaaaaa\ns_mov_b32 s55, 0xaaaaaaaa")
        sj = lambda j: 28 + j if j < 7 else 36
        PB = 208 - 96
        def loads(k, js=range(NPART)):
            for j in js:
                r = PB + 32*k + 4*j
                e.vmem(f"buffer_load_dwordx4 v[{r}:{r+3}], v{3+k}, s[{S_HC}:{S_HC+3}], s{sj(j)} offen sc0 sc1", (k, j))
        def red(k):
            H = HR + 4*k; O_ = 16 + 4*k
            for j in range(NPART):
                e.wait_vm(lambda t: t == (k, j))
                for d in range(4):
                    r = PB + 32*k + 4*j + d
                    if j == 0: e(f"v_lshlrev_b32 v{6+2*d}, 16, v{r}\nv_and_b32 v{7+2*d}, 0xffff0000, v{r}")
                    else: e(f"v_dot2c_f32_bf16 v{6+2*d}, v{r}, v14\nv_dot2c_f32_bf16 v{7+2*d}, v{r}, v15")
            e("s_nop 1")
            for d in range(4): e(f"v_cvt_pk_bf16_f32 v{O_+d}, v{6+2*d}, v{7+2*d}")
            for d in range(4): e(f"v_lshlrev_b32 v{6+2*d}, 16, v{H+d}\nv_and_b32 v{7+2*d}, 0xffff0000, v{H+d}")
            for d in range(4): e(f"v_dot2c_f32_bf16 v{6+2*d}, v{O_+d}, v14\nv_dot2c_f32_bf16 v{7+2*d}, v{O_+d}, v15")
            e("s_nop 1")
            for d in range(4): e(f"v_cvt_pk_bf16_f32 v{O_+d}, v{6+2*d}, v{7+2*d}")
            e("s_nop 0")
            for d in range(4): e(f"v_mov_b32_dpp v{6+d}, v{O_+d} quad_perm:[1,0,3,2] row_mask:0xf bank_mask:0xf")
            for d in range(2): e(f"v_cndmask_b32 v{O_+d}, v{O_+d}, v{8+d}, s[54:55]\nv_cndmask_b32 v{O_+2+d}, v{6+d}, v{O_+2+d}, s[54:55]")
            e.vmem(f"buffer_store_dwordx4 v[{O_}:{O_+3}], v{VRO+k}, s[{S_W}:{S_W+3}], s{S_XO} offen{of}", "o")
        def chk(g): return f"s_bfe_u32 s6, s5, {hex(8*g | 0x80000)}\ns_cmp_eq_u32 s6, 8"
        if not sig0: sigB(0)
        e(f"v_mov_b32 v{VF}, 0x100\nv_mov_b32 v1, 0x10000")
        e.wait_vm(lambda t: t == ("store", 1))
        e.vmem(f"buffer_atomic_add v{VF}, v{VLZ}, s[{S_FL}:{S_FL+3}], s25 offen sc0 sc1", "pl")
        e.wait_vm(lambda t: t == ("store", 2))
        e.vmem(f"buffer_atomic_add v1, v{VLZ}, s[{S_FL}:{S_FL+3}], s25 offen sc0 sc1", "pl2")
        tm.stamp("B0")
        e.wait_vm(lambda t: t == "pl")
        e(f"{rd}\ns_add_u32 s5, s5, 0x10100")
        for g in range(3):
            e(chk(g) + f"\ns_cbranch_scc1 K3_L{g}")
            e(f"s_waitcnt vmcnt({8*g})\nv_readfirstlane_b32 s7, v1\ns_nop 1\ns_add_u32 s7, s7, 0x10000\ns_max_u32 s5, s5, s7\n{chk(g)}\ns_cbranch_scc1 K3_L{g}")
            e(f"K3_P{g}:\n{apoll(25)}\ns_waitcnt vmcnt(0)\n{rd}\n{chk(g)}\ns_cbranch_scc0 K3_P{g}\nK3_L{g}:")
            tm.stamp(["B1", "B2", -13][g])
            loads(g)
        red(0); red(1); red(2)
    tm.end("K3_end")
    e("K3_end:\ns_endpgm")
    e.lines += side_lines
    for name, val in spins:
        e(f"""K3_spin{name}:
buffer_load_dword v{VF}, v{VZ}, s[{S_FL}:{S_FL+3}], s{S_FR} offen sc0 sc1
s_waitcnt vmcnt(0)
v_readfirstlane_b32 s{S_TMP}, v{VF}
s_nop 1
s_cmp_ge_u32 s{S_TMP}, {val}
s_cbranch_scc0 K3_spin{name}
s_branch K3_ret{name}""")
    if fused: e("KB_last:\ns_endpgm")
    e(f"; gelu queue empty at gap {st8['qempty']}")
    return e.text()
if __name__ == "__main__":
    t = gen_k3()
    print(t)
```

```python
from sched import *
from layout import *
from k3 import srd, f2u
from k1 import mask64, smask, ln_stats2, code_prefetch, slice_of_xcd, BIG, LBIG, L2E, LN2
SLOT = 36864
KVB = 110592
S_WS_ = 8; S_W = 12; S_WO = 16; S_X = 20; S_DBG = 24
S_I = 28; S_G = 29; S_KV = 30; S_XO = 31; S_RT = 32; S_CG = 33; S_WV = 34; S_WB = 35; S_WF = 36; S_WOO = 37; S_WL = 38; S_SIG = 39
VWO = 5
WSL = (1, 2, 0)

def gen_f1(e, tm, C=2, prefetch=True, cpf=True, gate_at=(6, 7), wp=30, pf1=(0, 5, 4, 1, 6), xt=5, dper=4, xpre=0, wsp=12, wlate=False, w7=3, w8=12, lper=4, nl=6):
    W = f"s[{S_WS_}:{S_WS_+3}]"
    AB = 12; T = 20; ONES = 24; PV = 24; CSV = 44; RSV = 80; PK = 54; ACC = 116; TT = 188
    VX = 204; VW = 208; WA = 216; GA = 230; ZB = 236
    XF = 0; WF = 16
    e("s_cmp_ge_u32 s2, 256\ns_cbranch_scc1 K3_end")
    e("s_load_dwordx4 s[40:43], s[0:1], 0\ns_load_dwordx4 s[44:47], s[0:1], 64\ns_load_dwordx2 s[48:49], s[0:1], 16")
    e(f"v_lshrrev_b32 v1, 6, v0\nv_and_b32 v2, 63, v0\ns_nop 0\nv_readfirstlane_b32 s{S_WV}, v1")
    if cpf:
        e(f"s_lshr_b32 s6, s2, 3\ns_lshl_b32 s6, s6, 10\nv_lshrrev_b32 v3, 5, v0")
        code_prefetch(e, "F_pc", "F_pc", "F_k2", 3, 252, 6)
    tm.start()
    e(f"""s_cmp_lt_u32 s2, 64
s_cbranch_scc1 F_spare
s_lshr_b32 s4, s2, 3
s_and_b32 s3, s2, 7
s_sub_u32 s4, s4, 8
s_lshr_b32 s5, s3, 1
s_lshl_b32 s5, s5, 2
s_and_b32 s6, s4, 3
s_add_u32 s{S_I}, s5, s6
s_lshr_b32 s4, s4, 2
s_and_b32 s3, s3, 1
s_lshl_b32 s5, s3, 2
s_add_u32 s5, s5, s4
s_lshl_b32 s6, s3, 1
s_add_u32 s6, s6, s4
s_sub_u32 s6, s6, 4
s_cmp_lt_u32 s4, 4
s_cselect_b32 s{S_G}, s5, s6
s_cselect_b32 s{S_KV}, 1, 0""")
    e(f"v_lshrrev_b32 v3, 3, v2\nv_and_b32 v{T}, 7, v2\nv_lshrrev_b32 v{T+1}, 1, v3\nv_xor_b32 v{T}, v{T}, v{T+1}")
    e(f"v_mul_u32_u24 v3, 1152, v3\nv_lshl_add_u32 v{VX}, v{T}, 4, v3\nv_xor_b32 v{T}, 4, v{T}\nv_lshl_add_u32 v{VX+1}, v{T}, 4, v3")
    e(f"v_add_u32 v{VX+1}, {8*1152-1024}, v{VX+1}\nv_add_u32 v{VX+2}, {16*1152-2048}, v{VX}\nv_add_u32 v{VX+3}, {16*1152-2048}, v{VX+1}")
    e(f"""s_lshl_b32 s5, s{S_I}, 2
s_add_u32 s52, s5, s{S_WV}
s_mul_i32 s{S_XO}, s52, {32*1152}
s_mul_i32 s{S_WB}, s{S_WV}, 9216
s_mul_i32 s5, s{S_G}, 144
s_add_u32 s6, s5, 1152
s_lshl_b32 s5, s5, 1
s_cmp_eq_u32 s{S_KV}, 1
s_cselect_b32 s53, s6, s5
s_movk_i32 s7, 144
s_cselect_b32 s7, 1152, s7
s_mul_i32 s{S_WF}, s{S_WV}, {16*3456}
s_add_u32 s{S_WF}, s{S_WF}, s53
s_movk_i32 s50, 3456""")
    for i in range(5):
        r = VW + i
        e(f"v_add_u32 v3, {64*i}, v2\nv_mul_u32_u24 v{T}, 7282, v3\nv_lshrrev_b32 v{T}, 16, v{T}\nv_mul_u32_u24 v{T+1}, 9, v{T}\nv_sub_u32 v3, v3, v{T+1}")
        e(f"v_and_b32 v{T+1}, 1, v{T}\nv_mul_u32_u24 v{T+1}, s7, v{T+1}\nv_lshl_add_u32 v3, v3, 4, v{T+1}\nv_lshrrev_b32 v{T}, 1, v{T}")
        if i >= 2: e(f"v_lshrrev_b32 v{T+1}, 1, v{T}\nv_and_b32 v{T+1}, 4, v{T+1}\nv_xor_b32 v{T}, v{T}, v{T+1}")
        e(f"v_mad_u32_u24 v{r}, v{T}, s50, v3")
        if i % 4: e(f"v_subrev_u32 v{r}, {(i%4)*1024}, v{r}")
    e(f"v_cmp_gt_u32 s[50:51], 32, v2\nv_mov_b32 v3, {BIG}\ns_waitcnt lgkmcnt(0)\nv_cndmask_b32 v{VW+4}, v3, v{VW+4}, s[50:51]")
    srd(e, S_X, 40, ACT_BYTES)
    srd(e, S_W, 42, 576*1728*2)
    def dma(st):
        b = (st % 4)*SLOT
        L = [([f"s_add_u32 m0, s{S_WB}, {b}", f"s_add_u32 s54, s{S_XO}, {128*st}"] if k == 0 else [],
              f"buffer_load_dwordx4 v{VX+k}, s[{S_X}:{S_X+3}], s54 offen" + (f" offset:{k*1024}" if k else "") + " lds") for k in range(4)]
        L += [([f"s_add_u32 m0, s{S_WB}, {b+4096}", f"s_add_u32 s55, s{S_WF}, {64*3456*st}"] if k == 0 else [],
               f"buffer_load_dwordx4 v{VW+k}, s[{S_W}:{S_W+3}], s55 offen" + (f" offset:{k*1024}" if k else "") + " lds") for k in range(4)]
        L += [([f"s_add_u32 m0, s{S_WB}, {b+8192}", "s_nop 0"], f"buffer_load_dwordx4 v{VW+4}, s[{S_W}:{S_W+3}], s55 offen lds")]
        return [(pre, t, ("dma", st)) for pre, t in L]
    def issue(x):
        for p in x[0]: e(p)
        e.vmem(x[1], x[2])
    e.vm = []; e.vm_done = 0
    for x in dma(0): issue(x)
    tm.stamp(0)
    srd(e, S_WS_, 46, WS_BYTES)
    srd(e, S_DBG, 44, 256)
    d1 = dma(1)
    e(f"v_and_b32 v{T}, 15, v2\nv_lshrrev_b32 v{T+1}, 4, v2")
    e(f"v_lshrrev_b32 v3, 1, v{T}\nv_xor_b32 v3, v3, v{T+1}\nv_lshlrev_b32 v3, 4, v3\nv_lshl_add_u32 v3, v{T}, 7, v3\nv_add_u32 v{AB}, s{S_WB}, v3\nv_xor_b32 v3, 64, v3\nv_add_u32 v{AB+1}, s{S_WB}, v3")
    e(f"v_and_b32 v3, 1, v{T+1}\nv_mul_u32_u24 v3, 12, v3\nv_bfe_u32 v{T+2}, v2, 2, 2\nv_add_u32 v3, v3, v{T+2}")
    e(f"v_xor_b32 v{T+2}, 4, v3\nv_mul_u32_u24 v3, 288, v3\nv_mul_u32_u24 v{T+2}, 288, v{T+2}")
    e(f"v_lshrrev_b32 v1, 5, v2\nv_mul_u32_u24 v1, 9216, v1\nv_and_b32 v{T+3}, 3, v2\nv_lshl_add_u32 v1, v{T+3}, 3, v1\nv_add_u32 v1, 4096, v1")
    e(f"v_add_u32 v{AB+2}, v1, v3\nv_add_u32 v{AB+3}, v1, v{T+2}")
    for i in range(4): e(f"v_add_u32 v{AB+4+i}, {2*SLOT}, v{AB+i}")
    c0 = hex(f2u(1e-6 * L2E))
    e(f"s_mov_b32 s56, {hex(f2u(LN2))}\ns_mov_b32 s57, {hex(f2u(LN2))}\ns_mov_b32 s58, {c0}\ns_mov_b32 s59, {c0}")
    def wo_setup():
        L = [f"s_lshr_b32 s4, s2, 3\ns_sub_u32 s5, s4, 8\ns_cmp_lt_u32 s4, 8\ns_cselect_b32 s5, s4, s5\ns_lshr_b32 s{S_CG}, s5, 2\ns_and_b32 s5, s5, 3\ns_and_b32 s4, s2, 7\ns_lshl_b32 s4, s4, 2\ns_add_u32 s{S_RT}, s4, s5"]
        for i in range(3):
            L += f"v_add_u32 v3, {64*i}, v2\nv_mul_u32_u24 v1, 5462, v3\nv_lshrrev_b32 v1, 16, v1\nv_mul_u32_u24 v{VWO+i}, 12, v1\nv_sub_u32 v3, v3, v{VWO+i}\nv_mul_u32_u24 v1, 1152, v1\nv_lshl_add_u32 v{VWO+i}, v3, 4, v1".split("\n")
            if i: L.append(f"v_subrev_u32 v{VWO+i}, {i*1024}, v{VWO+i}")
        L += f"""s_mul_i32 s{S_WOO}, s{S_WV}, {144*1152}
s_mul_i32 s5, s{S_CG}, 192
s_add_u32 s{S_WOO}, s{S_WOO}, s5
s_mul_i32 s{S_WL}, s{S_WV}, 9216
s_mov_b32 s{S_WO}, s48
s_and_b32 s{S_WO+1}, s49, 0xffff
s_mov_b32 s{S_WO+3}, 0x20000
s_lshr_b32 s5, s2, 6""".split("\n")
        L.append(f"s_cmp_eq_u32 s5, 1\ns_cselect_b32 s{S_WO+2}, 0, {576*576*2}")
        return L
    def wo_dma():
        return [([f"s_add_u32 m0, s{S_WL}, {WSL[i//9]*SLOT + (i%9)*1024}", f"s_add_u32 s54, s{S_WOO}, {(i//3)*16*1152}"] if i % 3 == 0 else [],
                 f"buffer_load_dwordx4 v{VWO+i%3}, s[{S_WO}:{S_WO+3}], s54 offen" + (f" offset:{(i%3)*1024}" if i % 3 else "") + " lds", "wo") for i in range(27)]
    for l in wo_setup(): e(l)
    for x in d1: issue(x)
    e(f"s_cmp_eq_u32 s{S_KV}, 0\ns_cbranch_scc1 F_q")
    vm0 = (list(e.vm), e.vm_done)

    q = Queue(e, window=1)
    def emit_op(o, _orig=e.op):
        if callable(o.text):
            o.text(); o.pos = e.n - 1; return o
        return _orig(o)
    e.op = emit_op
    def fill_lines(text):
        for l in (text.split("\n") if isinstance(text, str) else text):
            n = l.count("\n") + 1
            q.add(Op(l, cost=n))
    def rdlist(st, kk):
        b = AB + 4*((st % 4) >> 1); o = (st & 1)*SLOT
        rd = [f"ds_read_b128 a[{XF+8*kk+4*tt}:{XF+8*kk+4*tt+3}], v{b+kk} offset:{o + 2048*tt}" for tt in range(2)]
        for ct in range(9):
            r = WF + 36*kk + 4*ct
            rd.append(f"ds_read_b64_tr_b16 a[{r}:{r+1}], v{b+2} offset:{o + kk*18432 + ct*32}")
            rd.append(f"ds_read_b64_tr_b16 a[{r+2}:{r+3}], v{b+3} offset:{o + kk*18432 + ct*32}")
        return rd
    wq = []
    st_ = {"last": 0}
    def wpace(force=False):
        if wq and (force or e.n - st_["last"] >= wp):
            issue(wq.pop(0)); st_["last"] = e.n
    def mainloop(kind, side):
        e.vm, e.vm_done = list(vm0[0]), vm0[1]; e.lg = []; e.lg_done = 0
        e.wait_vm(lambda t: t == ("dma", 0))
        e("s_barrier")
        tm.stamp(1)
        for i, t in enumerate(rdlist(0, 0)): e.ds(t, (0, 0, i))
        dq = dma(2)
        for _ in range(4): issue(dq.pop(0))
        for st in range(9):
            for kk in range(2):
                nst = st if kk == 0 else st + 1
                rd = rdlist(nst, 1 - kk) if nst < 9 else []
                ri = 0; cnt = 0
                for ct in range(9):
                    for tt in range(2):
                        if cnt == 0: e.wait_lg(lambda t: t == (st, kk, 13 if kk == 0 else 19))
                        if cnt == 8: e.wait_lg(lambda t: t == (st, kk, 19))
                        d = ACC + 36*tt + 4*ct; x = f"a[{XF+8*kk+4*tt}:{XF+8*kk+4*tt+3}]"; wf = f"a[{WF+36*kk+4*ct}:{WF+36*kk+4*ct+3}]"
                        a, b = (wf, x) if kind == "q" else (x, wf)
                        e(f"v_mfma_f32_16x16x32_bf16 v[{d}:{d+3}], {a}, {b}, " + ("0" if st == 0 and kk == 0 else f"v[{d}:{d+3}]"))
                        cnt += 1
                        if kk == 1 and cnt == 1:
                            while dq: issue(dq.pop(0))
                            if nst < 9: e.wait_vm(lambda t: t == ("dma", nst))
                            e("s_barrier")
                            if nst == gate_at[0]:
                                e.vmem(f"buffer_load_dword v10, v11, s[{S_DBG}:{S_DBG+3}], 0 offen sc0 sc1", "gate")
                            if nst == gate_at[1]:
                                e.wait_vm(lambda t: t == "gate")
                                e(f"v_readfirstlane_b32 s5, v10\ns_nop 1\ns_cmp_eq_u32 s5, 64\ns_cbranch_scc0 F_sp{kind}\nF_rt{kind}:")
                            if nst + 2 < 9: dq = dma(nst + 2)
                            if nst == 7: dq = dq + side + wo_dma()[:w7]
                            if nst == 8: dq = dq + wo_dma()[w7:w8]
                            if nst == 9: wq.extend(wo_dma()[w8:27-nl])
                        for _ in range(2 if cnt % 2 == 1 else 1):
                            if rd: e.ds(rd.pop(0), (nst, 1 - kk, ri)); ri += 1
                        per = dper if nst < 7 else (1 if dq and dq[0][2] == 'sd' else lper)
                        if dq and cnt % per == 0: issue(dq.pop(0))
                        elif nst == 9 and cnt % 6 == 0: wpace(True)
                        else: q.fill(2 if not rd else 1)
        assert not dq
        q.drain()
        tm.stamp(2)
    def pr(r): return f"v[{r}:{r+1}]"
    def bc(r, pos, n=3):
        base = r & ~1; hi = r & 1
        sel = [0]*n; selh = [1]*n
        sel[pos] = hi; selh[pos] = hi
        return pr(base), f" op_sel:{sel} op_sel_hi:{selh}".replace(", ", ",")
    def zipemit(*seqs):
        for k in range(max(map(len, seqs))):
            for s_ in seqs:
                if k < len(s_): e(s_[k])
            wpace()
    def phi4(a, t):
        return [f"v_exp_f32_e64 v{t+r}, v{a+r} clamp" for r in range(4)] + [f"v_max_f32 v{a+r}, s58, v{a+r}" for r in range(4)] + \
               [f"v_pk_fma_f32 {pr(a+r)}, {pr(a+r)}, s[56:57], {pr(t+r)}" for r in (0, 2)]
    pairs = []
    for hl in range(4):
        for a in (hl, hl + 1):
            for b in (hl + 4, hl + 5):
                if (a, b) not in pairs: pairs.append((a, b))
    def sm(m): return f"s_mov_b32 s50, {hex(m & 0xffffffff)}\ns_mov_b32 s51, {hex(m >> 32)}".split("\n")
    L = f"v_mov_b32 v11, 0\nv_mov_b32 v{ONES}, 0x3f803f80\ns_mul_i32 s6, s{S_WV}, 12288\ns_add_u32 s6, s6, {KVB}\nv_mul_u32_u24 v3, 80, v{T}\nv_lshl_add_u32 v3, v{T+1}, 4, v3\nv_add_u32 v3, s6, v3\nv_mov_b32 v{T+3}, {LBIG}".split("\n")
    L += f"v_lshlrev_b32 v8, 4, v{T+1}\nv_lshlrev_b32 v9, 2, v{T}\nv_lshrrev_b32 v4, 3, v{T}\nv_mul_u32_u24 v4, 2016, v4\nv_add_u32 v4, v4, v9".split("\n")
    for k, (a, b) in enumerate(pairs):
        first = True
        for hl in range(4):
            def valid(l):
                n, g = l & 15, l >> 4
                ec = 16*(b-4) - 8 + n
                if ec < 0 or ec // 18 != hl: return False
                return 0 <= 4*a + g - (9*hl)//2 < 5
            m = mask64(valid)
            if not m: continue
            const = hl*1520 + (16*(b-4) - 8 - 18*hl)*80 + (4*a - (9*hl)//2)*16
            L += sm(m) + [f"v_add_u32 v{T+2}, {const & 0xffffffff}, v3", f"v_cndmask_b32 v{WA+k}, v{T+3 if first else WA+k}, v{T+2}, s[50:51]"]
            first = False
    L += f"v_add_u32 v3, 1, v{T}\nv_lshrrev_b32 v3, 1, v3\nv_lshrrev_b32 v{T+2}, 1, v{T}\nv_lshl_add_u32 v3, v3, 2, v{T+1}\nv_mul_u32_u24 v1, 9, v{T+2}\nv_lshrrev_b32 v1, 1, v1\nv_sub_u32 v3, v3, v1".split("\n")
    L += sm(mask64(lambda l: (l & 15) < 8 and 0 <= 4*(((l & 15) + 1) >> 1) + (l >> 4) - (9*((l & 15) >> 1))//2 < 5))
    L += f"v_mul_u32_u24 v{T+2}, 1520, v{T+2}\nv_lshl_add_u32 v3, v3, 4, v{T+2}\ns_add_u32 s6, s6, {18*80}\nv_add_u32 v3, s6, v3\nv_cndmask_b32 v{WA+13}, v{T+3}, v3, s[50:51]".split("\n")
    for a in range(5):
        L += sm(mask64(lambda l: (l & 15) < 8 and ((l & 15) + 1) >> 1 == a))
        L += [f"v_cndmask_b32 v{ZB+4*a+i}, 0, v{ONES}, s[50:51]" for i in range(4)]
    L += f"s_mul_i32 s6, s{S_G}, 6080\nv_mov_b32 v{T+3}, {BIG}".split("\n")
    for i in range(6):
        L += f"""v_add_u32 v3, {256*i}, v0
v_mul_u32_u24 v{T+2}, 3277, v3
v_lshrrev_b32 v{T+2}, 16, v{T+2}
v_mul_u32_u24 v1, 20, v{T+2}
v_sub_u32 v1, v3, v1
v_mul_u32_u24 v{T+2}, 27, v{T+2}
v_lshrrev_b32 v{T+2}, 8, v{T+2}
v_and_b32 v{T+2}, 2, v{T+2}
v_sub_u32 v1, v1, v{T+2}
v_cmp_gt_u32 s[50:51], 18, v1
v_lshlrev_b32 v3, 2, v3
v_add_u32 v3, s6, v3
v_cndmask_b32 v{GA+i}, v{T+3}, v3, s[50:51]""".split("\n")
    L += f"v_cmp_gt_u32 vcc, 240, v0\ns_lshr_b32 s{S_SIG}, s{S_G}, 1\ns_lshl_b32 s{S_SIG}, s{S_SIG}, 12\nv_cndmask_b32 v{GA+5}, v{T+3}, v{GA+5}, vcc\ns_add_u32 s{S_SIG}, s{S_SIG}, {WS_FK}".split("\n")
    for l in L[:60]: e(l)
    fill_lines(L[60:])
    side = []
    pre = [f"s_lshl_b32 s52, s52, 7", f"s_lshl_b32 s53, s53, 1", f"s_add_u32 s53, s53, {WS_CS}"]
    for ct in (4, 5, 6, 7, 8, 0, 1, 2, 3):
        off = 64*ct + (2016 if ct > 4 else 0)
        side.append((pre, f"buffer_load_dword v{CSV+ct}, v{4 if ct == 4 else 9}, {W}, s53 offen offset:{off} sc0 sc1", "sd")); pre = []
    for k in range(4):
        for tt in range(2):
            r = RSV + 16*tt + 4*k
            side.append(([f"s_add_u32 s7, s52, {WS_S4 + 8192*k}"] if tt == 0 else [], f"buffer_load_dwordx4 v[{r}:{r+3}], v8, {W}, s7 offen" + (" offset:64" if tt else "") + " sc0 sc1", "sd"))
    mainloop("kv", side)
    e.wait_vm(lambda t: t == "sd")
    def kseq(ct, tt):
        a = ACC + 36*tt + 4*ct; R = RSV + 16*tt; t = TT + 4*tt
        o, sel = bc(CSV + ct, 1); d = PK + 4*ct + 2*tt
        return [f"v_pk_fma_f32 {pr(t+r)}, {pr(R+12+r)}, {o}, s[58:59]{sel}" for r in (0, 2)] + \
               [f"v_pk_fma_f32 {pr(a+r)}, {pr(a+r)}, {pr(R+8+r)}, {pr(t+r)}" for r in (0, 2)] + phi4(a, t) + \
               [f"v_cvt_pk_bf16_f32 v{d}, v{a}, v{a+1}", f"v_cvt_pk_bf16_f32 v{d+1}, v{a+2}, v{a+3}"]
    def vseq(ct, tt):
        a = ACC + 36*tt + 4*ct; R = RSV + 16*tt; t = TT + 8 + 4*tt
        o, sel = bc(CSV + ct, 1, 2); d = PV + 4*(ct-4) + 2*tt
        return [f"v_pk_mul_f32 {pr(t+r)}, {pr(R+4+r)}, {o}{sel}" for r in (0, 2)] + \
               [f"v_pk_fma_f32 {pr(t+r)}, {pr(a+r)}, {pr(R+r)}, {pr(t+r)}" for r in (0, 2)] + \
               [f"v_cvt_pk_bf16_f32 v{d}, v{t}, v{t+1}", f"v_cvt_pk_bf16_f32 v{d+1}, v{t+2}, v{t+3}"]
    e("s_nop 1")
    def zp(a, b): return [x for p in zip(a, b) for x in p]
    free = []; zreg = 112
    kvreg = {13: zreg}; wrq = []; lastw = [-100]
    def mf(a):
        for k, (pa, pb) in enumerate(pairs):
            if pa == a:
                d = free.pop(0); kvreg[k] = d
                e(f"v_mfma_f32_16x16x32_bf16 v[{d}:{d+3}], v[{PK+4*a}:{PK+4*a+3}], v[{PV+4*(pb-4)}:{PV+4*(pb-4)+3}], 0"); wrq.append((k, e.n))
        e(f"v_mfma_f32_16x16x32_bf16 v[{zreg}:{zreg+3}], v[{PK+4*a}:{PK+4*a+3}], v[{ZB+4*a}:{ZB+4*a+3}], " + ("0" if a == 0 else f"v[{zreg}:{zreg+3}]"))
        if a == 4: wrq.append((13, e.n))
    def em(l):
        e(l)
        if wrq and e.n - wrq[0][1] >= 9 and e.n - lastw[0] >= wsp:
            k = wrq.pop(0)[0]; e(f"ds_write_b128 v{WA+k}, v[{kvreg[k]}:{kvreg[k]+3}]"); lastw[0] = e.n
        else: wpace()
    for a in range(5):
        for ct in ((4, 5) if a == 0 else ((5 + a,) if a < 4 else ())):
            for l in zp(vseq(ct, 0), vseq(ct, 1)): em(l)
            if ct > 4: free += [ACC + 4*ct, ACC + 36 + 4*ct]
        ks = zp(kseq(a, 0), kseq(a, 1))
        for l in ks[:8]: em(l)
        if a > 0: mf(a - 1)
        for l in ks[8:]: em(l)
        free += [ACC + 4*a, ACC + 36 + 4*a]
        if a == 0: tm.stamp(3)
    e(f"v_lshlrev_b32 v3, 2, v0\nv_add_u32 v3, {KVB}, v3")
    mf(4)
    while wrq:
        k, pos = wrq.pop(0)
        while e.n - pos < 9:
            if wq: wpace(True)
            else: e("s_nop 0")
        e(f"ds_write_b128 v{WA+k}, v[{kvreg[k]}:{kvreg[k]+3}]")
    while wq and not wlate: wpace(True)
    tm.stamp(4)
    e(f"s_waitcnt lgkmcnt(0)\ns_barrier")
    RB = RSV
    e.lg = []; e.lg_done = 0
    for i in range(6):
        for w in range(0, 4, 2):
            e.ds(f"ds_read2st64_b32 v[{RB+4*i+w}:{RB+4*i+w+1}], v3 offset0:{(w*12288 + i*1024)//256} offset1:{((w+1)*12288 + i*1024)//256}", i)
    for i in range(6):
        e.wait_lg(lambda t: t == i)
        r = RB + 4*i
        e(f"v_pk_add_f32 {pr(r)}, {pr(r)}, {pr(r+2)}\nv_add_f32 v{r}, v{r}, v{r+1}")
        e(f"buffer_atomic_add_f32 v{r}, v{GA+i}, {W}, 0 offen sc1")
    while wq: wpace(True)
    e(f"v_cmp_gt_u32 vcc, 32, v0\nv_lshlrev_b32 v23, 7, v0\nv_mov_b32 v22, {BIG}\nv_cndmask_b32 v23, v22, v23, vcc")
    tm.stamp(5)
    e("s_branch F_k2")
    e("F_q:")
    P = WA; CSQ = CSV; RSQ = RSV
    e(f"v_mov_b32 v11, 0\nv_lshlrev_b32 v8, 2, v{T}\nv_lshlrev_b32 v9, 4, v{T+1}\nv_lshlrev_b32 v4, 4, v2")
    e(f"s_lshl_b32 s5, s52, 2\ns_add_u32 s5, s5, s{S_G}\ns_mul_i32 s5, s5, 9216\ns_add_u32 s40, s5, {WS_PQ}\ns_add_u32 s41, s40, 4096\ns_add_u32 s42, s40, 8192")
    e(f"s_lshl_b32 s{S_SIG}, s{S_G}, 5\ns_lshr_b32 s5, s52, 1\ns_add_u32 s{S_SIG}, s{S_SIG}, s5\ns_lshl_b32 s{S_SIG}, s{S_SIG}, 7\ns_add_u32 s{S_SIG}, s{S_SIG}, {WS_FK}")
    side = []
    pre = [f"s_lshl_b32 s52, s52, 7", f"s_lshl_b32 s53, s53, 1", f"s_add_u32 s53, s53, {WS_CS}"]
    for ct in range(9):
        side.append((pre, f"buffer_load_dwordx4 v[{CSQ+4*ct}:{CSQ+4*ct+3}], v9, {W}, s53 offen" + (f" offset:{64*ct}" if ct else "") + " sc0 sc1", "sd")); pre = []
    for k in range(2):
        for tt in range(2):
            side.append(([f"s_add_u32 s7, s52, {WS_S4 + 8192*(2+k)}"] if tt == 0 else [], f"buffer_load_dword v{RSQ+2*tt+k}, v8, {W}, s7 offen" + (" offset:64" if tt else "") + " sc0 sc1", "sd"))
    mainloop("q", side)
    e.wait_vm(lambda t: t == "sd")
    def qseq(n):
        tt, ct = n // 9, n % 9
        a = ACC + 36*tt + 4*ct; t = TT + 4*(n % 2); d = P + 2*n
        o1, s1 = bc(RSQ + 2*tt + 1, 0); o2, s2 = bc(RSQ + 2*tt, 1)
        return [f"v_pk_fma_f32 {pr(t+r)}, {o1}, {pr(CSQ+4*ct+r)}, s[58:59]{s1}" for r in (0, 2)] + \
               [f"v_pk_fma_f32 {pr(a+r)}, {pr(a+r)}, {o2}, {pr(t+r)}{s2}" for r in (0, 2)] + phi4(a, t) + \
               [f"v_cvt_pk_bf16_f32 v{d}, v{a}, v{a+1}", f"v_cvt_pk_bf16_f32 v{d+1}, v{a+2}, v{a+3}"]
    for k in range(9):
        zipemit(qseq(2*k), qseq(2*k + 1))
        e(f"buffer_store_dwordx4 v[{P+4*k}:{P+4*k+3}], v4, {W}, s{40+k//4} offen" + (f" offset:{(k%4)*1024}" if k % 4 else "") + " sc0 sc1")
    while wq: wpace(True)
    e(f"v_cmp_eq_u32 vcc, 0, v2\nv_mov_b32 v22, {BIG}\ns_nop 0\nv_cndmask_b32_e64 v23, v22, 0, vcc")
    tm.stamp(5)
    e("s_branch F_k2")
    for kind in ("kv", "q"):
        e(f"F_sp{kind}:\nbuffer_load_dword v10, v11, s[{S_DBG}:{S_DBG+3}], 0 offen offset:128 sc0 sc1\ns_waitcnt vmcnt(0)\nv_readfirstlane_b32 s5, v10\ns_nop 1\ns_cmp_eq_u32 s5, 63\ns_cbranch_scc0 F_sp{kind}\ns_branch F_rt{kind}")
    e("F_spare:")
    e(f"v_lshrrev_b32 v3, 3, v2\nv_and_b32 v{T}, 7, v2\nv_lshlrev_b32 v{T}, 4, v{T}\nv_mov_b32 v8, {BIG}\nv_mov_b32 v10, 0x3f803f80\nv_cmp_eq_u32 s[52:53], 0, v{T}")
    e(f"s_waitcnt lgkmcnt(0)")
    srd(e, S_X, 40, ACT_BYTES)
    srd(e, S_W, 42, 576*1728*2)
    srd(e, S_WS_, 46, WS_BYTES)
    e(f"s_cmp_ge_u32 s2, 37\ns_cbranch_scc1 F_cs")
    e(f"v_mul_u32_u24 v9, 1152, v3\nv_add_u32 v9, v9, v{T}")
    def touch():
        if not xt: return []
        t0 = xt
        e(f"s_and_b32 s3, s2, 7\ns_lshr_b32 s4, s2, 3\ns_and_b32 s5, s3, 1\ns_lshl_b32 s50, s5, 9\ns_mul_i32 s5, s4, {8*3456}\ns_add_u32 s50, s50, s5")
        e(f"s_xor_b32 s3, s3, 1\ns_lshl_b32 s3, s3, 3\ns_add_u32 s3, s3, s4\ns_mul_i32 s51, s3, {32*1152}")
        e(f"v_and_b32 v21, 15, v0\nv_mul_u32_u24 v22, 52, v21\nv_lshrrev_b32 v22, 8, v22\nv_lshl_add_u32 v22, v22, 2, v21\nv_lshlrev_b32 v22, 7, v22")
        e(f"v_bfe_u32 v23, v0, 4, 3\nv_lshrrev_b32 v1, 7, v0\nv_lshl_add_u32 v23, v1, 6, v23\nv_mul_u32_u24 v23, 3456, v23\nv_cmp_gt_u32 vcc, 15, v21\nv_add_u32 v22, v22, v23\nv_and_b32 v21, 31, v0\nv_cndmask_b32 v22, v8, v22, vcc")
        e(f"v_mul_u32_u24 v21, 1152, v21\nv_lshrrev_b32 v23, 5, v0\nv_cmp_gt_u32 vcc, {9-t0}, v23\nv_lshl_add_u32 v21, v23, 7, v21\ns_add_u32 s51, s51, {128*t0}\nv_cndmask_b32 v21, v8, v21, vcc")
        L = []
        for k, st in enumerate(range(t0, 9, 2)):
            L.append(f"s_add_u32 s5, s50, {64*3456*st}\nbuffer_load_dword v246, v22, s[{S_W}:{S_W+3}], s5 offen")
            if k == 0: L.append(f"buffer_load_dword v247, v21, s[{S_X}:{S_X+3}], s51 offen")
        return L
    def zero():
        e(f"v_cmp_gt_u32 vcc, 95, v0\nv_lshlrev_b32 v28, 3, v0\nv_mov_b32 v30, 0\nv_mov_b32 v31, 0\nv_cndmask_b32 v29, v8, v28, vcc\ns_mul_i32 s5, s2, 760\ns_lshl_b32 s4, s2, 11\ns_add_u32 s4, s4, {WS_FL}")
        e.vmem(f"buffer_store_dwordx2 v[30:31], v29, {W}, s5 offen sc0 sc1", "z"); e.vmem(f"buffer_store_dwordx2 v[30:31], v28, {W}, s4 offen sc0 sc1", "z")
    def rowloads(base, sr, so):
        for i in range(9):
            e.vmem(f"buffer_load_dwordx4 v[{base+4*i}:{base+4*i+3}], v9, s[{sr}:{sr+3}], s{so} offen" + (f" offset:{128*i}" if i else ""), (base, i))
    def rowsums(base, sq):
        e("v_mov_b32 v12, 0\nv_mov_b32 v13, 0")
        for i in range(9):
            e.wait_vm(lambda t: t == (base, i))
            for k in range(4):
                e(f"v_dot2c_f32_bf16 v12, v{base+4*i+k}, v10")
                if sq: e(f"v_dot2c_f32_bf16 v13, v{base+4*i+k}, v{base+4*i+k}")
        e("s_nop 2")
        for dpp in ("quad_perm:[1,0,3,2]", "quad_perm:[2,3,0,1]", "row_half_mirror"):
            e(f"v_add_f32_dpp v12, v12, v12 {dpp} row_mask:0xf bank_mask:0xf\nv_add_f32_dpp v13, v13, v13 {dpp} row_mask:0xf bank_mask:0xf\ns_nop 0")
    def wbar(base, su):
        e(f"s_mul_i32 s7, s{su}, 57\ns_lshr_b32 s7, s7, 10\ns_mul_i32 s5, s7, 18\ns_sub_u32 s4, s{su}, s5\ns_mul_i32 s7, s7, 320")
        e(f"s_lshr_b32 s5, s4, 1\ns_lshl_b32 s5, s5, 3\ns_add_u32 s7, s7, s5\ns_and_b32 s5, s4, 1\ns_mul_i32 s5, s5, 160\ns_add_u32 s7, s7, s5\ns_add_u32 s7, s7, {WS_WB}")
        e(f"v_lshrrev_b32 v14, 5, v2\nv_mul_u32_u24 v14, 80, v14\nv_bfe_u32 v15, v2, 3, 2\nv_lshl_add_u32 v14, v15, 1, v14\nv_cndmask_b32 v14, v8, v14, s[52:53]")
        rowsums(base, False)
        e(f"v_mul_f32 v12, {hex(f2u(1.0/576))}, v12\nv_cvt_pk_bf16_f32 v12, v12, v12")
        e.vmem(f"buffer_store_short v12, v14, {W}, s7 offen sc0 sc1", "st")
    e(f"s_cmp_ge_u32 s2, 32\ns_cbranch_scc1 F_wb2")
    e.vm = []; e.vm_done = 0
    e(f"s_and_b32 s6, s2, 7\ns_lshl_b32 s6, s6, 5\ns_and_b32 s5, s2, 24\ns_add_u32 s6, s6, s5\ns_lshl_b32 s5, s{S_WV}, 1\ns_add_u32 s6, s6, s5")
    e(f"s_mul_i32 s54, s6, {8*1152}\ns_add_u32 s55, s54, {8*1152}")
    rowloads(32, S_X, 54); rowloads(68, S_X, 55)
    for l in wo_setup(): e(l)
    e(f"s_add_u32 s3, s2, 40\ns_mul_i32 s54, s3, {8*1152}\ns_cmp_lg_u32 s{S_WV}, 0\ns_cselect_b32 s54, {BIG}, s54")
    rowloads(104, S_WO, 54)
    zero()
    e(f"v_lshrrev_b32 v3, 3, v2\nv_lshlrev_b32 v3, 2, v3\nv_cndmask_b32 v3, v8, v3, s[52:53]\ns_lshl_b32 s6, s6, 5")
    for u, base in enumerate((32, 68)):
        rowsums(base, True)
        e(f"v_mul_f32 v15, {hex(f2u(1.0/576))}, v12")
        ln_stats2(e, [(12, 13, 14, 16, 17)])
        e(f"v_mul_f32 v18, {hex(f2u(L2E))}, v16\nv_mul_f32 v19, {hex(f2u(L2E))}, v17")
        for k in range(4):
            e(f"s_add_u32 s5, s6, {WS_S4 + 8192*k + 32*u}")
            e.vmem(f"buffer_store_dword v{16+k}, v3, {W}, s5 offen sc0 sc1", "st")
        e(f"s_add_u32 s5, s6, {WS_MX + 32*u}")
        e.vmem(f"buffer_store_dword v15, v3, {W}, s5 offen sc0 sc1", "st")
    e(f"s_cmp_lg_u32 s{S_WV}, 0\ns_cbranch_scc1 F_sj")
    wbar(104, 3)
    e("s_branch F_sj\nF_wb2:")
    e.vm = []; e.vm_done = 0
    for l in wo_setup(): e(l)
    e(f"s_sub_u32 s6, s2, 32\ns_lshl_b32 s6, s6, 2\ns_add_u32 s6, s6, s{S_WV}\ns_lshl_b32 s6, s6, 1\ns_mul_i32 s54, s6, {8*1152}\ns_add_u32 s55, s54, {8*1152}")
    rowloads(32, S_WO, 54); rowloads(68, S_WO, 55)
    zero()
    e("s_add_u32 s3, s6, 1")
    wbar(32, 6); wbar(68, 3)
    e("s_branch F_sj")
    e("F_cs:")
    e(f"v_mul_u32_u24 v9, 3456, v3\nv_add_u32 v9, v9, v{T}\ns_sub_u32 s6, s2, 37\ns_mul_i32 s54, s{S_WV}, {144*3456}\ns_lshl_b32 s5, s6, 7\ns_add_u32 s54, s54, s5")
    e.vm = []; e.vm_done = 0
    for i in range(18):
        e.vmem(f"buffer_load_dwordx4 v[{32+4*i}:{35+4*i}], v9, s[{S_W}:{S_W+3}], s54 offen", i)
        if i < 17: e(f"s_add_u32 s54, s54, {8*3456}")
    zero()
    for l in wo_setup(): e(l)
    e("v_mov_b32 v10, 0x3f80\nv_mov_b32 v11, 0x3f800000")
    for k in range(8): e(f"v_mov_b32 v{12+k}, 0")
    e(f"v_lshlrev_b32 v3, 5, v0\nv_add_u32 v3, {KVB}, v3\nv_lshlrev_b32 v9, 2, v2\nv_add_u32 v{T}, {KVB}, v9\ns_lshl_b32 s6, s6, 8\ns_add_u32 s6, s6, {WS_CS}")
    for i in range(18):
        e.wait_vm(lambda t: t == i)
        for k in range(4): e(f"v_dot2c_f32_bf16 v{12+2*k}, v{32+4*i+k}, v10\nv_dot2c_f32_bf16 v{13+2*k}, v{32+4*i+k}, v11")
    e(f"s_nop 2\nds_write_b128 v3, v[12:15]\nds_write_b128 v3, v[16:19] offset:16\ns_waitcnt lgkmcnt(0)\ns_barrier\ns_cmp_lg_u32 s{S_WV}, 0\ns_cbranch_scc1 F_sj")
    for h in range(2):
        for k in range(8): e(f"ds_read2st64_b32 v[{32+16*h+2*k}:{33+16*h+2*k}], v{T} offset0:{16*h+2*k} offset1:{16*h+2*k+1}")
    e("s_waitcnt lgkmcnt(0)")
    for n in (8, 4, 2, 1):
        for k in range(n): e(f"v_pk_add_f32 v[{32+2*k}:{33+2*k}], v[{32+2*k}:{33+2*k}], v[{32+2*k+2*n}:{33+2*k+2*n}]")
    e(f"v_add_f32 v32, v32, v33\nbuffer_store_dword v32, v9, {W}, s6 offen sc0 sc1")
    e("F_sj:")
    e("s_load_dwordx4 s[40:43], s[0:1], 32")
    srd(e, S_DBG, 44, 256)
    TL = touch()
    for l in TL[:xpre]: e(l)
    e(f"v_cmp_eq_u32 vcc, 0, v2\nv_mov_b32 v4, 1\nv_mov_b32 v11, 0\nv_cndmask_b32_e64 v3, v8, 0, vcc\ns_waitcnt vmcnt({min(xpre, len(TL))}) lgkmcnt(0)\ns_barrier")
    tm.stamp(0)
    e(f"s_cmp_lg_u32 s{S_WV}, 3\ns_cbranch_scc1 F_nsg")
    e(f"buffer_atomic_add v4, v3, s[{S_DBG}:{S_DBG+3}], 0 offen sc0 sc1\nF_nsg:")
    for l in TL[xpre:]: e(l)
    e(f"s_cmp_lg_u32 s{S_WV}, 3\ns_cbranch_scc1 F_nsg2\ns_waitcnt vmcnt({len(TL[xpre:])})\nv_readfirstlane_b32 s5, v4\ns_nop 1\ns_cmp_lg_u32 s5, 63\ns_cbranch_scc1 F_nsg2")
    e(f"buffer_store_dword v4, v3, s[{S_DBG}:{S_DBG+3}], 0 offen offset:128 sc0 sc1\nF_nsg2:")
    if cpf:
        e(f"s_lshr_b32 s6, s2, 3\ns_lshl_b32 s6, s6, 13\ns_cmp_lg_u32 s{S_WV}, 3\ns_cbranch_scc1 F_ncp")
        code_prefetch(e, "F_pc2", "F_k2", "KB_last", 2, 248, 6)
        e("F_ncp:")
    if prefetch:
        srd(e, 52, 40, 576*4608*2); srd(e, 56, 42, 576*4608*2)
        slice_of_xcd(e, 5, 2, C)
        e(f"s_mul_i32 s5, s5, 1152\ns_lshr_b32 s6, s2, 3\ns_mul_i32 s6, s6, {72*9216}\ns_add_u32 s5, s5, s6")
        e(f"v_mul_u32_u24 v4, 911, v0\nv_lshrrev_b32 v4, 16, v4\nv_mul_u32_u24 v3, 72, v4\nv_sub_u32 v3, v0, v3\nv_mul_u32_u24 v3, 9216, v3")
        for k in range(0, len(pf1), 3):
            ls = list(pf1[k:k+3])
            e(f"v_mov_b32 v12, {BIG}")
            for i, ln in enumerate(ls):
                e(f"v_cmp_eq_u32 vcc, {i}, v4\nv_add_u32 v13, {ln*128}, v3\ns_nop 0\nv_cndmask_b32 v12, v12, v13, vcc")
            e(f"buffer_load_dword v244, v12, s[52:55], s5 offen\nbuffer_load_dword v245, v12, s[56:59], s5 offen")
    for x in wo_dma()[:27-nl]: issue(x)
    e(f"F_gate:\nbuffer_load_dword v10, v11, s[{S_DBG}:{S_DBG+3}], 0 offen offset:128 sc0 sc1\ns_waitcnt vmcnt(0)\nv_readfirstlane_b32 s5, v10\ns_nop 1\ns_cmp_eq_u32 s5, 63\ns_cbranch_scc1 F_gated\ns_sleep 4\ns_branch F_gate\nF_gated:")
    e(f"v_mov_b32 v23, {BIG}\ns_mov_b32 s{S_SIG}, 0")
    tm.stamp(5)
    e("F_k2:")
    return wo_dma()[27-nl:]
assert all((n*911) >> 16 == n//72 for n in range(256))
```

```python
from sched import *
from layout import *
from k3 import srd, f2u, SLOT
from k1 import mask64, smask, BIG, LBIG, slice_of_xcd
from kf1 import KVB, S_WS_, S_WO, S_X, S_RT, S_CG, S_WV, S_WL, S_SIG, WSL
import math
MXC = KVB + 4*12288

def gen_f2(e, tm, F, left, C=2, prefetch=True, p1=11, dp=16, slp=4, pf2=(2, 3, 4, 7, 8), npre=44, nw1=24, lead_=1.25, nbar=9, lsp=3, xe=1):
    A = 24; O = 112; ADR = 112; RAW = 184; RD = 148; NR = 164; MIX = 180; GB = 184; ACC = 232
    VL16 = 4; TB = 8; VXA = 10; VST = 11; VSA = 12; VMX = 15; VD = 18; VLZ = 21; VF = 22
    XT = 232; XA = 200; MN = 212
    PQ = 0; WFR = 72; WB = 180
    S_RB = 35; S_WS = 36
    W = f"s[{S_WS_}:{S_WS_+3}]"
    sf = " sc0 sc1"
    lg = lambda x: int(math.log2(x))
    e.vm = []; e.vm_done = 0; e.lg = []; e.lg_done = 0
    e("s_load_dwordx4 s[12:15], s[0:1], 32\ns_load_dwordx4 s[40:43], s[0:1], 48")
    left = list(left); nl = len(left)
    def lissue(n):
        for _ in range(n):
            if left:
                pre, t_, _ = left.pop(0)
                for p in pre: e(p)
                e(t_)
    e(f"""s_mul_i32 s{S_RB}, s{S_WV}, 12288
s_add_u32 s{S_RB}, s{S_RB}, {KVB}
s_mul_i32 s24, s{S_WV}, 12160
v_lshlrev_b32 v{VL16}, 4, v2
s_lshr_b32 s5, s{S_WV}, 1
s_lshl_b32 s6, s{S_RT}, 1
s_add_u32 s{S_WS}, s6, s5
s_lshl_b32 s5, s{S_WS}, 2
s_add_u32 s5, s5, s{S_WV}
s_xor_b32 s6, s5, 4
s_mul_i32 s25, s5, 9216
s_mul_i32 s26, s6, 9216
s_lshl_b32 s45, s{S_WV}, 5
s_add_u32 s45, s45, s{S_RT}
s_lshl_b32 s45, s45, 7
s_add_u32 s45, s45, {WS_FK}
v_cmp_eq_u32 vcc, 0, v2
v_mov_b32 v1, {BIG}
v_mov_b32 v{VF}, 1
v_cndmask_b32_e64 v{VLZ}, v1, 0, vcc""")
    e(f"v_and_b32 v13, 15, v2\nv_lshrrev_b32 v14, 4, v2\nv_mul_u32_u24 v3, 80, v13\nv_lshl_add_u32 v3, v14, 4, v3\nv_add_u32 v3, s{S_RB}, v3\nv_mov_b32 v16, {LBIG}")
    e(f"v_and_b32 v1, 3, v13\nv_mul_u32_u24 v17, 9, v1\nv_lshrrev_b32 v17, 1, v17\nv_sub_u32 v17, v14, v17\nv_lshlrev_b32 v17, 4, v17\nv_mul_u32_u24 v1, 1520, v1\nv_add3_u32 v17, v17, v1, s{S_RB}")
    frags = []; na = [0]; prep = []
    def addr(base, m):
        if m == 0: return None
        r = ADR + na[0]; na[0] += 1
        prep.append((r, base, m))
        return r
    zf = []
    for c, T0s in ((0, (0, 2, 4)), (1, (4, 6, 7))):
        for T0 in T0s:
            L = []
            for jj in range(2):
                T = T0 + jj
                def valid(l):
                    if c == 1 and T0 == 7 and jj == 0: return False
                    hs = 4*c + (l & 3); g = l >> 4
                    return 0 <= 4*T + g - (9*hs)//2 < 5
                L.append((addr(17, mask64(valid)), c*(4*1520 - 18*16) + 18*80 + 64*T))
            zf.append((c, T0, len(frags))); frags.append(L)
    numf = {}
    for h in range(8):
        for j in (h, h + 1):
            L = []
            for jj in range(2):
                def valid(l):
                    m, g = l & 15, l >> 4
                    return 0 <= 16*j + m - 18*h < 18 and 0 <= g + 4*jj - (h >> 1) < 5
                L.append((addr(3, mask64(valid)), h*1520 + (16*j - 18*h)*80 + (4*jj - (h >> 1))*16))
            numf[(j, h)] = len(frags); frags.append(L)
    def doprep(n):
        for _ in range(n):
            if prep:
                r, base, m = prep.pop(0)
                smask(e, 48, m); e(f"v_cndmask_b32 v{r}, v16, v{base}, s[48:49]")
    ng = 16 // C
    e(f"s_and_b32 s5, s{S_WV}, 1\ns_mul_i32 s59, s5, 96")
    e(f"v_lshrrev_b32 v1, 5, v2\nv_lshl_add_u32 v1, v1, 4, v13\nv_and_b32 v244, 1, v14")
    e(f"v_mul_u32_u24 v{VXA}, 1152, v1\nv_lshl_add_u32 v{VXA}, v244, 4, v{VXA}")
    e(f"v_lshlrev_b32 v{VST}, 4, v1\nv_lshl_add_u32 v{VST}, v244, 9, v{VST}")
    e(f"v_cmp_eq_u32 s[48:49], 0, v244\nv_lshlrev_b32 v{VSA}, 3, v1\nv_lshlrev_b32 v{VMX}, 2, v1\nv_mov_b32 v1, {BIG}\nv_cndmask_b32 v{VSA}, v1, v{VSA}, s[48:49]")
    e(f"s_mul_i32 s51, s{S_WS}, 36864\ns_mul_i32 s5, s{S_CG}, 192\ns_add_u32 s5, s5, s59\ns_add_u32 s50, s51, s5")
    e(f"v_mul_u32_u24 v244, 80, v14\ns_mul_i32 s27, s{S_WV}, 320\ns_add_u32 s27, s27, {WS_WB}\ns_lshl_b32 s28, s{S_WS}, 7\ns_add_u32 s28, s28, {WS_MX}")
    e(f"v_lshrrev_b32 v245, 2, v2\nv_mul_u32_u24 v245, 192, v245\nv_and_b32 v{TB}, 3, v2\nv_lshl_add_u32 v245, v{TB}, 3, v245")
    e(f"s_add_u32 s7, s{S_WL}, s59\nv_add_u32 v{TB}, s7, v245\ns_add_u32 s7, s{S_WL}, 96\ns_sub_u32 s7, s7, s59\nv_add_u32 v{TB+1}, s7, v245\nv_add_u32 v{VD}, {2*SLOT}, v{TB}\nv_add_u32 v{VD+1}, {2*SLOT}, v{TB+1}")
    doprep(npre)
    e(f"s_waitcnt vmcnt(0)")
    tm.stamp(0)
    e(f"s_barrier\nbuffer_atomic_add v{VF}, v23, {W}, s{S_SIG} offen sc1")
    wr = []
    for ks in range(5):
        for ct in range(6):
            r = WFR + 24*ks + (4 if ks < 4 else 2)*ct
            for i in range(2 if ks < 4 else 1):
                T_ = 2*ks + i; sl = WSL[T_//3]
                wr.append((T_, f"ds_read_b64_tr_b16 a[{r+2*i}:{r+2*i+1}], v{(TB if sl < 2 else VD) + ct//3} offset:{(sl % 2)*SLOT + (T_%3)*3072 + (ct%3)*32}"))
    alu = f"""s_and_b32 s3, s2, {ng-1}
s_lshl_b32 s3, s3, {lg(C)}
s_bfe_u32 s44, s2, {hex(3 | (lg(C) << 16))}
s_add_u32 s3, s3, s44
s_mul_i32 s30, s3, 576
s_and_b32 s3, s3, 1
s_lshl_b32 s3, s3, 6
s_add_u32 s30, s30, s3
s_and_b32 s3, s{S_WV}, 1
s_mul_i32 s3, s3, {72*9216}
s_add_u32 s30, s30, s3
s_mul_i32 s31, s{S_WV}, 9216
v_bfe_u32 v{VD}, v2, 2, 3
v_mul_u32_u24 v{VD}, 9216, v{VD}
v_and_b32 v{VD+1}, 3, v2
v_lshl_add_u32 v{VD}, v{VD+1}, 4, v{VD}
v_lshrrev_b32 v{VD+1}, 5, v2
v_lshl_add_u32 v{VD}, v{VD+1}, 6, v{VD}
v_add_u32 v{VD+1}, {8*9216-1024}, v{VD}
v_add_u32 v{VD+2}, {16*9216-2048}, v{VD}"""
    gusel = f"s_cmp_lt_u32 s{S_WV}, 2\ns_cselect_b32 s12, s12, s14\ns_cselect_b32 s13, s13, s15\ns_and_b32 s13, s13, 0xffff\ns_mov_b32 s14, {576*4608*2}\ns_mov_b32 s15, 0x20000"
    def kdma(st):
        return [([f"s_add_u32 m0, s31, {st*SLOT + i*1024}", f"s_add_u32 s44, s30, {(st*144 + 8*i)*9216}"] if i % 3 == 0 else [],
                 f"buffer_load_dwordx4 v{VD+i%3}, s[12:15], s44 offen" + (f" offset:{(i%3)*1024}" if i % 3 else "") + " lds", ("dma", st), dp) for i in range(9)]
    e("s_lshr_b32 s5, s2, 6\ns_cmp_eq_u32 s5, 1\ns_cbranch_scc1 F2_idle")
    lissue(nl)
    if xe:
        for k in range(3): e(f"buffer_load_dwordx4 v[{XT+4*k}:{XT+4*k+3}], v{VXA}, s[{S_X}:{S_X+3}], s50 offen" + (f" offset:{32*k}" if k else ""))
        for k in range(5): e(f"buffer_load_dwordx4 a[{WB+4*k}:{WB+4*k+3}], v244, {W}, s27 offen" + (f" offset:{16*k}" if k else "") + sf)
        e(f"buffer_load_dword v1, v{VMX}, {W}, s28 offen{sf}")
    tdone = (27 - nl)//3
    wr1 = [t_ for T_, t_ in wr if T_ < tdone]; wr2 = [t_ for T_, t_ in wr if T_ >= tdone]
    for t_ in wr1[:nw1]: e(t_)
    apoll = f"v_mov_b32 v{VF}, 0\nbuffer_atomic_add v{VF}, v{VLZ}, {W}, s45 offen sc0 sc1"
    e(apoll)
    for t_ in wr1[nw1:]: e(t_)
    doprep(100)
    tm.stamp(1)
    rd = f"s_waitcnt vmcnt(0)\nv_readfirstlane_b32 s5, v{VF}\ns_nop 1\ns_cmp_ge_u32 s5, 34\ns_cbranch_scc1 F2_go"
    e(f"{rd}\nF2_pl:\n{apoll}\n{rd}\ns_cmp_ge_u32 s5, 8\ns_cbranch_scc1 F2_pl\ns_sleep {slp}\ns_branch F2_pl\nF2_go:")
    tm.stamp(2)
    for i in range(12):
        if i % 4 == 0: e(f"s_add_u32 m0, s{S_RB}, {i*1024}\ns_add_u32 s6, s24, {WS_KV + i*1024}")
        e.vmem(f"buffer_load_dwordx4 v{VL16}, {W}, s6 offen" + (f" offset:{(i%4)*1024}" if i % 4 else "") + sf + " lds", "kv")
    vq = []
    for b in (1, 0):
        for q_ in range(9):
            pre = [f"s_add_u32 s29, s{25+b}, {WS_PQ + q_*1024}"] if q_ % 4 == 0 else []
            r = PQ + 36*b + 4*q_
            vq.append((pre, f"buffer_load_dwordx4 a[{r}:{r+3}], v{VL16}, {W}, s29 offen" + (f" offset:{(q_%4)*1024}" if q_ % 4 else "") + sf, ("pq", b), p1))
    st_ = [([], f"buffer_load_dwordx4 a[{WB+4*k}:{WB+4*k+3}], v244, {W}, s27 offen" + (f" offset:{16*k}" if k else "") + sf, "wb", 4) for k in range(5)]
    st2 = [([], f"buffer_load_dwordx4 v[{XT+4*k}:{XT+4*k+3}], v246, s[{S_X}:{S_X+3}], s50 offen" + (f" offset:{32*k}" if k else ""), "x", p1) for k in range(3)]
    st2.append(([], f"buffer_load_dword v1, v247, {W}, s28 offen{sf}", "x", 4))
    if xe: st_ = []; st2 = []
    vq = vq[:9] + st_ + vq[9:] + st2 + kdma(0) + kdma(1) + kdma(2)
    state = {"last": 0}
    def pace(force=False):
        if vq and (force or e.n - state["last"] >= vq[0][3]):
            pre, t, tag, _ = vq.pop(0)
            for p in pre: e(p)
            e.vmem(t, tag); state["last"] = e.n
    for t_ in wr2: e(t_)
    e(f"v_mov_b32 v246, v{VXA}\nv_mov_b32 v247, v{VMX}")
    e(alu)
    for t in range(1, 4): smask(e, 52 + 2*(t-1), mask64(lambda l: (l >> 4) < t))
    m0_ = mask64(lambda l: (l >> 4) == ((l & 15) >> 2) and (l & 2) == 0); m1_ = mask64(lambda l: (l >> 4) == ((l & 15) >> 2) and (l & 2) == 2)
    ID = 6
    e(f"s_movk_i32 s58, 0x3f80\nv_and_b32 v5, 1, v13\nv_lshlrev_b32 v5, 4, v5\nv_lshlrev_b32_e64 v5, v5, s58")
    smask(e, 48, m0_); e(f"v_cndmask_b32 v{ID}, 0, v5, s[48:49]"); smask(e, 48, m1_); e(f"v_cndmask_b32 v{ID+1}, 0, v5, s[48:49]")
    e(f"v_lshlrev_b32 v5, 3, v2\nv_add_u32 v3, s{S_RB}, v5")
    xl = [f"v_permlane16_swap_b32 v{XT+4*k+i}, v{XT+4*k+i+2}" for k in range(3) for i in range(2)] + \
         [f"v_permlane32_swap_b32 v{XT+4*k+i}, v{XT+4*k+i+2}" for k in range(3) for i in range(2)] + \
         [f"v_accvgpr_write_b32 a{XA+k}, v{XT+k}" for k in range(12)]
    if xe:
        for l in xl: e(l)
        xl = []
    for _ in range(9): pace(True)
    e("s_waitcnt lgkmcnt(0)\n" + gusel + "\ns_barrier")
    for lq in (1, 2, 3): e(f"s_xor_b32 s5, s{S_WV}, {lq}\ns_mul_i32 s5, s5, 12288\ns_add_u32 s5, s5, {KVB}\nv_add_u32 v{8+lq-1}, s5, v5")
    e(f"s_and_b32 s5, s{S_WV}, 2\nv_xor_b32 v14, s5, v14\nv_lshl_add_u32 v13, v14, 4, v13\ns_lshl_b32 s5, s{S_WV}, 8\ns_add_u32 s5, s5, {MXC}\nv_lshl_add_u32 v13, v13, 2, s5")
    e(f"s_lshl_b32 s5, s{S_WV}, 6\ns_and_b32 s5, s5, 128\ns_add_u32 s5, s5, {MXC}\nv_add_u32 v{VMX}, s5, v{VMX}")
    e(f"s_mul_i32 s5, s{S_CG}, 6144\ns_lshl_b32 s6, s59, 5\ns_add_u32 s5, s5, s6\ns_add_u32 s5, s5, s51\ns_add_u32 s4, s5, {WS_HC}\ns_add_u32 s5, s5, {WS_HT}")
    e(f"s_lshl_b32 s6, s{S_CG}, 1\ns_and_b32 s7, s{S_WV}, 1\ns_add_u32 s6, s6, s7\ns_lshl_b32 s6, s6, 14\ns_lshl_b32 s7, s{S_WS}, 8\ns_add_u32 s6, s6, s7\ns_add_u32 s6, s6, {WS_ST}")
    e.wait_vm(lambda t: t == "kv")
    tm.stamp(3)
    def ards(f):
        rb = RAW + 8*(f % 6)
        for jj in range(2):
            ar, off = frags[f][jj]
            if ar is not None:
                e.ds(f"ds_read_b128 v[{rb+4*jj}:{rb+4*jj+3}], v{ar} offset:{off}", f)
    for k in range(5): ards(k)
    for f in range(22):
        if f + 5 < 22: ards(f + 5)
        pace()
        rb = RAW + 8*(f % 6)
        e.wait_lg(lambda t: t == f)
        for jj in range(2):
            d = A + 4*f + 2*jj
            if frags[f][jj][0] is None: e(f"v_mov_b32 v{d}, 0\nv_mov_b32 v{d+1}, 0")
            else: e(f"v_cvt_pk_bf16_f32 v{d}, v{rb+4*jj}, v{rb+4*jj+1}\nv_cvt_pk_bf16_f32 v{d+1}, v{rb+4*jj+2}, v{rb+4*jj+3}")
    tm.stamp(4)
    q = Queue(e, window=10)
    def pqf(t, tile):
        r = PQ + 36*(t >> 1) + 18*(t & 1) + 2*tile
        return f"a[{r}:{r+3}]"
    def force(ops):
        for o in ops:
            if o.pos is None: q.drain_until(o)
    eps = hex(f2u(1e-6))
    rdops = {}; rduse = {0: [], 1: []}; ocv = {}; guse = {0: [], 1: []}
    NS = 4
    ringfree = [[] for _ in range(NS)]; mixfree = [None]*4; mixi = [0]; cnt = [0]
    def den_items(t):
        L = []
        for k, (c, T0, f) in enumerate(zf):
            def it(k=k, c=c, T0=T0, f=f):
                if k == 0:
                    while any(v[2] == ("pq", t >> 1) for v in vq): pace(True)
                    e.wait_vm(lambda x: x == ("pq", t >> 1))
                    force(rduse[t & 1]); rduse[t & 1] = []
                d = RD + 8*(t & 1) + 4*c
                o = e.op(Op(f"v_mfma_f32_16x16x32_bf16 v[{d}:{d+3}], v[{A+4*f}:{A+4*f+3}], {pqf(t, T0)}, " + ("0" if k % 3 == 0 else f"v[{d}:{d+3}]")))
                if k % 3 == 2:
                    for r in range(4):
                        o1 = q.add(Op(f"v_add_f32 v{d+r}, {eps}, v{d+r}", deps=[(o, 9)]))
                        rdops[(t, 4*c + r)] = q.add(Op(f"v_rcp_f32 v{d+r}, v{d+r}", cost=2, deps=[(o1, 0)]))
            L.append(it)
        return L
    def num_items(t):
        L = []
        for j in range(9):
            hs = [h for h in (j - 1, j) if 0 <= h < 8]
            for k, h in enumerate(hs):
                def it(j=j, k=k, h=h, last=(k == len(hs) - 1)):
                    if k == 0:
                        cnt[0] += 1
                        force(ringfree[cnt[0] % NS])
                    slot = cnt[0] % NS; d = NR + 4*slot; a = A + 4*numf[(j, h)]
                    o = e.op(Op(f"v_mfma_f32_16x16x32_bf16 v[{d}:{d+3}], v[{a}:{a+3}], {pqf(t, h)}, " + ("0" if k == 0 else f"v[{d}:{d+3}]")))
                    if not last: return
                    R = RD + 8*(t & 1)
                    muls = []; mixcache = {}
                    for r in range(4):
                        th = sum(1 for g in range(4) if 4*g + r < 2*j)
                        if th == 0: src, dp_ = R + j, [(rdops[(t, j)], 1)]
                        elif th == 4: src, dp_ = R + j - 1, [(rdops[(t, j-1)], 1)]
                        else:
                            if th not in mixcache:
                                mi = mixi[0] % 4; mixi[0] += 1
                                dd = [(rdops[(t, j)], 1), (rdops[(t, j-1)], 1)] + [(x, 0) for x in (mixfree[mi] or [])]
                                s_ = 52 + 2*(th-1)
                                mo = q.add(Op(f"v_cndmask_b32 v{MIX+mi}, v{R+j}, v{R+j-1}, s[{s_}:{s_+1}]", deps=dd))
                                mixcache[th] = (mi, mo); mixfree[mi] = []
                            mi, mo = mixcache[th]
                            src, dp_ = MIX + mi, [(mo, 0)]
                        m = q.add(Op(f"v_mul_f32 v{d+r}, v{d+r}, v{src}", deps=[(o, 9)] + dp_))
                        if th not in (0, 4): mixfree[mixcache[th][0]].append(m)
                        muls.append(m)
                    rduse[t & 1] += muls
                    od = O + 18*(t & 1) + 2*j
                    c1 = q.add(Op(f"v_cvt_pk_bf16_f32 v{od}, v{d}, v{d+1}", deps=[(muls[0], 0), (muls[1], 0)]))
                    c2 = q.add(Op(f"v_cvt_pk_bf16_f32 v{od+1}, v{d+2}, v{d+3}", deps=[(muls[2], 0), (muls[3], 0)]))
                    ringfree[slot] = [c1, c2]; ocv[(t, j)] = [c1, c2]
                L.append(it)
        return L
    mlast = {}
    def gemm_items(t, cts):
        L = []
        prev = {}
        for ks in range(5):
            for ct in cts:
                def it(ks=ks, ct=ct):
                    need = ocv[(t, 2*ks)] + (ocv[(t, 2*ks + 1)] if ks < 4 else [])
                    force(need)
                    deps = [(o, 2) for o in need]
                    if ks == 4: deps.append((prev[ct], 6))
                    n = 4 if ks < 4 else 2
                    o_ = O + 18*(t & 1) + 4*ks
                    op = "v_mfma_f32_16x16x32_bf16" if ks < 4 else "v_mfma_f32_16x16x16_bf16"
                    if ct == 6:
                        d = f"a[{MN+4*t}:{MN+4*t+3}]"; a = WB + 4*ks
                    else:
                        keep = t < 2 and ct < 3
                        dr = ACC + 12*t + 4*ct if keep else GB + 24*(t & 1) + 4*ct
                        if ks == 0 and not keep: force(guse[t & 1])
                        d = f"v[{dr}:{dr+3}]"; a = WFR + 24*ks + n*ct
                    mo = e.op(Op(f"{op} {d}, a[{a}:{a+n-1}], v[{o_}:{o_+n-1}], " + ("0" if ks == 0 else d), deps=deps))
                    prev[ct] = mo
                    if ks < 4: return
                    if ct == 6: mlast[t] = mo
                    elif keep:
                        x = XA + 4*ct + 2*t
                        q.fill(2)
                        e(f"v_mfma_f32_16x16x16_bf16 {d}, v[{ID}:{ID+1}], a[{x}:{x+1}], {d}")
                    else:
                        lq = (t >> 1)*2 + ct//3
                        c1 = q.add(Op(f"v_cvt_pk_bf16_f32 v{dr}, v{dr}, v{dr+1}", deps=[(mo, 9)]))
                        c2 = q.add(Op(f"v_cvt_pk_bf16_f32 v{dr+1}, v{dr+2}, v{dr+3}", deps=[(c1, 0)]))
                        w_ = q.add(Op(lambda dr=dr, off=lq*3072 + ((t & 1)*3 + ct % 3)*512: e.ds(f"ds_write_b64 v3, v[{dr}:{dr+1}] offset:{off}", "xw"), deps=[(c2, 0)]))
                        guse[t & 1].append(w_)
                L.append(it)
        return L
    def run(a, b=(), fill=2):
        a = list(a); b = list(b); na_, nb_ = len(a), len(b); ia = ib = 0
        while ia < na_ or ib < nb_:
            if ib < nb_ and (ia >= na_ or ib*na_ <= ia*nb_*lead_): b[ib](); ib += 1
            else: a[ia](); ia += 1
            pace(); q.fill(fill)
    e("s_nop 0")
    run(den_items(2) + den_items(3), fill=3)
    run(num_items(2), fill=4)
    tm.stamp(5)
    allc = [0, 1, 2, 3, 4, 5, 6]
    while any(v[2] == "wb" for v in vq): pace(True)
    e.wait_vm(lambda x: x == "wb")
    run(gemm_items(2, allc), num_items(3)[:6] + den_items(0) + num_items(3)[6:])
    while any(v[2] == "x" for v in vq): pace(True)
    prev = q.add(Op(lambda: e.wait_vm(lambda x: x == "x")))
    for l in xl:
        prev = q.add(Op(l, cost=2 if "perm" in l else 1, deps=[(prev, 0)]))
    xdone = prev
    run(gemm_items(3, allc), num_items(0)[:6] + den_items(1) + num_items(0)[6:])
    force([xdone])
    run(gemm_items(0, allc), num_items(1))
    run(gemm_items(1, [6, 3, 4, 5]))
    while vq: pace(True)
    prev = None
    for t in range(4):
        prev = q.add(Op(f"v_accvgpr_read_b32 v{16 + (t > 0)}, a{MN+4*(3-t)}", deps=[(mlast[3-t], 9)] + ([(prev, 0)] if prev else [])))
        if t: prev = q.add(Op(f"v_cndmask_b32 v16, v16, v17, s[{58-2*t}:{59-2*t}]", deps=[(prev, 0)]))
    q.add(Op(lambda: e.ds(f"ds_write_b32 v13, v16", "mw"), deps=[(prev, 0)]))
    own = gemm_items(1, [0, 1, 2])
    run(own[:nbar])
    q.drain()
    tm.stamp(6)
    e("s_waitcnt lgkmcnt(0)\ns_barrier")
    IN = 40
    for l2 in (1, 2, 3):
        for i in range(3):
            r = IN + 12*(l2-1) + 4*i
            q.add(Op(f"ds_read2st64_b64 v[{r}:{r+3}], v{8+l2-1} offset0:{l2*6 + 2*i} offset1:{l2*6 + 2*i + 1}"))
    q.add(Op(f"ds_read2st64_b32 v[104:105], v{VMX} offset0:0 offset1:1")); q.add(Op(f"ds_read2st64_b32 v[106:107], v{VMX} offset0:2 offset1:3"))
    run(own[nbar:])
    q.drain()
    tm.stamp(7)
    e("v_mov_b32 v13, 0x3f80\nv_mov_b32 v14, 0x3f800000\nv_mov_b32 v15, 0x3f803f80\nv_mov_b32 v8, 0\nv_mov_b32 v9, 0\ns_nop 2")
    e("s_waitcnt lgkmcnt(0)")
    for lq in (1, 2, 3):
        for i in range(3):
            for k in range(4):
                r = IN + 12*(lq-1) + 4*i + k; d = ACC + 2*(4*i + k)
                e(f"v_dot2c_f32_bf16 v{d}, v{r}, v13\nv_dot2c_f32_bf16 v{d+1}, v{r}, v14")
    e("v_pk_add_f32 v[104:105], v[104:105], v[106:107]\nv_add_f32 v1, v1, v104\nv_add_f32 v1, v1, v105\nv_cvt_pk_bf16_f32 v1, v1, v1\nv_and_b32 v1, 0xffff0000, v1\nv_xor_b32 v1, 0x80000000, v1")
    H = 80; HC = 92; TL = 40
    for c3 in range(3):
        for tt in range(2):
            a = ACC + 12*tt + 4*c3
            e(f"v_cvt_pk_bf16_f32 v{H+4*c3+2*tt}, v{a}, v{a+1}\nv_cvt_pk_bf16_f32 v{H+4*c3+2*tt+1}, v{a+2}, v{a+3}")
    for c3 in range(3):
        e(f"v_permlane32_swap_b32 v{H+4*c3}, v{H+4*c3+2}\nv_permlane32_swap_b32 v{H+4*c3+1}, v{H+4*c3+3}")
    for c3 in range(3):
        e(f"buffer_store_dwordx4 v[{H+4*c3}:{H+4*c3+3}], v{VST}, {W}, s5 offen" + (f" offset:{1024*c3}" if c3 else "") + sf)
        for r in range(H + 4*c3, H + 4*c3 + 4): e(f"v_dot2c_f32_bf16 v8, v{r}, v15\nv_dot2c_f32_bf16 v9, v{r}, v{r}")
    for c3 in range(3):
        for k in range(4):
            r = H + 4*c3 + k; t = TL + 8*c3 + 2*k
            e(f"v_dot2_f32_bf16 v{t}, v{r}, v13, v1\nv_dot2_f32_bf16 v{t+1}, v{r}, v14, v1")
        if c3 == 0: e("v_mov_b32 v6, v8\nv_mov_b32 v7, v9")
        if c3 == 1: e("v_permlane16_swap_b32 v6, v8\nv_permlane16_swap_b32 v7, v9")
    e(f"v_pk_add_f32 v[6:7], v[6:7], v[8:9]\nbuffer_store_dwordx2 v[6:7], v{VSA}, {W}, s6 offen{sf}")
    for c3 in range(3):
        for k in range(4): e(f"v_cvt_pk_bf16_f32 v{HC+4*c3+k}, v{TL+8*c3+2*k}, v{TL+8*c3+2*k+1}")
        e(f"buffer_store_dwordx4 v[{HC+4*c3}:{HC+4*c3+3}], v{VST}, {W}, s4 offen" + (f" offset:{1024*c3}" if c3 else "") + sf)
    tm.stamp(8)
    e(f"s_lshl_b32 s59, s{S_WS}, 8\ns_add_u32 s59, s59, {WS_FA}\ns_branch K2_done")
    e("F2_idle:\ns_waitcnt vmcnt(0) lgkmcnt(0)\ns_barrier")
    e(alu)
    if prefetch and pf2:
        srd(e, 52, 12, 576*4608*2); srd(e, 56, 14, 576*4608*2)
        slice_of_xcd(e, 5, 2, C)
        e(f"s_mul_i32 s5, s5, 1152\ns_bfe_u32 s6, s2, 0x30003\ns_mul_i32 s6, s6, {72*9216}\ns_add_u32 s5, s5, s6")
        e(f"v_mul_u32_u24 v4, 911, v0\nv_lshrrev_b32 v4, 16, v4\nv_mul_u32_u24 v3, 72, v4\nv_sub_u32 v3, v0, v3\nv_mul_u32_u24 v3, 9216, v3")
        for k in range(0, len(pf2), 3):
            e(f"v_mov_b32 v12, {BIG}")
            for i, ln in enumerate(pf2[k:k+3]):
                e(f"v_cmp_eq_u32 vcc, {i}, v4\nv_add_u32 v13, {ln*128}, v3\ns_nop 0\nv_cndmask_b32 v12, v12, v13, vcc")
            e(f"buffer_load_dword v244, v12, s[52:55], s5 offen\nbuffer_load_dword v245, v12, s[56:59], s5 offen")
    e(gusel)
    for st in range(3):
        for pre, t_, _, _ in kdma(st):
            for p in pre: e(p)
            e(t_)
    e("s_mov_b32 s59, -1\nK2_done:")
    F["nleft"] = 0; F["pre_stages"] = 3
```

```python
from sched import *
from layout import *
from tim import Tim
import struct, math
def f2u(x): return struct.unpack("<I", struct.pack("<f", x))[0]

def srd(e, d, b, nbytes, off=0):
    if off > 0:
        e(f"s_add_u32 s{d}, s{b}, {off}\ns_addc_u32 s{d+1}, s{b+1}, 0\ns_and_b32 s{d+1}, s{d+1}, 0xffff")
    elif off < 0:
        e(f"s_sub_u32 s{d}, s{b}, {-off}\ns_subb_u32 s{d+1}, s{b+1}, 0\ns_and_b32 s{d+1}, s{d+1}, 0xffff")
    else:
        e(f"s_mov_b32 s{d}, s{b}\ns_and_b32 s{d+1}, s{b+1}, 0xffff")
    e(f"s_mov_b32 s{d+2}, {nbytes}\ns_mov_b32 s{d+3}, 0x20000")

SLOT = 36864
STAMPS = [0, 135, -1, -2, 568, 648, 720, 792, 864, 900, 936, 971]
def gen_k3(C=2, budget=5, timing=False, store_flags=" sc1", lead=30, wdpf=True, roll=True, bud2=6, late0="own",
           f1=(604, 632, 657), f2=(742, 766, 792, 818), gst=' sc0 sc1', gld=' sc0 sc1', old=' sc0 sc1', slack=2.25, nogs=False, vcost=1, ldpace=7, dsp=4, dtail=1, fused=None, hpre=770, slp=8, sig0=906, pp1=2, pp2=4, ordb=1, na=6, of=' sc1', ctouch=(20, 470, 600, 700, 800), hd=7, p2plan='p1', sig1=944, pol0=(930, 948)):
    e = fused['e'] if fused else Em()
    tm = fused['tm3'] if fused else Tim(e, 3, timing)
    xf = ' sc0 sc1' if fused else ''
    if fused: store_flags = ' sc0 sc1'
    TRB = 4; V1 = 8; VB = 17; VE = 26; VP1 = 29; VS = 30
    VK1 = 34; VK2 = 35; VS2 = 36; VL16 = 37; VPF = 38; VZ = 39; VF = 40; V3 = 41; VONE = 42; T = 44
    TM = 208
    ACC = 56; OLD = 120; GT = 184; GS = 200; GP = 208
    FR = 144; GO = 192; GP3 = 240; GPS = 112
    S_W = 8; S_WD = 12; S_HC = S_ST = S_PT = S_GX = S_FL = 16; S_XH = 20
    S_J = 28; S_I = 29; S_WV = 30; S_WB = 31; S_CP = 32; S_CS = 33; S_SO = 34; S_XO = 35
    S_PO = 36; S_PS = 37
    S_B0 = 38; S_B1 = 39; S_A0 = 21; S_A1 = 22; S_CNT = 49; S_GO = 50; S_XS = 51; S_SS = 52; S_PF = 53
    S_MK = 54
    S_OWN = 56; S_PAR = 57; S_SNG = 58; S_TMP = 59
    S_GW = 40; S_GR = 41; S_FW = 42; S_FR = 43
    if not fused: e("s_cmp_ge_u32 s2, 256\ns_cbranch_scc1 K3_end")
    else: e("s_mov_b32 s23, s59\ns_mov_b64 s[26:27], s[42:43]\ns_mov_b64 s[44:45], s[40:41]\ns_mov_b64 s[40:41], s[12:13]")
    if not fused: e("s_load_dwordx4 s[40:43], s[0:1], 32\ns_load_dwordx2 s[44:45], s[0:1], 48\ns_load_dwordx2 s[46:47], s[0:1], 72")
    if not fused: tm.start()
    ng = 16 // C; R = 32 // C
    lg = lambda x: int(math.log2(x))
    e(f"v_lshrrev_b32 v1, 6, v0\nv_and_b32 v2, 63, v0\ns_and_b32 s3, s2, 7\ns_lshr_b32 s4, s2, 3\nv_readfirstlane_b32 s{S_WV}, v1")
    e(f"s_and_b32 s5, s3, {ng-1}\ns_lshl_b32 s5, s5, {lg(C)}\ns_and_b32 s6, s4, {C-1}\ns_add_u32 s{S_J}, s5, s6")
    e(f"s_lshr_b32 s5, s3, {lg(ng)}\ns_lshl_b32 s5, s5, {lg(R)}\ns_lshr_b32 s6, s4, {lg(C)}\ns_add_u32 s{S_I}, s5, s6")
    e(f"v_lshlrev_b32 v{VL16}, 4, v2")
    e(f"v_bfe_u32 v3, v2, 2, 3\nv_and_b32 v{TM}, 3, v2\nv_lshlrev_b32 v{TM}, 4, v{TM}\nv_lshrrev_b32 v{TM+1}, 5, v2\nv_lshl_add_u32 v{TM+1}, v{TM+1}, 6, v{TM}")
    e(f"s_mul_i32 s{S_WB}, s{S_WV}, 9216")
    e(f"s_and_b32 s3, s{S_J}, 1\ns_mul_i32 s6, s{S_J}, 576\ns_lshl_b32 s7, s3, 6\ns_add_u32 s{S_CP}, s6, s7")
    e(f"s_and_b32 s4, s{S_WV}, 1\ns_mul_i32 s5, s4, {72*9216}\ns_add_u32 s{S_CP}, s{S_CP}, s5")
    e(f"v_mul_u32_u24 v1, 9216, v3\nv_add_u32 v{V1}, v1, v{TM+1}")
    for i in range(1, 9): e(f"v_add_u32 v{V1+i}, {8*i*9216 - (i%3)*1024}, v{V1}")
    e(f"s_lshl_b32 s5, s{S_I}, 2\ns_add_u32 s5, s5, s{S_WV}\ns_mul_i32 s{S_XO}, s5, 36864\ns_add_u32 s{S_XH}, s{S_XO}, {WS_HC}")
    e(f"v_lshrrev_b32 v1, 5, v2\nv_lshlrev_b32 v1, 8, v1\nv_bfe_u32 v{T}, v2, 2, 2\nv_lshl_add_u32 v1, v{T}, 6, v1")
    e(f"v_bfe_u32 v{T}, v2, 4, 1\nv_lshl_add_u32 v1, v{T}, 5, v1\nv_and_b32 v{T}, 3, v2\nv_lshl_add_u32 v{TRB}, v{T}, 3, v1")
    for i in range(1, 4): e(f"v_add_u32 v{TRB+i}, {i*SLOT}, v{TRB}")
    if not fused:
        e("s_waitcnt lgkmcnt(0)")
        e(f"s_cmp_lt_u32 s{S_WV}, 2\ns_cselect_b32 s40, s40, s42\ns_cselect_b32 s41, s41, s43")
    srd(e, S_W, 40, 576*4608*2)
    srd(e, S_HC, 46, WS_BYTES)

    NST = 27
    plan = {"old": [("E", k) for k in range(6)] + [("B", g) for g in range(3)],
            "p1": [("E", 0), ("E", 1), ("E", 2), ("A", 0), ("A", 1), ("B", 0), ("B", 1), ("A", 2), ("B", 2)],
            "p2": [("E", 0), ("E", 1), ("E", 2), ("A", 0), ("B", 0), ("A", 1), ("B", 1), ("A", 2), ("B", 2)],
            "p3": [("E", 0), ("E", 1), ("E", 2), ("A", 0), ("A", 1), ("B", 0), ("A", 2), ("B", 1), ("B", 2)]}[p2plan]
    def dma_instrs(st, inbody=False):
        slot = st % 4
        L = []
        def grp(g, so, vs, sr):
            if so: L.append((so, False))
            L.append((f"s_add_u32 m0, s{S_WB}, {slot*SLOT + g*3072}", False))
            for k in range(3):
                L.append((f"buffer_load_dwordx4 v{vs[k]}, s[{sr}:{sr+3}], s{sreg} offen" + (f" offset:{k*1024}" if k else "") + " lds", True))
        sreg = S_SO
        if inbody and st < 18:
            sreg = {14: S_A0, 15: S_A1, 16: S_B0, 17: S_B1}[st]; vb = V1 if st < 16 else VB
            for g in range(3): grp(g, None, [vb+3*g, vb+3*g+1, vb+3*g+2], S_W)
            L.append((f"s_add_u32 s{sreg}, s{sreg}, 128", False))
        elif st < 16:
            p, q = st // 4, st % 4
            for g in range(3):
                grp(g, f"s_add_u32 s{S_SO}, s{S_CP}, {p*128 + q*144*9216}" if g == 0 else None, [V1+3*g, V1+3*g+1, V1+3*g+2], S_W)
        elif plan[st-18][0] == "E":
            k = plan[st-18][1]; b = S_OWN if k < 3 else S_PAR; o = (k % 3)*64*1152
            grp(0, f"s_add_u32 s{S_SO}, s{b}, {o}", [VE, VE+1, VE+2], S_WD)
            grp(1, f"s_add_u32 s{S_SO}, s{b}, {o + 8*1152}", [VE, VE+1, VE+2], S_WD)
            grp(2, f"s_add_u32 s{S_SO}, s{b}, {o + 384}", [VE, VP1, VS], S_WD)
        else:
            ty, ls = plan[st-18]
            bl = ((S_OWN, 3*64*1152), (S_PAR, 3*64*1152), (S_SNG, 0)) if ty == "B" else tuple((S_PAR, k*64*1152) for k in range(3))
            for g, (b, o) in enumerate(bl):
                grp(g, f"s_add_u32 s{S_SO}, s{b}, {o + 128*ls}", [VE, VP1, VS+1+ls], S_WD)
        return L
    def emit_list(L):
        n = 0; prev_m0 = False
        for t, tag in L:
            if tag:
                if prev_m0: e("s_nop 0"); n += 1
                e.vmem(t, tag); prev_m0 = False
            else:
                e(t); prev_m0 = "m0" in t
            n += 1
        return n
    def xload_instrs(s):
        L = []
        if s % 4 == 0: L.append((f"s_add_u32 s{S_XS}, s{S_XH}, {s*1024}", None))
        L.append((f"buffer_load_dwordx4 a[{4*s}:{4*s+3}], v{VL16}, s[{S_HC}:{S_HC+3}], s{S_XS} offen" + (f" offset:{(s%4)*1024}" if s % 4 else "") + xf, ("x", s)))
        return L
    if not fused:
        emit_list(xload_instrs(0))
        emit_list([(t, ("dma", 0) if d else None) for t, d in dma_instrs(0)])
        emit_list(xload_instrs(1)); emit_list(xload_instrs(2))
    else:
        e.vm = []; e.vm_done = 0; e.lg = []; e.lg_done = 0

    q = Queue(e, window=10)
    def emit_op(o, _orig=e.op):
        if callable(o.text):
            o.text(); o.pos = e.n - 1; return o
        return _orig(o)
    e.op = emit_op
    chl = [None]
    def chain(text, first_deps=()):
        prev = None
        for l in text.split("\n") if isinstance(text, str) else text:
            if isinstance(l, str):
                l = l.strip()
                if not l: continue
            deps = [(prev, 0)] if prev else list(first_deps) + ([(chl[0], 0)] if chl[0] and chl[0].pos is None else [])
            cost = 2 if isinstance(l, str) and re.match(r"v_(rcp|sqrt|exp|permlane)", l) else 1
            prev = q.add(Op(l, cost=cost, deps=deps))
        chl[0] = prev
        return prev
    e(f"s_lshl_b32 s{S_SS}, s5, 8\nv_and_b32 v{VZ}, 31, v2\nv_lshlrev_b32 v{VZ}, 3, v{VZ}\nv_lshrrev_b32 v1, 5, v2\nv_mul_u32_u24 v1, {6*16384}, v1\nv_add_u32 v{VZ}, v{VZ}, v1")
    srd(e, S_WD, 44, 4608*576*2 + 4096, -4096)
    e(f"s_xor_b32 s7, s3, 1\ns_lshl_b32 s7, s7, 9\ns_add_u32 s{S_CS}, s6, s7\ns_mul_i32 s4, s4, {144*9216}\ns_add_u32 s{S_CS}, s{S_CS}, s4")
    e(f"v_lshrrev_b32 v1, 2, v2\nv_mul_u32_u24 v{T}, 9216, v1\nv_add_u32 v{V3}, v{T}, v{TM}")
    e(f"s_lshl_b32 s4, s3, 6\ns_mul_i32 s5, s{S_WV}, {16*1152}\ns_add_u32 s5, s5, 4096\ns_add_u32 s{S_TMP}, s5, s4")
    e(f"v_mul_u32_u24 v{T}, 1152, v3\nv_add3_u32 v{VE}, v{T}, v{TM+1}, s{S_TMP}\nv_subrev_u32 v{VE+1}, {1024-128}, v{VE}\nv_subrev_u32 v{VE+2}, {2048-256}, v{VE}\nv_add_u32 v{VP1}, {8*1152-1024}, v{VE}")
    e(f"v_mul_u32_u24 v{T}, 1152, v1\nv_add_u32 v{T}, v{T}, v{TM}\ns_add_u32 s5, s5, s7")
    e(f"s_sub_u32 s7, s5, {2048+384}\nv_add_u32 v{VS}, s7, v{T}\ns_sub_u32 s7, s5, {2048+256}\nv_add_u32 v{VS+3}, s7, v{T}")
    e(f"s_sub_u32 s7, s{S_TMP}, {2048-384}\nv_add_u32 v{VS+1}, s7, v{T}\ns_sub_u32 s7, s{S_TMP}, {2048-320}\nv_add_u32 v{VS+2}, s7, v{T}")
    e(f"""s_lshr_b32 s5, s{S_J}, 1
s_mul_i32 s6, s5, {576*1152}
s_mul_i32 s7, s3, 576
s_add_u32 s6, s6, s7
s_mul_i32 s7, s3, {320*1152}
s_add_u32 s{S_OWN}, s6, s7
s_add_u32 s{S_PAR}, s6, {320*1152}
s_sub_u32 s{S_PAR}, s{S_PAR}, s7
s_lshl_b32 s7, s3, 1
s_xor_b32 s7, s7, s{S_WV}
s_sub_u32 s7, s7, s{S_WV}
s_add_u32 s7, s7, 16
s_mul_i32 s7, s7, {16*1152}
s_add_u32 s{S_SNG}, s6, s7""")
    e(f"""s_mul_i32 s5, s5, {ACT_BYTES}
s_add_u32 s5, s5, s{S_XO}
s_add_u32 s5, s5, {WS_PART}
s_mul_i32 s6, s3, {18*1024 if fused else 20*1024}
s_add_u32 s{S_PO}, s5, s6
s_lshl_b32 s6, s3, 11
s_add_u32 s6, s6, {16*1024}
s_add_u32 s{S_PS}, s5, s6""")
    e(f"""s_lshl_b32 s5, s{S_I}, 4
s_add_u32 s5, s5, s{S_J}
s_lshl_b32 s5, s5, 2
s_add_u32 s5, s5, s{S_WV}
s_xor_b32 s6, s5, 4
s_mul_i32 s{S_GW}, s5, 18432
s_mul_i32 s{S_GR}, s6, 18432
s_lshl_b32 s{S_FW}, s5, 6
s_lshl_b32 s{S_FR}, s6, 6
s_add_u32 s{S_GW}, s{S_GW}, {WS_GX}
s_add_u32 s{S_GR}, s{S_GR}, {WS_GX}
s_add_u32 s{S_FW}, s{S_FW}, {WS_FL}
s_add_u32 s{S_FR}, s{S_FR}, {WS_FL}
s_mov_b32 s{S_GO}, s{S_GW}
s_add_u32 s{S_A0}, s{S_CP}, {128 + 288*9216}
s_add_u32 s{S_A1}, s{S_CP}, {128 + 432*9216}
s_add_u32 s{S_B0}, s{S_CP}, 256
s_add_u32 s{S_B1}, s{S_CP}, {256 + 144*9216}
s_mov_b32 s{S_CNT}, 0""")
    for i in range(9): e(f"v_mov_b32 v{VB+i}, v{V1+i}")
    if wdpf:
        e(f"s_mul_i32 s5, s{S_WV}, 42\nv_add_u32 v1, s5, v2\nv_lshlrev_b32 v1, 7, v1\nv_cmp_gt_u32 s[54:55], 14, v2\nv_mov_b32 v{VPF}, 0x40000000")
        e(f"s_mul_i32 s5, s{S_I}, 18\ns_mul_i32 s6, s{S_J}, 288\ns_add_u32 s5, s5, s6\ns_mul_i32 s{S_PF}, s5, 1152\ns_add_u32 s{S_PF}, s{S_PF}, 4096\nv_cndmask_b32 v{VPF}, v{VPF}, v1, s[54:55]")

    c = 0.7978845608028654; l2e = 1.4426950408889634
    k1 = -2*c*l2e; k2 = k1*0.044715
    M = []
    for p in range(4):
        for ks in range(36):
            qq, s = ks // 9, ks % 9
            for uu in range(2):
                for mat in range(2):
                    o = (mat*18 + 2*s)*1024 + uu*512
                    M.append(dict(acc=f"v{ACC + 32*uu + 16*mat}", dst=f"v{OLD + 32*uu + 16*mat}" if ks == 35 else None, b=f"a[{4*ks}:{4*ks+3}]",
                                  first=(ks == 0), last=(ks == 35), st=4*p+qq, rd=(o, o + 1024), xs=ks if p == 0 else None, unit=2*p+uu, mat=mat, ph=1))
        t = M[-8:]; M[-8:] = [t[0], t[1], t[4], t[5], t[2], t[3], t[6], t[7]]
    for ks in range(36):
        qq, s = ks // 18, ks % 18
        for mat in range(2):
            o = (mat*18 + s)*1024
            M.append(dict(acc=f"v{ACC + 16*mat}", dst=None, b=f"a[{4*ks}:{4*ks+3}]", first=(ks == 0), last=(ks == 35), st=16+qq, rd=(o, o + 512), xs=None, unit=8, mat=mat, ph=1))
    tacc = {0: "a0", 1: "a16", 6: "a32", 2: "a48", 3: "a64", 7: "a80", 4: "a96", 5: f"v{ACC+32}", 8: f"v{ACC+48}"}
    def eoff(t):
        if t == 8: return (8*1024, 8*1024 + 512)
        cp, uu = t >> 1, t & 1
        return ((cp*1024 + uu*512, (3 + cp)*1024 + uu*512) if cp < 3 else (6*1024 + uu*512, 7*1024 + uu*512))
    lateks = [(0, w, f"v[{GT+4*w}:{GT+4*w+3}]", ("cv", 12 + w)) for w in range(4)] + [(2, w, f"v[{GS+4*w}:{GS+4*w+3}]", ("cv", 16 + w)) for w in range(2)] + \
             [(1, w, f"a[{GP3+4*w}:{GP3+4*w+3}]", ("gp", 12 + w)) for w in range(4)] + [(2, 2 + w, f"a[{GPS+4*w}:{GPS+4*w+3}]", ("gp", 16 + w)) for w in range(2)]
    parks = [(k, w, f"v[{GP+16*k+4*w}:{GP+16*k+4*w+3}]", ("gp", 4*k + w)) for k in range(3) for w in range(4)]
    for si, (ty, k) in enumerate(plan):
        if ty == "E":
            for w in range(4):
                g = (f"a[{GO+16*k+4*w}:{GO+16*k+4*w+3}]", ("go", 4*k + w)) if k < 3 else (f"v[{GP+16*(k-3)+4*w}:{GP+16*(k-3)+4*w+3}]", ("gp", 4*(k-3) + w))
                for t in range(9):
                    o = eoff(t)
                    M.append(dict(acc=tacc[t], dst=None, b=g[0], gsrc=g[1], first=(k == 0 and w == 0), last=False, st=18+si, rd=(w*9216 + o[0], w*9216 + o[1]), xs=None, tile=t, ph=2))
            continue
        ls = k
        tiles = [2*ls, 2*ls + 1, 6 + ls]
        if ty == "A": order = [(t, k_) for k_ in range(12) for t in tiles]
        elif ls == 0 and late0 == "own": order = [(t, k_) for k_ in range(6) for t in tiles] + [(t, k_) for t in tiles for k_ in range(6, 12)]
        else: order = [(t, k_) for t in tiles for k_ in range(12)]
        for t, k_ in order:
            gi, w, b, src = (lateks if ty == "B" else parks)[k_]
            base = w*9216 + gi*3072
            rd = (base + (t & 1)*512, base + 1024 + (t & 1)*512) if t < 6 else (base + 2048, base + 2048 + 512)
            M.append(dict(acc=tacc[t], dst=None, b=b, gsrc=src, first=False, last=(ty == "B" and k_ == 11), st=18+si, rd=rd, xs=None, tile=t, ph=2))
    NM = len(M); assert NM == 972
    LA = 8
    def rng(r, n=16):
        return f"{r[0]}[{int(r[1:])}:{int(r[1:])+n-1}]"

    gdone = {}; tstate = {"last": [None, None]}; pairctr = [0]
    oldbusy = {}
    memq = []
    def add_gelu(unit, gacc, uacc, mg, mu, inbody):
        gb = GS if unit == 8 else GT + 8*(unit & 1)
        for k in range(8):
            ts = pairctr[0] % 2; pairctr[0] += 1
            ta, tb = T + 2*ts, T + 2*ts + 1
            ga, gb_, ua, ub = gacc + 2*k, gacc + 2*k + 1, uacc + 2*k, uacc + 2*k + 1
            prev = tstate["last"][ts]
            d0 = [(mg, 13)] + ([(prev, 0)] if prev else [])
            sa = q.add(Op(f"v_mul_f32 v{ta}, v{ga}, v{ga}", deps=d0))
            sb = q.add(Op(f"v_mul_f32 v{tb}, v{gb_}, v{gb_}", deps=d0))
            fa = q.add(Op(f"v_fma_f32 v{ta}, v{ta}, v{VK2}, v{VK1}", deps=[(sa, 0)]))
            fb = q.add(Op(f"v_fma_f32 v{tb}, v{tb}, v{VK2}, v{VK1}", deps=[(sb, 0)]))
            aa = q.add(Op(f"v_mul_f32 v{ta}, v{ga}, v{ta}", deps=[(fa, 0)]))
            ab = q.add(Op(f"v_mul_f32 v{tb}, v{gb_}, v{tb}", deps=[(fb, 0)]))
            ea = q.add(Op(f"v_exp_f32 v{ta}, v{ta}", cost=2, deps=[(aa, 0)]))
            pa = q.add(Op(f"v_mul_f32 v{ua}, v{ga}, v{ua}", deps=[(mg, 13), (mu, 13)]))
            eb = q.add(Op(f"v_exp_f32 v{tb}, v{tb}", cost=2, deps=[(ab, 0)]))
            pb = q.add(Op(f"v_mul_f32 v{ub}, v{gb_}, v{ub}", deps=[(mg, 13), (mu, 13)]))
            da = q.add(Op(f"v_fma_f32 v{ta}, v{ta}, v{VS2}, v{VS2}", deps=[(ea, 1)]))
            db = q.add(Op(f"v_fma_f32 v{tb}, v{tb}, v{VS2}, v{VS2}", deps=[(eb, 1)]))
            ra = q.add(Op(f"v_rcp_f32 v{ta}, v{ta}", cost=2, deps=[(da, 0)]))
            rb = q.add(Op(f"v_rcp_f32 v{tb}, v{tb}", cost=2, deps=[(db, 0)]))
            ya = q.add(Op(f"v_mul_f32 v{ta}, v{ua}, v{ta}", deps=[(ra, 1), (pa, 0)]))
            yb = q.add(Op(f"v_mul_f32 v{tb}, v{ub}, v{tb}", deps=[(rb, 1), (pb, 0)]))
            cv = q.add(Op(f"v_cvt_pk_bf16_f32 v{gb + k}, v{ta}, v{tb}", deps=[(ya, 0), (yb, 0)]))
            tstate["last"][ts] = cv
            fi = 2*unit + k//4
            gdone.setdefault(fi, []).append(cv)
            oldbusy.setdefault(f"v{gacc}", []).append(cv); oldbusy.setdefault(f"v{uacc}", []).append(cv)
            if k % 4 == 3:
                r = gb + k - 3
                L = []
                if unit == 8 and k == 3: L.append((f"s_add_u32 s{S_GO}, s{S_GO}, 4096", None))
                off = (fi % 4)*1024
                L.append((f"buffer_store_dwordx4 v[{r}:{r+3}], v{VL16}, s[{S_GX}:{S_GX+3}], s{S_GO} offen" + (f" offset:{off}" if off else "") + gst, ("gs", fi)))
                if nogs and unit < 6: L = [("s_nop 0", None)]
                memq.append(dict(deps=list(gdone[fi]), L=L))
    outn = [0]
    VPS = 48; VLZ = 49; VRH = 50; VRO = 53; VRA = 3
    outbusy = [[], [], [], []]
    def add_out(t, acc, mo):
        def cv(i, deps): return q.add(Op(f"v_cvt_pk_bf16_f32 v{r+i}, v{r+2*i}, v{r+2*i+1}", deps=deps))
        prev = None; cvs = []
        if acc[0] == "a":
            bi = outn[0] % 3; outn[0] += 1
            assert all(x.get("done") for x in outbusy[bi])
            r = OLD + 16*bi; a = int(acc[1:])
            for i in range(8):
                r0 = q.add(Op(f"v_accvgpr_read_b32 v{r+2*i}, a{a+2*i}", deps=[(mo, 13)]))
                r1 = q.add(Op(f"v_accvgpr_read_b32 v{r+2*i+1}, a{a+2*i+1}", deps=[(mo, 13)]))
                prev = cv(i, [(r0, 0), (r1, 0)] + ([(prev, 0)] if prev else [])); cvs.append(prev)
        else:
            bi = None; r = int(acc[1:])
            for i in range(8):
                prev = cv(i, [(mo, 13)] + ([(prev, 0)] if prev else [])); cvs.append(prev)
        new = []
        for h in range(2):
            L = []
            if fused:
                g_, fi_ = (t - 6, 4 + h) if t >= 6 else (t >> 1, 2*(t & 1) + h)
                if fi_ == 0: L.append((f"s_add_u32 s{S_TMP}, s{S_PO}, {g_*6144}", None))
                L.append((f"buffer_store_dwordx4 v[{r+4*h}:{r+4*h+3}], v{VPS}, s[{S_PT}:{S_PT+3}], s{S_TMP} offen" + (f" offset:{fi_*128}" if fi_ else "") + store_flags, ("store", g_)))
                x = dict(deps=[cvs[4*h+3]], L=L); memq.append(x); new.append(x)
                continue
            so = S_PS if t == 8 else S_TMP
            if t != 8 and h == 0: L.append((f"s_add_u32 s{S_TMP}, s{S_PO}, {t*2048}", None))
            L.append((f"buffer_store_dwordx4 v[{r+4*h}:{r+4*h+3}], v{VL16}, s[{S_PT}:{S_PT+3}], s{so} offen" + (f" offset:1024" if h else "") + store_flags, ("store", t - 6 if t >= 6 else t >> 1)))
            x = dict(deps=[cvs[4*h+3]], L=L); memq.append(x); new.append(x)
        if bi is not None: outbusy[bi] = new
    def pop_mem():
        y = memq.pop(0); y["done"] = True
        return emit_list(y["L"])
    def mem_ready():
        return memq and all(d.pos is not None for d in memq[0]["deps"])
    def reads(m):
        d = M[m]; fr = FR + 4*(m % 12); vb = TRB + d["st"] % 4
        e.ds(f"ds_read_b64_tr_b16 a[{fr}:{fr+1}], v{vb} offset:{d['rd'][0]}", m)
        e.ds(f"ds_read_b64_tr_b16 a[{fr+2}:{fr+3}], v{vb} offset:{d['rd'][1]}", m)

    early = []
    for s_ in range(0 if fused else 3, 36): early.append((4*s_ - (4 if s_ == 35 else 0), xload_instrs(s_)))
    for st in (() if fused else (1, 2, 3)):
        grp = []; k = 0
        for t, isd in dma_instrs(st):
            grp.append((t, ("dma", st) if isd else None))
            if isd:
                early.append((36*st - 8 - 3*(8-k) - 1, grp)); grp = []; k += 1
    for g in range(6):
        early.append((112 + g, [(f"s_add_u32 s{S_TMP}, s{S_SS}, {WS_ST + g*16384}", None),
                                (f"buffer_load_dwordx2 v[{TM+2+2*g}:{TM+3+2*g}], v{VZ}, s[{S_ST}:{S_ST+3}], s{S_TMP} offen" + xf, "st")]))
    early.sort(key=lambda x: x[0])
    def emit_early():
        return emit_list(early.pop(0)[1])
    def stats_ops():
        b = TM + 2
        inv = hex(f2u(1.0/576))
        txt = [lambda: e.wait_vm(lambda t: t == "st")] + f"""v_add_f32 v{b}, v{b}, v{b+2}
v_add_f32 v{b+1}, v{b+1}, v{b+3}
v_add_f32 v{b+4}, v{b+4}, v{b+6}
v_add_f32 v{b+5}, v{b+5}, v{b+7}
v_add_f32 v{b+8}, v{b+8}, v{b+10}
v_add_f32 v{b+9}, v{b+9}, v{b+11}
v_add_f32 v{b}, v{b}, v{b+4}
v_add_f32 v{b+1}, v{b+1}, v{b+5}
v_add_f32 v{b}, v{b}, v{b+8}
v_add_f32 v{b+1}, v{b+1}, v{b+9}
v_mov_b32 v{b+2}, v{b}
v_mov_b32 v{b+3}, v{b+1}
v_mov_b32 v{VONE}, 1
v_mov_b32 v{VONE+1}, 2
v_permlane32_swap_b32 v{b}, v{b+2}
v_permlane32_swap_b32 v{b+1}, v{b+3}
v_mov_b32 v{VZ}, 0
v_add_f32 v{b}, v{b}, v{b+2}
v_add_f32 v{b+1}, v{b+1}, v{b+3}
v_mul_f32 v{b}, {inv}, v{b}
v_mul_f32 v{b+1}, {inv}, v{b+1}
v_fma_f32 v{b+1}, -v{b}, v{b}, v{b+1}
v_max_f32 v{b+1}, 0, v{b+1}
v_cvt_pk_bf16_f32 v{b+1}, v{b+1}, v{b+1}
v_and_b32 v{b+1}, 0xffff0000, v{b+1}
v_add_f32 v{b+1}, {hex(f2u(1e-5))}, v{b+1}
v_cvt_pk_bf16_f32 v{b+1}, v{b+1}, v{b+1}
v_and_b32 v{b+1}, 0xffff0000, v{b+1}
v_sqrt_f32 v{b+1}, v{b+1}
s_nop 0
v_cvt_pk_bf16_f32 v{b+1}, v{b+1}, v{b+1}
v_and_b32 v{b+1}, 0xffff0000, v{b+1}
v_rcp_f32 v{b}, v{b+1}
v_mul_f32 v{VS2}, v{b+1}, v{b+1}
v_mul_f32 v{VK1}, {hex(f2u(k1))}, v{b}
v_mul_f32 v{b+1}, v{b}, v{b}
v_mul_f32 v{b}, {hex(f2u(k2))}, v{b}
v_mul_f32 v{VK2}, v{b}, v{b+1}""".split("\n")
        chain(txt)
    spins = []; tails = []
    def poll_check(val, name):
        e.wait_vm(lambda t: t == "poll" + name)
        e(f"v_readfirstlane_b32 s{S_TMP}, v{VF}\ns_nop 1\ns_cmp_ge_u32 s{S_TMP}, {val}\ns_cbranch_scc0 K3_spin{name}\nK3_ret{name}:")
        spins.append((name, val))
    def gload(kind, fi):
        L = []
        base = S_GW if kind == "go" else S_GR
        if fi % 4 == 0: L.append((f"s_add_u32 s{S_XS}, s{base}, {fi*1024}", None))
        if kind == "go": dst = f"a[{GO+4*fi}:{GO+4*fi+3}]"
        elif fi < 12: dst = f"v[{GP+4*fi}:{GP+4*fi+3}]"
        elif fi < 16: dst = f"a[{GP3+4*(fi-12)}:{GP3+4*(fi-12)+3}]"
        else: dst = f"a[{GPS+4*(fi-16)}:{GPS+4*(fi-16)+3}]"
        L.append((f"buffer_load_dwordx4 {dst}, v{VL16}, s[{S_GX}:{S_GX+3}], s{S_XS} offen" + (f" offset:{(fi%4)*1024}" if fi % 4 else "") + (old if kind == "go" else gld), (kind, fi)))
        return L
    ldq = []
    def flag_store(val):
        e.vmem(f"buffer_store_dword v{VONE+val-1}, v{VZ}, s[{S_FL}:{S_FL+3}], s{S_FW} offen sc0 sc1", "flag")
    def poll_issue(name):
        e.vmem(f"buffer_load_dword v{VF}, v{VZ}, s[{S_FL}:{S_FL+3}], s{S_FR} offen sc0 sc1", "poll" + name)
    actions = {}
    def act1():
        e.wait_vm(lambda t: t and t[0] == "gs" and t[1] < 12); flag_store(1); return 3
    actions[f1[0]] = act1
    actions[f1[1]] = lambda: poll_issue("A") or 2
    actions[f1[2]] = lambda: poll_check(1, "A") or ldq.extend(gload("gp", fi) for fi in range(12)) or 5
    def act2pre():
        q.drain()
        while memq: pop_mem()
        return 1
    def act2():
        e.wait_vm(lambda t: t and t[0] == "gs"); flag_store(2); return 2
    actions[f2[0]] = act2pre
    actions[f2[1]] = act2
    actions[f2[2]] = lambda: poll_issue("B") or 1
    actions[f2[3]] = lambda: poll_check(2, "B") or ldq.extend(gload("gp", fi) for fi in range(12, 18)) or 5

    def apoll(sreg, val=0):
        return f"v_mov_b32 v{VF}, {val}\nbuffer_atomic_add v{VF}, v{VLZ}, s[{S_FL}:{S_FL+3}], s{sreg} offen sc0 sc1"
    if not fused:
        emit_early(); emit_early(); emit_early()
        e.wait_vm(lambda t: t == ("dma", 0))
        e("s_barrier")
        for m in range(LA): reads(m)
        emit_early(); emit_early()
    else:
        e(f"s_lshl_b32 s5, s{S_I}, 2\ns_add_u32 s5, s5, s{S_WV}\ns_lshl_b32 s24, s5, 8\ns_add_u32 s24, s24, {WS_FA}")
        e(f"v_cmp_eq_u32 vcc, 0, v2\nv_mov_b32 v{VONE}, 1\nv_mov_b32 v1, 0x40000000\nv_cndmask_b32_e64 v{VLZ}, v1, 0, vcc")
        tm.stamp(-10)
        e(f"s_waitcnt vmcnt({fused['nleft']})")
        tm.stamp("A0")
        e(f"s_cmp_lt_i32 s23, 0\ns_cbranch_scc1 K3_ns\nbuffer_atomic_add v{VONE}, v{VLZ}, s[{S_FL}:{S_FL+3}], s23 offen sc1\nK3_ns:")
        e("s_barrier")
        ps = fused.get("pre_stages", 2); nrem = 9*(4 - ps)
        LL = [(t, ("dma", st) if d else None) for st in range(ps, 4) for t, d in dma_instrs(st)]
        k_ = [i for i, (t, d) in enumerate(LL) if d][na-1] + 1
        emit_list(LL[:k_])
        for m in range(LA): reads(m)
        e(f"""s_and_b32 s6, s{S_J}, 1
s_lshl_b32 s25, s5, 1
s_add_u32 s25, s25, s6
s_lshl_b32 s25, s25, 8
s_add_u32 s25, s25, {WS_FB}
s_lshr_b32 s7, s{S_J}, 1
s_mul_i32 s48, s7, 768
s_mul_i32 s4, s6, {18*1024}
s_add_u32 s48, s48, s4
s_add_u32 s48, s48, s{S_XO}
s_lshl_b32 s7, s7, 2
v_cmp_lt_u32 vcc, 31, v2
v_cmp_gt_u32 s[54:55], 48, v2
v_bfe_u32 v{T}, v2, 2, 3
v_mul_u32_u24 v{VPS}, 768, v{T}
v_lshrrev_b32 v{T}, 5, v2
v_lshl_add_u32 v{VPS}, v{T}, 6, v{VPS}
v_and_b32 v{T}, 3, v2
v_lshl_add_u32 v{VPS}, v{T}, 4, v{VPS}
v_lshrrev_b32 v{T}, 3, v2
v_bfe_u32 v{T+1}, v2, 2, 2
v_cndmask_b32_e64 v{T}, v{T}, v{T+1}, vcc
v_bfe_u32 v{T+1}, v2, 1, 2
v_bfe_u32 v{T+2}, v2, 1, 1
v_add_u32 v{T+2}, 4, v{T+2}
v_cndmask_b32_e64 v{T+1}, v{T+1}, v{T+2}, vcc
v_and_b32 v{T+2}, 1, v2
v_lshlrev_b32 v{VRA}, 4, v{T}
v_lshl_add_u32 v{VRA}, v{T+2}, 6, v{VRA}
v_lshl_add_u32 v{VRA}, v{T+1}, 7, v{VRA}
v_cndmask_b32 v{VRA}, v1, v{VRA}, s[54:55]
v_add_u32 v{T}, s7, v{T}
v_mul_u32_u24 v{T+3}, 1152, v{T}
v_lshl_add_u32 v{T+3}, v{T+2}, 4, v{T+3}
v_lshl_add_u32 v{T}, v{T+2}, 5, v{T}
v_lshlrev_b32 v{T}, 4, v{T}
v_cndmask_b32 v{T}, v1, v{T}, s[54:55]
v_cndmask_b32 v{T+3}, v1, v{T+3}, s[54:55]
s_mul_i32 s7, s6, 20
v_add_u32 v{T+1}, s7, v{T+1}
s_mul_i32 s6, s6, -18
s_add_u32 s6, s6, 12
v_mov_b32 v1, s6""" + "".join(f"""
v_cndmask_b32_e64 v{T+2}, {4*g}, {('v1' if g == 2 else 8 + 2*g)}, vcc
v_add_u32 v{T+2}, v{T+2}, v{T+1}
v_lshl_add_u32 v{VRH+g}, v{T+2}, 10, v{T}
v_lshl_add_u32 v{VRO+g}, v{T+2}, 5, v{T+3}""" for g in range(3)))
        if ctouch:
            e(f"s_getpc_b64 s[6:7]\nK3_pc:\ns_add_u32 s6, s6, K3_pdA-K3_pc\ns_addc_u32 s7, s7, 0\ns_lshr_b32 s4, s2, 3\ns_lshl_b32 s4, s4, 2\ns_add_u32 s4, s4, s{S_WV}\ns_lshl_b32 s4, s4, 8")
            e(f"v_and_b32 v2, 1, v2\nv_lshlrev_b32 v2, 7, v2\nv_add_u32 v2, s4, v2\nv_min_u32 v2, KB_last-K3_pdA, v2")
        tm.stamp("A1")
        e(apoll(24))
        emit_list(LL[k_:])
        rd = f"v_readfirstlane_b32 s5, v{VF}\ns_nop 1"
        e(f"s_waitcnt vmcnt({nrem-na})\n{rd}\ns_cmp_ge_u32 s5, 12\ns_cbranch_scc1 K3_pdA\nK3_plA:\n{apoll(24)}\ns_waitcnt vmcnt(0)\n{rd}")
        e(f"s_cmp_ge_u32 s5, 12\ns_cbranch_scc1 K3_pdA\ns_cmp_lg_u32 s5, 0\ns_cbranch_scc1 K3_plA\ns_sleep {slp}\ns_branch K3_plA\nK3_pdA:")
        tm.stamp(-11)
        e.vm = [("dma", k//9) for k in range(36)]; e.vm_done = 9*ps + na
        for _ in range(8): emit_early()
        for m_ in ctouch:
            actions[m_] = lambda: e.vmem(f"global_load_dword v1, v2, s[6:7]", "ct") and 2
        HR = OLD + 48
        def hl(k):
            if k == 0: e(f"s_add_u32 s{S_XS}, s{S_XO}, {WS_HT}")
            e.vmem(f"buffer_load_dwordx4 v[{HR+4*k}:{HR+4*k+3}], v{VRH+k}, s[{S_HC}:{S_HC+3}], s{S_XS} offen sc0 sc1", "h"); return 2
        for k in range(3): actions[hpre + 4*k] = (lambda k=k: hl(k))
        PBR = [ACC, GP, OLD]
        sj = lambda j: [28, 29, 30, 32, 33, 38, 39, 21][j]
        def sjinit(j): e(f"s_add_u32 s{sj(j)}, s48, {WS_PART + j*ACT_BYTES}"); return 1
        for j in range(NPART): actions[660 + 2*j + 1] = (lambda j=j: sjinit(j))
        actions[680] = lambda: e(f"v_add_u32 v{V1}, 6144, v{VRA}\nv_add_u32 v{V1+1}, 12288, v{VRA}") or 2
        actions[682] = lambda: e(f"v_mov_b32 v{V1+2}, 0x100") or 1
        vra = [VRA, V1, V1 + 1]
        def pload(k, j):
            r = PBR[k] + 4*j
            return [(f"buffer_load_dwordx4 v[{r}:{r+3}], v{vra[k]}, s[{S_HC}:{S_HC+3}], s{sj(j)} offen sc0 sc1", (k, j))]
        def sigB(g):
            assert sum(1 for t in e.vm if t == ("store", g)) == 6
            e.wait_vm(lambda t: t == ("store", g))
            e.vmem(f"buffer_atomic_add v{VONE if g == 0 else V1+2}, v{VLZ}, s[{S_FL}:{S_FL+3}], s25 offen sc1", "flag"); return 3
        def chk(g): return f"s_bfe_u32 s4, s5, {hex(8*g | 0x80000)}\ns_cmp_eq_u32 s4, 8"
        def pollB():
            e(f"v_mov_b32 v{VF}, 0"); e.vmem(f"buffer_atomic_add v{VF}, v{VLZ}, s[{S_FL}:{S_FL+3}], s25 offen sc0 sc1", "plb"); return 3
        def checkB(g):
            e.wait_vm(lambda t: t == "plb")
            e(f"{rd}\n{chk(g)}\ns_cbranch_scc0 K3_S{g}\nK3_R{g}:")
            tails.append(f"K3_S{g}:\n{apoll(25)}\ns_waitcnt vmcnt(0)\n{rd}\n{chk(g)}\ns_cbranch_scc0 K3_S{g}\ns_branch K3_R{g}")
            ldq.extend(pload(g, j) for j in range(NPART)); return 5
        if sig0: actions[sig0] = lambda: sigB(0)
        if sig1: actions[sig1] = lambda: sigB(1)
        if pol0:
            actions[pol0[0]] = pollB; actions[pol0[1]] = lambda: checkB(0)
    lastm = {}
    e.wait_lg(lambda t: t <= 3)
    B0, B1, HD = 136, 568, hd
    st8 = dict(dmaq=[], dma_st=None, stats=False, lastld=-100, qempty=None)
    godone = {}
    def moves(p):
        prev = None
        for i in range(16):
            prev = q.add(Op(f"v_accvgpr_write_b32 a{GO+16*p+i}, v{GT+i}", deps=[(prev, 0)] if prev else []))
            godone.setdefault(4*p + i//4, []).append(prev)
        return prev
    def dma_due(m, mr, left, dmaq):
        if m < B0 or dsp == 0: return mr % 2 == 1 or len(dmaq) >= left//2 + 1
        if len(dmaq) >= left: return True
        nd = sum(1 for _, isd in dmaq if isd)
        if not dmaq[0][1]:
            return nd == 0 or left <= (nd - 1)*dsp + dtail + 2
        return left <= (nd - 1)*dsp + dtail
    def gap(m, inbody, fillall=False):
        d = M[m]
        dmaq = st8["dmaq"]
        deps = []
        if d["xs"] is not None and m < B0:
            while not any(t == ("x", d["xs"]) for t in e.vm): emit_early()
            e.wait_vm(lambda t: t == ("x", d["xs"]))
        if d["ph"] == 2:
            kind, fi = d["gsrc"]
            if kind == "cv":
                for o in gdone[fi]:
                    if o.pos is None: q.drain_until(o)
                    deps.append((o, 2))
            elif kind == "gp":
                while not any(t == (kind, fi) for t in e.vm):
                    assert ldq, (m, kind, fi)
                    emit_list(ldq.pop(0))
                e.wait_vm(lambda t: t == (kind, fi))
        if d["dst"]:
            for o in oldbusy.get(d["dst"], []):
                if o.pos is None: q.drain_until(o)
            oldbusy[d["dst"]] = []
        fr = FR + 4*(m % 12)
        cs = "0" if d["first"] else rng(d["acc"])
        mo = e.op(Op(f"v_mfma_f32_32x32x16_bf16 {rng(d['dst'] or d['acc'])}, a[{fr}:{fr+3}], {d['b']}, {cs}", deps=deps))
        used = 0
        if timing and not fillall: tm.stamp(m) if fused else (tm.stamp(STAMPS.index(m)) if m in STAMPS else None)
        if d["last"]:
            if d["ph"] == 1:
                lastm[(d["unit"], d["mat"])] = mo
                if d["mat"] == 1:
                    a = int((d["dst"] or d["acc"])[1:])
                    pend_gelu.append((d["unit"], a - 16, a, lastm[(d["unit"], 0)], mo))
            else:
                add_out(d["tile"], d["acc"], mo)
        if not fillall:
            while pend_gelu: add_gelu(*pend_gelu.pop(0), inbody)
        mr = m + LA
        isbar = mr < NM and mr % 36 == 0
        if isbar:
            st = mr // 36
            assert not dmaq
            while st <= 3 and sum(1 for t in e.vm if t == ("dma", st)) < 9: emit_early()
            if e.wait_vm(lambda t: t == ("dma", st)): used += 1
            e("s_barrier"); used += 2
            if 4 <= st + 2 < NST:
                dmaq.extend(dma_instrs(st + 2, inbody)); st8["dma_st"] = st + 2
        if mr < NM:
            reads(mr); used += 2
        if not isbar and not fillall:
            early_dma = any(tag and tag[0] == "dma" for _, L in early for _, tag in L)
            left = 35 - mr % 36
            if m < B0 and dmaq and not early_dma and not dmaq[0][1]:
                while dmaq and not dmaq[0][1]:
                    e(dmaq.pop(0)[0]); used += 1
                if early and early[0][0] - lead <= m: used += emit_early()
            elif early and (early[0][0] - lead <= m or (early_dma and dmaq)) and not (dmaq and not early_dma and len(dmaq) >= left - 2):
                used += emit_early()
            elif dmaq and not early_dma and dma_due(m, mr, left, dmaq) and not (m in actions and len(dmaq) < left):
                t, isd = dmaq.pop(0)
                if isd: e.vmem(t, ("dma", st8["dma_st"])); used += vcost
                else: e(t); used += 1
            elif m in actions:
                pass
            elif wdpf and B0 <= m < B1 and m % 144 == 60:
                e.vmem(f"buffer_load_dword v1, v{VPF}, s[{S_WD}:{S_WD+3}], s{S_PF} offen", "pf")
                e(f"s_add_u32 s{S_PF}, s{S_PF}, {14*128}"); used += 1 + vcost
            elif mem_ready():
                used += pop_mem() + vcost - 1
            elif ldq and m - st8["lastld"] >= (ldpace if m < f2[3] else 2):
                used += emit_list(ldq.pop(0)) + vcost - 1; st8["lastld"] = m
        if m in actions and not fillall:
            used += actions[m]()
        if not st8["stats"] and sum(1 for t in e.vm if t == "st") == 6 and m >= 112:
            stats_ops(); st8["stats"] = True
        needwait = (m + 1) % 4 == 0 and m + 1 < NM
        bud = (bud2 if 576 <= m < f2[0] else budget) - used - (1 if needwait else 0)
        if B0 <= m < B1:
            rem = sum(o.cost for o in q.q); gl = 144 - (m - B0) % 144
            if rem > slack*gl: bud += 1
        if fillall: bud += 1
        if bud > 0: q.fill(bud)
        if m > 650 and not q.q and st8["qempty"] is None: st8["qempty"] = m
        if needwait: e.wait_lg(lambda t: t <= m + 4)
    pend_gelu = []
    def endpair():
        q.drain()
        while memq: pop_mem()
        assert not st8["dmaq"]
    def head(m0, p, extra=""):
        if p >= 0:
            chain(f"s_add_u32 s{S_GO}, s{S_GO}, 4096\n" + extra)
            moves(p)
        for m in range(m0, m0 + HD): gap(m, True, fillall=True)
        q.drain()
    for m in range(B0): gap(m, False)
    while early: emit_early()
    endpair()
    e.wait_vm(lambda t: t and t[0] == "x")
    mb = B1 - 144
    def seed():
        e.vm = [("dma", 12)]*9 + [("dma", 13)]*9; e.vm_done = 0
        e.lg = [mb + k//2 for k in range(16)]; e.lg_done = 8
        st8["dmaq"].clear(); pend_gelu.clear()
    main_lines = e.lines; e.lines = []
    for p, extra in ((0, ""), (1, f"s_mov_b32 s{S_B0}, s{S_CS}\ns_add_u32 s{S_B1}, s{S_CS}, {288*9216}\nv_mov_b32 v{VB}, v{V3}\n" +
                      "\n".join(f"v_add_u32 v{VB+i}, {16*i*9216 - (i%3)*1024}, v{V3}" for i in range(1, 9)))):
        e(f"K3_head{p}:")
        if fused: tm.stamp(-1-p)
        elif -1-p in STAMPS: tm.stamp(STAMPS.index(-1-p))
        seed(); head(mb, p, extra)
        e("s_branch K3_body")
    side_lines = e.lines; e.lines = main_lines
    seed(); head(mb, -1)
    e(".p2align 3\nK3_body:")
    tstate["last"] = [None, None]
    actions[mb + 40] = lambda: e(f"s_add_u32 s{S_CNT}, s{S_CNT}, 1") or 1
    for m in range(mb + HD, B1): gap(m, True)
    endpair()
    e(f"s_cmp_eq_u32 s{S_CNT}, 1\ns_cbranch_scc1 K3_head0\ns_cmp_eq_u32 s{S_CNT}, 2\ns_cbranch_scc1 K3_head1")
    chain(f"s_add_u32 s{S_GO}, s{S_GO}, 4096")
    lastmv = moves(2)
    tstate["last"] = [lastmv, lastmv]
    for m in range(B1, NM): gap(m, False)
    while q.q or memq:
        if mem_ready(): pop_mem()
        else: q.drain_until(q.q[0])
    if fused:
        tm.stamp(-12)
        while ldq: emit_list(ldq.pop(0))
        if sig1: pollB()
        srd(e, S_W, 26, ACT_BYTES)
        e(f"v_mov_b32 v14, 0x3f80\nv_mov_b32 v15, 0x3f800000\ns_mov_b32 s54, 0xaaaaaaaa\ns_mov_b32 s55, 0xaaaaaaaa")
        def loads(k):
            for j in range(NPART): emit_list(pload(k, j))
        AC = 28
        def red(k):
            H = HR + 4*k; O_ = 16 + 4*k
            for j in range(NPART):
                e.wait_vm(lambda t: t == (k, j))
                for d in range(4):
                    r = PBR[k] + 4*j + d
                    if j == 0: e(f"v_lshlrev_b32 v{AC+2*d}, 16, v{r}\nv_and_b32 v{AC+1+2*d}, 0xffff0000, v{r}")
                    else: e(f"v_dot2c_f32_bf16 v{AC+2*d}, v{r}, v14\nv_dot2c_f32_bf16 v{AC+1+2*d}, v{r}, v15")
            e("s_nop 1")
            for d in range(4): e(f"v_cvt_pk_bf16_f32 v{O_+d}, v{AC+2*d}, v{AC+1+2*d}")
            for d in range(4): e(f"v_lshlrev_b32 v{AC+2*d}, 16, v{H+d}\nv_and_b32 v{AC+1+2*d}, 0xffff0000, v{H+d}")
            for d in range(4): e(f"v_dot2c_f32_bf16 v{AC+2*d}, v{O_+d}, v14\nv_dot2c_f32_bf16 v{AC+1+2*d}, v{O_+d}, v15")
            e("s_nop 1")
            for d in range(4): e(f"v_cvt_pk_bf16_f32 v{O_+d}, v{AC+2*d}, v{AC+1+2*d}")
            e("s_nop 0")
            for d in range(4): e(f"v_mov_b32_dpp v{AC+d}, v{O_+d} quad_perm:[1,0,3,2] row_mask:0xf bank_mask:0xf")
            for d in range(2): e(f"v_cndmask_b32 v{O_+d}, v{O_+d}, v{AC+2+d}, s[54:55]\nv_cndmask_b32 v{O_+2+d}, v{AC+d}, v{O_+2+d}, s[54:55]")
        def ostore(k):
            e.vmem(f"buffer_store_dwordx4 v[{16+4*k}:{19+4*k}], v{VRO+k}, s[{S_W}:{S_W+3}], s{S_XO} offen{of}", "o")
        if not sig0: sigB(0)
        e(f"v_mov_b32 v1, 0x10000")
        own = 0x10000
        if not sig1:
            e(f"v_mov_b32 v{VF}, 0x100"); own = 0x10100
            e.wait_vm(lambda t: t == ("store", 1))
            e.vmem(f"buffer_atomic_add v{VF}, v{VLZ}, s[{S_FL}:{S_FL+3}], s25 offen sc0 sc1", "plb")
        e.wait_vm(lambda t: t == ("store", 2))
        e.vmem(f"buffer_atomic_add v1, v{VLZ}, s[{S_FL}:{S_FL+3}], s25 offen sc0 sc1", "pl2")
        tm.stamp("B0")
        e.wait_vm(lambda t: t == "plb")
        e(f"{rd}\ns_add_u32 s5, s5, {hex(own)}")
        g0 = 1 if pol0 else 0
        for g in range(g0, 3):
            e(chk(g) + f"\ns_cbranch_scc1 K3_L{g}")
            e(f"s_waitcnt vmcnt({8*(g-g0)})\nv_readfirstlane_b32 s7, v1\ns_nop 1\ns_add_u32 s7, s7, 0x10000\ns_max_u32 s5, s5, s7\n{chk(g)}\ns_cbranch_scc1 K3_L{g}")
            e(f"K3_P{g}:\n{apoll(25)}\ns_waitcnt vmcnt(0)\n{rd}\n{chk(g)}\ns_cbranch_scc0 K3_P{g}\nK3_L{g}:")
            tm.stamp(["B1", "B2", -13][g])
            loads(g)
            if g == 1 and pol0: red(0)
        if not pol0: red(0)
        ostore(0); red(1); ostore(1); red(2); ostore(2)
    tm.end("K3_end")
    e("K3_end:\ns_endpgm")
    e.lines += side_lines
    for name, val in spins:
        e(f"""K3_spin{name}:
buffer_load_dword v{VF}, v{VZ}, s[{S_FL}:{S_FL+3}], s{S_FR} offen sc0 sc1
s_waitcnt vmcnt(0)
v_readfirstlane_b32 s{S_TMP}, v{VF}
s_nop 1
s_cmp_ge_u32 s{S_TMP}, {val}
s_cbranch_scc0 K3_spin{name}
s_branch K3_ret{name}""")
    for t_ in tails: e(t_)
    if fused: e("KB_last:\ns_endpgm")
    e(f"; gelu queue empty at gap {st8['qempty']}")
    return e.text()
if __name__ == "__main__":
    t = gen_k3()
    print(t)
```

```python
from sched import *
from layout import *
from k3 import srd, f2u, SLOT
from k1 import mask64, smask, BIG, LBIG, slice_of_xcd
from kf1 import KVB, S_WS_, S_WO, S_X, S_RT, S_CG, S_WV, S_WL, S_SIG, WSL
import math
MXC = KVB + 4*12288

def gen_f2(e, tm, F, left, C=2, prefetch=True, p1=11, dp=14, slp=4, pf2=(2, 7, 3, 8), npre=44, nw1=24, lead_=1.25, nbar=9, lsp=3, xe=1):
    A = 24; O = 112; ADR = 112; RAW = 184; RD = 148; NR = 164; MIX = 180; GB = 184; ACC = 232
    VL16 = 4; TB = 8; VXA = 10; VST = 11; VSA = 12; VMX = 15; VD = 18; VLZ = 21; VF = 22
    XT = 232; XA = 200; MN = 212
    PQ = 0; WFR = 72; WB = 180
    S_RB = 35; S_WS = 36
    W = f"s[{S_WS_}:{S_WS_+3}]"
    sf = " sc0 sc1"
    lg = lambda x: int(math.log2(x))
    e.vm = []; e.vm_done = 0; e.lg = []; e.lg_done = 0
    e("s_load_dwordx4 s[12:15], s[0:1], 32\ns_load_dwordx4 s[40:43], s[0:1], 48")
    left = list(left); nl = len(left)
    def lissue(n):
        for _ in range(n):
            if left:
                pre, t_, _ = left.pop(0)
                for p in pre: e(p)
                e(t_)
    e(f"""s_mul_i32 s{S_RB}, s{S_WV}, 12288
s_add_u32 s{S_RB}, s{S_RB}, {KVB}
s_mul_i32 s24, s{S_WV}, 12160
v_lshlrev_b32 v{VL16}, 4, v2
s_lshr_b32 s5, s{S_WV}, 1
s_lshl_b32 s6, s{S_RT}, 1
s_add_u32 s{S_WS}, s6, s5
s_lshl_b32 s5, s{S_WS}, 2
s_add_u32 s5, s5, s{S_WV}
s_xor_b32 s6, s5, 4
s_mul_i32 s25, s5, 9216
s_mul_i32 s26, s6, 9216
s_lshl_b32 s45, s{S_WV}, 5
s_add_u32 s45, s45, s{S_RT}
s_lshl_b32 s45, s45, 7
s_add_u32 s45, s45, {WS_FK}
v_cmp_eq_u32 vcc, 0, v2
v_mov_b32 v1, {BIG}
v_mov_b32 v{VF}, 1
v_cndmask_b32_e64 v{VLZ}, v1, 0, vcc""")
    e(f"v_and_b32 v13, 15, v2\nv_lshrrev_b32 v14, 4, v2\nv_mul_u32_u24 v3, 80, v13\nv_lshl_add_u32 v3, v14, 4, v3\nv_add_u32 v3, s{S_RB}, v3\nv_mov_b32 v16, {LBIG}")
    e(f"v_and_b32 v1, 3, v13\nv_mul_u32_u24 v17, 9, v1\nv_lshrrev_b32 v17, 1, v17\nv_sub_u32 v17, v14, v17\nv_lshlrev_b32 v17, 4, v17\nv_mul_u32_u24 v1, 1520, v1\nv_add3_u32 v17, v17, v1, s{S_RB}")
    frags = []; na = [0]; prep = []
    def addr(base, m):
        if m == 0: return None
        r = ADR + na[0]; na[0] += 1
        prep.append((r, base, m))
        return r
    zf = []
    for c, T0s in ((0, (0, 2, 4)), (1, (4, 6, 7))):
        for T0 in T0s:
            L = []
            for jj in range(2):
                T = T0 + jj
                def valid(l):
                    if c == 1 and T0 == 7 and jj == 0: return False
                    hs = 4*c + (l & 3); g = l >> 4
                    return 0 <= 4*T + g - (9*hs)//2 < 5
                L.append((addr(17, mask64(valid)), c*(4*1520 - 18*16) + 18*80 + 64*T))
            zf.append((c, T0, len(frags))); frags.append(L)
    numf = {}
    for h in range(8):
        for j in (h, h + 1):
            L = []
            for jj in range(2):
                def valid(l):
                    m, g = l & 15, l >> 4
                    return 0 <= 16*j + m - 18*h < 18 and 0 <= g + 4*jj - (h >> 1) < 5
                L.append((addr(3, mask64(valid)), h*1520 + (16*j - 18*h)*80 + (4*jj - (h >> 1))*16))
            numf[(j, h)] = len(frags); frags.append(L)
    def doprep(n):
        for _ in range(n):
            if prep:
                r, base, m = prep.pop(0)
                smask(e, 48, m); e(f"v_cndmask_b32 v{r}, v16, v{base}, s[48:49]")
    ng = 16 // C
    e(f"s_and_b32 s5, s{S_WV}, 1\ns_mul_i32 s59, s5, 96")
    e(f"v_lshrrev_b32 v1, 5, v2\nv_lshl_add_u32 v1, v1, 4, v13\nv_and_b32 v244, 1, v14")
    e(f"v_mul_u32_u24 v{VXA}, 1152, v1\nv_lshl_add_u32 v{VXA}, v244, 4, v{VXA}")
    e(f"v_lshlrev_b32 v{VST}, 4, v1\nv_lshl_add_u32 v{VST}, v244, 9, v{VST}")
    e(f"v_cmp_eq_u32 s[48:49], 0, v244\nv_lshlrev_b32 v{VSA}, 3, v1\nv_lshlrev_b32 v{VMX}, 2, v1\nv_mov_b32 v1, {BIG}\nv_cndmask_b32 v{VSA}, v1, v{VSA}, s[48:49]")
    e(f"s_mul_i32 s51, s{S_WS}, 36864\ns_mul_i32 s5, s{S_CG}, 192\ns_add_u32 s5, s5, s59\ns_add_u32 s50, s51, s5")
    e(f"v_mul_u32_u24 v244, 80, v14\ns_mul_i32 s27, s{S_WV}, 320\ns_add_u32 s27, s27, {WS_WB}\ns_lshl_b32 s28, s{S_WS}, 7\ns_add_u32 s28, s28, {WS_MX}")
    e(f"v_lshrrev_b32 v245, 2, v2\nv_mul_u32_u24 v245, 192, v245\nv_and_b32 v{TB}, 3, v2\nv_lshl_add_u32 v245, v{TB}, 3, v245")
    e(f"s_add_u32 s7, s{S_WL}, s59\nv_add_u32 v{TB}, s7, v245\ns_add_u32 s7, s{S_WL}, 96\ns_sub_u32 s7, s7, s59\nv_add_u32 v{TB+1}, s7, v245\nv_add_u32 v{VD}, {2*SLOT}, v{TB}\nv_add_u32 v{VD+1}, {2*SLOT}, v{TB+1}")
    doprep(npre)
    e(f"s_waitcnt vmcnt(0)")
    tm.stamp(0)
    e(f"s_barrier\nbuffer_atomic_add v{VF}, v23, {W}, s{S_SIG} offen sc1")
    wr = []
    for ks in range(5):
        for ct in range(6):
            r = WFR + 24*ks + (4 if ks < 4 else 2)*ct
            for i in range(2 if ks < 4 else 1):
                T_ = 2*ks + i; sl = WSL[T_//3]
                wr.append((T_, f"ds_read_b64_tr_b16 a[{r+2*i}:{r+2*i+1}], v{(TB if sl < 2 else VD) + ct//3} offset:{(sl % 2)*SLOT + (T_%3)*3072 + (ct%3)*32}"))
    alu = f"""s_and_b32 s3, s2, {ng-1}
s_lshl_b32 s3, s3, {lg(C)}
s_bfe_u32 s44, s2, {hex(3 | (lg(C) << 16))}
s_add_u32 s3, s3, s44
s_mul_i32 s30, s3, 576
s_and_b32 s3, s3, 1
s_xor_b32 s39, s3, 1
s_lshl_b32 s39, s39, 9
s_add_u32 s39, s39, s30
s_lshl_b32 s3, s3, 6
s_add_u32 s30, s30, s3
s_and_b32 s3, s{S_WV}, 1
s_mul_i32 s3, s3, {72*9216}
s_add_u32 s30, s30, s3
s_add_u32 s39, s39, s3
s_add_u32 s39, s39, s3
v_lshrrev_b32 v21, 2, v2
v_mul_u32_u24 v21, 9216, v21
v_and_b32 v22, 3, v2
v_lshl_add_u32 v21, v22, 4, v21
v_add_u32 v22, {16*9216-1024}, v21
v_add_u32 v23, {32*9216-2048}, v21
s_mul_i32 s31, s{S_WV}, 9216
v_bfe_u32 v{VD}, v2, 2, 3
v_mul_u32_u24 v{VD}, 9216, v{VD}
v_and_b32 v{VD+1}, 3, v2
v_lshl_add_u32 v{VD}, v{VD+1}, 4, v{VD}
v_lshrrev_b32 v{VD+1}, 5, v2
v_lshl_add_u32 v{VD}, v{VD+1}, 6, v{VD}
v_add_u32 v{VD+1}, {8*9216-1024}, v{VD}
v_add_u32 v{VD+2}, {16*9216-2048}, v{VD}"""
    gusel = f"s_cmp_lt_u32 s{S_WV}, 2\ns_cselect_b32 s12, s12, s14\ns_cselect_b32 s13, s13, s15\ns_and_b32 s13, s13, 0xffff\ns_mov_b32 s14, {576*4608*2}\ns_mov_b32 s15, 0x20000"
    def kdma(st):
        kind, qq = F["early"][st]
        if kind == "S":
            return [([f"s_add_u32 m0, s31, {st*SLOT + i*1024}", f"s_add_u32 s44, s39, {(qq*288 + 16*i)*9216}"] if i % 3 == 0 else [],
                     f"buffer_load_dwordx4 v{21+i%3}, s[12:15], s44 offen" + (f" offset:{(i%3)*1024}" if i % 3 else "") + " lds", ("dma", st), 2*dp) for i in range(9)]
        return [([f"s_add_u32 m0, s31, {st*SLOT + i*1024}", f"s_add_u32 s44, s30, {(qq*144 + 8*i)*9216}"] if i % 3 == 0 else [],
                 f"buffer_load_dwordx4 v{VD+i%3}, s[12:15], s44 offen" + (f" offset:{(i%3)*1024}" if i % 3 else "") + " lds", ("dma", st), dp) for i in range(9)]
    e("s_lshr_b32 s5, s2, 6\ns_cmp_eq_u32 s5, 1\ns_cbranch_scc1 F2_idle")
    lissue(nl)
    if xe:
        for k in range(3): e(f"buffer_load_dwordx4 v[{XT+4*k}:{XT+4*k+3}], v{VXA}, s[{S_X}:{S_X+3}], s50 offen" + (f" offset:{32*k}" if k else ""))
        for k in range(5): e(f"buffer_load_dwordx4 a[{WB+4*k}:{WB+4*k+3}], v244, {W}, s27 offen" + (f" offset:{16*k}" if k else "") + sf)
        e(f"buffer_load_dword v1, v{VMX}, {W}, s28 offen{sf}")
    tdone = (27 - nl)//3
    wr1 = [t_ for T_, t_ in wr if T_ < tdone]; wr2 = [t_ for T_, t_ in wr if T_ >= tdone]
    for t_ in wr1[:nw1]: e(t_)
    apoll = f"v_mov_b32 v{VF}, 0\nbuffer_atomic_add v{VF}, v{VLZ}, {W}, s45 offen sc0 sc1"
    e(apoll)
    for t_ in wr1[nw1:]: e(t_)
    doprep(100)
    tm.stamp(1)
    rd = f"s_waitcnt vmcnt(0)\nv_readfirstlane_b32 s5, v{VF}\ns_nop 1\ns_cmp_ge_u32 s5, 34\ns_cbranch_scc1 F2_go"
    e(f"{rd}\nF2_pl:\n{apoll}\n{rd}\ns_cmp_ge_u32 s5, 8\ns_cbranch_scc1 F2_pl\ns_sleep {slp}\ns_branch F2_pl\nF2_go:")
    tm.stamp(2)
    for i in range(12):
        if i % 4 == 0: e(f"s_add_u32 m0, s{S_RB}, {i*1024}\ns_add_u32 s6, s24, {WS_KV + i*1024}")
        e.vmem(f"buffer_load_dwordx4 v{VL16}, {W}, s6 offen" + (f" offset:{(i%4)*1024}" if i % 4 else "") + sf + " lds", "kv")
    vq = []
    for b in (1, 0):
        for q_ in range(9):
            pre = [f"s_add_u32 s29, s{25+b}, {WS_PQ + q_*1024}"] if q_ % 4 == 0 else []
            r = PQ + 36*b + 4*q_
            vq.append((pre, f"buffer_load_dwordx4 a[{r}:{r+3}], v{VL16}, {W}, s29 offen" + (f" offset:{(q_%4)*1024}" if q_ % 4 else "") + sf, ("pq", b), p1))
    st_ = [([], f"buffer_load_dwordx4 a[{WB+4*k}:{WB+4*k+3}], v244, {W}, s27 offen" + (f" offset:{16*k}" if k else "") + sf, "wb", 4) for k in range(5)]
    st2 = [([], f"buffer_load_dwordx4 v[{XT+4*k}:{XT+4*k+3}], v246, s[{S_X}:{S_X+3}], s50 offen" + (f" offset:{32*k}" if k else ""), "x", p1) for k in range(3)]
    st2.append(([], f"buffer_load_dword v1, v247, {W}, s28 offen{sf}", "x", 4))
    if xe: st_ = []; st2 = []
    vq = vq[:9] + st_ + vq[9:] + st2 + kdma(0) + kdma(1) + kdma(2)
    state = {"last": 0}
    def pace(force=False):
        if vq and (force or e.n - state["last"] >= vq[0][3]):
            pre, t, tag, _ = vq.pop(0)
            for p in pre: e(p)
            e.vmem(t, tag); state["last"] = e.n
    for t_ in wr2: e(t_)
    e(f"v_mov_b32 v246, v{VXA}\nv_mov_b32 v247, v{VMX}")
    e(alu)
    for t in range(1, 4): smask(e, 52 + 2*(t-1), mask64(lambda l: (l >> 4) < t))
    m0_ = mask64(lambda l: (l >> 4) == ((l & 15) >> 2) and (l & 2) == 0); m1_ = mask64(lambda l: (l >> 4) == ((l & 15) >> 2) and (l & 2) == 2)
    ID = 6
    e(f"s_movk_i32 s58, 0x3f80\nv_and_b32 v5, 1, v13\nv_lshlrev_b32 v5, 4, v5\nv_lshlrev_b32_e64 v5, v5, s58")
    smask(e, 48, m0_); e(f"v_cndmask_b32 v{ID}, 0, v5, s[48:49]"); smask(e, 48, m1_); e(f"v_cndmask_b32 v{ID+1}, 0, v5, s[48:49]")
    e(f"v_lshlrev_b32 v5, 3, v2\nv_add_u32 v3, s{S_RB}, v5")
    xl = [f"v_permlane16_swap_b32 v{XT+4*k+i}, v{XT+4*k+i+2}" for k in range(3) for i in range(2)] + \
         [f"v_permlane32_swap_b32 v{XT+4*k+i}, v{XT+4*k+i+2}" for k in range(3) for i in range(2)] + \
         [f"v_accvgpr_write_b32 a{XA+k}, v{XT+k}" for k in range(12)]
    if xe:
        for l in xl: e(l)
        xl = []
    for _ in range(9): pace(True)
    e("s_waitcnt lgkmcnt(0)\n" + gusel + "\ns_barrier")
    for lq in (1, 2, 3): e(f"s_xor_b32 s5, s{S_WV}, {lq}\ns_mul_i32 s5, s5, 12288\ns_add_u32 s5, s5, {KVB}\nv_add_u32 v{8+lq-1}, s5, v5")
    e(f"s_and_b32 s5, s{S_WV}, 2\nv_xor_b32 v14, s5, v14\nv_lshl_add_u32 v13, v14, 4, v13\ns_lshl_b32 s5, s{S_WV}, 8\ns_add_u32 s5, s5, {MXC}\nv_lshl_add_u32 v13, v13, 2, s5")
    e(f"s_lshl_b32 s5, s{S_WV}, 6\ns_and_b32 s5, s5, 128\ns_add_u32 s5, s5, {MXC}\nv_add_u32 v{VMX}, s5, v{VMX}")
    e(f"s_mul_i32 s5, s{S_CG}, 6144\ns_lshl_b32 s6, s59, 5\ns_add_u32 s5, s5, s6\ns_add_u32 s5, s5, s51\ns_add_u32 s4, s5, {WS_HC}\ns_add_u32 s5, s5, {WS_HT}")
    e(f"s_lshl_b32 s6, s{S_CG}, 1\ns_and_b32 s7, s{S_WV}, 1\ns_add_u32 s6, s6, s7\ns_lshl_b32 s6, s6, 14\ns_lshl_b32 s7, s{S_WS}, 8\ns_add_u32 s6, s6, s7\ns_add_u32 s6, s6, {WS_ST}")
    e.wait_vm(lambda t: t == "kv")
    tm.stamp(3)
    def ards(f):
        rb = RAW + 8*(f % 6)
        for jj in range(2):
            ar, off = frags[f][jj]
            if ar is not None:
                e.ds(f"ds_read_b128 v[{rb+4*jj}:{rb+4*jj+3}], v{ar} offset:{off}", f)
    for k in range(5): ards(k)
    for f in range(22):
        if f + 5 < 22: ards(f + 5)
        pace()
        rb = RAW + 8*(f % 6)
        e.wait_lg(lambda t: t == f)
        for jj in range(2):
            d = A + 4*f + 2*jj
            if frags[f][jj][0] is None: e(f"v_mov_b32 v{d}, 0\nv_mov_b32 v{d+1}, 0")
            else: e(f"v_cvt_pk_bf16_f32 v{d}, v{rb+4*jj}, v{rb+4*jj+1}\nv_cvt_pk_bf16_f32 v{d+1}, v{rb+4*jj+2}, v{rb+4*jj+3}")
    tm.stamp(4)
    q = Queue(e, window=10)
    def pqf(t, tile):
        r = PQ + 36*(t >> 1) + 18*(t & 1) + 2*tile
        return f"a[{r}:{r+3}]"
    def force(ops):
        for o in ops:
            if o.pos is None: q.drain_until(o)
    eps = hex(f2u(1e-6))
    rdops = {}; rduse = {0: [], 1: []}; ocv = {}; guse = {0: [], 1: []}
    NS = 4
    ringfree = [[] for _ in range(NS)]; mixfree = [None]*4; mixi = [0]; cnt = [0]
    def den_items(t):
        L = []
        for k, (c, T0, f) in enumerate(zf):
            def it(k=k, c=c, T0=T0, f=f):
                if k == 0:
                    while any(v[2] == ("pq", t >> 1) for v in vq): pace(True)
                    e.wait_vm(lambda x: x == ("pq", t >> 1))
                    force(rduse[t & 1]); rduse[t & 1] = []
                d = RD + 8*(t & 1) + 4*c
                o = e.op(Op(f"v_mfma_f32_16x16x32_bf16 v[{d}:{d+3}], v[{A+4*f}:{A+4*f+3}], {pqf(t, T0)}, " + ("0" if k % 3 == 0 else f"v[{d}:{d+3}]")))
                if k % 3 == 2:
                    for r in range(4):
                        o1 = q.add(Op(f"v_add_f32 v{d+r}, {eps}, v{d+r}", deps=[(o, 9)]))
                        rdops[(t, 4*c + r)] = q.add(Op(f"v_rcp_f32 v{d+r}, v{d+r}", cost=2, deps=[(o1, 0)]))
            L.append(it)
        return L
    def num_items(t):
        L = []
        for j in range(9):
            hs = [h for h in (j - 1, j) if 0 <= h < 8]
            for k, h in enumerate(hs):
                def it(j=j, k=k, h=h, last=(k == len(hs) - 1)):
                    if k == 0:
                        cnt[0] += 1
                        force(ringfree[cnt[0] % NS])
                    slot = cnt[0] % NS; d = NR + 4*slot; a = A + 4*numf[(j, h)]
                    o = e.op(Op(f"v_mfma_f32_16x16x32_bf16 v[{d}:{d+3}], v[{a}:{a+3}], {pqf(t, h)}, " + ("0" if k == 0 else f"v[{d}:{d+3}]")))
                    if not last: return
                    R = RD + 8*(t & 1)
                    muls = []; mixcache = {}
                    for r in range(4):
                        th = sum(1 for g in range(4) if 4*g + r < 2*j)
                        if th == 0: src, dp_ = R + j, [(rdops[(t, j)], 1)]
                        elif th == 4: src, dp_ = R + j - 1, [(rdops[(t, j-1)], 1)]
                        else:
                            if th not in mixcache:
                                mi = mixi[0] % 4; mixi[0] += 1
                                dd = [(rdops[(t, j)], 1), (rdops[(t, j-1)], 1)] + [(x, 0) for x in (mixfree[mi] or [])]
                                s_ = 52 + 2*(th-1)
                                mo = q.add(Op(f"v_cndmask_b32 v{MIX+mi}, v{R+j}, v{R+j-1}, s[{s_}:{s_+1}]", deps=dd))
                                mixcache[th] = (mi, mo); mixfree[mi] = []
                            mi, mo = mixcache[th]
                            src, dp_ = MIX + mi, [(mo, 0)]
                        m = q.add(Op(f"v_mul_f32 v{d+r}, v{d+r}, v{src}", deps=[(o, 9)] + dp_))
                        if th not in (0, 4): mixfree[mixcache[th][0]].append(m)
                        muls.append(m)
                    rduse[t & 1] += muls
                    od = O + 18*(t & 1) + 2*j
                    c1 = q.add(Op(f"v_cvt_pk_bf16_f32 v{od}, v{d}, v{d+1}", deps=[(muls[0], 0), (muls[1], 0)]))
                    c2 = q.add(Op(f"v_cvt_pk_bf16_f32 v{od+1}, v{d+2}, v{d+3}", deps=[(muls[2], 0), (muls[3], 0)]))
                    ringfree[slot] = [c1, c2]; ocv[(t, j)] = [c1, c2]
                L.append(it)
        return L
    mlast = {}
    def gemm_items(t, cts):
        L = []
        prev = {}
        for ks in range(5):
            for ct in cts:
                def it(ks=ks, ct=ct):
                    need = ocv[(t, 2*ks)] + (ocv[(t, 2*ks + 1)] if ks < 4 else [])
                    force(need)
                    deps = [(o, 2) for o in need]
                    if ks == 4: deps.append((prev[ct], 6))
                    n = 4 if ks < 4 else 2
                    o_ = O + 18*(t & 1) + 4*ks
                    op = "v_mfma_f32_16x16x32_bf16" if ks < 4 else "v_mfma_f32_16x16x16_bf16"
                    if ct == 6:
                        d = f"a[{MN+4*t}:{MN+4*t+3}]"; a = WB + 4*ks
                    else:
                        keep = t < 2 and ct < 3
                        dr = ACC + 12*t + 4*ct if keep else GB + 24*(t & 1) + 4*ct
                        if ks == 0 and not keep: force(guse[t & 1])
                        d = f"v[{dr}:{dr+3}]"; a = WFR + 24*ks + n*ct
                    mo = e.op(Op(f"{op} {d}, a[{a}:{a+n-1}], v[{o_}:{o_+n-1}], " + ("0" if ks == 0 else d), deps=deps))
                    prev[ct] = mo
                    if ks < 4: return
                    if ct == 6: mlast[t] = mo
                    elif keep:
                        x = XA + 4*ct + 2*t
                        q.fill(2)
                        e(f"v_mfma_f32_16x16x16_bf16 {d}, v[{ID}:{ID+1}], a[{x}:{x+1}], {d}")
                    else:
                        lq = (t >> 1)*2 + ct//3
                        c1 = q.add(Op(f"v_cvt_pk_bf16_f32 v{dr}, v{dr}, v{dr+1}", deps=[(mo, 9)]))
                        c2 = q.add(Op(f"v_cvt_pk_bf16_f32 v{dr+1}, v{dr+2}, v{dr+3}", deps=[(c1, 0)]))
                        w_ = q.add(Op(lambda dr=dr, off=lq*3072 + ((t & 1)*3 + ct % 3)*512: e.ds(f"ds_write_b64 v3, v[{dr}:{dr+1}] offset:{off}", "xw"), deps=[(c2, 0)]))
                        guse[t & 1].append(w_)
                L.append(it)
        return L
    def run(a, b=(), fill=2):
        a = list(a); b = list(b); na_, nb_ = len(a), len(b); ia = ib = 0
        while ia < na_ or ib < nb_:
            if ib < nb_ and (ia >= na_ or ib*na_ <= ia*nb_*lead_): b[ib](); ib += 1
            else: a[ia](); ia += 1
            pace(); q.fill(fill)
    e("s_nop 0")
    run(den_items(2) + den_items(3), fill=3)
    run(num_items(2), fill=4)
    tm.stamp(5)
    allc = [0, 1, 2, 3, 4, 5, 6]
    while any(v[2] == "wb" for v in vq): pace(True)
    e.wait_vm(lambda x: x == "wb")
    run(gemm_items(2, allc), num_items(3)[:6] + den_items(0) + num_items(3)[6:])
    while any(v[2] == "x" for v in vq): pace(True)
    prev = q.add(Op(lambda: e.wait_vm(lambda x: x == "x")))
    for l in xl:
        prev = q.add(Op(l, cost=2 if "perm" in l else 1, deps=[(prev, 0)]))
    xdone = prev
    run(gemm_items(3, allc), num_items(0)[:6] + den_items(1) + num_items(0)[6:])
    force([xdone])
    run(gemm_items(0, allc), num_items(1))
    run(gemm_items(1, [6, 3, 4, 5]))
    while vq: pace(True)
    prev = None
    for t in range(4):
        prev = q.add(Op(f"v_accvgpr_read_b32 v{16 + (t > 0)}, a{MN+4*(3-t)}", deps=[(mlast[3-t], 9)] + ([(prev, 0)] if prev else [])))
        if t: prev = q.add(Op(f"v_cndmask_b32 v16, v16, v17, s[{58-2*t}:{59-2*t}]", deps=[(prev, 0)]))
    q.add(Op(lambda: e.ds(f"ds_write_b32 v13, v16", "mw"), deps=[(prev, 0)]))
    own = gemm_items(1, [0, 1, 2])
    run(own[:nbar])
    q.drain()
    tm.stamp(6)
    e("s_waitcnt lgkmcnt(0)\ns_barrier")
    IN = 40
    for l2 in (1, 2, 3):
        for i in range(3):
            r = IN + 12*(l2-1) + 4*i
            q.add(Op(f"ds_read2st64_b64 v[{r}:{r+3}], v{8+l2-1} offset0:{l2*6 + 2*i} offset1:{l2*6 + 2*i + 1}"))
    q.add(Op(f"ds_read2st64_b32 v[104:105], v{VMX} offset0:0 offset1:1")); q.add(Op(f"ds_read2st64_b32 v[106:107], v{VMX} offset0:2 offset1:3"))
    run(own[nbar:])
    q.drain()
    tm.stamp(7)
    e("v_mov_b32 v13, 0x3f80\nv_mov_b32 v14, 0x3f800000\nv_mov_b32 v15, 0x3f803f80\nv_mov_b32 v8, 0\nv_mov_b32 v9, 0\ns_nop 2")
    e("s_waitcnt lgkmcnt(0)")
    for lq in (1, 2, 3):
        for i in range(3):
            for k in range(4):
                r = IN + 12*(lq-1) + 4*i + k; d = ACC + 2*(4*i + k)
                e(f"v_dot2c_f32_bf16 v{d}, v{r}, v13\nv_dot2c_f32_bf16 v{d+1}, v{r}, v14")
    e("v_pk_add_f32 v[104:105], v[104:105], v[106:107]\nv_add_f32 v1, v1, v104\nv_add_f32 v1, v1, v105\nv_cvt_pk_bf16_f32 v1, v1, v1\nv_and_b32 v1, 0xffff0000, v1\nv_xor_b32 v1, 0x80000000, v1")
    H = 80; HC = 92; TL = 40
    for c3 in range(3):
        for tt in range(2):
            a = ACC + 12*tt + 4*c3
            e(f"v_cvt_pk_bf16_f32 v{H+4*c3+2*tt}, v{a}, v{a+1}\nv_cvt_pk_bf16_f32 v{H+4*c3+2*tt+1}, v{a+2}, v{a+3}")
    for c3 in range(3):
        e(f"v_permlane32_swap_b32 v{H+4*c3}, v{H+4*c3+2}\nv_permlane32_swap_b32 v{H+4*c3+1}, v{H+4*c3+3}")
    for c3 in range(3):
        e(f"buffer_store_dwordx4 v[{H+4*c3}:{H+4*c3+3}], v{VST}, {W}, s5 offen" + (f" offset:{1024*c3}" if c3 else "") + sf)
        for r in range(H + 4*c3, H + 4*c3 + 4): e(f"v_dot2c_f32_bf16 v8, v{r}, v15\nv_dot2c_f32_bf16 v9, v{r}, v{r}")
    for c3 in range(3):
        for k in range(4):
            r = H + 4*c3 + k; t = TL + 8*c3 + 2*k
            e(f"v_dot2_f32_bf16 v{t}, v{r}, v13, v1\nv_dot2_f32_bf16 v{t+1}, v{r}, v14, v1")
        if c3 == 0: e("v_mov_b32 v6, v8\nv_mov_b32 v7, v9")
        if c3 == 1: e("v_permlane16_swap_b32 v6, v8\nv_permlane16_swap_b32 v7, v9")
    e(f"v_pk_add_f32 v[6:7], v[6:7], v[8:9]\nbuffer_store_dwordx2 v[6:7], v{VSA}, {W}, s6 offen{sf}")
    for c3 in range(3):
        for k in range(4): e(f"v_cvt_pk_bf16_f32 v{HC+4*c3+k}, v{TL+8*c3+2*k}, v{TL+8*c3+2*k+1}")
        e(f"buffer_store_dwordx4 v[{HC+4*c3}:{HC+4*c3+3}], v{VST}, {W}, s4 offen" + (f" offset:{1024*c3}" if c3 else "") + sf)
    tm.stamp(8)
    e(f"s_lshl_b32 s59, s{S_WS}, 8\ns_add_u32 s59, s59, {WS_FA}\ns_branch K2_done")
    e("F2_idle:\ns_waitcnt vmcnt(0) lgkmcnt(0)\ns_barrier")
    e(alu)
    if prefetch and pf2:
        srd(e, 52, 12, 576*4608*2); srd(e, 56, 14, 576*4608*2)
        slice_of_xcd(e, 5, 2, C)
        e(f"s_mul_i32 s5, s5, 1152\ns_bfe_u32 s6, s2, 0x30003\ns_mul_i32 s6, s6, {72*9216}\ns_add_u32 s5, s5, s6")
        e(f"v_mul_u32_u24 v4, 911, v0\nv_lshrrev_b32 v4, 16, v4\nv_mul_u32_u24 v3, 72, v4\nv_sub_u32 v3, v0, v3\nv_mul_u32_u24 v3, 9216, v3")
        for k in range(0, len(pf2), 3):
            e(f"v_mov_b32 v12, {BIG}")
            for i, ln in enumerate(pf2[k:k+3]):
                e(f"v_cmp_eq_u32 vcc, {i}, v4\nv_add_u32 v13, {ln*128}, v3\ns_nop 0\nv_cndmask_b32 v12, v12, v13, vcc")
            e(f"buffer_load_dword v244, v12, s[52:55], s5 offen\nbuffer_load_dword v245, v12, s[56:59], s5 offen")
    e(gusel)
    for st in range(3):
        for pre, t_, _, _ in kdma(st):
            for p in pre: e(p)
            e(t_)
    e("s_mov_b32 s59, -1\nK2_done:")
    F["nleft"] = 0; F["pre_stages"] = 3
```

```python
from sched import *
from layout import *
from tim import Tim
import struct, math
def f2u(x): return struct.unpack("<I", struct.pack("<f", x))[0]

def srd(e, d, b, nbytes, off=0):
    if off > 0:
        e(f"s_add_u32 s{d}, s{b}, {off}\ns_addc_u32 s{d+1}, s{b+1}, 0\ns_and_b32 s{d+1}, s{d+1}, 0xffff")
    elif off < 0:
        e(f"s_sub_u32 s{d}, s{b}, {-off}\ns_subb_u32 s{d+1}, s{b+1}, 0\ns_and_b32 s{d+1}, s{d+1}, 0xffff")
    else:
        e(f"s_mov_b32 s{d}, s{b}\ns_and_b32 s{d+1}, s{b+1}, 0xffff")
    e(f"s_mov_b32 s{d+2}, {nbytes}\ns_mov_b32 s{d+3}, 0x20000")

SLOT = 36864
STAMPS = [0, 135, -1, -2, 568, 648, 720, 792, 864, 900, 936, 971]
def gen_f3(C=2, budget=5, timing=False, store_flags=" sc1", lead=45, wdpf=True, roll=True, bud2=6, late0="n",
           f1=(666, 690, 712), f2=(756, 780, 804, 828), gst=' sc0 sc1', gld=' sc0 sc1', old=' sc0 sc1', slack=2.25, nogs=False, vcost=1, ldpace=6, dsp=4, dtail=1, fused=None, hpre=166, slp=8, sig0=942, pp1=2, pp2=4, ordb=1, na=6, of=' sc1', ctouch=(20, 542, 700, 800), hd=7, p2plan='old', sig1=0, pol0=None, order0='PSPSPP', bud0=5, xrate=4, stat=100, dsp0=1, front=0, hsp=2):
    e = fused['e'] if fused else Em()
    tm = fused['tm3'] if fused else Tim(e, 3, timing)
    xf = ' sc0 sc1' if fused else ''
    if fused: store_flags = ' sc0 sc1'
    TRB = 4; V1 = 8; VB = 17; VE = 26; VP1 = 29; VS = 30
    VK1 = 34; VK2 = 35; VS2 = 36; VL16 = 37; VPF = 38; VZ = 39; VF = 40; V3 = 41; VONE = 42; T = 44
    TM = 208
    SAC = 224; S_W2 = 44
    ACC = 56; OLD = 120; GT = 184; GS = 200; GP = 208
    FR = 144; GO = 192; GP3 = 120; GPS = 112; HA = 240
    S_W = 8; S_WD = 12; S_HC = S_ST = S_PT = S_GX = S_FL = 16; S_XH = 20
    S_J = 28; S_I = 29; S_WV = 30; S_WB = 31; S_CP = 32; S_CS = 33; S_SO = 34; S_XO = 35
    S_PO = 36; S_PS = 37
    S_B0 = 38; S_B1 = 39; S_A0 = 21; S_A1 = 22; S_CNT = 49; S_GO = 50; S_XS = 51; S_SS = 52; S_PF = 53
    S_MK = 54
    S_OWN = 56; S_PAR = 57; S_SNG = 58; S_TMP = 59
    S_GW = 40; S_GR = 41; S_FW = 42; S_FR = 43
    if not fused: e("s_cmp_ge_u32 s2, 256\ns_cbranch_scc1 K3_end")
    else: e("s_mov_b32 s23, s59\ns_mov_b64 s[26:27], s[42:43]\ns_mov_b64 s[44:45], s[40:41]\ns_mov_b64 s[40:41], s[12:13]")
    if not fused: e("s_load_dwordx4 s[40:43], s[0:1], 32\ns_load_dwordx2 s[44:45], s[0:1], 48\ns_load_dwordx2 s[46:47], s[0:1], 72")
    if not fused: tm.start()
    ng = 16 // C; R = 32 // C
    lg = lambda x: int(math.log2(x))
    e(f"v_lshrrev_b32 v1, 6, v0\nv_and_b32 v2, 63, v0\ns_and_b32 s3, s2, 7\ns_lshr_b32 s4, s2, 3\nv_readfirstlane_b32 s{S_WV}, v1")
    e(f"s_and_b32 s5, s3, {ng-1}\ns_lshl_b32 s5, s5, {lg(C)}\ns_and_b32 s6, s4, {C-1}\ns_add_u32 s{S_J}, s5, s6")
    e(f"s_lshr_b32 s5, s3, {lg(ng)}\ns_lshl_b32 s5, s5, {lg(R)}\ns_lshr_b32 s6, s4, {lg(C)}\ns_add_u32 s{S_I}, s5, s6")
    e(f"v_lshlrev_b32 v{VL16}, 4, v2")
    e(f"v_bfe_u32 v3, v2, 2, 3\nv_and_b32 v{TM}, 3, v2\nv_lshlrev_b32 v{TM}, 4, v{TM}\nv_lshrrev_b32 v{TM+1}, 5, v2\nv_lshl_add_u32 v{TM+1}, v{TM+1}, 6, v{TM}")
    e(f"s_mul_i32 s{S_WB}, s{S_WV}, 9216")
    e(f"s_and_b32 s3, s{S_J}, 1\ns_mul_i32 s6, s{S_J}, 576\ns_lshl_b32 s7, s3, 6\ns_add_u32 s{S_CP}, s6, s7")
    e(f"s_and_b32 s4, s{S_WV}, 1\ns_mul_i32 s5, s4, {72*9216}\ns_add_u32 s{S_CP}, s{S_CP}, s5")
    e(f"v_mul_u32_u24 v1, 9216, v3\nv_add_u32 v{V1}, v1, v{TM+1}")
    for i in range(1, 9): e(f"v_add_u32 v{V1+i}, {8*i*9216 - (i%3)*1024}, v{V1}")
    e(f"s_lshl_b32 s5, s{S_I}, 2\ns_add_u32 s5, s5, s{S_WV}\ns_mul_i32 s{S_XO}, s5, 36864\ns_add_u32 s{S_XH}, s{S_XO}, {WS_HC}")
    e(f"v_lshrrev_b32 v1, 5, v2\nv_lshlrev_b32 v1, 8, v1\nv_bfe_u32 v{T}, v2, 2, 2\nv_lshl_add_u32 v1, v{T}, 6, v1")
    e(f"v_bfe_u32 v{T}, v2, 4, 1\nv_lshl_add_u32 v1, v{T}, 5, v1\nv_and_b32 v{T}, 3, v2\nv_lshl_add_u32 v{TRB}, v{T}, 3, v1")
    for i in range(1, 4): e(f"v_add_u32 v{TRB+i}, {i*SLOT}, v{TRB}")
    if not fused:
        e("s_waitcnt lgkmcnt(0)")
        e(f"s_cmp_lt_u32 s{S_WV}, 2\ns_cselect_b32 s40, s40, s42\ns_cselect_b32 s41, s41, s43")
    srd(e, S_W, 40, 576*4608*2)
    srd(e, S_HC, 46, WS_BYTES)

    NST = 27
    ST1 = []
    for ch in order0: ST1.append(((0 if ch == "P" else "S"), sum(1 for x in ST1 if (x[0] == "S") == (ch == "S"))))
    ST1 += [(p, q_) for p in (1, 2, 3) for q_ in range(4)]
    plan = {"old": [("E", k) for k in range(6)] + [("B", g) for g in range(3)],
            "p1": [("E", 0), ("E", 1), ("E", 2), ("A", 0), ("A", 1), ("B", 0), ("B", 1), ("A", 2), ("B", 2)],
            "p2": [("E", 0), ("E", 1), ("E", 2), ("A", 0), ("B", 0), ("A", 1), ("B", 1), ("A", 2), ("B", 2)],
            "p3": [("E", 0), ("E", 1), ("E", 2), ("A", 0), ("A", 1), ("B", 0), ("A", 2), ("B", 1), ("B", 2)]}[p2plan]
    def dma_instrs(st, inbody=False):
        slot = st % 4
        L = []
        def grp(g, so, vs, sr):
            if so: L.append((so, False))
            L.append((f"s_add_u32 m0, s{S_WB}, {slot*SLOT + g*3072}", False))
            for k in range(3):
                L.append((f"buffer_load_dwordx4 v{vs[k]}, s[{sr}:{sr+3}], s{sreg} offen" + (f" offset:{k*1024}" if k else "") + " lds", True))
        sreg = S_SO
        if inbody and st < 20:
            sreg = {16: S_A0, 17: S_A1, 18: S_B0, 19: S_B1}[st]; vb = V1 if st < 18 else VB
            for g in range(3): grp(g, None, [vb+3*g, vb+3*g+1, vb+3*g+2], S_W if st < 18 else S_W2)
            L.append((f"s_add_u32 s{sreg}, s{sreg}, 128", False))
        elif st < 18:
            p, q = ST1[st]
            for g in range(3):
                if p == "S": grp(g, f"s_add_u32 s{S_SO}, s{S_CS}, {q*288*9216}" if g == 0 else None, [VB+3*g, VB+3*g+1, VB+3*g+2], S_W)
                else: grp(g, f"s_add_u32 s{S_SO}, s{S_CP}, {p*128 + q*144*9216}" if g == 0 else None, [V1+3*g, V1+3*g+1, V1+3*g+2], S_W)
        elif plan[st-18][0] == "E":
            k = plan[st-18][1]; b = S_OWN if k < 3 else S_PAR; o = (k % 3)*64*1152
            grp(0, f"s_add_u32 s{S_SO}, s{b}, {o}", [VE, VE+1, VE+2], S_WD)
            grp(1, f"s_add_u32 s{S_SO}, s{b}, {o + 8*1152}", [VE, VE+1, VE+2], S_WD)
            grp(2, f"s_add_u32 s{S_SO}, s{b}, {o + 384}", [VE, VP1, VS], S_WD)
        else:
            ty, ls = plan[st-18]
            bl = ((S_OWN, 3*64*1152), (S_PAR, 3*64*1152), (S_SNG, 0)) if ty == "B" else tuple((S_PAR, k*64*1152) for k in range(3))
            for g, (b, o) in enumerate(bl):
                grp(g, f"s_add_u32 s{S_SO}, s{b}, {o + 128*ls}", [VE, VP1, VS+1+ls], S_WD)
        return L
    def emit_list(L):
        n = 0; prev_m0 = False
        for t, tag in L:
            if tag:
                if prev_m0: e("s_nop 0"); n += 1
                e.vmem(t, tag); prev_m0 = False
            else:
                e(t); prev_m0 = "m0" in t
            n += 1
        return n
    def xload_instrs(s):
        L = []
        if s % 4 == 0: L.append((f"s_add_u32 s{S_XS}, s{S_XH}, {s*1024}", None))
        L.append((f"buffer_load_dwordx4 a[{4*s}:{4*s+3}], v{VL16}, s[{S_HC}:{S_HC+3}], s{S_XS} offen" + (f" offset:{(s%4)*1024}" if s % 4 else "") + xf, ("x", s)))
        return L
    if not fused:
        emit_list(xload_instrs(0))
        emit_list([(t, ("dma", 0) if d else None) for t, d in dma_instrs(0)])
        emit_list(xload_instrs(1)); emit_list(xload_instrs(2))
    else:
        e.vm = []; e.vm_done = 0; e.lg = []; e.lg_done = 0

    q = Queue(e, window=10)
    def emit_op(o, _orig=e.op):
        if callable(o.text):
            o.text(); o.pos = e.n - 1; return o
        return _orig(o)
    e.op = emit_op
    chl = [None]
    def chain(text, first_deps=()):
        prev = None
        for l in text.split("\n") if isinstance(text, str) else text:
            if isinstance(l, str):
                l = l.strip()
                if not l: continue
            deps = [(prev, 0)] if prev else list(first_deps) + ([(chl[0], 0)] if chl[0] and chl[0].pos is None else [])
            cost = 2 if isinstance(l, str) and re.match(r"v_(rcp|sqrt|exp|permlane)", l) else 1
            prev = q.add(Op(l, cost=cost, deps=deps))
        chl[0] = prev
        return prev
    e(f"s_lshl_b32 s{S_SS}, s5, 8\nv_and_b32 v{VZ}, 31, v2\nv_lshlrev_b32 v{VZ}, 3, v{VZ}\nv_lshrrev_b32 v1, 5, v2\nv_mul_u32_u24 v1, {6*16384}, v1\nv_add_u32 v{VZ}, v{VZ}, v1")
    srd(e, S_WD, 44, 4608*576*2 + 4096, -4096)
    e(f"s_xor_b32 s7, s3, 1\ns_lshl_b32 s7, s7, 9\ns_add_u32 s{S_CS}, s6, s7\ns_mul_i32 s4, s4, {144*9216}\ns_add_u32 s{S_CS}, s{S_CS}, s4")
    e(f"v_lshrrev_b32 v1, 2, v2\nv_mul_u32_u24 v{T}, 9216, v1\nv_add_u32 v{VB}, v{T}, v{TM}")
    for i in range(1, 9): e(f"v_add_u32 v{VB+i}, {16*i*9216 - (i%3)*1024}, v{VB}")
    e(f"s_mov_b64 s[{S_W2}:{S_W2+1}], s[{S_W}:{S_W+1}]\ns_mov_b32 s{S_W2+2}, s{S_W+2}\ns_mov_b32 s{S_W2+3}, 0x20000")
    e(f"s_lshl_b32 s4, s3, 6\ns_mul_i32 s5, s{S_WV}, {16*1152}\ns_add_u32 s5, s5, 4096\ns_add_u32 s{S_TMP}, s5, s4")
    e(f"v_mul_u32_u24 v{T}, 1152, v3\nv_add3_u32 v{VE}, v{T}, v{TM+1}, s{S_TMP}\nv_subrev_u32 v{VE+1}, {1024-128}, v{VE}\nv_subrev_u32 v{VE+2}, {2048-256}, v{VE}\nv_add_u32 v{VP1}, {8*1152-1024}, v{VE}")
    e(f"v_mul_u32_u24 v{T}, 1152, v1\nv_add_u32 v{T}, v{T}, v{TM}\ns_add_u32 s5, s5, s7")
    e(f"s_sub_u32 s7, s5, {2048+384}\nv_add_u32 v{VS}, s7, v{T}\ns_sub_u32 s7, s5, {2048+256}\nv_add_u32 v{VS+3}, s7, v{T}")
    e(f"s_sub_u32 s7, s{S_TMP}, {2048-384}\nv_add_u32 v{VS+1}, s7, v{T}\ns_sub_u32 s7, s{S_TMP}, {2048-320}\nv_add_u32 v{VS+2}, s7, v{T}")
    e(f"""s_lshr_b32 s5, s{S_J}, 1
s_mul_i32 s6, s5, {576*1152}
s_mul_i32 s7, s3, 576
s_add_u32 s6, s6, s7
s_mul_i32 s7, s3, {320*1152}
s_add_u32 s{S_OWN}, s6, s7
s_add_u32 s{S_PAR}, s6, {320*1152}
s_sub_u32 s{S_PAR}, s{S_PAR}, s7
s_lshl_b32 s7, s3, 1
s_xor_b32 s7, s7, s{S_WV}
s_sub_u32 s7, s7, s{S_WV}
s_add_u32 s7, s7, 16
s_mul_i32 s7, s7, {16*1152}
s_add_u32 s{S_SNG}, s6, s7""")
    e(f"""s_mul_i32 s5, s5, {ACT_BYTES}
s_add_u32 s5, s5, s{S_XO}
s_add_u32 s5, s5, {WS_PART}
s_mul_i32 s6, s3, {18*1024 if fused else 20*1024}
s_add_u32 s{S_PO}, s5, s6
s_lshl_b32 s6, s3, 11
s_add_u32 s6, s6, {16*1024}
s_add_u32 s{S_PS}, s5, s6""")
    e(f"""s_lshl_b32 s5, s{S_I}, 4
s_add_u32 s5, s5, s{S_J}
s_lshl_b32 s5, s5, 2
s_add_u32 s5, s5, s{S_WV}
s_xor_b32 s6, s5, 4
s_mul_i32 s{S_GW}, s5, 18432
s_mul_i32 s{S_GR}, s6, 18432
s_lshl_b32 s{S_FW}, s5, 6
s_lshl_b32 s{S_FR}, s6, 6
s_add_u32 s{S_GW}, s{S_GW}, {WS_GX}
s_add_u32 s{S_GR}, s{S_GR}, {WS_GX}
s_add_u32 s{S_FW}, s{S_FW}, {WS_FL}
s_add_u32 s{S_FR}, s{S_FR}, {WS_FL}
s_mov_b32 s{S_GO}, s{S_GW}
s_add_u32 s{S_A0}, s{S_CP}, {128 + 288*9216}
s_add_u32 s{S_A1}, s{S_CP}, {128 + 432*9216}
s_add_u32 s{S_B0}, s{S_CP}, 256
s_add_u32 s{S_B1}, s{S_CP}, {256 + 144*9216}
s_mov_b32 s{S_CNT}, 0""")
    if wdpf:
        e(f"s_mul_i32 s5, s{S_WV}, 42\nv_add_u32 v1, s5, v2\nv_lshlrev_b32 v1, 7, v1\nv_cmp_gt_u32 s[54:55], 14, v2\nv_mov_b32 v{VPF}, 0x40000000")
        e(f"s_mul_i32 s5, s{S_I}, 18\ns_mul_i32 s6, s{S_J}, 288\ns_add_u32 s5, s5, s6\ns_mul_i32 s{S_PF}, s5, 1152\ns_add_u32 s{S_PF}, s{S_PF}, 4096\nv_cndmask_b32 v{VPF}, v{VPF}, v1, s[54:55]")

    c = 0.7978845608028654; l2e = 1.4426950408889634
    k1 = -2*c*l2e; k2 = k1*0.044715
    M = []
    for st, (p, qq) in enumerate(ST1):
        if p == "S":
            for s in range(18):
                ks = 18*qq + s
                for mat in range(2):
                    o = (mat*18 + s)*1024
                    M.append(dict(acc=f"v{SAC + 16*mat}", dst=None, b=f"a[{4*ks}:{4*ks+3}]", first=(ks == 0), last=(ks == 35), st=st, rd=(o, o + 512), xs=ks, unit=8, mat=mat, ph=1))
            continue
        for s in range(9):
            ks = 9*qq + s
            for uu in range(2):
                for mat in range(2):
                    o = (mat*18 + 2*s)*1024 + uu*512
                    M.append(dict(acc=f"v{ACC + 32*uu + 16*mat}", dst=f"v{OLD + 32*uu + 16*mat}" if ks == 35 else None, b=f"a[{4*ks}:{4*ks+3}]",
                                  first=(ks == 0), last=(ks == 35), st=st, rd=(o, o + 1024), xs=ks if p == 0 else None, unit=2*p+uu, mat=mat, ph=1))
        if qq == 3:
            t = M[-8:]; M[-8:] = [t[0], t[1], t[4], t[5], t[2], t[3], t[6], t[7]]
    tacc = {0: "a0", 1: "a16", 6: "a32", 2: "a48", 3: "a64", 7: "a80", 4: "a96", 5: f"v{ACC+32}", 8: f"v{ACC+48}"}
    def eoff(t):
        if t == 8: return (8*1024, 8*1024 + 512)
        cp, uu = t >> 1, t & 1
        return ((cp*1024 + uu*512, (3 + cp)*1024 + uu*512) if cp < 3 else (6*1024 + uu*512, 7*1024 + uu*512))
    lateks = [(0, w, f"v[{GT+4*w}:{GT+4*w+3}]", ("cv", 12 + w)) for w in range(4)] + [(2, w, f"v[{GS+4*w}:{GS+4*w+3}]", ("cv", 16 + w)) for w in range(2)] + \
             [(1, w, f"a[{GP3+4*w}:{GP3+4*w+3}]", ("gp", 12 + w)) for w in range(4)] + [(2, 2 + w, f"a[{GPS+4*w}:{GPS+4*w+3}]", ("gp", 16 + w)) for w in range(2)]
    parks = [(k, w, f"v[{GP+16*k+4*w}:{GP+16*k+4*w+3}]", ("gp", 4*k + w)) for k in range(3) for w in range(4)]
    for si, (ty, k) in enumerate(plan):
        if ty == "E":
            for w in range(4):
                g = (f"a[{GO+16*k+4*w}:{GO+16*k+4*w+3}]", ("go", 4*k + w)) if k < 3 else (f"v[{GP+16*(k-3)+4*w}:{GP+16*(k-3)+4*w+3}]", ("gp", 4*(k-3) + w))
                for t in range(9):
                    o = eoff(t)
                    M.append(dict(acc=tacc[t], dst=None, b=g[0], gsrc=g[1], first=(k == 0 and w == 0), last=False, st=18+si, rd=(w*9216 + o[0], w*9216 + o[1]), xs=None, tile=t, ph=2))
            continue
        ls = k
        tiles = [2*ls, 2*ls + 1, 6 + ls]
        if ty == "A": order = [(t, k_) for k_ in range(12) for t in tiles]
        elif ls == 0 and late0 == "own": order = [(t, k_) for k_ in range(6) for t in tiles] + [(t, k_) for t in tiles for k_ in range(6, 12)]
        else: order = [(t, k_) for t in tiles for k_ in range(12)]
        for t, k_ in order:
            gi, w, b, src = (lateks if ty == "B" else parks)[k_]
            base = w*9216 + gi*3072
            rd = (base + (t & 1)*512, base + 1024 + (t & 1)*512) if t < 6 else (base + 2048, base + 2048 + 512)
            M.append(dict(acc=tacc[t], dst=None, b=b, gsrc=src, first=False, last=(ty == "B" and k_ == 11), st=18+si, rd=rd, xs=None, tile=t, ph=2))
    NM = len(M); assert NM == 972
    LA = 8
    def rng(r, n=16):
        return f"{r[0]}[{int(r[1:])}:{int(r[1:])+n-1}]"

    gdone = {}; tstate = {"last": [None, None]}; pairctr = [0]
    oldbusy = {}
    memq = []
    def add_gelu(unit, gacc, uacc, mg, mu, inbody):
        gb = GS if unit == 8 else GT + 8*(unit & 1)
        for k in range(8):
            ts = pairctr[0] % 2; pairctr[0] += 1
            ta, tb = T + 2*ts, T + 2*ts + 1
            ga, gb_, ua, ub = gacc + 2*k, gacc + 2*k + 1, uacc + 2*k, uacc + 2*k + 1
            prev = tstate["last"][ts]
            d0 = [(mg, 13)] + ([(prev, 0)] if prev else [])
            sa = q.add(Op(f"v_mul_f32 v{ta}, v{ga}, v{ga}", deps=d0))
            sb = q.add(Op(f"v_mul_f32 v{tb}, v{gb_}, v{gb_}", deps=d0))
            fa = q.add(Op(f"v_fma_f32 v{ta}, v{ta}, v{VK2}, v{VK1}", deps=[(sa, 0)]))
            fb = q.add(Op(f"v_fma_f32 v{tb}, v{tb}, v{VK2}, v{VK1}", deps=[(sb, 0)]))
            aa = q.add(Op(f"v_mul_f32 v{ta}, v{ga}, v{ta}", deps=[(fa, 0)]))
            ab = q.add(Op(f"v_mul_f32 v{tb}, v{gb_}, v{tb}", deps=[(fb, 0)]))
            ea = q.add(Op(f"v_exp_f32 v{ta}, v{ta}", cost=2, deps=[(aa, 0)]))
            pa = q.add(Op(f"v_mul_f32 v{ua}, v{ga}, v{ua}", deps=[(mg, 13), (mu, 13)]))
            eb = q.add(Op(f"v_exp_f32 v{tb}, v{tb}", cost=2, deps=[(ab, 0)]))
            pb = q.add(Op(f"v_mul_f32 v{ub}, v{gb_}, v{ub}", deps=[(mg, 13), (mu, 13)]))
            da = q.add(Op(f"v_fma_f32 v{ta}, v{ta}, v{VS2}, v{VS2}", deps=[(ea, 1)]))
            db = q.add(Op(f"v_fma_f32 v{tb}, v{tb}, v{VS2}, v{VS2}", deps=[(eb, 1)]))
            ra = q.add(Op(f"v_rcp_f32 v{ta}, v{ta}", cost=2, deps=[(da, 0)]))
            rb = q.add(Op(f"v_rcp_f32 v{tb}, v{tb}", cost=2, deps=[(db, 0)]))
            ya = q.add(Op(f"v_mul_f32 v{ta}, v{ua}, v{ta}", deps=[(ra, 1), (pa, 0)]))
            yb = q.add(Op(f"v_mul_f32 v{tb}, v{ub}, v{tb}", deps=[(rb, 1), (pb, 0)]))
            cv = q.add(Op(f"v_cvt_pk_bf16_f32 v{gb + k}, v{ta}, v{tb}", deps=[(ya, 0), (yb, 0)]))
            tstate["last"][ts] = cv
            fi = 2*unit + k//4
            gdone.setdefault(fi, []).append(cv)
            oldbusy.setdefault(f"v{gacc}", []).append(cv); oldbusy.setdefault(f"v{uacc}", []).append(cv)
            if k % 4 == 3:
                r = gb + k - 3
                L = []
                if unit == 8 and k == 3: L.append((f"s_add_u32 s{S_TMP}, s{S_GW}, 16384", None))
                off = (fi % 4)*1024
                L.append((f"buffer_store_dwordx4 v[{r}:{r+3}], v{VL16}, s[{S_GX}:{S_GX+3}], s{S_TMP if unit == 8 else S_GO} offen" + (f" offset:{off}" if off else "") + gst, ("gs", fi)))
                if nogs and unit < 6: L = [("s_nop 0", None)]
                memq.append(dict(deps=list(gdone[fi]), L=L))
    outn = [0]
    VPS = 48; VLZ = 49; VRH = 50; VRO = 53; VRA = 3
    outbusy = [[], [], [], []]
    def add_out(t, acc, mo):
        def cv(i, deps): return q.add(Op(f"v_cvt_pk_bf16_f32 v{r+i}, v{r+2*i}, v{r+2*i+1}", deps=deps))
        prev = None; cvs = []
        if acc[0] == "a":
            bi = outn[0] % 3; outn[0] += 1
            assert all(x.get("done") for x in outbusy[bi])
            r = OLD + 16*bi; a = int(acc[1:])
            for i in range(8):
                r0 = q.add(Op(f"v_accvgpr_read_b32 v{r+2*i}, a{a+2*i}", deps=[(mo, 13)]))
                r1 = q.add(Op(f"v_accvgpr_read_b32 v{r+2*i+1}, a{a+2*i+1}", deps=[(mo, 13)]))
                prev = cv(i, [(r0, 0), (r1, 0)] + ([(prev, 0)] if prev else [])); cvs.append(prev)
        else:
            bi = None; r = int(acc[1:])
            for i in range(8):
                prev = cv(i, [(mo, 13)] + ([(prev, 0)] if prev else [])); cvs.append(prev)
        new = []
        for h in range(2):
            L = []
            if fused:
                g_, fi_ = (t - 6, 4 + h) if t >= 6 else (t >> 1, 2*(t & 1) + h)
                if fi_ == 0: L.append((f"s_add_u32 s{S_TMP}, s{S_PO}, {g_*6144}", None))
                L.append((f"buffer_store_dwordx4 v[{r+4*h}:{r+4*h+3}], v{VPS}, s[{S_PT}:{S_PT+3}], s{S_TMP} offen" + (f" offset:{fi_*128}" if fi_ else "") + store_flags, ("store", g_)))
                x = dict(deps=[cvs[4*h+3]], L=L); memq.append(x); new.append(x)
                continue
            so = S_PS if t == 8 else S_TMP
            if t != 8 and h == 0: L.append((f"s_add_u32 s{S_TMP}, s{S_PO}, {t*2048}", None))
            L.append((f"buffer_store_dwordx4 v[{r+4*h}:{r+4*h+3}], v{VL16}, s[{S_PT}:{S_PT+3}], s{so} offen" + (f" offset:1024" if h else "") + store_flags, ("store", t - 6 if t >= 6 else t >> 1)))
            x = dict(deps=[cvs[4*h+3]], L=L); memq.append(x); new.append(x)
        if bi is not None: outbusy[bi] = new
    def pop_mem():
        y = memq.pop(0); y["done"] = True
        return emit_list(y["L"])
    def mem_ready():
        return memq and all(d.pos is not None for d in memq[0]["deps"])
    def reads(m):
        d = M[m]; fr = FR + 4*(m % 12); vb = TRB + d["st"] % 4
        e.ds(f"ds_read_b64_tr_b16 a[{fr}:{fr+1}], v{vb} offset:{d['rd'][0]}", m)
        e.ds(f"ds_read_b64_tr_b16 a[{fr+2}:{fr+3}], v{vb} offset:{d['rd'][1]}", m)

    early = []
    for s_ in range(36): early.append((min(min(m for m, d in enumerate(M) if d["xs"] == s_), xrate*s_), xload_instrs(s_)))
    for g in range(6):
        early.append((stat + g, [(f"s_add_u32 s{S_TMP}, s{S_SS}, {WS_ST + g*16384}", None),
                                (f"buffer_load_dwordx2 v[{TM+2+2*g}:{TM+3+2*g}], v{VZ}, s[{S_ST}:{S_ST+3}], s{S_TMP} offen" + xf, "st")]))
    early.sort(key=lambda x: x[0])
    def emit_early():
        return emit_list(early.pop(0)[1])
    def stats_ops():
        b = TM + 2
        inv = hex(f2u(1.0/576))
        txt = [lambda: e.wait_vm(lambda t: t == "st")] + f"""v_add_f32 v{b}, v{b}, v{b+2}
v_add_f32 v{b+1}, v{b+1}, v{b+3}
v_add_f32 v{b+4}, v{b+4}, v{b+6}
v_add_f32 v{b+5}, v{b+5}, v{b+7}
v_add_f32 v{b+8}, v{b+8}, v{b+10}
v_add_f32 v{b+9}, v{b+9}, v{b+11}
v_add_f32 v{b}, v{b}, v{b+4}
v_add_f32 v{b+1}, v{b+1}, v{b+5}
v_add_f32 v{b}, v{b}, v{b+8}
v_add_f32 v{b+1}, v{b+1}, v{b+9}
v_mov_b32 v{b+2}, v{b}
v_mov_b32 v{b+3}, v{b+1}
v_mov_b32 v{VONE}, 1
v_mov_b32 v{VONE+1}, 2
v_permlane32_swap_b32 v{b}, v{b+2}
v_permlane32_swap_b32 v{b+1}, v{b+3}
v_mov_b32 v{VZ}, 0
v_add_f32 v{b}, v{b}, v{b+2}
v_add_f32 v{b+1}, v{b+1}, v{b+3}
v_mul_f32 v{b}, {inv}, v{b}
v_mul_f32 v{b+1}, {inv}, v{b+1}
v_fma_f32 v{b+1}, -v{b}, v{b}, v{b+1}
v_max_f32 v{b+1}, 0, v{b+1}
v_cvt_pk_bf16_f32 v{b+1}, v{b+1}, v{b+1}
v_and_b32 v{b+1}, 0xffff0000, v{b+1}
v_add_f32 v{b+1}, {hex(f2u(1e-5))}, v{b+1}
v_cvt_pk_bf16_f32 v{b+1}, v{b+1}, v{b+1}
v_and_b32 v{b+1}, 0xffff0000, v{b+1}
v_sqrt_f32 v{b+1}, v{b+1}
s_nop 0
v_cvt_pk_bf16_f32 v{b+1}, v{b+1}, v{b+1}
v_and_b32 v{b+1}, 0xffff0000, v{b+1}
v_rcp_f32 v{b}, v{b+1}
v_mul_f32 v{VS2}, v{b+1}, v{b+1}
v_mul_f32 v{VK1}, {hex(f2u(k1))}, v{b}
v_mul_f32 v{b+1}, v{b}, v{b}
v_mul_f32 v{b}, {hex(f2u(k2))}, v{b}
v_mul_f32 v{VK2}, v{b}, v{b+1}""".split("\n")
        chain(txt)
    spins = []; tails = []
    def poll_check(val, name):
        e.wait_vm(lambda t: t == "poll" + name)
        e(f"v_readfirstlane_b32 s{S_TMP}, v{VF}\ns_nop 1\ns_cmp_ge_u32 s{S_TMP}, {val}\ns_cbranch_scc0 K3_spin{name}\nK3_ret{name}:")
        spins.append((name, val))
    def gload(kind, fi):
        L = []
        base = S_GW if kind == "go" else S_GR
        if fi % 4 == 0: L.append((f"s_add_u32 s{S_XS}, s{base}, {fi*1024}", None))
        if kind == "go": dst = f"a[{GO+4*fi}:{GO+4*fi+3}]"
        elif fi < 12: dst = f"v[{GP+4*fi}:{GP+4*fi+3}]"
        elif fi < 16: dst = f"a[{GP3+4*(fi-12)}:{GP3+4*(fi-12)+3}]"
        else: dst = f"a[{GPS+4*(fi-16)}:{GPS+4*(fi-16)+3}]"
        L.append((f"buffer_load_dwordx4 {dst}, v{VL16}, s[{S_GX}:{S_GX+3}], s{S_XS} offen" + (f" offset:{(fi%4)*1024}" if fi % 4 else "") + (old if kind == "go" else gld), (kind, fi)))
        return L
    ldq = []
    def flag_store(val):
        e.vmem(f"buffer_store_dword v{VONE+val-1}, v{VZ}, s[{S_FL}:{S_FL+3}], s{S_FW} offen sc0 sc1", "flag")
    def poll_issue(name):
        e.vmem(f"buffer_load_dword v{VF}, v{VZ}, s[{S_FL}:{S_FL+3}], s{S_FR} offen sc0 sc1", "poll" + name)
    actions = {}
    def act1():
        e.wait_vm(lambda t: t and t[0] == "gs" and t[1] < 12); flag_store(1); return 3
    actions[f1[0]] = act1
    actions[f1[1]] = lambda: poll_issue("A") or 2
    actions[f1[2]] = lambda: poll_check(1, "A") or ldq.extend(gload("gp", fi) for fi in list(range(12)) + [16, 17]) or 5
    def act2pre():
        q.drain()
        while memq: pop_mem()
        return 1
    def act2():
        e.wait_vm(lambda t: t and t[0] == "gs"); flag_store(2); return 2
    actions[f2[0]] = act2pre
    actions[f2[1]] = act2
    actions[f2[2]] = lambda: poll_issue("B") or 1
    actions[f2[3]] = lambda: poll_check(2, "B") or ldq.extend(gload("gp", fi) for fi in range(12, 16)) or 5

    def apoll(sreg, val=0):
        return f"v_mov_b32 v{VF}, {val}\nbuffer_atomic_add v{VF}, v{VLZ}, s[{S_FL}:{S_FL+3}], s{sreg} offen sc0 sc1"
    if not fused:
        emit_early(); emit_early(); emit_early()
        e.wait_vm(lambda t: t == ("dma", 0))
        e("s_barrier")
        for m in range(LA): reads(m)
        emit_early(); emit_early()
    else:
        e(f"s_lshl_b32 s5, s{S_I}, 2\ns_add_u32 s5, s5, s{S_WV}\ns_lshl_b32 s24, s5, 8\ns_add_u32 s24, s24, {WS_FA}")
        e(f"v_cmp_eq_u32 vcc, 0, v2\nv_mov_b32 v{VONE}, 1\nv_mov_b32 v1, 0x40000000\nv_cndmask_b32_e64 v{VLZ}, v1, 0, vcc")
        tm.stamp(-10)
        e(f"s_waitcnt vmcnt({fused['nleft']})")
        tm.stamp("A0")
        e(f"s_cmp_lt_i32 s23, 0\ns_cbranch_scc1 K3_ns\nbuffer_atomic_add v{VONE}, v{VLZ}, s[{S_FL}:{S_FL+3}], s23 offen sc1\nK3_ns:")
        e("s_barrier")
        ps = fused.get("pre_stages", 2); nrem = 9*(4 - ps)
        LL = [(t, ("dma", st) if d else None) for st in range(ps, 4) for t, d in dma_instrs(st)]
        k_ = [i for i, (t, d) in enumerate(LL) if d][na-1] + 1
        emit_list(LL[:k_])
        for m in range(LA): reads(m)
        e(f"""s_and_b32 s6, s{S_J}, 1
s_lshl_b32 s25, s5, 1
s_add_u32 s25, s25, s6
s_lshl_b32 s25, s25, 8
s_add_u32 s25, s25, {WS_FB}
s_lshr_b32 s7, s{S_J}, 1
s_mul_i32 s48, s7, 768
s_mul_i32 s4, s6, {18*1024}
s_add_u32 s48, s48, s4
s_add_u32 s48, s48, s{S_XO}
s_lshl_b32 s7, s7, 2
v_cmp_lt_u32 vcc, 31, v2
v_cmp_gt_u32 s[54:55], 48, v2
v_bfe_u32 v{T}, v2, 2, 3
v_mul_u32_u24 v{VPS}, 768, v{T}
v_lshrrev_b32 v{T}, 5, v2
v_lshl_add_u32 v{VPS}, v{T}, 6, v{VPS}
v_and_b32 v{T}, 3, v2
v_lshl_add_u32 v{VPS}, v{T}, 4, v{VPS}
v_lshrrev_b32 v{T}, 3, v2
v_bfe_u32 v{T+1}, v2, 2, 2
v_cndmask_b32_e64 v{T}, v{T}, v{T+1}, vcc
v_bfe_u32 v{T+1}, v2, 1, 2
v_bfe_u32 v{T+2}, v2, 1, 1
v_add_u32 v{T+2}, 4, v{T+2}
v_cndmask_b32_e64 v{T+1}, v{T+1}, v{T+2}, vcc
v_and_b32 v{T+2}, 1, v2
v_lshlrev_b32 v{VRA}, 4, v{T}
v_lshl_add_u32 v{VRA}, v{T+2}, 6, v{VRA}
v_lshl_add_u32 v{VRA}, v{T+1}, 7, v{VRA}
v_cndmask_b32 v{VRA}, v1, v{VRA}, s[54:55]
v_add_u32 v{T}, s7, v{T}
v_mul_u32_u24 v{T+3}, 1152, v{T}
v_lshl_add_u32 v{T+3}, v{T+2}, 4, v{T+3}
v_lshl_add_u32 v{T}, v{T+2}, 5, v{T}
v_lshlrev_b32 v{T}, 4, v{T}
v_cndmask_b32 v{T}, v1, v{T}, s[54:55]
v_cndmask_b32 v{T+3}, v1, v{T+3}, s[54:55]
s_mul_i32 s7, s6, 20
v_add_u32 v{T+1}, s7, v{T+1}
s_mul_i32 s6, s6, -18
s_add_u32 s6, s6, 12
v_mov_b32 v1, s6""" + "".join(f"""
v_cndmask_b32_e64 v{T+2}, {4*g}, {('v1' if g == 2 else 8 + 2*g)}, vcc
v_add_u32 v{T+2}, v{T+2}, v{T+1}
v_lshl_add_u32 v{VRH+g}, v{T+2}, 10, v{T}
v_lshl_add_u32 v{VRO+g}, v{T+2}, 5, v{T+3}""" for g in range(3)))
        if ctouch:
            e(f"s_getpc_b64 s[6:7]\nK3_pc:\ns_add_u32 s6, s6, K3_pdA-K3_pc\ns_addc_u32 s7, s7, 0\ns_lshr_b32 s4, s2, 3\ns_lshl_b32 s4, s4, 2\ns_add_u32 s4, s4, s{S_WV}\ns_lshl_b32 s4, s4, 8")
            e(f"v_and_b32 v2, 1, v2\nv_lshlrev_b32 v2, 7, v2\nv_add_u32 v2, s4, v2\nv_min_u32 v2, KB_last-K3_pdA, v2")
        tm.stamp("A1")
        e(apoll(24))
        emit_list(LL[k_:])
        rd = f"v_readfirstlane_b32 s5, v{VF}\ns_nop 1"
        e(f"s_waitcnt vmcnt({nrem-na})\n{rd}\ns_cmp_ge_u32 s5, 12\ns_cbranch_scc1 K3_pdA\nK3_plA:\n{apoll(24)}\ns_waitcnt vmcnt(0)\n{rd}")
        e(f"s_cmp_ge_u32 s5, 12\ns_cbranch_scc1 K3_pdA\ns_cmp_lg_u32 s5, 0\ns_cbranch_scc1 K3_plA\ns_sleep {slp}\ns_branch K3_plA\nK3_pdA:")
        tm.stamp(-11)
        e.vm = [("dma", k//9) for k in range(36)]; e.vm_done = 9*ps + na
        for _ in range(8): emit_early()
        for m_ in ctouch:
            actions[m_] = lambda: e.vmem(f"global_load_dword v1, v2, s[6:7]", "ct") and 2
        HR = OLD + 48
        def hl(k):
            if k == 0: e(f"s_add_u32 s{S_XS}, s{S_XO}, {WS_HT}")
            e.vmem(f"buffer_load_dwordx4 a[{HA+4*k}:{HA+4*k+3}], v{VRH+k}, s[{S_HC}:{S_HC+3}], s{S_XS} offen sc0 sc1", "h"); return 2
        for k in range(3): actions[hpre + hsp*k] = (lambda k=k: hl(k))
        PBR = [ACC, GP, OLD]
        sj = lambda j: [28, 29, 30, 32, 33, 38, 39, 21][j]
        def sjinit(j): e(f"s_add_u32 s{sj(j)}, s48, {WS_PART + j*ACT_BYTES}"); return 1
        for j in range(NPART): actions[896 + 2*j] = (lambda j=j: sjinit(j))
        actions[914] = lambda: e(f"v_add_u32 v{V1}, 6144, v{VRA}\nv_add_u32 v{V1+1}, 12288, v{VRA}") or 2
        actions[916] = lambda: e(f"v_mov_b32 v{V1+2}, 0x100") or 1
        vra = [VRA, V1, V1 + 1]
        def pload(k, j):
            r = PBR[k] + 4*j
            return [(f"buffer_load_dwordx4 v[{r}:{r+3}], v{vra[k]}, s[{S_HC}:{S_HC+3}], s{sj(j)} offen sc0 sc1", (k, j))]
        def sigB(g):
            assert sum(1 for t in e.vm if t == ("store", g)) == 6
            e.wait_vm(lambda t: t == ("store", g))
            e.vmem(f"buffer_atomic_add v{VONE if g == 0 else V1+2}, v{VLZ}, s[{S_FL}:{S_FL+3}], s25 offen sc1", "flag"); return 3
        def chk(g): return f"s_bfe_u32 s4, s5, {hex(8*g | 0x80000)}\ns_cmp_eq_u32 s4, 8"
        def pollB():
            e(f"v_mov_b32 v{VF}, 0"); e.vmem(f"buffer_atomic_add v{VF}, v{VLZ}, s[{S_FL}:{S_FL+3}], s25 offen sc0 sc1", "plb"); return 3
        def checkB(g):
            e.wait_vm(lambda t: t == "plb")
            e(f"{rd}\n{chk(g)}\ns_cbranch_scc0 K3_S{g}\nK3_R{g}:")
            tails.append(f"K3_S{g}:\n{apoll(25)}\ns_waitcnt vmcnt(0)\n{rd}\n{chk(g)}\ns_cbranch_scc0 K3_S{g}\ns_branch K3_R{g}")
            ldq.extend(pload(g, j) for j in range(NPART)); return 5
        if sig0: actions[sig0] = lambda: sigB(0)
        if sig1: actions[sig1] = lambda: sigB(1)
        if pol0:
            actions[pol0[0]] = pollB; actions[pol0[1]] = lambda: checkB(0)
    lastm = {}
    e.wait_lg(lambda t: t <= 3)
    B0, B1, HD = 208, 640, hd
    st8 = dict(dmaq=[], dma_st=None, stats=False, lastld=-100, qempty=None)
    godone = {}
    def moves(p):
        prev = None
        for i in range(16):
            prev = q.add(Op(f"v_accvgpr_write_b32 a{GO+16*p+i}, v{GT+i}", deps=[(prev, 0)] if prev else []))
            godone.setdefault(4*p + i//4, []).append(prev)
        return prev
    def dma_due(m, mr, left, dmaq):
        if front and m >= front: return not dmaq[0][1] or mr % 2 == 1 or len(dmaq) >= left
        if (m < B0 and not dsp0) or dsp == 0: return mr % 2 == 1 or len(dmaq) >= left//2 + 1
        if len(dmaq) >= left: return True
        nd = sum(1 for _, isd in dmaq if isd)
        if not dmaq[0][1]:
            return nd == 0 or left <= (nd - 1)*dsp + dtail + 2
        return left <= (nd - 1)*dsp + dtail
    def gap(m, inbody, fillall=False):
        d = M[m]
        dmaq = st8["dmaq"]
        deps = []
        if d["xs"] is not None and m < B0:
            while not any(t == ("x", d["xs"]) for t in e.vm): emit_early()
            e.wait_vm(lambda t: t == ("x", d["xs"]))
        if d["ph"] == 2:
            kind, fi = d["gsrc"]
            if kind == "cv":
                for o in gdone[fi]:
                    if o.pos is None: q.drain_until(o)
                    deps.append((o, 2))
            elif kind == "gp":
                while not any(t == (kind, fi) for t in e.vm):
                    assert ldq, (m, kind, fi)
                    emit_list(ldq.pop(0))
                e.wait_vm(lambda t: t == (kind, fi))
        if d["dst"]:
            for o in oldbusy.get(d["dst"], []):
                if o.pos is None: q.drain_until(o)
            oldbusy[d["dst"]] = []
        fr = FR + 4*(m % 12)
        cs = "0" if d["first"] else rng(d["acc"])
        mo = e.op(Op(f"v_mfma_f32_32x32x16_bf16 {rng(d['dst'] or d['acc'])}, a[{fr}:{fr+3}], {d['b']}, {cs}", deps=deps))
        used = 0
        if timing and not fillall: tm.stamp(m) if fused else (tm.stamp(STAMPS.index(m)) if m in STAMPS else None)
        if d["last"]:
            if d["ph"] == 1:
                lastm[(d["unit"], d["mat"])] = mo
                if d["mat"] == 1:
                    a = int((d["dst"] or d["acc"])[1:])
                    pend_gelu.append((d["unit"], a - 16, a, lastm[(d["unit"], 0)], mo))
            else:
                add_out(d["tile"], d["acc"], mo)
        if not fillall:
            while pend_gelu: add_gelu(*pend_gelu.pop(0), inbody)
        mr = m + LA
        isbar = mr < NM and mr % 36 == 0
        if isbar:
            st = mr // 36
            assert not dmaq
            while st <= 3 and sum(1 for t in e.vm if t == ("dma", st)) < 9: emit_early()
            if e.wait_vm(lambda t: t == ("dma", st)): used += 1
            e("s_barrier"); used += 2
            if 4 <= st + 2 < NST:
                dmaq.extend(dma_instrs(st + 2, inbody)); st8["dma_st"] = st + 2
        if mr < NM:
            reads(mr); used += 2
        if not isbar and not fillall:
            early_dma = any(tag and tag[0] == "dma" for _, L in early for _, tag in L)
            left = 35 - mr % 36
            if m < B0 and not dsp0 and dmaq and not early_dma and not dmaq[0][1]:
                while dmaq and not dmaq[0][1]:
                    e(dmaq.pop(0)[0]); used += 1
                if early and early[0][0] - lead <= m: used += emit_early()
            elif early and (early[0][0] - lead <= m or (early_dma and dmaq)) and not (dmaq and not early_dma and len(dmaq) >= left - 2):
                used += emit_early()
            elif dmaq and not early_dma and dma_due(m, mr, left, dmaq) and not (m in actions and len(dmaq) < left):
                t, isd = dmaq.pop(0)
                if isd: e.vmem(t, ("dma", st8["dma_st"])); used += vcost
                else: e(t); used += 1
            elif m in actions:
                pass
            elif wdpf and B0 <= m < B1 and (m - B0) % 144 == 68:
                e.vmem(f"buffer_load_dword v1, v{VPF}, s[{S_WD}:{S_WD+3}], s{S_PF} offen", "pf")
                e(f"s_add_u32 s{S_PF}, s{S_PF}, {14*128}"); used += 1 + vcost
            elif front and m >= front and m < 864 and dmaq:
                pass
            elif mem_ready():
                used += pop_mem() + vcost - 1
            elif ldq and m - st8["lastld"] >= (ldpace if m < f2[3] else 2):
                used += emit_list(ldq.pop(0)) + vcost - 1; st8["lastld"] = m
        if m in actions and not fillall:
            used += actions[m]()
        if not st8["stats"] and sum(1 for t in e.vm if t == "st") == 6 and m >= stat:
            stats_ops(); st8["stats"] = True
        needwait = (m + 1) % 4 == 0 and m + 1 < NM
        bud = (bud2 if B1 <= m < f2[0] else (bud0 if m < B0 else budget)) - used - (1 if needwait else 0)
        if B0 <= m < B1:
            rem = sum(o.cost for o in q.q); gl = 144 - (m - B0) % 144
            if rem > slack*gl: bud += 1
        if fillall: bud += 1
        if bud > 0: q.fill(bud)
        if m > 650 and not q.q and st8["qempty"] is None: st8["qempty"] = m
        if needwait: e.wait_lg(lambda t: t <= m + 4)
    pend_gelu = []
    def endpair():
        q.drain()
        while memq: pop_mem()
        assert not st8["dmaq"]
    def head(m0, p, extra=""):
        if p >= 0:
            chain(f"s_add_u32 s{S_GO}, s{S_GO}, 4096\n" + extra)
            moves(p)
        for m in range(m0, m0 + HD): gap(m, True, fillall=True)
        q.drain()
    lastS = max(st for st, x in enumerate(ST1) if x[0] == "S")
    actions[36*(lastS - 1) - LA + 2] = lambda: chain([f"v_mov_b32 v{VB+i}, v{V1+i}" for i in range(9)]) and 0
    mb = B1 - 144
    def seed():
        e.vm = [("dma", 14)]*9 + [("dma", 15)]*9; e.vm_done = 0
        e.lg = [mb + k//2 for k in range(16)]; e.lg_done = 8
        st8["dmaq"].clear(); pend_gelu.clear()
    sv = (e.lines, e.vm, e.vm_done, e.lg, e.lg_done, q.q); e.lines = []; q.q = []
    ev = [f"v_mov_b32 v{VB+i}, v{VE+i}" for i in range(3)] + [f"v_add_u32 v{VB+3+i}, {8*1152}, v{VE+i}" for i in range(3)] + \
         [f"v_add_u32 v{VB+6+i}, 384, v{r_}" for i, r_ in enumerate((VE, VP1, VS))]
    for p, extra in ((0, ""), (1, f"s_mov_b32 s{S_B0}, s{S_OWN}\n" + ev[0] + f"\ns_add_u32 s{S_B1}, s{S_OWN}, {64*1152}\n" + "\n".join(ev[1:4]) +
                      f"\ns_mov_b64 s[{S_W2}:{S_W2+1}], s[{S_WD}:{S_WD+1}]\n" + "\n".join(ev[4:7]) + f"\ns_mov_b32 s{S_W2+2}, s{S_WD+2}\n" + "\n".join(ev[7:]))):
        e(f"K3_head{p}:")
        tm.stamp(-1-p)
        seed(); head(mb, p, extra)
        e("s_branch K3_body")
    side_lines = e.lines
    e.lines, e.vm, e.vm_done, e.lg, e.lg_done, q.q = sv
    st8["dmaq"].clear(); pend_gelu.clear(); chl[0] = None
    for m in range(B0): gap(m, False)
    assert not early and not st8["dmaq"]
    e.wait_vm(lambda t: t and t[0] == "x")
    seed(); head(mb, -1)
    k_vm = len(e.vm)
    while memq: pop_mem()
    e.vm = e.vm[:k_vm]
    e(".p2align 3\nK3_body:")
    tstate["last"] = [None, None]
    actions[mb + 40] = lambda: e(f"s_add_u32 s{S_CNT}, s{S_CNT}, 1") or 1
    for m in range(mb + HD, B1): gap(m, True)
    endpair()
    e(f"s_cmp_eq_u32 s{S_CNT}, 1\ns_cbranch_scc1 K3_head0\ns_cmp_eq_u32 s{S_CNT}, 2\ns_cbranch_scc1 K3_head1")
    chain(f"s_add_u32 s{S_GO}, s{S_GO}, 4096")
    lastmv = moves(2)
    tstate["last"] = [lastmv, lastmv]
    for m in range(B1, NM): gap(m, False)
    while q.q or memq:
        if mem_ready(): pop_mem()
        else: q.drain_until(q.q[0])
    if fused:
        tm.stamp(-12)
        while ldq: emit_list(ldq.pop(0))
        if sig1: pollB()
        srd(e, S_W, 26, ACT_BYTES)
        e(f"v_mov_b32 v14, 0x3f80\nv_mov_b32 v15, 0x3f800000\ns_mov_b32 s54, 0xaaaaaaaa\ns_mov_b32 s55, 0xaaaaaaaa")
        for i in range(12): e(f"v_accvgpr_read_b32 v{HR+i}, a{HA+i}")
        def loads(k):
            for j in range(NPART): emit_list(pload(k, j))
        AC = 28
        def red(k):
            H = HR + 4*k; O_ = 16 + 4*k
            for j in range(NPART):
                e.wait_vm(lambda t: t == (k, j))
                for d in range(4):
                    r = PBR[k] + 4*j + d
                    if j == 0: e(f"v_lshlrev_b32 v{AC+2*d}, 16, v{r}\nv_and_b32 v{AC+1+2*d}, 0xffff0000, v{r}")
                    else: e(f"v_dot2c_f32_bf16 v{AC+2*d}, v{r}, v14\nv_dot2c_f32_bf16 v{AC+1+2*d}, v{r}, v15")
            e("s_nop 1")
            for d in range(4): e(f"v_cvt_pk_bf16_f32 v{O_+d}, v{AC+2*d}, v{AC+1+2*d}")
            for d in range(4): e(f"v_lshlrev_b32 v{AC+2*d}, 16, v{H+d}\nv_and_b32 v{AC+1+2*d}, 0xffff0000, v{H+d}")
            for d in range(4): e(f"v_dot2c_f32_bf16 v{AC+2*d}, v{O_+d}, v14\nv_dot2c_f32_bf16 v{AC+1+2*d}, v{O_+d}, v15")
            e("s_nop 1")
            for d in range(4): e(f"v_cvt_pk_bf16_f32 v{O_+d}, v{AC+2*d}, v{AC+1+2*d}")
            e("s_nop 0")
            for d in range(4): e(f"v_mov_b32_dpp v{AC+d}, v{O_+d} quad_perm:[1,0,3,2] row_mask:0xf bank_mask:0xf")
            for d in range(2): e(f"v_cndmask_b32 v{O_+d}, v{O_+d}, v{AC+2+d}, s[54:55]\nv_cndmask_b32 v{O_+2+d}, v{AC+d}, v{O_+2+d}, s[54:55]")
        def ostore(k):
            e.vmem(f"buffer_store_dwordx4 v[{16+4*k}:{19+4*k}], v{VRO+k}, s[{S_W}:{S_W+3}], s{S_XO} offen{of}", "o")
        if not sig0: sigB(0)
        e(f"v_mov_b32 v1, 0x10000")
        own = 0x10000
        if not sig1:
            e(f"v_mov_b32 v{VF}, 0x100"); own = 0x10100
            e.wait_vm(lambda t: t == ("store", 1))
            e.vmem(f"buffer_atomic_add v{VF}, v{VLZ}, s[{S_FL}:{S_FL+3}], s25 offen sc0 sc1", "plb")
        e.wait_vm(lambda t: t == ("store", 2))
        e.vmem(f"buffer_atomic_add v1, v{VLZ}, s[{S_FL}:{S_FL+3}], s25 offen sc0 sc1", "pl2")
        tm.stamp("B0")
        e.wait_vm(lambda t: t == "plb")
        e(f"{rd}\ns_add_u32 s5, s5, {hex(own)}")
        g0 = 1 if pol0 else 0
        for g in range(g0, 3):
            e(chk(g) + f"\ns_cbranch_scc1 K3_L{g}")
            e(f"s_waitcnt vmcnt({8*(g-g0)})\nv_readfirstlane_b32 s7, v1\ns_nop 1\ns_add_u32 s7, s7, 0x10000\ns_max_u32 s5, s5, s7\n{chk(g)}\ns_cbranch_scc1 K3_L{g}")
            e(f"K3_P{g}:\n{apoll(25)}\ns_waitcnt vmcnt(0)\n{rd}\n{chk(g)}\ns_cbranch_scc0 K3_P{g}\nK3_L{g}:")
            tm.stamp(["B1", "B2", -13][g])
            loads(g)
            if g == 1 and pol0: red(0)
        if not pol0: red(0)
        ostore(0); red(1); ostore(1); red(2); ostore(2)
    tm.end("K3_end")
    e("K3_end:\ns_endpgm")
    e.lines += side_lines
    for name, val in spins:
        e(f"""K3_spin{name}:
buffer_load_dword v{VF}, v{VZ}, s[{S_FL}:{S_FL+3}], s{S_FR} offen sc0 sc1
s_waitcnt vmcnt(0)
v_readfirstlane_b32 s{S_TMP}, v{VF}
s_nop 1
s_cmp_ge_u32 s{S_TMP}, {val}
s_cbranch_scc0 K3_spin{name}
s_branch K3_ret{name}""")
    for t_ in tails: e(t_)
    if fused: e("KB_last:\ns_endpgm")
    e(f"; gelu queue empty at gap {st8['qempty']}")
    return e.text()
if __name__ == "__main__":
    t = gen_k3()
    print(t)
```

```python
import sys
from asmgen import kernel_header, kernel_desc
from sched import Em
from tim import Tim, Diag
from kb import TP
from kf1 import gen_f1
from kf2 import gen_f2
from kf3 import gen_f3 as gen_k3
import tim
tim.WSP = 16
P = dict(C=2, timing=0, pf=1, cpf=1, tsel=3, diag=None, aslist=0)
K = {1: {}, 2: {}, 3: {"na": 3}}
for kv in sys.argv[1:]:
    k, v = kv.split("=")
    if k[0] == "k" and k[2] == ".": K[int(k[1])][k[3:]] = eval(v)
    else: P[k] = eval(v)
T = bool(P["timing"])
NAME = "sequential_preLN__linear_attn_block__geglu_ffn__prompt_kernel"
hdr = open("sequential_preLN__linear_attn_block__geglu_ffn__prompt.s.ref").read().split("; Override")[0]
print(hdr, end="")
print(f"; @launch {'kernel=' + NAME + ' ' if P['aslist'] else ''}grid=(256,1,1) block=(256,1,1) lds=160768")
print('.amdgcn_target "amdgcn-amd-amdhsa--gfx950"\n.text')
e = Em()
tm = Tim(e, 3, T)
sel = {1: ({i: i for i in range(6)}, {0: 6, 1: 7, 2: 8, 3: 9, 8: 10}, {0: 11}),
       2: ({5: 0}, {i: i + 1 for i in range(9)}, {-11: 10, 0: 11}),
       3: ({5: 0}, {2: 1, 8: 2}, {k: i + 3 for i, k in enumerate([0, 207, -2, 640, 756, 864, 971, 'B0', -13])}),
       5: ({}, {}, {k: i for i, k in enumerate([0, 72, 144, 207, -1, -2, 640, 720, 792, 864, 936, 971])}),
       6: ({}, {}, {k: i for i, k in enumerate([-2, 640, 648, 684, 720, 756, 792, 828, 864, 900, 936, 971])}),
       4: ({}, {8: 0}, {k: i + 1 for i, k in enumerate(['A0', 'A1', -11, 0, 207, 971, -12, 'B0', 'B1', 'B2', -13])})}[P["tsel"]]
if P.get('st'): sel = ({}, {}, {k: i for i, k in enumerate(P['st'])})
tps = [TP(tm, m) for m in sel]
if P["diag"]: tps = [Diag(e, *P["diag"], k, P.get("dwg", 130)) for k in (1, 2, 3)]; T = True
o0 = K[3].get("order0", "PSPSPP")
F = dict(perm=P.get('perm', [0, 1, 3, 2]), e=e, tm3=tps[2], early=[(c, o0[:i].count(c)) for i, c in enumerate(o0)])
left = gen_f1(e, tps[0], C=P["C"], prefetch=P["pf"], cpf=P["cpf"], **K[1])
gen_f2(e, tps[1], F, left, C=P["C"], prefetch=P["pf"], **K[2])
print(kernel_header(NAME) + gen_k3(timing=T, fused=F, C=P["C"], **K[3]) + kernel_desc(NAME, 512, 102, 256))
```

```python
from sched import *
from layout import *
from k3 import srd, f2u
from k1 import mask64, smask, ln_stats2, code_prefetch, slice_of_xcd, BIG, LBIG, L2E, LN2
SLOT = 36864
KVB = 110592
S_WS_ = 8; S_W = 12; S_WO = 16; S_X = 20; S_DBG = 24
S_I = 28; S_G = 29; S_KV = 30; S_XO = 31; S_RT = 32; S_CG = 33; S_WV = 34; S_WB = 35; S_WF = 36; S_WOO = 37; S_WL = 38; S_SIG = 39
VWO = 5
WSL = (1, 2, 0)

def gen_f1(e, tm, C=2, prefetch=True, cpf=True, gate_at=(6, 7), wp=30, pf1=(0, 5, 4), xt=5, dper=4, xpre=0, wsp=12, wlate=False, w7=3, w8=12, lper=4, nl=6, stl=0, idle=1):
    W = f"s[{S_WS_}:{S_WS_+3}]"
    AB = 12; T = 20; ONES = 24; PV = 24; CSV = 44; RSV = 80; PK = 54; ACC = 116; TT = 188
    VX = 204; VW = 208; WA = 216; GA = 230; ZB = 236
    XF = 0; WF = 16
    e("s_cmp_ge_u32 s2, 256\ns_cbranch_scc1 K3_end")
    e("s_load_dwordx4 s[40:43], s[0:1], 0\ns_load_dwordx4 s[44:47], s[0:1], 64\ns_load_dwordx2 s[48:49], s[0:1], 16")
    e(f"v_lshrrev_b32 v1, 6, v0\nv_and_b32 v2, 63, v0\ns_nop 0\nv_readfirstlane_b32 s{S_WV}, v1")
    if cpf:
        e(f"s_lshr_b32 s6, s2, 3\ns_lshl_b32 s6, s6, 10\nv_lshrrev_b32 v3, 5, v0")
        code_prefetch(e, "F_pc", "F_pc", "F_k2", 3, 252, 6)
    tm.start()
    e(f"""s_cmp_lt_u32 s2, 64
s_cbranch_scc1 F_spare
s_lshr_b32 s4, s2, 3
s_and_b32 s3, s2, 7
s_sub_u32 s4, s4, 8
s_lshr_b32 s5, s3, 1
s_lshl_b32 s5, s5, 2
s_and_b32 s6, s4, 3
s_add_u32 s{S_I}, s5, s6
s_lshr_b32 s4, s4, 2
s_and_b32 s3, s3, 1
s_lshl_b32 s5, s3, 2
s_add_u32 s5, s5, s4
s_lshl_b32 s6, s3, 1
s_add_u32 s6, s6, s4
s_sub_u32 s6, s6, 4
s_cmp_lt_u32 s4, 4
s_cselect_b32 s{S_G}, s5, s6
s_cselect_b32 s{S_KV}, 1, 0""")
    e(f"v_lshrrev_b32 v3, 3, v2\nv_and_b32 v{T}, 7, v2\nv_lshrrev_b32 v{T+1}, 1, v3\nv_xor_b32 v{T}, v{T}, v{T+1}")
    e(f"v_mul_u32_u24 v3, 1152, v3\nv_lshl_add_u32 v{VX}, v{T}, 4, v3\nv_xor_b32 v{T}, 4, v{T}\nv_lshl_add_u32 v{VX+1}, v{T}, 4, v3")
    e(f"v_add_u32 v{VX+1}, {8*1152-1024}, v{VX+1}\nv_add_u32 v{VX+2}, {16*1152-2048}, v{VX}\nv_add_u32 v{VX+3}, {16*1152-2048}, v{VX+1}")
    e(f"""s_lshl_b32 s5, s{S_I}, 2
s_add_u32 s52, s5, s{S_WV}
s_mul_i32 s{S_XO}, s52, {32*1152}
s_mul_i32 s{S_WB}, s{S_WV}, 9216
s_mul_i32 s5, s{S_G}, 144
s_add_u32 s6, s5, 1152
s_lshl_b32 s5, s5, 1
s_cmp_eq_u32 s{S_KV}, 1
s_cselect_b32 s53, s6, s5
s_movk_i32 s7, 144
s_cselect_b32 s7, 1152, s7
s_mul_i32 s{S_WF}, s{S_WV}, {16*3456}
s_add_u32 s{S_WF}, s{S_WF}, s53
s_movk_i32 s50, 3456""")
    for i in range(5):
        r = VW + i
        e(f"v_add_u32 v3, {64*i}, v2\nv_mul_u32_u24 v{T}, 7282, v3\nv_lshrrev_b32 v{T}, 16, v{T}\nv_mul_u32_u24 v{T+1}, 9, v{T}\nv_sub_u32 v3, v3, v{T+1}")
        e(f"v_and_b32 v{T+1}, 1, v{T}\nv_mul_u32_u24 v{T+1}, s7, v{T+1}\nv_lshl_add_u32 v3, v3, 4, v{T+1}\nv_lshrrev_b32 v{T}, 1, v{T}")
        if i >= 2: e(f"v_lshrrev_b32 v{T+1}, 1, v{T}\nv_and_b32 v{T+1}, 4, v{T+1}\nv_xor_b32 v{T}, v{T}, v{T+1}")
        e(f"v_mad_u32_u24 v{r}, v{T}, s50, v3")
        if i % 4: e(f"v_subrev_u32 v{r}, {(i%4)*1024}, v{r}")
    e(f"v_cmp_gt_u32 s[50:51], 32, v2\nv_mov_b32 v3, {BIG}\ns_waitcnt lgkmcnt(0)\nv_cndmask_b32 v{VW+4}, v3, v{VW+4}, s[50:51]")
    srd(e, S_X, 40, ACT_BYTES)
    srd(e, S_W, 42, 576*1728*2)
    def dma(st):
        b = (st % 4)*SLOT
        L = [([f"s_add_u32 m0, s{S_WB}, {b}", f"s_add_u32 s54, s{S_XO}, {128*st}"] if k == 0 else [],
              f"buffer_load_dwordx4 v{VX+k}, s[{S_X}:{S_X+3}], s54 offen" + (f" offset:{k*1024}" if k else "") + " lds") for k in range(4)]
        L += [([f"s_add_u32 m0, s{S_WB}, {b+4096}", f"s_add_u32 s55, s{S_WF}, {64*3456*st}"] if k == 0 else [],
               f"buffer_load_dwordx4 v{VW+k}, s[{S_W}:{S_W+3}], s55 offen" + (f" offset:{k*1024}" if k else "") + " lds") for k in range(4)]
        L += [([f"s_add_u32 m0, s{S_WB}, {b+8192}", "s_nop 0"], f"buffer_load_dwordx4 v{VW+4}, s[{S_W}:{S_W+3}], s55 offen lds")]
        return [(pre, t, ("dma", st)) for pre, t in L]
    def issue(x):
        for p in x[0]: e(p)
        e.vmem(x[1], x[2])
    e.vm = []; e.vm_done = 0
    for x in dma(0): issue(x)
    tm.stamp(0)
    srd(e, S_WS_, 46, WS_BYTES)
    srd(e, S_DBG, 44, 256)
    d1 = dma(1)
    e(f"v_and_b32 v{T}, 15, v2\nv_lshrrev_b32 v{T+1}, 4, v2")
    e(f"v_lshrrev_b32 v3, 1, v{T}\nv_xor_b32 v3, v3, v{T+1}\nv_lshlrev_b32 v3, 4, v3\nv_lshl_add_u32 v3, v{T}, 7, v3\nv_add_u32 v{AB}, s{S_WB}, v3\nv_xor_b32 v3, 64, v3\nv_add_u32 v{AB+1}, s{S_WB}, v3")
    e(f"v_and_b32 v3, 1, v{T+1}\nv_mul_u32_u24 v3, 12, v3\nv_bfe_u32 v{T+2}, v2, 2, 2\nv_add_u32 v3, v3, v{T+2}")
    e(f"v_xor_b32 v{T+2}, 4, v3\nv_mul_u32_u24 v3, 288, v3\nv_mul_u32_u24 v{T+2}, 288, v{T+2}")
    e(f"v_lshrrev_b32 v1, 5, v2\nv_mul_u32_u24 v1, 9216, v1\nv_and_b32 v{T+3}, 3, v2\nv_lshl_add_u32 v1, v{T+3}, 3, v1\nv_add_u32 v1, 4096, v1")
    e(f"v_add_u32 v{AB+2}, v1, v3\nv_add_u32 v{AB+3}, v1, v{T+2}")
    for i in range(4): e(f"v_add_u32 v{AB+4+i}, {2*SLOT}, v{AB+i}")
    c0 = hex(f2u(1e-6 * L2E))
    e(f"s_mov_b32 s56, {hex(f2u(LN2))}\ns_mov_b32 s57, {hex(f2u(LN2))}\ns_mov_b32 s58, {c0}\ns_mov_b32 s59, {c0}")
    def wo_setup():
        L = [f"s_lshr_b32 s4, s2, 3\ns_sub_u32 s5, s4, 8\ns_cmp_lt_u32 s4, 8\ns_cselect_b32 s5, s4, s5\ns_lshr_b32 s{S_CG}, s5, 2\ns_and_b32 s5, s5, 3\ns_and_b32 s4, s2, 7\ns_lshl_b32 s4, s4, 2\ns_add_u32 s{S_RT}, s4, s5"]
        for i in range(3):
            L += f"v_add_u32 v3, {64*i}, v2\nv_mul_u32_u24 v1, 5462, v3\nv_lshrrev_b32 v1, 16, v1\nv_mul_u32_u24 v{VWO+i}, 12, v1\nv_sub_u32 v3, v3, v{VWO+i}\nv_mul_u32_u24 v1, 1152, v1\nv_lshl_add_u32 v{VWO+i}, v3, 4, v1".split("\n")
            if i: L.append(f"v_subrev_u32 v{VWO+i}, {i*1024}, v{VWO+i}")
        L += f"""s_mul_i32 s{S_WOO}, s{S_WV}, {144*1152}
s_mul_i32 s5, s{S_CG}, 192
s_add_u32 s{S_WOO}, s{S_WOO}, s5
s_mul_i32 s{S_WL}, s{S_WV}, 9216
s_mov_b32 s{S_WO}, s48
s_and_b32 s{S_WO+1}, s49, 0xffff
s_mov_b32 s{S_WO+3}, 0x20000
s_lshr_b32 s5, s2, 6""".split("\n")
        L.append(f"s_cmp_eq_u32 s5, {1 if idle else 7}\ns_cselect_b32 s{S_WO+2}, 0, {576*576*2}")
        return L
    def st_setup():
        return f"""v_and_b32 v215, 15, v2
v_lshrrev_b32 v213, 5, v2
v_lshl_add_u32 v215, v213, 4, v215
v_mul_u32_u24 v213, 1152, v215
v_bfe_u32 v214, v2, 4, 1
v_lshl_add_u32 v213, v214, 4, v213
v_lshlrev_b32 v215, 2, v215
v_lshrrev_b32 v214, 4, v2
v_mul_u32_u24 v214, 80, v214
s_lshr_b32 s5, s{S_WV}, 1
s_lshl_b32 s101, s{S_RT}, 1
s_add_u32 s101, s101, s5
s_mul_i32 s99, s101, 36864
s_lshl_b32 s101, s101, 7
s_add_u32 s101, s101, {WS_MX}
s_mul_i32 s5, s{S_CG}, 192
s_add_u32 s99, s99, s5
s_and_b32 s5, s{S_WV}, 1
s_mul_i32 s5, s5, 96
s_add_u32 s99, s99, s5
s_mul_i32 s100, s{S_WV}, 320
s_add_u32 s100, s100, {WS_WB}""".split("\n")
    def st_loads():
        L = [([], f"buffer_load_dwordx4 a[{180+4*k}:{183+4*k}], v214, {W}, s100 offen" + (f" offset:{16*k}" if k else "") + " sc0 sc1", "sd2") for k in range(5)]
        L.append(([], f"buffer_load_dword a240, v215, {W}, s101 offen sc0 sc1", "sd2"))
        L += [([], f"buffer_load_dwordx4 a[{228+4*k}:{231+4*k}], v213, s[{S_X}:{S_X+3}], s99 offen" + (f" offset:{32*k}" if k else ""), "st2") for k in range(3)]
        return L
    def wo_dma():
        return [([f"s_add_u32 m0, s{S_WL}, {WSL[i//9]*SLOT + (i%9)*1024}", f"s_add_u32 s54, s{S_WOO}, {(i//3)*16*1152}"] if i % 3 == 0 else [],
                 f"buffer_load_dwordx4 v{VWO+i%3}, s[{S_WO}:{S_WO+3}], s54 offen" + (f" offset:{(i%3)*1024}" if i % 3 else "") + " lds", "wo") for i in range(27)]
    for l in wo_setup() + st_setup(): e(l)
    for x in d1: issue(x)
    e(f"s_cmp_eq_u32 s{S_KV}, 0\ns_cbranch_scc1 F_q")
    vm0 = (list(e.vm), e.vm_done)

    q = Queue(e, window=1)
    def emit_op(o, _orig=e.op):
        if callable(o.text):
            o.text(); o.pos = e.n - 1; return o
        return _orig(o)
    e.op = emit_op
    def fill_lines(text):
        for l in (text.split("\n") if isinstance(text, str) else text):
            n = l.count("\n") + 1
            q.add(Op(l, cost=n))
    def rdlist(st, kk):
        b = AB + 4*((st % 4) >> 1); o = (st & 1)*SLOT
        rd = [f"ds_read_b128 a[{XF+8*kk+4*tt}:{XF+8*kk+4*tt+3}], v{b+kk} offset:{o + 2048*tt}" for tt in range(2)]
        for ct in range(9):
            r = WF + 36*kk + 4*ct
            rd.append(f"ds_read_b64_tr_b16 a[{r}:{r+1}], v{b+2} offset:{o + kk*18432 + ct*32}")
            rd.append(f"ds_read_b64_tr_b16 a[{r+2}:{r+3}], v{b+3} offset:{o + kk*18432 + ct*32}")
        return rd
    wq = []
    st_ = {"last": 0}
    def wpace(force=False):
        if wq and (force or e.n - st_["last"] >= wp):
            issue(wq.pop(0)); st_["last"] = e.n
    def mainloop(kind, side):
        e.vm, e.vm_done = list(vm0[0]), vm0[1]; e.lg = []; e.lg_done = 0
        e.wait_vm(lambda t: t == ("dma", 0))
        e("s_barrier")
        tm.stamp(1)
        for i, t in enumerate(rdlist(0, 0)): e.ds(t, (0, 0, i))
        dq = dma(2)
        for _ in range(4): issue(dq.pop(0))
        for st in range(9):
            for kk in range(2):
                nst = st if kk == 0 else st + 1
                rd = rdlist(nst, 1 - kk) if nst < 9 else []
                ri = 0; cnt = 0
                for ct in range(9):
                    for tt in range(2):
                        if cnt == 0: e.wait_lg(lambda t: t == (st, kk, 13 if kk == 0 else 19))
                        if cnt == 8: e.wait_lg(lambda t: t == (st, kk, 19))
                        d = ACC + 36*tt + 4*ct; x = f"a[{XF+8*kk+4*tt}:{XF+8*kk+4*tt+3}]"; wf = f"a[{WF+36*kk+4*ct}:{WF+36*kk+4*ct+3}]"
                        a, b = (wf, x) if kind == "q" else (x, wf)
                        e(f"v_mfma_f32_16x16x32_bf16 v[{d}:{d+3}], {a}, {b}, " + ("0" if st == 0 and kk == 0 else f"v[{d}:{d+3}]"))
                        cnt += 1
                        if kk == 1 and cnt == 1:
                            while dq: issue(dq.pop(0))
                            if nst < 9: e.wait_vm(lambda t: t == ("dma", nst))
                            e("s_barrier")
                            if nst == gate_at[0]:
                                e.vmem(f"buffer_load_dword v10, v11, s[{S_DBG}:{S_DBG+3}], 0 offen sc0 sc1", "gate")
                            if nst == gate_at[1]:
                                e.wait_vm(lambda t: t == "gate")
                                e(f"v_readfirstlane_b32 s5, v10\ns_nop 1\ns_cmp_eq_u32 s5, 64\ns_cbranch_scc0 F_sp{kind}\nF_rt{kind}:")
                            if nst + 2 < 9: dq = dma(nst + 2)
                            if nst == 7: dq = dq + side + (st_loads() if stl else []) + wo_dma()[:w7]
                            if nst == 8: dq = dq + wo_dma()[w7:w8]
                            if nst == 9: wq.extend(wo_dma()[w8:27-nl])
                        for _ in range(2 if cnt % 2 == 1 else 1):
                            if rd: e.ds(rd.pop(0), (nst, 1 - kk, ri)); ri += 1
                        per = dper if nst < 7 else (1 if dq and dq[0][2] in ('sd', 'sd2') else lper)
                        if dq and cnt % per == 0: issue(dq.pop(0))
                        elif nst == 9 and cnt % 6 == 0: wpace(True)
                        else: q.fill(2 if not rd else 1)
        assert not dq
        q.drain()
        tm.stamp(2)
    def pr(r): return f"v[{r}:{r+1}]"
    def bc(r, pos, n=3):
        base = r & ~1; hi = r & 1
        sel = [0]*n; selh = [1]*n
        sel[pos] = hi; selh[pos] = hi
        return pr(base), f" op_sel:{sel} op_sel_hi:{selh}".replace(", ", ",")
    def zipemit(*seqs):
        for k in range(max(map(len, seqs))):
            for s_ in seqs:
                if k < len(s_): e(s_[k])
            wpace()
    def phi4(a, t):
        return [f"v_exp_f32_e64 v{t+r}, v{a+r} clamp" for r in range(4)] + [f"v_max_f32 v{a+r}, s58, v{a+r}" for r in range(4)] + \
               [f"v_pk_fma_f32 {pr(a+r)}, {pr(a+r)}, s[56:57], {pr(t+r)}" for r in (0, 2)]
    pairs = []
    for hl in range(4):
        for a in (hl, hl + 1):
            for b in (hl + 4, hl + 5):
                if (a, b) not in pairs: pairs.append((a, b))
    def sm(m): return f"s_mov_b32 s50, {hex(m & 0xffffffff)}\ns_mov_b32 s51, {hex(m >> 32)}".split("\n")
    L = f"v_mov_b32 v11, 0\nv_mov_b32 v{ONES}, 0x3f803f80\ns_mul_i32 s6, s{S_WV}, 12288\ns_add_u32 s6, s6, {KVB}\nv_mul_u32_u24 v3, 80, v{T}\nv_lshl_add_u32 v3, v{T+1}, 4, v3\nv_add_u32 v3, s6, v3\nv_mov_b32 v{T+3}, {LBIG}".split("\n")
    L += f"v_lshlrev_b32 v8, 4, v{T+1}\nv_lshlrev_b32 v9, 2, v{T}\nv_lshrrev_b32 v4, 3, v{T}\nv_mul_u32_u24 v4, 2016, v4\nv_add_u32 v4, v4, v9".split("\n")
    for k, (a, b) in enumerate(pairs):
        first = True
        for hl in range(4):
            def valid(l):
                n, g = l & 15, l >> 4
                ec = 16*(b-4) - 8 + n
                if ec < 0 or ec // 18 != hl: return False
                return 0 <= 4*a + g - (9*hl)//2 < 5
            m = mask64(valid)
            if not m: continue
            const = hl*1520 + (16*(b-4) - 8 - 18*hl)*80 + (4*a - (9*hl)//2)*16
            L += sm(m) + [f"v_add_u32 v{T+2}, {const & 0xffffffff}, v3", f"v_cndmask_b32 v{WA+k}, v{T+3 if first else WA+k}, v{T+2}, s[50:51]"]
            first = False
    L += f"v_add_u32 v3, 1, v{T}\nv_lshrrev_b32 v3, 1, v3\nv_lshrrev_b32 v{T+2}, 1, v{T}\nv_lshl_add_u32 v3, v3, 2, v{T+1}\nv_mul_u32_u24 v1, 9, v{T+2}\nv_lshrrev_b32 v1, 1, v1\nv_sub_u32 v3, v3, v1".split("\n")
    L += sm(mask64(lambda l: (l & 15) < 8 and 0 <= 4*(((l & 15) + 1) >> 1) + (l >> 4) - (9*((l & 15) >> 1))//2 < 5))
    L += f"v_mul_u32_u24 v{T+2}, 1520, v{T+2}\nv_lshl_add_u32 v3, v3, 4, v{T+2}\ns_add_u32 s6, s6, {18*80}\nv_add_u32 v3, s6, v3\nv_cndmask_b32 v{WA+13}, v{T+3}, v3, s[50:51]".split("\n")
    for a in range(5):
        L += sm(mask64(lambda l: (l & 15) < 8 and ((l & 15) + 1) >> 1 == a))
        L += [f"v_cndmask_b32 v{ZB+4*a+i}, 0, v{ONES}, s[50:51]" for i in range(4)]
    L += f"s_mul_i32 s6, s{S_G}, 6080\nv_mov_b32 v{T+3}, {BIG}".split("\n")
    for i in range(6):
        L += f"""v_add_u32 v3, {256*i}, v0
v_mul_u32_u24 v{T+2}, 3277, v3
v_lshrrev_b32 v{T+2}, 16, v{T+2}
v_mul_u32_u24 v1, 20, v{T+2}
v_sub_u32 v1, v3, v1
v_mul_u32_u24 v{T+2}, 27, v{T+2}
v_lshrrev_b32 v{T+2}, 8, v{T+2}
v_and_b32 v{T+2}, 2, v{T+2}
v_sub_u32 v1, v1, v{T+2}
v_cmp_gt_u32 s[50:51], 18, v1
v_lshlrev_b32 v3, 2, v3
v_add_u32 v3, s6, v3
v_cndmask_b32 v{GA+i}, v{T+3}, v3, s[50:51]""".split("\n")
    L += f"v_cmp_gt_u32 vcc, 240, v0\ns_lshr_b32 s{S_SIG}, s{S_G}, 1\ns_lshl_b32 s{S_SIG}, s{S_SIG}, 12\nv_cndmask_b32 v{GA+5}, v{T+3}, v{GA+5}, vcc\ns_add_u32 s{S_SIG}, s{S_SIG}, {WS_FK}".split("\n")
    for l in L[:60]: e(l)
    fill_lines(L[60:])
    side = []
    pre = [f"s_lshl_b32 s52, s52, 7", f"s_lshl_b32 s53, s53, 1", f"s_add_u32 s53, s53, {WS_CS}"]
    for ct in (4, 5, 6, 7, 8, 0, 1, 2, 3):
        off = 64*ct + (2016 if ct > 4 else 0)
        side.append((pre, f"buffer_load_dword v{CSV+ct}, v{4 if ct == 4 else 9}, {W}, s53 offen offset:{off} sc0 sc1", "sd")); pre = []
    for k in range(4):
        for tt in range(2):
            r = RSV + 16*tt + 4*k
            side.append(([f"s_add_u32 s7, s52, {WS_S4 + 8192*k}"] if tt == 0 else [], f"buffer_load_dwordx4 v[{r}:{r+3}], v8, {W}, s7 offen" + (" offset:64" if tt else "") + " sc0 sc1", "sd"))
    mainloop("kv", side)
    e.wait_vm(lambda t: t == "sd")
    def kseq(ct, tt):
        a = ACC + 36*tt + 4*ct; R = RSV + 16*tt; t = TT + 4*tt
        o, sel = bc(CSV + ct, 1); d = PK + 4*ct + 2*tt
        return [f"v_pk_fma_f32 {pr(t+r)}, {pr(R+12+r)}, {o}, s[58:59]{sel}" for r in (0, 2)] + \
               [f"v_pk_fma_f32 {pr(a+r)}, {pr(a+r)}, {pr(R+8+r)}, {pr(t+r)}" for r in (0, 2)] + phi4(a, t) + \
               [f"v_cvt_pk_bf16_f32 v{d}, v{a}, v{a+1}", f"v_cvt_pk_bf16_f32 v{d+1}, v{a+2}, v{a+3}"]
    def vseq(ct, tt):
        a = ACC + 36*tt + 4*ct; R = RSV + 16*tt; t = TT + 8 + 4*tt
        o, sel = bc(CSV + ct, 1, 2); d = PV + 4*(ct-4) + 2*tt
        return [f"v_pk_mul_f32 {pr(t+r)}, {pr(R+4+r)}, {o}{sel}" for r in (0, 2)] + \
               [f"v_pk_fma_f32 {pr(t+r)}, {pr(a+r)}, {pr(R+r)}, {pr(t+r)}" for r in (0, 2)] + \
               [f"v_cvt_pk_bf16_f32 v{d}, v{t}, v{t+1}", f"v_cvt_pk_bf16_f32 v{d+1}, v{t+2}, v{t+3}"]
    e("s_nop 1")
    def zp(a, b): return [x for p in zip(a, b) for x in p]
    free = []; zreg = 112
    kvreg = {13: zreg}; wrq = []; lastw = [-100]
    def mf(a):
        for k, (pa, pb) in enumerate(pairs):
            if pa == a:
                d = free.pop(0); kvreg[k] = d
                e(f"v_mfma_f32_16x16x32_bf16 v[{d}:{d+3}], v[{PK+4*a}:{PK+4*a+3}], v[{PV+4*(pb-4)}:{PV+4*(pb-4)+3}], 0"); wrq.append((k, e.n))
        e(f"v_mfma_f32_16x16x32_bf16 v[{zreg}:{zreg+3}], v[{PK+4*a}:{PK+4*a+3}], v[{ZB+4*a}:{ZB+4*a+3}], " + ("0" if a == 0 else f"v[{zreg}:{zreg+3}]"))
        if a == 4: wrq.append((13, e.n))
    def em(l):
        e(l)
        if wrq and e.n - wrq[0][1] >= 9 and e.n - lastw[0] >= wsp:
            k = wrq.pop(0)[0]; e(f"ds_write_b128 v{WA+k}, v[{kvreg[k]}:{kvreg[k]+3}]"); lastw[0] = e.n
        else: wpace()
    for a in range(5):
        for ct in ((4, 5) if a == 0 else ((5 + a,) if a < 4 else ())):
            for l in zp(vseq(ct, 0), vseq(ct, 1)): em(l)
            if ct > 4: free += [ACC + 4*ct, ACC + 36 + 4*ct]
        ks = zp(kseq(a, 0), kseq(a, 1))
        for l in ks[:8]: em(l)
        if a > 0: mf(a - 1)
        for l in ks[8:]: em(l)
        free += [ACC + 4*a, ACC + 36 + 4*a]
        if a == 0: tm.stamp(3)
    e(f"v_lshlrev_b32 v3, 2, v0\nv_add_u32 v3, {KVB}, v3")
    mf(4)
    while wrq:
        k, pos = wrq.pop(0)
        while e.n - pos < 9:
            if wq: wpace(True)
            else: e("s_nop 0")
        e(f"ds_write_b128 v{WA+k}, v[{kvreg[k]}:{kvreg[k]+3}]")
    while wq and not wlate: wpace(True)
    tm.stamp(4)
    e(f"s_waitcnt lgkmcnt(0)\ns_barrier")
    RB = RSV
    e.lg = []; e.lg_done = 0
    for i in range(6):
        for w in range(0, 4, 2):
            e.ds(f"ds_read2st64_b32 v[{RB+4*i+w}:{RB+4*i+w+1}], v3 offset0:{(w*12288 + i*1024)//256} offset1:{((w+1)*12288 + i*1024)//256}", i)
    for i in range(6):
        e.wait_lg(lambda t: t == i)
        r = RB + 4*i
        e(f"v_pk_add_f32 {pr(r)}, {pr(r)}, {pr(r+2)}\nv_add_f32 v{r}, v{r}, v{r+1}")
        e(f"buffer_atomic_add_f32 v{r}, v{GA+i}, {W}, 0 offen sc1")
    while wq: wpace(True)
    e(f"v_cmp_gt_u32 vcc, 32, v0\nv_lshlrev_b32 v23, 7, v0\nv_mov_b32 v22, {BIG}\nv_cndmask_b32 v23, v22, v23, vcc\nv_mov_b32 v22, 1")
    tm.stamp(5)
    e("s_branch F_k2")
    e("F_q:")
    P = WA; CSQ = CSV; RSQ = RSV
    e(f"v_mov_b32 v11, 0\nv_lshlrev_b32 v8, 2, v{T}\nv_lshlrev_b32 v9, 4, v{T+1}\nv_lshlrev_b32 v4, 4, v2")
    e(f"s_lshl_b32 s5, s52, 2\ns_add_u32 s5, s5, s{S_G}\ns_mul_i32 s5, s5, 9216\ns_add_u32 s40, s5, {WS_PQ}\ns_add_u32 s41, s40, 4096\ns_add_u32 s42, s40, 8192")
    e(f"s_lshl_b32 s{S_SIG}, s{S_G}, 5\ns_lshr_b32 s5, s52, 1\ns_add_u32 s{S_SIG}, s{S_SIG}, s5\ns_lshl_b32 s{S_SIG}, s{S_SIG}, 7\ns_add_u32 s{S_SIG}, s{S_SIG}, {WS_FK}")
    side = []
    pre = [f"s_lshl_b32 s52, s52, 7", f"s_lshl_b32 s53, s53, 1", f"s_add_u32 s53, s53, {WS_CS}"]
    for ct in range(9):
        side.append((pre, f"buffer_load_dwordx4 v[{CSQ+4*ct}:{CSQ+4*ct+3}], v9, {W}, s53 offen" + (f" offset:{64*ct}" if ct else "") + " sc0 sc1", "sd")); pre = []
    for k in range(2):
        for tt in range(2):
            side.append(([f"s_add_u32 s7, s52, {WS_S4 + 8192*(2+k)}"] if tt == 0 else [], f"buffer_load_dword v{RSQ+2*tt+k}, v8, {W}, s7 offen" + (" offset:64" if tt else "") + " sc0 sc1", "sd"))
    mainloop("q", side)
    e.wait_vm(lambda t: t == "sd")
    def qseq(n):
        tt, ct = n // 9, n % 9
        a = ACC + 36*tt + 4*ct; t = TT + 4*(n % 2); d = P + 2*n
        o1, s1 = bc(RSQ + 2*tt + 1, 0); o2, s2 = bc(RSQ + 2*tt, 1)
        return [f"v_pk_fma_f32 {pr(t+r)}, {o1}, {pr(CSQ+4*ct+r)}, s[58:59]{s1}" for r in (0, 2)] + \
               [f"v_pk_fma_f32 {pr(a+r)}, {pr(a+r)}, {o2}, {pr(t+r)}{s2}" for r in (0, 2)] + phi4(a, t) + \
               [f"v_cvt_pk_bf16_f32 v{d}, v{a}, v{a+1}", f"v_cvt_pk_bf16_f32 v{d+1}, v{a+2}, v{a+3}"]
    for k in range(9):
        zipemit(qseq(2*k), qseq(2*k + 1))
        e(f"buffer_store_dwordx4 v[{P+4*k}:{P+4*k+3}], v4, {W}, s{40+k//4} offen" + (f" offset:{(k%4)*1024}" if k % 4 else "") + " sc0 sc1")
    while wq: wpace(True)
    e(f"v_cmp_eq_u32 vcc, 0, v2\nv_mov_b32 v22, {BIG}\ns_nop 0\nv_cndmask_b32_e64 v23, v22, 0, vcc\nv_mov_b32 v22, 0x100")
    tm.stamp(5)
    e("s_branch F_k2")
    for kind in ("kv", "q"):
        e(f"F_sp{kind}:\nbuffer_load_dword v10, v11, s[{S_DBG}:{S_DBG+3}], 0 offen offset:128 sc0 sc1\ns_waitcnt vmcnt(0)\nv_readfirstlane_b32 s5, v10\ns_nop 1\ns_cmp_eq_u32 s5, 63\ns_cbranch_scc0 F_sp{kind}\ns_branch F_rt{kind}")
    e("F_spare:")
    e(f"v_lshrrev_b32 v3, 3, v2\nv_and_b32 v{T}, 7, v2\nv_lshlrev_b32 v{T}, 4, v{T}\nv_mov_b32 v8, {BIG}\nv_mov_b32 v10, 0x3f803f80\nv_cmp_eq_u32 s[52:53], 0, v{T}")
    e(f"s_waitcnt lgkmcnt(0)")
    srd(e, S_X, 40, ACT_BYTES)
    srd(e, S_W, 42, 576*1728*2)
    srd(e, S_WS_, 46, WS_BYTES)
    e(f"s_cmp_ge_u32 s2, 37\ns_cbranch_scc1 F_cs")
    e(f"v_mul_u32_u24 v9, 1152, v3\nv_add_u32 v9, v9, v{T}")
    def touch():
        if not xt: return []
        t0 = xt
        e(f"s_and_b32 s3, s2, 7\ns_lshr_b32 s4, s2, 3\ns_and_b32 s5, s3, 1\ns_lshl_b32 s50, s5, 9\ns_mul_i32 s5, s4, {8*3456}\ns_add_u32 s50, s50, s5")
        e(f"s_xor_b32 s3, s3, 1\ns_lshl_b32 s3, s3, 3\ns_add_u32 s3, s3, s4\ns_mul_i32 s51, s3, {32*1152}")
        e(f"v_and_b32 v21, 15, v0\nv_mul_u32_u24 v22, 52, v21\nv_lshrrev_b32 v22, 8, v22\nv_lshl_add_u32 v22, v22, 2, v21\nv_lshlrev_b32 v22, 7, v22")
        e(f"v_bfe_u32 v23, v0, 4, 3\nv_lshrrev_b32 v1, 7, v0\nv_lshl_add_u32 v23, v1, 6, v23\nv_mul_u32_u24 v23, 3456, v23\nv_cmp_gt_u32 vcc, 15, v21\nv_add_u32 v22, v22, v23\nv_and_b32 v21, 31, v0\nv_cndmask_b32 v22, v8, v22, vcc")
        e(f"v_mul_u32_u24 v21, 1152, v21\nv_lshrrev_b32 v23, 5, v0\nv_cmp_gt_u32 vcc, {9-t0}, v23\nv_lshl_add_u32 v21, v23, 7, v21\ns_add_u32 s51, s51, {128*t0}\nv_cndmask_b32 v21, v8, v21, vcc")
        L = []
        for k, st in enumerate(range(t0, 9, 2)):
            L.append(f"s_add_u32 s5, s50, {64*3456*st}\nbuffer_load_dword v246, v22, s[{S_W}:{S_W+3}], s5 offen")
            if k == 0: L.append(f"buffer_load_dword v247, v21, s[{S_X}:{S_X+3}], s51 offen")
        return L
    def zero():
        e(f"v_cmp_gt_u32 vcc, 95, v0\nv_lshlrev_b32 v28, 3, v0\nv_mov_b32 v30, 0\nv_mov_b32 v31, 0\nv_cndmask_b32 v29, v8, v28, vcc\ns_mul_i32 s5, s2, 760\ns_lshl_b32 s4, s2, 11\ns_add_u32 s4, s4, {WS_FL}")
        e.vmem(f"buffer_store_dwordx2 v[30:31], v29, {W}, s5 offen sc0 sc1", "z"); e.vmem(f"buffer_store_dwordx2 v[30:31], v28, {W}, s4 offen sc0 sc1", "z")
    def rowloads(base, sr, so):
        for i in range(9):
            e.vmem(f"buffer_load_dwordx4 v[{base+4*i}:{base+4*i+3}], v9, s[{sr}:{sr+3}], s{so} offen" + (f" offset:{128*i}" if i else ""), (base, i))
    def rowsums(base, sq):
        e("v_mov_b32 v12, 0\nv_mov_b32 v13, 0")
        for i in range(9):
            e.wait_vm(lambda t: t == (base, i))
            for k in range(4):
                e(f"v_dot2c_f32_bf16 v12, v{base+4*i+k}, v10")
                if sq: e(f"v_dot2c_f32_bf16 v13, v{base+4*i+k}, v{base+4*i+k}")
        e("s_nop 2")
        for dpp in ("quad_perm:[1,0,3,2]", "quad_perm:[2,3,0,1]", "row_half_mirror"):
            e(f"v_add_f32_dpp v12, v12, v12 {dpp} row_mask:0xf bank_mask:0xf\nv_add_f32_dpp v13, v13, v13 {dpp} row_mask:0xf bank_mask:0xf\ns_nop 0")
    def wbar(base, su):
        e(f"s_mul_i32 s7, s{su}, 57\ns_lshr_b32 s7, s7, 10\ns_mul_i32 s5, s7, 18\ns_sub_u32 s4, s{su}, s5\ns_mul_i32 s7, s7, 320")
        e(f"s_lshr_b32 s5, s4, 1\ns_lshl_b32 s5, s5, 3\ns_add_u32 s7, s7, s5\ns_and_b32 s5, s4, 1\ns_mul_i32 s5, s5, 160\ns_add_u32 s7, s7, s5\ns_add_u32 s7, s7, {WS_WB}")
        e(f"v_lshrrev_b32 v14, 5, v2\nv_mul_u32_u24 v14, 80, v14\nv_bfe_u32 v15, v2, 3, 2\nv_lshl_add_u32 v14, v15, 1, v14\nv_cndmask_b32 v14, v8, v14, s[52:53]")
        rowsums(base, False)
        e(f"v_mul_f32 v12, {hex(f2u(1.0/576))}, v12\nv_cvt_pk_bf16_f32 v12, v12, v12")
        e.vmem(f"buffer_store_short v12, v14, {W}, s7 offen sc0 sc1", "st")
    e(f"s_cmp_ge_u32 s2, 32\ns_cbranch_scc1 F_wb2")
    e.vm = []; e.vm_done = 0
    e(f"s_and_b32 s6, s2, 7\ns_lshl_b32 s6, s6, 5\ns_and_b32 s5, s2, 24\ns_add_u32 s6, s6, s5\ns_lshl_b32 s5, s{S_WV}, 1\ns_add_u32 s6, s6, s5")
    e(f"s_mul_i32 s54, s6, {8*1152}\ns_add_u32 s55, s54, {8*1152}")
    rowloads(32, S_X, 54); rowloads(68, S_X, 55)
    for l in wo_setup(): e(l)
    e(f"s_add_u32 s3, s2, 40\ns_mul_i32 s54, s3, {8*1152}\ns_cmp_lg_u32 s{S_WV}, 0\ns_cselect_b32 s54, {BIG}, s54")
    rowloads(104, S_WO, 54)
    zero()
    e(f"v_lshrrev_b32 v3, 3, v2\nv_lshlrev_b32 v3, 2, v3\nv_cndmask_b32 v3, v8, v3, s[52:53]\ns_lshl_b32 s6, s6, 5")
    for u, base in enumerate((32, 68)):
        rowsums(base, True)
        e(f"v_mul_f32 v15, {hex(f2u(1.0/576))}, v12")
        ln_stats2(e, [(12, 13, 14, 16, 17)])
        e(f"v_mul_f32 v18, {hex(f2u(L2E))}, v16\nv_mul_f32 v19, {hex(f2u(L2E))}, v17")
        for k in range(4):
            e(f"s_add_u32 s5, s6, {WS_S4 + 8192*k + 32*u}")
            e.vmem(f"buffer_store_dword v{16+k}, v3, {W}, s5 offen sc0 sc1", "st")
        e(f"s_add_u32 s5, s6, {WS_MX + 32*u}")
        e.vmem(f"buffer_store_dword v15, v3, {W}, s5 offen sc0 sc1", "st")
    e(f"s_cmp_lg_u32 s{S_WV}, 0\ns_cbranch_scc1 F_sj")
    wbar(104, 3)
    e("s_branch F_sj\nF_wb2:")
    e.vm = []; e.vm_done = 0
    for l in wo_setup(): e(l)
    e(f"s_sub_u32 s6, s2, 32\ns_lshl_b32 s6, s6, 2\ns_add_u32 s6, s6, s{S_WV}\ns_lshl_b32 s6, s6, 1\ns_mul_i32 s54, s6, {8*1152}\ns_add_u32 s55, s54, {8*1152}")
    rowloads(32, S_WO, 54); rowloads(68, S_WO, 55)
    zero()
    e("s_add_u32 s3, s6, 1")
    wbar(32, 6); wbar(68, 3)
    e("s_branch F_sj")
    e("F_cs:")
    e(f"v_mul_u32_u24 v9, 3456, v3\nv_add_u32 v9, v9, v{T}\ns_sub_u32 s6, s2, 37\ns_mul_i32 s54, s{S_WV}, {144*3456}\ns_lshl_b32 s5, s6, 7\ns_add_u32 s54, s54, s5")
    e.vm = []; e.vm_done = 0
    for i in range(18):
        e.vmem(f"buffer_load_dwordx4 v[{32+4*i}:{35+4*i}], v9, s[{S_W}:{S_W+3}], s54 offen", i)
        if i < 17: e(f"s_add_u32 s54, s54, {8*3456}")
    zero()
    for l in wo_setup(): e(l)
    e("v_mov_b32 v10, 0x3f80\nv_mov_b32 v11, 0x3f800000")
    for k in range(8): e(f"v_mov_b32 v{12+k}, 0")
    e(f"v_lshlrev_b32 v3, 5, v0\nv_add_u32 v3, {KVB}, v3\nv_lshlrev_b32 v9, 2, v2\nv_add_u32 v{T}, {KVB}, v9\ns_lshl_b32 s6, s6, 8\ns_add_u32 s6, s6, {WS_CS}")
    for i in range(18):
        e.wait_vm(lambda t: t == i)
        for k in range(4): e(f"v_dot2c_f32_bf16 v{12+2*k}, v{32+4*i+k}, v10\nv_dot2c_f32_bf16 v{13+2*k}, v{32+4*i+k}, v11")
    e(f"s_nop 2\nds_write_b128 v3, v[12:15]\nds_write_b128 v3, v[16:19] offset:16\ns_waitcnt lgkmcnt(0)\ns_barrier\ns_cmp_lg_u32 s{S_WV}, 0\ns_cbranch_scc1 F_sj")
    for h in range(2):
        for k in range(8): e(f"ds_read2st64_b32 v[{32+16*h+2*k}:{33+16*h+2*k}], v{T} offset0:{16*h+2*k} offset1:{16*h+2*k+1}")
    e("s_waitcnt lgkmcnt(0)")
    for n in (8, 4, 2, 1):
        for k in range(n): e(f"v_pk_add_f32 v[{32+2*k}:{33+2*k}], v[{32+2*k}:{33+2*k}], v[{32+2*k+2*n}:{33+2*k+2*n}]")
    e(f"v_add_f32 v32, v32, v33\nbuffer_store_dword v32, v9, {W}, s6 offen sc0 sc1")
    e("F_sj:")
    e("s_load_dwordx4 s[40:43], s[0:1], 32")
    srd(e, S_DBG, 44, 256)
    TL = touch()
    for l in TL[:xpre]: e(l)
    e(f"v_cmp_eq_u32 vcc, 0, v2\nv_mov_b32 v4, 1\nv_mov_b32 v11, 0\nv_cndmask_b32_e64 v3, v8, 0, vcc\ns_waitcnt vmcnt({min(xpre, len(TL))}) lgkmcnt(0)\ns_barrier")
    tm.stamp(0)
    e(f"s_cmp_lg_u32 s{S_WV}, 3\ns_cbranch_scc1 F_nsg")
    e(f"buffer_atomic_add v4, v3, s[{S_DBG}:{S_DBG+3}], 0 offen sc0 sc1\nF_nsg:")
    for l in TL[xpre:]: e(l)
    e(f"s_cmp_lg_u32 s{S_WV}, 3\ns_cbranch_scc1 F_nsg2\ns_waitcnt vmcnt({len(TL[xpre:])})\nv_readfirstlane_b32 s5, v4\ns_nop 1\ns_cmp_lg_u32 s5, 63\ns_cbranch_scc1 F_nsg2")
    e(f"buffer_store_dword v4, v3, s[{S_DBG}:{S_DBG+3}], 0 offen offset:128 sc0 sc1\nF_nsg2:")
    if cpf:
        e(f"s_lshr_b32 s6, s2, 3\ns_lshl_b32 s6, s6, 13\ns_cmp_lg_u32 s{S_WV}, 3\ns_cbranch_scc1 F_ncp")
        code_prefetch(e, "F_pc2", "F_k2", "KB_last", 2, 248, 6)
        e("F_ncp:")
    if prefetch:
        srd(e, 52, 40, 576*4608*2); srd(e, 56, 42, 576*4608*2)
        slice_of_xcd(e, 5, 2, C)
        e(f"s_mul_i32 s5, s5, 1152\ns_lshr_b32 s6, s2, 3\ns_mul_i32 s6, s6, {72*9216}\ns_add_u32 s5, s5, s6")
        e(f"v_mul_u32_u24 v4, 911, v0\nv_lshrrev_b32 v4, 16, v4\nv_mul_u32_u24 v3, 72, v4\nv_sub_u32 v3, v0, v3\nv_mul_u32_u24 v3, 9216, v3")
        for k in range(0, len(pf1), 3):
            ls = list(pf1[k:k+3])
            e(f"v_mov_b32 v12, {BIG}")
            for i, ln in enumerate(ls):
                e(f"v_cmp_eq_u32 vcc, {i}, v4\nv_add_u32 v13, {ln*128}, v3\ns_nop 0\nv_cndmask_b32 v12, v12, v13, vcc")
            e(f"buffer_load_dword v244, v12, s[52:55], s5 offen\nbuffer_load_dword v245, v12, s[56:59], s5 offen")
    for x in (wo_dma()[:27-nl] if idle else []): issue(x)
    e(f"F_gate:\nbuffer_load_dword v10, v11, s[{S_DBG}:{S_DBG+3}], 0 offen offset:128 sc0 sc1\ns_waitcnt vmcnt(0)\nv_readfirstlane_b32 s5, v10\ns_nop 1\ns_cmp_eq_u32 s5, 63\ns_cbranch_scc1 F_gated\ns_sleep 4\ns_branch F_gate\nF_gated:")
    for l in st_setup(): e(l)
    for x in (st_loads() if stl else []): issue(x)
    e(f"v_mov_b32 v23, {BIG}\ns_mov_b32 s{S_SIG}, 0")
    tm.stamp(5)
    e("F_k2:")
    return wo_dma()[27-nl:], ([] if stl else st_loads())
assert all((n*911) >> 16 == n//72 for n in range(256))
```

```python
from sched import *
from layout import *
from k3 import srd, f2u, SLOT
from k1 import mask64, smask, BIG, LBIG, slice_of_xcd
from kf1 import KVB, S_WS_, S_WO, S_X, S_RT, S_CG, S_WV, S_WL, S_SIG, WSL
import math
MXC = KVB + 4*12288

def gen_f2(e, tm, F, left, C=2, prefetch=True, p1=11, dp=11, slp=4, pf2=(2, 7, 3, 8), npre=44, nw1=24, lead_=1.25, nbar=9, lsp=3, xe=1, npq=4, prog=1, bla=4, p0=6, npe=0, stlate=0, alupre=0, ndma=27, mfill=2):
    A = 24; O = 112; ADR = 112; RAW = 184; RD = 148; NR = 164; MIX = 180; GB = 184; ACC = 232
    VL16 = 4; TB = 8; VXA = 10; VST = 11; VSA = 12; VMX = 15; VD = 18; VLZ = 21; VF = 22
    XT = 232; XA = 200; MN = 212
    PQ = 0; WFR = 72; WB = 180
    S_RB = 35; S_WS = 36
    W = f"s[{S_WS_}:{S_WS_+3}]"
    sf = " sc0 sc1"
    lg = lambda x: int(math.log2(x))
    e.vm = []; e.vm_done = 0; e.lg = []; e.lg_done = 0
    e("s_load_dwordx4 s[12:15], s[0:1], 32\ns_load_dwordx4 s[40:43], s[0:1], 48")
    left, stat = left; left = list(left); nl = len(left)
    def lissue(n):
        for _ in range(n):
            if left:
                pre, t_, _ = left.pop(0)
                for p in pre: e(p)
                e(t_)
    e(f"""s_mul_i32 s{S_RB}, s{S_WV}, 12288
s_add_u32 s{S_RB}, s{S_RB}, {KVB}
s_mul_i32 s24, s{S_WV}, 12160
v_lshlrev_b32 v{VL16}, 4, v2
s_lshr_b32 s5, s{S_WV}, 1
s_lshl_b32 s6, s{S_RT}, 1
s_add_u32 s{S_WS}, s6, s5
s_lshl_b32 s5, s{S_WS}, 2
s_add_u32 s5, s5, s{S_WV}
s_xor_b32 s6, s5, 4
s_mul_i32 s25, s5, 9216
s_mul_i32 s26, s6, 9216
s_lshl_b32 s45, s{S_WV}, 5
s_add_u32 s45, s45, s{S_RT}
s_lshl_b32 s45, s45, 7
s_add_u32 s45, s45, {WS_FK}
v_cmp_eq_u32 vcc, 0, v2
v_mov_b32 v1, {BIG}
s_nop 0
v_cndmask_b32_e64 v{VLZ}, v1, 0, vcc""")
    e(f"v_and_b32 v13, 15, v2\nv_lshrrev_b32 v14, 4, v2\nv_mul_u32_u24 v3, 80, v13\nv_lshl_add_u32 v3, v14, 4, v3\nv_add_u32 v3, s{S_RB}, v3\nv_mov_b32 v16, {LBIG}")
    e(f"v_and_b32 v1, 3, v13\nv_mul_u32_u24 v17, 9, v1\nv_lshrrev_b32 v17, 1, v17\nv_sub_u32 v17, v14, v17\nv_lshlrev_b32 v17, 4, v17\nv_mul_u32_u24 v1, 1520, v1\nv_add3_u32 v17, v17, v1, s{S_RB}")
    frags = []; na = [0]; prep = []
    def addr(base, m):
        if m == 0: return None
        r = ADR + na[0]; na[0] += 1
        prep.append((r, base, m))
        return r
    zf = []
    for c, T0s in ((0, (0, 2, 4)), (1, (4, 6, 7))):
        for T0 in T0s:
            L = []
            for jj in range(2):
                T = T0 + jj
                def valid(l):
                    if c == 1 and T0 == 7 and jj == 0: return False
                    hs = 4*c + (l & 3); g = l >> 4
                    return 0 <= 4*T + g - (9*hs)//2 < 5
                L.append((addr(17, mask64(valid)), c*(4*1520 - 18*16) + 18*80 + 64*T))
            zf.append((c, T0, len(frags))); frags.append(L)
    numf = {}
    for h in range(8):
        for j in (h, h + 1):
            L = []
            for jj in range(2):
                def valid(l):
                    m, g = l & 15, l >> 4
                    return 0 <= 16*j + m - 18*h < 18 and 0 <= g + 4*jj - (h >> 1) < 5
                L.append((addr(3, mask64(valid)), h*1520 + (16*j - 18*h)*80 + (4*jj - (h >> 1))*16))
            numf[(j, h)] = len(frags); frags.append(L)
    def doprep(n):
        for _ in range(n):
            if prep:
                r, base, m = prep.pop(0)
                smask(e, 48, m); e(f"v_cndmask_b32 v{r}, v16, v{base}, s[48:49]")
    ng = 16 // C
    e(f"s_and_b32 s5, s{S_WV}, 1\ns_mul_i32 s59, s5, 96")
    e(f"v_lshrrev_b32 v1, 5, v2\nv_lshl_add_u32 v1, v1, 4, v13\nv_and_b32 v244, 1, v14")
    e(f"v_lshlrev_b32 v{VST}, 4, v1\nv_lshl_add_u32 v{VST}, v244, 9, v{VST}")
    e(f"v_cmp_eq_u32 s[48:49], 0, v244\nv_lshlrev_b32 v{VSA}, 3, v1\nv_lshlrev_b32 v{VMX}, 2, v1\nv_mov_b32 v1, {BIG}\nv_cndmask_b32 v{VSA}, v1, v{VSA}, s[48:49]")
    e(f"s_mul_i32 s51, s{S_WS}, 36864")
    e(f"v_lshrrev_b32 v245, 2, v2\nv_mul_u32_u24 v245, 192, v245\nv_and_b32 v{TB}, 3, v2\nv_lshl_add_u32 v245, v{TB}, 3, v245")
    e(f"s_add_u32 s7, s{S_WL}, s59\nv_add_u32 v{TB}, s7, v245\ns_add_u32 s7, s{S_WL}, 96\ns_sub_u32 s7, s7, s59\nv_add_u32 v{TB+1}, s7, v245\nv_add_u32 v{VD}, {2*SLOT}, v{TB}\nv_add_u32 v{VD+1}, {2*SLOT}, v{TB+1}")
    doprep(npre)
    e(f"s_waitcnt vmcnt(0)")
    tm.stamp(0)
    e(f"s_barrier\nbuffer_atomic_add v{VF}, v23, {W}, s{S_SIG} offen sc1")
    wr = []
    for ks in range(5):
        for ct in range(6):
            r = WFR + 24*ks + (4 if ks < 4 else 2)*ct
            for i in range(2 if ks < 4 else 1):
                T_ = 2*ks + i; sl = WSL[T_//3]
                wr.append((T_, f"ds_read_b64_tr_b16 a[{r+2*i}:{r+2*i+1}], v{(TB if sl < 2 else VD) + ct//3} offset:{(sl % 2)*SLOT + (T_%3)*3072 + (ct%3)*32}"))
    alu = f"""s_and_b32 s3, s2, {ng-1}
s_lshl_b32 s3, s3, {lg(C)}
s_bfe_u32 s44, s2, {hex(3 | (lg(C) << 16))}
s_add_u32 s3, s3, s44
s_mul_i32 s30, s3, 576
s_and_b32 s3, s3, 1
s_xor_b32 s39, s3, 1
s_lshl_b32 s39, s39, 9
s_add_u32 s39, s39, s30
s_lshl_b32 s3, s3, 6
s_add_u32 s30, s30, s3
s_and_b32 s3, s{S_WV}, 1
s_mul_i32 s3, s3, {72*9216}
s_add_u32 s30, s30, s3
s_add_u32 s39, s39, s3
s_add_u32 s39, s39, s3
v_lshrrev_b32 v16, 2, v2
v_mul_u32_u24 v16, 9216, v16
v_and_b32 v17, 3, v2
v_lshl_add_u32 v16, v17, 4, v16
v_add_u32 v17, {16*9216-1024}, v16
v_add_u32 v23, {32*9216-2048}, v16
s_mul_i32 s31, s{S_WV}, 9216
v_bfe_u32 v{VD}, v2, 2, 3
v_mul_u32_u24 v{VD}, 9216, v{VD}
v_and_b32 v{VD+1}, 3, v2
v_lshl_add_u32 v{VD}, v{VD+1}, 4, v{VD}
v_lshrrev_b32 v{VD+1}, 5, v2
v_lshl_add_u32 v{VD}, v{VD+1}, 6, v{VD}
v_add_u32 v{VD+1}, {8*9216-1024}, v{VD}
v_add_u32 v{VD+2}, {16*9216-2048}, v{VD}"""
    gusel = f"s_cmp_lt_u32 s{S_WV}, 2\ns_cselect_b32 s12, s12, s14\ns_cselect_b32 s13, s13, s15\ns_and_b32 s13, s13, 0xffff\ns_mov_b32 s14, {576*4608*2}\ns_mov_b32 s15, 0x20000"
    def kdma(st):
        kind, qq = F["early"][F["perm"].index(st)]
        if kind == "S":
            return [([f"s_add_u32 m0, s31, {st*SLOT + i*1024}", f"s_add_u32 s44, s39, {(qq*288 + 16*i)*9216}"] if i % 3 == 0 else [],
                     f"buffer_load_dwordx4 v{(16,17,23)[i%3]}, s[12:15], s44 offen" + (f" offset:{(i%3)*1024}" if i % 3 else "") + " lds", ("dma", st), 2*dp) for i in range(9)]
        return [([f"s_add_u32 m0, s31, {st*SLOT + i*1024}", f"s_add_u32 s44, s30, {(qq*144 + 8*i)*9216}"] if i % 3 == 0 else [],
                 f"buffer_load_dwordx4 v{VD+i%3}, s[12:15], s44 offen" + (f" offset:{(i%3)*1024}" if i % 3 else "") + " lds", ("dma", st), dp) for i in range(9)]
    e("s_lshr_b32 s5, s2, 6\ns_cmp_eq_u32 s5, 1\ns_cbranch_scc1 F2_idle")
    lissue(nl)
    tdone = (27 - nl)//3
    wr1 = [t_ for T_, t_ in wr if T_ < tdone]; wr2 = [t_ for T_, t_ in wr if T_ >= tdone]
    apoll = f"v_mov_b32 v{VF}, 0\nbuffer_atomic_add v{VF}, v{VLZ}, {W}, s45 offen sc0 sc1"
    if stat and not stlate:
        for _, t_, _ in stat: e(t_)
    if npe: e("s_nop 1\n" + apoll)
    for t_ in wr1: e(t_)
    rdv = f"s_waitcnt vmcnt(0)\nv_readfirstlane_b32 s5, v{VF}\ns_nop 1"
    if npe: e(f"{rdv}\ns_cmp_ge_u32 s5, 0x200\ns_cbranch_scc1 F2_q\nF2_ql:\ns_sleep {slp}\n{apoll}\n{rdv}\ns_cmp_ge_u32 s5, 0x200\ns_cbranch_scc0 F2_ql\nF2_q:")
    pql = []
    for b in (1, 0):
        for q_ in range(9):
            pre = [f"s_add_u32 s29, s{25+b}, {WS_PQ + q_*1024}"] if q_ % 4 == 0 else []
            r = PQ + 36*b + 4*q_
            pql.append((pre, f"buffer_load_dwordx4 a[{r}:{r+3}], v{VL16}, {W}, s29 offen" + (f" offset:{(q_%4)*1024}" if q_ % 4 else "") + sf, ("pq", b), p0 if b == 1 else p1))
    for pre, t_, _, _ in pql[:npe]:
        for p in pre: e(p)
        e(t_)
    if stat and stlate:
        for _, t_, _ in stat: e(t_)
    e(apoll)
    xl = [f"v_accvgpr_read_b32 v{XT+k}, a{228+k}" for k in range(12)] + ["v_accvgpr_read_b32 v1, a240"] + \
         [f"v_permlane16_swap_b32 v{XT+4*k+i}, v{XT+4*k+i+2}" for k in range(3) for i in range(2)] + \
         [f"v_permlane32_swap_b32 v{XT+4*k+i}, v{XT+4*k+i+2}" for k in range(3) for i in range(2)] + \
         [f"v_accvgpr_write_b32 a{XA+k}, v{XT+k}" for k in range(12)]
    sv = e.lines; e.lines = []
    assert not prep and nl <= 9
    e(alu)
    for t in range(1, 4): smask(e, 52 + 2*(t-1), mask64(lambda l: (l >> 4) < t))
    m0_ = mask64(lambda l: (l >> 4) == ((l & 15) >> 2) and (l & 2) == 0); m1_ = mask64(lambda l: (l >> 4) == ((l & 15) >> 2) and (l & 2) == 2)
    ID = 6
    e(f"s_movk_i32 s58, 0x3f80\nv_and_b32 v5, 1, v13\nv_lshlrev_b32 v5, 4, v5\nv_lshlrev_b32_e64 v5, v5, s58")
    smask(e, 48, m0_); e(f"v_cndmask_b32 v{ID}, 0, v5, s[48:49]"); smask(e, 48, m1_); e(f"v_cndmask_b32 v{ID+1}, 0, v5, s[48:49]")
    e(f"v_lshlrev_b32 v5, 3, v2\nv_add_u32 v3, s{S_RB}, v5")
    e(f"s_and_b32 s5, s{S_WV}, 2\nv_xor_b32 v14, s5, v14\nv_lshl_add_u32 v13, v14, 4, v13\ns_lshl_b32 s5, s{S_WV}, 8\ns_add_u32 s5, s5, {MXC}\nv_lshl_add_u32 v13, v13, 2, s5")
    e(f"s_lshl_b32 s5, s{S_WV}, 6\ns_and_b32 s5, s5, 128\ns_add_u32 s5, s5, {MXC}\nv_add_u32 v{VMX}, s5, v{VMX}")
    e(f"s_mul_i32 s5, s{S_CG}, 6144\ns_lshl_b32 s6, s59, 5\ns_add_u32 s5, s5, s6\ns_add_u32 s5, s5, s51\ns_add_u32 s4, s5, {WS_HC}\ns_add_u32 s3, s5, {WS_HT}")
    e(f"s_lshl_b32 s6, s{S_CG}, 1\ns_and_b32 s7, s{S_WV}, 1\ns_add_u32 s6, s6, s7\ns_lshl_b32 s6, s6, 14\ns_lshl_b32 s7, s{S_WS}, 8\ns_add_u32 s6, s6, s7\ns_add_u32 s7, s6, {WS_ST}")
    alul = e.lines; e.lines = sv
    if alupre: e.lines += alul
    tm.stamp(1)
    rd = f"s_waitcnt vmcnt(0)\nv_readfirstlane_b32 s5, v{VF}\ns_nop 1\ns_cmp_ge_u32 s5, 0x220\ns_cbranch_scc1 F2_go"
    e(f"{rd}\nF2_pl:\n{apoll}\n{rd}\ns_cmp_ge_u32 s5, 0x208\ns_cbranch_scc1 F2_pl\ns_sleep {slp}\ns_branch F2_pl\nF2_go:")
    tm.stamp(2)
    for i in range(12):
        if i % 4 == 0: e(f"s_add_u32 m0, s{S_RB}, {i*1024}\ns_add_u32 s6, s24, {WS_KV + i*1024}")
        e.vmem(f"buffer_load_dwordx4 v{VL16}, {W}, s6 offen" + (f" offset:{(i%4)*1024}" if i % 4 else "") + sf + " lds", ("kv", i))
    vq = pql[npe:] + (kdma(0) + kdma(1) + kdma(2))[:ndma]
    state = {"last": 0}
    def pace(force=False):
        if vq and (force or e.n - state["last"] >= vq[0][3]):
            if vq[0][2][0] == "dma" and not state.get("ok"): return
            if vq[0][2][0] == "dma" and not state.get("bar"):
                e("s_barrier"); state["bar"] = True
            pre, t, tag, _ = vq.pop(0)
            for p in pre: e(p)
            e.vmem(t, tag); state["last"] = e.n
    for t_ in wr2: e(t_)
    if not alupre: e.lines += alul
    for l in xl: e(l)
    for _ in range(npq):
        if vq[0][2][0] == "pq": pace(True)
    e("s_waitcnt lgkmcnt(0)\n" + gusel)
    for lq in (1, 2, 3): e(f"s_xor_b32 s5, s{S_WV}, {lq}\ns_mul_i32 s5, s5, 12288\ns_add_u32 s5, s5, {KVB}\nv_add_u32 v{8+lq-1}, s5, v5")
    order = list(range(6, 22)) + list(range(6)) if prog else list(range(22))
    def need(f):
        return 11 if f < 6 or not prog else (((f - 6)//2 + 1)*1520 - 1)//1024
    def ards(k):
        f = order[k]; rb = RAW + 8*(k % 6)
        e.wait_vm(lambda t: t == ("kv", need(f)))
        if k == 0: tm.stamp(3)
        for jj in range(2):
            ar, off = frags[f][jj]
            if ar is not None:
                e.ds(f"ds_read_b128 v[{rb+4*jj}:{rb+4*jj+3}], v{ar} offset:{off}", f)
    for k in range(bla): ards(k)
    for k in range(22):
        if k + bla < 22: ards(k + bla)
        pace()
        f = order[k]; rb = RAW + 8*(k % 6)
        e.wait_lg(lambda t: t == f)
        for jj in range(2):
            d = A + 4*f + 2*jj
            if frags[f][jj][0] is None: e(f"v_mov_b32 v{d}, 0\nv_mov_b32 v{d+1}, 0")
            else: e(f"v_cvt_pk_bf16_f32 v{d}, v{rb+4*jj}, v{rb+4*jj+1}\nv_cvt_pk_bf16_f32 v{d+1}, v{rb+4*jj+2}, v{rb+4*jj+3}")
    tm.stamp(4)
    state['ok'] = True
    q = Queue(e, window=10)
    def pqf(t, tile):
        r = PQ + 36*(t >> 1) + 18*(t & 1) + 2*tile
        return f"a[{r}:{r+3}]"
    def force(ops):
        for o in ops:
            if o.pos is None: q.drain_until(o)
    eps = hex(f2u(1e-6))
    rdops = {}; rduse = {0: [], 1: []}; ocv = {}; guse = {0: [], 1: []}
    NS = 4
    ringfree = [[] for _ in range(NS)]; mixfree = [None]*4; mixi = [0]; cnt = [0]
    def den_items(t):
        L = []
        for k, (c, T0, f) in enumerate(zf):
            def it(k=k, c=c, T0=T0, f=f):
                if k == 0:
                    while any(v[2] == ("pq", t >> 1) for v in vq): pace(True)
                    e.wait_vm(lambda x: x == ("pq", t >> 1))
                    force(rduse[t & 1]); rduse[t & 1] = []
                d = RD + 8*(t & 1) + 4*c
                o = e.op(Op(f"v_mfma_f32_16x16x32_bf16 v[{d}:{d+3}], v[{A+4*f}:{A+4*f+3}], {pqf(t, T0)}, " + ("0" if k % 3 == 0 else f"v[{d}:{d+3}]")))
                if k % 3 == 2:
                    for r in range(4):
                        o1 = q.add(Op(f"v_add_f32 v{d+r}, {eps}, v{d+r}", deps=[(o, 9)]))
                        rdops[(t, 4*c + r)] = q.add(Op(f"v_rcp_f32 v{d+r}, v{d+r}", cost=2, deps=[(o1, 0)]))
            L.append(it)
        return L
    def num_items(t):
        L = []
        for j in range(9):
            hs = [h for h in (j - 1, j) if 0 <= h < 8]
            for k, h in enumerate(hs):
                def it(j=j, k=k, h=h, last=(k == len(hs) - 1)):
                    if k == 0:
                        cnt[0] += 1
                        force(ringfree[cnt[0] % NS])
                    slot = cnt[0] % NS; d = NR + 4*slot; a = A + 4*numf[(j, h)]
                    o = e.op(Op(f"v_mfma_f32_16x16x32_bf16 v[{d}:{d+3}], v[{a}:{a+3}], {pqf(t, h)}, " + ("0" if k == 0 else f"v[{d}:{d+3}]")))
                    if not last: return
                    R = RD + 8*(t & 1)
                    muls = []; mixcache = {}
                    for r in range(4):
                        th = sum(1 for g in range(4) if 4*g + r < 2*j)
                        if th == 0: src, dp_ = R + j, [(rdops[(t, j)], 1)]
                        elif th == 4: src, dp_ = R + j - 1, [(rdops[(t, j-1)], 1)]
                        else:
                            if th not in mixcache:
                                mi = mixi[0] % 4; mixi[0] += 1
                                dd = [(rdops[(t, j)], 1), (rdops[(t, j-1)], 1)] + [(x, 0) for x in (mixfree[mi] or [])]
                                s_ = 52 + 2*(th-1)
                                mo = q.add(Op(f"v_cndmask_b32 v{MIX+mi}, v{R+j}, v{R+j-1}, s[{s_}:{s_+1}]", deps=dd))
                                mixcache[th] = (mi, mo); mixfree[mi] = []
                            mi, mo = mixcache[th]
                            src, dp_ = MIX + mi, [(mo, 0)]
                        m = q.add(Op(f"v_mul_f32 v{d+r}, v{d+r}, v{src}", deps=[(o, 9)] + dp_))
                        if th not in (0, 4): mixfree[mixcache[th][0]].append(m)
                        muls.append(m)
                    rduse[t & 1] += muls
                    od = O + 18*(t & 1) + 2*j
                    c1 = q.add(Op(f"v_cvt_pk_bf16_f32 v{od}, v{d}, v{d+1}", deps=[(muls[0], 0), (muls[1], 0)]))
                    c2 = q.add(Op(f"v_cvt_pk_bf16_f32 v{od+1}, v{d+2}, v{d+3}", deps=[(muls[2], 0), (muls[3], 0)]))
                    ringfree[slot] = [c1, c2]; ocv[(t, j)] = [c1, c2]
                L.append(it)
        return L
    mlast = {}
    def gemm_items(t, cts):
        L = []
        prev = {}
        for ks in range(5):
            for ct in cts:
                def it(ks=ks, ct=ct):
                    need = ocv[(t, 2*ks)] + (ocv[(t, 2*ks + 1)] if ks < 4 else [])
                    force(need)
                    deps = [(o, 2) for o in need]
                    if ks == 4: deps.append((prev[ct], 6))
                    n = 4 if ks < 4 else 2
                    o_ = O + 18*(t & 1) + 4*ks
                    op = "v_mfma_f32_16x16x32_bf16" if ks < 4 else "v_mfma_f32_16x16x16_bf16"
                    if ct == 6:
                        d = f"a[{MN+4*t}:{MN+4*t+3}]"; a = WB + 4*ks
                    else:
                        keep = t < 2 and ct < 3
                        dr = ACC + 12*t + 4*ct if keep else GB + 24*(t & 1) + 4*ct
                        if ks == 0 and not keep: force(guse[t & 1])
                        d = f"v[{dr}:{dr+3}]"; a = WFR + 24*ks + n*ct
                    mo = e.op(Op(f"{op} {d}, a[{a}:{a+n-1}], v[{o_}:{o_+n-1}], " + ("0" if ks == 0 else d), deps=deps))
                    prev[ct] = mo
                    if ks < 4: return
                    if ct == 6: mlast[t] = mo
                    elif keep:
                        x = XA + 4*ct + 2*t
                        q.fill(2)
                        e(f"v_mfma_f32_16x16x16_bf16 {d}, v[{ID}:{ID+1}], a[{x}:{x+1}], {d}")
                    else:
                        lq = (t >> 1)*2 + ct//3
                        c1 = q.add(Op(f"v_cvt_pk_bf16_f32 v{dr}, v{dr}, v{dr+1}", deps=[(mo, 9)]))
                        c2 = q.add(Op(f"v_cvt_pk_bf16_f32 v{dr+1}, v{dr+2}, v{dr+3}", deps=[(c1, 0)]))
                        w_ = q.add(Op(lambda dr=dr, off=lq*3072 + ((t & 1)*3 + ct % 3)*512: e.ds(f"ds_write_b64 v3, v[{dr}:{dr+1}] offset:{off}", "xw"), deps=[(c2, 0)]))
                        guse[t & 1].append(w_)
                L.append(it)
        return L
    def run(a, b=(), fill=mfill):
        a = list(a); b = list(b); na_, nb_ = len(a), len(b); ia = ib = 0
        while ia < na_ or ib < nb_:
            if ib < nb_ and (ia >= na_ or ib*na_ <= ia*nb_*lead_): b[ib](); ib += 1
            else: a[ia](); ia += 1
            pace(); q.fill(fill)
    e("s_nop 1")
    run(den_items(2) + den_items(3), fill=3)
    run(num_items(2), fill=4)
    tm.stamp(5)
    allc = [0, 1, 2, 3, 4, 5, 6]
    run(gemm_items(2, allc), num_items(3)[:6] + den_items(0) + num_items(3)[6:])
    run(gemm_items(3, allc), num_items(0)[:6] + den_items(1) + num_items(0)[6:])
    run(gemm_items(0, allc), num_items(1))
    run(gemm_items(1, [6, 3, 4, 5]))
    while vq: pace(True)
    prev = None
    for t in range(4):
        prev = q.add(Op(f"v_accvgpr_read_b32 v{16 + (t > 0)}, a{MN+4*(3-t)}", deps=[(mlast[3-t], 9)] + ([(prev, 0)] if prev else [])))
        if t: prev = q.add(Op(f"v_cndmask_b32 v16, v16, v17, s[{58-2*t}:{59-2*t}]", deps=[(prev, 0)]))
    q.add(Op(lambda: e.ds(f"ds_write_b32 v13, v16", "mw"), deps=[(prev, 0)]))
    own = gemm_items(1, [0, 1, 2])
    run(own[:nbar])
    q.drain()
    tm.stamp(6)
    e("s_waitcnt lgkmcnt(0)\ns_barrier")
    IN = 40
    for l2 in (1, 2, 3):
        for i in range(3):
            r = IN + 12*(l2-1) + 4*i
            q.add(Op(f"ds_read2st64_b64 v[{r}:{r+3}], v{8+l2-1} offset0:{l2*6 + 2*i} offset1:{l2*6 + 2*i + 1}"))
    q.add(Op(f"ds_read2st64_b32 v[104:105], v{VMX} offset0:0 offset1:1")); q.add(Op(f"ds_read2st64_b32 v[106:107], v{VMX} offset0:2 offset1:3"))
    run(own[nbar:])
    q.drain()
    tm.stamp(7)
    e("v_mov_b32 v13, 0x3f80\nv_mov_b32 v14, 0x3f800000\nv_mov_b32 v15, 0x3f803f80\nv_mov_b32 v8, 0\nv_mov_b32 v9, 0\ns_nop 2")
    e("s_waitcnt lgkmcnt(0)")
    for lq in (1, 2, 3):
        for i in range(3):
            for k in range(4):
                r = IN + 12*(lq-1) + 4*i + k; d = ACC + 2*(4*i + k)
                e(f"v_dot2c_f32_bf16 v{d}, v{r}, v13\nv_dot2c_f32_bf16 v{d+1}, v{r}, v14")
    e("v_pk_add_f32 v[104:105], v[104:105], v[106:107]\nv_add_f32 v1, v1, v104\nv_add_f32 v1, v1, v105\nv_cvt_pk_bf16_f32 v1, v1, v1\nv_and_b32 v1, 0xffff0000, v1\nv_xor_b32 v1, 0x80000000, v1")
    H = 80; HC = 92; TL = 40
    for c3 in range(3):
        for tt in range(2):
            a = ACC + 12*tt + 4*c3
            e(f"v_cvt_pk_bf16_f32 v{H+4*c3+2*tt}, v{a}, v{a+1}\nv_cvt_pk_bf16_f32 v{H+4*c3+2*tt+1}, v{a+2}, v{a+3}")
    for c3 in range(3):
        e(f"v_permlane32_swap_b32 v{H+4*c3}, v{H+4*c3+2}\nv_permlane32_swap_b32 v{H+4*c3+1}, v{H+4*c3+3}")
    for c3 in range(3):
        e(f"buffer_store_dwordx4 v[{H+4*c3}:{H+4*c3+3}], v{VST}, {W}, s3 offen" + (f" offset:{1024*c3}" if c3 else "") + sf)
        for r in range(H + 4*c3, H + 4*c3 + 4): e(f"v_dot2c_f32_bf16 v8, v{r}, v15\nv_dot2c_f32_bf16 v9, v{r}, v{r}")
    for c3 in range(3):
        for k in range(4):
            r = H + 4*c3 + k; t = TL + 8*c3 + 2*k
            e(f"v_dot2_f32_bf16 v{t}, v{r}, v13, v1\nv_dot2_f32_bf16 v{t+1}, v{r}, v14, v1")
        if c3 == 0: e("v_mov_b32 v6, v8\nv_mov_b32 v7, v9")
        if c3 == 1: e("v_permlane16_swap_b32 v6, v8\nv_permlane16_swap_b32 v7, v9")
    e(f"v_pk_add_f32 v[6:7], v[6:7], v[8:9]\nbuffer_store_dwordx2 v[6:7], v{VSA}, {W}, s7 offen{sf}")
    for c3 in range(3):
        for k in range(4): e(f"v_cvt_pk_bf16_f32 v{HC+4*c3+k}, v{TL+8*c3+2*k}, v{TL+8*c3+2*k+1}")
        e(f"buffer_store_dwordx4 v[{HC+4*c3}:{HC+4*c3+3}], v{VST}, {W}, s4 offen" + (f" offset:{1024*c3}" if c3 else "") + sf)
    tm.stamp(8)
    e(f"s_lshl_b32 s59, s{S_WS}, 8\ns_add_u32 s59, s59, {WS_FA}\ns_branch K2_done")
    e("F2_idle:\ns_waitcnt vmcnt(0) lgkmcnt(0)\ns_barrier")
    e(alu)
    if prefetch and pf2:
        srd(e, 52, 12, 576*4608*2); srd(e, 56, 14, 576*4608*2)
        slice_of_xcd(e, 5, 2, C)
        e(f"s_mul_i32 s5, s5, 1152\ns_bfe_u32 s6, s2, 0x30003\ns_mul_i32 s6, s6, {72*9216}\ns_add_u32 s5, s5, s6")
        e(f"v_mul_u32_u24 v4, 911, v0\nv_lshrrev_b32 v4, 16, v4\nv_mul_u32_u24 v3, 72, v4\nv_sub_u32 v3, v0, v3\nv_mul_u32_u24 v3, 9216, v3")
        for k in range(0, len(pf2), 3):
            e(f"v_mov_b32 v12, {BIG}")
            for i, ln in enumerate(pf2[k:k+3]):
                e(f"v_cmp_eq_u32 vcc, {i}, v4\nv_add_u32 v13, {ln*128}, v3\ns_nop 0\nv_cndmask_b32 v12, v12, v13, vcc")
            e(f"buffer_load_dword v244, v12, s[52:55], s5 offen\nbuffer_load_dword v245, v12, s[56:59], s5 offen")
    e(gusel)
    for st in range(3):
        for pre, t_, _, _ in kdma(st):
            for p in pre: e(p)
            e(t_)
    e("s_mov_b32 s59, -1\nK2_done:")
    F["nleft"] = 0; F["pre_stages"] = 3
```

```python
from sched import *
from layout import *
from tim import Tim
import struct, math
def f2u(x): return struct.unpack("<I", struct.pack("<f", x))[0]

def srd(e, d, b, nbytes, off=0):
    if off > 0:
        e(f"s_add_u32 s{d}, s{b}, {off}\ns_addc_u32 s{d+1}, s{b+1}, 0\ns_and_b32 s{d+1}, s{d+1}, 0xffff")
    elif off < 0:
        e(f"s_sub_u32 s{d}, s{b}, {-off}\ns_subb_u32 s{d+1}, s{b+1}, 0\ns_and_b32 s{d+1}, s{d+1}, 0xffff")
    else:
        e(f"s_mov_b32 s{d}, s{b}\ns_and_b32 s{d+1}, s{b+1}, 0xffff")
    e(f"s_mov_b32 s{d+2}, {nbytes}\ns_mov_b32 s{d+3}, 0x20000")

SLOT = 36864
STAMPS = [0, 135, -1, -2, 568, 648, 720, 792, 864, 900, 936, 971]
def gen_f3(C=2, budget=5, timing=False, store_flags=" sc1", lead=45, wdpf=True, roll=True, bud2=6, late0="n",
           f0=(646, 670), f1=(666, 718, 740), f2=(758, 780, 814, 834), gst=' sc0 sc1', gld=' sc0 sc1', old=' sc0 sc1', slack=2.25, nogs=False, vcost=1, ldpace=7, dsp=4, dtail=1, fused=None, hpre=166, slp=8, sig0=942, pp1=2, pp2=4, ordb=1, na=6, of=' sc1', ctouch=(20, 542, 700, 800), hd=7, p2plan='old', sig1=0, pol0=None, order0='PSPSPP', bud0=5, xrate=4, stat=100, dsp0=1, front=0, hsp=2, barpos=0, bfill=0, dyn=0, K1=8, tsl=0, tlb=()):
    e = fused['e'] if fused else Em()
    tm = fused['tm3'] if fused else Tim(e, 3, timing)
    xf = ' sc0 sc1' if fused else ''
    if fused: store_flags = ' sc0 sc1'
    TRB = 4; V1 = 8; VB = 17; VE = 26; VP1 = 29; VS = 30
    VK1 = 34; VK2 = 35; VS2 = 36; VL16 = 37; VPF = 38; VZ = 39; VF = 40; V3 = 41; VONE = 42; T = 44
    TM = 208
    SAC = 224; S_W2 = 44
    ACC = 56; OLD = 120; GT = 184; GS = 200; GP = 208
    FR = 144; GO = 192; GP3 = 120; GPS = 112; HA = 240
    S_W = 8; S_WD = 12; S_HC = S_ST = S_PT = S_GX = S_FL = 16; S_XH = 20
    S_J = 28; S_I = 29; S_WV = 30; S_WB = 31; S_CP = 32; S_CS = 33; S_SO = 34; S_XO = 35
    S_PO = 36; S_PS = 37
    S_B0 = 38; S_B1 = 39; S_A0 = 21; S_A1 = 22; S_CNT = 49; S_GO = 50; S_XS = 51; S_SS = 52; S_PF = 53
    S_MK = 54
    S_OWN = 56; S_PAR = 57; S_SNG = 58; S_TMP = 59
    S_GW = 40; S_GR = 41; S_FW = 42; S_FR = 43
    if not fused: e("s_cmp_ge_u32 s2, 256\ns_cbranch_scc1 K3_end")
    else: e("s_mov_b32 s23, s59\ns_mov_b64 s[26:27], s[42:43]\ns_mov_b64 s[44:45], s[40:41]\ns_mov_b64 s[40:41], s[12:13]")
    if not fused: e("s_load_dwordx4 s[40:43], s[0:1], 32\ns_load_dwordx2 s[44:45], s[0:1], 48\ns_load_dwordx2 s[46:47], s[0:1], 72")
    if not fused: tm.start()
    ng = 16 // C; R = 32 // C
    lg = lambda x: int(math.log2(x))
    e(f"v_lshrrev_b32 v1, 6, v0\nv_and_b32 v2, 63, v0\ns_and_b32 s3, s2, 7\ns_lshr_b32 s4, s2, 3\nv_readfirstlane_b32 s{S_WV}, v1")
    e(f"s_and_b32 s5, s3, {ng-1}\ns_lshl_b32 s5, s5, {lg(C)}\ns_and_b32 s6, s4, {C-1}\ns_add_u32 s{S_J}, s5, s6")
    e(f"s_lshr_b32 s5, s3, {lg(ng)}\ns_lshl_b32 s5, s5, {lg(R)}\ns_lshr_b32 s6, s4, {lg(C)}\ns_add_u32 s{S_I}, s5, s6")
    e(f"v_lshlrev_b32 v{VL16}, 4, v2")
    e(f"v_bfe_u32 v3, v2, 2, 3\nv_and_b32 v{TM}, 3, v2\nv_lshlrev_b32 v{TM}, 4, v{TM}\nv_lshrrev_b32 v{TM+1}, 5, v2\nv_lshl_add_u32 v{TM+1}, v{TM+1}, 6, v{TM}")
    e(f"s_mul_i32 s{S_WB}, s{S_WV}, 9216")
    e(f"s_and_b32 s3, s{S_J}, 1\ns_mul_i32 s6, s{S_J}, 576\ns_lshl_b32 s7, s3, 6\ns_add_u32 s{S_CP}, s6, s7")
    e(f"s_and_b32 s4, s{S_WV}, 1\ns_mul_i32 s5, s4, {72*9216}\ns_add_u32 s{S_CP}, s{S_CP}, s5")
    e(f"v_mul_u32_u24 v1, 9216, v3\nv_add_u32 v{V1}, v1, v{TM+1}")
    for i in range(1, 9): e(f"v_add_u32 v{V1+i}, {8*i*9216 - (i%3)*1024}, v{V1}")
    e(f"s_lshl_b32 s5, s{S_I}, 2\ns_add_u32 s5, s5, s{S_WV}\ns_mul_i32 s{S_XO}, s5, 36864\ns_add_u32 s{S_XH}, s{S_XO}, {WS_HC}")
    e(f"v_lshrrev_b32 v1, 5, v2\nv_lshlrev_b32 v1, 8, v1\nv_bfe_u32 v{T}, v2, 2, 2\nv_lshl_add_u32 v1, v{T}, 6, v1")
    e(f"v_bfe_u32 v{T}, v2, 4, 1\nv_lshl_add_u32 v1, v{T}, 5, v1\nv_and_b32 v{T}, 3, v2\nv_lshl_add_u32 v{TRB}, v{T}, 3, v1")
    for i in range(1, 4): e(f"v_add_u32 v{TRB+i}, {i*SLOT}, v{TRB}")
    if not fused:
        e("s_waitcnt lgkmcnt(0)")
        e(f"s_cmp_lt_u32 s{S_WV}, 2\ns_cselect_b32 s40, s40, s42\ns_cselect_b32 s41, s41, s43")
    srd(e, S_W, 40, 576*4608*2)
    srd(e, S_HC, 46, WS_BYTES)

    NST = 27
    perm = fused['perm']
    ST1 = []
    for ch in order0: ST1.append(((0 if ch == "P" else "S"), sum(1 for x in ST1 if (x[0] == "S") == (ch == "S"))))
    ST1 += [(p, q_) for p in (1, 2, 3) for q_ in range(4)]
    plan = {"old": [("E", k) for k in range(6)] + [("B", g) for g in range(3)],
            "p1": [("E", 0), ("E", 1), ("E", 2), ("A", 0), ("A", 1), ("B", 0), ("B", 1), ("A", 2), ("B", 2)],
            "p2": [("E", 0), ("E", 1), ("E", 2), ("A", 0), ("B", 0), ("A", 1), ("B", 1), ("A", 2), ("B", 2)],
            "p3": [("E", 0), ("E", 1), ("E", 2), ("A", 0), ("A", 1), ("B", 0), ("A", 2), ("B", 1), ("B", 2)]}[p2plan]
    def dma_instrs(st, inbody=False):
        slot = perm[st % 4]
        L = []
        def grp(g, so, vs, sr):
            if so: L.append((so, False))
            L.append((f"s_add_u32 m0, s{S_WB}, {slot*SLOT + g*3072}", False))
            for k in range(3):
                L.append((f"buffer_load_dwordx4 v{vs[k]}, s[{sr}:{sr+3}], s{sreg} offen" + (f" offset:{k*1024}" if k else "") + " lds", True))
        sreg = S_SO
        if inbody and st < 20:
            sreg = {16: S_A0, 17: S_A1, 18: S_B0, 19: S_B1}[st]; vb = V1 if st < 18 else VB
            for g in range(3): grp(g, None, [vb+3*g, vb+3*g+1, vb+3*g+2], S_W if st < 18 else S_W2)
            L.append((f"s_add_u32 s{sreg}, s{sreg}, 128", False))
        elif st < 18:
            p, q = ST1[st]
            for g in range(3):
                if p == "S": grp(g, f"s_add_u32 s{S_SO}, s{S_CS}, {q*288*9216}" if g == 0 else None, [VB+3*g, VB+3*g+1, VB+3*g+2], S_W)
                else: grp(g, f"s_add_u32 s{S_SO}, s{S_CP}, {p*128 + q*144*9216}" if g == 0 else None, [V1+3*g, V1+3*g+1, V1+3*g+2], S_W)
        elif plan[st-18][0] == "E":
            k = plan[st-18][1]; b = S_OWN if k < 3 else S_PAR; o = (k % 3)*64*1152
            grp(0, f"s_add_u32 s{S_SO}, s{b}, {o}", [VE, VE+1, VE+2], S_WD)
            grp(1, f"s_add_u32 s{S_SO}, s{b}, {o + 8*1152}", [VE, VE+1, VE+2], S_WD)
            grp(2, f"s_add_u32 s{S_SO}, s{b}, {o + 384}", [VE, VP1, VS], S_WD)
        else:
            ty, ls = plan[st-18]
            bl = ((S_OWN, 3*64*1152), (S_PAR, 3*64*1152), (S_SNG, 0)) if ty == "B" else tuple((S_PAR, k*64*1152) for k in range(3))
            for g, (b, o) in enumerate(bl):
                grp(g, f"s_add_u32 s{S_SO}, s{b}, {o + 128*ls}", [VE, VP1, VS+1+ls], S_WD)
        return L
    def emit_list(L):
        n = 0; prev_m0 = False
        for t, tag in L:
            if tag:
                if prev_m0: e("s_nop 0"); n += 1
                e.vmem(t, tag); prev_m0 = False
            else:
                e(t); prev_m0 = "m0" in t
            n += 1
        return n
    def xload_instrs(s):
        L = []
        if s % 4 == 0: L.append((f"s_add_u32 s{S_XS}, s{S_XH}, {s*1024}", None))
        L.append((f"buffer_load_dwordx4 a[{4*s}:{4*s+3}], v{VL16}, s[{S_HC}:{S_HC+3}], s{S_XS} offen" + (f" offset:{(s%4)*1024}" if s % 4 else "") + xf, ("x", s)))
        return L
    if not fused:
        emit_list(xload_instrs(0))
        emit_list([(t, ("dma", 0) if d else None) for t, d in dma_instrs(0)])
        emit_list(xload_instrs(1)); emit_list(xload_instrs(2))
    else:
        e.vm = []; e.vm_done = 0; e.lg = []; e.lg_done = 0

    q = Queue(e, window=10)
    def emit_op(o, _orig=e.op):
        if callable(o.text):
            o.text(); o.pos = e.n - 1; return o
        return _orig(o)
    e.op = emit_op
    chl = [None]
    def chain(text, first_deps=()):
        prev = None
        for l in text.split("\n") if isinstance(text, str) else text:
            if isinstance(l, str):
                l = l.strip()
                if not l: continue
            deps = [(prev, 0)] if prev else list(first_deps) + ([(chl[0], 0)] if chl[0] and chl[0].pos is None else [])
            cost = 2 if isinstance(l, str) and re.match(r"v_(rcp|sqrt|exp|permlane)", l) else 1
            prev = q.add(Op(l, cost=cost, deps=deps))
        chl[0] = prev
        return prev
    e(f"s_lshl_b32 s{S_SS}, s5, 8\nv_and_b32 v{VZ}, 31, v2\nv_lshlrev_b32 v{VZ}, 3, v{VZ}\nv_lshrrev_b32 v1, 5, v2\nv_mul_u32_u24 v1, {6*16384}, v1\nv_add_u32 v{VZ}, v{VZ}, v1")
    srd(e, S_WD, 44, 4608*576*2 + 4096, -4096)
    e(f"s_xor_b32 s7, s3, 1\ns_lshl_b32 s7, s7, 9\ns_add_u32 s{S_CS}, s6, s7\ns_mul_i32 s4, s4, {144*9216}\ns_add_u32 s{S_CS}, s{S_CS}, s4")
    e(f"v_lshrrev_b32 v1, 2, v2\nv_mul_u32_u24 v{T}, 9216, v1\nv_add_u32 v{VB}, v{T}, v{TM}")
    for i in range(1, 9): e(f"v_add_u32 v{VB+i}, {16*i*9216 - (i%3)*1024}, v{VB}")
    e(f"s_mov_b64 s[{S_W2}:{S_W2+1}], s[{S_W}:{S_W+1}]\ns_mov_b32 s{S_W2+2}, s{S_W+2}\ns_mov_b32 s{S_W2+3}, 0x20000")
    e(f"s_lshl_b32 s4, s3, 6\ns_mul_i32 s5, s{S_WV}, {16*1152}\ns_add_u32 s5, s5, 4096\ns_add_u32 s{S_TMP}, s5, s4")
    e(f"v_mul_u32_u24 v{T}, 1152, v3\nv_add3_u32 v{VE}, v{T}, v{TM+1}, s{S_TMP}\nv_subrev_u32 v{VE+1}, {1024-128}, v{VE}\nv_subrev_u32 v{VE+2}, {2048-256}, v{VE}\nv_add_u32 v{VP1}, {8*1152-1024}, v{VE}")
    e(f"v_mul_u32_u24 v{T}, 1152, v1\nv_add_u32 v{T}, v{T}, v{TM}\ns_add_u32 s5, s5, s7")
    e(f"s_sub_u32 s7, s5, {2048+384}\nv_add_u32 v{VS}, s7, v{T}\ns_sub_u32 s7, s5, {2048+256}\nv_add_u32 v{VS+3}, s7, v{T}")
    e(f"s_sub_u32 s7, s{S_TMP}, {2048-384}\nv_add_u32 v{VS+1}, s7, v{T}\ns_sub_u32 s7, s{S_TMP}, {2048-320}\nv_add_u32 v{VS+2}, s7, v{T}")
    e(f"""s_lshr_b32 s5, s{S_J}, 1
s_mul_i32 s6, s5, {576*1152}
s_mul_i32 s7, s3, 576
s_add_u32 s6, s6, s7
s_mul_i32 s7, s3, {320*1152}
s_add_u32 s{S_OWN}, s6, s7
s_add_u32 s{S_PAR}, s6, {320*1152}
s_sub_u32 s{S_PAR}, s{S_PAR}, s7
s_lshl_b32 s7, s3, 1
s_xor_b32 s7, s7, s{S_WV}
s_sub_u32 s7, s7, s{S_WV}
s_add_u32 s7, s7, 16
s_mul_i32 s7, s7, {16*1152}
s_add_u32 s{S_SNG}, s6, s7""")
    e(f"""s_mul_i32 s5, s5, {ACT_BYTES}
s_add_u32 s5, s5, s{S_XO}
s_add_u32 s5, s5, {WS_PART}
s_mul_i32 s6, s3, {18*1024 if fused else 20*1024}
s_add_u32 s{S_PO}, s5, s6
s_lshl_b32 s6, s3, 11
s_add_u32 s6, s6, {16*1024}
s_add_u32 s{S_PS}, s5, s6""")
    e(f"""s_lshl_b32 s5, s{S_I}, 4
s_add_u32 s5, s5, s{S_J}
s_lshl_b32 s5, s5, 2
s_add_u32 s5, s5, s{S_WV}
s_xor_b32 s6, s5, 4
s_mul_i32 s{S_GW}, s5, 18432
s_mul_i32 s{S_GR}, s6, 18432
s_lshl_b32 s{S_FW}, s5, 6
s_lshl_b32 s{S_FR}, s6, 6
s_add_u32 s{S_GW}, s{S_GW}, {WS_GX}
s_add_u32 s{S_GR}, s{S_GR}, {WS_GX}
s_add_u32 s{S_FW}, s{S_FW}, {WS_FL}
s_add_u32 s{S_FR}, s{S_FR}, {WS_FL}
s_mov_b32 s{S_GO}, s{S_GW}
s_add_u32 s{S_A0}, s{S_CP}, {128 + 288*9216}
s_add_u32 s{S_A1}, s{S_CP}, {128 + 432*9216}
s_add_u32 s{S_B0}, s{S_CP}, 256
s_add_u32 s{S_B1}, s{S_CP}, {256 + 144*9216}
s_mov_b32 s{S_CNT}, 0""")
    if wdpf:
        e(f"s_mul_i32 s5, s{S_WV}, 42\nv_add_u32 v1, s5, v2\nv_lshlrev_b32 v1, 7, v1\nv_cmp_gt_u32 s[54:55], 14, v2\nv_mov_b32 v{VPF}, 0x40000000")
        e(f"s_mul_i32 s5, s{S_I}, 18\ns_mul_i32 s6, s{S_J}, 288\ns_add_u32 s5, s5, s6\ns_mul_i32 s{S_PF}, s5, 1152\ns_add_u32 s{S_PF}, s{S_PF}, 4096\nv_cndmask_b32 v{VPF}, v{VPF}, v1, s[54:55]")

    c = 0.7978845608028654; l2e = 1.4426950408889634
    k1 = -2*c*l2e; k2 = k1*0.044715
    M = []
    for st, (p, qq) in enumerate(ST1):
        if p == "S":
            for s in range(18):
                ks = 18*qq + s
                for mat in range(2):
                    o = (mat*18 + s)*1024
                    M.append(dict(acc=f"v{SAC + 16*mat}", dst=None, b=f"a[{4*ks}:{4*ks+3}]", first=(ks == 0), last=(ks == 35), st=st, rd=(o, o + 512), xs=ks, unit=8, mat=mat, ph=1))
            continue
        for s in range(9):
            ks = 9*qq + s
            for uu in range(2):
                for mat in range(2):
                    o = (mat*18 + 2*s)*1024 + uu*512
                    M.append(dict(acc=f"v{ACC + 32*uu + 16*mat}", dst=f"v{OLD + 32*uu + 16*mat}" if ks == 35 else None, b=f"a[{4*ks}:{4*ks+3}]",
                                  first=(ks == 0), last=(ks == 35), st=st, rd=(o, o + 1024), xs=ks if p == 0 else None, unit=2*p+uu, mat=mat, ph=1))
        if qq == 3:
            t = M[-8:]; M[-8:] = [t[0], t[1], t[4], t[5], t[2], t[3], t[6], t[7]]
    tacc = {0: "a0", 1: "a16", 6: "a32", 2: "a48", 3: "a64", 7: "a80", 4: "a96", 5: f"v{ACC+32}", 8: f"v{ACC+48}"}
    def eoff(t):
        if t == 8: return (8*1024, 8*1024 + 512)
        cp, uu = t >> 1, t & 1
        return ((cp*1024 + uu*512, (3 + cp)*1024 + uu*512) if cp < 3 else (6*1024 + uu*512, 7*1024 + uu*512))
    lateks = [(0, w, f"v[{GT+4*w}:{GT+4*w+3}]", ("cv", 12 + w)) for w in range(4)] + [(2, w, f"v[{GS+4*w}:{GS+4*w+3}]", ("cv", 16 + w)) for w in range(2)] + \
             [(1, w, f"a[{GP3+4*w}:{GP3+4*w+3}]", ("gp", 12 + w)) for w in range(4)] + [(2, 2 + w, f"a[{GPS+4*w}:{GPS+4*w+3}]", ("gp", 16 + w)) for w in range(2)]
    parks = [(k, w, f"v[{GP+16*k+4*w}:{GP+16*k+4*w+3}]", ("gp", 4*k + w)) for k in range(3) for w in range(4)]
    for si, (ty, k) in enumerate(plan):
        if ty == "E":
            for w in range(4):
                g = (f"a[{GO+16*k+4*w}:{GO+16*k+4*w+3}]", ("go", 4*k + w)) if k < 3 else (f"v[{GP+16*(k-3)+4*w}:{GP+16*(k-3)+4*w+3}]", ("gp", 4*(k-3) + w))
                for t in range(9):
                    o = eoff(t)
                    M.append(dict(acc=tacc[t], dst=None, b=g[0], gsrc=g[1], first=(k == 0 and w == 0), last=False, st=18+si, rd=(w*9216 + o[0], w*9216 + o[1]), xs=None, tile=t, ph=2))
            continue
        ls = k
        tiles = [2*ls, 2*ls + 1, 6 + ls]
        if ty == "A": order = [(t, k_) for k_ in range(12) for t in tiles]
        elif ls == 0 and late0 == "own": order = [(t, k_) for k_ in range(6) for t in tiles] + [(t, k_) for t in tiles for k_ in range(6, 12)]
        else: order = [(t, k_) for t in tiles for k_ in range(12)]
        for t, k_ in order:
            gi, w, b, src = (lateks if ty == "B" else parks)[k_]
            base = w*9216 + gi*3072
            rd = (base + (t & 1)*512, base + 1024 + (t & 1)*512) if t < 6 else (base + 2048, base + 2048 + 512)
            M.append(dict(acc=tacc[t], dst=None, b=b, gsrc=src, first=False, last=(ty == "B" and k_ == 11), st=18+si, rd=rd, xs=None, tile=t, ph=2))
    NM = len(M); assert NM == 972
    LA = 8
    def rng(r, n=16):
        return f"{r[0]}[{int(r[1:])}:{int(r[1:])+n-1}]"

    gdone = {}; tstate = {"last": [None, None]}; pairctr = [0]
    oldbusy = {}
    memq = []
    def add_gelu(unit, gacc, uacc, mg, mu, inbody):
        gb = GS if unit == 8 else GT + 8*(unit & 1)
        for k in range(8):
            ts = pairctr[0] % 2; pairctr[0] += 1
            ta, tb = T + 2*ts, T + 2*ts + 1
            ga, gb_, ua, ub = gacc + 2*k, gacc + 2*k + 1, uacc + 2*k, uacc + 2*k + 1
            prev = tstate["last"][ts]
            d0 = [(mg, 13)] + ([(prev, 0)] if prev else [])
            sa = q.add(Op(f"v_mul_f32 v{ta}, v{ga}, v{ga}", deps=d0))
            sb = q.add(Op(f"v_mul_f32 v{tb}, v{gb_}, v{gb_}", deps=d0))
            fa = q.add(Op(f"v_fma_f32 v{ta}, v{ta}, v{VK2}, v{VK1}", deps=[(sa, 0)]))
            fb = q.add(Op(f"v_fma_f32 v{tb}, v{tb}, v{VK2}, v{VK1}", deps=[(sb, 0)]))
            aa = q.add(Op(f"v_mul_f32 v{ta}, v{ga}, v{ta}", deps=[(fa, 0)]))
            ab = q.add(Op(f"v_mul_f32 v{tb}, v{gb_}, v{tb}", deps=[(fb, 0)]))
            ea = q.add(Op(f"v_exp_f32 v{ta}, v{ta}", cost=2, deps=[(aa, 0)]))
            pa = q.add(Op(f"v_mul_f32 v{ua}, v{ga}, v{ua}", deps=[(mg, 13), (mu, 13)]))
            eb = q.add(Op(f"v_exp_f32 v{tb}, v{tb}", cost=2, deps=[(ab, 0)]))
            pb = q.add(Op(f"v_mul_f32 v{ub}, v{gb_}, v{ub}", deps=[(mg, 13), (mu, 13)]))
            da = q.add(Op(f"v_fma_f32 v{ta}, v{ta}, v{VS2}, v{VS2}", deps=[(ea, 1)]))
            db = q.add(Op(f"v_fma_f32 v{tb}, v{tb}, v{VS2}, v{VS2}", deps=[(eb, 1)]))
            ra = q.add(Op(f"v_rcp_f32 v{ta}, v{ta}", cost=2, deps=[(da, 0)]))
            rb = q.add(Op(f"v_rcp_f32 v{tb}, v{tb}", cost=2, deps=[(db, 0)]))
            ya = q.add(Op(f"v_mul_f32 v{ta}, v{ua}, v{ta}", deps=[(ra, 1), (pa, 0)]))
            yb = q.add(Op(f"v_mul_f32 v{tb}, v{ub}, v{tb}", deps=[(rb, 1), (pb, 0)]))
            cv = q.add(Op(f"v_cvt_pk_bf16_f32 v{gb + k}, v{ta}, v{tb}", deps=[(ya, 0), (yb, 0)]))
            tstate["last"][ts] = cv
            fi = 2*unit + k//4
            gdone.setdefault(fi, []).append(cv)
            oldbusy.setdefault(f"v{gacc}", []).append(cv); oldbusy.setdefault(f"v{uacc}", []).append(cv)
            if k % 4 == 3:
                r = gb + k - 3
                L = []
                if unit == 8 and k == 3: L.append((f"s_add_u32 s{S_TMP}, s{S_GW}, 16384", None))
                off = (fi % 4)*1024
                L.append((f"buffer_store_dwordx4 v[{r}:{r+3}], v{VL16}, s[{S_GX}:{S_GX+3}], s{S_TMP if unit == 8 else S_GO} offen" + (f" offset:{off}" if off else "") + gst, ("gs", fi)))
                if nogs and unit < 6: L = [("s_nop 0", None)]
                memq.append(dict(deps=list(gdone[fi]), L=L))
    outn = [0]
    VPS = 48; VLZ = 49; VRH = 50; VRO = 53; VRA = 3
    outbusy = [[], [], [], []]
    def add_out(t, acc, mo):
        def cv(i, deps): return q.add(Op(f"v_cvt_pk_bf16_f32 v{r+i}, v{r+2*i}, v{r+2*i+1}", deps=deps))
        prev = None; cvs = []
        if acc[0] == "a":
            bi = outn[0] % 3; outn[0] += 1
            assert all(x.get("done") for x in outbusy[bi])
            r = OLD + 16*bi; a = int(acc[1:])
            for i in range(8):
                r0 = q.add(Op(f"v_accvgpr_read_b32 v{r+2*i}, a{a+2*i}", deps=[(mo, 13)]))
                r1 = q.add(Op(f"v_accvgpr_read_b32 v{r+2*i+1}, a{a+2*i+1}", deps=[(mo, 13)]))
                prev = cv(i, [(r0, 0), (r1, 0)] + ([(prev, 0)] if prev else [])); cvs.append(prev)
        else:
            bi = None; r = int(acc[1:])
            for i in range(8):
                prev = cv(i, [(mo, 13)] + ([(prev, 0)] if prev else [])); cvs.append(prev)
        new = []
        for h in range(2):
            L = []
            if fused:
                g_, fi_ = (t - 6, 4 + h) if t >= 6 else (t >> 1, 2*(t & 1) + h)
                if fi_ == 0: L.append((f"s_add_u32 s{S_TMP}, s{S_PO}, {g_*6144}", None))
                L.append((f"buffer_store_dwordx4 v[{r+4*h}:{r+4*h+3}], v{VPS}, s[{S_PT}:{S_PT+3}], s{S_TMP} offen" + (f" offset:{fi_*128}" if fi_ else "") + store_flags, ("store", g_)))
                x = dict(deps=[cvs[4*h+3]], L=L); memq.append(x); new.append(x)
                continue
            so = S_PS if t == 8 else S_TMP
            if t != 8 and h == 0: L.append((f"s_add_u32 s{S_TMP}, s{S_PO}, {t*2048}", None))
            L.append((f"buffer_store_dwordx4 v[{r+4*h}:{r+4*h+3}], v{VL16}, s[{S_PT}:{S_PT+3}], s{so} offen" + (f" offset:1024" if h else "") + store_flags, ("store", t - 6 if t >= 6 else t >> 1)))
            x = dict(deps=[cvs[4*h+3]], L=L); memq.append(x); new.append(x)
        if bi is not None: outbusy[bi] = new
    def pop_mem():
        y = memq.pop(0); y["done"] = True
        return emit_list(y["L"])
    def mem_ready():
        return memq and all(d.pos is not None for d in memq[0]["deps"])
    def reads(m):
        d = M[m]; fr = FR + 4*(m % 12); vb = TRB + perm[d["st"] % 4]
        e.ds(f"ds_read_b64_tr_b16 a[{fr}:{fr+1}], v{vb} offset:{d['rd'][0]}", m)
        e.ds(f"ds_read_b64_tr_b16 a[{fr+2}:{fr+3}], v{vb} offset:{d['rd'][1]}", m)

    early = []
    for s_ in range(36): early.append((min(min(m for m, d in enumerate(M) if d["xs"] == s_), xrate*s_), xload_instrs(s_)))
    for g in range(6):
        early.append((stat + g, [(f"s_add_u32 s{S_TMP}, s{S_SS}, {WS_ST + g*16384}", None),
                                (f"buffer_load_dwordx2 v[{TM+2+2*g}:{TM+3+2*g}], v{VZ}, s[{S_ST}:{S_ST+3}], s{S_TMP} offen" + xf, "st")]))
    early.sort(key=lambda x: x[0])
    def emit_early():
        return emit_list(early.pop(0)[1])
    def stats_ops():
        b = TM + 2
        inv = hex(f2u(1.0/576))
        txt = [lambda: e.wait_vm(lambda t: t == "st")] + f"""v_add_f32 v{b}, v{b}, v{b+2}
v_add_f32 v{b+1}, v{b+1}, v{b+3}
v_add_f32 v{b+4}, v{b+4}, v{b+6}
v_add_f32 v{b+5}, v{b+5}, v{b+7}
v_add_f32 v{b+8}, v{b+8}, v{b+10}
v_add_f32 v{b+9}, v{b+9}, v{b+11}
v_add_f32 v{b}, v{b}, v{b+4}
v_add_f32 v{b+1}, v{b+1}, v{b+5}
v_add_f32 v{b}, v{b}, v{b+8}
v_add_f32 v{b+1}, v{b+1}, v{b+9}
v_mov_b32 v{b+2}, v{b}
v_mov_b32 v{b+3}, v{b+1}
v_mov_b32 v{VONE}, 1
v_mov_b32 v{VONE+1}, 2
v_permlane32_swap_b32 v{b}, v{b+2}
v_permlane32_swap_b32 v{b+1}, v{b+3}
v_mov_b32 v{VZ}, 0
v_add_f32 v{b}, v{b}, v{b+2}
v_add_f32 v{b+1}, v{b+1}, v{b+3}
v_mul_f32 v{b}, {inv}, v{b}
v_mul_f32 v{b+1}, {inv}, v{b+1}
v_fma_f32 v{b+1}, -v{b}, v{b}, v{b+1}
v_max_f32 v{b+1}, 0, v{b+1}
v_cvt_pk_bf16_f32 v{b+1}, v{b+1}, v{b+1}
v_and_b32 v{b+1}, 0xffff0000, v{b+1}
v_add_f32 v{b+1}, {hex(f2u(1e-5))}, v{b+1}
v_cvt_pk_bf16_f32 v{b+1}, v{b+1}, v{b+1}
v_and_b32 v{b+1}, 0xffff0000, v{b+1}
v_sqrt_f32 v{b+1}, v{b+1}
s_nop 0
v_cvt_pk_bf16_f32 v{b+1}, v{b+1}, v{b+1}
v_and_b32 v{b+1}, 0xffff0000, v{b+1}
v_rcp_f32 v{b}, v{b+1}
v_mul_f32 v{VS2}, v{b+1}, v{b+1}
v_mul_f32 v{VK1}, {hex(f2u(k1))}, v{b}
v_mul_f32 v{b+1}, v{b}, v{b}
v_mul_f32 v{b}, {hex(f2u(k2))}, v{b}
v_mul_f32 v{VK2}, v{b}, v{b+1}""".split("\n")
        chain(txt)
    spins = []; tails = []
    def poll_check(val, name):
        e.wait_vm(lambda t: t == "poll" + name)
        e(f"v_readfirstlane_b32 s{S_TMP}, v{VF}\ns_nop 1\ns_cmp_ge_u32 s{S_TMP}, {val}\ns_cbranch_scc0 K3_spin{name}\nK3_ret{name}:")
        spins.append((name, val))
    def gload(kind, fi):
        L = []
        base = S_GW if kind == "go" else S_GR
        if fi % 4 == 0: L.append((f"s_add_u32 s{S_XS}, s{base}, {fi*1024}", None))
        if kind == "go": dst = f"a[{GO+4*fi}:{GO+4*fi+3}]"
        elif fi < 12: dst = f"v[{GP+4*fi}:{GP+4*fi+3}]"
        elif fi < 16: dst = f"a[{GP3+4*(fi-12)}:{GP3+4*(fi-12)+3}]"
        else: dst = f"a[{GPS+4*(fi-16)}:{GPS+4*(fi-16)+3}]"
        L.append((f"buffer_load_dwordx4 {dst}, v{VL16}, s[{S_GX}:{S_GX+3}], s{S_XS} offen" + (f" offset:{(fi%4)*1024}" if fi % 4 else "") + (old if kind == "go" else gld), (kind, fi)))
        return L
    ldq = []
    ftxt = f"buffer_atomic_add v{VONE}, v{VLZ}, s[{S_FL}:{S_FL+3}], s{S_FW} offen sc1"
    gpoll = f"buffer_atomic_add v{VF}, v{VLZ}, s[{S_FL}:{S_FL+3}], s{S_FR} offen sc0 sc1"
    def flag_store(): e.vmem(ftxt, "flag")
    def poll_issue(name):
        e(f"v_mov_b32 v{VF}, 0"); e.vmem(gpoll, "poll" + name); return 3
    actions = {}
    def act1():
        e.wait_vm(lambda t: t and t[0] == "gs" and t[1] < 12); flag_store(); return 3
    actions[f0[0]] = lambda: poll_issue("Z")
    actions[f0[1]] = lambda: poll_check(1, "Z") or ldq.extend(gload("gp", fi) for fi in (0, 1, 2, 3, 16, 17)) or 5
    actions[f1[0]] = act1
    actions[f1[1]] = lambda: poll_issue("A")
    actions[f1[2]] = lambda: poll_check(2, "A") or ldq.extend(gload("gp", fi) for fi in range(4, 12)) or 5
    def act2pre():
        q.drain()
        while memq: pop_mem()
        return 1
    def act2():
        e.wait_vm(lambda t: t and t[0] == "gs"); flag_store(); return 2
    actions[f2[0]] = act2pre
    actions[f2[1]] = act2
    actions[f2[2]] = lambda: poll_issue("B")
    actions[f2[3]] = lambda: poll_check(3, "B") or ldq.extend(gload("gp", fi) for fi in range(12, 16)) or 5

    def apoll(sreg, val=0):
        return f"v_mov_b32 v{VF}, {val}\nbuffer_atomic_add v{VF}, v{VLZ}, s[{S_FL}:{S_FL+3}], s{sreg} offen sc0 sc1"
    if not fused:
        emit_early(); emit_early(); emit_early()
        e.wait_vm(lambda t: t == ("dma", 0))
        e("s_barrier")
        for m in range(LA): reads(m)
        emit_early(); emit_early()
    else:
        e(f"s_lshl_b32 s5, s{S_I}, 2\ns_add_u32 s5, s5, s{S_WV}\ns_lshl_b32 s24, s5, 8\ns_add_u32 s24, s24, {WS_FA}")
        e(f"v_cmp_eq_u32 vcc, 0, v2\nv_mov_b32 v{VONE}, 1\nv_mov_b32 v1, 0x40000000\nv_cndmask_b32_e64 v{VLZ}, v1, 0, vcc")
        tm.stamp(-10)
        e(f"s_waitcnt vmcnt({fused['nleft']})")
        tm.stamp("A0")
        e(f"s_cmp_lt_i32 s23, 0\ns_cbranch_scc1 K3_ns\nbuffer_atomic_add v{VONE}, v{VLZ}, s[{S_FL}:{S_FL+3}], s23 offen sc1\nK3_ns:")
        e("s_barrier")
        ps = fused.get("pre_stages", 2); nrem = 9*(4 - ps)
        LL = [(t, ("dma", st) if d else None) for st in (perm.index(3),) for t, d in dma_instrs(st)]
        k_ = [i for i, (t, d) in enumerate(LL) if d][na-1] + 1 if na else 0
        emit_list(LL[:k_])
        for m in range(LA): reads(m)
        e(f"""s_and_b32 s6, s{S_J}, 1
s_lshl_b32 s25, s5, 1
s_add_u32 s25, s25, s6
s_lshl_b32 s25, s25, 8
s_add_u32 s25, s25, {WS_FB}
s_lshr_b32 s7, s{S_J}, 1
s_mul_i32 s48, s7, 768
s_lshl_b32 s23, 1, s7
s_mul_i32 s4, s6, {18*1024}
s_add_u32 s48, s48, s4
s_add_u32 s48, s48, s{S_XO}
s_lshl_b32 s7, s7, 2
v_cmp_lt_u32 vcc, 31, v2
v_cmp_gt_u32 s[54:55], 48, v2
v_bfe_u32 v{T}, v2, 2, 3
v_mul_u32_u24 v{VPS}, 768, v{T}
v_lshrrev_b32 v{T}, 5, v2
v_lshl_add_u32 v{VPS}, v{T}, 6, v{VPS}
v_and_b32 v{T}, 3, v2
v_lshl_add_u32 v{VPS}, v{T}, 4, v{VPS}
v_lshrrev_b32 v{T}, 3, v2
v_bfe_u32 v{T+1}, v2, 2, 2
v_cndmask_b32_e64 v{T}, v{T}, v{T+1}, vcc
v_bfe_u32 v{T+1}, v2, 1, 2
v_bfe_u32 v{T+2}, v2, 1, 1
v_add_u32 v{T+2}, 4, v{T+2}
v_cndmask_b32_e64 v{T+1}, v{T+1}, v{T+2}, vcc
v_and_b32 v{T+2}, 1, v2
v_lshlrev_b32 v{VRA}, 4, v{T}
v_lshl_add_u32 v{VRA}, v{T+2}, 6, v{VRA}
v_lshl_add_u32 v{VRA}, v{T+1}, 7, v{VRA}
v_cndmask_b32 v{VRA}, v1, v{VRA}, s[54:55]
v_add_u32 v{T}, s7, v{T}
v_mul_u32_u24 v{T+3}, 1152, v{T}
v_lshl_add_u32 v{T+3}, v{T+2}, 4, v{T+3}
v_lshl_add_u32 v{T}, v{T+2}, 5, v{T}
v_lshlrev_b32 v{T}, 4, v{T}
v_cndmask_b32 v{T}, v1, v{T}, s[54:55]
v_cndmask_b32 v{T+3}, v1, v{T+3}, s[54:55]
s_mul_i32 s7, s6, 20
v_add_u32 v{T+1}, s7, v{T+1}
s_mul_i32 s6, s6, -18
s_add_u32 s6, s6, 12
v_mov_b32 v1, s6""" + "".join(f"""
v_cndmask_b32_e64 v{T+2}, {4*g}, {('v1' if g == 2 else 8 + 2*g)}, vcc
v_add_u32 v{T+2}, v{T+2}, v{T+1}
v_lshl_add_u32 v{VRH+g}, v{T+2}, 10, v{T}
v_lshl_add_u32 v{VRO+g}, v{T+2}, 5, v{T+3}""" for g in range(3)))
        if tlb:
            e(f"v_min_u32 v{V3}, 7, v2\ns_mov_b32 s4, {ACT_BYTES}\nv_mul_lo_u32 v{V3}, v{V3}, s4\ns_add_u32 s4, s48, {WS_PART}\nv_add_u32 v{V3}, s4, v{V3}\nv_cmp_lt_u32 vcc, 7, v2\nv_mov_b32 v{T}, s{S_GR}\ns_add_u32 s100, s26, s{S_XO}\nv_cndmask_b32 v{V3}, v{V3}, v{T}, vcc\ns_addc_u32 s101, s27, 0")
            for m_ in tlb:
                actions[m_] = lambda: e.vmem(f"buffer_load_dword v1, v{V3}, s[{S_HC}:{S_HC+3}], 0 offen", "tl") and 2
                actions[m_ + 2] = lambda: e.vmem(f"global_load_dword v1, v{VZ}, s[100:101]", "tl") and 2
        if ctouch:
            e(f"s_getpc_b64 s[6:7]\nK3_pc:\ns_add_u32 s6, s6, K3_pdA-K3_pc\ns_addc_u32 s7, s7, 0\ns_lshr_b32 s4, s2, 3\ns_lshl_b32 s4, s4, 2\ns_add_u32 s4, s4, s{S_WV}\ns_lshl_b32 s4, s4, 8")
            e(f"v_and_b32 v2, 1, v2\nv_lshlrev_b32 v2, 7, v2\nv_add_u32 v2, s4, v2\nv_min_u32 v2, KB_last-K3_pdA, v2")
        tm.stamp("A1")
        e(apoll(24))
        emit_list(LL[k_:])
        rd = f"v_readfirstlane_b32 s5, v{VF}\ns_nop 1"
        e(f"s_waitcnt vmcnt({nrem-na})\n{rd}\ns_cmp_ge_u32 s5, 12\ns_cbranch_scc1 K3_pdA\nK3_plA:\n{apoll(24)}\ns_waitcnt vmcnt(0)\n{rd}")
        e(f"s_cmp_ge_u32 s5, 12\ns_cbranch_scc1 K3_pdA\ns_cmp_lg_u32 s5, 0\ns_cbranch_scc1 K3_plA\ns_sleep {slp}\ns_branch K3_plA\nK3_pdA:")
        tm.stamp(-11)
        e.vm = [("dma", perm.index(k//9)) for k in range(36)]; e.vm_done = 9*ps + na
        for _ in range(8): emit_early()
        for m_ in ctouch:
            actions[m_] = lambda: e.vmem(f"global_load_dword v1, v2, s[6:7]", "ct") and 2
        HR = OLD + 48
        def hl(k):
            if k == 0: e(f"s_add_u32 s{S_XS}, s{S_XO}, {WS_HT}")
            e.vmem(f"buffer_load_dwordx4 a[{HA+4*k}:{HA+4*k+3}], v{VRH+k}, s[{S_HC}:{S_HC+3}], s{S_XS} offen sc0 sc1", "h"); return 2
        for k in range(3): actions[hpre + hsp*k] = (lambda k=k: hl(k))
        PBR = [ACC, GP, OLD]
        sj = lambda j: [28, 29, 30, 32, 33, 38, 39, 21][j]
        def sjinit(j): e(f"s_add_u32 s{sj(j)}, s48, {WS_PART + j*ACT_BYTES}"); return 1
        for j in range(NPART): actions[896 + 2*j] = (lambda j=j: sjinit(j))
        actions[914] = lambda: e(f"v_add_u32 v{V1}, 6144, v{VRA}\nv_add_u32 v{V1+1}, 12288, v{VRA}") or 2
        actions[916] = lambda: e(f"v_mov_b32 v{V1+2}, 0x100") or 1
        vra = [VRA, V1, V1 + 1]
        def pload(k, j):
            r = PBR[k] + 4*j
            return [(f"buffer_load_dwordx4 v[{r}:{r+3}], v{vra[k]}, s[{S_HC}:{S_HC+3}], s{sj(j)} offen sc0 sc1", (k, j))]
        def sigB(g):
            assert sum(1 for t in e.vm if t == ("store", g)) == 6
            e.wait_vm(lambda t: t == ("store", g))
            e.vmem(f"buffer_atomic_add v{VONE if g == 0 else V1+2}, v{VLZ}, s[{S_FL}:{S_FL+3}], s25 offen sc1", "flag"); return 3
        def chk(g): return f"s_bfe_u32 s4, s5, {hex(8*g | 0x80000)}\ns_cmp_eq_u32 s4, 8"
        def pollB():
            e(f"v_mov_b32 v{VF}, 0"); e.vmem(f"buffer_atomic_add v{VF}, v{VLZ}, s[{S_FL}:{S_FL+3}], s25 offen sc0 sc1", "plb"); return 3
        def checkB(g):
            e.wait_vm(lambda t: t == "plb")
            e(f"{rd}\n{chk(g)}\ns_cbranch_scc0 K3_S{g}\nK3_R{g}:")
            tails.append(f"K3_S{g}:\n{apoll(25)}\ns_waitcnt vmcnt(0)\n{rd}\n{chk(g)}\ns_cbranch_scc0 K3_S{g}\ns_branch K3_R{g}")
            ldq.extend(pload(g, j) for j in range(NPART)); return 5
        if dyn:
            for k_ in list(actions):
                if 896 <= k_ <= 916: del actions[k_]
            actions[850] = lambda: e(f"v_mov_b32 v{V1}, s23\ns_add_u32 s48, s48, {WS_PART}") or 2
            actions[852] = lambda: e(f"v_lshlrev_b32 v{V1+1}, 8, v{V1}\nv_lshlrev_b32 v{VF}, 16, v{V1}") or 2
            def sigD():
                assert sum(1 for t in e.vm if t == ("store", 0)) == 6
                e.wait_vm(lambda t: t == ("store", 0))
                e.vmem(f"buffer_atomic_add v{V1}, v{VLZ}, s[{S_FL}:{S_FL+3}], s25 offen sc0 sc1", "s0"); return 3
            actions[sig0] = sigD
        elif sig0: actions[sig0] = lambda: sigB(0)
        if sig1: actions[sig1] = lambda: sigB(1)
        if pol0:
            actions[pol0[0]] = pollB; actions[pol0[1]] = lambda: checkB(0)
    lastm = {}
    e.wait_lg(lambda t: t <= 3)
    B0, B1, HD = 208, 640, hd
    st8 = dict(dmaq=[], dma_st=None, stats=False, lastld=-100, qempty=None)
    godone = {}
    def moves(p):
        prev = None
        for i in range(16):
            prev = q.add(Op(f"v_accvgpr_write_b32 a{GO+16*p+i}, v{GT+i}", deps=[(prev, 0)] if prev else []))
            godone.setdefault(4*p + i//4, []).append(prev)
        return prev
    def dma_due(m, mr, left, dmaq):
        if front and m >= front: return not dmaq[0][1] or mr % 2 == 1 or len(dmaq) >= left
        if (m < B0 and not dsp0) or dsp == 0: return mr % 2 == 1 or len(dmaq) >= left//2 + 1
        if len(dmaq) >= left: return True
        nd = sum(1 for _, isd in dmaq if isd)
        if not dmaq[0][1]:
            return nd == 0 or left <= (nd - 1)*dsp + dtail + 2
        return left <= (nd - 1)*dsp + dtail
    def gap(m, inbody, fillall=False):
        d = M[m]
        dmaq = st8["dmaq"]
        deps = []
        if d["xs"] is not None and m < B0:
            while not any(t == ("x", d["xs"]) for t in e.vm): emit_early()
            e.wait_vm(lambda t: t == ("x", d["xs"]))
        if d["ph"] == 2:
            kind, fi = d["gsrc"]
            if kind == "cv":
                for o in gdone[fi]:
                    if o.pos is None: q.drain_until(o)
                    deps.append((o, 2))
            elif kind == "gp":
                while not any(t == (kind, fi) for t in e.vm):
                    assert ldq, (m, kind, fi)
                    emit_list(ldq.pop(0))
                e.wait_vm(lambda t: t == (kind, fi))
        if d["dst"]:
            for o in oldbusy.get(d["dst"], []):
                if o.pos is None: q.drain_until(o)
            oldbusy[d["dst"]] = []
        fr = FR + 4*(m % 12)
        cs = "0" if d["first"] else rng(d["acc"])
        mo = e.op(Op(f"v_mfma_f32_32x32x16_bf16 {rng(d['dst'] or d['acc'])}, a[{fr}:{fr+3}], {d['b']}, {cs}", deps=deps))
        used = 0
        if timing and not fillall: tm.stamp(m) if fused else (tm.stamp(STAMPS.index(m)) if m in STAMPS else None)
        if d["last"]:
            if d["ph"] == 1:
                lastm[(d["unit"], d["mat"])] = mo
                if d["mat"] == 1:
                    a = int((d["dst"] or d["acc"])[1:])
                    pend_gelu.append((d["unit"], a - 16, a, lastm[(d["unit"], 0)], mo))
            else:
                add_out(d["tile"], d["acc"], mo)
        if not fillall:
            while pend_gelu: add_gelu(*pend_gelu.pop(0), inbody)
        mr = m + LA
        isbar = mr < NM and mr % 36 == 0
        early_bar = barpos and (mr % 144 != 72 or mr < 216 or mr > 648)
        if isbar:
            st = mr // 36
            assert not dmaq
            if not early_bar:
                if e.wait_vm(lambda t: t == ("dma", st)): used += 1
                e("s_barrier"); used += 2
            else: isbar = False
            if 4 <= st + 2 < NST:
                dmaq.extend(dma_instrs(st + 2, inbody)); st8["dma_st"] = st + 2
        if mr < NM:
            reads(mr); used += 2
        if barpos == 2 and (mr + 2) % 36 == 0 and mr + 2 < NM and not dmaq:
            if e.wait_vm(lambda t: t == ("dma", (mr + 2)//36)): used += 1
        if barpos and (mr + 1) % 36 == 0 and mr + 1 < NM and ((mr + 1) % 144 != 72 or mr + 1 < 216 or mr + 1 > 648):
            while dmaq:
                t, isd = dmaq.pop(0)
                if isd: e.vmem(t, ("dma", st8["dma_st"]))
                else: e(t)
            if bfill: q.fill(bfill)
            if (m + 1) % 4 == 0: e.wait_lg(lambda t: t <= m + 4)
            e.wait_vm(lambda t: t == ("dma", (mr + 1)//36))
            e("s_barrier")
            if m in actions: actions[m]()
            return
        if not isbar and not fillall:
            early_dma = any(tag and tag[0] == "dma" for _, L in early for _, tag in L)
            left = 35 - mr % 36
            if m < B0 and not dsp0 and dmaq and not early_dma and not dmaq[0][1]:
                while dmaq and not dmaq[0][1]:
                    e(dmaq.pop(0)[0]); used += 1
                if early and early[0][0] - lead <= m: used += emit_early()
            elif early and (early[0][0] - lead <= m or (early_dma and dmaq)) and not (dmaq and not early_dma and len(dmaq) >= left - 2):
                used += emit_early()
            elif dmaq and not early_dma and dma_due(m, mr, left, dmaq) and not (m in actions and len(dmaq) < left):
                t, isd = dmaq.pop(0)
                if isd: e.vmem(t, ("dma", st8["dma_st"])); used += vcost
                else: e(t); used += 1
            elif m in actions:
                pass
            elif wdpf and B0 <= m < B1 and (m - B0) % 144 == 68:
                e.vmem(f"buffer_load_dword v1, v{VPF}, s[{S_WD}:{S_WD+3}], s{S_PF} offen", "pf")
                e(f"s_add_u32 s{S_PF}, s{S_PF}, {14*128}"); used += 1 + vcost
            elif front and m >= front and m < 864 and dmaq:
                pass
            elif mem_ready():
                used += pop_mem() + vcost - 1
            elif ldq and m - st8["lastld"] >= (ldpace if m < f2[3] else 2):
                used += emit_list(ldq.pop(0)) + vcost - 1; st8["lastld"] = m
        if m in actions and not fillall:
            used += actions[m]()
        if not st8["stats"] and sum(1 for t in e.vm if t == "st") == 6 and m >= stat:
            stats_ops(); st8["stats"] = True
        needwait = (m + 1) % 4 == 0 and m + 1 < NM
        bud = (bud2 if B1 <= m < f2[0] else (bud0 if m < B0 else budget)) - used - (1 if needwait else 0)
        if B0 <= m < B1:
            rem = sum(o.cost for o in q.q); gl = 144 - (m - B0) % 144
            if rem > slack*gl: bud += 1
        if fillall: bud += 1
        if bud > 0: q.fill(bud)
        if m > 650 and not q.q and st8["qempty"] is None: st8["qempty"] = m
        if needwait: e.wait_lg(lambda t: t <= m + 4)
    pend_gelu = []
    def endpair():
        q.drain()
        while memq: pop_mem()
        assert not st8["dmaq"]
    def head(m0, p, extra=""):
        if p >= 0:
            chain(f"s_add_u32 s{S_GO}, s{S_GO}, 4096\n" + extra)
            moves(p)
        for m in range(m0, m0 + HD): gap(m, True, fillall=True)
        q.drain()
    lastS = max(st for st, x in enumerate(ST1) if x[0] == "S")
    actions[36*(lastS - 1) - LA + 2] = lambda: chain([f"v_mov_b32 v{VB+i}, v{V1+i}" for i in range(9)]) and 0
    mb = B1 - 144
    def seed():
        e.vm = [("dma", 14)]*9 + [("dma", 15)]*9; e.vm_done = 0
        e.lg = [mb + k//2 for k in range(16)]; e.lg_done = 8
        st8["dmaq"].clear(); pend_gelu.clear()
    sv = (e.lines, e.vm, e.vm_done, e.lg, e.lg_done, q.q); e.lines = []; q.q = []
    ev = [f"v_mov_b32 v{VB+i}, v{VE+i}" for i in range(3)] + [f"v_add_u32 v{VB+3+i}, {8*1152}, v{VE+i}" for i in range(3)] + \
         [f"v_add_u32 v{VB+6+i}, 384, v{r_}" for i, r_ in enumerate((VE, VP1, VS))]
    for p, extra in ((0, ""), (1, f"s_mov_b32 s{S_B0}, s{S_OWN}\n" + ev[0] + f"\ns_add_u32 s{S_B1}, s{S_OWN}, {64*1152}\n" + "\n".join(ev[1:4]) +
                      f"\ns_mov_b64 s[{S_W2}:{S_W2+1}], s[{S_WD}:{S_WD+1}]\n" + "\n".join(ev[4:7]) + f"\ns_mov_b32 s{S_W2+2}, s{S_WD+2}\n" + "\n".join(ev[7:]))):
        e(f"K3_head{p}:")
        tm.stamp(-1-p)
        seed(); head(mb, p, extra)
        if p == 1: e(ftxt)
        e("s_branch K3_body")
    side_lines = e.lines
    e.lines, e.vm, e.vm_done, e.lg, e.lg_done, q.q = sv
    st8["dmaq"].clear(); pend_gelu.clear(); chl[0] = None
    for m in range(B0): gap(m, False)
    assert not early and not st8["dmaq"]
    e.wait_vm(lambda t: t and t[0] == "x")
    seed(); head(mb, -1)
    k_vm = len(e.vm)
    while memq: pop_mem()
    e.vm = e.vm[:k_vm]
    e(".p2align 3\nK3_body:")
    tstate["last"] = [None, None]
    actions[mb + 40] = lambda: e(f"s_add_u32 s{S_CNT}, s{S_CNT}, 1") or 1
    for m in range(mb + HD, B1): gap(m, True)
    endpair()
    e(f"s_cmp_eq_u32 s{S_CNT}, 1\ns_cbranch_scc1 K3_head0\ns_cmp_eq_u32 s{S_CNT}, 2\ns_cbranch_scc1 K3_head1")
    chain(f"s_add_u32 s{S_GO}, s{S_GO}, 4096")
    lastmv = moves(2)
    tstate["last"] = [lastmv, lastmv]
    for m in range(B1, NM): gap(m, False)
    while q.q or memq:
        if mem_ready(): pop_mem()
        else: q.drain_until(q.q[0])
    if fused:
        tm.stamp(-12)
        while ldq: emit_list(ldq.pop(0))
        if sig1: pollB()
        srd(e, S_W, 26, ACT_BYTES)
        e(f"v_mov_b32 v14, 0x3f80\nv_mov_b32 v15, 0x3f800000\ns_mov_b32 s54, 0xaaaaaaaa\ns_mov_b32 s55, 0xaaaaaaaa")
        for i in range(12): e(f"v_accvgpr_read_b32 v{HR+i}, a{HA+i}")
        def loads(k):
            for j in range(NPART): emit_list(pload(k, j))
        AC = 28
        def red(k, lds=False):
            H = HR + 4*k; O_ = 16 + 4*k
            for j in range(NPART):
                if lds: e.wait_lg(lambda t: t == j)
                else: e.wait_vm(lambda t: t == (k, j))
                for d in range(4):
                    r = (ACC if lds else PBR[k]) + 4*j + d
                    if j == 0: e(f"v_lshlrev_b32 v{AC+2*d}, 16, v{r}\nv_and_b32 v{AC+1+2*d}, 0xffff0000, v{r}")
                    else: e(f"v_dot2c_f32_bf16 v{AC+2*d}, v{r}, v14\nv_dot2c_f32_bf16 v{AC+1+2*d}, v{r}, v15")
            e("s_nop 1")
            for d in range(4): e(f"v_cvt_pk_bf16_f32 v{O_+d}, v{AC+2*d}, v{AC+1+2*d}")
            for d in range(4): e(f"v_lshlrev_b32 v{AC+2*d}, 16, v{H+d}\nv_and_b32 v{AC+1+2*d}, 0xffff0000, v{H+d}")
            for d in range(4): e(f"v_dot2c_f32_bf16 v{AC+2*d}, v{O_+d}, v14\nv_dot2c_f32_bf16 v{AC+1+2*d}, v{O_+d}, v15")
            e("s_nop 1")
            for d in range(4): e(f"v_cvt_pk_bf16_f32 v{O_+d}, v{AC+2*d}, v{AC+1+2*d}")
            e("s_nop 0")
            for d in range(4): e(f"v_mov_b32_dpp v{AC+d}, v{O_+d} quad_perm:[1,0,3,2] row_mask:0xf bank_mask:0xf")
            for d in range(2): e(f"v_cndmask_b32 v{O_+d}, v{O_+d}, v{AC+2+d}, s[54:55]\nv_cndmask_b32 v{O_+2+d}, v{AC+d}, v{O_+2+d}, s[54:55]")
        def ostore(k):
            e.vmem(f"buffer_store_dwordx4 v[{16+4*k}:{19+4*k}], v{VRO+k}, s[{S_W}:{S_W+3}], s{S_XO} offen{of}", "o")
        if dyn:
            S_DN, S_NW, S_LD, S_RD, S_LB, S_OW = 28, 29, 32, 33, 38, 39
            dtx = f"buffer_load_dwordx4 v{V1+2}, s[{S_HC}:{S_HC+3}], s21 offen sc0 sc1 lds"
            def pick(): return f"s_ff1_i32_b32 s4, s{S_NW}\ns_bitset0_b32 s{S_NW}, s4\ns_bitset1_b32 s{S_DN}, s4\ns_and_b32 s6, s4, 7\ns_mul_i32 s6, s6, {ACT_BYTES}\ns_lshr_b32 s7, s4, 3\ns_mul_i32 s7, s7, 6144\ns_lshl_b32 s4, s4, 10\ns_add_u32 m0, s{S_LB}, s4\ns_add_u32 s21, s6, s7\ns_add_u32 s21, s21, s48"
            e(f"s_mul_i32 s{S_LB}, s{S_WV}, 25600\ns_mul_i32 s{S_OW}, s23, 0x10101\ns_mov_b32 s{S_DN}, 0\ns_mov_b32 s{S_RD}, 0")
            e(f"v_cmp_gt_u32 vcc, 0x300, v{VL16}\nv_mov_b32 v1, 0x40000000\nv_add_u32 v{VRA}, s{S_LB}, v{VRA}\nv_cndmask_b32 v{V1+2}, v1, v{VL16}, vcc")
            e.wait_vm(lambda t: t == "s0")
            e(f"v_readfirstlane_b32 s{S_NW}, v{V1}\ns_mov_b32 s22, {K1}\ns_barrier\ns_or_b32 s{S_NW}, s{S_NW}, s23")
            if K1:
                e(f"K3_F:\ns_add_u32 m0, s{S_LB}, 24576\ns_mov_b32 s21, 0x40000000\ns_cmp_eq_u32 s{S_NW}, 0\ns_cbranch_scc1 K3_F1\n{pick()}\nK3_F1:\n{dtx}\ns_sub_u32 s22, s22, 1\ns_cmp_lg_u32 s22, 0\ns_cbranch_scc1 K3_F")
                e.vm += ["f"]*K1
            e.wait_vm(lambda t: t == ("store", 1))
            e.vmem(f"buffer_atomic_add v{V1+1}, v{VLZ}, s[{S_FL}:{S_FL+3}], s25 offen sc1", "s1")
            e.wait_vm(lambda t: t == ("store", 2))
            e.vmem(f"buffer_atomic_add v{VF}, v{VLZ}, s[{S_FL}:{S_FL+3}], s25 offen sc0 sc1", "s2")
            tm.stamp("B0")
            e(f"K3_T:\ns_waitcnt vmcnt(0)\ns_mov_b32 s{S_LD}, s{S_DN}\ns_cmp_eq_u32 s{S_DN}, 0xffffff\ns_cbranch_scc1 K3_T2")
            e(f"v_readfirstlane_b32 s{S_NW}, v{VF}\ns_nop 1\ns_or_b32 s{S_NW}, s{S_NW}, s{S_OW}\ns_andn2_b32 s{S_NW}, s{S_NW}, s{S_DN}\ns_cbranch_scc0 K3_T1")
            e(f"K3_W:\n{pick()}\n{dtx}\ns_cmp_lg_u32 s{S_NW}, 0\ns_cbranch_scc1 K3_W\ns_cmp_eq_u32 s{S_DN}, 0xffffff\ns_cbranch_scc1 K3_T2")
            e(f"K3_T1:\n" + (f"s_sleep {tsl}\n" if tsl else "") + f"{apoll(25)}\nK3_T2:\ns_andn2_b32 s{S_LD}, s{S_LD}, s{S_RD}")
            for g in range(3):
                e(f"s_bfe_u32 s4, s{S_LD}, {hex(8*g | 0x80000)}\ns_cmp_eq_u32 s4, 0xff\ns_cbranch_scc0 K3_N{g}\ns_or_b32 s{S_RD}, s{S_RD}, {hex(0xff << (8*g))}")
                tm.stamp(["B1", "B2", -13][g])
                e.lg = []; e.lg_done = 0
                for j in range(NPART): e.ds(f"ds_read_b128 v[{ACC+4*j}:{ACC+4*j+3}], v{VRA} offset:{(8*g + j)*1024}", j)
                red(g, lds=True)
                e(f"K3_N{g}:")
            e(f"s_cmp_lg_u32 s{S_RD}, 0xffffff\ns_cbranch_scc1 K3_T")
            ostore(0); ostore(1); ostore(2)
    if fused and not dyn:
        if not sig0: sigB(0)
        e(f"v_mov_b32 v1, 0x10000")
        own = 0x10000
        if not sig1:
            e(f"v_mov_b32 v{VF}, 0x100"); own = 0x10100
            e.wait_vm(lambda t: t == ("store", 1))
            e.vmem(f"buffer_atomic_add v{VF}, v{VLZ}, s[{S_FL}:{S_FL+3}], s25 offen sc0 sc1", "plb")
        e.wait_vm(lambda t: t == ("store", 2))
        e.vmem(f"buffer_atomic_add v1, v{VLZ}, s[{S_FL}:{S_FL+3}], s25 offen sc0 sc1", "pl2")
        tm.stamp("B0")
        e.wait_vm(lambda t: t == "plb")
        e(f"{rd}\ns_add_u32 s5, s5, {hex(own)}")
        g0 = 1 if pol0 else 0
        for g in range(g0, 3):
            e(chk(g) + f"\ns_cbranch_scc1 K3_L{g}")
            e(f"s_waitcnt vmcnt({8*(g-g0)})\nv_readfirstlane_b32 s7, v1\ns_nop 1\ns_add_u32 s7, s7, 0x10000\ns_max_u32 s5, s5, s7\n{chk(g)}\ns_cbranch_scc1 K3_L{g}")
            e(f"K3_P{g}:\n{apoll(25)}\ns_waitcnt vmcnt(0)\n{rd}\n{chk(g)}\ns_cbranch_scc0 K3_P{g}\nK3_L{g}:")
            tm.stamp(["B1", "B2", -13][g])
            loads(g)
            if g == 1 and pol0: red(0)
        if not pol0: red(0)
        ostore(0); red(1); ostore(1); red(2); ostore(2)
    tm.end("K3_end")
    e("K3_end:\ns_endpgm")
    e.lines += side_lines
    for name, val in spins:
        e(f"""K3_spin{name}:
v_mov_b32 v{VF}, 0
{gpoll}
s_waitcnt vmcnt(0)
v_readfirstlane_b32 s{S_TMP}, v{VF}
s_nop 1
s_cmp_ge_u32 s{S_TMP}, {val}
s_cbranch_scc0 K3_spin{name}
s_branch K3_ret{name}""")
    for t_ in tails: e(t_)
    if fused: e("KB_last:\ns_endpgm")
    e(f"; gelu queue empty at gap {st8['qempty']}")
    return e.text()
if __name__ == "__main__":
    t = gen_k3()
    print(t)
```

```python
from layout import *
TBASE = 0x8000000
WSP = 46
import os
RT = bool(os.environ.get('RT'))
class Tim:
    def __init__(self, e, k, on):
        self.e = e; self.k = k; self.on = on; self.n = 0
    def start(self):
        if self.on:
            self.e("s_memtime s[60:61]\ns_memrealtime s[62:63]")
            for i in range(12): self.e(f"s_mov_b32 s{72+2*i}, 0")
    def stamp(self, i):
        if self.on: self.e(f"{'s_memrealtime' if RT else 's_memtime'} s[{72+2*i}:{73+2*i}]")
    def end(self, endlabel, cond="v_cmp_eq_u32 vcc, " + os.environ.get("TW", "0") + ", v0"):
        if not self.on: return
        e = self.e
        e("s_waitcnt vmcnt(0)\ns_memtime s[64:65]\ns_memrealtime s[66:67]\ns_waitcnt lgkmcnt(0)")
        e(f"s_lshl_b32 s98, s2, 6\ns_add_u32 s98, s98, {TBASE + self.k*0x10000}\nv_mov_b32 v8, s98")
        e(f"s_mov_b32 s68, s{WSP}\ns_and_b32 s69, s{WSP+1}, 0xffff\ns_mov_b32 s70, {WS_BYTES}\ns_mov_b32 s71, 0x20000")
        e(f"{cond}\ns_and_saveexec_b64 s[96:97], vcc\ns_cbranch_execz {endlabel}")
        e("s_sub_u32 s64, s64, s60\nv_mov_b32 v4, s62\nv_mov_b32 v5, s66\nv_mov_b32 v6, s64\nv_mov_b32 v7, " + ('1' if RT else '0') + "")
        e("buffer_store_dwordx4 v[4:7], v8, s[68:71], 0 offen")
        for j in range(3):
            for i in range(4):
                e(f"s_sub_u32 s98, s{72+2*(4*j+i)}, {0 if RT else 's60'}\nv_mov_b32 v{12+4*j+i}, s98")
            e(f"buffer_store_dwordx4 v[{12+4*j}:{15+4*j}], v8, s[68:71], 0 offen offset:{16+16*j}")

class Diag:
    def __init__(self, e, a, b, amp, pref, wg=0):
        self.e = e; self.a = a; self.b = b; self.amp = amp; self.pref = pref; self.wg = wg
    def start(self): self.stamp("S", True)
    def stamp(self, i, raw=False):
        k = i if raw else (self.pref, i)
        if k == self.a: self.e("s_memrealtime s[72:73]")
        if k == self.b: self.e("s_memrealtime s[74:75]")
    def end(self, endlabel, cond=None):
        e = self.e
        e("s_waitcnt vmcnt(0)")
        self.stamp("E", True)
        e(f"s_cmp_lg_u32 s2, {self.wg}\ns_cbranch_scc1 {endlabel}")
        if self.a == "K1":
            e(f"s_mov_b32 s68, s{WSP}\ns_and_b32 s69, s{WSP+1}, 0xffff\ns_mov_b32 s70, {WS_BYTES}\ns_mov_b32 s71, 0x20000\nv_mov_b32 v8, {TBASE}")
            e("buffer_load_dword v9, v8, s[68:71], 0 offen\ns_waitcnt vmcnt(0)\nv_readfirstlane_b32 s72, v9")
        e(f"s_memrealtime s[76:77]\ns_waitcnt lgkmcnt(0)\ns_sub_u32 s74, s74, s72\ns_min_u32 s74, s74, 20000\ns_mul_i32 s74, s74, {self.amp}\nDG_sp:\ns_memrealtime s[78:79]\ns_waitcnt lgkmcnt(0)\ns_sub_u32 s78, s78, s76\ns_cmp_lt_u32 s78, s74\ns_cbranch_scc1 DG_sp")
```

```python
from sched import *
from layout import *
from k3 import srd, f2u, SLOT
from k1 import mask64, smask, BIG, LBIG, slice_of_xcd
from kf1 import KVB, S_WS_, S_WO, S_X, S_RT, S_CG, S_WV, S_WL, S_SIG, WSL
import math
MXC = KVB + 4*12288

def gen_f2(e, tm, F, left, C=2, prefetch=True, p1=11, dp=11, slp=4, pf2=(1, 6, 2, 7, 3, 8), npre=44, nw1=24, lead_=1.25, nbar=9, lsp=3, xe=1, npq=4, prog=1, bla=4, p0=6, npe=0, stlate=0, alupre=0, ndma=27, mfill=2, idle=1, pfd=0):
    A = 24; O = 112; ADR = 112; RAW = 184; RD = 148; NR = 164; MIX = 180; GB = 184; ACC = 232
    VL16 = 4; TB = 8; VXA = 10; VST = 11; VSA = 12; VMX = 15; VD = 18; VLZ = 21; VF = 22
    XT = 232; XA = 200; MN = 212
    PQ = 0; WFR = 72; WB = 180
    S_RB = 35; S_WS = 36
    W = f"s[{S_WS_}:{S_WS_+3}]"
    sf = " sc0 sc1"
    lg = lambda x: int(math.log2(x))
    e.vm = []; e.vm_done = 0; e.lg = []; e.lg_done = 0
    e("s_load_dwordx4 s[12:15], s[0:1], 32\ns_load_dwordx4 s[40:43], s[0:1], 48")
    left, stat = left; left = list(left); nl = len(left)
    def lissue(n):
        for _ in range(n):
            if left:
                pre, t_, _ = left.pop(0)
                for p in pre: e(p)
                e(t_)
    e(f"""s_mul_i32 s{S_RB}, s{S_WV}, 12288
s_add_u32 s{S_RB}, s{S_RB}, {KVB}
s_mul_i32 s24, s{S_WV}, 12160
v_lshlrev_b32 v{VL16}, 4, v2
s_lshr_b32 s5, s{S_WV}, 1
s_lshl_b32 s6, s{S_RT}, 1
s_add_u32 s{S_WS}, s6, s5
s_lshl_b32 s5, s{S_WS}, 2
s_add_u32 s5, s5, s{S_WV}
s_xor_b32 s6, s5, 4
s_mul_i32 s25, s5, 9216
s_mul_i32 s26, s6, 9216
s_lshl_b32 s45, s{S_WV}, 5
s_add_u32 s45, s45, s{S_RT}
s_lshl_b32 s45, s45, 7
s_add_u32 s45, s45, {WS_FK}
v_cmp_eq_u32 vcc, 0, v2
v_mov_b32 v1, {BIG}
s_nop 0
v_cndmask_b32_e64 v{VLZ}, v1, 0, vcc""")
    e(f"v_and_b32 v13, 15, v2\nv_lshrrev_b32 v14, 4, v2\nv_mul_u32_u24 v3, 80, v13\nv_lshl_add_u32 v3, v14, 4, v3\nv_add_u32 v3, s{S_RB}, v3\nv_mov_b32 v16, {LBIG}")
    e(f"v_and_b32 v1, 3, v13\nv_mul_u32_u24 v17, 9, v1\nv_lshrrev_b32 v17, 1, v17\nv_sub_u32 v17, v14, v17\nv_lshlrev_b32 v17, 4, v17\nv_mul_u32_u24 v1, 1520, v1\nv_add3_u32 v17, v17, v1, s{S_RB}")
    frags = []; na = [0]; prep = []
    def addr(base, m):
        if m == 0: return None
        r = ADR + na[0]; na[0] += 1
        prep.append((r, base, m))
        return r
    zf = []
    for c, T0s in ((0, (0, 2, 4)), (1, (4, 6, 7))):
        for T0 in T0s:
            L = []
            for jj in range(2):
                T = T0 + jj
                def valid(l):
                    if c == 1 and T0 == 7 and jj == 0: return False
                    hs = 4*c + (l & 3); g = l >> 4
                    return 0 <= 4*T + g - (9*hs)//2 < 5
                L.append((addr(17, mask64(valid)), c*(4*1520 - 18*16) + 18*80 + 64*T))
            zf.append((c, T0, len(frags))); frags.append(L)
    numf = {}
    for h in range(8):
        for j in (h, h + 1):
            L = []
            for jj in range(2):
                def valid(l):
                    m, g = l & 15, l >> 4
                    return 0 <= 16*j + m - 18*h < 18 and 0 <= g + 4*jj - (h >> 1) < 5
                L.append((addr(3, mask64(valid)), h*1520 + (16*j - 18*h)*80 + (4*jj - (h >> 1))*16))
            numf[(j, h)] = len(frags); frags.append(L)
    def doprep(n):
        for _ in range(n):
            if prep:
                r, base, m = prep.pop(0)
                smask(e, 48, m); e(f"v_cndmask_b32 v{r}, v16, v{base}, s[48:49]")
    ng = 16 // C
    e(f"s_and_b32 s5, s{S_WV}, 1\ns_mul_i32 s59, s5, 96")
    e(f"v_lshrrev_b32 v1, 5, v2\nv_lshl_add_u32 v1, v1, 4, v13\nv_and_b32 v244, 1, v14")
    e(f"v_lshlrev_b32 v{VST}, 4, v1\nv_lshl_add_u32 v{VST}, v244, 9, v{VST}")
    e(f"v_cmp_eq_u32 s[48:49], 0, v244\nv_lshlrev_b32 v{VSA}, 3, v1\nv_lshlrev_b32 v{VMX}, 2, v1\nv_mov_b32 v1, {BIG}\nv_cndmask_b32 v{VSA}, v1, v{VSA}, s[48:49]")
    e(f"s_mul_i32 s51, s{S_WS}, 36864")
    e(f"v_lshrrev_b32 v245, 2, v2\nv_mul_u32_u24 v245, 192, v245\nv_and_b32 v{TB}, 3, v2\nv_lshl_add_u32 v245, v{TB}, 3, v245")
    e(f"s_add_u32 s7, s{S_WL}, s59\nv_add_u32 v{TB}, s7, v245\ns_add_u32 s7, s{S_WL}, 96\ns_sub_u32 s7, s7, s59\nv_add_u32 v{TB+1}, s7, v245\nv_add_u32 v{VD}, {2*SLOT}, v{TB}\nv_add_u32 v{VD+1}, {2*SLOT}, v{TB+1}")
    doprep(npre)
    e(f"s_waitcnt vmcnt(0)")
    tm.stamp(0)
    e(f"s_barrier\nbuffer_atomic_add v{VF}, v23, {W}, s{S_SIG} offen sc1")
    wr = []
    for ks in range(5):
        for ct in range(6):
            r = WFR + 24*ks + (4 if ks < 4 else 2)*ct
            for i in range(2 if ks < 4 else 1):
                T_ = 2*ks + i; sl = WSL[T_//3]
                wr.append((T_, f"ds_read_b64_tr_b16 a[{r+2*i}:{r+2*i+1}], v{(TB if sl < 2 else VD) + ct//3} offset:{(sl % 2)*SLOT + (T_%3)*3072 + (ct%3)*32}"))
    alu = f"""s_and_b32 s3, s2, {ng-1}
s_lshl_b32 s3, s3, {lg(C)}
s_bfe_u32 s44, s2, {hex(3 | (lg(C) << 16))}
s_add_u32 s3, s3, s44
s_mul_i32 s30, s3, 576
s_and_b32 s3, s3, 1
s_xor_b32 s39, s3, 1
s_lshl_b32 s39, s39, 9
s_add_u32 s39, s39, s30
s_lshl_b32 s3, s3, 6
s_add_u32 s30, s30, s3
s_and_b32 s3, s{S_WV}, 1
s_mul_i32 s3, s3, {72*9216}
s_add_u32 s30, s30, s3
s_add_u32 s39, s39, s3
s_add_u32 s39, s39, s3
v_lshrrev_b32 v16, 2, v2
v_mul_u32_u24 v16, 9216, v16
v_and_b32 v17, 3, v2
v_lshl_add_u32 v16, v17, 4, v16
v_add_u32 v17, {16*9216-1024}, v16
v_add_u32 v23, {32*9216-2048}, v16
s_mul_i32 s31, s{S_WV}, 9216
v_bfe_u32 v{VD}, v2, 2, 3
v_mul_u32_u24 v{VD}, 9216, v{VD}
v_and_b32 v{VD+1}, 3, v2
v_lshl_add_u32 v{VD}, v{VD+1}, 4, v{VD}
v_lshrrev_b32 v{VD+1}, 5, v2
v_lshl_add_u32 v{VD}, v{VD+1}, 6, v{VD}
v_add_u32 v{VD+1}, {8*9216-1024}, v{VD}
v_add_u32 v{VD+2}, {16*9216-2048}, v{VD}"""
    gusel = f"s_cmp_lt_u32 s{S_WV}, 2\ns_cselect_b32 s12, s12, s14\ns_cselect_b32 s13, s13, s15\ns_and_b32 s13, s13, 0xffff\ns_mov_b32 s14, {576*4608*2}\ns_mov_b32 s15, 0x20000"
    def kdma(st):
        kind, qq = F["early"][F["perm"].index(st)]
        if kind == "S":
            return [([f"s_add_u32 m0, s31, {st*SLOT + i*1024}", f"s_add_u32 s44, s39, {(qq*288 + 16*i)*9216}"] if i % 3 == 0 else [],
                     f"buffer_load_dwordx4 v{(16,17,23)[i%3]}, s[12:15], s44 offen" + (f" offset:{(i%3)*1024}" if i % 3 else "") + " lds", ("dma", st), 2*dp) for i in range(9)]
        return [([f"s_add_u32 m0, s31, {st*SLOT + i*1024}", f"s_add_u32 s44, s30, {(qq*144 + 8*i)*9216}"] if i % 3 == 0 else [],
                 f"buffer_load_dwordx4 v{VD+i%3}, s[12:15], s44 offen" + (f" offset:{(i%3)*1024}" if i % 3 else "") + " lds", ("dma", st), dp) for i in range(9)]
    e(f"s_lshr_b32 s5, s2, 6\ns_cmp_eq_u32 s5, {idle}\ns_cbranch_scc1 F2_idle")
    lissue(nl)
    tdone = (27 - nl)//3
    wr1 = [t_ for T_, t_ in wr if T_ < tdone]; wr2 = [t_ for T_, t_ in wr if T_ >= tdone]
    apoll = f"v_mov_b32 v{VF}, 0\nbuffer_atomic_add v{VF}, v{VLZ}, {W}, s45 offen sc0 sc1"
    if stat and not stlate:
        for _, t_, _ in stat: e(t_)
    if npe: e("s_nop 1\n" + apoll)
    for t_ in wr1: e(t_)
    rdv = f"s_waitcnt vmcnt(0)\nv_readfirstlane_b32 s5, v{VF}\ns_nop 1"
    if npe: e(f"{rdv}\ns_cmp_ge_u32 s5, 0x200\ns_cbranch_scc1 F2_q\nF2_ql:\ns_sleep {slp}\n{apoll}\n{rdv}\ns_cmp_ge_u32 s5, 0x200\ns_cbranch_scc0 F2_ql\nF2_q:")
    pql = []
    for b in (1, 0):
        for q_ in range(9):
            pre = [f"s_add_u32 s29, s{25+b}, {WS_PQ + q_*1024}"] if q_ % 4 == 0 else []
            r = PQ + 36*b + 4*q_
            pql.append((pre, f"buffer_load_dwordx4 a[{r}:{r+3}], v{VL16}, {W}, s29 offen" + (f" offset:{(q_%4)*1024}" if q_ % 4 else "") + sf, ("pq", b), p0 if b == 1 else p1))
    for pre, t_, _, _ in pql[:npe]:
        for p in pre: e(p)
        e(t_)
    if stat and stlate:
        for _, t_, _ in stat: e(t_)
    e(apoll)
    xl = [f"v_accvgpr_read_b32 v{XT+k}, a{228+k}" for k in range(12)] + ["v_accvgpr_read_b32 v1, a240"] + \
         [f"v_permlane16_swap_b32 v{XT+4*k+i}, v{XT+4*k+i+2}" for k in range(3) for i in range(2)] + \
         [f"v_permlane32_swap_b32 v{XT+4*k+i}, v{XT+4*k+i+2}" for k in range(3) for i in range(2)] + \
         [f"v_accvgpr_write_b32 a{XA+k}, v{XT+k}" for k in range(12)]
    sv = e.lines; e.lines = []
    assert not prep and nl <= 9
    e(alu)
    for t in range(1, 4): smask(e, 52 + 2*(t-1), mask64(lambda l: (l >> 4) < t))
    m0_ = mask64(lambda l: (l >> 4) == ((l & 15) >> 2) and (l & 2) == 0); m1_ = mask64(lambda l: (l >> 4) == ((l & 15) >> 2) and (l & 2) == 2)
    ID = 6
    e(f"s_movk_i32 s58, 0x3f80\nv_and_b32 v5, 1, v13\nv_lshlrev_b32 v5, 4, v5\nv_lshlrev_b32_e64 v5, v5, s58")
    smask(e, 48, m0_); e(f"v_cndmask_b32 v{ID}, 0, v5, s[48:49]"); smask(e, 48, m1_); e(f"v_cndmask_b32 v{ID+1}, 0, v5, s[48:49]")
    e(f"v_lshlrev_b32 v5, 3, v2\nv_add_u32 v3, s{S_RB}, v5")
    e(f"s_and_b32 s5, s{S_WV}, 2\nv_xor_b32 v14, s5, v14\nv_lshl_add_u32 v13, v14, 4, v13\ns_lshl_b32 s5, s{S_WV}, 8\ns_add_u32 s5, s5, {MXC}\nv_lshl_add_u32 v13, v13, 2, s5")
    e(f"s_lshl_b32 s5, s{S_WV}, 6\ns_and_b32 s5, s5, 128\ns_add_u32 s5, s5, {MXC}\nv_add_u32 v{VMX}, s5, v{VMX}")
    e(f"s_mul_i32 s5, s{S_CG}, 6144\ns_lshl_b32 s6, s59, 5\ns_add_u32 s5, s5, s6\ns_add_u32 s5, s5, s51\ns_add_u32 s4, s5, {WS_HC}\ns_add_u32 s3, s5, {WS_HT}")
    e(f"s_lshl_b32 s6, s{S_CG}, 1\ns_and_b32 s7, s{S_WV}, 1\ns_add_u32 s6, s6, s7\ns_lshl_b32 s6, s6, 14\ns_lshl_b32 s7, s{S_WS}, 8\ns_add_u32 s6, s6, s7\ns_add_u32 s7, s6, {WS_ST}")
    alul = e.lines; e.lines = sv
    if alupre: e.lines += alul
    tm.stamp(1)
    rd = f"s_waitcnt vmcnt(0)\nv_readfirstlane_b32 s5, v{VF}\ns_nop 1\ns_cmp_ge_u32 s5, 0x220\ns_cbranch_scc1 F2_go"
    e(f"{rd}\nF2_pl:\n{apoll}\n{rd}\ns_cmp_ge_u32 s5, 0x208\ns_cbranch_scc1 F2_pl\ns_sleep {slp}\ns_branch F2_pl\nF2_go:")
    tm.stamp(2)
    for i in range(12):
        if i % 4 == 0: e(f"s_add_u32 m0, s{S_RB}, {i*1024}\ns_add_u32 s6, s24, {WS_KV + i*1024}")
        e.vmem(f"buffer_load_dwordx4 v{VL16}, {W}, s6 offen" + (f" offset:{(i%4)*1024}" if i % 4 else "") + sf + " lds", ("kv", i))
    vq = pql[npe:] + (kdma(0) + kdma(1) + kdma(2))[:ndma]
    state = {"last": 0}
    def pace(force=False):
        if vq and (force or e.n - state["last"] >= vq[0][3]):
            if vq[0][2][0] == "dma" and not state.get("ok"): return
            if vq[0][2][0] == "dma" and not state.get("bar"):
                e("s_barrier"); state["bar"] = True
            pre, t, tag, _ = vq.pop(0)
            for p in pre: e(p)
            e.vmem(t, tag); state["last"] = e.n
    for t_ in wr2: e(t_)
    if not alupre: e.lines += alul
    for l in xl: e(l)
    for _ in range(npq):
        if vq[0][2][0] == "pq": pace(True)
    e("s_waitcnt lgkmcnt(0)\n" + gusel)
    for lq in (1, 2, 3): e(f"s_xor_b32 s5, s{S_WV}, {lq}\ns_mul_i32 s5, s5, 12288\ns_add_u32 s5, s5, {KVB}\nv_add_u32 v{8+lq-1}, s5, v5")
    order = list(range(6, 22)) + list(range(6)) if prog else list(range(22))
    def need(f):
        return 11 if f < 6 or not prog else (((f - 6)//2 + 1)*1520 - 1)//1024
    def ards(k):
        f = order[k]; rb = RAW + 8*(k % 6)
        e.wait_vm(lambda t: t == ("kv", need(f)))
        if k == 0: tm.stamp(3)
        for jj in range(2):
            ar, off = frags[f][jj]
            if ar is not None:
                e.ds(f"ds_read_b128 v[{rb+4*jj}:{rb+4*jj+3}], v{ar} offset:{off}", f)
    for k in range(bla): ards(k)
    for k in range(22):
        if k + bla < 22: ards(k + bla)
        pace()
        f = order[k]; rb = RAW + 8*(k % 6)
        e.wait_lg(lambda t: t == f)
        for jj in range(2):
            d = A + 4*f + 2*jj
            if frags[f][jj][0] is None: e(f"v_mov_b32 v{d}, 0\nv_mov_b32 v{d+1}, 0")
            else: e(f"v_cvt_pk_bf16_f32 v{d}, v{rb+4*jj}, v{rb+4*jj+1}\nv_cvt_pk_bf16_f32 v{d+1}, v{rb+4*jj+2}, v{rb+4*jj+3}")
    tm.stamp(4)
    state['ok'] = True
    q = Queue(e, window=10)
    def pqf(t, tile):
        r = PQ + 36*(t >> 1) + 18*(t & 1) + 2*tile
        return f"a[{r}:{r+3}]"
    def force(ops):
        for o in ops:
            if o.pos is None: q.drain_until(o)
    eps = hex(f2u(1e-6))
    rdops = {}; rduse = {0: [], 1: []}; ocv = {}; guse = {0: [], 1: []}
    NS = 4
    ringfree = [[] for _ in range(NS)]; mixfree = [None]*4; mixi = [0]; cnt = [0]
    def den_items(t):
        L = []
        for k, (c, T0, f) in enumerate(zf):
            def it(k=k, c=c, T0=T0, f=f):
                if k == 0:
                    while any(v[2] == ("pq", t >> 1) for v in vq): pace(True)
                    e.wait_vm(lambda x: x == ("pq", t >> 1))
                    force(rduse[t & 1]); rduse[t & 1] = []
                d = RD + 8*(t & 1) + 4*c
                o = e.op(Op(f"v_mfma_f32_16x16x32_bf16 v[{d}:{d+3}], v[{A+4*f}:{A+4*f+3}], {pqf(t, T0)}, " + ("0" if k % 3 == 0 else f"v[{d}:{d+3}]")))
                if k % 3 == 2:
                    for r in range(4):
                        o1 = q.add(Op(f"v_add_f32 v{d+r}, {eps}, v{d+r}", deps=[(o, 9)]))
                        rdops[(t, 4*c + r)] = q.add(Op(f"v_rcp_f32 v{d+r}, v{d+r}", cost=2, deps=[(o1, 0)]))
            L.append(it)
        return L
    def num_items(t):
        L = []
        for j in range(9):
            hs = [h for h in (j - 1, j) if 0 <= h < 8]
            for k, h in enumerate(hs):
                def it(j=j, k=k, h=h, last=(k == len(hs) - 1)):
                    if k == 0:
                        cnt[0] += 1
                        force(ringfree[cnt[0] % NS])
                    slot = cnt[0] % NS; d = NR + 4*slot; a = A + 4*numf[(j, h)]
                    o = e.op(Op(f"v_mfma_f32_16x16x32_bf16 v[{d}:{d+3}], v[{a}:{a+3}], {pqf(t, h)}, " + ("0" if k == 0 else f"v[{d}:{d+3}]")))
                    if not last: return
                    R = RD + 8*(t & 1)
                    muls = []; mixcache = {}
                    for r in range(4):
                        th = sum(1 for g in range(4) if 4*g + r < 2*j)
                        if th == 0: src, dp_ = R + j, [(rdops[(t, j)], 1)]
                        elif th == 4: src, dp_ = R + j - 1, [(rdops[(t, j-1)], 1)]
                        else:
                            if th not in mixcache:
                                mi = mixi[0] % 4; mixi[0] += 1
                                dd = [(rdops[(t, j)], 1), (rdops[(t, j-1)], 1)] + [(x, 0) for x in (mixfree[mi] or [])]
                                s_ = 52 + 2*(th-1)
                                mo = q.add(Op(f"v_cndmask_b32 v{MIX+mi}, v{R+j}, v{R+j-1}, s[{s_}:{s_+1}]", deps=dd))
                                mixcache[th] = (mi, mo); mixfree[mi] = []
                            mi, mo = mixcache[th]
                            src, dp_ = MIX + mi, [(mo, 0)]
                        m = q.add(Op(f"v_mul_f32 v{d+r}, v{d+r}, v{src}", deps=[(o, 9)] + dp_))
                        if th not in (0, 4): mixfree[mixcache[th][0]].append(m)
                        muls.append(m)
                    rduse[t & 1] += muls
                    od = O + 18*(t & 1) + 2*j
                    c1 = q.add(Op(f"v_cvt_pk_bf16_f32 v{od}, v{d}, v{d+1}", deps=[(muls[0], 0), (muls[1], 0)]))
                    c2 = q.add(Op(f"v_cvt_pk_bf16_f32 v{od+1}, v{d+2}, v{d+3}", deps=[(muls[2], 0), (muls[3], 0)]))
                    ringfree[slot] = [c1, c2]; ocv[(t, j)] = [c1, c2]
                L.append(it)
        return L
    mlast = {}
    def gemm_items(t, cts):
        L = []
        prev = {}
        for ks in range(5):
            for ct in cts:
                def it(ks=ks, ct=ct):
                    need = ocv[(t, 2*ks)] + (ocv[(t, 2*ks + 1)] if ks < 4 else [])
                    force(need)
                    deps = [(o, 2) for o in need]
                    if ks == 4: deps.append((prev[ct], 6))
                    n = 4 if ks < 4 else 2
                    o_ = O + 18*(t & 1) + 4*ks
                    op = "v_mfma_f32_16x16x32_bf16" if ks < 4 else "v_mfma_f32_16x16x16_bf16"
                    if ct == 6:
                        d = f"a[{MN+4*t}:{MN+4*t+3}]"; a = WB + 4*ks
                    else:
                        keep = t < 2 and ct < 3
                        dr = ACC + 12*t + 4*ct if keep else GB + 24*(t & 1) + 4*ct
                        if ks == 0 and not keep: force(guse[t & 1])
                        d = f"v[{dr}:{dr+3}]"; a = WFR + 24*ks + n*ct
                    mo = e.op(Op(f"{op} {d}, a[{a}:{a+n-1}], v[{o_}:{o_+n-1}], " + ("0" if ks == 0 else d), deps=deps))
                    prev[ct] = mo
                    if ks < 4: return
                    if ct == 6: mlast[t] = mo
                    elif keep:
                        x = XA + 4*ct + 2*t
                        q.fill(2)
                        e(f"v_mfma_f32_16x16x16_bf16 {d}, v[{ID}:{ID+1}], a[{x}:{x+1}], {d}")
                    else:
                        lq = (t >> 1)*2 + ct//3
                        c1 = q.add(Op(f"v_cvt_pk_bf16_f32 v{dr}, v{dr}, v{dr+1}", deps=[(mo, 9)]))
                        c2 = q.add(Op(f"v_cvt_pk_bf16_f32 v{dr+1}, v{dr+2}, v{dr+3}", deps=[(c1, 0)]))
                        w_ = q.add(Op(lambda dr=dr, off=lq*3072 + ((t & 1)*3 + ct % 3)*512: e.ds(f"ds_write_b64 v3, v[{dr}:{dr+1}] offset:{off}", "xw"), deps=[(c2, 0)]))
                        guse[t & 1].append(w_)
                L.append(it)
        return L
    def run(a, b=(), fill=mfill):
        a = list(a); b = list(b); na_, nb_ = len(a), len(b); ia = ib = 0
        while ia < na_ or ib < nb_:
            if ib < nb_ and (ia >= na_ or ib*na_ <= ia*nb_*lead_): b[ib](); ib += 1
            else: a[ia](); ia += 1
            pace(); q.fill(fill)
    e("s_nop 1")
    run(den_items(2) + den_items(3), fill=3)
    run(num_items(2), fill=4)
    tm.stamp(5)
    allc = [0, 1, 2, 3, 4, 5, 6]
    run(gemm_items(2, allc), num_items(3)[:6] + den_items(0) + num_items(3)[6:])
    run(gemm_items(3, allc), num_items(0)[:6] + den_items(1) + num_items(0)[6:])
    run(gemm_items(0, allc), num_items(1))
    run(gemm_items(1, [6, 3, 4, 5]))
    while vq: pace(True)
    prev = None
    for t in range(4):
        prev = q.add(Op(f"v_accvgpr_read_b32 v{16 + (t > 0)}, a{MN+4*(3-t)}", deps=[(mlast[3-t], 9)] + ([(prev, 0)] if prev else [])))
        if t: prev = q.add(Op(f"v_cndmask_b32 v16, v16, v17, s[{58-2*t}:{59-2*t}]", deps=[(prev, 0)]))
    q.add(Op(lambda: e.ds(f"ds_write_b32 v13, v16", "mw"), deps=[(prev, 0)]))
    own = gemm_items(1, [0, 1, 2])
    run(own[:nbar])
    q.drain()
    tm.stamp(6)
    e("s_waitcnt lgkmcnt(0)\ns_barrier")
    IN = 40
    for l2 in (1, 2, 3):
        for i in range(3):
            r = IN + 12*(l2-1) + 4*i
            q.add(Op(f"ds_read2st64_b64 v[{r}:{r+3}], v{8+l2-1} offset0:{l2*6 + 2*i} offset1:{l2*6 + 2*i + 1}"))
    q.add(Op(f"ds_read2st64_b32 v[104:105], v{VMX} offset0:0 offset1:1")); q.add(Op(f"ds_read2st64_b32 v[106:107], v{VMX} offset0:2 offset1:3"))
    run(own[nbar:])
    q.drain()
    tm.stamp(7)
    e("v_mov_b32 v13, 0x3f80\nv_mov_b32 v14, 0x3f800000\nv_mov_b32 v15, 0x3f803f80\nv_mov_b32 v8, 0\nv_mov_b32 v9, 0\ns_nop 2")
    e("s_waitcnt lgkmcnt(0)")
    for lq in (1, 2, 3):
        for i in range(3):
            for k in range(4):
                r = IN + 12*(lq-1) + 4*i + k; d = ACC + 2*(4*i + k)
                e(f"v_dot2c_f32_bf16 v{d}, v{r}, v13\nv_dot2c_f32_bf16 v{d+1}, v{r}, v14")
    e("v_pk_add_f32 v[104:105], v[104:105], v[106:107]\nv_add_f32 v1, v1, v104\nv_add_f32 v1, v1, v105\nv_cvt_pk_bf16_f32 v1, v1, v1\nv_and_b32 v1, 0xffff0000, v1\nv_xor_b32 v1, 0x80000000, v1")
    H = 80; HC = 92; TL = 40
    for c3 in range(3):
        for tt in range(2):
            a = ACC + 12*tt + 4*c3
            e(f"v_cvt_pk_bf16_f32 v{H+4*c3+2*tt}, v{a}, v{a+1}\nv_cvt_pk_bf16_f32 v{H+4*c3+2*tt+1}, v{a+2}, v{a+3}")
    for c3 in range(3):
        e(f"v_permlane32_swap_b32 v{H+4*c3}, v{H+4*c3+2}\nv_permlane32_swap_b32 v{H+4*c3+1}, v{H+4*c3+3}")
    for c3 in range(3):
        e(f"buffer_store_dwordx4 v[{H+4*c3}:{H+4*c3+3}], v{VST}, {W}, s3 offen" + (f" offset:{1024*c3}" if c3 else "") + sf)
        for r in range(H + 4*c3, H + 4*c3 + 4): e(f"v_dot2c_f32_bf16 v8, v{r}, v15\nv_dot2c_f32_bf16 v9, v{r}, v{r}")
    for c3 in range(3):
        for k in range(4):
            r = H + 4*c3 + k; t = TL + 8*c3 + 2*k
            e(f"v_dot2_f32_bf16 v{t}, v{r}, v13, v1\nv_dot2_f32_bf16 v{t+1}, v{r}, v14, v1")
        if c3 == 0: e("v_mov_b32 v6, v8\nv_mov_b32 v7, v9")
        if c3 == 1: e("v_permlane16_swap_b32 v6, v8\nv_permlane16_swap_b32 v7, v9")
    e(f"v_pk_add_f32 v[6:7], v[6:7], v[8:9]\nbuffer_store_dwordx2 v[6:7], v{VSA}, {W}, s7 offen{sf}")
    for c3 in range(3):
        for k in range(4): e(f"v_cvt_pk_bf16_f32 v{HC+4*c3+k}, v{TL+8*c3+2*k}, v{TL+8*c3+2*k+1}")
        e(f"buffer_store_dwordx4 v[{HC+4*c3}:{HC+4*c3+3}], v{VST}, {W}, s4 offen" + (f" offset:{1024*c3}" if c3 else "") + sf)
    tm.stamp(8)
    e(f"s_lshl_b32 s59, s{S_WS}, 8\ns_add_u32 s59, s59, {WS_FA}\ns_branch K2_done")
    e("F2_idle:\ns_waitcnt vmcnt(0) lgkmcnt(0)\ns_barrier")
    e(alu)
    if prefetch and pf2:
        srd(e, 52, 12, 576*4608*2); srd(e, 56, 14, 576*4608*2)
        slice_of_xcd(e, 5, 2, C)
        e(f"s_mul_i32 s5, s5, 1152\ns_bfe_u32 s6, s2, 0x30003\ns_mul_i32 s6, s6, {72*9216}\ns_add_u32 s5, s5, s6")
        e(f"v_mul_u32_u24 v4, 911, v0\nv_lshrrev_b32 v4, 16, v4\nv_mul_u32_u24 v3, 72, v4\nv_sub_u32 v3, v0, v3\nv_mul_u32_u24 v3, 9216, v3")
        for k in range(0, len(pf2), 3):
            e(f"v_mov_b32 v12, {BIG}")
            for i, ln in enumerate(pf2[k:k+3]):
                e(f"v_cmp_eq_u32 vcc, {i}, v4\nv_add_u32 v13, {ln*128}, v3\ns_nop 0\nv_cndmask_b32 v12, v12, v13, vcc")
            e(f"buffer_load_dword v244, v12, s[52:55], s5 offen\nbuffer_load_dword v245, v12, s[56:59], s5 offen")
    if pfd:
        srd(e, 52, 40, 4608*576*2)
        slice_of_xcd(e, 5, 2, C)
        e(f"s_mul_i32 s5, s5, {576*1152}\ns_bfe_u32 s6, s2, 0x30003\ns_mul_i32 s6, s6, {72*1152}\ns_add_u32 s5, s5, s6\nv_mov_b32 v13, {BIG}")
        for i in range(3):
            e(f"v_add_u32 v3, {256*i}, v0\nv_lshlrev_b32 v12, 7, v3\nv_cmp_gt_u32 vcc, 648, v3\ns_nop 1\nv_cndmask_b32 v12, v13, v12, vcc\nbuffer_load_dword v244, v12, s[52:55], s5 offen")
    e(gusel)
    for st in range(3):
        for pre, t_, _, _ in kdma(st):
            for p in pre: e(p)
            e(t_)
    e("s_mov_b32 s59, -1\nK2_done:")
    F["nleft"] = 0; F["pre_stages"] = 3
```

```python
from sched import *
from layout import *
from k3 import srd, f2u
from k1 import mask64, smask, ln_stats2, code_prefetch, slice_of_xcd, BIG, LBIG, L2E, LN2
SLOT = 36864
KVB = 110592
S_WS_ = 8; S_W = 12; S_WO = 16; S_X = 20; S_DBG = 24
S_I = 28; S_G = 29; S_KV = 30; S_XO = 31; S_RT = 32; S_CG = 33; S_WV = 34; S_WB = 35; S_WF = 36; S_WOO = 37; S_WL = 38; S_SIG = 39
VWO = 5
WSL = (1, 2, 0)

def gen_f1(e, tm, C=2, prefetch=True, cpf=True, gate_at=(6, 7), wp=30, pf1=(0, 5, 4), xt=5, dper=4, xpre=0, wsp=12, wlate=False, w7=6, w8=15, lper=4, nl=3, stl=0, idle=1, xpro=3):
    W = f"s[{S_WS_}:{S_WS_+3}]"
    AB = 12; T = 20; ONES = 24; PV = 24; CSV = 44; RSV = 80; PK = 54; ACC = 116; TT = 188
    VX = 204; VW = 208; WA = 216; GA = 230; ZB = 236
    XF = 0; WF = 16
    e("s_cmp_ge_u32 s2, 256\ns_cbranch_scc1 K3_end")
    e("s_load_dwordx4 s[40:43], s[0:1], 0\ns_load_dwordx4 s[44:47], s[0:1], 64\ns_load_dwordx2 s[48:49], s[0:1], 16")
    e(f"v_lshrrev_b32 v1, 6, v0\nv_and_b32 v2, 63, v0\ns_nop 0\nv_readfirstlane_b32 s{S_WV}, v1")
    if cpf:
        e(f"s_lshr_b32 s6, s2, 3\ns_lshl_b32 s6, s6, 10\nv_lshrrev_b32 v3, 5, v0")
        code_prefetch(e, "F_pc", "F_pc", "F_k2", 3, 252, 6)
    tm.start()
    e(f"""s_cmp_lt_u32 s2, 64
s_cbranch_scc1 F_spare
s_lshr_b32 s4, s2, 3
s_and_b32 s3, s2, 7
s_sub_u32 s4, s4, 8
s_lshr_b32 s5, s3, 1
s_lshl_b32 s5, s5, 2
s_and_b32 s6, s4, 3
s_add_u32 s{S_I}, s5, s6
s_lshr_b32 s4, s4, 2
s_and_b32 s3, s3, 1
s_lshl_b32 s5, s3, 2
s_add_u32 s5, s5, s4
s_lshl_b32 s6, s3, 1
s_add_u32 s6, s6, s4
s_sub_u32 s6, s6, 4
s_cmp_lt_u32 s4, 4
s_cselect_b32 s{S_G}, s5, s6
s_cselect_b32 s{S_KV}, 1, 0""")
    e(f"v_lshrrev_b32 v3, 3, v2\nv_and_b32 v{T}, 7, v2\nv_lshrrev_b32 v{T+1}, 1, v3\nv_xor_b32 v{T}, v{T}, v{T+1}")
    e(f"v_mul_u32_u24 v3, 1152, v3\nv_lshl_add_u32 v{VX}, v{T}, 4, v3\nv_xor_b32 v{T}, 4, v{T}\nv_lshl_add_u32 v{VX+1}, v{T}, 4, v3")
    e(f"v_add_u32 v{VX+1}, {8*1152-1024}, v{VX+1}\nv_add_u32 v{VX+2}, {16*1152-2048}, v{VX}\nv_add_u32 v{VX+3}, {16*1152-2048}, v{VX+1}")
    e(f"""s_lshl_b32 s5, s{S_I}, 2
s_add_u32 s52, s5, s{S_WV}
s_mul_i32 s{S_XO}, s52, {32*1152}
s_mul_i32 s{S_WB}, s{S_WV}, 9216
s_mul_i32 s5, s{S_G}, 144
s_add_u32 s6, s5, 1152
s_lshl_b32 s5, s5, 1
s_cmp_eq_u32 s{S_KV}, 1
s_cselect_b32 s53, s6, s5
s_movk_i32 s7, 144
s_cselect_b32 s7, 1152, s7
s_mul_i32 s{S_WF}, s{S_WV}, {16*3456}
s_add_u32 s{S_WF}, s{S_WF}, s53
s_movk_i32 s50, 3456""")
    for i in range(5):
        r = VW + i
        e(f"v_add_u32 v3, {64*i}, v2\nv_mul_u32_u24 v{T}, 7282, v3\nv_lshrrev_b32 v{T}, 16, v{T}\nv_mul_u32_u24 v{T+1}, 9, v{T}\nv_sub_u32 v3, v3, v{T+1}")
        e(f"v_and_b32 v{T+1}, 1, v{T}\nv_mul_u32_u24 v{T+1}, s7, v{T+1}\nv_lshl_add_u32 v3, v3, 4, v{T+1}\nv_lshrrev_b32 v{T}, 1, v{T}")
        if i >= 2: e(f"v_lshrrev_b32 v{T+1}, 1, v{T}\nv_and_b32 v{T+1}, 4, v{T+1}\nv_xor_b32 v{T}, v{T}, v{T+1}")
        e(f"v_mad_u32_u24 v{r}, v{T}, s50, v3")
        if i % 4: e(f"v_subrev_u32 v{r}, {(i%4)*1024}, v{r}")
    e(f"v_cmp_gt_u32 s[50:51], 32, v2\nv_mov_b32 v3, {BIG}\ns_waitcnt lgkmcnt(0)\nv_cndmask_b32 v{VW+4}, v3, v{VW+4}, s[50:51]")
    srd(e, S_X, 40, ACT_BYTES)
    srd(e, S_W, 42, 576*1728*2)
    def dma(st):
        b = (st % 4)*SLOT
        L = [([f"s_add_u32 m0, s{S_WB}, {b}", f"s_add_u32 s54, s{S_XO}, {128*st}"] if k == 0 else [],
              f"buffer_load_dwordx4 v{VX+k}, s[{S_X}:{S_X+3}], s54 offen" + (f" offset:{k*1024}" if k else "") + " lds") for k in range(4)]
        L += [([f"s_add_u32 m0, s{S_WB}, {b+4096}", f"s_add_u32 s55, s{S_WF}, {64*3456*st}"] if k == 0 else [],
               f"buffer_load_dwordx4 v{VW+k}, s[{S_W}:{S_W+3}], s55 offen" + (f" offset:{k*1024}" if k else "") + " lds") for k in range(4)]
        L += [([f"s_add_u32 m0, s{S_WB}, {b+8192}", "s_nop 0"], f"buffer_load_dwordx4 v{VW+4}, s[{S_W}:{S_W+3}], s55 offen lds")]
        return [(pre, t, ("dma", st)) for pre, t in L]
    def issue(x):
        for p in x[0]: e(p)
        e.vmem(x[1], x[2])
    e.vm = []; e.vm_done = 0
    for x in dma(0): issue(x)
    tm.stamp(0)
    srd(e, S_WS_, 46, WS_BYTES)
    srd(e, S_DBG, 44, 256)
    d1 = dma(1)
    e(f"v_and_b32 v{T}, 15, v2\nv_lshrrev_b32 v{T+1}, 4, v2")
    e(f"v_lshrrev_b32 v3, 1, v{T}\nv_xor_b32 v3, v3, v{T+1}\nv_lshlrev_b32 v3, 4, v3\nv_lshl_add_u32 v3, v{T}, 7, v3\nv_add_u32 v{AB}, s{S_WB}, v3\nv_xor_b32 v3, 64, v3\nv_add_u32 v{AB+1}, s{S_WB}, v3")
    e(f"v_and_b32 v3, 1, v{T+1}\nv_mul_u32_u24 v3, 12, v3\nv_bfe_u32 v{T+2}, v2, 2, 2\nv_add_u32 v3, v3, v{T+2}")
    e(f"v_xor_b32 v{T+2}, 4, v3\nv_mul_u32_u24 v3, 288, v3\nv_mul_u32_u24 v{T+2}, 288, v{T+2}")
    e(f"v_lshrrev_b32 v1, 5, v2\nv_mul_u32_u24 v1, 9216, v1\nv_and_b32 v{T+3}, 3, v2\nv_lshl_add_u32 v1, v{T+3}, 3, v1\nv_add_u32 v1, 4096, v1")
    e(f"v_add_u32 v{AB+2}, v1, v3\nv_add_u32 v{AB+3}, v1, v{T+2}")
    for i in range(4): e(f"v_add_u32 v{AB+4+i}, {2*SLOT}, v{AB+i}")
    c0 = hex(f2u(1e-6 * L2E))
    e(f"s_mov_b32 s56, {hex(f2u(LN2))}\ns_mov_b32 s57, {hex(f2u(LN2))}\ns_mov_b32 s58, {c0}\ns_mov_b32 s59, {c0}")
    def wo_setup():
        L = [f"s_lshr_b32 s4, s2, 3\ns_sub_u32 s5, s4, 8\ns_cmp_lt_u32 s4, 8\ns_cselect_b32 s5, s4, s5\ns_lshr_b32 s{S_CG}, s5, 2\ns_and_b32 s5, s5, 3\ns_and_b32 s4, s2, 7\ns_lshl_b32 s4, s4, 2\ns_add_u32 s{S_RT}, s4, s5"]
        for i in range(3):
            L += f"v_add_u32 v3, {64*i}, v2\nv_mul_u32_u24 v1, 5462, v3\nv_lshrrev_b32 v1, 16, v1\nv_mul_u32_u24 v{VWO+i}, 12, v1\nv_sub_u32 v3, v3, v{VWO+i}\nv_mul_u32_u24 v1, 1152, v1\nv_lshl_add_u32 v{VWO+i}, v3, 4, v1".split("\n")
            if i: L.append(f"v_subrev_u32 v{VWO+i}, {i*1024}, v{VWO+i}")
        L += f"""s_mul_i32 s{S_WOO}, s{S_WV}, {144*1152}
s_mul_i32 s5, s{S_CG}, 192
s_add_u32 s{S_WOO}, s{S_WOO}, s5
s_mul_i32 s{S_WL}, s{S_WV}, 9216
s_mov_b32 s{S_WO}, s48
s_and_b32 s{S_WO+1}, s49, 0xffff
s_mov_b32 s{S_WO+3}, 0x20000
s_lshr_b32 s5, s2, 6""".split("\n")
        L.append(f"s_cmp_eq_u32 s5, {1 if idle else 7}\ns_cselect_b32 s{S_WO+2}, 0, {576*576*2}")
        return L
    def st_setup():
        return f"""v_and_b32 v215, 15, v2
v_lshrrev_b32 v213, 5, v2
v_lshl_add_u32 v215, v213, 4, v215
v_mul_u32_u24 v213, 1152, v215
v_bfe_u32 v214, v2, 4, 1
v_lshl_add_u32 v213, v214, 4, v213
v_lshlrev_b32 v215, 2, v215
v_lshrrev_b32 v214, 4, v2
v_mul_u32_u24 v214, 80, v214
s_lshr_b32 s5, s{S_WV}, 1
s_lshl_b32 s101, s{S_RT}, 1
s_add_u32 s101, s101, s5
s_mul_i32 s99, s101, 36864
s_lshl_b32 s101, s101, 7
s_add_u32 s101, s101, {WS_MX}
s_mul_i32 s5, s{S_CG}, 192
s_add_u32 s99, s99, s5
s_and_b32 s5, s{S_WV}, 1
s_mul_i32 s5, s5, 96
s_add_u32 s99, s99, s5
s_mul_i32 s100, s{S_WV}, 320
s_add_u32 s100, s100, {WS_WB}""".split("\n")
    def st_loads():
        L = [([], f"buffer_load_dwordx4 a[{180+4*k}:{183+4*k}], v214, {W}, s100 offen" + (f" offset:{16*k}" if k else "") + " sc0 sc1", "sd2") for k in range(5)]
        L.append(([], f"buffer_load_dword a240, v215, {W}, s101 offen sc0 sc1", "sd2"))
        L += [([], f"buffer_load_dwordx4 a[{228+4*k}:{231+4*k}], v213, s[{S_X}:{S_X+3}], s99 offen" + (f" offset:{32*k}" if k else ""), "st2") for k in range(3)]
        return L
    def wo_dma():
        return [([f"s_add_u32 m0, s{S_WL}, {WSL[i//9]*SLOT + (i%9)*1024}", f"s_add_u32 s54, s{S_WOO}, {(i//3)*16*1152}"] if i % 3 == 0 else [],
                 f"buffer_load_dwordx4 v{VWO+i%3}, s[{S_WO}:{S_WO+3}], s54 offen" + (f" offset:{(i%3)*1024}" if i % 3 else "") + " lds", "wo") for i in range(27)]
    for l in wo_setup() + st_setup(): e(l)
    if xpro == 1:
        for x in st_loads()[6:]: issue(x)
    for x in d1: issue(x)
    if xpro == 2:
        for x in st_loads()[6:]: issue(x)
    e(f"s_cmp_eq_u32 s{S_KV}, 0\ns_cbranch_scc1 F_q")
    vm0 = (list(e.vm), e.vm_done)

    q = Queue(e, window=1)
    def emit_op(o, _orig=e.op):
        if callable(o.text):
            o.text(); o.pos = e.n - 1; return o
        return _orig(o)
    e.op = emit_op
    def fill_lines(text):
        for l in (text.split("\n") if isinstance(text, str) else text):
            n = l.count("\n") + 1
            q.add(Op(l, cost=n))
    def rdlist(st, kk):
        b = AB + 4*((st % 4) >> 1); o = (st & 1)*SLOT
        rd = [f"ds_read_b128 a[{XF+8*kk+4*tt}:{XF+8*kk+4*tt+3}], v{b+kk} offset:{o + 2048*tt}" for tt in range(2)]
        for ct in range(9):
            r = WF + 36*kk + 4*ct
            rd.append(f"ds_read_b64_tr_b16 a[{r}:{r+1}], v{b+2} offset:{o + kk*18432 + ct*32}")
            rd.append(f"ds_read_b64_tr_b16 a[{r+2}:{r+3}], v{b+3} offset:{o + kk*18432 + ct*32}")
        return rd
    wq = []
    st_ = {"last": 0}
    def wpace(force=False):
        if wq and (force or e.n - st_["last"] >= wp):
            issue(wq.pop(0)); st_["last"] = e.n
    SDL = 153600
    def side_setup(arr0, extra):
        return f"""s_lshl_b32 s52, s52, 7
s_add_u32 s52, s52, {WS_S4 + 8192*arr0}
s_lshl_b32 s53, s53, 1
s_add_u32 s53, s53, {WS_CS - 256}
v_lshlrev_b32 v4, 4, v2
v_cmp_lt_u32 vcc, 33, v2
v_add_u32 v1, s53, v4
v_add_u32 v3, {extra}, v1
v_cndmask_b32 v1, v1, v3, vcc
v_cmp_lt_u32 vcc, 7, v2
v_add_u32 v4, s52, v4
v_add_u32 v3, {8192 - 128}, v4
v_cndmask_b32 v4, v4, v3, vcc
v_cmp_lt_u32 vcc, 15, v2
s_lshl_b32 s7, s{S_WV}, 10
s_add_u32 s7, s7, {SDL}
v_cndmask_b32 v4, v4, v1, vcc
v_cmp_lt_u32 vcc, 51, v2
v_mov_b32 v1, {BIG}
v_add_u32 v8, s7, v8
v_cndmask_b32 v4, v4, v1, vcc
v_add_u32 v9, s7, v9""".split("\n")
    side1 = [(["s_mov_b32 m0, s7", "s_nop 0"], f"buffer_load_dwordx4 v4, {W}, 0 offen sc0 sc1 lds", "sd")]
    def mainloop(kind, side, srd_=()):
        e.vm, e.vm_done = list(vm0[0]), vm0[1]; e.lg = []; e.lg_done = 0
        e.wait_vm(lambda t: t == ("dma", 0))
        e("s_barrier")
        tm.stamp(1)
        for i, t in enumerate(rdlist(0, 0)): e.ds(t, (0, 0, i))
        dq = dma(2)
        for _ in range(4): issue(dq.pop(0))
        for st in range(9):
            for kk in range(2):
                nst = st if kk == 0 else st + 1
                rd = rdlist(nst, 1 - kk) if nst < 9 else list(srd_)
                ri = 0; cnt = 0
                for ct in range(9):
                    for tt in range(2):
                        if cnt == 0: e.wait_lg(lambda t: t == (st, kk, 13 if kk == 0 else 19))
                        if cnt == 8: e.wait_lg(lambda t: t == (st, kk, 19))
                        d = ACC + 36*tt + 4*ct; x = f"a[{XF+8*kk+4*tt}:{XF+8*kk+4*tt+3}]"; wf = f"a[{WF+36*kk+4*ct}:{WF+36*kk+4*ct+3}]"
                        a, b = (wf, x) if kind == "q" else (x, wf)
                        e(f"v_mfma_f32_16x16x32_bf16 v[{d}:{d+3}], {a}, {b}, " + ("0" if st == 0 and kk == 0 else f"v[{d}:{d+3}]"))
                        cnt += 1
                        if kk == 1 and cnt == 1:
                            while dq: issue(dq.pop(0))
                            e.wait_vm(lambda t: t == (("dma", nst) if nst < 9 else "sd"))
                            e("s_barrier")
                            if nst == gate_at[0]:
                                e.vmem(f"buffer_load_dword v10, v11, s[{S_DBG}:{S_DBG+3}], 0 offen sc0 sc1", "gate")
                            if nst == gate_at[1]:
                                e.wait_vm(lambda t: t == "gate")
                                e(f"v_readfirstlane_b32 s5, v10\ns_nop 1\ns_cmp_eq_u32 s5, 64\ns_cbranch_scc0 F_sp{kind}\nF_rt{kind}:")
                            if nst + 2 < 9: dq = dma(nst + 2)
                            if nst == 7: q.drain()
                            if nst == 7: dq = dq + side + (st_loads()[:6 if xpro else 9] if stl else []) + wo_dma()[:w7]
                            if nst == 8: dq = dq + wo_dma()[w7:w8]
                            if nst == 9: wq.extend(wo_dma()[w8:27-nl])
                        for _ in range(2 if cnt % 2 == 1 else 1):
                            if rd: e.ds(rd.pop(0), (nst, 1 - kk, ri)); ri += 1
                        per = dper if nst < 7 else (1 if dq and dq[0][2] in ('sd', 'sd2') else lper)
                        if dq and cnt % per == 0: issue(dq.pop(0))
                        elif nst == 9 and cnt % 6 == 0: wpace(True)
                        else: q.fill(2 if not rd else 1)
        assert not dq
        q.drain()
        tm.stamp(2)
    def pr(r): return f"v[{r}:{r+1}]"
    def bc(r, pos, n=3):
        base = r & ~1; hi = r & 1
        sel = [0]*n; selh = [1]*n
        sel[pos] = hi; selh[pos] = hi
        return pr(base), f" op_sel:{sel} op_sel_hi:{selh}".replace(", ", ",")
    def zipemit(*seqs):
        for k in range(max(map(len, seqs))):
            for s_ in seqs:
                if k < len(s_): e(s_[k])
            wpace()
    def phi4(a, t):
        return [f"v_exp_f32_e64 v{t+r}, v{a+r} clamp" for r in range(4)] + [f"v_max_f32 v{a+r}, s58, v{a+r}" for r in range(4)] + \
               [f"v_pk_fma_f32 {pr(a+r)}, {pr(a+r)}, s[56:57], {pr(t+r)}" for r in (0, 2)]
    pairs = []
    for hl in range(4):
        for a in (hl, hl + 1):
            for b in (hl + 4, hl + 5):
                if (a, b) not in pairs: pairs.append((a, b))
    def sm(m): return f"s_mov_b32 s50, {hex(m & 0xffffffff)}\ns_mov_b32 s51, {hex(m >> 32)}".split("\n")
    L = f"v_mov_b32 v11, 0\nv_mov_b32 v{ONES}, 0x3f803f80\ns_mul_i32 s6, s{S_WV}, 12288\ns_add_u32 s6, s6, {KVB}\nv_mul_u32_u24 v3, 80, v{T}\nv_lshl_add_u32 v3, v{T+1}, 4, v3\nv_add_u32 v3, s6, v3\nv_mov_b32 v{T+3}, {LBIG}".split("\n")
    L += f"v_lshlrev_b32 v8, 4, v{T+1}\nv_lshlrev_b32 v9, 2, v{T}".split("\n")
    for k, (a, b) in enumerate(pairs):
        first = True
        for hl in range(4):
            def valid(l):
                n, g = l & 15, l >> 4
                ec = 16*(b-4) - 8 + n
                if ec < 0 or ec // 18 != hl: return False
                return 0 <= 4*a + g - (9*hl)//2 < 5
            m = mask64(valid)
            if not m: continue
            const = hl*1520 + (16*(b-4) - 8 - 18*hl)*80 + (4*a - (9*hl)//2)*16
            L += sm(m) + [f"v_add_u32 v{T+2}, {const & 0xffffffff}, v3", f"v_cndmask_b32 v{WA+k}, v{T+3 if first else WA+k}, v{T+2}, s[50:51]"]
            first = False
    L += f"v_add_u32 v3, 1, v{T}\nv_lshrrev_b32 v3, 1, v3\nv_lshrrev_b32 v{T+2}, 1, v{T}\nv_lshl_add_u32 v3, v3, 2, v{T+1}\nv_mul_u32_u24 v1, 9, v{T+2}\nv_lshrrev_b32 v1, 1, v1\nv_sub_u32 v3, v3, v1".split("\n")
    L += sm(mask64(lambda l: (l & 15) < 8 and 0 <= 4*(((l & 15) + 1) >> 1) + (l >> 4) - (9*((l & 15) >> 1))//2 < 5))
    L += f"v_mul_u32_u24 v{T+2}, 1520, v{T+2}\nv_lshl_add_u32 v3, v3, 4, v{T+2}\ns_add_u32 s6, s6, {18*80}\nv_add_u32 v3, s6, v3\nv_cndmask_b32 v{WA+13}, v{T+3}, v3, s[50:51]".split("\n")
    for a in range(5):
        L += sm(mask64(lambda l: (l & 15) < 8 and ((l & 15) + 1) >> 1 == a))
        L += [f"v_cndmask_b32 v{ZB+4*a+i}, 0, v{ONES}, s[50:51]" for i in range(4)]
    L += f"s_mul_i32 s6, s{S_G}, 6080\nv_mov_b32 v{T+3}, {BIG}".split("\n")
    for i in range(6):
        L += f"""v_add_u32 v3, {256*i}, v0
v_mul_u32_u24 v{T+2}, 3277, v3
v_lshrrev_b32 v{T+2}, 16, v{T+2}
v_mul_u32_u24 v1, 20, v{T+2}
v_sub_u32 v1, v3, v1
v_mul_u32_u24 v{T+2}, 27, v{T+2}
v_lshrrev_b32 v{T+2}, 8, v{T+2}
v_and_b32 v{T+2}, 2, v{T+2}
v_sub_u32 v1, v1, v{T+2}
v_cmp_gt_u32 s[50:51], 18, v1
v_lshlrev_b32 v3, 2, v3
v_add_u32 v3, s6, v3
v_cndmask_b32 v{GA+i}, v{T+3}, v3, s[50:51]""".split("\n")
    L += f"v_cmp_gt_u32 vcc, 240, v0\ns_lshr_b32 s{S_SIG}, s{S_G}, 1\ns_lshl_b32 s{S_SIG}, s{S_SIG}, 12\nv_cndmask_b32 v{GA+5}, v{T+3}, v{GA+5}, vcc\ns_add_u32 s{S_SIG}, s{S_SIG}, {WS_FK}".split("\n")
    L += side_setup(0, 2016) + [f"s_mov_b32 s50, {hex(f2u(L2E))}", f"s_mov_b32 s51, {hex(f2u(L2E))}"]
    for l in L[:60]: e(l)
    fill_lines(L[60:])
    rs_ = [f"ds_read_b128 v[{RSV+16*tt+4*k}:{RSV+16*tt+4*k+3}], v8 offset:{128*k + 64*tt}" for k in range(2) for tt in range(2)]
    rs_ += [f"ds_read_b32 v{CSV+ct}, v9 offset:{256 + 64*ct}" for ct in range(9)]
    mainloop("kv", side1, rs_)
    e("s_waitcnt lgkmcnt(0)")
    for tt in range(2):
        for i in range(0, 8, 2): e(f"v_pk_mul_f32 {pr(RSV+16*tt+8+i)}, {pr(RSV+16*tt+i)}, s[50:51]")
    def kseq(ct, tt):
        a = ACC + 36*tt + 4*ct; R = RSV + 16*tt; t = TT + 4*tt
        o, sel = bc(CSV + ct, 1); d = PK + 4*ct + 2*tt
        return [f"v_pk_fma_f32 {pr(t+r)}, {pr(R+12+r)}, {o}, s[58:59]{sel}" for r in (0, 2)] + \
               [f"v_pk_fma_f32 {pr(a+r)}, {pr(a+r)}, {pr(R+8+r)}, {pr(t+r)}" for r in (0, 2)] + phi4(a, t) + \
               [f"v_cvt_pk_bf16_f32 v{d}, v{a}, v{a+1}", f"v_cvt_pk_bf16_f32 v{d+1}, v{a+2}, v{a+3}"]
    def vseq(ct, tt):
        a = ACC + 36*tt + 4*ct; R = RSV + 16*tt; t = TT + 8 + 4*tt
        o, sel = bc(CSV + ct, 1, 2); d = PV + 4*(ct-4) + 2*tt
        return [f"v_pk_mul_f32 {pr(t+r)}, {pr(R+4+r)}, {o}{sel}" for r in (0, 2)] + \
               [f"v_pk_fma_f32 {pr(t+r)}, {pr(a+r)}, {pr(R+r)}, {pr(t+r)}" for r in (0, 2)] + \
               [f"v_cvt_pk_bf16_f32 v{d}, v{t}, v{t+1}", f"v_cvt_pk_bf16_f32 v{d+1}, v{t+2}, v{t+3}"]
    e("s_nop 1")
    def zp(a, b): return [x for p in zip(a, b) for x in p]
    free = []; zreg = 112
    kvreg = {13: zreg}; wrq = []; lastw = [-100]
    def mf(a):
        for k, (pa, pb) in enumerate(pairs):
            if pa == a:
                d = free.pop(0); kvreg[k] = d
                e(f"v_mfma_f32_16x16x32_bf16 v[{d}:{d+3}], v[{PK+4*a}:{PK+4*a+3}], v[{PV+4*(pb-4)}:{PV+4*(pb-4)+3}], 0"); wrq.append((k, e.n))
        e(f"v_mfma_f32_16x16x32_bf16 v[{zreg}:{zreg+3}], v[{PK+4*a}:{PK+4*a+3}], v[{ZB+4*a}:{ZB+4*a+3}], " + ("0" if a == 0 else f"v[{zreg}:{zreg+3}]"))
        if a == 4: wrq.append((13, e.n))
    def em(l):
        e(l)
        if wrq and e.n - wrq[0][1] >= 9 and e.n - lastw[0] >= wsp:
            k = wrq.pop(0)[0]; e(f"ds_write_b128 v{WA+k}, v[{kvreg[k]}:{kvreg[k]+3}]"); lastw[0] = e.n
        else: wpace()
    for a in range(5):
        for ct in ((4, 5) if a == 0 else ((5 + a,) if a < 4 else ())):
            for l in zp(vseq(ct, 0), vseq(ct, 1)): em(l)
            if ct > 4: free += [ACC + 4*ct, ACC + 36 + 4*ct]
        ks = zp(kseq(a, 0), kseq(a, 1))
        for l in ks[:8]: em(l)
        if a > 0: mf(a - 1)
        for l in ks[8:]: em(l)
        free += [ACC + 4*a, ACC + 36 + 4*a]
        if a == 0: tm.stamp(3)
    e(f"v_lshlrev_b32 v3, 2, v0\nv_add_u32 v3, {KVB}, v3")
    mf(4)
    while wrq:
        k, pos = wrq.pop(0)
        while e.n - pos < 9:
            if wq: wpace(True)
            else: e("s_nop 0")
        e(f"ds_write_b128 v{WA+k}, v[{kvreg[k]}:{kvreg[k]+3}]")
    while wq and not wlate: wpace(True)
    tm.stamp(4)
    e(f"s_waitcnt lgkmcnt(0)\ns_barrier")
    RB = RSV
    e.lg = []; e.lg_done = 0
    for i in range(6):
        for w in range(0, 4, 2):
            e.ds(f"ds_read2st64_b32 v[{RB+4*i+w}:{RB+4*i+w+1}], v3 offset0:{(w*12288 + i*1024)//256} offset1:{((w+1)*12288 + i*1024)//256}", i)
    for i in range(6):
        e.wait_lg(lambda t: t == i)
        r = RB + 4*i
        e(f"v_pk_add_f32 {pr(r)}, {pr(r)}, {pr(r+2)}\nv_add_f32 v{r}, v{r}, v{r+1}")
        e(f"buffer_atomic_add_f32 v{r}, v{GA+i}, {W}, 0 offen sc1")
    while wq: wpace(True)
    e(f"v_cmp_gt_u32 vcc, 32, v0\nv_lshlrev_b32 v23, 7, v0\nv_mov_b32 v22, {BIG}\nv_cndmask_b32 v23, v22, v23, vcc\nv_mov_b32 v22, 1")
    tm.stamp(5)
    e("s_branch F_k2")
    e("F_q:")
    P = WA; CSQ = CSV; RSQ = RSV
    e(f"v_mov_b32 v11, 0\nv_lshlrev_b32 v8, 2, v{T}\nv_lshlrev_b32 v9, 4, v{T+1}")
    e(f"s_lshl_b32 s5, s52, 2\ns_add_u32 s5, s5, s{S_G}\ns_mul_i32 s5, s5, 9216\ns_add_u32 s40, s5, {WS_PQ}\ns_add_u32 s41, s40, 4096\ns_add_u32 s42, s40, 8192")
    e(f"s_lshl_b32 s{S_SIG}, s{S_G}, 5\ns_lshr_b32 s5, s52, 1\ns_add_u32 s{S_SIG}, s{S_SIG}, s5\ns_lshl_b32 s{S_SIG}, s{S_SIG}, 7\ns_add_u32 s{S_SIG}, s{S_SIG}, {WS_FK}")
    for l in side_setup(2, 0): e(l)
    rs_ = [f"ds_read_b32 v{RSQ+2*tt+k}, v8 offset:{128*k + 64*tt}" for k in range(2) for tt in range(2)]
    rs_ += [f"ds_read_b128 v[{CSQ+4*ct}:{CSQ+4*ct+3}], v9 offset:{256 + 64*ct}" for ct in range(9)]
    mainloop("q", side1, rs_)
    e("v_lshlrev_b32 v4, 4, v2\ns_waitcnt lgkmcnt(0)")
    def qseq(n):
        tt, ct = n // 9, n % 9
        a = ACC + 36*tt + 4*ct; t = TT + 4*(n % 2); d = P + 2*n
        o1, s1 = bc(RSQ + 2*tt + 1, 0); o2, s2 = bc(RSQ + 2*tt, 1)
        return [f"v_pk_fma_f32 {pr(t+r)}, {o1}, {pr(CSQ+4*ct+r)}, s[58:59]{s1}" for r in (0, 2)] + \
               [f"v_pk_fma_f32 {pr(a+r)}, {pr(a+r)}, {o2}, {pr(t+r)}{s2}" for r in (0, 2)] + phi4(a, t) + \
               [f"v_cvt_pk_bf16_f32 v{d}, v{a}, v{a+1}", f"v_cvt_pk_bf16_f32 v{d+1}, v{a+2}, v{a+3}"]
    for k in range(9):
        zipemit(qseq(2*k), qseq(2*k + 1))
        e(f"buffer_store_dwordx4 v[{P+4*k}:{P+4*k+3}], v4, {W}, s{40+k//4} offen" + (f" offset:{(k%4)*1024}" if k % 4 else "") + " sc0 sc1")
    while wq: wpace(True)
    e(f"v_cmp_eq_u32 vcc, 0, v2\nv_mov_b32 v22, {BIG}\ns_nop 0\nv_cndmask_b32_e64 v23, v22, 0, vcc\nv_mov_b32 v22, 0x100")
    tm.stamp(5)
    e("s_branch F_k2")
    for kind in ("kv", "q"):
        e(f"F_sp{kind}:\nbuffer_load_dword v10, v11, s[{S_DBG}:{S_DBG+3}], 0 offen offset:128 sc0 sc1\ns_waitcnt vmcnt(0)\nv_readfirstlane_b32 s5, v10\ns_nop 1\ns_cmp_eq_u32 s5, 63\ns_cbranch_scc0 F_sp{kind}\ns_branch F_rt{kind}")
    e("F_spare:")
    e(f"v_lshrrev_b32 v3, 3, v2\nv_and_b32 v{T}, 7, v2\nv_lshlrev_b32 v{T}, 4, v{T}\nv_mov_b32 v8, {BIG}\nv_mov_b32 v10, 0x3f803f80\nv_cmp_eq_u32 s[52:53], 0, v{T}")
    e(f"s_waitcnt lgkmcnt(0)")
    srd(e, S_X, 40, ACT_BYTES)
    srd(e, S_W, 42, 576*1728*2)
    srd(e, S_WS_, 46, WS_BYTES)
    e(f"s_cmp_ge_u32 s2, 37\ns_cbranch_scc1 F_cs")
    e(f"v_mul_u32_u24 v9, 1152, v3\nv_add_u32 v9, v9, v{T}")
    def touch():
        if not xt: return []
        t0 = xt
        e(f"s_and_b32 s3, s2, 7\ns_lshr_b32 s4, s2, 3\ns_and_b32 s5, s3, 1\ns_lshl_b32 s50, s5, 9\ns_mul_i32 s5, s4, {8*3456}\ns_add_u32 s50, s50, s5")
        e(f"s_xor_b32 s3, s3, 1\ns_lshl_b32 s3, s3, 3\ns_add_u32 s3, s3, s4\ns_mul_i32 s51, s3, {32*1152}")
        e(f"v_and_b32 v21, 15, v0\nv_mul_u32_u24 v22, 52, v21\nv_lshrrev_b32 v22, 8, v22\nv_lshl_add_u32 v22, v22, 2, v21\nv_lshlrev_b32 v22, 7, v22")
        e(f"v_bfe_u32 v23, v0, 4, 3\nv_lshrrev_b32 v1, 7, v0\nv_lshl_add_u32 v23, v1, 6, v23\nv_mul_u32_u24 v23, 3456, v23\nv_cmp_gt_u32 vcc, 15, v21\nv_add_u32 v22, v22, v23\nv_and_b32 v21, 31, v0\nv_cndmask_b32 v22, v8, v22, vcc")
        e(f"v_mul_u32_u24 v21, 1152, v21\nv_lshrrev_b32 v23, 5, v0\nv_cmp_gt_u32 vcc, {9-t0}, v23\nv_lshl_add_u32 v21, v23, 7, v21\ns_add_u32 s51, s51, {128*t0}\nv_cndmask_b32 v21, v8, v21, vcc")
        L = []
        for k, st in enumerate(range(t0, 9, 2)):
            L.append(f"s_add_u32 s5, s50, {64*3456*st}\nbuffer_load_dword v246, v22, s[{S_W}:{S_W+3}], s5 offen")
            if k == 0: L.append(f"buffer_load_dword v247, v21, s[{S_X}:{S_X+3}], s51 offen")
        return L
    def zero():
        e(f"v_cmp_gt_u32 vcc, 95, v0\nv_lshlrev_b32 v28, 3, v0\nv_mov_b32 v30, 0\nv_mov_b32 v31, 0\nv_cndmask_b32 v29, v8, v28, vcc\ns_mul_i32 s5, s2, 760\ns_lshl_b32 s4, s2, 11\ns_add_u32 s4, s4, {WS_FL}")
        e.vmem(f"buffer_store_dwordx2 v[30:31], v29, {W}, s5 offen sc0 sc1", "z"); e.vmem(f"buffer_store_dwordx2 v[30:31], v28, {W}, s4 offen sc0 sc1", "z")
    def rowloads(base, sr, so):
        for i in range(9):
            e.vmem(f"buffer_load_dwordx4 v[{base+4*i}:{base+4*i+3}], v9, s[{sr}:{sr+3}], s{so} offen" + (f" offset:{128*i}" if i else ""), (base, i))
    def rowsums(base, sq):
        e("v_mov_b32 v12, 0\nv_mov_b32 v13, 0")
        for i in range(9):
            e.wait_vm(lambda t: t == (base, i))
            for k in range(4):
                e(f"v_dot2c_f32_bf16 v12, v{base+4*i+k}, v10")
                if sq: e(f"v_dot2c_f32_bf16 v13, v{base+4*i+k}, v{base+4*i+k}")
        e("s_nop 2")
        for dpp in ("quad_perm:[1,0,3,2]", "quad_perm:[2,3,0,1]", "row_half_mirror"):
            e(f"v_add_f32_dpp v12, v12, v12 {dpp} row_mask:0xf bank_mask:0xf\nv_add_f32_dpp v13, v13, v13 {dpp} row_mask:0xf bank_mask:0xf\ns_nop 0")
    def wbar(base, su):
        e(f"s_mul_i32 s7, s{su}, 57\ns_lshr_b32 s7, s7, 10\ns_mul_i32 s5, s7, 18\ns_sub_u32 s4, s{su}, s5\ns_mul_i32 s7, s7, 320")
        e(f"s_lshr_b32 s5, s4, 1\ns_lshl_b32 s5, s5, 3\ns_add_u32 s7, s7, s5\ns_and_b32 s5, s4, 1\ns_mul_i32 s5, s5, 160\ns_add_u32 s7, s7, s5\ns_add_u32 s7, s7, {WS_WB}")
        e(f"v_lshrrev_b32 v14, 5, v2\nv_mul_u32_u24 v14, 80, v14\nv_bfe_u32 v15, v2, 3, 2\nv_lshl_add_u32 v14, v15, 1, v14\nv_cndmask_b32 v14, v8, v14, s[52:53]")
        rowsums(base, False)
        e(f"v_mul_f32 v12, {hex(f2u(1.0/576))}, v12\nv_cvt_pk_bf16_f32 v12, v12, v12")
        e.vmem(f"buffer_store_short v12, v14, {W}, s7 offen sc0 sc1", "st")
    e(f"s_cmp_ge_u32 s2, 32\ns_cbranch_scc1 F_wb2")
    e.vm = []; e.vm_done = 0
    e(f"s_and_b32 s6, s2, 7\ns_lshl_b32 s6, s6, 5\ns_and_b32 s5, s2, 24\ns_add_u32 s6, s6, s5\ns_lshl_b32 s5, s{S_WV}, 1\ns_add_u32 s6, s6, s5")
    e(f"s_mul_i32 s54, s6, {8*1152}\ns_add_u32 s55, s54, {8*1152}")
    rowloads(32, S_X, 54); rowloads(68, S_X, 55)
    for l in wo_setup(): e(l)
    e(f"s_add_u32 s3, s2, 40\ns_mul_i32 s54, s3, {8*1152}\ns_cmp_lg_u32 s{S_WV}, 0\ns_cselect_b32 s54, {BIG}, s54")
    rowloads(104, S_WO, 54)
    zero()
    e(f"v_lshrrev_b32 v3, 3, v2\nv_lshlrev_b32 v3, 2, v3\nv_cndmask_b32 v3, v8, v3, s[52:53]\ns_lshl_b32 s6, s6, 5")
    for u, base in enumerate((32, 68)):
        rowsums(base, True)
        e(f"v_mul_f32 v15, {hex(f2u(1.0/576))}, v12")
        ln_stats2(e, [(12, 13, 14, 16, 17)])
        e(f"v_mul_f32 v18, {hex(f2u(L2E))}, v16\nv_mul_f32 v19, {hex(f2u(L2E))}, v17")
        for k in range(4):
            e(f"s_add_u32 s5, s6, {WS_S4 + 8192*k + 32*u}")
            e.vmem(f"buffer_store_dword v{16+k}, v3, {W}, s5 offen sc0 sc1", "st")
        e(f"s_add_u32 s5, s6, {WS_MX + 32*u}")
        e.vmem(f"buffer_store_dword v15, v3, {W}, s5 offen sc0 sc1", "st")
    e(f"s_cmp_lg_u32 s{S_WV}, 0\ns_cbranch_scc1 F_sj")
    wbar(104, 3)
    e("s_branch F_sj\nF_wb2:")
    e.vm = []; e.vm_done = 0
    for l in wo_setup(): e(l)
    e(f"s_sub_u32 s6, s2, 32\ns_lshl_b32 s6, s6, 2\ns_add_u32 s6, s6, s{S_WV}\ns_lshl_b32 s6, s6, 1\ns_mul_i32 s54, s6, {8*1152}\ns_add_u32 s55, s54, {8*1152}")
    rowloads(32, S_WO, 54); rowloads(68, S_WO, 55)
    zero()
    e("s_add_u32 s3, s6, 1")
    wbar(32, 6); wbar(68, 3)
    e("s_branch F_sj")
    e("F_cs:")
    e(f"v_mul_u32_u24 v9, 3456, v3\nv_add_u32 v9, v9, v{T}\ns_sub_u32 s6, s2, 37\ns_mul_i32 s54, s{S_WV}, {144*3456}\ns_lshl_b32 s5, s6, 7\ns_add_u32 s54, s54, s5")
    e.vm = []; e.vm_done = 0
    for i in range(18):
        e.vmem(f"buffer_load_dwordx4 v[{32+4*i}:{35+4*i}], v9, s[{S_W}:{S_W+3}], s54 offen", i)
        if i < 17: e(f"s_add_u32 s54, s54, {8*3456}")
    zero()
    for l in wo_setup(): e(l)
    e("v_mov_b32 v10, 0x3f80\nv_mov_b32 v11, 0x3f800000")
    for k in range(8): e(f"v_mov_b32 v{12+k}, 0")
    e(f"v_lshlrev_b32 v3, 5, v0\nv_add_u32 v3, {KVB}, v3\nv_lshlrev_b32 v9, 2, v2\nv_add_u32 v{T}, {KVB}, v9\ns_lshl_b32 s6, s6, 8\ns_add_u32 s6, s6, {WS_CS}")
    for i in range(18):
        e.wait_vm(lambda t: t == i)
        for k in range(4): e(f"v_dot2c_f32_bf16 v{12+2*k}, v{32+4*i+k}, v10\nv_dot2c_f32_bf16 v{13+2*k}, v{32+4*i+k}, v11")
    e(f"s_nop 2\nds_write_b128 v3, v[12:15]\nds_write_b128 v3, v[16:19] offset:16\ns_waitcnt lgkmcnt(0)\ns_barrier\ns_cmp_lg_u32 s{S_WV}, 0\ns_cbranch_scc1 F_sj")
    for h in range(2):
        for k in range(8): e(f"ds_read2st64_b32 v[{32+16*h+2*k}:{33+16*h+2*k}], v{T} offset0:{16*h+2*k} offset1:{16*h+2*k+1}")
    e("s_waitcnt lgkmcnt(0)")
    for n in (8, 4, 2, 1):
        for k in range(n): e(f"v_pk_add_f32 v[{32+2*k}:{33+2*k}], v[{32+2*k}:{33+2*k}], v[{32+2*k+2*n}:{33+2*k+2*n}]")
    e(f"v_add_f32 v32, v32, v33\nbuffer_store_dword v32, v9, {W}, s6 offen sc0 sc1")
    e("F_sj:")
    e("s_load_dwordx4 s[40:43], s[0:1], 32")
    srd(e, S_DBG, 44, 256)
    TL = touch()
    for l in TL[:xpre]: e(l)
    e(f"v_cmp_eq_u32 vcc, 0, v2\nv_mov_b32 v4, 1\nv_mov_b32 v11, 0\nv_cndmask_b32_e64 v3, v8, 0, vcc\ns_waitcnt vmcnt({min(xpre, len(TL))}) lgkmcnt(0)\ns_barrier")
    tm.stamp(0)
    e(f"s_cmp_lg_u32 s{S_WV}, 3\ns_cbranch_scc1 F_nsg")
    e(f"buffer_atomic_add v4, v3, s[{S_DBG}:{S_DBG+3}], 0 offen sc0 sc1\nF_nsg:")
    for l in TL[xpre:]: e(l)
    e(f"s_cmp_lg_u32 s{S_WV}, 3\ns_cbranch_scc1 F_nsg2\ns_waitcnt vmcnt({len(TL[xpre:])})\nv_readfirstlane_b32 s5, v4\ns_nop 1\ns_cmp_lg_u32 s5, 63\ns_cbranch_scc1 F_nsg2")
    e(f"buffer_store_dword v4, v3, s[{S_DBG}:{S_DBG+3}], 0 offen offset:128 sc0 sc1\nF_nsg2:")
    if cpf:
        e(f"s_lshr_b32 s6, s2, 3\ns_lshl_b32 s6, s6, 13\ns_cmp_lg_u32 s{S_WV}, 3\ns_cbranch_scc1 F_ncp")
        code_prefetch(e, "F_pc2", "F_k2", "KB_last", 2, 248, 6)
        e("F_ncp:")
    if prefetch:
        srd(e, 52, 40, 576*4608*2); srd(e, 56, 42, 576*4608*2)
        slice_of_xcd(e, 5, 2, C)
        e(f"s_mul_i32 s5, s5, 1152\ns_lshr_b32 s6, s2, 3\ns_mul_i32 s6, s6, {72*9216}\ns_add_u32 s5, s5, s6")
        e(f"v_mul_u32_u24 v4, 911, v0\nv_lshrrev_b32 v4, 16, v4\nv_mul_u32_u24 v3, 72, v4\nv_sub_u32 v3, v0, v3\nv_mul_u32_u24 v3, 9216, v3")
        for k in range(0, len(pf1), 3):
            ls = list(pf1[k:k+3])
            e(f"v_mov_b32 v12, {BIG}")
            for i, ln in enumerate(ls):
                e(f"v_cmp_eq_u32 vcc, {i}, v4\nv_add_u32 v13, {ln*128}, v3\ns_nop 0\nv_cndmask_b32 v12, v12, v13, vcc")
            e(f"buffer_load_dword v244, v12, s[52:55], s5 offen\nbuffer_load_dword v245, v12, s[56:59], s5 offen")
    for x in (wo_dma()[:27-nl] if idle else []): issue(x)
    e(f"F_gate:\nbuffer_load_dword v10, v11, s[{S_DBG}:{S_DBG+3}], 0 offen offset:128 sc0 sc1\ns_waitcnt vmcnt(0)\nv_readfirstlane_b32 s5, v10\ns_nop 1\ns_cmp_eq_u32 s5, 63\ns_cbranch_scc1 F_gated\ns_sleep 4\ns_branch F_gate\nF_gated:")
    for l in st_setup(): e(l)
    for x in (st_loads() if stl else st_loads()[6 if xpro in (1, 2) else 9:]): issue(x)
    e(f"v_mov_b32 v23, {BIG}\ns_mov_b32 s{S_SIG}, 0")
    tm.stamp(5)
    e("F_k2:")
    return wo_dma()[27-nl:], ([] if stl or xpro == 3 else st_loads()[:6 if xpro else 9])
assert all((n*911) >> 16 == n//72 for n in range(256))
```

```python
from sched import *
from layout import *
from k3 import srd, f2u, SLOT
from k1 import mask64, smask, BIG, LBIG, slice_of_xcd
from kf1 import KVB, S_WS_, S_WO, S_X, S_RT, S_CG, S_WV, S_WL, S_SIG, WSL
import math
MXC = KVB + 4*12288

def gen_f2(e, tm, F, left, C=2, prefetch=True, p1=11, dp=11, slp=4, pf2=(1, 6, 2, 7, 3, 8), npre=44, nw1=24, lead_=1.25, nbar=9, lsp=3, xe=1, npq=5, prog=1, bla=4, p0=12, npe=0, stlate=0, alupre=0, ndma=27, mfill=2, idle=1, pfd=0, pqt=0, thr=4, xl_=1, fine=9, lf=' sc0 sc1', sf=' sc0 sc1'):
    A = 24; O = 112; ADR = 112; RAW = 184; RD = 148; NR = 164; MIX = 180; GB = 184; ACC = 232
    VL16 = 4; TB = 8; VXA = 10; VST = 11; VSA = 12; VMX = 15; VD = 18; VLZ = 21; VF = 22
    XT = 232; XA = 200; MN = 212
    PQ = 0; WFR = 72; WB = 180
    S_RB = 35; S_WS = 36
    W = f"s[{S_WS_}:{S_WS_+3}]"
    lg = lambda x: int(math.log2(x))
    e.vm = []; e.vm_done = 0; e.lg = []; e.lg_done = 0
    e("s_load_dwordx4 s[12:15], s[0:1], 32\ns_load_dwordx4 s[40:43], s[0:1], 48")
    left, stat = left; left = list(left); nl = len(left)
    def lissue(n):
        for _ in range(n):
            if left:
                pre, t_, _ = left.pop(0)
                for p in pre: e(p)
                e(t_)
    e(f"""s_mul_i32 s{S_RB}, s{S_WV}, 12288
s_add_u32 s{S_RB}, s{S_RB}, {KVB}
s_mul_i32 s24, s{S_WV}, 12160
v_lshlrev_b32 v{VL16}, 4, v2
s_lshr_b32 s5, s{S_WV}, 1
s_lshl_b32 s6, s{S_RT}, 1
s_add_u32 s{S_WS}, s6, s5
s_lshl_b32 s5, s{S_WS}, 2
s_add_u32 s5, s5, s{S_WV}
s_xor_b32 s6, s5, 4
s_mul_i32 s25, s5, 9216
s_mul_i32 s26, s6, 9216
s_lshl_b32 s45, s{S_WV}, 5
s_add_u32 s45, s45, s{S_RT}
s_lshl_b32 s45, s45, 7
s_add_u32 s45, s45, {WS_FK}
v_cmp_eq_u32 vcc, 0, v2
v_mov_b32 v1, {BIG}
s_nop 0
v_cndmask_b32_e64 v{VLZ}, v1, 0, vcc""")
    e(f"v_and_b32 v13, 15, v2\nv_lshrrev_b32 v14, 4, v2\nv_mul_u32_u24 v3, 80, v13\nv_lshl_add_u32 v3, v14, 4, v3\nv_add_u32 v3, s{S_RB}, v3\nv_mov_b32 v16, {LBIG}")
    e(f"v_and_b32 v1, 3, v13\nv_mul_u32_u24 v17, 9, v1\nv_lshrrev_b32 v17, 1, v17\nv_sub_u32 v17, v14, v17\nv_lshlrev_b32 v17, 4, v17\nv_mul_u32_u24 v1, 1520, v1\nv_add3_u32 v17, v17, v1, s{S_RB}")
    frags = []; na = [0]; prep = []
    def addr(base, m):
        if m == 0: return None
        r = ADR + na[0]; na[0] += 1
        prep.append((r, base, m))
        return r
    zf = []
    for c, T0s in ((0, (0, 2, 4)), (1, (4, 6, 7))):
        for T0 in T0s:
            L = []
            for jj in range(2):
                T = T0 + jj
                def valid(l):
                    if c == 1 and T0 == 7 and jj == 0: return False
                    hs = 4*c + (l & 3); g = l >> 4
                    return 0 <= 4*T + g - (9*hs)//2 < 5
                L.append((addr(17, mask64(valid)), c*(4*1520 - 18*16) + 18*80 + 64*T))
            zf.append((c, T0, len(frags))); frags.append(L)
    numf = {}
    for h in range(8):
        for j in (h, h + 1):
            L = []
            for jj in range(2):
                def valid(l):
                    m, g = l & 15, l >> 4
                    return 0 <= 16*j + m - 18*h < 18 and 0 <= g + 4*jj - (h >> 1) < 5
                L.append((addr(3, mask64(valid)), h*1520 + (16*j - 18*h)*80 + (4*jj - (h >> 1))*16))
            numf[(j, h)] = len(frags); frags.append(L)
    def doprep(n):
        for _ in range(n):
            if prep:
                r, base, m = prep.pop(0)
                smask(e, 48, m); e(f"v_cndmask_b32 v{r}, v16, v{base}, s[48:49]")
    ng = 16 // C
    e(f"s_and_b32 s5, s{S_WV}, 1\ns_mul_i32 s59, s5, 96")
    e(f"v_lshrrev_b32 v1, 5, v2\nv_lshl_add_u32 v1, v1, 4, v13\nv_and_b32 v244, 1, v14")
    e(f"v_lshlrev_b32 v{VST}, 4, v1\nv_lshl_add_u32 v{VST}, v244, 9, v{VST}")
    e(f"v_cmp_eq_u32 s[48:49], 0, v244\nv_lshlrev_b32 v{VSA}, 3, v1\nv_lshlrev_b32 v{VMX}, 2, v1\nv_mov_b32 v1, {BIG}\nv_cndmask_b32 v{VSA}, v1, v{VSA}, s[48:49]")
    e(f"s_mul_i32 s51, s{S_WS}, 36864")
    e(f"v_lshrrev_b32 v245, 2, v2\nv_mul_u32_u24 v245, 192, v245\nv_and_b32 v{TB}, 3, v2\nv_lshl_add_u32 v245, v{TB}, 3, v245")
    e(f"s_add_u32 s7, s{S_WL}, s59\nv_add_u32 v{TB}, s7, v245\ns_add_u32 s7, s{S_WL}, 96\ns_sub_u32 s7, s7, s59\nv_add_u32 v{TB+1}, s7, v245\nv_add_u32 v{VD}, {2*SLOT}, v{TB}\nv_add_u32 v{VD+1}, {2*SLOT}, v{TB+1}")
    if xl_:
        for i in range(3):
            e(f"v_add_u32 v249, {64*i}, v2\nv_mul_u32_u24 v250, 10923, v249\nv_lshrrev_b32 v250, 16, v250\nv_lshlrev_b32 v249, 4, v249\nv_mul_u32_u24 v250, {1152-96}, v250")
            e(f"v_add_u32 v{246+i}, v249, v250" + (f"\nv_subrev_u32 v{246+i}, {1024*i}, v{246+i}" if i else ""))
        e(f"v_mul_u32_u24 v249, 96, v13\nv_lshl_add_u32 v249, v14, 3, v249\nv_add_u32 v249, s{S_RB}, v249")
        e(f"v_cmp_lt_u32 vcc, 19, v2\nv_add_u32 v251, s100, v{VL16}\ns_sub_u32 s5, s101, 320\nv_add_u32 v250, s5, v{VL16}\nv_cndmask_b32 v251, v251, v250, vcc\nv_cmp_lt_u32 vcc, 27, v2\nv_mov_b32 v250, {BIG}")
        e(f"v_mul_u32_u24 v252, 80, v14\nv_cndmask_b32 v251, v251, v250, vcc\nv_add_u32 v252, s{S_RB}, v252\nv_add_u32 v253, s{S_RB}, v{VMX}")
    doprep(npre)
    e(f"s_waitcnt vmcnt(0)")
    tm.stamp(0)
    e(f"s_barrier\nbuffer_atomic_add v{VF}, v23, {W}, s{S_SIG} offen sc1")
    wr = []
    for ks in range(5):
        for ct in range(6):
            r = WFR + 24*ks + (4 if ks < 4 else 2)*ct
            for i in range(2 if ks < 4 else 1):
                T_ = 2*ks + i; sl = WSL[T_//3]
                wr.append((T_, f"ds_read_b64_tr_b16 a[{r+2*i}:{r+2*i+1}], v{(TB if sl < 2 else VD) + ct//3} offset:{(sl % 2)*SLOT + (T_%3)*3072 + (ct%3)*32}"))
    alu = f"""s_and_b32 s3, s2, {ng-1}
s_lshl_b32 s3, s3, {lg(C)}
s_bfe_u32 s44, s2, {hex(3 | (lg(C) << 16))}
s_add_u32 s3, s3, s44
s_mul_i32 s30, s3, 576
s_and_b32 s3, s3, 1
s_xor_b32 s39, s3, 1
s_lshl_b32 s39, s39, 9
s_add_u32 s39, s39, s30
s_lshl_b32 s3, s3, 6
s_add_u32 s30, s30, s3
s_and_b32 s3, s{S_WV}, 1
s_mul_i32 s3, s3, {72*9216}
s_add_u32 s30, s30, s3
s_add_u32 s39, s39, s3
s_add_u32 s39, s39, s3
v_lshrrev_b32 v16, 2, v2
v_mul_u32_u24 v16, 9216, v16
v_and_b32 v17, 3, v2
v_lshl_add_u32 v16, v17, 4, v16
v_add_u32 v17, {16*9216-1024}, v16
v_add_u32 v23, {32*9216-2048}, v16
s_mul_i32 s31, s{S_WV}, 9216
v_bfe_u32 v{VD}, v2, 2, 3
v_mul_u32_u24 v{VD}, 9216, v{VD}
v_and_b32 v{VD+1}, 3, v2
v_lshl_add_u32 v{VD}, v{VD+1}, 4, v{VD}
v_lshrrev_b32 v{VD+1}, 5, v2
v_lshl_add_u32 v{VD}, v{VD+1}, 6, v{VD}
v_add_u32 v{VD+1}, {8*9216-1024}, v{VD}
v_add_u32 v{VD+2}, {16*9216-2048}, v{VD}"""
    gusel = f"s_cmp_lt_u32 s{S_WV}, 2\ns_cselect_b32 s12, s12, s14\ns_cselect_b32 s13, s13, s15\ns_and_b32 s13, s13, 0xffff\ns_mov_b32 s14, {576*4608*2}\ns_mov_b32 s15, 0x20000"
    def kdma(st):
        kind, qq = F["early"][F["perm"].index(st)]
        if kind == "S":
            return [([f"s_add_u32 m0, s31, {st*SLOT + i*1024}", f"s_add_u32 s44, s39, {(qq*288 + 16*i)*9216}"] if i % 3 == 0 else [],
                     f"buffer_load_dwordx4 v{(16,17,23)[i%3]}, s[12:15], s44 offen" + (f" offset:{(i%3)*1024}" if i % 3 else "") + " lds", ("dma", st), 2*dp) for i in range(9)]
        return [([f"s_add_u32 m0, s31, {st*SLOT + i*1024}", f"s_add_u32 s44, s30, {(qq*144 + 8*i)*9216}"] if i % 3 == 0 else [],
                 f"buffer_load_dwordx4 v{VD+i%3}, s[12:15], s44 offen" + (f" offset:{(i%3)*1024}" if i % 3 else "") + " lds", ("dma", st), dp) for i in range(9)]
    e(f"s_lshr_b32 s5, s2, 6\ns_cmp_eq_u32 s5, {idle}\ns_cbranch_scc1 F2_idle")
    lissue(nl)
    tdone = (27 - nl)//3
    wr1 = [t_ for T_, t_ in wr if T_ < tdone]; wr2 = [t_ for T_, t_ in wr if T_ >= tdone]
    apoll = f"v_mov_b32 v{VF}, 0\nbuffer_atomic_add v{VF}, v{VLZ}, {W}, s45 offen sc0 sc1"
    if xl_:
        e(f"s_add_u32 m0, s{S_RB}, 8192\ns_nop 0\nbuffer_load_dwordx4 v251, {W}, 0 offen{sf} lds")
        e(f"s_add_u32 m0, s{S_RB}, 9216\ns_nop 0")
        for i in range(3): e(f"buffer_load_dwordx4 v{246+i}, s[{S_X}:{S_X+3}], s99 offen" + (f" offset:{1024*i}" if i else "") + " lds")
    if stat and not stlate:
        for _, t_, _ in stat: e(t_)
    if npe: e("s_nop 1\n" + apoll)
    for t_ in wr1: e(t_)
    rdv = f"s_waitcnt vmcnt(0)\nv_readfirstlane_b32 s5, v{VF}\ns_nop 1"
    if npe: e(f"{rdv}\ns_cmp_ge_u32 s5, 0x200\ns_cbranch_scc1 F2_q\nF2_ql:\ns_sleep {slp}\n{apoll}\n{rdv}\ns_cmp_ge_u32 s5, 0x200\ns_cbranch_scc0 F2_ql\nF2_q:")
    pql = []
    for b in (1, 0):
        for q_ in range(9):
            pre = [f"s_add_u32 s29, s{25+b}, {WS_PQ + q_*1024}"] if q_ % 4 == 0 else []
            r = PQ + 36*b + 4*q_
            pql.append((pre, f"buffer_load_dwordx4 a[{r}:{r+3}], v{VL16}, {W}, s29 offen" + (f" offset:{(q_%4)*1024}" if q_ % 4 else "") + lf, ("pq", 2*b + (q_ > 4)), p0 if b == 1 else p1))
    for pre, t_, _, _ in pql[:npe]:
        for p in pre: e(p)
        e(t_)
    if stat and stlate:
        for _, t_, _ in stat: e(t_)
    e(apoll)
    xl = [f"v_accvgpr_read_b32 v{XT+k}, a{228+k}" for k in range(12)] + ["v_accvgpr_read_b32 v1, a240"] + \
         [f"v_permlane16_swap_b32 v{XT+4*k+i}, v{XT+4*k+i+2}" for k in range(3) for i in range(2)] + \
         [f"v_permlane32_swap_b32 v{XT+4*k+i}, v{XT+4*k+i+2}" for k in range(3) for i in range(2)] + \
         [f"v_accvgpr_write_b32 a{XA+k}, v{XT+k}" for k in range(12)]
    if xl_: xl = []
    sv = e.lines; e.lines = []
    assert not prep and nl <= 9
    e(alu)
    for t in range(1, 4): smask(e, 52 + 2*(t-1), mask64(lambda l: (l >> 4) < t))
    m0_ = mask64(lambda l: (l >> 4) == ((l & 15) >> 2) and (l & 2) == 0); m1_ = mask64(lambda l: (l >> 4) == ((l & 15) >> 2) and (l & 2) == 2)
    ID = 6
    e(f"s_movk_i32 s58, 0x3f80\nv_and_b32 v5, 1, v13\nv_lshlrev_b32 v5, 4, v5\nv_lshlrev_b32_e64 v5, v5, s58")
    smask(e, 48, m0_); e(f"v_cndmask_b32 v{ID}, 0, v5, s[48:49]"); smask(e, 48, m1_); e(f"v_cndmask_b32 v{ID+1}, 0, v5, s[48:49]")
    e(f"v_lshlrev_b32 v5, 3, v2\nv_add_u32 v3, s{S_RB}, v5")
    e(f"s_and_b32 s5, s{S_WV}, 2\nv_xor_b32 v14, s5, v14\nv_lshl_add_u32 v13, v14, 4, v13\ns_lshl_b32 s5, s{S_WV}, 8\ns_add_u32 s5, s5, {MXC}\nv_lshl_add_u32 v13, v13, 2, s5")
    e(f"s_lshl_b32 s5, s{S_WV}, 6\ns_and_b32 s5, s5, 128\ns_add_u32 s5, s5, {MXC}\nv_add_u32 v{VMX}, s5, v{VMX}")
    e(f"s_mul_i32 s5, s{S_CG}, 6144\ns_lshl_b32 s6, s59, 5\ns_add_u32 s5, s5, s6\ns_add_u32 s5, s5, s51\ns_add_u32 s4, s5, {WS_HC}\ns_add_u32 s3, s5, {WS_HT}")
    e(f"s_lshl_b32 s6, s{S_CG}, 1\ns_and_b32 s7, s{S_WV}, 1\ns_add_u32 s6, s6, s7\ns_lshl_b32 s6, s6, 14\ns_lshl_b32 s7, s{S_WS}, 8\ns_add_u32 s6, s6, s7\ns_add_u32 s7, s6, {WS_ST}")
    alul = e.lines; e.lines = sv
    if alupre: e.lines += alul
    tm.stamp(1)
    rd = f"s_waitcnt vmcnt(0)\nv_readfirstlane_b32 s5, v{VF}\ns_nop 1\ns_cmp_ge_u32 s5, 0x220\ns_cbranch_scc1 F2_go"
    if pqt:
        e(f"s_mov_b32 s58, 0\nv_lshlrev_b32 v246, 7, v2\nv_cmp_gt_u32 vcc, 8, v2\nv_mov_b32 v247, {BIG}\ns_add_u32 s27, s25, {WS_PQ}\ns_add_u32 s28, s26, {WS_PQ}\nv_add_u32 v248, 8192, v246\nv_cndmask_b32 v247, v247, v248, vcc")
        tch = f"""s_cmp_lt_u32 s5, 0x200
s_cbranch_scc1 F2_nt
s_cmp_ge_u32 s5, {0x200 + pqt}
s_cbranch_scc1 F2_nt
s_cmp_lg_u32 s58, 0
s_cbranch_scc1 F2_nt
s_mov_b32 s58, 1
buffer_load_dword v248, v246, {W}, s28 offen{sf}
buffer_load_dword v248, v247, {W}, s28 offen{sf}
buffer_load_dword v248, v246, {W}, s27 offen{sf}
buffer_load_dword v248, v247, {W}, s27 offen{sf}
s_branch F2_pl
F2_nt:
"""
    else: tch = ""
    e(f"{rd}\nF2_pl:\n{apoll}\n{rd}\n{tch}s_and_b32 s6, s5, 0xff\ns_cmp_ge_u32 s6, {thr}\ns_cbranch_scc1 F2_pl\ns_sleep {slp}\ns_branch F2_pl\nF2_go:")
    tm.stamp(2)
    for i in range(12):
        if xl_ and i == 4:
            for c3 in range(3):
                for tt in range(2): e(f"ds_read_b64 a[{XA+4*c3+2*tt}:{XA+4*c3+2*tt+1}], v249 offset:{9216 + tt*1536 + c3*32}")
            for k in range(5): e(f"ds_read_b128 a[{WB+4*k}:{WB+4*k+3}], v252 offset:{8192 + 16*k}")
            e(f"ds_read_b32 v1, v253 offset:{8192 + 320}")
        if xl_ and i == 8: e("s_waitcnt lgkmcnt(0)")
        if i % 4 == 0: e(f"s_add_u32 m0, s{S_RB}, {i*1024}\ns_add_u32 s6, s24, {WS_KV + i*1024}")
        e.vmem(f"buffer_load_dwordx4 v{VL16}, {W}, s6 offen" + (f" offset:{(i%4)*1024}" if i % 4 else "") + lf + " lds", ("kv", i))
    vq = pql[npe:] + (kdma(0) + kdma(1) + kdma(2))[:ndma]
    state = {"last": 0}
    def pace(force=False):
        if vq and (force or e.n - state["last"] >= vq[0][3]):
            if vq[0][2][0] == "dma" and not state.get("ok"): return
            if vq[0][2][0] == "dma" and not state.get("bar"):
                e("s_barrier"); state["bar"] = True
            pre, t, tag, _ = vq.pop(0)
            for p in pre: e(p)
            e.vmem(t, tag); state["last"] = e.n
    for t_ in wr2: e(t_)
    if not alupre: e.lines += alul
    for l in xl: e(l)
    for _ in range(npq):
        if vq[0][2][0] == "pq": pace(True)
    e("s_waitcnt lgkmcnt(0)\n" + gusel)
    for lq in (1, 2, 3): e(f"s_xor_b32 s5, s{S_WV}, {lq}\ns_mul_i32 s5, s5, 12288\ns_add_u32 s5, s5, {KVB}\nv_add_u32 v{8+lq-1}, s5, v5")
    order = list(range(6, 22)) + list(range(6)) if prog else list(range(22))
    def need(f):
        return 11 if f < 6 or not prog else (((f - 6)//2 + 1)*1520 - 1)//1024
    def ards(k):
        f = order[k]; rb = RAW + 8*(k % 6)
        e.wait_vm(lambda t: t == ("kv", need(f)))
        if k == 0: tm.stamp(3)
        for jj in range(2):
            ar, off = frags[f][jj]
            if ar is not None:
                e.ds(f"ds_read_b128 v[{rb+4*jj}:{rb+4*jj+3}], v{ar} offset:{off}", f)
    for k in range(bla): ards(k)
    for k in range(22):
        if k + bla < 22: ards(k + bla)
        pace()
        f = order[k]; rb = RAW + 8*(k % 6)
        e.wait_lg(lambda t: t == f)
        for jj in range(2):
            d = A + 4*f + 2*jj
            if frags[f][jj][0] is None: e(f"v_mov_b32 v{d}, 0\nv_mov_b32 v{d+1}, 0")
            else: e(f"v_cvt_pk_bf16_f32 v{d}, v{rb+4*jj}, v{rb+4*jj+1}\nv_cvt_pk_bf16_f32 v{d+1}, v{rb+4*jj+2}, v{rb+4*jj+3}")
    tm.stamp(4)
    state['ok'] = True
    q = Queue(e, window=10)
    def pqf(t, tile):
        r = PQ + 36*(t >> 1) + 18*(t & 1) + 2*tile
        return f"a[{r}:{r+3}]"
    def force(ops):
        for o in ops:
            if o.pos is None: q.drain_until(o)
    eps = hex(f2u(1e-6))
    rdops = {}; rduse = {0: [], 1: []}; ocv = {}; guse = {0: [], 1: []}
    NS = 4
    ringfree = [[] for _ in range(NS)]; mixfree = [None]*4; mixi = [0]; cnt = [0]
    def den_items(t):
        L = []
        for k, (c, T0, f) in enumerate(zf):
            def it(k=k, c=c, T0=T0, f=f):
                if k == 0:
                    while any(v[2] == ("pq", t) for v in vq): pace(True)
                    e.wait_vm(lambda x: x == ("pq", t))
                    force(rduse[t & 1]); rduse[t & 1] = []
                d = RD + 8*(t & 1) + 4*c
                o = e.op(Op(f"v_mfma_f32_16x16x32_bf16 v[{d}:{d+3}], v[{A+4*f}:{A+4*f+3}], {pqf(t, T0)}, " + ("0" if k % 3 == 0 else f"v[{d}:{d+3}]")))
                if k % 3 == 2:
                    for r in range(4):
                        o1 = q.add(Op(f"v_add_f32 v{d+r}, {eps}, v{d+r}", deps=[(o, 9)]))
                        rdops[(t, 4*c + r)] = q.add(Op(f"v_rcp_f32 v{d+r}, v{d+r}", cost=2, deps=[(o1, 0)]))
            L.append(it)
        return L
    def num_items(t):
        L = []
        for j in range(9):
            hs = [h for h in (j - 1, j) if 0 <= h < 8]
            for k, h in enumerate(hs):
                def it(j=j, k=k, h=h, last=(k == len(hs) - 1)):
                    if k == 0:
                        cnt[0] += 1
                        force(ringfree[cnt[0] % NS])
                    slot = cnt[0] % NS; d = NR + 4*slot; a = A + 4*numf[(j, h)]
                    o = e.op(Op(f"v_mfma_f32_16x16x32_bf16 v[{d}:{d+3}], v[{a}:{a+3}], {pqf(t, h)}, " + ("0" if k == 0 else f"v[{d}:{d+3}]")))
                    if not last: return
                    R = RD + 8*(t & 1)
                    muls = []; mixcache = {}
                    for r in range(4):
                        th = sum(1 for g in range(4) if 4*g + r < 2*j)
                        if th == 0: src, dp_ = R + j, [(rdops[(t, j)], 1)]
                        elif th == 4: src, dp_ = R + j - 1, [(rdops[(t, j-1)], 1)]
                        else:
                            if th not in mixcache:
                                mi = mixi[0] % 4; mixi[0] += 1
                                dd = [(rdops[(t, j)], 1), (rdops[(t, j-1)], 1)] + [(x, 0) for x in (mixfree[mi] or [])]
                                s_ = 52 + 2*(th-1)
                                mo = q.add(Op(f"v_cndmask_b32 v{MIX+mi}, v{R+j}, v{R+j-1}, s[{s_}:{s_+1}]", deps=dd))
                                mixcache[th] = (mi, mo); mixfree[mi] = []
                            mi, mo = mixcache[th]
                            src, dp_ = MIX + mi, [(mo, 0)]
                        m = q.add(Op(f"v_mul_f32 v{d+r}, v{d+r}, v{src}", deps=[(o, 9)] + dp_))
                        if th not in (0, 4): mixfree[mixcache[th][0]].append(m)
                        muls.append(m)
                    rduse[t & 1] += muls
                    od = O + 18*(t & 1) + 2*j
                    c1 = q.add(Op(f"v_cvt_pk_bf16_f32 v{od}, v{d}, v{d+1}", deps=[(muls[0], 0), (muls[1], 0)]))
                    c2 = q.add(Op(f"v_cvt_pk_bf16_f32 v{od+1}, v{d+2}, v{d+3}", deps=[(muls[2], 0), (muls[3], 0)]))
                    ringfree[slot] = [c1, c2]; ocv[(t, j)] = [c1, c2]
                L.append(it)
        return L
    mlast = {}
    def gemm_items(t, cts):
        L = []
        prev = {}
        for ks in range(5):
            for ct in cts:
                def it(ks=ks, ct=ct):
                    need = ocv[(t, 2*ks)] + (ocv[(t, 2*ks + 1)] if ks < 4 else [])
                    force(need)
                    deps = [(o, 2) for o in need]
                    if ks == 4: deps.append((prev[ct], 6))
                    n = 4 if ks < 4 else 2
                    o_ = O + 18*(t & 1) + 4*ks
                    op = "v_mfma_f32_16x16x32_bf16" if ks < 4 else "v_mfma_f32_16x16x16_bf16"
                    if ct == 6:
                        d = f"a[{MN+4*t}:{MN+4*t+3}]"; a = WB + 4*ks
                    else:
                        keep = t < 2 and ct < 3
                        dr = ACC + 12*t + 4*ct if keep else GB + 24*(t & 1) + 4*ct
                        if ks == 0 and not keep: force(guse[t & 1])
                        d = f"v[{dr}:{dr+3}]"; a = WFR + 24*ks + n*ct
                    mo = e.op(Op(f"{op} {d}, a[{a}:{a+n-1}], v[{o_}:{o_+n-1}], " + ("0" if ks == 0 else d), deps=deps))
                    prev[ct] = mo
                    if ks < 4: return
                    if ct == 6: mlast[t] = mo
                    elif keep:
                        x = XA + 4*ct + 2*t
                        q.fill(2)
                        e(f"v_mfma_f32_16x16x16_bf16 {d}, v[{ID}:{ID+1}], a[{x}:{x+1}], {d}")
                    else:
                        lq = (t >> 1)*2 + ct//3
                        c1 = q.add(Op(f"v_cvt_pk_bf16_f32 v{dr}, v{dr}, v{dr+1}", deps=[(mo, 9)]))
                        c2 = q.add(Op(f"v_cvt_pk_bf16_f32 v{dr+1}, v{dr+2}, v{dr+3}", deps=[(c1, 0)]))
                        w_ = q.add(Op(lambda dr=dr, off=lq*3072 + ((t & 1)*3 + ct % 3)*512: e.ds(f"ds_write_b64 v3, v[{dr}:{dr+1}] offset:{off}", "xw"), deps=[(c2, 0)]))
                        guse[t & 1].append(w_)
                L.append(it)
        return L
    def run(a, b=(), fill=mfill):
        a = list(a); b = list(b); na_, nb_ = len(a), len(b); ia = ib = 0
        while ia < na_ or ib < nb_:
            if ib < nb_ and (ia >= na_ or ib*na_ <= ia*nb_*lead_): b[ib](); ib += 1
            else: a[ia](); ia += 1
            pace(); q.fill(fill)
    e("s_nop 1")
    if fine:
        run(den_items(2), fill=3)
        run(num_items(2)[:fine] + den_items(3) + num_items(2)[fine:], fill=4)
    else:
        run(den_items(2) + den_items(3), fill=3)
        run(num_items(2), fill=4)
    tm.stamp(5)
    allc = [0, 1, 2, 3, 4, 5, 6]
    run(gemm_items(2, allc), num_items(3)[:6] + den_items(0) + num_items(3)[6:])
    run(gemm_items(3, allc), num_items(0)[:6] + den_items(1) + num_items(0)[6:])
    run(gemm_items(0, allc), num_items(1))
    run(gemm_items(1, [6, 3, 4, 5]))
    while vq: pace(True)
    prev = None
    for t in range(4):
        prev = q.add(Op(f"v_accvgpr_read_b32 v{16 + (t > 0)}, a{MN+4*(3-t)}", deps=[(mlast[3-t], 9)] + ([(prev, 0)] if prev else [])))
        if t: prev = q.add(Op(f"v_cndmask_b32 v16, v16, v17, s[{58-2*t}:{59-2*t}]", deps=[(prev, 0)]))
    q.add(Op(lambda: e.ds(f"ds_write_b32 v13, v16", "mw"), deps=[(prev, 0)]))
    own = gemm_items(1, [0, 1, 2])
    run(own[:nbar])
    q.drain()
    tm.stamp(6)
    e("s_waitcnt lgkmcnt(0)\ns_barrier")
    IN = 40
    for l2 in (1, 2, 3):
        for i in range(3):
            r = IN + 12*(l2-1) + 4*i
            q.add(Op(f"ds_read2st64_b64 v[{r}:{r+3}], v{8+l2-1} offset0:{l2*6 + 2*i} offset1:{l2*6 + 2*i + 1}"))
    q.add(Op(f"ds_read2st64_b32 v[104:105], v{VMX} offset0:0 offset1:1")); q.add(Op(f"ds_read2st64_b32 v[106:107], v{VMX} offset0:2 offset1:3"))
    run(own[nbar:])
    q.drain()
    tm.stamp(7)
    e("v_mov_b32 v13, 0x3f80\nv_mov_b32 v14, 0x3f800000\nv_mov_b32 v15, 0x3f803f80\nv_mov_b32 v8, 0\nv_mov_b32 v9, 0\ns_nop 2")
    e("s_waitcnt lgkmcnt(0)")
    for lq in (1, 2, 3):
        for i in range(3):
            for k in range(4):
                r = IN + 12*(lq-1) + 4*i + k; d = ACC + 2*(4*i + k)
                e(f"v_dot2c_f32_bf16 v{d}, v{r}, v13\nv_dot2c_f32_bf16 v{d+1}, v{r}, v14")
    e("v_pk_add_f32 v[104:105], v[104:105], v[106:107]\nv_add_f32 v1, v1, v104\nv_add_f32 v1, v1, v105\nv_cvt_pk_bf16_f32 v1, v1, v1\nv_and_b32 v1, 0xffff0000, v1\nv_xor_b32 v1, 0x80000000, v1")
    H = 80; HC = 92; TL = 40
    for c3 in range(3):
        for tt in range(2):
            a = ACC + 12*tt + 4*c3
            e(f"v_cvt_pk_bf16_f32 v{H+4*c3+2*tt}, v{a}, v{a+1}\nv_cvt_pk_bf16_f32 v{H+4*c3+2*tt+1}, v{a+2}, v{a+3}")
    for c3 in range(3):
        e(f"v_permlane32_swap_b32 v{H+4*c3}, v{H+4*c3+2}\nv_permlane32_swap_b32 v{H+4*c3+1}, v{H+4*c3+3}")
    for c3 in range(3):
        e(f"buffer_store_dwordx4 v[{H+4*c3}:{H+4*c3+3}], v{VST}, {W}, s3 offen" + (f" offset:{1024*c3}" if c3 else "") + sf)
        for r in range(H + 4*c3, H + 4*c3 + 4): e(f"v_dot2c_f32_bf16 v8, v{r}, v15\nv_dot2c_f32_bf16 v9, v{r}, v{r}")
    for c3 in range(3):
        for k in range(4):
            r = H + 4*c3 + k; t = TL + 8*c3 + 2*k
            e(f"v_dot2_f32_bf16 v{t}, v{r}, v13, v1\nv_dot2_f32_bf16 v{t+1}, v{r}, v14, v1")
        if c3 == 0: e("v_mov_b32 v6, v8\nv_mov_b32 v7, v9")
        if c3 == 1: e("v_permlane16_swap_b32 v6, v8\nv_permlane16_swap_b32 v7, v9")
    e(f"v_pk_add_f32 v[6:7], v[6:7], v[8:9]\nbuffer_store_dwordx2 v[6:7], v{VSA}, {W}, s7 offen{sf}")
    for c3 in range(3):
        for k in range(4): e(f"v_cvt_pk_bf16_f32 v{HC+4*c3+k}, v{TL+8*c3+2*k}, v{TL+8*c3+2*k+1}")
        e(f"buffer_store_dwordx4 v[{HC+4*c3}:{HC+4*c3+3}], v{VST}, {W}, s4 offen" + (f" offset:{1024*c3}" if c3 else "") + sf)
    tm.stamp(8)
    e(f"s_lshl_b32 s59, s{S_WS}, 8\ns_add_u32 s59, s59, {WS_FA}\ns_branch K2_done")
    e("F2_idle:\ns_waitcnt vmcnt(0) lgkmcnt(0)\ns_barrier")
    e(alu)
    if prefetch and pf2:
        srd(e, 52, 12, 576*4608*2); srd(e, 56, 14, 576*4608*2)
        slice_of_xcd(e, 5, 2, C)
        e(f"s_mul_i32 s5, s5, 1152\ns_bfe_u32 s6, s2, 0x30003\ns_mul_i32 s6, s6, {72*9216}\ns_add_u32 s5, s5, s6")
        e(f"v_mul_u32_u24 v4, 911, v0\nv_lshrrev_b32 v4, 16, v4\nv_mul_u32_u24 v3, 72, v4\nv_sub_u32 v3, v0, v3\nv_mul_u32_u24 v3, 9216, v3")
        for k in range(0, len(pf2), 3):
            e(f"v_mov_b32 v12, {BIG}")
            for i, ln in enumerate(pf2[k:k+3]):
                e(f"v_cmp_eq_u32 vcc, {i}, v4\nv_add_u32 v13, {ln*128}, v3\ns_nop 0\nv_cndmask_b32 v12, v12, v13, vcc")
            e(f"buffer_load_dword v244, v12, s[52:55], s5 offen\nbuffer_load_dword v245, v12, s[56:59], s5 offen")
    if pfd:
        srd(e, 52, 40, 4608*576*2)
        slice_of_xcd(e, 5, 2, C)
        e(f"s_mul_i32 s5, s5, {576*1152}\ns_bfe_u32 s6, s2, 0x30003\ns_mul_i32 s6, s6, {72*1152}\ns_add_u32 s5, s5, s6\nv_mov_b32 v13, {BIG}")
        for i in range(3):
            e(f"v_add_u32 v3, {256*i}, v0\nv_lshlrev_b32 v12, 7, v3\nv_cmp_gt_u32 vcc, 648, v3\ns_nop 1\nv_cndmask_b32 v12, v13, v12, vcc\nbuffer_load_dword v244, v12, s[52:55], s5 offen")
    e(gusel)
    for st in range(3):
        for pre, t_, _, _ in kdma(st):
            for p in pre: e(p)
            e(t_)
    e("s_mov_b32 s59, -1\nK2_done:")
    F["nleft"] = 0; F["pre_stages"] = 3
```

```python
from sched import *
from layout import *
from tim import Tim
import struct, math
def f2u(x): return struct.unpack("<I", struct.pack("<f", x))[0]

def srd(e, d, b, nbytes, off=0):
    if off > 0:
        e(f"s_add_u32 s{d}, s{b}, {off}\ns_addc_u32 s{d+1}, s{b+1}, 0\ns_and_b32 s{d+1}, s{d+1}, 0xffff")
    elif off < 0:
        e(f"s_sub_u32 s{d}, s{b}, {-off}\ns_subb_u32 s{d+1}, s{b+1}, 0\ns_and_b32 s{d+1}, s{d+1}, 0xffff")
    else:
        e(f"s_mov_b32 s{d}, s{b}\ns_and_b32 s{d+1}, s{b+1}, 0xffff")
    e(f"s_mov_b32 s{d+2}, {nbytes}\ns_mov_b32 s{d+3}, 0x20000")

SLOT = 36864
STAMPS = [0, 135, -1, -2, 568, 648, 720, 792, 864, 900, 936, 971]
def gen_f3(C=2, budget=5, timing=False, store_flags=" sc1", lead=45, wdpf=True, roll=True, bud2=6, late0="n",
           f0=(646, 670), f1=(666, 718, 740), f2=(758, 780, 814, 834), gst=' sc0 sc1', gld=' sc0 sc1', old=' sc0 sc1', slack=2.25, nogs=False, vcost=1, ldpace=7, dsp=4, dtail=1, fused=None, hpre=166, slp=8, sig0=942, pp1=2, pp2=4, ordb=1, na=6, of=' sc1', ctouch=(20, 542, 700, 800), hd=7, p2plan='old', sig1=0, pol0=None, order0='PSPSPP', bud0=5, xrate=4, stat=100, dsp0=1, front=0, hsp=2, barpos=0, bfill=0, dyn=0, K1=8, tsl=0, tlb=(), mix=0):
    e = fused['e'] if fused else Em()
    tm = fused['tm3'] if fused else Tim(e, 3, timing)
    xf = ' sc0 sc1' if fused else ''
    if fused: store_flags = ' sc0 sc1'
    TRB = 4; V1 = 8; VB = 17; VE = 26; VP1 = 29; VS = 30
    VK1 = 34; VK2 = 35; VS2 = 36; VL16 = 37; VPF = 38; VZ = 39; VF = 40; V3 = 41; VONE = 42; T = 44
    TM = 208
    SAC = 224; S_W2 = 44
    ACC = 56; OLD = 120; GT = 184; GS = 200; GP = 208
    FR = 144; GO = 192; GP3 = 120; GPS = 112; HA = 240
    S_W = 8; S_WD = 12; S_HC = S_ST = S_PT = S_GX = S_FL = 16; S_XH = 20
    S_J = 28; S_I = 29; S_WV = 30; S_WB = 31; S_CP = 32; S_CS = 33; S_SO = 34; S_XO = 35
    S_PO = 36; S_PS = 37
    S_B0 = 38; S_B1 = 39; S_A0 = 21; S_A1 = 22; S_CNT = 49; S_GO = 50; S_XS = 51; S_SS = 52; S_PF = 53
    S_MK = 54
    S_OWN = 56; S_PAR = 57; S_SNG = 58; S_TMP = 59
    S_GW = 40; S_GR = 41; S_FW = 42; S_FR = 43
    if not fused: e("s_cmp_ge_u32 s2, 256\ns_cbranch_scc1 K3_end")
    else: e("s_mov_b32 s23, s59\ns_mov_b64 s[26:27], s[42:43]\ns_mov_b64 s[44:45], s[40:41]\ns_mov_b64 s[40:41], s[12:13]")
    if not fused: e("s_load_dwordx4 s[40:43], s[0:1], 32\ns_load_dwordx2 s[44:45], s[0:1], 48\ns_load_dwordx2 s[46:47], s[0:1], 72")
    if not fused: tm.start()
    ng = 16 // C; R = 32 // C
    lg = lambda x: int(math.log2(x))
    e(f"v_lshrrev_b32 v1, 6, v0\nv_and_b32 v2, 63, v0\ns_and_b32 s3, s2, 7\ns_lshr_b32 s4, s2, 3\nv_readfirstlane_b32 s{S_WV}, v1")
    e(f"s_and_b32 s5, s3, {ng-1}\ns_lshl_b32 s5, s5, {lg(C)}\ns_and_b32 s6, s4, {C-1}\ns_add_u32 s{S_J}, s5, s6")
    e(f"s_lshr_b32 s5, s3, {lg(ng)}\ns_lshl_b32 s5, s5, {lg(R)}\ns_lshr_b32 s6, s4, {lg(C)}\ns_add_u32 s{S_I}, s5, s6")
    e(f"v_lshlrev_b32 v{VL16}, 4, v2")
    e(f"v_bfe_u32 v3, v2, 2, 3\nv_and_b32 v{TM}, 3, v2\nv_lshlrev_b32 v{TM}, 4, v{TM}\nv_lshrrev_b32 v{TM+1}, 5, v2\nv_lshl_add_u32 v{TM+1}, v{TM+1}, 6, v{TM}")
    e(f"s_mul_i32 s{S_WB}, s{S_WV}, 9216")
    e(f"s_and_b32 s3, s{S_J}, 1\ns_mul_i32 s6, s{S_J}, 576\ns_lshl_b32 s7, s3, 6\ns_add_u32 s{S_CP}, s6, s7")
    e(f"s_and_b32 s4, s{S_WV}, 1\ns_mul_i32 s5, s4, {72*9216}\ns_add_u32 s{S_CP}, s{S_CP}, s5")
    e(f"v_mul_u32_u24 v1, 9216, v3\nv_add_u32 v{V1}, v1, v{TM+1}")
    for i in range(1, 9): e(f"v_add_u32 v{V1+i}, {8*i*9216 - (i%3)*1024}, v{V1}")
    e(f"s_lshl_b32 s5, s{S_I}, 2\ns_add_u32 s5, s5, s{S_WV}\ns_mul_i32 s{S_XO}, s5, 36864\ns_add_u32 s{S_XH}, s{S_XO}, {WS_HC}")
    e(f"v_lshrrev_b32 v1, 5, v2\nv_lshlrev_b32 v1, 8, v1\nv_bfe_u32 v{T}, v2, 2, 2\nv_lshl_add_u32 v1, v{T}, 6, v1")
    e(f"v_bfe_u32 v{T}, v2, 4, 1\nv_lshl_add_u32 v1, v{T}, 5, v1\nv_and_b32 v{T}, 3, v2\nv_lshl_add_u32 v{TRB}, v{T}, 3, v1")
    for i in range(1, 4): e(f"v_add_u32 v{TRB+i}, {i*SLOT}, v{TRB}")
    if not fused:
        e("s_waitcnt lgkmcnt(0)")
        e(f"s_cmp_lt_u32 s{S_WV}, 2\ns_cselect_b32 s40, s40, s42\ns_cselect_b32 s41, s41, s43")
    srd(e, S_W, 40, 576*4608*2)
    srd(e, S_HC, 46, WS_BYTES)

    NST = 27
    perm = fused['perm']
    ST1 = []
    for ch in order0: ST1.append(((0 if ch == "P" else "S"), sum(1 for x in ST1 if (x[0] == "S") == (ch == "S"))))
    ST1 += [(p, q_) for p in (1, 2, 3) for q_ in range(4)]
    plan = {"old": [("E", k) for k in range(6)] + [("B", g) for g in range(3)],
            "p1": [("E", 0), ("E", 1), ("E", 2), ("A", 0), ("A", 1), ("B", 0), ("B", 1), ("A", 2), ("B", 2)],
            "p2": [("E", 0), ("E", 1), ("E", 2), ("A", 0), ("B", 0), ("A", 1), ("B", 1), ("A", 2), ("B", 2)],
            "p3": [("E", 0), ("E", 1), ("E", 2), ("A", 0), ("A", 1), ("B", 0), ("A", 2), ("B", 1), ("B", 2)]}[p2plan]
    def dma_instrs(st, inbody=False):
        slot = perm[st % 4]
        L = []
        def grp(g, so, vs, sr):
            if so: L.append((so, False))
            L.append((f"s_add_u32 m0, s{S_WB}, {slot*SLOT + g*3072}", False))
            for k in range(3):
                L.append((f"buffer_load_dwordx4 v{vs[k]}, s[{sr}:{sr+3}], s{sreg} offen" + (f" offset:{k*1024}" if k else "") + " lds", True))
        sreg = S_SO
        if inbody and st < 20:
            sreg = {16: S_A0, 17: S_A1, 18: S_B0, 19: S_B1}[st]; vb = V1 if st < 18 else VB
            for g in range(3): grp(g, None, [vb+3*g, vb+3*g+1, vb+3*g+2], S_W if st < 18 else S_W2)
            L.append((f"s_add_u32 s{sreg}, s{sreg}, 128", False))
        elif st < 18:
            p, q = ST1[st]
            for g in range(3):
                if p == "S": grp(g, f"s_add_u32 s{S_SO}, s{S_CS}, {q*288*9216}" if g == 0 else None, [VB+3*g, VB+3*g+1, VB+3*g+2], S_W)
                else: grp(g, f"s_add_u32 s{S_SO}, s{S_CP}, {p*128 + q*144*9216}" if g == 0 else None, [V1+3*g, V1+3*g+1, V1+3*g+2], S_W)
        elif plan[st-18][0] == "E":
            k = plan[st-18][1]; b = S_OWN if k < 3 else S_PAR; o = (k % 3)*64*1152
            grp(0, f"s_add_u32 s{S_SO}, s{b}, {o}", [VE, VE+1, VE+2], S_WD)
            grp(1, f"s_add_u32 s{S_SO}, s{b}, {o + 8*1152}", [VE, VE+1, VE+2], S_WD)
            grp(2, f"s_add_u32 s{S_SO}, s{b}, {o + 384}", [VE, VP1, VS], S_WD)
        else:
            ty, ls = plan[st-18]
            bl = ((S_OWN, 3*64*1152), (S_PAR, 3*64*1152), (S_SNG, 0)) if ty == "B" else tuple((S_PAR, k*64*1152) for k in range(3))
            for g, (b, o) in enumerate(bl):
                grp(g, f"s_add_u32 s{S_SO}, s{b}, {o + 128*ls}", [VE, VP1, VS+1+ls], S_WD)
        return L
    def emit_list(L):
        n = 0; prev_m0 = False
        for t, tag in L:
            if tag:
                if prev_m0: e("s_nop 0"); n += 1
                e.vmem(t, tag); prev_m0 = False
            else:
                e(t); prev_m0 = "m0" in t
            n += 1
        return n
    def xload_instrs(s):
        L = []
        if s % 4 == 0: L.append((f"s_add_u32 s{S_XS}, s{S_XH}, {s*1024}", None))
        L.append((f"buffer_load_dwordx4 a[{4*s}:{4*s+3}], v{VL16}, s[{S_HC}:{S_HC+3}], s{S_XS} offen" + (f" offset:{(s%4)*1024}" if s % 4 else "") + xf, ("x", s)))
        return L
    if not fused:
        emit_list(xload_instrs(0))
        emit_list([(t, ("dma", 0) if d else None) for t, d in dma_instrs(0)])
        emit_list(xload_instrs(1)); emit_list(xload_instrs(2))
    else:
        e.vm = []; e.vm_done = 0; e.lg = []; e.lg_done = 0

    q = Queue(e, window=10)
    def emit_op(o, _orig=e.op):
        if callable(o.text):
            o.text(); o.pos = e.n - 1; return o
        return _orig(o)
    e.op = emit_op
    chl = [None]
    def chain(text, first_deps=()):
        prev = None
        for l in text.split("\n") if isinstance(text, str) else text:
            if isinstance(l, str):
                l = l.strip()
                if not l: continue
            deps = [(prev, 0)] if prev else list(first_deps) + ([(chl[0], 0)] if chl[0] and chl[0].pos is None else [])
            cost = 2 if isinstance(l, str) and re.match(r"v_(rcp|sqrt|exp|permlane)", l) else 1
            prev = q.add(Op(l, cost=cost, deps=deps))
        chl[0] = prev
        return prev
    e(f"s_lshl_b32 s{S_SS}, s5, 8\nv_and_b32 v{VZ}, 31, v2\nv_lshlrev_b32 v{VZ}, 3, v{VZ}\nv_lshrrev_b32 v1, 5, v2\nv_mul_u32_u24 v1, {6*16384}, v1\nv_add_u32 v{VZ}, v{VZ}, v1")
    srd(e, S_WD, 44, 4608*576*2 + 4096, -4096)
    e(f"s_xor_b32 s7, s3, 1\ns_lshl_b32 s7, s7, 9\ns_add_u32 s{S_CS}, s6, s7\ns_mul_i32 s4, s4, {144*9216}\ns_add_u32 s{S_CS}, s{S_CS}, s4")
    e(f"v_lshrrev_b32 v1, 2, v2\nv_mul_u32_u24 v{T}, 9216, v1\nv_add_u32 v{VB}, v{T}, v{TM}")
    for i in range(1, 9): e(f"v_add_u32 v{VB+i}, {16*i*9216 - (i%3)*1024}, v{VB}")
    e(f"s_mov_b64 s[{S_W2}:{S_W2+1}], s[{S_W}:{S_W+1}]\ns_mov_b32 s{S_W2+2}, s{S_W+2}\ns_mov_b32 s{S_W2+3}, 0x20000")
    e(f"s_lshl_b32 s4, s3, 6\ns_mul_i32 s5, s{S_WV}, {16*1152}\ns_add_u32 s5, s5, 4096\ns_add_u32 s{S_TMP}, s5, s4")
    e(f"v_mul_u32_u24 v{T}, 1152, v3\nv_add3_u32 v{VE}, v{T}, v{TM+1}, s{S_TMP}\nv_subrev_u32 v{VE+1}, {1024-128}, v{VE}\nv_subrev_u32 v{VE+2}, {2048-256}, v{VE}\nv_add_u32 v{VP1}, {8*1152-1024}, v{VE}")
    e(f"v_mul_u32_u24 v{T}, 1152, v1\nv_add_u32 v{T}, v{T}, v{TM}\ns_add_u32 s5, s5, s7")
    e(f"s_sub_u32 s7, s5, {2048+384}\nv_add_u32 v{VS}, s7, v{T}\ns_sub_u32 s7, s5, {2048+256}\nv_add_u32 v{VS+3}, s7, v{T}")
    e(f"s_sub_u32 s7, s{S_TMP}, {2048-384}\nv_add_u32 v{VS+1}, s7, v{T}\ns_sub_u32 s7, s{S_TMP}, {2048-320}\nv_add_u32 v{VS+2}, s7, v{T}")
    e(f"""s_lshr_b32 s5, s{S_J}, 1
s_mul_i32 s6, s5, {576*1152}
s_mul_i32 s7, s3, 576
s_add_u32 s6, s6, s7
s_mul_i32 s7, s3, {320*1152}
s_add_u32 s{S_OWN}, s6, s7
s_add_u32 s{S_PAR}, s6, {320*1152}
s_sub_u32 s{S_PAR}, s{S_PAR}, s7
s_lshl_b32 s7, s3, 1
s_xor_b32 s7, s7, s{S_WV}
s_sub_u32 s7, s7, s{S_WV}
s_add_u32 s7, s7, 16
s_mul_i32 s7, s7, {16*1152}
s_add_u32 s{S_SNG}, s6, s7""")
    e(f"""s_mul_i32 s5, s5, {ACT_BYTES}
s_add_u32 s5, s5, s{S_XO}
s_add_u32 s5, s5, {WS_PART}
s_mul_i32 s6, s3, {18*1024 if fused else 20*1024}
s_add_u32 s{S_PO}, s5, s6
s_lshl_b32 s6, s3, 11
s_add_u32 s6, s6, {16*1024}
s_add_u32 s{S_PS}, s5, s6""")
    e(f"""s_lshl_b32 s5, s{S_I}, 4
s_add_u32 s5, s5, s{S_J}
s_lshl_b32 s5, s5, 2
s_add_u32 s5, s5, s{S_WV}
s_xor_b32 s6, s5, 4
s_mul_i32 s{S_GW}, s5, 18432
s_mul_i32 s{S_GR}, s6, 18432
s_lshl_b32 s{S_FW}, s5, 6
s_lshl_b32 s{S_FR}, s6, 6
s_add_u32 s{S_GW}, s{S_GW}, {WS_GX}
s_add_u32 s{S_GR}, s{S_GR}, {WS_GX}
s_add_u32 s{S_FW}, s{S_FW}, {WS_FL}
s_add_u32 s{S_FR}, s{S_FR}, {WS_FL}
s_mov_b32 s{S_GO}, s{S_GW}
s_add_u32 s{S_A0}, s{S_CP}, {128 + 288*9216}
s_add_u32 s{S_A1}, s{S_CP}, {128 + 432*9216}
s_add_u32 s{S_B0}, s{S_CP}, 256
s_add_u32 s{S_B1}, s{S_CP}, {256 + 144*9216}
s_mov_b32 s{S_CNT}, 0""")
    if wdpf:
        e(f"s_mul_i32 s5, s{S_WV}, 42\nv_add_u32 v1, s5, v2\nv_lshlrev_b32 v1, 7, v1\nv_cmp_gt_u32 s[54:55], 14, v2\nv_mov_b32 v{VPF}, 0x40000000")
        e(f"s_mul_i32 s5, s{S_I}, 18\ns_mul_i32 s6, s{S_J}, 288\ns_add_u32 s5, s5, s6\ns_mul_i32 s{S_PF}, s5, 1152\ns_add_u32 s{S_PF}, s{S_PF}, 4096\nv_cndmask_b32 v{VPF}, v{VPF}, v1, s[54:55]")

    c = 0.7978845608028654; l2e = 1.4426950408889634
    k1 = -2*c*l2e; k2 = k1*0.044715
    M = []
    for st, (p, qq) in enumerate(ST1):
        if p == "S":
            for s in range(18):
                ks = 18*qq + s
                for mat in range(2):
                    o = (mat*18 + s)*1024
                    M.append(dict(acc=f"v{SAC + 16*mat}", dst=None, b=f"a[{4*ks}:{4*ks+3}]", first=(ks == 0), last=(ks == 35), st=st, rd=(o, o + 512), xs=ks, unit=8, mat=mat, ph=1))
            continue
        for s in range(9):
            ks = 9*qq + s
            for uu in range(2):
                for mat in range(2):
                    o = (mat*18 + 2*s)*1024 + uu*512
                    M.append(dict(acc=f"v{ACC + 32*uu + 16*mat}", dst=f"v{OLD + 32*uu + 16*mat}" if ks == 35 else None, b=f"a[{4*ks}:{4*ks+3}]",
                                  first=(ks == 0), last=(ks == 35), st=st, rd=(o, o + 1024), xs=ks if p == 0 else None, unit=2*p+uu, mat=mat, ph=1))
        if qq == 3:
            t = M[-8:]; M[-8:] = [t[0], t[1], t[4], t[5], t[2], t[3], t[6], t[7]]
    if mix:
        assert order0[:3] == "PSP"
        Pm = M[0:36] + M[72:108]; Sm = M[36:72]; new = []; si = 0
        for ks in range(18):
            tgt = min(18, ks + 1 + (0 if ks < 9 else (ks - 8)//2))
            new += Pm[4*ks:4*ks+4] if ks < 9 else []
            while si < tgt: new += Sm[2*si:2*si+2]; si += 1
            new += Pm[4*ks:4*ks+4] if ks >= 9 else []
        assert len(new) == 108 and all(d["st"] != 1 for d in new[96:]) and all(d["st"] != 0 for d in new[60:]) and all(d["st"] != 2 for d in new[:36])
        M[0:108] = new
    tacc = {0: "a0", 1: "a16", 6: "a32", 2: "a48", 3: "a64", 7: "a80", 4: "a96", 5: f"v{ACC+32}", 8: f"v{ACC+48}"}
    def eoff(t):
        if t == 8: return (8*1024, 8*1024 + 512)
        cp, uu = t >> 1, t & 1
        return ((cp*1024 + uu*512, (3 + cp)*1024 + uu*512) if cp < 3 else (6*1024 + uu*512, 7*1024 + uu*512))
    lateks = [(0, w, f"v[{GT+4*w}:{GT+4*w+3}]", ("cv", 12 + w)) for w in range(4)] + [(2, w, f"v[{GS+4*w}:{GS+4*w+3}]", ("cv", 16 + w)) for w in range(2)] + \
             [(1, w, f"a[{GP3+4*w}:{GP3+4*w+3}]", ("gp", 12 + w)) for w in range(4)] + [(2, 2 + w, f"a[{GPS+4*w}:{GPS+4*w+3}]", ("gp", 16 + w)) for w in range(2)]
    parks = [(k, w, f"v[{GP+16*k+4*w}:{GP+16*k+4*w+3}]", ("gp", 4*k + w)) for k in range(3) for w in range(4)]
    for si, (ty, k) in enumerate(plan):
        if ty == "E":
            for w in range(4):
                g = (f"a[{GO+16*k+4*w}:{GO+16*k+4*w+3}]", ("go", 4*k + w)) if k < 3 else (f"v[{GP+16*(k-3)+4*w}:{GP+16*(k-3)+4*w+3}]", ("gp", 4*(k-3) + w))
                for t in range(9):
                    o = eoff(t)
                    M.append(dict(acc=tacc[t], dst=None, b=g[0], gsrc=g[1], first=(k == 0 and w == 0), last=False, st=18+si, rd=(w*9216 + o[0], w*9216 + o[1]), xs=None, tile=t, ph=2))
            continue
        ls = k
        tiles = [2*ls, 2*ls + 1, 6 + ls]
        if ty == "A": order = [(t, k_) for k_ in range(12) for t in tiles]
        elif ls == 0 and late0 == "own": order = [(t, k_) for k_ in range(6) for t in tiles] + [(t, k_) for t in tiles for k_ in range(6, 12)]
        else: order = [(t, k_) for t in tiles for k_ in range(12)]
        for t, k_ in order:
            gi, w, b, src = (lateks if ty == "B" else parks)[k_]
            base = w*9216 + gi*3072
            rd = (base + (t & 1)*512, base + 1024 + (t & 1)*512) if t < 6 else (base + 2048, base + 2048 + 512)
            M.append(dict(acc=tacc[t], dst=None, b=b, gsrc=src, first=False, last=(ty == "B" and k_ == 11), st=18+si, rd=rd, xs=None, tile=t, ph=2))
    NM = len(M); assert NM == 972
    LA = 8
    def rng(r, n=16):
        return f"{r[0]}[{int(r[1:])}:{int(r[1:])+n-1}]"

    gdone = {}; tstate = {"last": [None, None]}; pairctr = [0]
    oldbusy = {}
    memq = []
    def add_gelu(unit, gacc, uacc, mg, mu, inbody):
        gb = GS if unit == 8 else GT + 8*(unit & 1)
        for k in range(8):
            ts = pairctr[0] % 2; pairctr[0] += 1
            ta, tb = T + 2*ts, T + 2*ts + 1
            ga, gb_, ua, ub = gacc + 2*k, gacc + 2*k + 1, uacc + 2*k, uacc + 2*k + 1
            prev = tstate["last"][ts]
            d0 = [(mg, 13)] + ([(prev, 0)] if prev else [])
            sa = q.add(Op(f"v_mul_f32 v{ta}, v{ga}, v{ga}", deps=d0))
            sb = q.add(Op(f"v_mul_f32 v{tb}, v{gb_}, v{gb_}", deps=d0))
            fa = q.add(Op(f"v_fma_f32 v{ta}, v{ta}, v{VK2}, v{VK1}", deps=[(sa, 0)]))
            fb = q.add(Op(f"v_fma_f32 v{tb}, v{tb}, v{VK2}, v{VK1}", deps=[(sb, 0)]))
            aa = q.add(Op(f"v_mul_f32 v{ta}, v{ga}, v{ta}", deps=[(fa, 0)]))
            ab = q.add(Op(f"v_mul_f32 v{tb}, v{gb_}, v{tb}", deps=[(fb, 0)]))
            ea = q.add(Op(f"v_exp_f32 v{ta}, v{ta}", cost=2, deps=[(aa, 0)]))
            pa = q.add(Op(f"v_mul_f32 v{ua}, v{ga}, v{ua}", deps=[(mg, 13), (mu, 13)]))
            eb = q.add(Op(f"v_exp_f32 v{tb}, v{tb}", cost=2, deps=[(ab, 0)]))
            pb = q.add(Op(f"v_mul_f32 v{ub}, v{gb_}, v{ub}", deps=[(mg, 13), (mu, 13)]))
            da = q.add(Op(f"v_fma_f32 v{ta}, v{ta}, v{VS2}, v{VS2}", deps=[(ea, 1)]))
            db = q.add(Op(f"v_fma_f32 v{tb}, v{tb}, v{VS2}, v{VS2}", deps=[(eb, 1)]))
            ra = q.add(Op(f"v_rcp_f32 v{ta}, v{ta}", cost=2, deps=[(da, 0)]))
            rb = q.add(Op(f"v_rcp_f32 v{tb}, v{tb}", cost=2, deps=[(db, 0)]))
            ya = q.add(Op(f"v_mul_f32 v{ta}, v{ua}, v{ta}", deps=[(ra, 1), (pa, 0)]))
            yb = q.add(Op(f"v_mul_f32 v{tb}, v{ub}, v{tb}", deps=[(rb, 1), (pb, 0)]))
            cv = q.add(Op(f"v_cvt_pk_bf16_f32 v{gb + k}, v{ta}, v{tb}", deps=[(ya, 0), (yb, 0)]))
            tstate["last"][ts] = cv
            fi = 2*unit + k//4
            gdone.setdefault(fi, []).append(cv)
            oldbusy.setdefault(f"v{gacc}", []).append(cv); oldbusy.setdefault(f"v{uacc}", []).append(cv)
            if k % 4 == 3:
                r = gb + k - 3
                L = []
                if unit == 8 and k == 3: L.append((f"s_add_u32 s{S_TMP}, s{S_GW}, 16384", None))
                off = (fi % 4)*1024
                L.append((f"buffer_store_dwordx4 v[{r}:{r+3}], v{VL16}, s[{S_GX}:{S_GX+3}], s{S_TMP if unit == 8 else S_GO} offen" + (f" offset:{off}" if off else "") + gst, ("gs", fi)))
                if nogs and unit < 6: L = [("s_nop 0", None)]
                memq.append(dict(deps=list(gdone[fi]), L=L))
    outn = [0]
    VPS = 48; VLZ = 49; VRH = 50; VRO = 53; VRA = 3
    outbusy = [[], [], [], []]
    def add_out(t, acc, mo):
        def cv(i, deps): return q.add(Op(f"v_cvt_pk_bf16_f32 v{r+i}, v{r+2*i}, v{r+2*i+1}", deps=deps))
        prev = None; cvs = []
        if acc[0] == "a":
            bi = outn[0] % 3; outn[0] += 1
            assert all(x.get("done") for x in outbusy[bi])
            r = OLD + 16*bi; a = int(acc[1:])
            for i in range(8):
                r0 = q.add(Op(f"v_accvgpr_read_b32 v{r+2*i}, a{a+2*i}", deps=[(mo, 13)]))
                r1 = q.add(Op(f"v_accvgpr_read_b32 v{r+2*i+1}, a{a+2*i+1}", deps=[(mo, 13)]))
                prev = cv(i, [(r0, 0), (r1, 0)] + ([(prev, 0)] if prev else [])); cvs.append(prev)
        else:
            bi = None; r = int(acc[1:])
            for i in range(8):
                prev = cv(i, [(mo, 13)] + ([(prev, 0)] if prev else [])); cvs.append(prev)
        new = []
        for h in range(2):
            L = []
            if fused:
                g_, fi_ = (t - 6, 4 + h) if t >= 6 else (t >> 1, 2*(t & 1) + h)
                if fi_ == 0: L.append((f"s_add_u32 s{S_TMP}, s{S_PO}, {g_*6144}", None))
                L.append((f"buffer_store_dwordx4 v[{r+4*h}:{r+4*h+3}], v{VPS}, s[{S_PT}:{S_PT+3}], s{S_TMP} offen" + (f" offset:{fi_*128}" if fi_ else "") + store_flags, ("store", g_)))
                x = dict(deps=[cvs[4*h+3]], L=L); memq.append(x); new.append(x)
                continue
            so = S_PS if t == 8 else S_TMP
            if t != 8 and h == 0: L.append((f"s_add_u32 s{S_TMP}, s{S_PO}, {t*2048}", None))
            L.append((f"buffer_store_dwordx4 v[{r+4*h}:{r+4*h+3}], v{VL16}, s[{S_PT}:{S_PT+3}], s{so} offen" + (f" offset:1024" if h else "") + store_flags, ("store", t - 6 if t >= 6 else t >> 1)))
            x = dict(deps=[cvs[4*h+3]], L=L); memq.append(x); new.append(x)
        if bi is not None: outbusy[bi] = new
    def pop_mem():
        y = memq.pop(0); y["done"] = True
        return emit_list(y["L"])
    def mem_ready():
        return memq and all(d.pos is not None for d in memq[0]["deps"])
    def reads(m):
        d = M[m]; fr = FR + 4*(m % 12); vb = TRB + perm[d["st"] % 4]
        e.ds(f"ds_read_b64_tr_b16 a[{fr}:{fr+1}], v{vb} offset:{d['rd'][0]}", m)
        e.ds(f"ds_read_b64_tr_b16 a[{fr+2}:{fr+3}], v{vb} offset:{d['rd'][1]}", m)

    early = []
    for s_ in range(36): early.append((min(min(m for m, d in enumerate(M) if d["xs"] == s_), xrate*s_), xload_instrs(s_)))
    for g in range(6):
        early.append((stat + g, [(f"s_add_u32 s{S_TMP}, s{S_SS}, {WS_ST + g*16384}", None),
                                (f"buffer_load_dwordx2 v[{TM+2+2*g}:{TM+3+2*g}], v{VZ}, s[{S_ST}:{S_ST+3}], s{S_TMP} offen" + xf, "st")]))
    early.sort(key=lambda x: x[0])
    def emit_early():
        return emit_list(early.pop(0)[1])
    def stats_ops():
        b = TM + 2
        inv = hex(f2u(1.0/576))
        txt = [lambda: e.wait_vm(lambda t: t == "st")] + f"""v_add_f32 v{b}, v{b}, v{b+2}
v_add_f32 v{b+1}, v{b+1}, v{b+3}
v_add_f32 v{b+4}, v{b+4}, v{b+6}
v_add_f32 v{b+5}, v{b+5}, v{b+7}
v_add_f32 v{b+8}, v{b+8}, v{b+10}
v_add_f32 v{b+9}, v{b+9}, v{b+11}
v_add_f32 v{b}, v{b}, v{b+4}
v_add_f32 v{b+1}, v{b+1}, v{b+5}
v_add_f32 v{b}, v{b}, v{b+8}
v_add_f32 v{b+1}, v{b+1}, v{b+9}
v_mov_b32 v{b+2}, v{b}
v_mov_b32 v{b+3}, v{b+1}
v_mov_b32 v{VONE}, 1
v_mov_b32 v{VONE+1}, 2
v_permlane32_swap_b32 v{b}, v{b+2}
v_permlane32_swap_b32 v{b+1}, v{b+3}
v_mov_b32 v{VZ}, 0
v_add_f32 v{b}, v{b}, v{b+2}
v_add_f32 v{b+1}, v{b+1}, v{b+3}
v_mul_f32 v{b}, {inv}, v{b}
v_mul_f32 v{b+1}, {inv}, v{b+1}
v_fma_f32 v{b+1}, -v{b}, v{b}, v{b+1}
v_max_f32 v{b+1}, 0, v{b+1}
v_cvt_pk_bf16_f32 v{b+1}, v{b+1}, v{b+1}
v_and_b32 v{b+1}, 0xffff0000, v{b+1}
v_add_f32 v{b+1}, {hex(f2u(1e-5))}, v{b+1}
v_cvt_pk_bf16_f32 v{b+1}, v{b+1}, v{b+1}
v_and_b32 v{b+1}, 0xffff0000, v{b+1}
v_sqrt_f32 v{b+1}, v{b+1}
s_nop 0
v_cvt_pk_bf16_f32 v{b+1}, v{b+1}, v{b+1}
v_and_b32 v{b+1}, 0xffff0000, v{b+1}
v_rcp_f32 v{b}, v{b+1}
v_mul_f32 v{VS2}, v{b+1}, v{b+1}
v_mul_f32 v{VK1}, {hex(f2u(k1))}, v{b}
v_mul_f32 v{b+1}, v{b}, v{b}
v_mul_f32 v{b}, {hex(f2u(k2))}, v{b}
v_mul_f32 v{VK2}, v{b}, v{b+1}""".split("\n")
        chain(txt)
    spins = []; tails = []
    def poll_check(val, name):
        e.wait_vm(lambda t: t == "poll" + name)
        e(f"v_readfirstlane_b32 s{S_TMP}, v{VF}\ns_nop 1\ns_cmp_ge_u32 s{S_TMP}, {val}\ns_cbranch_scc0 K3_spin{name}\nK3_ret{name}:")
        spins.append((name, val))
    def gload(kind, fi):
        L = []
        base = S_GW if kind == "go" else S_GR
        if fi % 4 == 0: L.append((f"s_add_u32 s{S_XS}, s{base}, {fi*1024}", None))
        if kind == "go": dst = f"a[{GO+4*fi}:{GO+4*fi+3}]"
        elif fi < 12: dst = f"v[{GP+4*fi}:{GP+4*fi+3}]"
        elif fi < 16: dst = f"a[{GP3+4*(fi-12)}:{GP3+4*(fi-12)+3}]"
        else: dst = f"a[{GPS+4*(fi-16)}:{GPS+4*(fi-16)+3}]"
        L.append((f"buffer_load_dwordx4 {dst}, v{VL16}, s[{S_GX}:{S_GX+3}], s{S_XS} offen" + (f" offset:{(fi%4)*1024}" if fi % 4 else "") + (old if kind == "go" else gld), (kind, fi)))
        return L
    ldq = []
    ftxt = f"buffer_atomic_add v{VONE}, v{VLZ}, s[{S_FL}:{S_FL+3}], s{S_FW} offen sc1"
    gpoll = f"buffer_atomic_add v{VF}, v{VLZ}, s[{S_FL}:{S_FL+3}], s{S_FR} offen sc0 sc1"
    def flag_store(): e.vmem(ftxt, "flag")
    def poll_issue(name):
        e(f"v_mov_b32 v{VF}, 0"); e.vmem(gpoll, "poll" + name); return 3
    actions = {}
    def act1():
        e.wait_vm(lambda t: t and t[0] == "gs" and t[1] < 12); flag_store(); return 3
    actions[f0[0]] = lambda: poll_issue("Z")
    actions[f0[1]] = lambda: poll_check(1, "Z") or ldq.extend(gload("gp", fi) for fi in (0, 1, 2, 3, 16, 17)) or 5
    actions[f1[0]] = act1
    actions[f1[1]] = lambda: poll_issue("A")
    actions[f1[2]] = lambda: poll_check(2, "A") or ldq.extend(gload("gp", fi) for fi in range(4, 12)) or 5
    def act2pre():
        q.drain()
        while memq: pop_mem()
        return 1
    def act2():
        e.wait_vm(lambda t: t and t[0] == "gs"); flag_store(); return 2
    actions[f2[0]] = act2pre
    actions[f2[1]] = act2
    actions[f2[2]] = lambda: poll_issue("B")
    actions[f2[3]] = lambda: poll_check(3, "B") or ldq.extend(gload("gp", fi) for fi in range(12, 16)) or 5

    def apoll(sreg, val=0):
        return f"v_mov_b32 v{VF}, {val}\nbuffer_atomic_add v{VF}, v{VLZ}, s[{S_FL}:{S_FL+3}], s{sreg} offen sc0 sc1"
    if not fused:
        emit_early(); emit_early(); emit_early()
        e.wait_vm(lambda t: t == ("dma", 0))
        e("s_barrier")
        for m in range(LA): reads(m)
        emit_early(); emit_early()
    else:
        e(f"s_lshl_b32 s5, s{S_I}, 2\ns_add_u32 s5, s5, s{S_WV}\ns_lshl_b32 s24, s5, 8\ns_add_u32 s24, s24, {WS_FA}")
        e(f"v_cmp_eq_u32 vcc, 0, v2\nv_mov_b32 v{VONE}, 1\nv_mov_b32 v1, 0x40000000\nv_cndmask_b32_e64 v{VLZ}, v1, 0, vcc")
        tm.stamp(-10)
        e(f"s_waitcnt vmcnt({fused['nleft']})")
        tm.stamp("A0")
        e(f"s_cmp_lt_i32 s23, 0\ns_cbranch_scc1 K3_ns\nbuffer_atomic_add v{VONE}, v{VLZ}, s[{S_FL}:{S_FL+3}], s23 offen sc1\nK3_ns:")
        e("s_barrier")
        ps = fused.get("pre_stages", 2); nrem = 9*(4 - ps)
        LL = [(t, ("dma", st) if d else None) for st in (perm.index(3),) for t, d in dma_instrs(st)]
        k_ = [i for i, (t, d) in enumerate(LL) if d][na-1] + 1 if na else 0
        emit_list(LL[:k_])
        for m in range(LA): reads(m)
        e(f"""s_and_b32 s6, s{S_J}, 1
s_lshl_b32 s25, s5, 1
s_add_u32 s25, s25, s6
s_lshl_b32 s25, s25, 8
s_add_u32 s25, s25, {WS_FB}
s_lshr_b32 s7, s{S_J}, 1
s_mul_i32 s48, s7, 768
s_lshl_b32 s23, 1, s7
s_mul_i32 s4, s6, {18*1024}
s_add_u32 s48, s48, s4
s_add_u32 s48, s48, s{S_XO}
s_lshl_b32 s7, s7, 2
v_cmp_lt_u32 vcc, 31, v2
v_cmp_gt_u32 s[54:55], 48, v2
v_bfe_u32 v{T}, v2, 2, 3
v_mul_u32_u24 v{VPS}, 768, v{T}
v_lshrrev_b32 v{T}, 5, v2
v_lshl_add_u32 v{VPS}, v{T}, 6, v{VPS}
v_and_b32 v{T}, 3, v2
v_lshl_add_u32 v{VPS}, v{T}, 4, v{VPS}
v_lshrrev_b32 v{T}, 3, v2
v_bfe_u32 v{T+1}, v2, 2, 2
v_cndmask_b32_e64 v{T}, v{T}, v{T+1}, vcc
v_bfe_u32 v{T+1}, v2, 1, 2
v_bfe_u32 v{T+2}, v2, 1, 1
v_add_u32 v{T+2}, 4, v{T+2}
v_cndmask_b32_e64 v{T+1}, v{T+1}, v{T+2}, vcc
v_and_b32 v{T+2}, 1, v2
v_lshlrev_b32 v{VRA}, 4, v{T}
v_lshl_add_u32 v{VRA}, v{T+2}, 6, v{VRA}
v_lshl_add_u32 v{VRA}, v{T+1}, 7, v{VRA}
v_cndmask_b32 v{VRA}, v1, v{VRA}, s[54:55]
v_add_u32 v{T}, s7, v{T}
v_mul_u32_u24 v{T+3}, 1152, v{T}
v_lshl_add_u32 v{T+3}, v{T+2}, 4, v{T+3}
v_lshl_add_u32 v{T}, v{T+2}, 5, v{T}
v_lshlrev_b32 v{T}, 4, v{T}
v_cndmask_b32 v{T}, v1, v{T}, s[54:55]
v_cndmask_b32 v{T+3}, v1, v{T+3}, s[54:55]
s_mul_i32 s7, s6, 20
v_add_u32 v{T+1}, s7, v{T+1}
s_mul_i32 s6, s6, -18
s_add_u32 s6, s6, 12
v_mov_b32 v1, s6""" + "".join(f"""
v_cndmask_b32_e64 v{T+2}, {4*g}, {('v1' if g == 2 else 8 + 2*g)}, vcc
v_add_u32 v{T+2}, v{T+2}, v{T+1}
v_lshl_add_u32 v{VRH+g}, v{T+2}, 10, v{T}
v_lshl_add_u32 v{VRO+g}, v{T+2}, 5, v{T+3}""" for g in range(3)))
        if tlb:
            e(f"v_min_u32 v{V3}, 7, v2\ns_mov_b32 s4, {ACT_BYTES}\nv_mul_lo_u32 v{V3}, v{V3}, s4\ns_add_u32 s4, s48, {WS_PART}\nv_add_u32 v{V3}, s4, v{V3}\nv_cmp_lt_u32 vcc, 7, v2\nv_mov_b32 v{T}, s{S_GR}\ns_add_u32 s100, s26, s{S_XO}\nv_cndmask_b32 v{V3}, v{V3}, v{T}, vcc\ns_addc_u32 s101, s27, 0")
            for m_ in tlb:
                actions[m_] = lambda: e.vmem(f"buffer_load_dword v1, v{V3}, s[{S_HC}:{S_HC+3}], 0 offen", "tl") and 2
                actions[m_ + 2] = lambda: e.vmem(f"global_load_dword v1, v{VZ}, s[100:101]", "tl") and 2
        if ctouch:
            e(f"s_getpc_b64 s[6:7]\nK3_pc:\ns_add_u32 s6, s6, K3_pdA-K3_pc\ns_addc_u32 s7, s7, 0\ns_lshr_b32 s4, s2, 3\ns_lshl_b32 s4, s4, 2\ns_add_u32 s4, s4, s{S_WV}\ns_lshl_b32 s4, s4, 8")
            e(f"v_and_b32 v2, 1, v2\nv_lshlrev_b32 v2, 7, v2\nv_add_u32 v2, s4, v2\nv_min_u32 v2, KB_last-K3_pdA, v2")
        tm.stamp("A1")
        e(apoll(24))
        emit_list(LL[k_:])
        rd = f"v_readfirstlane_b32 s5, v{VF}\ns_nop 1"
        e(f"s_waitcnt vmcnt({nrem-na})\n{rd}\ns_cmp_ge_u32 s5, 12\ns_cbranch_scc1 K3_pdA\nK3_plA:\n{apoll(24)}\ns_waitcnt vmcnt(0)\n{rd}")
        e(f"s_cmp_ge_u32 s5, 12\ns_cbranch_scc1 K3_pdA\ns_cmp_lg_u32 s5, 0\ns_cbranch_scc1 K3_plA\ns_sleep {slp}\ns_branch K3_plA\nK3_pdA:")
        tm.stamp(-11)
        e.vm = [("dma", perm.index(k//9)) for k in range(36)]; e.vm_done = 9*ps + na
        for _ in range(8): emit_early()
        for m_ in ctouch:
            actions[m_] = lambda: e.vmem(f"global_load_dword v1, v2, s[6:7]", "ct") and 2
        HR = OLD + 48
        def hl(k):
            if k == 0: e(f"s_add_u32 s{S_XS}, s{S_XO}, {WS_HT}")
            e.vmem(f"buffer_load_dwordx4 a[{HA+4*k}:{HA+4*k+3}], v{VRH+k}, s[{S_HC}:{S_HC+3}], s{S_XS} offen sc0 sc1", "h"); return 2
        for k in range(3): actions[hpre + hsp*k] = (lambda k=k: hl(k))
        PBR = [ACC, GP, OLD]
        sj = lambda j: [28, 29, 30, 32, 33, 38, 39, 21][j]
        def sjinit(j): e(f"s_add_u32 s{sj(j)}, s48, {WS_PART + j*ACT_BYTES}"); return 1
        for j in range(NPART): actions[896 + 2*j] = (lambda j=j: sjinit(j))
        actions[914] = lambda: e(f"v_add_u32 v{V1}, 6144, v{VRA}\nv_add_u32 v{V1+1}, 12288, v{VRA}") or 2
        actions[916] = lambda: e(f"v_mov_b32 v{V1+2}, 0x100") or 1
        vra = [VRA, V1, V1 + 1]
        def pload(k, j):
            r = PBR[k] + 4*j
            return [(f"buffer_load_dwordx4 v[{r}:{r+3}], v{vra[k]}, s[{S_HC}:{S_HC+3}], s{sj(j)} offen sc0 sc1", (k, j))]
        def sigB(g):
            assert sum(1 for t in e.vm if t == ("store", g)) == 6
            e.wait_vm(lambda t: t == ("store", g))
            e.vmem(f"buffer_atomic_add v{VONE if g == 0 else V1+2}, v{VLZ}, s[{S_FL}:{S_FL+3}], s25 offen sc1", "flag"); return 3
        def chk(g): return f"s_bfe_u32 s4, s5, {hex(8*g | 0x80000)}\ns_cmp_eq_u32 s4, 8"
        def pollB():
            e(f"v_mov_b32 v{VF}, 0"); e.vmem(f"buffer_atomic_add v{VF}, v{VLZ}, s[{S_FL}:{S_FL+3}], s25 offen sc0 sc1", "plb"); return 3
        def checkB(g):
            e.wait_vm(lambda t: t == "plb")
            e(f"{rd}\n{chk(g)}\ns_cbranch_scc0 K3_S{g}\nK3_R{g}:")
            tails.append(f"K3_S{g}:\n{apoll(25)}\ns_waitcnt vmcnt(0)\n{rd}\n{chk(g)}\ns_cbranch_scc0 K3_S{g}\ns_branch K3_R{g}")
            ldq.extend(pload(g, j) for j in range(NPART)); return 5
        if dyn:
            for k_ in list(actions):
                if 896 <= k_ <= 916: del actions[k_]
            actions[850] = lambda: e(f"v_mov_b32 v{V1}, s23\ns_add_u32 s48, s48, {WS_PART}") or 2
            actions[852] = lambda: e(f"v_lshlrev_b32 v{V1+1}, 8, v{V1}\nv_lshlrev_b32 v{VF}, 16, v{V1}") or 2
            def sigD():
                assert sum(1 for t in e.vm if t == ("store", 0)) == 6
                e.wait_vm(lambda t: t == ("store", 0))
                e.vmem(f"buffer_atomic_add v{V1}, v{VLZ}, s[{S_FL}:{S_FL+3}], s25 offen sc0 sc1", "s0"); return 3
            actions[sig0] = sigD
        elif sig0: actions[sig0] = lambda: sigB(0)
        if sig1: actions[sig1] = lambda: sigB(1)
        if pol0:
            actions[pol0[0]] = pollB; actions[pol0[1]] = lambda: checkB(0)
    lastm = {}
    e.wait_lg(lambda t: t <= 3)
    B0, B1, HD = 208, 640, hd
    st8 = dict(dmaq=[], dma_st=None, stats=False, lastld=-100, qempty=None)
    godone = {}
    def moves(p):
        prev = None
        for i in range(16):
            prev = q.add(Op(f"v_accvgpr_write_b32 a{GO+16*p+i}, v{GT+i}", deps=[(prev, 0)] if prev else []))
            godone.setdefault(4*p + i//4, []).append(prev)
        return prev
    def dma_due(m, mr, left, dmaq):
        if front and m >= front: return not dmaq[0][1] or mr % 2 == 1 or len(dmaq) >= left
        if (m < B0 and not dsp0) or dsp == 0: return mr % 2 == 1 or len(dmaq) >= left//2 + 1
        if len(dmaq) >= left: return True
        nd = sum(1 for _, isd in dmaq if isd)
        if not dmaq[0][1]:
            return nd == 0 or left <= (nd - 1)*dsp + dtail + 2
        return left <= (nd - 1)*dsp + dtail
    def gap(m, inbody, fillall=False):
        d = M[m]
        dmaq = st8["dmaq"]
        deps = []
        if d["xs"] is not None and m < B0:
            while not any(t == ("x", d["xs"]) for t in e.vm): emit_early()
            e.wait_vm(lambda t: t == ("x", d["xs"]))
        if d["ph"] == 2:
            kind, fi = d["gsrc"]
            if kind == "cv":
                for o in gdone[fi]:
                    if o.pos is None: q.drain_until(o)
                    deps.append((o, 2))
            elif kind == "gp":
                while not any(t == (kind, fi) for t in e.vm):
                    assert ldq, (m, kind, fi)
                    emit_list(ldq.pop(0))
                e.wait_vm(lambda t: t == (kind, fi))
        if d["dst"]:
            for o in oldbusy.get(d["dst"], []):
                if o.pos is None: q.drain_until(o)
            oldbusy[d["dst"]] = []
        fr = FR + 4*(m % 12)
        cs = "0" if d["first"] else rng(d["acc"])
        mo = e.op(Op(f"v_mfma_f32_32x32x16_bf16 {rng(d['dst'] or d['acc'])}, a[{fr}:{fr+3}], {d['b']}, {cs}", deps=deps))
        used = 0
        if timing and not fillall: tm.stamp(m) if fused else (tm.stamp(STAMPS.index(m)) if m in STAMPS else None)
        if d["last"]:
            if d["ph"] == 1:
                lastm[(d["unit"], d["mat"])] = mo
                if d["mat"] == 1:
                    a = int((d["dst"] or d["acc"])[1:])
                    pend_gelu.append((d["unit"], a - 16, a, lastm[(d["unit"], 0)], mo))
            else:
                add_out(d["tile"], d["acc"], mo)
        if not fillall:
            while pend_gelu: add_gelu(*pend_gelu.pop(0), inbody)
        mr = m + LA
        isbar = mr < NM and mr % 36 == 0
        early_bar = barpos and (mr % 144 != 72 or mr < 216 or mr > 648)
        if isbar:
            st = mr // 36
            assert not dmaq
            if not early_bar:
                if e.wait_vm(lambda t: t == ("dma", st) or (mix and st == 1 and t == ("dma", 2))): used += 1
                e("s_barrier"); used += 2
            else: isbar = False
            if 4 <= st + 2 < NST:
                dmaq.extend(dma_instrs(st + 2, inbody)); st8["dma_st"] = st + 2
        if mr < NM:
            reads(mr); used += 2
        if barpos == 2 and (mr + 2) % 36 == 0 and mr + 2 < NM and not dmaq:
            if e.wait_vm(lambda t: t == ("dma", (mr + 2)//36)): used += 1
        if barpos and (mr + 1) % 36 == 0 and mr + 1 < NM and ((mr + 1) % 144 != 72 or mr + 1 < 216 or mr + 1 > 648):
            while dmaq:
                t, isd = dmaq.pop(0)
                if isd: e.vmem(t, ("dma", st8["dma_st"]))
                else: e(t)
            if bfill: q.fill(bfill)
            if (m + 1) % 4 == 0: e.wait_lg(lambda t: t <= m + 4)
            e.wait_vm(lambda t: t == ("dma", (mr + 1)//36))
            e("s_barrier")
            if m in actions: actions[m]()
            return
        if not isbar and not fillall:
            early_dma = any(tag and tag[0] == "dma" for _, L in early for _, tag in L)
            left = 35 - mr % 36
            if m < B0 and not dsp0 and dmaq and not early_dma and not dmaq[0][1]:
                while dmaq and not dmaq[0][1]:
                    e(dmaq.pop(0)[0]); used += 1
                if early and early[0][0] - lead <= m: used += emit_early()
            elif early and (early[0][0] - lead <= m or (early_dma and dmaq)) and not (dmaq and not early_dma and len(dmaq) >= left - 2):
                used += emit_early()
            elif dmaq and not early_dma and dma_due(m, mr, left, dmaq) and not (m in actions and len(dmaq) < left):
                t, isd = dmaq.pop(0)
                if isd: e.vmem(t, ("dma", st8["dma_st"])); used += vcost
                else: e(t); used += 1
            elif m in actions:
                pass
            elif wdpf and B0 <= m < B1 and (m - B0) % 144 == 68:
                e.vmem(f"buffer_load_dword v1, v{VPF}, s[{S_WD}:{S_WD+3}], s{S_PF} offen", "pf")
                e(f"s_add_u32 s{S_PF}, s{S_PF}, {14*128}"); used += 1 + vcost
            elif front and m >= front and m < 864 and dmaq:
                pass
            elif mem_ready():
                used += pop_mem() + vcost - 1
            elif ldq and m - st8["lastld"] >= (ldpace if m < f2[3] else 2):
                used += emit_list(ldq.pop(0)) + vcost - 1; st8["lastld"] = m
        if m in actions and not fillall:
            used += actions[m]()
        if not st8["stats"] and sum(1 for t in e.vm if t == "st") == 6 and m >= stat:
            stats_ops(); st8["stats"] = True
        needwait = (m + 1) % 4 == 0 and m + 1 < NM
        bud = (bud2 if B1 <= m < f2[0] else (bud0 if m < B0 else budget)) - used - (1 if needwait else 0)
        if B0 <= m < B1:
            rem = sum(o.cost for o in q.q); gl = 144 - (m - B0) % 144
            if rem > slack*gl: bud += 1
        if fillall: bud += 1
        if bud > 0: q.fill(bud)
        if m > 650 and not q.q and st8["qempty"] is None: st8["qempty"] = m
        if needwait: e.wait_lg(lambda t: t <= m + 4)
    pend_gelu = []
    def endpair():
        q.drain()
        while memq: pop_mem()
        assert not st8["dmaq"]
    def head(m0, p, extra=""):
        if p >= 0:
            chain(f"s_add_u32 s{S_GO}, s{S_GO}, 4096\n" + extra)
            moves(p)
        for m in range(m0, m0 + HD): gap(m, True, fillall=True)
        q.drain()
    lastS = max(st for st, x in enumerate(ST1) if x[0] == "S")
    actions[36*(lastS - 1) - LA + 2] = lambda: chain([f"v_mov_b32 v{VB+i}, v{V1+i}" for i in range(9)]) and 0
    mb = B1 - 144
    def seed():
        e.vm = [("dma", 14)]*9 + [("dma", 15)]*9; e.vm_done = 0
        e.lg = [mb + k//2 for k in range(16)]; e.lg_done = 8
        st8["dmaq"].clear(); pend_gelu.clear()
    sv = (e.lines, e.vm, e.vm_done, e.lg, e.lg_done, q.q); e.lines = []; q.q = []
    ev = [f"v_mov_b32 v{VB+i}, v{VE+i}" for i in range(3)] + [f"v_add_u32 v{VB+3+i}, {8*1152}, v{VE+i}" for i in range(3)] + \
         [f"v_add_u32 v{VB+6+i}, 384, v{r_}" for i, r_ in enumerate((VE, VP1, VS))]
    for p, extra in ((0, ""), (1, f"s_mov_b32 s{S_B0}, s{S_OWN}\n" + ev[0] + f"\ns_add_u32 s{S_B1}, s{S_OWN}, {64*1152}\n" + "\n".join(ev[1:4]) +
                      f"\ns_mov_b64 s[{S_W2}:{S_W2+1}], s[{S_WD}:{S_WD+1}]\n" + "\n".join(ev[4:7]) + f"\ns_mov_b32 s{S_W2+2}, s{S_WD+2}\n" + "\n".join(ev[7:]))):
        e(f"K3_head{p}:")
        tm.stamp(-1-p)
        seed(); head(mb, p, extra)
        if p == 1: e(ftxt)
        e("s_branch K3_body")
    side_lines = e.lines
    e.lines, e.vm, e.vm_done, e.lg, e.lg_done, q.q = sv
    st8["dmaq"].clear(); pend_gelu.clear(); chl[0] = None
    for m in range(B0): gap(m, False)
    assert not early and not st8["dmaq"]
    e.wait_vm(lambda t: t and t[0] == "x")
    seed(); head(mb, -1)
    k_vm = len(e.vm)
    while memq: pop_mem()
    e.vm = e.vm[:k_vm]
    e(".p2align 3\nK3_body:")
    tstate["last"] = [None, None]
    actions[mb + 40] = lambda: e(f"s_add_u32 s{S_CNT}, s{S_CNT}, 1") or 1
    for m in range(mb + HD, B1): gap(m, True)
    endpair()
    e(f"s_cmp_eq_u32 s{S_CNT}, 1\ns_cbranch_scc1 K3_head0\ns_cmp_eq_u32 s{S_CNT}, 2\ns_cbranch_scc1 K3_head1")
    chain(f"s_add_u32 s{S_GO}, s{S_GO}, 4096")
    lastmv = moves(2)
    tstate["last"] = [lastmv, lastmv]
    for m in range(B1, NM): gap(m, False)
    while q.q or memq:
        if mem_ready(): pop_mem()
        else: q.drain_until(q.q[0])
    if fused:
        tm.stamp(-12)
        while ldq: emit_list(ldq.pop(0))
        if sig1: pollB()
        srd(e, S_W, 26, ACT_BYTES)
        e(f"v_mov_b32 v14, 0x3f80\nv_mov_b32 v15, 0x3f800000\ns_mov_b32 s54, 0xaaaaaaaa\ns_mov_b32 s55, 0xaaaaaaaa")
        for i in range(12): e(f"v_accvgpr_read_b32 v{HR+i}, a{HA+i}")
        def loads(k):
            for j in range(NPART): emit_list(pload(k, j))
        AC = 28
        def red(k, lds=False):
            H = HR + 4*k; O_ = 16 + 4*k
            for j in range(NPART):
                if lds: e.wait_lg(lambda t: t == j)
                else: e.wait_vm(lambda t: t == (k, j))
                for d in range(4):
                    r = (ACC if lds else PBR[k]) + 4*j + d
                    if j == 0: e(f"v_lshlrev_b32 v{AC+2*d}, 16, v{r}\nv_and_b32 v{AC+1+2*d}, 0xffff0000, v{r}")
                    else: e(f"v_dot2c_f32_bf16 v{AC+2*d}, v{r}, v14\nv_dot2c_f32_bf16 v{AC+1+2*d}, v{r}, v15")
            e("s_nop 1")
            for d in range(4): e(f"v_cvt_pk_bf16_f32 v{O_+d}, v{AC+2*d}, v{AC+1+2*d}")
            for d in range(4): e(f"v_lshlrev_b32 v{AC+2*d}, 16, v{H+d}\nv_and_b32 v{AC+1+2*d}, 0xffff0000, v{H+d}")
            for d in range(4): e(f"v_dot2c_f32_bf16 v{AC+2*d}, v{O_+d}, v14\nv_dot2c_f32_bf16 v{AC+1+2*d}, v{O_+d}, v15")
            e("s_nop 1")
            for d in range(4): e(f"v_cvt_pk_bf16_f32 v{O_+d}, v{AC+2*d}, v{AC+1+2*d}")
            e("s_nop 0")
            for d in range(4): e(f"v_mov_b32_dpp v{AC+d}, v{O_+d} quad_perm:[1,0,3,2] row_mask:0xf bank_mask:0xf")
            for d in range(2): e(f"v_cndmask_b32 v{O_+d}, v{O_+d}, v{AC+2+d}, s[54:55]\nv_cndmask_b32 v{O_+2+d}, v{AC+d}, v{O_+2+d}, s[54:55]")
        def ostore(k):
            e.vmem(f"buffer_store_dwordx4 v[{16+4*k}:{19+4*k}], v{VRO+k}, s[{S_W}:{S_W+3}], s{S_XO} offen{of}", "o")
        if dyn:
            S_DN, S_NW, S_LD, S_RD, S_LB, S_OW = 28, 29, 32, 33, 38, 39
            dtx = f"buffer_load_dwordx4 v{V1+2}, s[{S_HC}:{S_HC+3}], s21 offen sc0 sc1 lds"
            def pick(): return f"s_ff1_i32_b32 s4, s{S_NW}\ns_bitset0_b32 s{S_NW}, s4\ns_bitset1_b32 s{S_DN}, s4\ns_and_b32 s6, s4, 7\ns_mul_i32 s6, s6, {ACT_BYTES}\ns_lshr_b32 s7, s4, 3\ns_mul_i32 s7, s7, 6144\ns_lshl_b32 s4, s4, 10\ns_add_u32 m0, s{S_LB}, s4\ns_add_u32 s21, s6, s7\ns_add_u32 s21, s21, s48"
            e(f"s_mul_i32 s{S_LB}, s{S_WV}, 25600\ns_mul_i32 s{S_OW}, s23, 0x10101\ns_mov_b32 s{S_DN}, 0\ns_mov_b32 s{S_RD}, 0")
            e(f"v_cmp_gt_u32 vcc, 0x300, v{VL16}\nv_mov_b32 v1, 0x40000000\nv_add_u32 v{VRA}, s{S_LB}, v{VRA}\nv_cndmask_b32 v{V1+2}, v1, v{VL16}, vcc")
            e.wait_vm(lambda t: t == "s0")
            e(f"v_readfirstlane_b32 s{S_NW}, v{V1}\ns_mov_b32 s22, {K1}\ns_barrier\ns_or_b32 s{S_NW}, s{S_NW}, s23")
            if K1:
                e(f"K3_F:\ns_add_u32 m0, s{S_LB}, 24576\ns_mov_b32 s21, 0x40000000\ns_cmp_eq_u32 s{S_NW}, 0\ns_cbranch_scc1 K3_F1\n{pick()}\nK3_F1:\n{dtx}\ns_sub_u32 s22, s22, 1\ns_cmp_lg_u32 s22, 0\ns_cbranch_scc1 K3_F")
                e.vm += ["f"]*K1
            e.wait_vm(lambda t: t == ("store", 1))
            e.vmem(f"buffer_atomic_add v{V1+1}, v{VLZ}, s[{S_FL}:{S_FL+3}], s25 offen sc1", "s1")
            e.wait_vm(lambda t: t == ("store", 2))
            e.vmem(f"buffer_atomic_add v{VF}, v{VLZ}, s[{S_FL}:{S_FL+3}], s25 offen sc0 sc1", "s2")
            tm.stamp("B0")
            e(f"K3_T:\ns_waitcnt vmcnt(0)\ns_mov_b32 s{S_LD}, s{S_DN}\ns_cmp_eq_u32 s{S_DN}, 0xffffff\ns_cbranch_scc1 K3_T2")
            e(f"v_readfirstlane_b32 s{S_NW}, v{VF}\ns_nop 1\ns_or_b32 s{S_NW}, s{S_NW}, s{S_OW}\ns_andn2_b32 s{S_NW}, s{S_NW}, s{S_DN}\ns_cbranch_scc0 K3_T1")
            e(f"K3_W:\n{pick()}\n{dtx}\ns_cmp_lg_u32 s{S_NW}, 0\ns_cbranch_scc1 K3_W\ns_cmp_eq_u32 s{S_DN}, 0xffffff\ns_cbranch_scc1 K3_T2")
            e(f"K3_T1:\n" + (f"s_sleep {tsl}\n" if tsl else "") + f"{apoll(25)}\nK3_T2:\ns_andn2_b32 s{S_LD}, s{S_LD}, s{S_RD}")
            for g in range(3):
                e(f"s_bfe_u32 s4, s{S_LD}, {hex(8*g | 0x80000)}\ns_cmp_eq_u32 s4, 0xff\ns_cbranch_scc0 K3_N{g}\ns_or_b32 s{S_RD}, s{S_RD}, {hex(0xff << (8*g))}")
                tm.stamp(["B1", "B2", -13][g])
                e.lg = []; e.lg_done = 0
                for j in range(NPART): e.ds(f"ds_read_b128 v[{ACC+4*j}:{ACC+4*j+3}], v{VRA} offset:{(8*g + j)*1024}", j)
                red(g, lds=True)
                e(f"K3_N{g}:")
            e(f"s_cmp_lg_u32 s{S_RD}, 0xffffff\ns_cbranch_scc1 K3_T")
            ostore(0); ostore(1); ostore(2)
    if fused and not dyn:
        if not sig0: sigB(0)
        e(f"v_mov_b32 v1, 0x10000")
        own = 0x10000
        if not sig1:
            e(f"v_mov_b32 v{VF}, 0x100"); own = 0x10100
            e.wait_vm(lambda t: t == ("store", 1))
            e.vmem(f"buffer_atomic_add v{VF}, v{VLZ}, s[{S_FL}:{S_FL+3}], s25 offen sc0 sc1", "plb")
        e.wait_vm(lambda t: t == ("store", 2))
        e.vmem(f"buffer_atomic_add v1, v{VLZ}, s[{S_FL}:{S_FL+3}], s25 offen sc0 sc1", "pl2")
        tm.stamp("B0")
        e.wait_vm(lambda t: t == "plb")
        e(f"{rd}\ns_add_u32 s5, s5, {hex(own)}")
        g0 = 1 if pol0 else 0
        for g in range(g0, 3):
            e(chk(g) + f"\ns_cbranch_scc1 K3_L{g}")
            e(f"s_waitcnt vmcnt({8*(g-g0)})\nv_readfirstlane_b32 s7, v1\ns_nop 1\ns_add_u32 s7, s7, 0x10000\ns_max_u32 s5, s5, s7\n{chk(g)}\ns_cbranch_scc1 K3_L{g}")
            e(f"K3_P{g}:\n{apoll(25)}\ns_waitcnt vmcnt(0)\n{rd}\n{chk(g)}\ns_cbranch_scc0 K3_P{g}\nK3_L{g}:")
            tm.stamp(["B1", "B2", -13][g])
            loads(g)
            if g == 1 and pol0: red(0)
        if not pol0: red(0)
        ostore(0); red(1); ostore(1); red(2); ostore(2)
    tm.end("K3_end")
    e("K3_end:\ns_endpgm")
    e.lines += side_lines
    for name, val in spins:
        e(f"""K3_spin{name}:
v_mov_b32 v{VF}, 0
{gpoll}
s_waitcnt vmcnt(0)
v_readfirstlane_b32 s{S_TMP}, v{VF}
s_nop 1
s_cmp_ge_u32 s{S_TMP}, {val}
s_cbranch_scc0 K3_spin{name}
s_branch K3_ret{name}""")
    for t_ in tails: e(t_)
    if fused: e("KB_last:\ns_endpgm")
    e(f"; gelu queue empty at gap {st8['qempty']}")
    return e.text()
if __name__ == "__main__":
    t = gen_k3()
    print(t)
```

```python
from sched import *
from layout import *
from tim import Tim
import struct, math
def f2u(x): return struct.unpack("<I", struct.pack("<f", x))[0]

def srd(e, d, b, nbytes, off=0):
    if off > 0:
        e(f"s_add_u32 s{d}, s{b}, {off}\ns_addc_u32 s{d+1}, s{b+1}, 0\ns_and_b32 s{d+1}, s{d+1}, 0xffff")
    elif off < 0:
        e(f"s_sub_u32 s{d}, s{b}, {-off}\ns_subb_u32 s{d+1}, s{b+1}, 0\ns_and_b32 s{d+1}, s{d+1}, 0xffff")
    else:
        e(f"s_mov_b32 s{d}, s{b}\ns_and_b32 s{d+1}, s{b+1}, 0xffff")
    e(f"s_mov_b32 s{d+2}, {nbytes}\ns_mov_b32 s{d+3}, 0x20000")

SLOT = 36864
STAMPS = [0, 135, -1, -2, 568, 648, 720, 792, 864, 900, 936, 971]
def gen_f3(C=2, budget=5, timing=False, store_flags=" sc1", lead=45, wdpf=True, roll=True, bud2=6, late0="n",
           f0=(646, 670), f1=(666, 718, 740), f2=(758, 780, 814, 834), gst=' sc0 sc1', gld=' sc0 sc1', old=' sc0 sc1', slack=2.25, nogs=False, vcost=1, ldpace=7, dsp=4, dtail=1, fused=None, hpre=166, slp=8, sig0=942, pp1=2, pp2=4, ordb=1, na=6, of=' sc1', ctouch=(20, 542, 700, 800), hd=7, p2plan='old', sig1=966, pol0=None, order0='PSPSPP', bud0=5, xrate=4, stat=100, dsp0=1, front=0, hsp=2, barpos=0, bfill=0, dyn=0, K1=8, tsl=0, tlb=(), mix=0, lin=0, loc=1, pl0=946, psf=' sc0 sc1', plf=' sc0 sc1', xlf=' sc0 sc1', xp=None):
    e = fused['e'] if fused else Em()
    tm = fused['tm3'] if fused else Tim(e, 3, timing)
    xf = xlf
    if fused: store_flags = psf
    TRB = 4; V1 = 8; VB = 17; VE = 26; VP1 = 29; VS = 30
    VK1 = 34; VK2 = 35; VS2 = 36; VL16 = 37; VPF = 38; VZ = 39; VF = 40; V3 = 41; VONE = 42; T = 44
    TM = 208
    SAC = 224; S_W2 = 44
    ACC = 56; OLD = 120; GT = 184; GS = 200; GP = 208
    FR = 144; GO = 192; GP3 = 120; GPS = 112; HA = 240
    S_W = 8; S_WD = 12; S_HC = S_ST = S_PT = S_GX = S_FL = 16; S_XH = 20
    S_J = 28; S_I = 29; S_WV = 30; S_WB = 31; S_CP = 32; S_CS = 33; S_SO = 34; S_XO = 35
    S_PO = 36; S_PS = 37
    S_B0 = 38; S_B1 = 39; S_A0 = 21; S_A1 = 22; S_CNT = 49; S_GO = 50; S_XS = 51; S_SS = 52; S_PF = 53
    S_MK = 54
    S_OWN = 56; S_PAR = 57; S_SNG = 58; S_TMP = 59
    S_GW = 40; S_GR = 41; S_FW = 42; S_FR = 43
    if not fused: e("s_cmp_ge_u32 s2, 256\ns_cbranch_scc1 K3_end")
    else: e("s_mov_b32 s23, s59\ns_mov_b64 s[26:27], s[42:43]\ns_mov_b64 s[44:45], s[40:41]\ns_mov_b64 s[40:41], s[12:13]")
    if not fused: e("s_load_dwordx4 s[40:43], s[0:1], 32\ns_load_dwordx2 s[44:45], s[0:1], 48\ns_load_dwordx2 s[46:47], s[0:1], 72")
    if not fused: tm.start()
    ng = 16 // C; R = 32 // C
    lg = lambda x: int(math.log2(x))
    e(f"v_lshrrev_b32 v1, 6, v0\nv_and_b32 v2, 63, v0\ns_and_b32 s3, s2, 7\ns_lshr_b32 s4, s2, 3\nv_readfirstlane_b32 s{S_WV}, v1")
    e(f"s_and_b32 s5, s3, {ng-1}\ns_lshl_b32 s5, s5, {lg(C)}\ns_and_b32 s6, s4, {C-1}\ns_add_u32 s{S_J}, s5, s6")
    e(f"s_lshr_b32 s5, s3, {lg(ng)}\ns_lshl_b32 s5, s5, {lg(R)}\ns_lshr_b32 s6, s4, {lg(C)}\ns_add_u32 s{S_I}, s5, s6")
    e(f"v_lshlrev_b32 v{VL16}, 4, v2")
    e(f"v_bfe_u32 v3, v2, 2, 3\nv_and_b32 v{TM}, 3, v2\nv_lshlrev_b32 v{TM}, 4, v{TM}\nv_lshrrev_b32 v{TM+1}, 5, v2\nv_lshl_add_u32 v{TM+1}, v{TM+1}, 6, v{TM}")
    e(f"s_mul_i32 s{S_WB}, s{S_WV}, 9216")
    e(f"s_and_b32 s3, s{S_J}, 1\ns_mul_i32 s6, s{S_J}, 576\ns_lshl_b32 s7, s3, 6\ns_add_u32 s{S_CP}, s6, s7")
    e(f"s_and_b32 s4, s{S_WV}, 1\ns_mul_i32 s5, s4, {72*9216}\ns_add_u32 s{S_CP}, s{S_CP}, s5")
    e(f"v_mul_u32_u24 v1, 9216, v3\nv_add_u32 v{V1}, v1, v{TM+1}")
    for i in range(1, 9): e(f"v_add_u32 v{V1+i}, {8*i*9216 - (i%3)*1024}, v{V1}")
    e(f"s_lshl_b32 s5, s{S_I}, 2\ns_add_u32 s5, s5, s{S_WV}\ns_mul_i32 s{S_XO}, s5, 36864\ns_add_u32 s{S_XH}, s{S_XO}, {WS_HC}")
    e(f"v_lshrrev_b32 v1, 5, v2\nv_lshlrev_b32 v1, 8, v1\nv_bfe_u32 v{T}, v2, 2, 2\nv_lshl_add_u32 v1, v{T}, 6, v1")
    e(f"v_bfe_u32 v{T}, v2, 4, 1\nv_lshl_add_u32 v1, v{T}, 5, v1\nv_and_b32 v{T}, 3, v2\nv_lshl_add_u32 v{TRB}, v{T}, 3, v1")
    for i in range(1, 4): e(f"v_add_u32 v{TRB+i}, {i*SLOT}, v{TRB}")
    if not fused:
        e("s_waitcnt lgkmcnt(0)")
        e(f"s_cmp_lt_u32 s{S_WV}, 2\ns_cselect_b32 s40, s40, s42\ns_cselect_b32 s41, s41, s43")
    srd(e, S_W, 40, 576*4608*2)
    srd(e, S_HC, 46, WS_BYTES)

    NST = 27
    perm = fused['perm']
    ST1 = []
    for ch in order0: ST1.append(((0 if ch == "P" else "S"), sum(1 for x in ST1 if (x[0] == "S") == (ch == "S"))))
    ST1 += [(p, q_) for p in (1, 2, 3) for q_ in range(4)]
    plan = {"old": [("E", k) for k in range(6)] + [("B", g) for g in range(3)],
            "p1": [("E", 0), ("E", 1), ("E", 2), ("A", 0), ("A", 1), ("B", 0), ("B", 1), ("A", 2), ("B", 2)],
            "p2": [("E", 0), ("E", 1), ("E", 2), ("A", 0), ("B", 0), ("A", 1), ("B", 1), ("A", 2), ("B", 2)],
            "p3": [("E", 0), ("E", 1), ("E", 2), ("A", 0), ("A", 1), ("B", 0), ("A", 2), ("B", 1), ("B", 2)]}[p2plan]
    def dma_instrs(st, inbody=False):
        slot = perm[st % 4]
        L = []
        def grp(g, so, vs, sr):
            if so: L.append((so, False))
            L.append((f"s_add_u32 m0, s{S_WB}, {slot*SLOT + g*3072}", False))
            for k in range(3):
                L.append((f"buffer_load_dwordx4 v{vs[k]}, s[{sr}:{sr+3}], s{sreg} offen" + (f" offset:{k*1024}" if k else "") + " lds", True))
        sreg = S_SO
        if inbody and st < 20:
            sreg = {16: S_A0, 17: S_A1, 18: S_B0, 19: S_B1}[st]; vb = V1 if st < 18 else VB
            for g in range(3): grp(g, None, [vb+3*g, vb+3*g+1, vb+3*g+2], S_W if st < 18 else S_W2)
            L.append((f"s_add_u32 s{sreg}, s{sreg}, 128", False))
        elif st < 18:
            p, q = ST1[st]
            for g in range(3):
                if p == "S": grp(g, f"s_add_u32 s{S_SO}, s{S_CS}, {q*288*9216}" if g == 0 else None, [VB+3*g, VB+3*g+1, VB+3*g+2], S_W)
                else: grp(g, f"s_add_u32 s{S_SO}, s{S_CP}, {p*128 + q*144*9216}" if g == 0 else None, [V1+3*g, V1+3*g+1, V1+3*g+2], S_W)
        elif plan[st-18][0] == "E":
            k = plan[st-18][1]; b = S_OWN if k < 3 else S_PAR; o = (k % 3)*64*1152
            grp(0, f"s_add_u32 s{S_SO}, s{b}, {o}", [VE, VE+1, VE+2], S_WD)
            grp(1, f"s_add_u32 s{S_SO}, s{b}, {o + 8*1152}", [VE, VE+1, VE+2], S_WD)
            grp(2, f"s_add_u32 s{S_SO}, s{b}, {o + 384}", [VE, VP1, VS], S_WD)
        else:
            ty, ls = plan[st-18]
            bl = ((S_OWN, 3*64*1152), (S_PAR, 3*64*1152), (S_SNG, 0)) if ty == "B" else tuple((S_PAR, k*64*1152) for k in range(3))
            for g, (b, o) in enumerate(bl):
                grp(g, f"s_add_u32 s{S_SO}, s{b}, {o + 128*ls}", [VE, VP1, VS+1+ls], S_WD)
        return L
    def emit_list(L):
        n = 0; prev_m0 = False
        for t, tag in L:
            if tag:
                if prev_m0: e("s_nop 0"); n += 1
                e.vmem(t, tag); prev_m0 = False
            else:
                e(t); prev_m0 = "m0" in t
            n += 1
        return n
    def xload_instrs(s):
        L = []
        if s % 4 == 0: L.append((f"s_add_u32 s{S_XS}, s{S_XH}, {s*1024}", None))
        L.append((f"buffer_load_dwordx4 a[{4*s}:{4*s+3}], v{VL16}, s[{S_HC}:{S_HC+3}], s{S_XS} offen" + (f" offset:{(s%4)*1024}" if s % 4 else "") + xf, ("x", s)))
        return L
    if not fused:
        emit_list(xload_instrs(0))
        emit_list([(t, ("dma", 0) if d else None) for t, d in dma_instrs(0)])
        emit_list(xload_instrs(1)); emit_list(xload_instrs(2))
    else:
        e.vm = []; e.vm_done = 0; e.lg = []; e.lg_done = 0

    q = Queue(e, window=10)
    def emit_op(o, _orig=e.op):
        if callable(o.text):
            o.text(); o.pos = e.n - 1; return o
        return _orig(o)
    e.op = emit_op
    chl = [None]
    def chain(text, first_deps=()):
        prev = None
        for l in text.split("\n") if isinstance(text, str) else text:
            if isinstance(l, str):
                l = l.strip()
                if not l: continue
            deps = [(prev, 0)] if prev else list(first_deps) + ([(chl[0], 0)] if chl[0] and chl[0].pos is None else [])
            cost = 2 if isinstance(l, str) and re.match(r"v_(rcp|sqrt|exp|permlane)", l) else 1
            prev = q.add(Op(l, cost=cost, deps=deps))
        chl[0] = prev
        return prev
    e(f"s_lshl_b32 s{S_SS}, s5, 8\nv_and_b32 v{VZ}, 31, v2\nv_lshlrev_b32 v{VZ}, 3, v{VZ}\nv_lshrrev_b32 v1, 5, v2\nv_mul_u32_u24 v1, {6*16384}, v1\nv_add_u32 v{VZ}, v{VZ}, v1")
    srd(e, S_WD, 44, 4608*576*2 + 4096, -4096)
    e(f"s_xor_b32 s7, s3, 1\ns_lshl_b32 s7, s7, 9\ns_add_u32 s{S_CS}, s6, s7\ns_mul_i32 s4, s4, {144*9216}\ns_add_u32 s{S_CS}, s{S_CS}, s4")
    e(f"v_lshrrev_b32 v1, 2, v2\nv_mul_u32_u24 v{T}, 9216, v1\nv_add_u32 v{VB}, v{T}, v{TM}")
    for i in range(1, 9): e(f"v_add_u32 v{VB+i}, {16*i*9216 - (i%3)*1024}, v{VB}")
    e(f"s_mov_b64 s[{S_W2}:{S_W2+1}], s[{S_W}:{S_W+1}]\ns_mov_b32 s{S_W2+2}, s{S_W+2}\ns_mov_b32 s{S_W2+3}, 0x20000")
    e(f"s_lshl_b32 s4, s3, 6\ns_mul_i32 s5, s{S_WV}, {16*1152}\ns_add_u32 s5, s5, 4096\ns_add_u32 s{S_TMP}, s5, s4")
    e(f"v_mul_u32_u24 v{T}, 1152, v3\nv_add3_u32 v{VE}, v{T}, v{TM+1}, s{S_TMP}\nv_subrev_u32 v{VE+1}, {1024-128}, v{VE}\nv_subrev_u32 v{VE+2}, {2048-256}, v{VE}\nv_add_u32 v{VP1}, {8*1152-1024}, v{VE}")
    e(f"v_mul_u32_u24 v{T}, 1152, v1\nv_add_u32 v{T}, v{T}, v{TM}\ns_add_u32 s5, s5, s7")
    e(f"s_sub_u32 s7, s5, {2048+384}\nv_add_u32 v{VS}, s7, v{T}\ns_sub_u32 s7, s5, {2048+256}\nv_add_u32 v{VS+3}, s7, v{T}")
    e(f"s_sub_u32 s7, s{S_TMP}, {2048-384}\nv_add_u32 v{VS+1}, s7, v{T}\ns_sub_u32 s7, s{S_TMP}, {2048-320}\nv_add_u32 v{VS+2}, s7, v{T}")
    e(f"""s_lshr_b32 s5, s{S_J}, 1
s_mul_i32 s6, s5, {576*1152}
s_mul_i32 s7, s3, 576
s_add_u32 s6, s6, s7
s_mul_i32 s7, s3, {320*1152}
s_add_u32 s{S_OWN}, s6, s7
s_add_u32 s{S_PAR}, s6, {320*1152}
s_sub_u32 s{S_PAR}, s{S_PAR}, s7
s_lshl_b32 s7, s3, 1
s_xor_b32 s7, s7, s{S_WV}
s_sub_u32 s7, s7, s{S_WV}
s_add_u32 s7, s7, 16
s_mul_i32 s7, s7, {16*1152}
s_add_u32 s{S_SNG}, s6, s7""")
    e(f"""s_mul_i32 s5, s5, {ACT_BYTES}
s_add_u32 s5, s5, s{S_XO}
s_add_u32 s5, s5, {WS_PART}
s_mul_i32 s6, s3, {18*1024 if fused else 20*1024}
s_add_u32 s{S_PO}, s5, s6
s_lshl_b32 s6, s3, 11
s_add_u32 s6, s6, {16*1024}
s_add_u32 s{S_PS}, s5, s6""")
    e(f"""s_lshl_b32 s5, s{S_I}, 4
s_add_u32 s5, s5, s{S_J}
s_lshl_b32 s5, s5, 2
s_add_u32 s5, s5, s{S_WV}
s_xor_b32 s6, s5, 4
s_mul_i32 s{S_GW}, s5, 18432
s_mul_i32 s{S_GR}, s6, 18432
s_lshl_b32 s{S_FW}, s5, 6
s_lshl_b32 s{S_FR}, s6, 6
s_add_u32 s{S_GW}, s{S_GW}, {WS_GX}
s_add_u32 s{S_GR}, s{S_GR}, {WS_GX}
s_add_u32 s{S_FW}, s{S_FW}, {WS_FL}
s_add_u32 s{S_FR}, s{S_FR}, {WS_FL}
s_mov_b32 s{S_GO}, s{S_GW}
s_add_u32 s{S_A0}, s{S_CP}, {128 + 288*9216}
s_add_u32 s{S_A1}, s{S_CP}, {128 + 432*9216}
s_add_u32 s{S_B0}, s{S_CP}, 256
s_add_u32 s{S_B1}, s{S_CP}, {256 + 144*9216}
s_mov_b32 s{S_CNT}, 0""")
    if wdpf:
        e(f"s_mul_i32 s5, s{S_WV}, 42\nv_add_u32 v1, s5, v2\nv_lshlrev_b32 v1, 7, v1\nv_cmp_gt_u32 s[54:55], 14, v2\nv_mov_b32 v{VPF}, 0x40000000")
        e(f"s_mul_i32 s5, s{S_I}, 18\ns_mul_i32 s6, s{S_J}, 288\ns_add_u32 s5, s5, s6\ns_mul_i32 s{S_PF}, s5, 1152\ns_add_u32 s{S_PF}, s{S_PF}, 4096\nv_cndmask_b32 v{VPF}, v{VPF}, v1, s[54:55]")

    c = 0.7978845608028654; l2e = 1.4426950408889634
    k1 = -2*c*l2e; k2 = k1*0.044715
    M = []
    for st, (p, qq) in enumerate(ST1):
        if p == "S":
            for s in range(18):
                ks = 18*qq + s
                for mat in range(2):
                    o = (mat*18 + s)*1024
                    M.append(dict(acc=f"v{SAC + 16*mat}", dst=None, b=f"a[{4*ks}:{4*ks+3}]", first=(ks == 0), last=(ks == 35), st=st, rd=(o, o + 512), xs=ks, unit=8, mat=mat, ph=1))
            continue
        for s in range(9):
            ks = 9*qq + s
            for uu in range(2):
                for mat in range(2):
                    o = (mat*18 + 2*s)*1024 + uu*512
                    M.append(dict(acc=f"v{ACC + 32*uu + 16*mat}", dst=f"v{OLD + 32*uu + 16*mat}" if ks == 35 else None, b=f"a[{4*ks}:{4*ks+3}]",
                                  first=(ks == 0), last=(ks == 35), st=st, rd=(o, o + 1024), xs=ks if p == 0 else None, unit=2*p+uu, mat=mat, ph=1))
        if qq == 3:
            t = M[-8:]; M[-8:] = [t[0], t[1], t[4], t[5], t[2], t[3], t[6], t[7]]
    if mix:
        assert order0[:3] == "PSP"
        Pm = M[0:36] + M[72:108]; Sm = M[36:72]; new = []; si = 0
        for ks in range(18):
            tgt = min(18, ks + 1 + (0 if ks < 9 else (ks - 8)//2))
            new += Pm[4*ks:4*ks+4] if ks < 9 else []
            while si < tgt: new += Sm[2*si:2*si+2]; si += 1
            new += Pm[4*ks:4*ks+4] if ks >= 9 else []
        assert len(new) == 108 and all(d["st"] != 1 for d in new[96:]) and all(d["st"] != 0 for d in new[60:]) and all(d["st"] != 2 for d in new[:36])
        M[0:108] = new
    tacc = {0: "a0", 1: "a16", 6: "a32", 2: "a48", 3: "a64", 7: "a80", 4: "a96", 5: f"v{ACC+32}", 8: f"v{ACC+48}"}
    def eoff(t):
        if t == 8: return (8*1024, 8*1024 + 512)
        cp, uu = t >> 1, t & 1
        return ((cp*1024 + uu*512, (3 + cp)*1024 + uu*512) if cp < 3 else (6*1024 + uu*512, 7*1024 + uu*512))
    lateks = [(0, w, f"v[{GT+4*w}:{GT+4*w+3}]", ("cv", 12 + w)) for w in range(4)] + [(2, w, f"v[{GS+4*w}:{GS+4*w+3}]", ("cv", 16 + w)) for w in range(2)] + \
             [(1, w, f"a[{GP3+4*w}:{GP3+4*w+3}]", ("gp", 12 + w)) for w in range(4)] + [(2, 2 + w, f"a[{GPS+4*w}:{GPS+4*w+3}]", ("gp", 16 + w)) for w in range(2)]
    parks = [(k, w, f"v[{GP+16*k+4*w}:{GP+16*k+4*w+3}]", ("gp", 4*k + w)) for k in range(3) for w in range(4)]
    for si, (ty, k) in enumerate(plan):
        if ty == "E":
            for w in range(4):
                g = (f"a[{GO+16*k+4*w}:{GO+16*k+4*w+3}]", ("go", 4*k + w)) if k < 3 else (f"v[{GP+16*(k-3)+4*w}:{GP+16*(k-3)+4*w+3}]", ("gp", 4*(k-3) + w))
                for t in range(9):
                    o = eoff(t)
                    M.append(dict(acc=tacc[t], dst=None, b=g[0], gsrc=g[1], first=(k == 0 and w == 0), last=False, st=18+si, rd=(w*9216 + o[0], w*9216 + o[1]), xs=None, tile=t, ph=2))
            continue
        ls = k
        tiles = [2*ls, 2*ls + 1, 6 + ls]
        if ty == "A": order = [(t, k_) for k_ in range(12) for t in tiles]
        elif ls == 0 and late0 == "own": order = [(t, k_) for k_ in range(6) for t in tiles] + [(t, k_) for t in tiles for k_ in range(6, 12)]
        else: order = [(t, k_) for t in tiles for k_ in range(12)]
        for t, k_ in order:
            gi, w, b, src = (lateks if ty == "B" else parks)[k_]
            base = w*9216 + gi*3072
            rd = (base + (t & 1)*512, base + 1024 + (t & 1)*512) if t < 6 else (base + 2048, base + 2048 + 512)
            M.append(dict(acc=tacc[t], dst=None, b=b, gsrc=src, first=False, last=(ty == "B" and k_ == 11), st=18+si, rd=rd, xs=None, tile=t, ph=2))
    NM = len(M); assert NM == 972
    LA = 8
    def rng(r, n=16):
        return f"{r[0]}[{int(r[1:])}:{int(r[1:])+n-1}]"

    gdone = {}; tstate = {"last": [None, None]}; pairctr = [0]
    oldbusy = {}
    memq = []
    def add_gelu(unit, gacc, uacc, mg, mu, inbody):
        gb = GS if unit == 8 else GT + 8*(unit & 1)
        for k in range(8):
            ts = pairctr[0] % 2; pairctr[0] += 1
            ta, tb = T + 2*ts, T + 2*ts + 1
            ga, gb_, ua, ub = gacc + 2*k, gacc + 2*k + 1, uacc + 2*k, uacc + 2*k + 1
            prev = tstate["last"][ts]
            d0 = [(mg, 13)] + ([(prev, 0)] if prev else [])
            sa = q.add(Op(f"v_mul_f32 v{ta}, v{ga}, v{ga}", deps=d0))
            sb = q.add(Op(f"v_mul_f32 v{tb}, v{gb_}, v{gb_}", deps=d0))
            fa = q.add(Op(f"v_fma_f32 v{ta}, v{ta}, v{VK2}, v{VK1}", deps=[(sa, 0)]))
            fb = q.add(Op(f"v_fma_f32 v{tb}, v{tb}, v{VK2}, v{VK1}", deps=[(sb, 0)]))
            aa = q.add(Op(f"v_mul_f32 v{ta}, v{ga}, v{ta}", deps=[(fa, 0)]))
            ab = q.add(Op(f"v_mul_f32 v{tb}, v{gb_}, v{tb}", deps=[(fb, 0)]))
            ea = q.add(Op(f"v_exp_f32 v{ta}, v{ta}", cost=2, deps=[(aa, 0)]))
            pa = q.add(Op(f"v_mul_f32 v{ua}, v{ga}, v{ua}", deps=[(mg, 13), (mu, 13)]))
            eb = q.add(Op(f"v_exp_f32 v{tb}, v{tb}", cost=2, deps=[(ab, 0)]))
            pb = q.add(Op(f"v_mul_f32 v{ub}, v{gb_}, v{ub}", deps=[(mg, 13), (mu, 13)]))
            da = q.add(Op(f"v_fma_f32 v{ta}, v{ta}, v{VS2}, v{VS2}", deps=[(ea, 1)]))
            db = q.add(Op(f"v_fma_f32 v{tb}, v{tb}, v{VS2}, v{VS2}", deps=[(eb, 1)]))
            ra = q.add(Op(f"v_rcp_f32 v{ta}, v{ta}", cost=2, deps=[(da, 0)]))
            rb = q.add(Op(f"v_rcp_f32 v{tb}, v{tb}", cost=2, deps=[(db, 0)]))
            ya = q.add(Op(f"v_mul_f32 v{ta}, v{ua}, v{ta}", deps=[(ra, 1), (pa, 0)]))
            yb = q.add(Op(f"v_mul_f32 v{tb}, v{ub}, v{tb}", deps=[(rb, 1), (pb, 0)]))
            cv = q.add(Op(f"v_cvt_pk_bf16_f32 v{gb + k}, v{ta}, v{tb}", deps=[(ya, 0), (yb, 0)]))
            tstate["last"][ts] = cv
            fi = 2*unit + k//4
            gdone.setdefault(fi, []).append(cv)
            oldbusy.setdefault(f"v{gacc}", []).append(cv); oldbusy.setdefault(f"v{uacc}", []).append(cv)
            if k % 4 == 3:
                r = gb + k - 3
                L = []
                if unit == 8 and k == 3: L.append((f"s_add_u32 s{S_TMP}, s{S_GW}, 16384", None))
                off = (fi % 4)*1024
                L.append((f"buffer_store_dwordx4 v[{r}:{r+3}], v{VL16}, s[{S_GX}:{S_GX+3}], s{S_TMP if unit == 8 else S_GO} offen" + (f" offset:{off}" if off else "") + gst, ("gs", fi)))
                if nogs and unit < 6: L = [("s_nop 0", None)]
                memq.append(dict(deps=list(gdone[fi]), L=L))
    outn = [0]
    VPS = 48; VLZ = 49; VRH = 50; VRO = 53; VRA = 3
    outbusy = [[], [], [], []]
    def add_out(t, acc, mo):
        def cv(i, deps): return q.add(Op(f"v_cvt_pk_bf16_f32 v{r+i}, v{r+2*i}, v{r+2*i+1}", deps=deps))
        prev = None; cvs = []
        if acc[0] == "a":
            bi = outn[0] % 3; outn[0] += 1
            assert all(x.get("done") for x in outbusy[bi])
            r = OLD + 16*bi; a = int(acc[1:])
            for i in range(8):
                r0 = q.add(Op(f"v_accvgpr_read_b32 v{r+2*i}, a{a+2*i}", deps=[(mo, 13)]))
                r1 = q.add(Op(f"v_accvgpr_read_b32 v{r+2*i+1}, a{a+2*i+1}", deps=[(mo, 13)]))
                prev = cv(i, [(r0, 0), (r1, 0)] + ([(prev, 0)] if prev else [])); cvs.append(prev)
        else:
            bi = None; r = int(acc[1:])
            for i in range(8):
                prev = cv(i, [(mo, 13)] + ([(prev, 0)] if prev else [])); cvs.append(prev)
        new = []
        for h in range(2):
            L = []
            if fused:
                g_, fi_ = (t - 6, 4 + h) if t >= 6 else (t >> 1, 2*(t & 1) + h)
                if fi_ == 0: L.append((f"s_add_u32 s{S_TMP}, s{S_PO}, {g_*6144}", None))
                L.append((f"buffer_store_dwordx4 v[{r+4*h}:{r+4*h+3}], v{VPS}, s[{S_PT}:{S_PT+3}], s{S_TMP} offen" + (f" offset:{fi_*128}" if fi_ else "") + store_flags, ("store", g_)))
                x = dict(deps=[cvs[4*h+3]], L=L); memq.append(x); new.append(x)
                if loc:
                    y = {}
                    def lw(r=r+4*h, off=g_*768 + fi_*128, y=y):
                        e.ds(f"ds_write_b128 v{V3}, v[{r}:{r+3}] offset:{off}", 10**6); y["done"] = True
                    q.add(Op(lw, deps=[(cvs[4*h+3], 0)])); new.append(y)
                continue
            so = S_PS if t == 8 else S_TMP
            if t != 8 and h == 0: L.append((f"s_add_u32 s{S_TMP}, s{S_PO}, {t*2048}", None))
            L.append((f"buffer_store_dwordx4 v[{r+4*h}:{r+4*h+3}], v{VL16}, s[{S_PT}:{S_PT+3}], s{so} offen" + (f" offset:1024" if h else "") + store_flags, ("store", t - 6 if t >= 6 else t >> 1)))
            x = dict(deps=[cvs[4*h+3]], L=L); memq.append(x); new.append(x)
        if bi is not None: outbusy[bi] = new
    def pop_mem():
        y = memq.pop(0); y["done"] = True
        return emit_list(y["L"])
    def mem_ready():
        return memq and all(d.pos is not None for d in memq[0]["deps"])
    def reads(m):
        d = M[m]; fr = FR + 4*(m % 12); vb = TRB + perm[d["st"] % 4]
        e.ds(f"ds_read_b64_tr_b16 a[{fr}:{fr+1}], v{vb} offset:{d['rd'][0]}", m)
        e.ds(f"ds_read_b64_tr_b16 a[{fr+2}:{fr+3}], v{vb} offset:{d['rd'][1]}", m)

    early = []
    for s_ in range(36): early.append((min(min(m for m, d in enumerate(M) if d["xs"] == s_), xrate*s_), xload_instrs(s_)))
    for g in range(6):
        early.append((stat + g, [(f"s_add_u32 s{S_TMP}, s{S_SS}, {WS_ST + g*16384}", None),
                                (f"buffer_load_dwordx2 v[{TM+2+2*g}:{TM+3+2*g}], v{VZ}, s[{S_ST}:{S_ST+3}], s{S_TMP} offen" + xf, "st")]))
    early.sort(key=lambda x: x[0])
    def emit_early():
        return emit_list(early.pop(0)[1])
    def stats_ops():
        b = TM + 2
        inv = hex(f2u(1.0/576))
        txt = [lambda: e.wait_vm(lambda t: t == "st")] + f"""v_add_f32 v{b}, v{b}, v{b+2}
v_add_f32 v{b+1}, v{b+1}, v{b+3}
v_add_f32 v{b+4}, v{b+4}, v{b+6}
v_add_f32 v{b+5}, v{b+5}, v{b+7}
v_add_f32 v{b+8}, v{b+8}, v{b+10}
v_add_f32 v{b+9}, v{b+9}, v{b+11}
v_add_f32 v{b}, v{b}, v{b+4}
v_add_f32 v{b+1}, v{b+1}, v{b+5}
v_add_f32 v{b}, v{b}, v{b+8}
v_add_f32 v{b+1}, v{b+1}, v{b+9}
v_mov_b32 v{b+2}, v{b}
v_mov_b32 v{b+3}, v{b+1}
v_mov_b32 v{VONE}, 1
s_nop 0
v_permlane32_swap_b32 v{b}, v{b+2}
v_permlane32_swap_b32 v{b+1}, v{b+3}
v_mov_b32 v{VZ}, 0
v_add_f32 v{b}, v{b}, v{b+2}
v_add_f32 v{b+1}, v{b+1}, v{b+3}
v_mul_f32 v{b}, {inv}, v{b}
v_mul_f32 v{b+1}, {inv}, v{b+1}
v_fma_f32 v{b+1}, -v{b}, v{b}, v{b+1}
v_max_f32 v{b+1}, 0, v{b+1}
v_cvt_pk_bf16_f32 v{b+1}, v{b+1}, v{b+1}
v_and_b32 v{b+1}, 0xffff0000, v{b+1}
v_add_f32 v{b+1}, {hex(f2u(1e-5))}, v{b+1}
v_cvt_pk_bf16_f32 v{b+1}, v{b+1}, v{b+1}
v_and_b32 v{b+1}, 0xffff0000, v{b+1}
v_sqrt_f32 v{b+1}, v{b+1}
s_nop 0
v_cvt_pk_bf16_f32 v{b+1}, v{b+1}, v{b+1}
v_and_b32 v{b+1}, 0xffff0000, v{b+1}
v_rcp_f32 v{b}, v{b+1}
v_mul_f32 v{VS2}, v{b+1}, v{b+1}
v_mul_f32 v{VK1}, {hex(f2u(k1))}, v{b}
v_mul_f32 v{b+1}, v{b}, v{b}
v_mul_f32 v{b}, {hex(f2u(k2))}, v{b}
v_mul_f32 v{VK2}, v{b}, v{b+1}""".split("\n")
        chain(txt)
    spins = []; tails = []
    def poll_check(val, name):
        e.wait_vm(lambda t: t == "poll" + name)
        e(f"v_readfirstlane_b32 s{S_TMP}, v{VF}\ns_nop 1\ns_cmp_ge_u32 s{S_TMP}, {val}\ns_cbranch_scc0 K3_spin{name}\nK3_ret{name}:")
        spins.append((name, val))
    def gload(kind, fi):
        L = []
        base = S_GW if kind == "go" else S_GR
        if fi % 4 == 0: L.append((f"s_add_u32 s{S_XS}, s{base}, {fi*1024}", None))
        if kind == "go": dst = f"a[{GO+4*fi}:{GO+4*fi+3}]"
        elif fi < 12: dst = f"v[{GP+4*fi}:{GP+4*fi+3}]"
        elif fi < 16: dst = f"a[{GP3+4*(fi-12)}:{GP3+4*(fi-12)+3}]"
        else: dst = f"a[{GPS+4*(fi-16)}:{GPS+4*(fi-16)+3}]"
        L.append((f"buffer_load_dwordx4 {dst}, v{VL16}, s[{S_GX}:{S_GX+3}], s{S_XS} offen" + (f" offset:{(fi%4)*1024}" if fi % 4 else "") + (old if kind == "go" else gld), (kind, fi)))
        return L
    ldq = []
    ftxt = f"buffer_atomic_add v{VONE}, v{VLZ}, s[{S_FL}:{S_FL+3}], s{S_FW} offen sc1"
    gpoll = f"buffer_atomic_add v{VF}, v{VLZ}, s[{S_FL}:{S_FL+3}], s{S_FR} offen sc0 sc1"
    def flag_store(): e.vmem(ftxt, "flag")
    def poll_issue(name):
        e(f"v_mov_b32 v{VF}, 0"); e.vmem(gpoll, "poll" + name); return 3
    actions = {}
    def act1():
        e.wait_vm(lambda t: t and t[0] == "gs" and t[1] < 12); flag_store(); return 3
    actions[f0[0]] = lambda: poll_issue("Z")
    actions[f0[1]] = lambda: poll_check(1, "Z") or ldq.extend(gload("gp", fi) for fi in (0, 1, 2, 3, 16, 17)) or 5
    actions[f1[0]] = act1
    actions[f1[1]] = lambda: poll_issue("A")
    actions[f1[2]] = lambda: poll_check(2, "A") or ldq.extend(gload("gp", fi) for fi in range(4, 12)) or 5
    def act2pre():
        q.drain()
        while memq: pop_mem()
        return 1
    def act2():
        e.wait_vm(lambda t: t and t[0] == "gs"); flag_store(); return 2
    actions[f2[0]] = act2pre
    actions[f2[1]] = act2
    actions[f2[2]] = lambda: poll_issue("B")
    actions[f2[3]] = lambda: poll_check(3, "B") or ldq.extend(gload("gp", fi) for fi in range(12, 16)) or 5

    def apoll(sreg, val=0):
        return f"v_mov_b32 v{VF}, {val}\nbuffer_atomic_add v{VF}, v{VLZ}, s[{S_FL}:{S_FL+3}], s{sreg} offen sc0 sc1"
    if not fused:
        emit_early(); emit_early(); emit_early()
        e.wait_vm(lambda t: t == ("dma", 0))
        e("s_barrier")
        for m in range(LA): reads(m)
        emit_early(); emit_early()
    else:
        e(f"s_lshl_b32 s5, s{S_I}, 2\ns_add_u32 s5, s5, s{S_WV}\ns_lshl_b32 s24, s5, 8\ns_add_u32 s24, s24, {WS_FA}")
        e(f"v_cmp_eq_u32 vcc, 0, v2\nv_mov_b32 v{VONE}, 1\nv_mov_b32 v1, 0x40000000\nv_cndmask_b32_e64 v{VLZ}, v1, 0, vcc")
        tm.stamp(-10)
        e(f"s_waitcnt vmcnt({fused['nleft']})")
        tm.stamp("A0")
        e(f"s_cmp_lt_i32 s23, 0\ns_cbranch_scc1 K3_ns\nbuffer_atomic_add v{VONE}, v{VLZ}, s[{S_FL}:{S_FL+3}], s23 offen sc1\nK3_ns:")
        e("s_barrier")
        ps = fused.get("pre_stages", 2); nrem = 9*(4 - ps)
        LL = [(t, ("dma", st) if d else None) for st in (perm.index(3),) for t, d in dma_instrs(st)]
        k_ = [i for i, (t, d) in enumerate(LL) if d][na-1] + 1 if na else 0
        emit_list(LL[:k_])
        for m in range(LA): reads(m)
        e(f"""s_and_b32 s6, s{S_J}, 1
s_lshl_b32 s25, s5, 1
s_add_u32 s25, s25, s6
s_lshl_b32 s25, s25, 8
s_add_u32 s25, s25, {WS_FB}
s_lshr_b32 s7, s{S_J}, 1
s_mul_i32 s48, s7, 768
s_lshl_b32 s23, 1, s7
s_mul_i32 s4, s6, {18*1024}
s_add_u32 s48, s48, s4
s_add_u32 s48, s48, s{S_XO}
s_lshl_b32 s7, s7, 2
v_cmp_lt_u32 vcc, 31, v2
v_cmp_gt_u32 s[54:55], 48, v2
v_bfe_u32 v{T}, v2, 2, 3
v_mul_u32_u24 v{VPS}, 768, v{T}
v_lshrrev_b32 v{T}, 5, v2
v_lshl_add_u32 v{VPS}, v{T}, 6, v{VPS}
v_and_b32 v{T}, 3, v2
v_lshl_add_u32 v{VPS}, v{T}, 4, v{VPS}
v_lshrrev_b32 v{T}, 3, v2
v_bfe_u32 v{T+1}, v2, 2, 2
v_cndmask_b32_e64 v{T}, v{T}, v{T+1}, vcc
v_bfe_u32 v{T+1}, v2, 1, 2
v_bfe_u32 v{T+2}, v2, 1, 1
v_add_u32 v{T+2}, 4, v{T+2}
v_cndmask_b32_e64 v{T+1}, v{T+1}, v{T+2}, vcc
v_and_b32 v{T+2}, 1, v2
v_lshlrev_b32 v{VRA}, 4, v{T}
v_lshl_add_u32 v{VRA}, v{T+2}, 6, v{VRA}
v_lshl_add_u32 v{VRA}, v{T+1}, 7, v{VRA}
v_cndmask_b32 v{VRA}, v1, v{VL16 if lin else VRA}, s[54:55]
v_add_u32 v{T}, s7, v{T}
v_mul_u32_u24 v{T+3}, 1152, v{T}
v_lshl_add_u32 v{T+3}, v{T+2}, 4, v{T+3}
v_lshl_add_u32 v{T}, v{T+2}, 5, v{T}
v_lshlrev_b32 v{T}, 4, v{T}
v_cndmask_b32 v{T}, v1, v{T}, s[54:55]
v_cndmask_b32 v{T+3}, v1, v{T+3}, s[54:55]
s_mul_i32 s7, s6, 20
v_add_u32 v{T+1}, s7, v{T+1}
s_mul_i32 s6, s6, -18
s_add_u32 s6, s6, 12
v_mov_b32 v1, s6""" + "".join(f"""
v_cndmask_b32_e64 v{T+2}, {4*g}, {('v1' if g == 2 else 8 + 2*g)}, vcc
v_add_u32 v{T+2}, v{T+2}, v{T+1}
v_lshl_add_u32 v{VRH+g}, v{T+2}, 10, v{T}
v_lshl_add_u32 v{VRO+g}, v{T+2}, 5, v{T+3}""" for g in range(3)))
        if loc:
            LOC = 4*SLOT
            e(f"s_lshr_b32 s23, s{S_J}, 1\nv_bfe_u32 v{T}, v2, 2, 3\nv_cmp_eq_u32 vcc, s23, v{T}\ns_mul_i32 s4, s23, 768\ns_mul_i32 s7, s{S_WV}, 2304\ns_add_u32 s7, s7, {LOC}\ns_sub_u32 s4, s7, s4")
            e(f"v_add_u32 v{T}, s4, v{VPS}\nv_mov_b32 v{T+1}, 0x30000\nv_mov_b32 v{T+2}, 0x40000000\nv_cndmask_b32 v{V3}, v{T+1}, v{T}, vcc\nv_add_u32 v{VONE+1}, s7, v{VRA}\nv_cndmask_b32 v{VPS}, v{VPS}, v{T+2}, vcc")
        if tlb:
            e(f"v_min_u32 v{V3}, 7, v2\ns_mov_b32 s4, {ACT_BYTES}\nv_mul_lo_u32 v{V3}, v{V3}, s4\ns_add_u32 s4, s48, {WS_PART}\nv_add_u32 v{V3}, s4, v{V3}\nv_cmp_lt_u32 vcc, 7, v2\nv_mov_b32 v{T}, s{S_GR}\ns_add_u32 s100, s26, s{S_XO}\nv_cndmask_b32 v{V3}, v{V3}, v{T}, vcc\ns_addc_u32 s101, s27, 0")
            for m_ in tlb:
                actions[m_] = lambda: e.vmem(f"buffer_load_dword v1, v{V3}, s[{S_HC}:{S_HC+3}], 0 offen", "tl") and 2
                actions[m_ + 2] = lambda: e.vmem(f"global_load_dword v1, v{VZ}, s[100:101]", "tl") and 2
        if ctouch:
            e(f"s_getpc_b64 s[6:7]\nK3_pc:\ns_add_u32 s6, s6, K3_pdA-K3_pc\ns_addc_u32 s7, s7, 0\ns_lshr_b32 s4, s2, 3\ns_lshl_b32 s4, s4, 2\ns_add_u32 s4, s4, s{S_WV}\ns_lshl_b32 s4, s4, 8")
            e(f"v_and_b32 v2, 1, v2\nv_lshlrev_b32 v2, 7, v2\nv_add_u32 v2, s4, v2\nv_min_u32 v2, KB_last-K3_pdA, v2")
        tm.stamp("A1")
        e(apoll(24))
        emit_list(LL[k_:])
        rd = f"v_readfirstlane_b32 s5, v{VF}\ns_nop 1"
        e(f"s_waitcnt vmcnt({nrem-na})\n{rd}\ns_cmp_ge_u32 s5, 12\ns_cbranch_scc1 K3_pdA\nK3_plA:\n{apoll(24)}\ns_waitcnt vmcnt(0)\n{rd}")
        e(f"s_cmp_ge_u32 s5, 12\ns_cbranch_scc1 K3_pdA\ns_cmp_lg_u32 s5, 0\ns_cbranch_scc1 K3_plA\ns_sleep {slp}\ns_branch K3_plA\nK3_pdA:")
        tm.stamp(-11)
        e.vm = [("dma", perm.index(k//9)) for k in range(36)]; e.vm_done = 9*ps + na
        for _ in range(8): emit_early()
        for m_ in ctouch:
            actions[m_] = lambda: e.vmem(f"global_load_dword v1, v2, s[6:7]", "ct") and 2
        HR = OLD + 48
        def hl(k):
            if k == 0: e(f"s_add_u32 s{S_XS}, s{S_XO}, {WS_HT}")
            e.vmem(f"buffer_load_dwordx4 a[{HA+4*k}:{HA+4*k+3}], v{VRH+k}, s[{S_HC}:{S_HC+3}], s{S_XS} offen sc0 sc1", "h"); return 2
        for k in range(3): actions[hpre + hsp*k] = (lambda k=k: hl(k))
        PBR = [ACC, GP, OLD]
        sj = lambda j: [28, 29, 30, 32, 33, 38, 39, 21][j]
        def sjinit(j): e(f"s_add_u32 s{sj(j)}, s48, {WS_PART + j*ACT_BYTES}"); return 1
        if not loc:
            for j in range(NPART): actions[896 + 2*j] = (lambda j=j: sjinit(j))
        actions[914] = lambda: e(f"v_add_u32 v{V1}, 6144, v{VRA}\nv_add_u32 v{V1+1}, 12288, v{VRA}") or 2
        actions[916] = lambda: e(f"v_mov_b32 v{V1+2}, 0x100") or 1
        vra = [VRA, V1, V1 + 1]
        def pload(k, j):
            r = PBR[k] + 4*j
            return [(f"buffer_load_dwordx4 v[{r}:{r+3}], v{vra[k]}, s[{S_HC}:{S_HC+3}], s{sj(j)} offen{plf}", (k, j))]
        def sigB(g):
            assert sum(1 for t in e.vm if t == ("store", g)) == 6
            e.wait_vm(lambda t: t == ("store", g))
            e.vmem(f"buffer_atomic_add v{VONE if g == 0 else V1+2}, v{VLZ}, s[{S_FL}:{S_FL+3}], s25 offen sc1", "flag"); return 3
        def chk(g): return f"s_bfe_u32 s4, s5, {hex(8*g | 0x80000)}\ns_cmp_eq_u32 s4, 8"
        def pollB():
            e(f"v_mov_b32 v{VF}, 0"); e.vmem(f"buffer_atomic_add v{VF}, v{VLZ}, s[{S_FL}:{S_FL+3}], s25 offen sc0 sc1", "plb"); return 3
        def checkB(g):
            e.wait_vm(lambda t: t == "plb")
            e(f"{rd}\n{chk(g)}\ns_cbranch_scc0 K3_S{g}\nK3_R{g}:")
            tails.append(f"K3_S{g}:\n{apoll(25)}\ns_waitcnt vmcnt(0)\n{rd}\n{chk(g)}\ns_cbranch_scc0 K3_S{g}\ns_branch K3_R{g}")
            ldq.extend(pload(g, j) for j in range(NPART)); return 5
        if dyn == 2:
            for k_ in list(actions):
                if 896 <= k_ <= 916: del actions[k_]
            actions[850] = lambda: e(f"s_lshl_b32 s22, 1, s23\nv_mov_b32 v{V1}, s22") or 2
            actions[852] = lambda: e(f"v_lshlrev_b32 v{V1+1}, 8, v{V1}\nv_lshlrev_b32 v{VF}, 16, v{V1}") or 2
            actions[854] = lambda: e(f"v_mov_b32 v{V1+3}, 0" + ("" if sig0 else f"\nv_or_b32 v{V1+1}, v{V1+1}, v{V1}")) or 2
            def sigD():
                assert sum(1 for t in e.vm if t == ("store", 0)) == 6
                e.wait_vm(lambda t: t == ("store", 0))
                e.vmem(f"buffer_atomic_add v{V1}, v{VLZ}, s[{S_FL}:{S_FL+3}], s25 offen sc1", "sx"); return 3
            if sig0: actions[sig0] = sigD
            actions[pl0] = lambda: e.vmem(f"buffer_atomic_add v{V1+3}, v{VLZ}, s[{S_FL}:{S_FL+3}], s25 offen sc0 sc1", "s0") and 2
        elif dyn:
            for k_ in list(actions):
                if 896 <= k_ <= 916: del actions[k_]
            actions[850] = lambda: e(f"v_mov_b32 v{V1}, s23\ns_add_u32 s48, s48, {WS_PART}") or 2
            actions[852] = lambda: e(f"v_lshlrev_b32 v{V1+1}, 8, v{V1}\nv_lshlrev_b32 v{VF}, 16, v{V1}") or 2
            def sigD():
                assert sum(1 for t in e.vm if t == ("store", 0)) == 6
                e.wait_vm(lambda t: t == ("store", 0))
                e.vmem(f"buffer_atomic_add v{V1}, v{VLZ}, s[{S_FL}:{S_FL+3}], s25 offen sc0 sc1", "s0"); return 3
            actions[sig0] = sigD
        elif sig0: actions[sig0] = lambda: sigB(0)
        if sig1: actions[sig1] = lambda: sigB(1)
        if pol0:
            actions[pol0[0]] = pollB; actions[pol0[1]] = lambda: checkB(0)
    lastm = {}
    e.wait_lg(lambda t: t <= 3)
    B0, B1, HD = 208, 640, hd
    st8 = dict(dmaq=[], dma_st=None, stats=False, lastld=-100, qempty=None)
    godone = {}
    def moves(p):
        prev = None
        for i in range(16):
            prev = q.add(Op(f"v_accvgpr_write_b32 a{GO+16*p+i}, v{GT+i}", deps=[(prev, 0)] if prev else []))
            godone.setdefault(4*p + i//4, []).append(prev)
        return prev
    def dma_due(m, mr, left, dmaq):
        if front and m >= front: return not dmaq[0][1] or mr % 2 == 1 or len(dmaq) >= left
        if (m < B0 and not dsp0) or dsp == 0: return mr % 2 == 1 or len(dmaq) >= left//2 + 1
        if len(dmaq) >= left: return True
        nd = sum(1 for _, isd in dmaq if isd)
        if not dmaq[0][1]:
            return nd == 0 or left <= (nd - 1)*dsp + dtail + 2
        return left <= (nd - 1)*dsp + dtail
    def gap(m, inbody, fillall=False):
        d = M[m]
        dmaq = st8["dmaq"]
        deps = []
        if d["xs"] is not None and m < B0:
            while not any(t == ("x", d["xs"]) for t in e.vm): emit_early()
            e.wait_vm(lambda t: t == ("x", d["xs"]))
        if d["ph"] == 2:
            kind, fi = d["gsrc"]
            if kind == "cv":
                for o in gdone[fi]:
                    if o.pos is None: q.drain_until(o)
                    deps.append((o, 2))
            elif kind == "gp":
                while not any(t == (kind, fi) for t in e.vm):
                    assert ldq, (m, kind, fi)
                    emit_list(ldq.pop(0))
                e.wait_vm(lambda t: t == (kind, fi))
        if d["dst"]:
            for o in oldbusy.get(d["dst"], []):
                if o.pos is None: q.drain_until(o)
            oldbusy[d["dst"]] = []
        fr = FR + 4*(m % 12)
        cs = "0" if d["first"] else rng(d["acc"])
        mo = e.op(Op(f"v_mfma_f32_32x32x16_bf16 {rng(d['dst'] or d['acc'])}, a[{fr}:{fr+3}], {d['b']}, {cs}", deps=deps))
        used = 0
        if timing and not fillall: tm.stamp(m) if fused else (tm.stamp(STAMPS.index(m)) if m in STAMPS else None)
        if d["last"]:
            if d["ph"] == 1:
                lastm[(d["unit"], d["mat"])] = mo
                if d["mat"] == 1:
                    a = int((d["dst"] or d["acc"])[1:])
                    pend_gelu.append((d["unit"], a - 16, a, lastm[(d["unit"], 0)], mo))
            else:
                add_out(d["tile"], d["acc"], mo)
        if not fillall:
            while pend_gelu: add_gelu(*pend_gelu.pop(0), inbody)
        mr = m + LA
        isbar = mr < NM and mr % 36 == 0
        early_bar = barpos and (mr % 144 != 72 or mr < 216 or mr > 648)
        if isbar:
            st = mr // 36
            assert not dmaq
            if not early_bar:
                if e.wait_vm(lambda t: t == ("dma", st) or (mix and st == 1 and t == ("dma", 2))): used += 1
                e("s_barrier"); used += 2
            else: isbar = False
            if 4 <= st + 2 < NST:
                dmaq.extend(dma_instrs(st + 2, inbody)); st8["dma_st"] = st + 2
        if mr < NM:
            reads(mr); used += 2
        if barpos == 2 and (mr + 2) % 36 == 0 and mr + 2 < NM and not dmaq:
            if e.wait_vm(lambda t: t == ("dma", (mr + 2)//36)): used += 1
        if barpos and (mr + 1) % 36 == 0 and mr + 1 < NM and ((mr + 1) % 144 != 72 or mr + 1 < 216 or mr + 1 > 648):
            while dmaq:
                t, isd = dmaq.pop(0)
                if isd: e.vmem(t, ("dma", st8["dma_st"]))
                else: e(t)
            if bfill: q.fill(bfill)
            if (m + 1) % 4 == 0: e.wait_lg(lambda t: t <= m + 4)
            e.wait_vm(lambda t: t == ("dma", (mr + 1)//36))
            e("s_barrier")
            if m in actions: actions[m]()
            return
        if not isbar and not fillall:
            early_dma = any(tag and tag[0] == "dma" for _, L in early for _, tag in L)
            left = 35 - mr % 36
            if m < B0 and not dsp0 and dmaq and not early_dma and not dmaq[0][1]:
                while dmaq and not dmaq[0][1]:
                    e(dmaq.pop(0)[0]); used += 1
                if early and early[0][0] - lead <= m: used += emit_early()
            elif early and (early[0][0] - lead <= m or (early_dma and dmaq)) and not (dmaq and not early_dma and len(dmaq) >= left - 2):
                used += emit_early()
            elif dmaq and not early_dma and dma_due(m, mr, left, dmaq) and not (m in actions and len(dmaq) < left):
                t, isd = dmaq.pop(0)
                if isd: e.vmem(t, ("dma", st8["dma_st"])); used += vcost
                else: e(t); used += 1
            elif m in actions:
                pass
            elif wdpf and B0 <= m < B1 and (m - B0) % 144 == 68:
                e.vmem(f"buffer_load_dword v1, v{VPF}, s[{S_WD}:{S_WD+3}], s{S_PF} offen", "pf")
                e(f"s_add_u32 s{S_PF}, s{S_PF}, {14*128}"); used += 1 + vcost
            elif front and m >= front and m < 864 and dmaq:
                pass
            elif mem_ready():
                used += pop_mem() + vcost - 1
            elif ldq and m - st8["lastld"] >= (ldpace if m < f2[3] else 2):
                used += emit_list(ldq.pop(0)) + vcost - 1; st8["lastld"] = m
        if m in actions and not fillall:
            used += actions[m]()
        if not st8["stats"] and sum(1 for t in e.vm if t == "st") == 6 and m >= stat:
            stats_ops(); st8["stats"] = True
        needwait = (m + 1) % 4 == 0 and m + 1 < NM
        bud = (bud2 if B1 <= m < f2[0] else (bud0 if m < B0 else budget)) - used - (1 if needwait else 0)
        if B0 <= m < B1:
            rem = sum(o.cost for o in q.q); gl = 144 - (m - B0) % 144
            if rem > slack*gl: bud += 1
        if fillall: bud += 1
        if bud > 0: q.fill(bud)
        if m > 650 and not q.q and st8["qempty"] is None: st8["qempty"] = m
        if needwait: e.wait_lg(lambda t: t <= m + 4)
    pend_gelu = []
    def endpair():
        q.drain()
        while memq: pop_mem()
        assert not st8["dmaq"]
    def head(m0, p, extra=""):
        if p >= 0:
            chain(f"s_add_u32 s{S_GO}, s{S_GO}, 4096\n" + extra)
            moves(p)
        for m in range(m0, m0 + HD): gap(m, True, fillall=True)
        q.drain()
    lastS = max(st for st, x in enumerate(ST1) if x[0] == "S")
    actions[36*(lastS - 1) - LA + 2] = lambda: chain([f"v_mov_b32 v{VB+i}, v{V1+i}" for i in range(9)]) and 0
    mb = B1 - 144
    def seed():
        e.vm = [("dma", 14)]*9 + [("dma", 15)]*9; e.vm_done = 0
        e.lg = [mb + k//2 for k in range(16)]; e.lg_done = 8
        st8["dmaq"].clear(); pend_gelu.clear()
    sv = (e.lines, e.vm, e.vm_done, e.lg, e.lg_done, q.q); e.lines = []; q.q = []
    ev = [f"v_mov_b32 v{VB+i}, v{VE+i}" for i in range(3)] + [f"v_add_u32 v{VB+3+i}, {8*1152}, v{VE+i}" for i in range(3)] + \
         [f"v_add_u32 v{VB+6+i}, 384, v{r_}" for i, r_ in enumerate((VE, VP1, VS))]
    for p, extra in ((0, ""), (1, f"s_mov_b32 s{S_B0}, s{S_OWN}\n" + ev[0] + f"\ns_add_u32 s{S_B1}, s{S_OWN}, {64*1152}\n" + "\n".join(ev[1:4]) +
                      f"\ns_mov_b64 s[{S_W2}:{S_W2+1}], s[{S_WD}:{S_WD+1}]\n" + "\n".join(ev[4:7]) + f"\ns_mov_b32 s{S_W2+2}, s{S_WD+2}\n" + "\n".join(ev[7:]))):
        e(f"K3_head{p}:")
        tm.stamp(-1-p)
        seed(); head(mb, p, extra)
        if p == 1: e(ftxt)
        e("s_branch K3_body")
    side_lines = e.lines
    e.lines, e.vm, e.vm_done, e.lg, e.lg_done, q.q = sv
    st8["dmaq"].clear(); pend_gelu.clear(); chl[0] = None
    for m in range(B0): gap(m, False)
    assert not early and not st8["dmaq"]
    e.wait_vm(lambda t: t and t[0] == "x")
    seed(); head(mb, -1)
    k_vm = len(e.vm)
    while memq: pop_mem()
    e.vm = e.vm[:k_vm]
    e(".p2align 3\nK3_body:")
    tstate["last"] = [None, None]
    actions[mb + 40] = lambda: e(f"s_add_u32 s{S_CNT}, s{S_CNT}, 1") or 1
    for m in range(mb + HD, B1): gap(m, True)
    endpair()
    e(f"s_cmp_eq_u32 s{S_CNT}, 1\ns_cbranch_scc1 K3_head0\ns_cmp_eq_u32 s{S_CNT}, 2\ns_cbranch_scc1 K3_head1")
    chain(f"s_add_u32 s{S_GO}, s{S_GO}, 4096")
    lastmv = moves(2)
    tstate["last"] = [lastmv, lastmv]
    for m in range(B1, NM): gap(m, False)
    while q.q or memq:
        if mem_ready(): pop_mem()
        else: q.drain_until(q.q[0])
    if fused:
        tm.stamp(-12)
        while ldq: emit_list(ldq.pop(0))
        if sig1: pollB()
        srd(e, S_W, 26, ACT_BYTES)
        e(f"v_mov_b32 v14, 0x3f80\nv_mov_b32 v15, 0x3f800000\ns_mov_b32 s54, 0xaaaaaaaa\ns_mov_b32 s55, 0xaaaaaaaa")
        for i in range(12): e(f"v_accvgpr_read_b32 v{HR+i}, a{HA+i}")
        if loc:
            e(f"s_add_u32 s48, s48, {WS_PART}")
            for j in range(1, NPART): e(f"s_add_u32 s4, s23, {j}\ns_and_b32 s4, s4, 7\ns_mul_i32 s4, s4, {ACT_BYTES}\ns_add_u32 s{sj(j)}, s48, s4")
        def loads(k):
            if loc: e(f"ds_read_b128 v[{PBR[k]}:{PBR[k]+3}], v{VONE+1} offset:{768*k}")
            for j in range(1 if loc else 0, NPART): emit_list(pload(k, j))
        AC = 28
        def red(k, lds=False):
            H = HR + 4*k; O_ = 16 + 4*k
            for j in range(NPART):
                if lds: e.wait_lg(lambda t: t == j)
                elif loc and j == 0: e("s_waitcnt lgkmcnt(0)")
                else: e.wait_vm(lambda t: t == (k, j))
                for d in range(4):
                    r = (ACC if lds else PBR[k]) + 4*j + d
                    if j == 0: e(f"v_lshlrev_b32 v{AC+2*d}, 16, v{r}\nv_and_b32 v{AC+1+2*d}, 0xffff0000, v{r}")
                    else: e(f"v_dot2c_f32_bf16 v{AC+2*d}, v{r}, v14\nv_dot2c_f32_bf16 v{AC+1+2*d}, v{r}, v15")
            e("s_nop 1")
            for d in range(4): e(f"v_cvt_pk_bf16_f32 v{O_+d}, v{AC+2*d}, v{AC+1+2*d}")
            for d in range(4): e(f"v_lshlrev_b32 v{AC+2*d}, 16, v{H+d}\nv_and_b32 v{AC+1+2*d}, 0xffff0000, v{H+d}")
            for d in range(4): e(f"v_dot2c_f32_bf16 v{AC+2*d}, v{O_+d}, v14\nv_dot2c_f32_bf16 v{AC+1+2*d}, v{O_+d}, v15")
            e("s_nop 1")
            for d in range(4): e(f"v_cvt_pk_bf16_f32 v{O_+d}, v{AC+2*d}, v{AC+1+2*d}")
            e("s_nop 0")
            for d in range(4): e(f"v_mov_b32_dpp v{AC+d}, v{O_+d} quad_perm:[1,0,3,2] row_mask:0xf bank_mask:0xf")
            for d in range(2): e(f"v_cndmask_b32 v{O_+d}, v{O_+d}, v{AC+2+d}, s[54:55]\nv_cndmask_b32 v{O_+2+d}, v{AC+d}, v{O_+2+d}, s[54:55]")
        def ostore(k):
            e.vmem(f"buffer_store_dwordx4 v[{16+4*k}:{19+4*k}], v{VRO+k}, s[{S_W}:{S_W+3}], s{S_XO} offen{of}", "o")
        if dyn == 2:
            assert loc
            S_DN, S_NW, S_RD, S_LB, S_OW, S_BG = 28, 34, 36, 37, 49, 50
            bk = lambda k: [None, 40, 41, 42, 43, 51, 52, 53][k]
            for k in range(1, 8): e(f"s_add_u32 s{bk(k)}, s23, {k}\ns_and_b32 s{bk(k)}, s{bk(k)}, 7")
            e(f"s_mul_i32 s{S_LB}, s{S_WB}, 3\ns_mul_i32 s{S_OW}, s22, 0x10101\ns_mov_b32 s{S_DN}, s{S_OW}\ns_mov_b32 s{S_RD}, 0\ns_mov_b32 s{S_BG}, 0x40000000\ns_add_u32 s56, s{S_LB}, 24576")
            e(f"v_cmp_gt_u32 vcc, 0x300, v{VL16}\nv_mov_b32 v1, 0x40000000\nv_add_u32 v{VRA}, s{S_LB}, v{VRA}\nv_cndmask_b32 v4, v1, v{VL16}, vcc\nv_add_u32 v5, 6144, v4\nv_add_u32 v6, 12288, v4")
            def grp_sweep(g):
                e(f"s_lshr_b32 s4, s{S_NW}, {8*g}")
                for k in range(1, 8):
                    e(f"s_add_u32 s6, s{S_LB}, {(8*g + k)*1024}\ns_bitcmp1_b32 s4, s{bk(k)}\ns_cselect_b32 m0, s6, s56\ns_cselect_b32 s7, s{sj(k)}, s{S_BG}")
                    e(f"buffer_load_dwordx4 v{4+g}, s[{S_HC}:{S_HC+3}], s7 offen sc0 sc1 lds")
            e.wait_vm(lambda t: t == "s0")
            e(f"v_readfirstlane_b32 s{S_NW}, v{V1+3}\ns_barrier\ns_and_b32 s{S_NW}, s{S_NW}, {hex((1 << (8*K1)) - 1)}\ns_or_b32 s{S_DN}, s{S_DN}, s{S_NW}")
            for g in range(K1):
                grp_sweep(g); e.vm += ["f"]*7
            e.wait_vm(lambda t: t == ("store", 1))
            e.vmem(f"buffer_atomic_add v{V1+1}, v{VLZ}, s[{S_FL}:{S_FL+3}], s25 offen sc1", "s1")
            e.wait_vm(lambda t: t == ("store", 2))
            e.vmem(f"buffer_atomic_add v{VF}, v{VLZ}, s[{S_FL}:{S_FL+3}], s25 offen sc0 sc1", "s2")
            tm.stamp("B0")
            e(f"K3_T:\ns_waitcnt vmcnt(0)\nv_readfirstlane_b32 s{S_NW}, v{VF}\nv_mov_b32 v{VF}, 0\ns_nop 0\ns_andn2_b32 s{S_NW}, s{S_NW}, s{S_DN}\ns_cbranch_scc0 K3_G3\ns_or_b32 s{S_DN}, s{S_DN}, s{S_NW}")
            e(f"s_and_b32 s4, s{S_NW}, 0xffff\ns_cbranch_scc0 K3_G2\ns_and_b32 s4, s{S_NW}, 0xff\ns_cbranch_scc0 K3_G1")
            for g in range(3):
                grp_sweep(g); e(f"K3_G{g+1}:")
            e(f"buffer_atomic_add v{VF}, v{VLZ}, s[{S_FL}:{S_FL+3}], s25 offen sc0 sc1\ns_andn2_b32 s57, s{S_DN}, s{S_RD}")
            for g in range(3):
                e(f"s_bfe_u32 s4, s57, {hex(8*g | 0x80000)}\ns_cmp_eq_u32 s4, 0xff\ns_cbranch_scc0 K3_N{g}\ns_or_b32 s{S_RD}, s{S_RD}, {hex(0xff << (8*g))}")
                e.lg = []; e.lg_done = 0
                e.ds(f"ds_read_b128 v[{ACC}:{ACC+3}], v{VONE+1} offset:{768*g}", 0)
                e(f"s_waitcnt vmcnt({15 - 7*g})")
                tm.stamp(["B1", "B2", -13][g])
                for j in range(1, NPART): e.ds(f"ds_read_b128 v[{ACC+4*j}:{ACC+4*j+3}], v{VRA} offset:{(8*g + j)*1024}", j)
                red(g, lds=True)
                e(f"K3_N{g}:")
            e(f"s_cmp_lg_u32 s{S_RD}, 0xffffff\ns_cbranch_scc1 K3_T")
            ostore(0); ostore(1); ostore(2)
        elif dyn:
            S_DN, S_NW, S_LD, S_RD, S_LB, S_OW = 28, 29, 32, 33, 38, 39
            dtx = f"buffer_load_dwordx4 v{V1+2}, s[{S_HC}:{S_HC+3}], s21 offen sc0 sc1 lds"
            def pick(): return f"s_ff1_i32_b32 s4, s{S_NW}\ns_bitset0_b32 s{S_NW}, s4\ns_bitset1_b32 s{S_DN}, s4\ns_and_b32 s6, s4, 7\ns_mul_i32 s6, s6, {ACT_BYTES}\ns_lshr_b32 s7, s4, 3\ns_mul_i32 s7, s7, 6144\ns_lshl_b32 s4, s4, 10\ns_add_u32 m0, s{S_LB}, s4\ns_add_u32 s21, s6, s7\ns_add_u32 s21, s21, s48"
            e(f"s_mul_i32 s{S_LB}, s{S_WV}, 25600\ns_mul_i32 s{S_OW}, s23, 0x10101\ns_mov_b32 s{S_DN}, 0\ns_mov_b32 s{S_RD}, 0")
            e(f"v_cmp_gt_u32 vcc, 0x300, v{VL16}\nv_mov_b32 v1, 0x40000000\nv_add_u32 v{VRA}, s{S_LB}, v{VRA}\nv_cndmask_b32 v{V1+2}, v1, v{VL16}, vcc")
            e.wait_vm(lambda t: t == "s0")
            e(f"v_readfirstlane_b32 s{S_NW}, v{V1}\ns_mov_b32 s22, {K1}\ns_barrier\ns_or_b32 s{S_NW}, s{S_NW}, s23")
            if K1:
                e(f"K3_F:\ns_add_u32 m0, s{S_LB}, 24576\ns_mov_b32 s21, 0x40000000\ns_cmp_eq_u32 s{S_NW}, 0\ns_cbranch_scc1 K3_F1\n{pick()}\nK3_F1:\n{dtx}\ns_sub_u32 s22, s22, 1\ns_cmp_lg_u32 s22, 0\ns_cbranch_scc1 K3_F")
                e.vm += ["f"]*K1
            e.wait_vm(lambda t: t == ("store", 1))
            e.vmem(f"buffer_atomic_add v{V1+1}, v{VLZ}, s[{S_FL}:{S_FL+3}], s25 offen sc1", "s1")
            e.wait_vm(lambda t: t == ("store", 2))
            e.vmem(f"buffer_atomic_add v{VF}, v{VLZ}, s[{S_FL}:{S_FL+3}], s25 offen sc0 sc1", "s2")
            tm.stamp("B0")
            e(f"K3_T:\ns_waitcnt vmcnt(0)\ns_mov_b32 s{S_LD}, s{S_DN}\ns_cmp_eq_u32 s{S_DN}, 0xffffff\ns_cbranch_scc1 K3_T2")
            e(f"v_readfirstlane_b32 s{S_NW}, v{VF}\ns_nop 1\ns_or_b32 s{S_NW}, s{S_NW}, s{S_OW}\ns_andn2_b32 s{S_NW}, s{S_NW}, s{S_DN}\ns_cbranch_scc0 K3_T1")
            e(f"K3_W:\n{pick()}\n{dtx}\ns_cmp_lg_u32 s{S_NW}, 0\ns_cbranch_scc1 K3_W\ns_cmp_eq_u32 s{S_DN}, 0xffffff\ns_cbranch_scc1 K3_T2")
            e(f"K3_T1:\n" + (f"s_sleep {tsl}\n" if tsl else "") + f"{apoll(25)}\nK3_T2:\ns_andn2_b32 s{S_LD}, s{S_LD}, s{S_RD}")
            for g in range(3):
                e(f"s_bfe_u32 s4, s{S_LD}, {hex(8*g | 0x80000)}\ns_cmp_eq_u32 s4, 0xff\ns_cbranch_scc0 K3_N{g}\ns_or_b32 s{S_RD}, s{S_RD}, {hex(0xff << (8*g))}")
                tm.stamp(["B1", "B2", -13][g])
                e.lg = []; e.lg_done = 0
                for j in range(NPART): e.ds(f"ds_read_b128 v[{ACC+4*j}:{ACC+4*j+3}], v{VRA} offset:{(8*g + j)*1024}", j)
                red(g, lds=True)
                e(f"K3_N{g}:")
            e(f"s_cmp_lg_u32 s{S_RD}, 0xffffff\ns_cbranch_scc1 K3_T")
            ostore(0); ostore(1); ostore(2)
    if fused and not dyn:
        if not sig0: sigB(0)
        e(f"v_mov_b32 v1, 0x10000")
        own = 0x10000
        if not sig1:
            e(f"v_mov_b32 v{VF}, 0x100"); own = 0x10100
            e.wait_vm(lambda t: t == ("store", 1))
            e.vmem(f"buffer_atomic_add v{VF}, v{VLZ}, s[{S_FL}:{S_FL+3}], s25 offen sc0 sc1", "plb")
        e.wait_vm(lambda t: t == ("store", 2))
        e.vmem(f"buffer_atomic_add v1, v{VLZ}, s[{S_FL}:{S_FL+3}], s25 offen sc0 sc1", "pl2")
        tm.stamp("B0")
        e.wait_vm(lambda t: t == "plb")
        e(f"{rd}\ns_add_u32 s5, s5, {hex(own)}")
        g0 = 1 if pol0 else 0
        if xp: e("v_mov_b32 v4, 0\nv_mov_b32 v5, 0")
        def younger(tag): return len(e.vm) - 1 - max(i for i, t in enumerate(e.vm) if t == tag)
        for g in range(g0, 3):
            e(chk(g) + f"\ns_cbranch_scc1 K3_L{g}")
            for tag, r_, add in [("pl2", 1, 0x10000)] + [(t_, r2, 0) for t_, r2 in (("xa", 4), ("xb", 5)) if t_ in e.vm]:
                e(f"s_waitcnt vmcnt({younger(tag)})\nv_readfirstlane_b32 s7, v{r_}\ns_nop 1\n" + (f"s_add_u32 s7, s7, {hex(add)}\n" if add else "") + f"s_max_u32 s5, s5, s7\n{chk(g)}\ns_cbranch_scc1 K3_L{g}")
            e(f"K3_P{g}:\n{apoll(25)}\ns_waitcnt vmcnt(0)\n{rd}\n{chk(g)}\ns_cbranch_scc0 K3_P{g}\nK3_L{g}:")
            tm.stamp(["B1", "B2", -13][g])
            if loc: e(f"ds_read_b128 v[{PBR[g]}:{PBR[g]+3}], v{VONE+1} offset:{768*g}")
            for j in range(1 if loc else 0, NPART):
                emit_list(pload(g, j))
                if xp and g < 2 and j == xp[g]:
                    e.vmem(f"buffer_atomic_add v{4+g}, v{VLZ}, s[{S_FL}:{S_FL+3}], s25 offen sc0 sc1", "xa" if g == 0 else "xb")
            if g == 1 and pol0: red(0)
        if not pol0: red(0)
        ostore(0); red(1); ostore(1); red(2); ostore(2)
    tm.end("K3_end")
    e("K3_end:\ns_endpgm")
    e.lines += side_lines
    for name, val in spins:
        e(f"""K3_spin{name}:
v_mov_b32 v{VF}, 0
{gpoll}
s_waitcnt vmcnt(0)
v_readfirstlane_b32 s{S_TMP}, v{VF}
s_nop 1
s_cmp_ge_u32 s{S_TMP}, {val}
s_cbranch_scc0 K3_spin{name}
s_branch K3_ret{name}""")
    for t_ in tails: e(t_)
    if fused: e("KB_last:\ns_endpgm")
    e(f"; gelu queue empty at gap {st8['qempty']}")
    return e.text()
if __name__ == "__main__":
    t = gen_k3()
    print(t)
```

```python
from sched import *
from layout import *
from k3 import srd, f2u
from k1 import mask64, smask, ln_stats2, code_prefetch, slice_of_xcd, BIG, LBIG, L2E, LN2
SLOT = 36864
KVB = 110592
S_WS_ = 8; S_W = 12; S_WO = 16; S_X = 20; S_DBG = 24
S_I = 28; S_G = 29; S_KV = 30; S_XO = 31; S_RT = 32; S_CG = 33; S_WV = 34; S_WB = 35; S_WF = 36; S_WOO = 37; S_WL = 38; S_SIG = 39
VWO = 5
WSL = (1, 2, 0)

def gen_f1(e, tm, F, C=2, prefetch=True, cpf=True, gate_at=(6, 7), wp=30, pf1=(0, 5, 4), xt=5, dper=4, xpre=0, wsp=12, wlate=False, w7=6, w8=15, lper=4, nl=3, stl=0, idle=1, xpro=3, al=1):
    W = f"s[{S_WS_}:{S_WS_+3}]"
    AB = 12; T = 20; ONES = 24; PV = 24; CSV = 44; RSV = 80; PK = 54; ACC = 116; TT = 188
    VX = 204; VW = 208; WA = 216; GA = 230; ZB = 236
    XF = 0; WF = 16
    e("s_cmp_ge_u32 s2, 256\ns_cbranch_scc1 K3_end")
    e("s_load_dwordx4 s[40:43], s[0:1], 0\ns_load_dwordx4 s[44:47], s[0:1], 64\ns_load_dwordx2 s[48:49], s[0:1], 16")
    e(f"v_lshrrev_b32 v1, 6, v0\nv_and_b32 v2, 63, v0\ns_nop 0\nv_readfirstlane_b32 s{S_WV}, v1")
    if cpf:
        e(f"s_lshr_b32 s6, s2, 3\ns_lshl_b32 s6, s6, 10\nv_lshrrev_b32 v3, 5, v0")
        code_prefetch(e, "F_pc", "F_pc", "F_k2", 3, 252, 6)
    tm.start()
    e(f"""s_cmp_lt_u32 s2, 64
s_cbranch_scc1 F_spare
s_lshr_b32 s4, s2, 3
s_and_b32 s3, s2, 7
s_sub_u32 s4, s4, 8
s_lshr_b32 s5, s3, 1
s_lshl_b32 s5, s5, 2
s_and_b32 s6, s4, 3
s_add_u32 s{S_I}, s5, s6
s_lshr_b32 s4, s4, 2
s_and_b32 s3, s3, 1
s_lshl_b32 s5, s3, 2
s_add_u32 s5, s5, s4
s_lshl_b32 s6, s3, 1
s_add_u32 s6, s6, s4
s_sub_u32 s6, s6, 4
s_cmp_lt_u32 s4, 4
s_cselect_b32 s{S_G}, s5, s6
s_cselect_b32 s{S_KV}, 1, 0""")
    e(f"v_lshrrev_b32 v3, 3, v2\nv_and_b32 v{T}, 7, v2\nv_lshrrev_b32 v{T+1}, 1, v3\nv_xor_b32 v{T}, v{T}, v{T+1}")
    e(f"v_mul_u32_u24 v3, 1152, v3\nv_lshl_add_u32 v{VX}, v{T}, 4, v3\nv_xor_b32 v{T}, 4, v{T}\nv_lshl_add_u32 v{VX+1}, v{T}, 4, v3")
    e(f"v_add_u32 v{VX+1}, {8*1152-1024}, v{VX+1}\nv_add_u32 v{VX+2}, {16*1152-2048}, v{VX}\nv_add_u32 v{VX+3}, {16*1152-2048}, v{VX+1}")
    e(f"""s_lshl_b32 s5, s{S_I}, 2
s_add_u32 s52, s5, s{S_WV}
s_mul_i32 s{S_XO}, s52, {32*1152}
s_mul_i32 s{S_WB}, s{S_WV}, 9216
s_mul_i32 s5, s{S_G}, 144
s_add_u32 s6, s5, 1152
s_lshl_b32 s5, s5, 1
s_cmp_eq_u32 s{S_KV}, 1
s_cselect_b32 s53, s6, s5
s_movk_i32 s7, 144
s_cselect_b32 s7, 1152, s7
s_mul_i32 s{S_WF}, s{S_WV}, {16*3456}
s_add_u32 s{S_WF}, s{S_WF}, s53
s_movk_i32 s50, 3456""")
    for i in range(5):
        r = VW + i
        e(f"v_add_u32 v3, {64*i}, v2\nv_mul_u32_u24 v{T}, 7282, v3\nv_lshrrev_b32 v{T}, 16, v{T}\nv_mul_u32_u24 v{T+1}, 9, v{T}\nv_sub_u32 v3, v3, v{T+1}")
        e(f"v_and_b32 v{T+1}, 1, v{T}\nv_mul_u32_u24 v{T+1}, s7, v{T+1}\nv_lshl_add_u32 v3, v3, 4, v{T+1}\nv_lshrrev_b32 v{T}, 1, v{T}")
        if i >= 2: e(f"v_lshrrev_b32 v{T+1}, 1, v{T}\nv_and_b32 v{T+1}, 4, v{T+1}\nv_xor_b32 v{T}, v{T}, v{T+1}")
        e(f"v_mad_u32_u24 v{r}, v{T}, s50, v3")
        if i % 4: e(f"v_subrev_u32 v{r}, {(i%4)*1024}, v{r}")
    e(f"v_cmp_gt_u32 s[50:51], 32, v2\nv_mov_b32 v3, {BIG}\ns_waitcnt lgkmcnt(0)\nv_cndmask_b32 v{VW+4}, v3, v{VW+4}, s[50:51]")
    srd(e, S_X, 40, ACT_BYTES)
    srd(e, S_W, 42, 576*1728*2)
    def dma(st):
        b = (st % 4)*SLOT
        L = [([f"s_add_u32 m0, s{S_WB}, {b}", f"s_add_u32 s54, s{S_XO}, {128*st}"] if k == 0 else [],
              f"buffer_load_dwordx4 v{VX+k}, s[{S_X}:{S_X+3}], s54 offen" + (f" offset:{k*1024}" if k else "") + " lds") for k in range(4)]
        L += [([f"s_add_u32 m0, s{S_WB}, {b+4096}", f"s_add_u32 s55, s{S_WF}, {64*3456*st}"] if k == 0 else [],
               f"buffer_load_dwordx4 v{VW+k}, s[{S_W}:{S_W+3}], s55 offen" + (f" offset:{k*1024}" if k else "") + " lds") for k in range(4)]
        L += [([f"s_add_u32 m0, s{S_WB}, {b+8192}", "s_nop 0"], f"buffer_load_dwordx4 v{VW+4}, s[{S_W}:{S_W+3}], s55 offen lds")]
        return [(pre, t, ("dma", st)) for pre, t in L]
    def issue(x):
        for p in x[0]: e(p)
        e.vmem(x[1], x[2])
    e.vm = []; e.vm_done = 0
    for x in dma(0): issue(x)
    tm.stamp(0)
    srd(e, S_WS_, 46, WS_BYTES)
    srd(e, S_DBG, 44, 256)
    d1 = dma(1)
    e(f"v_and_b32 v{T}, 15, v2\nv_lshrrev_b32 v{T+1}, 4, v2")
    e(f"v_lshrrev_b32 v3, 1, v{T}\nv_xor_b32 v3, v3, v{T+1}\nv_lshlrev_b32 v3, 4, v3\nv_lshl_add_u32 v3, v{T}, 7, v3\nv_add_u32 v{AB}, s{S_WB}, v3\nv_xor_b32 v3, 64, v3\nv_add_u32 v{AB+1}, s{S_WB}, v3")
    e(f"v_and_b32 v3, 1, v{T+1}\nv_mul_u32_u24 v3, 12, v3\nv_bfe_u32 v{T+2}, v2, 2, 2\nv_add_u32 v3, v3, v{T+2}")
    e(f"v_xor_b32 v{T+2}, 4, v3\nv_mul_u32_u24 v3, 288, v3\nv_mul_u32_u24 v{T+2}, 288, v{T+2}")
    e(f"v_lshrrev_b32 v1, 5, v2\nv_mul_u32_u24 v1, 9216, v1\nv_and_b32 v{T+3}, 3, v2\nv_lshl_add_u32 v1, v{T+3}, 3, v1\nv_add_u32 v1, 4096, v1")
    e(f"v_add_u32 v{AB+2}, v1, v3\nv_add_u32 v{AB+3}, v1, v{T+2}")
    for i in range(4): e(f"v_add_u32 v{AB+4+i}, {2*SLOT}, v{AB+i}")
    c0 = hex(f2u(1e-6 * L2E))
    e(f"s_mov_b32 s56, {hex(f2u(LN2))}\ns_mov_b32 s57, {hex(f2u(LN2))}\ns_mov_b32 s58, {c0}\ns_mov_b32 s59, {c0}")
    def wo_setup():
        L = [f"s_lshr_b32 s4, s2, 3\ns_sub_u32 s5, s4, 8\ns_cmp_lt_u32 s4, 8\ns_cselect_b32 s5, s4, s5\ns_lshr_b32 s{S_CG}, s5, 2\ns_and_b32 s5, s5, 3\ns_and_b32 s4, s2, 7\ns_lshl_b32 s4, s4, 2\ns_add_u32 s{S_RT}, s4, s5"]
        for i in range(3):
            L += f"v_add_u32 v3, {64*i}, v2\nv_mul_u32_u24 v1, 5462, v3\nv_lshrrev_b32 v1, 16, v1\nv_mul_u32_u24 v{VWO+i}, 12, v1\nv_sub_u32 v3, v3, v{VWO+i}\nv_mul_u32_u24 v1, 1152, v1\nv_lshl_add_u32 v{VWO+i}, v3, 4, v1".split("\n")
            if i: L.append(f"v_subrev_u32 v{VWO+i}, {i*1024}, v{VWO+i}")
        L += f"""s_mul_i32 s{S_WOO}, s{S_WV}, {144*1152}
s_mul_i32 s5, s{S_CG}, 192
s_add_u32 s{S_WOO}, s{S_WOO}, s5
s_mul_i32 s{S_WL}, s{S_WV}, 9216
s_mov_b32 s{S_WO}, s48
s_and_b32 s{S_WO+1}, s49, 0xffff
s_mov_b32 s{S_WO+3}, 0x20000
s_lshr_b32 s5, s2, 6""".split("\n")
        L.append(f"s_cmp_eq_u32 s5, {1 if idle else 7}\ns_cselect_b32 s{S_WO+2}, 0, {576*576*2}")
        return L
    def st_setup():
        return f"""v_and_b32 v215, 15, v2
v_lshrrev_b32 v213, 5, v2
v_lshl_add_u32 v215, v213, 4, v215
v_mul_u32_u24 v213, 1152, v215
v_bfe_u32 v214, v2, 4, 1
v_lshl_add_u32 v213, v214, 4, v213
v_lshlrev_b32 v215, 2, v215
v_lshrrev_b32 v214, 4, v2
v_mul_u32_u24 v214, 80, v214
s_lshr_b32 s5, s{S_WV}, 1
s_lshl_b32 s101, s{S_RT}, 1
s_add_u32 s101, s101, s5
s_mul_i32 s99, s101, 36864
s_lshl_b32 s101, s101, 7
s_add_u32 s101, s101, {WS_MX}
s_mul_i32 s5, s{S_CG}, 192
s_add_u32 s99, s99, s5
s_and_b32 s5, s{S_WV}, 1
s_mul_i32 s5, s5, 96
s_add_u32 s99, s99, s5
s_mul_i32 s100, s{S_WV}, 320
s_add_u32 s100, s100, {WS_WB}""".split("\n")
    def st_loads():
        L = [([], f"buffer_load_dwordx4 a[{180+4*k}:{183+4*k}], v214, {W}, s100 offen" + (f" offset:{16*k}" if k else "") + " sc0 sc1", "sd2") for k in range(5)]
        L.append(([], f"buffer_load_dword a240, v215, {W}, s101 offen sc0 sc1", "sd2"))
        L += [([], f"buffer_load_dwordx4 a[{228+4*k}:{231+4*k}], v213, s[{S_X}:{S_X+3}], s99 offen" + (f" offset:{32*k}" if k else ""), "st2") for k in range(3)]
        return L
    def wo_dma():
        return [([f"s_add_u32 m0, s{S_WL}, {WSL[i//9]*SLOT + (i%9)*1024}", f"s_add_u32 s54, s{S_WOO}, {(i//3)*16*1152}"] if i % 3 == 0 else [],
                 f"buffer_load_dwordx4 v{VWO+i%3}, s[{S_WO}:{S_WO+3}], s54 offen" + (f" offset:{(i%3)*1024}" if i % 3 else "") + " lds", "wo") for i in range(27)]
    for l in wo_setup() + st_setup(): e(l)
    if xpro == 1:
        for x in st_loads()[6:]: issue(x)
    for x in d1: issue(x)
    if xpro == 2:
        for x in st_loads()[6:]: issue(x)
    e(f"s_cmp_eq_u32 s{S_KV}, 0\ns_cbranch_scc1 F_q")
    if al: e("s_branch F_kv\n.p2align 12\nF_kv:")
    vm0 = (list(e.vm), e.vm_done)

    q = Queue(e, window=1)
    def emit_op(o, _orig=e.op):
        if callable(o.text):
            o.text(); o.pos = e.n - 1; return o
        return _orig(o)
    e.op = emit_op
    def fill_lines(text):
        for l in (text.split("\n") if isinstance(text, str) else text):
            n = l.count("\n") + 1
            q.add(Op(l, cost=n))
    def rdlist(st, kk):
        b = AB + 4*((st % 4) >> 1); o = (st & 1)*SLOT
        rd = [f"ds_read_b128 a[{XF+8*kk+4*tt}:{XF+8*kk+4*tt+3}], v{b+kk} offset:{o + 2048*tt}" for tt in range(2)]
        for ct in range(9):
            r = WF + 36*kk + 4*ct
            rd.append(f"ds_read_b64_tr_b16 a[{r}:{r+1}], v{b+2} offset:{o + kk*18432 + ct*32}")
            rd.append(f"ds_read_b64_tr_b16 a[{r+2}:{r+3}], v{b+3} offset:{o + kk*18432 + ct*32}")
        return rd
    wq = []
    st_ = {"last": 0}
    def wpace(force=False):
        if wq and (force or e.n - st_["last"] >= wp):
            issue(wq.pop(0)); st_["last"] = e.n
    SDL = 153600
    def side_setup(arr0, extra):
        return f"""s_lshl_b32 s52, s52, 7
s_add_u32 s52, s52, {WS_S4 + 8192*arr0}
s_lshl_b32 s53, s53, 1
s_add_u32 s53, s53, {WS_CS - 256}
v_lshlrev_b32 v4, 4, v2
v_cmp_lt_u32 vcc, 33, v2
v_add_u32 v1, s53, v4
v_add_u32 v3, {extra}, v1
v_cndmask_b32 v1, v1, v3, vcc
v_cmp_lt_u32 vcc, 7, v2
v_add_u32 v4, s52, v4
v_add_u32 v3, {8192 - 128}, v4
v_cndmask_b32 v4, v4, v3, vcc
v_cmp_lt_u32 vcc, 15, v2
s_lshl_b32 s7, s{S_WV}, 10
s_add_u32 s7, s7, {SDL}
v_cndmask_b32 v4, v4, v1, vcc
v_cmp_lt_u32 vcc, 51, v2
v_mov_b32 v1, {BIG}
v_add_u32 v8, s7, v8
v_cndmask_b32 v4, v4, v1, vcc
v_add_u32 v9, s7, v9""".split("\n")
    side1 = [(["s_mov_b32 m0, s7", "s_nop 0"], f"buffer_load_dwordx4 v4, {W}, 0 offen sc0 sc1 lds", "sd")]
    def mainloop(kind, side, srd_=()):
        e.vm, e.vm_done = list(vm0[0]), vm0[1]; e.lg = []; e.lg_done = 0
        e(f";HOP {kind} {S_WV}\nF_{kind}_s:")
        e.wait_vm(lambda t: t == ("dma", 0))
        e("s_barrier")
        tm.stamp(1)
        for i, t in enumerate(rdlist(0, 0)): e.ds(t, (0, 0, i))
        dq = dma(2)
        for _ in range(4): issue(dq.pop(0))
        for st in range(9):
            for kk in range(2):
                nst = st if kk == 0 else st + 1
                rd = rdlist(nst, 1 - kk) if nst < 9 else list(srd_)
                ri = 0; cnt = 0
                for ct in range(9):
                    for tt in range(2):
                        if cnt == 0: e.wait_lg(lambda t: t == (st, kk, 13 if kk == 0 else 19))
                        if cnt == 8: e.wait_lg(lambda t: t == (st, kk, 19))
                        d = ACC + 36*tt + 4*ct; x = f"a[{XF+8*kk+4*tt}:{XF+8*kk+4*tt+3}]"; wf = f"a[{WF+36*kk+4*ct}:{WF+36*kk+4*ct+3}]"
                        a, b = (wf, x) if kind == "q" else (x, wf)
                        e(f"v_mfma_f32_16x16x32_bf16 v[{d}:{d+3}], {a}, {b}, " + ("0" if st == 0 and kk == 0 else f"v[{d}:{d+3}]"))
                        cnt += 1
                        if kk == 1 and cnt == 1:
                            while dq: issue(dq.pop(0))
                            e.wait_vm(lambda t: t == (("dma", nst) if nst < 9 else "sd"))
                            e("s_barrier")
                            if nst == gate_at[0]:
                                e.vmem(f"buffer_load_dword v10, v11, s[{S_DBG}:{S_DBG+3}], 0 offen sc0 sc1", "gate")
                            if nst == gate_at[1]:
                                e.wait_vm(lambda t: t == "gate")
                                e(f"v_readfirstlane_b32 s5, v10\ns_nop 1\ns_cmp_eq_u32 s5, 64\ns_cbranch_scc0 F_sp{kind}\nF_rt{kind}:")
                            if nst + 2 < 9: dq = dma(nst + 2)
                            if nst == 7: q.drain()
                            if nst == 7: dq = dq + side + (st_loads()[:6 if xpro else 9] if stl else []) + wo_dma()[:w7]
                            if nst == 8: dq = dq + wo_dma()[w7:w8]
                            if nst == 9: wq.extend(wo_dma()[w8:27-nl])
                        for _ in range(2 if cnt % 2 == 1 else 1):
                            if rd: e.ds(rd.pop(0), (nst, 1 - kk, ri)); ri += 1
                        per = dper if nst < 7 else (1 if dq and dq[0][2] in ('sd', 'sd2') else lper)
                        if dq and cnt % per == 0: issue(dq.pop(0))
                        elif nst == 9 and cnt % 6 == 0: wpace(True)
                        else: q.fill(2 if not rd else 1)
        assert not dq
        q.drain()
        tm.stamp(2)
    def pr(r): return f"v[{r}:{r+1}]"
    def bc(r, pos, n=3):
        base = r & ~1; hi = r & 1
        sel = [0]*n; selh = [1]*n
        sel[pos] = hi; selh[pos] = hi
        return pr(base), f" op_sel:{sel} op_sel_hi:{selh}".replace(", ", ",")
    def zipemit(*seqs):
        for k in range(max(map(len, seqs))):
            for s_ in seqs:
                if k < len(s_): e(s_[k])
            wpace()
    def phi4(a, t):
        return [f"v_exp_f32_e64 v{t+r}, v{a+r} clamp" for r in range(4)] + [f"v_max_f32 v{a+r}, s58, v{a+r}" for r in range(4)] + \
               [f"v_pk_fma_f32 {pr(a+r)}, {pr(a+r)}, s[56:57], {pr(t+r)}" for r in (0, 2)]
    pairs = []
    for hl in range(4):
        for a in (hl, hl + 1):
            for b in (hl + 4, hl + 5):
                if (a, b) not in pairs: pairs.append((a, b))
    def sm(m): return f"s_mov_b32 s50, {hex(m & 0xffffffff)}\ns_mov_b32 s51, {hex(m >> 32)}".split("\n")
    L = f"v_mov_b32 v11, 0\nv_mov_b32 v{ONES}, 0x3f803f80\ns_mul_i32 s6, s{S_WV}, 12288\ns_add_u32 s6, s6, {KVB}\nv_mul_u32_u24 v3, 80, v{T}\nv_lshl_add_u32 v3, v{T+1}, 4, v3\nv_add_u32 v3, s6, v3\nv_mov_b32 v{T+3}, {LBIG}".split("\n")
    L += f"v_lshlrev_b32 v8, 4, v{T+1}\nv_lshlrev_b32 v9, 2, v{T}".split("\n")
    for k, (a, b) in enumerate(pairs):
        first = True
        for hl in range(4):
            def valid(l):
                n, g = l & 15, l >> 4
                ec = 16*(b-4) - 8 + n
                if ec < 0 or ec // 18 != hl: return False
                return 0 <= 4*a + g - (9*hl)//2 < 5
            m = mask64(valid)
            if not m: continue
            const = hl*1520 + (16*(b-4) - 8 - 18*hl)*80 + (4*a - (9*hl)//2)*16
            L += sm(m) + [f"v_add_u32 v{T+2}, {const & 0xffffffff}, v3", f"v_cndmask_b32 v{WA+k}, v{T+3 if first else WA+k}, v{T+2}, s[50:51]"]
            first = False
    L += f"v_add_u32 v3, 1, v{T}\nv_lshrrev_b32 v3, 1, v3\nv_lshrrev_b32 v{T+2}, 1, v{T}\nv_lshl_add_u32 v3, v3, 2, v{T+1}\nv_mul_u32_u24 v1, 9, v{T+2}\nv_lshrrev_b32 v1, 1, v1\nv_sub_u32 v3, v3, v1".split("\n")
    L += sm(mask64(lambda l: (l & 15) < 8 and 0 <= 4*(((l & 15) + 1) >> 1) + (l >> 4) - (9*((l & 15) >> 1))//2 < 5))
    L += f"v_mul_u32_u24 v{T+2}, 1520, v{T+2}\nv_lshl_add_u32 v3, v3, 4, v{T+2}\ns_add_u32 s6, s6, {18*80}\nv_add_u32 v3, s6, v3\nv_cndmask_b32 v{WA+13}, v{T+3}, v3, s[50:51]".split("\n")
    for a in range(5):
        L += sm(mask64(lambda l: (l & 15) < 8 and ((l & 15) + 1) >> 1 == a))
        L += [f"v_cndmask_b32 v{ZB+4*a+i}, 0, v{ONES}, s[50:51]" for i in range(4)]
    L += f"s_mul_i32 s6, s{S_G}, 6080\nv_mov_b32 v{T+3}, {BIG}".split("\n")
    for i in range(6):
        L += f"""v_add_u32 v3, {256*i}, v0
v_mul_u32_u24 v{T+2}, 3277, v3
v_lshrrev_b32 v{T+2}, 16, v{T+2}
v_mul_u32_u24 v1, 20, v{T+2}
v_sub_u32 v1, v3, v1
v_mul_u32_u24 v{T+2}, 27, v{T+2}
v_lshrrev_b32 v{T+2}, 8, v{T+2}
v_and_b32 v{T+2}, 2, v{T+2}
v_sub_u32 v1, v1, v{T+2}
v_cmp_gt_u32 s[50:51], 18, v1
v_lshlrev_b32 v3, 2, v3
v_add_u32 v3, s6, v3
v_cndmask_b32 v{GA+i}, v{T+3}, v3, s[50:51]""".split("\n")
    L += f"v_cmp_gt_u32 vcc, 240, v0\ns_lshr_b32 s{S_SIG}, s{S_G}, 1\ns_lshl_b32 s{S_SIG}, s{S_SIG}, 12\nv_cndmask_b32 v{GA+5}, v{T+3}, v{GA+5}, vcc\ns_add_u32 s{S_SIG}, s{S_SIG}, {WS_FK}".split("\n")
    L += side_setup(0, 2016) + [f"s_mov_b32 s50, {hex(f2u(L2E))}", f"s_mov_b32 s51, {hex(f2u(L2E))}"]
    for l in L[:60]: e(l)
    fill_lines(L[60:])
    rs_ = [f"ds_read_b128 v[{RSV+16*tt+4*k}:{RSV+16*tt+4*k+3}], v8 offset:{128*k + 64*tt}" for k in range(2) for tt in range(2)]
    rs_ += [f"ds_read_b32 v{CSV+ct}, v9 offset:{256 + 64*ct}" for ct in range(9)]
    mainloop("kv", side1, rs_)
    e("s_waitcnt lgkmcnt(0)")
    for tt in range(2):
        for i in range(0, 8, 2): e(f"v_pk_mul_f32 {pr(RSV+16*tt+8+i)}, {pr(RSV+16*tt+i)}, s[50:51]")
    def kseq(ct, tt):
        a = ACC + 36*tt + 4*ct; R = RSV + 16*tt; t = TT + 4*tt
        o, sel = bc(CSV + ct, 1); d = PK + 4*ct + 2*tt
        return [f"v_pk_fma_f32 {pr(t+r)}, {pr(R+12+r)}, {o}, s[58:59]{sel}" for r in (0, 2)] + \
               [f"v_pk_fma_f32 {pr(a+r)}, {pr(a+r)}, {pr(R+8+r)}, {pr(t+r)}" for r in (0, 2)] + phi4(a, t) + \
               [f"v_cvt_pk_bf16_f32 v{d}, v{a}, v{a+1}", f"v_cvt_pk_bf16_f32 v{d+1}, v{a+2}, v{a+3}"]
    def vseq(ct, tt):
        a = ACC + 36*tt + 4*ct; R = RSV + 16*tt; t = TT + 8 + 4*tt
        o, sel = bc(CSV + ct, 1, 2); d = PV + 4*(ct-4) + 2*tt
        return [f"v_pk_mul_f32 {pr(t+r)}, {pr(R+4+r)}, {o}{sel}" for r in (0, 2)] + \
               [f"v_pk_fma_f32 {pr(t+r)}, {pr(a+r)}, {pr(R+r)}, {pr(t+r)}" for r in (0, 2)] + \
               [f"v_cvt_pk_bf16_f32 v{d}, v{t}, v{t+1}", f"v_cvt_pk_bf16_f32 v{d+1}, v{t+2}, v{t+3}"]
    e("s_nop 1")
    def zp(a, b): return [x for p in zip(a, b) for x in p]
    free = []; zreg = 112
    kvreg = {13: zreg}; wrq = []; lastw = [-100]
    def mf(a):
        for k, (pa, pb) in enumerate(pairs):
            if pa == a:
                d = free.pop(0); kvreg[k] = d
                e(f"v_mfma_f32_16x16x32_bf16 v[{d}:{d+3}], v[{PK+4*a}:{PK+4*a+3}], v[{PV+4*(pb-4)}:{PV+4*(pb-4)+3}], 0"); wrq.append((k, e.n))
        e(f"v_mfma_f32_16x16x32_bf16 v[{zreg}:{zreg+3}], v[{PK+4*a}:{PK+4*a+3}], v[{ZB+4*a}:{ZB+4*a+3}], " + ("0" if a == 0 else f"v[{zreg}:{zreg+3}]"))
        if a == 4: wrq.append((13, e.n))
    def em(l):
        e(l)
        if wrq and e.n - wrq[0][1] >= 9 and e.n - lastw[0] >= wsp:
            k = wrq.pop(0)[0]; e(f"ds_write_b128 v{WA+k}, v[{kvreg[k]}:{kvreg[k]+3}]"); lastw[0] = e.n
        else: wpace()
    for a in range(5):
        for ct in ((4, 5) if a == 0 else ((5 + a,) if a < 4 else ())):
            for l in zp(vseq(ct, 0), vseq(ct, 1)): em(l)
            if ct > 4: free += [ACC + 4*ct, ACC + 36 + 4*ct]
        ks = zp(kseq(a, 0), kseq(a, 1))
        for l in ks[:8]: em(l)
        if a > 0: mf(a - 1)
        for l in ks[8:]: em(l)
        free += [ACC + 4*a, ACC + 36 + 4*a]
        if a == 0: tm.stamp(3)
    e(f"v_lshlrev_b32 v3, 2, v0\nv_add_u32 v3, {KVB}, v3")
    mf(4)
    while wrq:
        k, pos = wrq.pop(0)
        while e.n - pos < 9:
            if wq: wpace(True)
            else: e("s_nop 0")
        e(f"ds_write_b128 v{WA+k}, v[{kvreg[k]}:{kvreg[k]+3}]")
    while wq and not wlate: wpace(True)
    tm.stamp(4)
    e(f"s_waitcnt lgkmcnt(0)\ns_barrier")
    RB = RSV
    e.lg = []; e.lg_done = 0
    for i in range(6):
        for w in range(0, 4, 2):
            e.ds(f"ds_read2st64_b32 v[{RB+4*i+w}:{RB+4*i+w+1}], v3 offset0:{(w*12288 + i*1024)//256} offset1:{((w+1)*12288 + i*1024)//256}", i)
    for i in range(6):
        e.wait_lg(lambda t: t == i)
        r = RB + 4*i
        e(f"v_pk_add_f32 {pr(r)}, {pr(r)}, {pr(r+2)}\nv_add_f32 v{r}, v{r}, v{r+1}")
        e(f"buffer_atomic_add_f32 v{r}, v{GA+i}, {W}, 0 offen sc1")
    while wq: wpace(True)
    e(f"v_cmp_gt_u32 vcc, 32, v0\nv_lshlrev_b32 v23, 7, v0\nv_mov_b32 v22, {BIG}\nv_cndmask_b32 v23, v22, v23, vcc\nv_mov_b32 v22, 1")
    tm.stamp(5)
    e("s_branch F_k2")
    e("F_q:")
    P = WA; CSQ = CSV; RSQ = RSV
    e(f"v_mov_b32 v11, 0\nv_lshlrev_b32 v8, 2, v{T}\nv_lshlrev_b32 v9, 4, v{T+1}")
    e(f"s_lshl_b32 s5, s52, 2\ns_add_u32 s5, s5, s{S_G}\ns_mul_i32 s5, s5, 9216\ns_add_u32 s40, s5, {WS_PQ}\ns_add_u32 s41, s40, 4096\ns_add_u32 s42, s40, 8192")
    e(f"s_lshl_b32 s{S_SIG}, s{S_G}, 5\ns_lshr_b32 s5, s52, 1\ns_add_u32 s{S_SIG}, s{S_SIG}, s5\ns_lshl_b32 s{S_SIG}, s{S_SIG}, 7\ns_add_u32 s{S_SIG}, s{S_SIG}, {WS_FK}")
    for l in side_setup(2, 0): e(l)
    rs_ = [f"ds_read_b32 v{RSQ+2*tt+k}, v8 offset:{128*k + 64*tt}" for k in range(2) for tt in range(2)]
    rs_ += [f"ds_read_b128 v[{CSQ+4*ct}:{CSQ+4*ct+3}], v9 offset:{256 + 64*ct}" for ct in range(9)]
    mainloop("q", side1, rs_)
    e("v_lshlrev_b32 v4, 4, v2\ns_waitcnt lgkmcnt(0)")
    def qseq(n):
        tt, ct = n // 9, n % 9
        a = ACC + 36*tt + 4*ct; t = TT + 4*(n % 2); d = P + 2*n
        o1, s1 = bc(RSQ + 2*tt + 1, 0); o2, s2 = bc(RSQ + 2*tt, 1)
        return [f"v_pk_fma_f32 {pr(t+r)}, {o1}, {pr(CSQ+4*ct+r)}, s[58:59]{s1}" for r in (0, 2)] + \
               [f"v_pk_fma_f32 {pr(a+r)}, {pr(a+r)}, {o2}, {pr(t+r)}{s2}" for r in (0, 2)] + phi4(a, t) + \
               [f"v_cvt_pk_bf16_f32 v{d}, v{a}, v{a+1}", f"v_cvt_pk_bf16_f32 v{d+1}, v{a+2}, v{a+3}"]
    for k in range(9):
        zipemit(qseq(2*k), qseq(2*k + 1))
        e(f"buffer_store_dwordx4 v[{P+4*k}:{P+4*k+3}], v4, {W}, s{40+k//4} offen" + (f" offset:{(k%4)*1024}" if k % 4 else "") + " sc0 sc1")
    while wq: wpace(True)
    e(f"v_cmp_eq_u32 vcc, 0, v2\nv_mov_b32 v22, {BIG}\ns_nop 0\nv_cndmask_b32_e64 v23, v22, 0, vcc\nv_mov_b32 v22, 0x100")
    tm.stamp(5)
    e("s_branch F_k2")
    for kind in ("kv", "q"):
        e(f"F_sp{kind}:\nbuffer_load_dword v10, v11, s[{S_DBG}:{S_DBG+3}], 0 offen offset:128 sc0 sc1\ns_waitcnt vmcnt(0)\nv_readfirstlane_b32 s5, v10\ns_nop 1\ns_cmp_eq_u32 s5, 63\ns_cbranch_scc0 F_sp{kind}\ns_branch F_rt{kind}")
    e("F_spare:")
    e(f"v_lshrrev_b32 v3, 3, v2\nv_and_b32 v{T}, 7, v2\nv_lshlrev_b32 v{T}, 4, v{T}\nv_mov_b32 v8, {BIG}\nv_mov_b32 v10, 0x3f803f80\nv_cmp_eq_u32 s[52:53], 0, v{T}")
    e(f"s_waitcnt lgkmcnt(0)")
    srd(e, S_X, 40, ACT_BYTES)
    srd(e, S_W, 42, 576*1728*2)
    srd(e, S_WS_, 46, WS_BYTES)
    e(f"s_cmp_ge_u32 s2, 37\ns_cbranch_scc1 F_cs")
    e(f"v_mul_u32_u24 v9, 1152, v3\nv_add_u32 v9, v9, v{T}")
    def touch():
        if not xt: return []
        t0 = xt
        e(f"s_and_b32 s3, s2, 7\ns_lshr_b32 s4, s2, 3\ns_and_b32 s5, s3, 1\ns_lshl_b32 s50, s5, 9\ns_mul_i32 s5, s4, {8*3456}\ns_add_u32 s50, s50, s5")
        e(f"s_xor_b32 s3, s3, 1\ns_lshl_b32 s3, s3, 3\ns_add_u32 s3, s3, s4\ns_mul_i32 s51, s3, {32*1152}")
        e(f"v_and_b32 v21, 15, v0\nv_mul_u32_u24 v22, 52, v21\nv_lshrrev_b32 v22, 8, v22\nv_lshl_add_u32 v22, v22, 2, v21\nv_lshlrev_b32 v22, 7, v22")
        e(f"v_bfe_u32 v23, v0, 4, 3\nv_lshrrev_b32 v1, 7, v0\nv_lshl_add_u32 v23, v1, 6, v23\nv_mul_u32_u24 v23, 3456, v23\nv_cmp_gt_u32 vcc, 15, v21\nv_add_u32 v22, v22, v23\nv_and_b32 v21, 31, v0\nv_cndmask_b32 v22, v8, v22, vcc")
        e(f"v_mul_u32_u24 v21, 1152, v21\nv_lshrrev_b32 v23, 5, v0\nv_cmp_gt_u32 vcc, {9-t0}, v23\nv_lshl_add_u32 v21, v23, 7, v21\ns_add_u32 s51, s51, {128*t0}\nv_cndmask_b32 v21, v8, v21, vcc")
        L = []
        for k, st in enumerate(range(t0, 9, 2)):
            L.append(f"s_add_u32 s5, s50, {64*3456*st}\nbuffer_load_dword v246, v22, s[{S_W}:{S_W+3}], s5 offen")
            if k == 0: L.append(f"buffer_load_dword v247, v21, s[{S_X}:{S_X+3}], s51 offen")
        return L
    def zero():
        e(f"v_cmp_gt_u32 vcc, 95, v0\nv_lshlrev_b32 v28, 3, v0\nv_mov_b32 v30, 0\nv_mov_b32 v31, 0\nv_cndmask_b32 v29, v8, v28, vcc\ns_mul_i32 s5, s2, 760\ns_lshl_b32 s4, s2, 11\ns_add_u32 s4, s4, {WS_FL}")
        e.vmem(f"buffer_store_dwordx2 v[30:31], v29, {W}, s5 offen sc0 sc1", "z"); e.vmem(f"buffer_store_dwordx2 v[30:31], v28, {W}, s4 offen sc0 sc1", "z")
    def rowloads(base, sr, so):
        for i in range(9):
            e.vmem(f"buffer_load_dwordx4 v[{base+4*i}:{base+4*i+3}], v9, s[{sr}:{sr+3}], s{so} offen" + (f" offset:{128*i}" if i else ""), (base, i))
    def rowsums(base, sq):
        e("v_mov_b32 v12, 0\nv_mov_b32 v13, 0")
        for i in range(9):
            e.wait_vm(lambda t: t == (base, i))
            for k in range(4):
                e(f"v_dot2c_f32_bf16 v12, v{base+4*i+k}, v10")
                if sq: e(f"v_dot2c_f32_bf16 v13, v{base+4*i+k}, v{base+4*i+k}")
        e("s_nop 2")
        for dpp in ("quad_perm:[1,0,3,2]", "quad_perm:[2,3,0,1]", "row_half_mirror"):
            e(f"v_add_f32_dpp v12, v12, v12 {dpp} row_mask:0xf bank_mask:0xf\nv_add_f32_dpp v13, v13, v13 {dpp} row_mask:0xf bank_mask:0xf\ns_nop 0")
    def wbar(base, su):
        e(f"s_mul_i32 s7, s{su}, 57\ns_lshr_b32 s7, s7, 10\ns_mul_i32 s5, s7, 18\ns_sub_u32 s4, s{su}, s5\ns_mul_i32 s7, s7, 320")
        e(f"s_lshr_b32 s5, s4, 1\ns_lshl_b32 s5, s5, 3\ns_add_u32 s7, s7, s5\ns_and_b32 s5, s4, 1\ns_mul_i32 s5, s5, 160\ns_add_u32 s7, s7, s5\ns_add_u32 s7, s7, {WS_WB}")
        e(f"v_lshrrev_b32 v14, 5, v2\nv_mul_u32_u24 v14, 80, v14\nv_bfe_u32 v15, v2, 3, 2\nv_lshl_add_u32 v14, v15, 1, v14\nv_cndmask_b32 v14, v8, v14, s[52:53]")
        rowsums(base, False)
        e(f"v_mul_f32 v12, {hex(f2u(1.0/576))}, v12\nv_cvt_pk_bf16_f32 v12, v12, v12")
        e.vmem(f"buffer_store_short v12, v14, {W}, s7 offen sc0 sc1", "st")
    e(f"s_cmp_ge_u32 s2, 32\ns_cbranch_scc1 F_wb2")
    e.vm = []; e.vm_done = 0
    e(f"s_and_b32 s6, s2, 7\ns_lshl_b32 s6, s6, 5\ns_and_b32 s5, s2, 24\ns_add_u32 s6, s6, s5\ns_lshl_b32 s5, s{S_WV}, 1\ns_add_u32 s6, s6, s5")
    e(f"s_mul_i32 s54, s6, {8*1152}\ns_add_u32 s55, s54, {8*1152}")
    rowloads(32, S_X, 54); rowloads(68, S_X, 55)
    for l in wo_setup(): e(l)
    e(f"s_add_u32 s3, s2, 40\ns_mul_i32 s54, s3, {8*1152}\ns_cmp_lg_u32 s{S_WV}, 0\ns_cselect_b32 s54, {BIG}, s54")
    rowloads(104, S_WO, 54)
    zero()
    e(f"v_lshrrev_b32 v3, 3, v2\nv_lshlrev_b32 v3, 2, v3\nv_cndmask_b32 v3, v8, v3, s[52:53]\ns_lshl_b32 s6, s6, 5")
    for u, base in enumerate((32, 68)):
        rowsums(base, True)
        e(f"v_mul_f32 v15, {hex(f2u(1.0/576))}, v12")
        ln_stats2(e, [(12, 13, 14, 16, 17)])
        e(f"v_mul_f32 v18, {hex(f2u(L2E))}, v16\nv_mul_f32 v19, {hex(f2u(L2E))}, v17")
        for k in range(4):
            e(f"s_add_u32 s5, s6, {WS_S4 + 8192*k + 32*u}")
            e.vmem(f"buffer_store_dword v{16+k}, v3, {W}, s5 offen sc0 sc1", "st")
        e(f"s_add_u32 s5, s6, {WS_MX + 32*u}")
        e.vmem(f"buffer_store_dword v15, v3, {W}, s5 offen sc0 sc1", "st")
    e(f"s_cmp_lg_u32 s{S_WV}, 0\ns_cbranch_scc1 F_sj")
    wbar(104, 3)
    e("s_branch F_sj\nF_wb2:")
    e.vm = []; e.vm_done = 0
    for l in wo_setup(): e(l)
    e(f"s_sub_u32 s6, s2, 32\ns_lshl_b32 s6, s6, 2\ns_add_u32 s6, s6, s{S_WV}\ns_lshl_b32 s6, s6, 1\ns_mul_i32 s54, s6, {8*1152}\ns_add_u32 s55, s54, {8*1152}")
    rowloads(32, S_WO, 54); rowloads(68, S_WO, 55)
    zero()
    e("s_add_u32 s3, s6, 1")
    wbar(32, 6); wbar(68, 3)
    e("s_branch F_sj")
    e("F_cs:")
    e(f"v_mul_u32_u24 v9, 3456, v3\nv_add_u32 v9, v9, v{T}\ns_sub_u32 s6, s2, 37\ns_mul_i32 s54, s{S_WV}, {144*3456}\ns_lshl_b32 s5, s6, 7\ns_add_u32 s54, s54, s5")
    e.vm = []; e.vm_done = 0
    for i in range(18):
        e.vmem(f"buffer_load_dwordx4 v[{32+4*i}:{35+4*i}], v9, s[{S_W}:{S_W+3}], s54 offen", i)
        if i < 17: e(f"s_add_u32 s54, s54, {8*3456}")
    zero()
    for l in wo_setup(): e(l)
    e("v_mov_b32 v10, 0x3f80\nv_mov_b32 v11, 0x3f800000")
    for k in range(8): e(f"v_mov_b32 v{12+k}, 0")
    e(f"v_lshlrev_b32 v3, 5, v0\nv_add_u32 v3, {KVB}, v3\nv_lshlrev_b32 v9, 2, v2\nv_add_u32 v{T}, {KVB}, v9\ns_lshl_b32 s6, s6, 8\ns_add_u32 s6, s6, {WS_CS}")
    for i in range(18):
        e.wait_vm(lambda t: t == i)
        for k in range(4): e(f"v_dot2c_f32_bf16 v{12+2*k}, v{32+4*i+k}, v10\nv_dot2c_f32_bf16 v{13+2*k}, v{32+4*i+k}, v11")
    e(f"s_nop 2\nds_write_b128 v3, v[12:15]\nds_write_b128 v3, v[16:19] offset:16\ns_waitcnt lgkmcnt(0)\ns_barrier\ns_cmp_lg_u32 s{S_WV}, 0\ns_cbranch_scc1 F_sj")
    for h in range(2):
        for k in range(8): e(f"ds_read2st64_b32 v[{32+16*h+2*k}:{33+16*h+2*k}], v{T} offset0:{16*h+2*k} offset1:{16*h+2*k+1}")
    e("s_waitcnt lgkmcnt(0)")
    for n in (8, 4, 2, 1):
        for k in range(n): e(f"v_pk_add_f32 v[{32+2*k}:{33+2*k}], v[{32+2*k}:{33+2*k}], v[{32+2*k+2*n}:{33+2*k+2*n}]")
    e(f"v_add_f32 v32, v32, v33\nbuffer_store_dword v32, v9, {W}, s6 offen sc0 sc1")
    e("F_sj:")
    e("s_load_dwordx4 s[40:43], s[0:1], 32")
    srd(e, S_DBG, 44, 256)
    TL = touch()
    for l in TL[:xpre]: e(l)
    e(f"v_cmp_eq_u32 vcc, 0, v2\nv_mov_b32 v4, 1\nv_mov_b32 v11, 0\nv_cndmask_b32_e64 v3, v8, 0, vcc\ns_waitcnt vmcnt({min(xpre, len(TL))}) lgkmcnt(0)\ns_barrier")
    tm.stamp(0)
    e(f"s_cmp_lg_u32 s{S_WV}, 3\ns_cbranch_scc1 F_nsg")
    e(f"buffer_atomic_add v4, v3, s[{S_DBG}:{S_DBG+3}], 0 offen sc0 sc1\nF_nsg:")
    for l in TL[xpre:]: e(l)
    e(f"s_cmp_lg_u32 s{S_WV}, 3\ns_cbranch_scc1 F_nsg2\ns_waitcnt vmcnt({len(TL[xpre:])})\nv_readfirstlane_b32 s5, v4\ns_nop 1\ns_cmp_lg_u32 s5, 63\ns_cbranch_scc1 F_nsg2")
    e(f"buffer_store_dword v4, v3, s[{S_DBG}:{S_DBG+3}], 0 offen offset:128 sc0 sc1\nF_nsg2:")
    if cpf:
        e(f"s_lshr_b32 s6, s2, 3\ns_lshl_b32 s6, s6, 13\ns_cmp_lg_u32 s{S_WV}, 3\ns_cbranch_scc1 F_ncp")
        code_prefetch(e, "F_pc2", "F_k2", "KB_last", 2, 248, 6)
        e("F_ncp:")
    if prefetch:
        srd(e, 52, 40, 576*4608*2); srd(e, 56, 42, 576*4608*2)
        F['pf'](e, pf1)
    for x in (wo_dma()[:27-nl] if idle else []): issue(x)
    e(f"F_gate:\nbuffer_load_dword v10, v11, s[{S_DBG}:{S_DBG+3}], 0 offen offset:128 sc0 sc1\ns_waitcnt vmcnt(0)\nv_readfirstlane_b32 s5, v10\ns_nop 1\ns_cmp_eq_u32 s5, 63\ns_cbranch_scc1 F_gated\ns_sleep 4\ns_branch F_gate\nF_gated:")
    for l in st_setup(): e(l)
    for x in (st_loads() if stl else st_loads()[6 if xpro in (1, 2) else 9:]): issue(x)
    e(f"v_mov_b32 v23, {BIG}\ns_mov_b32 s{S_SIG}, 0")
    tm.stamp(5)
    e("F_k2:")
    return wo_dma()[27-nl:], ([] if stl or xpro == 3 else st_loads()[:6 if xpro else 9])
assert all((n*911) >> 16 == n//72 for n in range(256))
```

```python
from sched import *
from layout import *
from k3 import srd, f2u, SLOT
from k1 import mask64, smask, BIG, LBIG, slice_of_xcd
from kf1 import KVB, S_WS_, S_WO, S_X, S_RT, S_CG, S_WV, S_WL, S_SIG, WSL
import math
MXC = KVB + 4*12288

def gen_f2(e, tm, F, left, C=2, prefetch=True, p1=11, dp=11, slp=4, pf2=(1, 6, 2, 7, 3, 8), npre=44, nw1=24, lead_=1.25, nbar=9, lsp=3, xe=1, npq=5, prog=1, bla=4, p0=12, npe=0, stlate=0, alupre=0, ndma=27, mfill=2, idle=1, pfd=0, pqt=0, thr=4, xl_=1, fine=9, lf=' sc0 sc1', sf=' sc0 sc1'):
    A = 24; O = 112; ADR = 112; RAW = 184; RD = 148; NR = 164; MIX = 180; GB = 184; ACC = 232
    VL16 = 4; TB = 8; VXA = 10; VST = 11; VSA = 12; VMX = 15; VD = 18; VLZ = 21; VF = 22
    XT = 232; XA = 200; MN = 212
    PQ = 0; WFR = 72; WB = 180
    S_RB = 35; S_WS = 36
    W = f"s[{S_WS_}:{S_WS_+3}]"
    lg = lambda x: int(math.log2(x))
    e.vm = []; e.vm_done = 0; e.lg = []; e.lg_done = 0
    e("s_load_dwordx4 s[12:15], s[0:1], 32\ns_load_dwordx4 s[40:43], s[0:1], 48")
    left, stat = left; left = list(left); nl = len(left)
    def lissue(n):
        for _ in range(n):
            if left:
                pre, t_, _ = left.pop(0)
                for p in pre: e(p)
                e(t_)
    e(f"""s_mul_i32 s{S_RB}, s{S_WV}, 12288
s_add_u32 s{S_RB}, s{S_RB}, {KVB}
s_mul_i32 s24, s{S_WV}, 12160
v_lshlrev_b32 v{VL16}, 4, v2
s_lshr_b32 s5, s{S_WV}, 1
s_lshl_b32 s6, s{S_RT}, 1
s_add_u32 s{S_WS}, s6, s5
s_lshl_b32 s5, s{S_WS}, 2
s_add_u32 s5, s5, s{S_WV}
s_xor_b32 s6, s5, 4
s_mul_i32 s25, s5, 9216
s_mul_i32 s26, s6, 9216
s_lshl_b32 s45, s{S_WV}, 5
s_add_u32 s45, s45, s{S_RT}
s_lshl_b32 s45, s45, 7
s_add_u32 s45, s45, {WS_FK}
v_cmp_eq_u32 vcc, 0, v2
v_mov_b32 v1, {BIG}
s_nop 0
v_cndmask_b32_e64 v{VLZ}, v1, 0, vcc""")
    e(f"v_and_b32 v13, 15, v2\nv_lshrrev_b32 v14, 4, v2\nv_mul_u32_u24 v3, 80, v13\nv_lshl_add_u32 v3, v14, 4, v3\nv_add_u32 v3, s{S_RB}, v3\nv_mov_b32 v16, {LBIG}")
    e(f"v_and_b32 v1, 3, v13\nv_mul_u32_u24 v17, 9, v1\nv_lshrrev_b32 v17, 1, v17\nv_sub_u32 v17, v14, v17\nv_lshlrev_b32 v17, 4, v17\nv_mul_u32_u24 v1, 1520, v1\nv_add3_u32 v17, v17, v1, s{S_RB}")
    frags = []; na = [0]; prep = []
    def addr(base, m):
        if m == 0: return None
        r = ADR + na[0]; na[0] += 1
        prep.append((r, base, m))
        return r
    zf = []
    for c, T0s in ((0, (0, 2, 4)), (1, (4, 6, 7))):
        for T0 in T0s:
            L = []
            for jj in range(2):
                T = T0 + jj
                def valid(l):
                    if c == 1 and T0 == 7 and jj == 0: return False
                    hs = 4*c + (l & 3); g = l >> 4
                    return 0 <= 4*T + g - (9*hs)//2 < 5
                L.append((addr(17, mask64(valid)), c*(4*1520 - 18*16) + 18*80 + 64*T))
            zf.append((c, T0, len(frags))); frags.append(L)
    numf = {}
    for h in range(8):
        for j in (h, h + 1):
            L = []
            for jj in range(2):
                def valid(l):
                    m, g = l & 15, l >> 4
                    return 0 <= 16*j + m - 18*h < 18 and 0 <= g + 4*jj - (h >> 1) < 5
                L.append((addr(3, mask64(valid)), h*1520 + (16*j - 18*h)*80 + (4*jj - (h >> 1))*16))
            numf[(j, h)] = len(frags); frags.append(L)
    def doprep(n):
        for _ in range(n):
            if prep:
                r, base, m = prep.pop(0)
                smask(e, 48, m); e(f"v_cndmask_b32 v{r}, v16, v{base}, s[48:49]")
    ng = 16 // C
    e(f"s_and_b32 s5, s{S_WV}, 1\ns_mul_i32 s59, s5, 96")
    e(f"v_lshrrev_b32 v1, 5, v2\nv_lshl_add_u32 v1, v1, 4, v13\nv_and_b32 v244, 1, v14")
    e(f"v_lshlrev_b32 v{VST}, 4, v1\nv_lshl_add_u32 v{VST}, v244, 9, v{VST}")
    e(f"v_cmp_eq_u32 s[48:49], 0, v244\nv_lshlrev_b32 v{VSA}, 3, v1\nv_lshlrev_b32 v{VMX}, 2, v1\nv_mov_b32 v1, {BIG}\nv_cndmask_b32 v{VSA}, v1, v{VSA}, s[48:49]")
    e(f"s_mul_i32 s51, s{S_WS}, 36864")
    e(f"v_lshrrev_b32 v245, 2, v2\nv_mul_u32_u24 v245, 192, v245\nv_and_b32 v{TB}, 3, v2\nv_lshl_add_u32 v245, v{TB}, 3, v245")
    e(f"s_add_u32 s7, s{S_WL}, s59\nv_add_u32 v{TB}, s7, v245\ns_add_u32 s7, s{S_WL}, 96\ns_sub_u32 s7, s7, s59\nv_add_u32 v{TB+1}, s7, v245\nv_add_u32 v{VD}, {2*SLOT}, v{TB}\nv_add_u32 v{VD+1}, {2*SLOT}, v{TB+1}")
    if xl_:
        for i in range(3):
            e(f"v_add_u32 v249, {64*i}, v2\nv_mul_u32_u24 v250, 10923, v249\nv_lshrrev_b32 v250, 16, v250\nv_lshlrev_b32 v249, 4, v249\nv_mul_u32_u24 v250, {1152-96}, v250")
            e(f"v_add_u32 v{246+i}, v249, v250" + (f"\nv_subrev_u32 v{246+i}, {1024*i}, v{246+i}" if i else ""))
        e(f"v_mul_u32_u24 v249, 96, v13\nv_lshl_add_u32 v249, v14, 3, v249\nv_add_u32 v249, s{S_RB}, v249")
        e(f"v_cmp_lt_u32 vcc, 19, v2\nv_add_u32 v251, s100, v{VL16}\ns_sub_u32 s5, s101, 320\nv_add_u32 v250, s5, v{VL16}\nv_cndmask_b32 v251, v251, v250, vcc\nv_cmp_lt_u32 vcc, 27, v2\nv_mov_b32 v250, {BIG}")
        e(f"v_mul_u32_u24 v252, 80, v14\nv_cndmask_b32 v251, v251, v250, vcc\nv_add_u32 v252, s{S_RB}, v252\nv_add_u32 v253, s{S_RB}, v{VMX}")
    doprep(npre)
    e(f"s_waitcnt vmcnt(0)")
    tm.stamp(0)
    e(f"s_barrier\nbuffer_atomic_add v{VF}, v23, {W}, s{S_SIG} offen sc1")
    wr = []
    for ks in range(5):
        for ct in range(6):
            r = WFR + 24*ks + (4 if ks < 4 else 2)*ct
            for i in range(2 if ks < 4 else 1):
                T_ = 2*ks + i; sl = WSL[T_//3]
                wr.append((T_, f"ds_read_b64_tr_b16 a[{r+2*i}:{r+2*i+1}], v{(TB if sl < 2 else VD) + ct//3} offset:{(sl % 2)*SLOT + (T_%3)*3072 + (ct%3)*32}"))
    alu = F['jcalc'](3, 44) + f"""
s_mul_i32 s30, s3, 576
s_and_b32 s3, s3, 1
s_xor_b32 s39, s3, 1
s_lshl_b32 s39, s39, 9
s_add_u32 s39, s39, s30
s_lshl_b32 s3, s3, 6
s_add_u32 s30, s30, s3
s_and_b32 s3, s{S_WV}, 1
s_mul_i32 s3, s3, {72*9216}
s_add_u32 s30, s30, s3
s_add_u32 s39, s39, s3
s_add_u32 s39, s39, s3
v_lshrrev_b32 v16, 2, v2
v_mul_u32_u24 v16, 9216, v16
v_and_b32 v17, 3, v2
v_lshl_add_u32 v16, v17, 4, v16
v_add_u32 v17, {16*9216-1024}, v16
v_add_u32 v23, {32*9216-2048}, v16
s_mul_i32 s31, s{S_WV}, 9216
v_bfe_u32 v{VD}, v2, 2, 3
v_mul_u32_u24 v{VD}, 9216, v{VD}
v_and_b32 v{VD+1}, 3, v2
v_lshl_add_u32 v{VD}, v{VD+1}, 4, v{VD}
v_lshrrev_b32 v{VD+1}, 5, v2
v_lshl_add_u32 v{VD}, v{VD+1}, 6, v{VD}
v_add_u32 v{VD+1}, {8*9216-1024}, v{VD}
v_add_u32 v{VD+2}, {16*9216-2048}, v{VD}"""
    gusel = f"s_cmp_lt_u32 s{S_WV}, 2\ns_cselect_b32 s12, s12, s14\ns_cselect_b32 s13, s13, s15\ns_and_b32 s13, s13, 0xffff\ns_mov_b32 s14, {576*4608*2}\ns_mov_b32 s15, 0x20000"
    def kdma(st):
        kind, qq = F["early"][F["perm"].index(st)]
        if kind == "S":
            return [([f"s_add_u32 m0, s31, {st*SLOT + i*1024}", f"s_add_u32 s44, s39, {(qq*288 + 16*i)*9216}"] if i % 3 == 0 else [],
                     f"buffer_load_dwordx4 v{(16,17,23)[i%3]}, s[12:15], s44 offen" + (f" offset:{(i%3)*1024}" if i % 3 else "") + " lds", ("dma", st), 2*dp) for i in range(9)]
        return [([f"s_add_u32 m0, s31, {st*SLOT + i*1024}", f"s_add_u32 s44, s30, {(qq*144 + 8*i)*9216}"] if i % 3 == 0 else [],
                 f"buffer_load_dwordx4 v{VD+i%3}, s[12:15], s44 offen" + (f" offset:{(i%3)*1024}" if i % 3 else "") + " lds", ("dma", st), dp) for i in range(9)]
    e(f"s_lshr_b32 s5, s2, 6\ns_cmp_eq_u32 s5, {idle}\ns_cbranch_scc1 F2_idle")
    lissue(nl)
    tdone = (27 - nl)//3
    wr1 = [t_ for T_, t_ in wr if T_ < tdone]; wr2 = [t_ for T_, t_ in wr if T_ >= tdone]
    apoll = f"v_mov_b32 v{VF}, 0\nbuffer_atomic_add v{VF}, v{VLZ}, {W}, s45 offen sc0 sc1"
    if xl_:
        e(f"s_add_u32 m0, s{S_RB}, 8192\ns_nop 0\nbuffer_load_dwordx4 v251, {W}, 0 offen{sf} lds")
        e(f"s_add_u32 m0, s{S_RB}, 9216\ns_nop 0")
        for i in range(3): e(f"buffer_load_dwordx4 v{246+i}, s[{S_X}:{S_X+3}], s99 offen" + (f" offset:{1024*i}" if i else "") + " lds")
    if stat and not stlate:
        for _, t_, _ in stat: e(t_)
    if npe: e("s_nop 1\n" + apoll)
    for t_ in wr1: e(t_)
    rdv = f"s_waitcnt vmcnt(0)\nv_readfirstlane_b32 s5, v{VF}\ns_nop 1"
    if npe: e(f"{rdv}\ns_cmp_ge_u32 s5, 0x200\ns_cbranch_scc1 F2_q\nF2_ql:\ns_sleep {slp}\n{apoll}\n{rdv}\ns_cmp_ge_u32 s5, 0x200\ns_cbranch_scc0 F2_ql\nF2_q:")
    pql = []
    for b in (1, 0):
        for q_ in range(9):
            pre = [f"s_add_u32 s29, s{25+b}, {WS_PQ + q_*1024}"] if q_ % 4 == 0 else []
            r = PQ + 36*b + 4*q_
            pql.append((pre, f"buffer_load_dwordx4 a[{r}:{r+3}], v{VL16}, {W}, s29 offen" + (f" offset:{(q_%4)*1024}" if q_ % 4 else "") + lf, ("pq", 2*b + (q_ > 4)), p0 if b == 1 else p1))
    for pre, t_, _, _ in pql[:npe]:
        for p in pre: e(p)
        e(t_)
    if stat and stlate:
        for _, t_, _ in stat: e(t_)
    e(apoll)
    xl = [f"v_accvgpr_read_b32 v{XT+k}, a{228+k}" for k in range(12)] + ["v_accvgpr_read_b32 v1, a240"] + \
         [f"v_permlane16_swap_b32 v{XT+4*k+i}, v{XT+4*k+i+2}" for k in range(3) for i in range(2)] + \
         [f"v_permlane32_swap_b32 v{XT+4*k+i}, v{XT+4*k+i+2}" for k in range(3) for i in range(2)] + \
         [f"v_accvgpr_write_b32 a{XA+k}, v{XT+k}" for k in range(12)]
    if xl_: xl = []
    sv = e.lines; e.lines = []
    assert not prep and nl <= 9
    e(alu)
    for t in range(1, 4): smask(e, 52 + 2*(t-1), mask64(lambda l: (l >> 4) < t))
    m0_ = mask64(lambda l: (l >> 4) == ((l & 15) >> 2) and (l & 2) == 0); m1_ = mask64(lambda l: (l >> 4) == ((l & 15) >> 2) and (l & 2) == 2)
    ID = 6
    e(f"s_movk_i32 s58, 0x3f80\nv_and_b32 v5, 1, v13\nv_lshlrev_b32 v5, 4, v5\nv_lshlrev_b32_e64 v5, v5, s58")
    smask(e, 48, m0_); e(f"v_cndmask_b32 v{ID}, 0, v5, s[48:49]"); smask(e, 48, m1_); e(f"v_cndmask_b32 v{ID+1}, 0, v5, s[48:49]")
    e(f"v_lshlrev_b32 v5, 3, v2\nv_add_u32 v3, s{S_RB}, v5")
    e(f"s_and_b32 s5, s{S_WV}, 2\nv_xor_b32 v14, s5, v14\nv_lshl_add_u32 v13, v14, 4, v13\ns_lshl_b32 s5, s{S_WV}, 8\ns_add_u32 s5, s5, {MXC}\nv_lshl_add_u32 v13, v13, 2, s5")
    e(f"s_lshl_b32 s5, s{S_WV}, 6\ns_and_b32 s5, s5, 128\ns_add_u32 s5, s5, {MXC}\nv_add_u32 v{VMX}, s5, v{VMX}")
    e(f"s_mul_i32 s5, s{S_CG}, 6144\ns_lshl_b32 s6, s59, 5\ns_add_u32 s5, s5, s6\ns_add_u32 s5, s5, s51\ns_add_u32 s4, s5, {WS_HC}\ns_add_u32 s3, s5, {WS_HT}")
    e(f"s_lshl_b32 s6, s{S_CG}, 1\ns_and_b32 s7, s{S_WV}, 1\ns_add_u32 s6, s6, s7\ns_lshl_b32 s6, s6, 14\ns_lshl_b32 s7, s{S_WS}, 8\ns_add_u32 s6, s6, s7\ns_add_u32 s7, s6, {WS_ST}")
    alul = e.lines; e.lines = sv
    if alupre: e.lines += alul
    tm.stamp(1)
    rd = f"s_waitcnt vmcnt(0)\nv_readfirstlane_b32 s5, v{VF}\ns_nop 1\ns_cmp_ge_u32 s5, 0x220\ns_cbranch_scc1 F2_go"
    if pqt:
        e(f"s_mov_b32 s58, 0\nv_lshlrev_b32 v246, 7, v2\nv_cmp_gt_u32 vcc, 8, v2\nv_mov_b32 v247, {BIG}\ns_add_u32 s27, s25, {WS_PQ}\ns_add_u32 s28, s26, {WS_PQ}\nv_add_u32 v248, 8192, v246\nv_cndmask_b32 v247, v247, v248, vcc")
        tch = f"""s_cmp_lt_u32 s5, 0x200
s_cbranch_scc1 F2_nt
s_cmp_ge_u32 s5, {0x200 + pqt}
s_cbranch_scc1 F2_nt
s_cmp_lg_u32 s58, 0
s_cbranch_scc1 F2_nt
s_mov_b32 s58, 1
buffer_load_dword v248, v246, {W}, s28 offen{sf}
buffer_load_dword v248, v247, {W}, s28 offen{sf}
buffer_load_dword v248, v246, {W}, s27 offen{sf}
buffer_load_dword v248, v247, {W}, s27 offen{sf}
s_branch F2_pl
F2_nt:
"""
    else: tch = ""
    e(f"{rd}\nF2_pl:\n{apoll}\n{rd}\n{tch}s_and_b32 s6, s5, 0xff\ns_cmp_ge_u32 s6, {thr}\ns_cbranch_scc1 F2_pl\ns_sleep {slp}\ns_branch F2_pl\nF2_go:")
    tm.stamp(2)
    for i in range(12):
        if xl_ and i == 4:
            for c3 in range(3):
                for tt in range(2): e(f"ds_read_b64 a[{XA+4*c3+2*tt}:{XA+4*c3+2*tt+1}], v249 offset:{9216 + tt*1536 + c3*32}")
            for k in range(5): e(f"ds_read_b128 a[{WB+4*k}:{WB+4*k+3}], v252 offset:{8192 + 16*k}")
            e(f"ds_read_b32 v1, v253 offset:{8192 + 320}")
        if xl_ and i == 8: e("s_waitcnt lgkmcnt(0)")
        if i % 4 == 0: e(f"s_add_u32 m0, s{S_RB}, {i*1024}\ns_add_u32 s6, s24, {WS_KV + i*1024}")
        e.vmem(f"buffer_load_dwordx4 v{VL16}, {W}, s6 offen" + (f" offset:{(i%4)*1024}" if i % 4 else "") + lf + " lds", ("kv", i))
    vq = pql[npe:] + (kdma(0) + kdma(1) + kdma(2))[:ndma]
    state = {"last": 0}
    def pace(force=False):
        if vq and (force or e.n - state["last"] >= vq[0][3]):
            if vq[0][2][0] == "dma" and not state.get("ok"): return
            if vq[0][2][0] == "dma" and not state.get("bar"):
                e("s_barrier"); state["bar"] = True
            pre, t, tag, _ = vq.pop(0)
            for p in pre: e(p)
            e.vmem(t, tag); state["last"] = e.n
    for t_ in wr2: e(t_)
    if not alupre: e.lines += alul
    for l in xl: e(l)
    for _ in range(npq):
        if vq[0][2][0] == "pq": pace(True)
    e("s_waitcnt lgkmcnt(0)\n" + gusel)
    for lq in (1, 2, 3): e(f"s_xor_b32 s5, s{S_WV}, {lq}\ns_mul_i32 s5, s5, 12288\ns_add_u32 s5, s5, {KVB}\nv_add_u32 v{8+lq-1}, s5, v5")
    order = list(range(6, 22)) + list(range(6)) if prog else list(range(22))
    def need(f):
        return 11 if f < 6 or not prog else (((f - 6)//2 + 1)*1520 - 1)//1024
    def ards(k):
        f = order[k]; rb = RAW + 8*(k % 6)
        e.wait_vm(lambda t: t == ("kv", need(f)))
        if k == 0: tm.stamp(3)
        for jj in range(2):
            ar, off = frags[f][jj]
            if ar is not None:
                e.ds(f"ds_read_b128 v[{rb+4*jj}:{rb+4*jj+3}], v{ar} offset:{off}", f)
    for k in range(bla): ards(k)
    for k in range(22):
        if k + bla < 22: ards(k + bla)
        pace()
        f = order[k]; rb = RAW + 8*(k % 6)
        e.wait_lg(lambda t: t == f)
        for jj in range(2):
            d = A + 4*f + 2*jj
            if frags[f][jj][0] is None: e(f"v_mov_b32 v{d}, 0\nv_mov_b32 v{d+1}, 0")
            else: e(f"v_cvt_pk_bf16_f32 v{d}, v{rb+4*jj}, v{rb+4*jj+1}\nv_cvt_pk_bf16_f32 v{d+1}, v{rb+4*jj+2}, v{rb+4*jj+3}")
    tm.stamp(4)
    state['ok'] = True
    q = Queue(e, window=10)
    def pqf(t, tile):
        r = PQ + 36*(t >> 1) + 18*(t & 1) + 2*tile
        return f"a[{r}:{r+3}]"
    def force(ops):
        for o in ops:
            if o.pos is None: q.drain_until(o)
    eps = hex(f2u(1e-6))
    rdops = {}; rduse = {0: [], 1: []}; ocv = {}; guse = {0: [], 1: []}
    NS = 4
    ringfree = [[] for _ in range(NS)]; mixfree = [None]*4; mixi = [0]; cnt = [0]
    def den_items(t):
        L = []
        for k, (c, T0, f) in enumerate(zf):
            def it(k=k, c=c, T0=T0, f=f):
                if k == 0:
                    while any(v[2] == ("pq", t) for v in vq): pace(True)
                    e.wait_vm(lambda x: x == ("pq", t))
                    force(rduse[t & 1]); rduse[t & 1] = []
                d = RD + 8*(t & 1) + 4*c
                o = e.op(Op(f"v_mfma_f32_16x16x32_bf16 v[{d}:{d+3}], v[{A+4*f}:{A+4*f+3}], {pqf(t, T0)}, " + ("0" if k % 3 == 0 else f"v[{d}:{d+3}]")))
                if k % 3 == 2:
                    for r in range(4):
                        o1 = q.add(Op(f"v_add_f32 v{d+r}, {eps}, v{d+r}", deps=[(o, 9)]))
                        rdops[(t, 4*c + r)] = q.add(Op(f"v_rcp_f32 v{d+r}, v{d+r}", cost=2, deps=[(o1, 0)]))
            L.append(it)
        return L
    def num_items(t):
        L = []
        for j in range(9):
            hs = [h for h in (j - 1, j) if 0 <= h < 8]
            for k, h in enumerate(hs):
                def it(j=j, k=k, h=h, last=(k == len(hs) - 1)):
                    if k == 0:
                        cnt[0] += 1
                        force(ringfree[cnt[0] % NS])
                    slot = cnt[0] % NS; d = NR + 4*slot; a = A + 4*numf[(j, h)]
                    o = e.op(Op(f"v_mfma_f32_16x16x32_bf16 v[{d}:{d+3}], v[{a}:{a+3}], {pqf(t, h)}, " + ("0" if k == 0 else f"v[{d}:{d+3}]")))
                    if not last: return
                    R = RD + 8*(t & 1)
                    muls = []; mixcache = {}
                    for r in range(4):
                        th = sum(1 for g in range(4) if 4*g + r < 2*j)
                        if th == 0: src, dp_ = R + j, [(rdops[(t, j)], 1)]
                        elif th == 4: src, dp_ = R + j - 1, [(rdops[(t, j-1)], 1)]
                        else:
                            if th not in mixcache:
                                mi = mixi[0] % 4; mixi[0] += 1
                                dd = [(rdops[(t, j)], 1), (rdops[(t, j-1)], 1)] + [(x, 0) for x in (mixfree[mi] or [])]
                                s_ = 52 + 2*(th-1)
                                mo = q.add(Op(f"v_cndmask_b32 v{MIX+mi}, v{R+j}, v{R+j-1}, s[{s_}:{s_+1}]", deps=dd))
                                mixcache[th] = (mi, mo); mixfree[mi] = []
                            mi, mo = mixcache[th]
                            src, dp_ = MIX + mi, [(mo, 0)]
                        m = q.add(Op(f"v_mul_f32 v{d+r}, v{d+r}, v{src}", deps=[(o, 9)] + dp_))
                        if th not in (0, 4): mixfree[mixcache[th][0]].append(m)
                        muls.append(m)
                    rduse[t & 1] += muls
                    od = O + 18*(t & 1) + 2*j
                    c1 = q.add(Op(f"v_cvt_pk_bf16_f32 v{od}, v{d}, v{d+1}", deps=[(muls[0], 0), (muls[1], 0)]))
                    c2 = q.add(Op(f"v_cvt_pk_bf16_f32 v{od+1}, v{d+2}, v{d+3}", deps=[(muls[2], 0), (muls[3], 0)]))
                    ringfree[slot] = [c1, c2]; ocv[(t, j)] = [c1, c2]
                L.append(it)
        return L
    mlast = {}
    def gemm_items(t, cts):
        L = []
        prev = {}
        for ks in range(5):
            for ct in cts:
                def it(ks=ks, ct=ct):
                    need = ocv[(t, 2*ks)] + (ocv[(t, 2*ks + 1)] if ks < 4 else [])
                    force(need)
                    deps = [(o, 2) for o in need]
                    if ks == 4: deps.append((prev[ct], 6))
                    n = 4 if ks < 4 else 2
                    o_ = O + 18*(t & 1) + 4*ks
                    op = "v_mfma_f32_16x16x32_bf16" if ks < 4 else "v_mfma_f32_16x16x16_bf16"
                    if ct == 6:
                        d = f"a[{MN+4*t}:{MN+4*t+3}]"; a = WB + 4*ks
                    else:
                        keep = t < 2 and ct < 3
                        dr = ACC + 12*t + 4*ct if keep else GB + 24*(t & 1) + 4*ct
                        if ks == 0 and not keep: force(guse[t & 1])
                        d = f"v[{dr}:{dr+3}]"; a = WFR + 24*ks + n*ct
                    mo = e.op(Op(f"{op} {d}, a[{a}:{a+n-1}], v[{o_}:{o_+n-1}], " + ("0" if ks == 0 else d), deps=deps))
                    prev[ct] = mo
                    if ks < 4: return
                    if ct == 6: mlast[t] = mo
                    elif keep:
                        x = XA + 4*ct + 2*t
                        q.fill(2)
                        e(f"v_mfma_f32_16x16x16_bf16 {d}, v[{ID}:{ID+1}], a[{x}:{x+1}], {d}")
                    else:
                        lq = (t >> 1)*2 + ct//3
                        c1 = q.add(Op(f"v_cvt_pk_bf16_f32 v{dr}, v{dr}, v{dr+1}", deps=[(mo, 9)]))
                        c2 = q.add(Op(f"v_cvt_pk_bf16_f32 v{dr+1}, v{dr+2}, v{dr+3}", deps=[(c1, 0)]))
                        w_ = q.add(Op(lambda dr=dr, off=lq*3072 + ((t & 1)*3 + ct % 3)*512: e.ds(f"ds_write_b64 v3, v[{dr}:{dr+1}] offset:{off}", "xw"), deps=[(c2, 0)]))
                        guse[t & 1].append(w_)
                L.append(it)
        return L
    def run(a, b=(), fill=mfill):
        a = list(a); b = list(b); na_, nb_ = len(a), len(b); ia = ib = 0
        while ia < na_ or ib < nb_:
            if ib < nb_ and (ia >= na_ or ib*na_ <= ia*nb_*lead_): b[ib](); ib += 1
            else: a[ia](); ia += 1
            pace(); q.fill(fill)
    e("s_nop 1")
    if fine:
        run(den_items(2), fill=3)
        run(num_items(2)[:fine] + den_items(3) + num_items(2)[fine:], fill=4)
    else:
        run(den_items(2) + den_items(3), fill=3)
        run(num_items(2), fill=4)
    tm.stamp(5)
    allc = [0, 1, 2, 3, 4, 5, 6]
    run(gemm_items(2, allc), num_items(3)[:6] + den_items(0) + num_items(3)[6:])
    run(gemm_items(3, allc), num_items(0)[:6] + den_items(1) + num_items(0)[6:])
    run(gemm_items(0, allc), num_items(1))
    run(gemm_items(1, [6, 3, 4, 5]))
    while vq: pace(True)
    prev = None
    for t in range(4):
        prev = q.add(Op(f"v_accvgpr_read_b32 v{16 + (t > 0)}, a{MN+4*(3-t)}", deps=[(mlast[3-t], 9)] + ([(prev, 0)] if prev else [])))
        if t: prev = q.add(Op(f"v_cndmask_b32 v16, v16, v17, s[{58-2*t}:{59-2*t}]", deps=[(prev, 0)]))
    q.add(Op(lambda: e.ds(f"ds_write_b32 v13, v16", "mw"), deps=[(prev, 0)]))
    own = gemm_items(1, [0, 1, 2])
    run(own[:nbar])
    q.drain()
    tm.stamp(6)
    e("s_waitcnt lgkmcnt(0)\ns_barrier")
    IN = 40
    for l2 in (1, 2, 3):
        for i in range(3):
            r = IN + 12*(l2-1) + 4*i
            q.add(Op(f"ds_read2st64_b64 v[{r}:{r+3}], v{8+l2-1} offset0:{l2*6 + 2*i} offset1:{l2*6 + 2*i + 1}"))
    q.add(Op(f"ds_read2st64_b32 v[104:105], v{VMX} offset0:0 offset1:1")); q.add(Op(f"ds_read2st64_b32 v[106:107], v{VMX} offset0:2 offset1:3"))
    run(own[nbar:])
    q.drain()
    tm.stamp(7)
    e("v_mov_b32 v13, 0x3f80\nv_mov_b32 v14, 0x3f800000\nv_mov_b32 v15, 0x3f803f80\nv_mov_b32 v8, 0\nv_mov_b32 v9, 0\ns_nop 2")
    e("s_waitcnt lgkmcnt(0)")
    for lq in (1, 2, 3):
        for i in range(3):
            for k in range(4):
                r = IN + 12*(lq-1) + 4*i + k; d = ACC + 2*(4*i + k)
                e(f"v_dot2c_f32_bf16 v{d}, v{r}, v13\nv_dot2c_f32_bf16 v{d+1}, v{r}, v14")
    e("v_pk_add_f32 v[104:105], v[104:105], v[106:107]\nv_add_f32 v1, v1, v104\nv_add_f32 v1, v1, v105\nv_cvt_pk_bf16_f32 v1, v1, v1\nv_and_b32 v1, 0xffff0000, v1\nv_xor_b32 v1, 0x80000000, v1")
    H = 80; HC = 92; TL = 40
    for c3 in range(3):
        for tt in range(2):
            a = ACC + 12*tt + 4*c3
            e(f"v_cvt_pk_bf16_f32 v{H+4*c3+2*tt}, v{a}, v{a+1}\nv_cvt_pk_bf16_f32 v{H+4*c3+2*tt+1}, v{a+2}, v{a+3}")
    for c3 in range(3):
        e(f"v_permlane32_swap_b32 v{H+4*c3}, v{H+4*c3+2}\nv_permlane32_swap_b32 v{H+4*c3+1}, v{H+4*c3+3}")
    for c3 in range(3):
        e(f"buffer_store_dwordx4 v[{H+4*c3}:{H+4*c3+3}], v{VST}, {W}, s3 offen" + (f" offset:{1024*c3}" if c3 else "") + sf)
        for r in range(H + 4*c3, H + 4*c3 + 4): e(f"v_dot2c_f32_bf16 v8, v{r}, v15\nv_dot2c_f32_bf16 v9, v{r}, v{r}")
    for c3 in range(3):
        for k in range(4):
            r = H + 4*c3 + k; t = TL + 8*c3 + 2*k
            e(f"v_dot2_f32_bf16 v{t}, v{r}, v13, v1\nv_dot2_f32_bf16 v{t+1}, v{r}, v14, v1")
        if c3 == 0: e("v_mov_b32 v6, v8\nv_mov_b32 v7, v9")
        if c3 == 1: e("v_permlane16_swap_b32 v6, v8\nv_permlane16_swap_b32 v7, v9")
    e(f"v_pk_add_f32 v[6:7], v[6:7], v[8:9]\nbuffer_store_dwordx2 v[6:7], v{VSA}, {W}, s7 offen{sf}")
    for c3 in range(3):
        for k in range(4): e(f"v_cvt_pk_bf16_f32 v{HC+4*c3+k}, v{TL+8*c3+2*k}, v{TL+8*c3+2*k+1}")
        e(f"buffer_store_dwordx4 v[{HC+4*c3}:{HC+4*c3+3}], v{VST}, {W}, s4 offen" + (f" offset:{1024*c3}" if c3 else "") + sf)
    tm.stamp(8)
    e(f"s_lshl_b32 s59, s{S_WS}, 8\ns_add_u32 s59, s59, {WS_FA}\ns_branch K2_done")
    e("F2_idle:\ns_waitcnt vmcnt(0) lgkmcnt(0)\ns_barrier")
    e(alu)
    if prefetch and pf2:
        srd(e, 52, 12, 576*4608*2); srd(e, 56, 14, 576*4608*2)
        F['pf'](e, pf2)
    if pfd:
        srd(e, 52, 40, 4608*576*2)
        slice_of_xcd(e, 5, 2, C)
        e(f"s_mul_i32 s5, s5, {576*1152}\ns_bfe_u32 s6, s2, 0x30003\ns_mul_i32 s6, s6, {72*1152}\ns_add_u32 s5, s5, s6\nv_mov_b32 v13, {BIG}")
        for i in range(3):
            e(f"v_add_u32 v3, {256*i}, v0\nv_lshlrev_b32 v12, 7, v3\nv_cmp_gt_u32 vcc, 648, v3\ns_nop 1\nv_cndmask_b32 v12, v13, v12, vcc\nbuffer_load_dword v244, v12, s[52:55], s5 offen")
    e(gusel)
    for st in range(3):
        for pre, t_, _, _ in kdma(st):
            for p in pre: e(p)
            e(t_)
    e("s_mov_b32 s59, -1\nK2_done:")
    F["nleft"] = 0; F["pre_stages"] = 3
```

```python
from sched import *
from layout import *
from tim import Tim
import struct, math
def f2u(x): return struct.unpack("<I", struct.pack("<f", x))[0]

def srd(e, d, b, nbytes, off=0):
    if off > 0:
        e(f"s_add_u32 s{d}, s{b}, {off}\ns_addc_u32 s{d+1}, s{b+1}, 0\ns_and_b32 s{d+1}, s{d+1}, 0xffff")
    elif off < 0:
        e(f"s_sub_u32 s{d}, s{b}, {-off}\ns_subb_u32 s{d+1}, s{b+1}, 0\ns_and_b32 s{d+1}, s{d+1}, 0xffff")
    else:
        e(f"s_mov_b32 s{d}, s{b}\ns_and_b32 s{d+1}, s{b+1}, 0xffff")
    e(f"s_mov_b32 s{d+2}, {nbytes}\ns_mov_b32 s{d+3}, 0x20000")

SLOT = 36864
STAMPS = [0, 135, -1, -2, 568, 648, 720, 792, 864, 900, 936, 971]
def gen_q3(fused, timing=False, budget=5, lead=45, bud2=6, f0=(646, 668), f1=(666, 722, 744), f2=((758, 780, 846, 868), (758, 780, 822, 844)),
           slack=2.25, vcost=1, ldpace=6, dsp=4, dtail=1, hpre=166, hsp=2, slp=8, na=3, of=' sc1', ctouch=(20, 542, 700, 800), hd=7,
           order0='PSPSPP', bud0=5, xrate=4, stat=100, nz=4, xmap=1, C=2, sga=30, sgb=(0, 0), wdpf=True, korder=(0, 1, 2, 3, 6, 4, 5), mig=(4, 5), y8=30, nh=0, xpos=0, ownf=0, ins=None, spc=0):
    if nh: mig = ()
    e = fused['e']; tm = fused['tm3']
    xf = gst = gld = store_flags = plf = ' sc0 sc1'
    TRB = 4; V1 = 8; VB = 17; VE = 26; VP1 = 29; VS = 30
    VK1 = 34; VK2 = 35; VS2 = 36; VL16 = 37; VPF = 38; VZ = 39; VF = 40; V3 = 41; VONE = 42; T = 44
    TM = 208
    SAC = 224; S_W2 = 44
    ACC = 56; OLD = 120; GT = 184; GS = 200; GP = 208
    FR = 144; GO = 192; GP3 = 120; GPS = 112; HA = 240
    S_W = 8; S_WD = 12; S_HC = S_ST = S_PT = S_GX = S_FL = 16; S_XH = 20
    S_J = 28; S_I = 29; S_WV = 30; S_WB = 31; S_CP = 32; S_CS = 33; S_SO = 34; S_XO = 35
    S_PO = 36; S_PS = 37
    S_B0 = 38; S_B1 = 39; S_A0 = 21; S_A1 = 22; S_CNT = 49; S_GO = 50; S_XS = 51; S_SS = 52; S_PF = 53
    S_MK = 54
    S_OWN = 56; S_PAR = 57; S_SNG = 58; S_TMP = 59
    S_GW = 40; S_GR = 41; S_FW = 42; S_FR = 43
    e("s_mov_b32 s23, s59\ns_mov_b64 s[26:27], s[42:43]\ns_mov_b64 s[44:45], s[40:41]\ns_mov_b64 s[40:41], s[12:13]")
    e(f"v_lshrrev_b32 v1, 6, v0\nv_and_b32 v2, 63, v0\ns_lshr_b32 s{S_I}, s2, 4\n{fused['jcalc'](S_J, 5)}\nv_readfirstlane_b32 s{S_WV}, v1")
    e(f"v_lshlrev_b32 v{VL16}, 4, v2")
    e(f"v_bfe_u32 v3, v2, 2, 3\nv_and_b32 v{TM}, 3, v2\nv_lshlrev_b32 v{TM}, 4, v{TM}\nv_lshrrev_b32 v{TM+1}, 5, v2\nv_lshl_add_u32 v{TM+1}, v{TM+1}, 6, v{TM}")
    e(f"s_mul_i32 s{S_WB}, s{S_WV}, 9216")
    e(f"s_and_b32 s3, s{S_J}, 1\ns_mul_i32 s6, s{S_J}, 576\ns_lshl_b32 s7, s3, 6\ns_add_u32 s{S_CP}, s6, s7")
    e(f"s_and_b32 s4, s{S_WV}, 1\ns_mul_i32 s5, s4, {72*9216}\ns_add_u32 s{S_CP}, s{S_CP}, s5")
    e(f"v_mul_u32_u24 v1, 9216, v3\nv_add_u32 v{V1}, v1, v{TM+1}")
    for i in range(1, 9): e(f"v_add_u32 v{V1+i}, {8*i*9216 - (i%3)*1024}, v{V1}")
    e(f"s_lshl_b32 s5, s{S_I}, 2\ns_add_u32 s5, s5, s{S_WV}\ns_mul_i32 s{S_XO}, s5, 36864\ns_add_u32 s{S_XH}, s{S_XO}, {WS_HC}")
    e(f"v_lshrrev_b32 v1, 5, v2\nv_lshlrev_b32 v1, 8, v1\nv_bfe_u32 v{T}, v2, 2, 2\nv_lshl_add_u32 v1, v{T}, 6, v1")
    e(f"v_bfe_u32 v{T}, v2, 4, 1\nv_lshl_add_u32 v1, v{T}, 5, v1\nv_and_b32 v{T}, 3, v2\nv_lshl_add_u32 v{TRB}, v{T}, 3, v1")
    for i in range(1, 4): e(f"v_add_u32 v{TRB+i}, {i*SLOT}, v{TRB}")
    srd(e, S_W, 40, 576*4608*2)
    srd(e, S_HC, 46, WS_BYTES)

    NST = 27
    perm = fused['perm']
    ST1 = []
    for ch in order0: ST1.append(((0 if ch == "P" else "S"), sum(1 for x in ST1 if (x[0] == "S") == (ch == "S"))))
    ST1 += [(p, q_) for p in (1, 2, 3) for q_ in range(4)]
    BLK = {0: (S_OWN, 0), 1: (S_OWN, 1), 2: (S_OWN, 2), 7: (S_OWN, 3), 3: (S_PAR, 0), 4: (S_PAR, 1), 5: (S_PAR, 2), 8: (S_PAR, 3), 6: (S_SNG, 0)}
    def plan_of(h):
        zs = ([0, 1, 2, 7] if h == 0 else [3, 4, 5, 8])[:nz]
        nk = 7 - 2*nh
        L = [("K", k) for k in korder[:nk]]
        X = [("X", zs)] if h == 0 and nz else []
        hb = [tuple(korder[nk+2*i:nk+2*i+2]) for i in range(nh)]
        L += [("N", (0, b)) for b in hb] + (X if xpos == 0 else []) + [("N", (0, (7, 8)))] + (X if xpos == 1 else []) + [("N", (1, b)) for b in hb + [(7, 8)]]
        return L + [("Y", [b for b in (0, 1, 2, 3, 4, 5, 6, 7, 8) if b not in zs])]
    plan = []
    def dma_instrs(st, inbody=False):
        slot = perm[st % 4]
        L = []
        def grp(g, so, vs, sr):
            if so: L.append((so, False))
            L.append((f"s_add_u32 m0, s{S_WB}, {slot*SLOT + g*3072}", False))
            for k in range(3):
                L.append((f"buffer_load_dwordx4 v{vs[k]}, s[{sr}:{sr+3}], s{sreg} offen" + (f" offset:{k*1024}" if k else "") + " lds", True))
        sreg = S_SO
        if inbody and st < 20:
            sreg = {16: S_A0, 17: S_A1, 18: S_B0, 19: S_B1}[st]; vb = V1 if st < 18 else VB
            for g in range(3): grp(g, None, [vb+3*g, vb+3*g+1, vb+3*g+2], S_W if st < 18 else S_W2)
            L.append((f"s_add_u32 s{sreg}, s{sreg}, 128", False))
        elif st < 18:
            p, q = ST1[st]
            for g in range(3):
                if p == "S": grp(g, f"s_add_u32 s{S_SO}, s{S_CS}, {q*288*9216}" if g == 0 else None, [VB+3*g, VB+3*g+1, VB+3*g+2], S_W)
                else: grp(g, f"s_add_u32 s{S_SO}, s{S_CP}, {p*128 + q*144*9216}" if g == 0 else None, [V1+3*g, V1+3*g+1, V1+3*g+2], S_W)
        else:
            ty, k = plan[st-18]
            def so(b, extra=0): return f"s_add_u32 s{S_SO}, s{BLK[b][0]}, {BLK[b][1]*64*1152 + extra}"
            def m0(i): L.append((f"s_add_u32 m0, s{S_WB}, {slot*SLOT + i*1024}", False))
            def dm(v, i): L.append((f"buffer_load_dwordx4 v{v}, s[{S_WD}:{S_WD+3}], s{S_SO} offen" + (f" offset:{i*1024}" if i else "") + " lds", True))
            if ty == "K":
                L.append((so(k), False))
                for i in range(8):
                    if i % 3 == 0: m0(i)
                    dm(VB + i, i % 3)
            elif ty == "N":
                for gi, b in enumerate(k[1]):
                    L.append((so(b, 256*k[0]), False)); m0(4*gi)
                    dm(VE, 0); dm(VE + 1, 1); dm(V1, 2); dm(V1 + 1, 3)
            elif ty == "X":
                for gi, b in enumerate(k):
                    L.append((so(b, 512), False))
                    if gi % 2 == 0: m0(2*gi); dm(VE, 0); dm(VP1, 1)
                    else: dm(V1 + 2, 2); dm(V1 + 3, 3)
            else:
                for gi, b in enumerate(k):
                    L.append((so(b), False))
                    if gi % 3 == 0: m0(gi)
                    dm(VS + gi % 3, gi % 3)
        return L
    def emit_list(L):
        n = 0; prev_m0 = False
        for t, tag in L:
            if tag:
                if prev_m0: e("s_nop 0"); n += 1
                e.vmem(t, tag); prev_m0 = False
            else:
                e(t); prev_m0 = "m0" in t
            n += 1
        return n
    def xload_instrs(s):
        L = []
        if s % 4 == 0: L.append((f"s_add_u32 s{S_XS}, s{S_XH}, {s*1024}", None))
        L.append((f"buffer_load_dwordx4 a[{4*s}:{4*s+3}], v{VL16}, s[{S_HC}:{S_HC+3}], s{S_XS} offen" + (f" offset:{(s%4)*1024}" if s % 4 else "") + xf, ("x", s)))
        return L
    e.vm = []; e.vm_done = 0; e.lg = []; e.lg_done = 0

    q = Queue(e, window=10)
    def emit_op(o, _orig=e.op):
        if callable(o.text):
            o.text(); o.pos = e.n - 1; return o
        return _orig(o)
    e.op = emit_op
    chl = [None]
    def chain(text, first_deps=()):
        prev = None
        for l in text.split("\n") if isinstance(text, str) else text:
            if isinstance(l, str):
                l = l.strip()
                if not l: continue
            deps = [(prev, 0)] if prev else list(first_deps) + ([(chl[0], 0)] if chl[0] and chl[0].pos is None else [])
            cost = 2 if isinstance(l, str) and re.match(r"v_(rcp|sqrt|exp|permlane)", l) else 1
            prev = q.add(Op(l, cost=cost, deps=deps))
        chl[0] = prev
        return prev
    e(f"s_lshl_b32 s{S_SS}, s5, 8\nv_and_b32 v{VZ}, 31, v2\nv_lshlrev_b32 v{VZ}, 3, v{VZ}\nv_lshrrev_b32 v1, 5, v2\nv_mul_u32_u24 v1, {6*16384}, v1\nv_add_u32 v{VZ}, v{VZ}, v1")
    srd(e, S_WD, 44, 4608*576*2 + 4096, -4096)
    e(f"s_xor_b32 s7, s3, 1\ns_lshl_b32 s7, s7, 9\ns_add_u32 s{S_CS}, s6, s7\ns_mul_i32 s4, s4, {144*9216}\ns_add_u32 s{S_CS}, s{S_CS}, s4")
    e(f"v_lshrrev_b32 v1, 2, v2\nv_mul_u32_u24 v{T}, 9216, v1\nv_add_u32 v{VB}, v{T}, v{TM}")
    for i in range(1, 9): e(f"v_add_u32 v{VB+i}, {16*i*9216 - (i%3)*1024}, v{VB}")
    e(f"s_mov_b64 s[{S_W2}:{S_W2+1}], s[{S_W}:{S_W+1}]\ns_mov_b32 s{S_W2+2}, s{S_W+2}\ns_mov_b32 s{S_W2+3}, 0x20000")
    e(f"s_lshl_b32 s4, s3, 6\ns_mul_i32 s5, s{S_WV}, {16*1152}\ns_add_u32 s5, s5, 4096\ns_add_u32 s{S_TMP}, s5, s4")
    e(f"v_mul_u32_u24 v{T}, 1152, v3\nv_add3_u32 v{VE}, v{T}, v{TM+1}, s{S_TMP}\nv_subrev_u32 v{VE+1}, {1024-128}, v{VE}\nv_subrev_u32 v{VE+2}, {2048-256}, v{VE}\nv_add_u32 v{VP1}, {8*1152-1024}, v{VE}")
    e(f"v_mul_u32_u24 v{T}, 1152, v1\nv_add_u32 v{T}, v{T}, v{TM}\ns_add_u32 s5, s5, s7")
    e(f"v_add_u32 v{VS}, s5, v{T}\nv_subrev_u32 v{VS+1}, 1024, v{VS}\nv_subrev_u32 v{VS+2}, 2048, v{VS}")
    e(f"""s_lshr_b32 s5, s{S_J}, 1
s_mul_i32 s6, s5, {576*1152}
s_mul_i32 s7, s3, 576
s_add_u32 s6, s6, s7
s_mul_i32 s7, s3, {320*1152}
s_add_u32 s{S_OWN}, s6, s7
s_add_u32 s{S_PAR}, s6, {320*1152}
s_sub_u32 s{S_PAR}, s{S_PAR}, s7
s_lshl_b32 s7, s3, 1
s_xor_b32 s7, s7, s{S_WV}
s_sub_u32 s7, s7, s{S_WV}
s_add_u32 s7, s7, 16
s_mul_i32 s7, s7, {16*1152}
s_add_u32 s{S_SNG}, s6, s7""")
    e(f"""s_mul_i32 s5, s5, {ACT_BYTES}
s_add_u32 s5, s5, s{S_XO}
s_add_u32 s5, s5, {WS_PART}
s_mul_i32 s6, s3, {18*1024}
s_add_u32 s{S_PO}, s5, s6""")
    e(f"""s_lshl_b32 s5, s{S_I}, 4
s_add_u32 s5, s5, s{S_J}
s_lshl_b32 s5, s5, 2
s_add_u32 s5, s5, s{S_WV}
s_xor_b32 s6, s5, 4
s_mul_i32 s{S_GW}, s5, 18432
s_mul_i32 s{S_GR}, s6, 18432
s_lshl_b32 s{S_FW}, s5, 6
s_lshl_b32 s{S_FR}, s6, 6
s_add_u32 s{S_GW}, s{S_GW}, {WS_GX}
s_add_u32 s{S_GR}, s{S_GR}, {WS_GX}
s_add_u32 s{S_FW}, s{S_FW}, {WS_FL}
s_add_u32 s{S_FR}, s{S_FR}, {WS_FL}
s_mov_b32 s{S_GO}, s{S_GW}
s_add_u32 s{S_A0}, s{S_CP}, {128 + 288*9216}
s_add_u32 s{S_A1}, s{S_CP}, {128 + 432*9216}
s_add_u32 s{S_B0}, s{S_CP}, 256
s_add_u32 s{S_B1}, s{S_CP}, {256 + 144*9216}
s_mov_b32 s{S_CNT}, 0""")
    if wdpf:
        e(f"v_mul_u32_u24 v1, 52, v2\nv_lshrrev_b32 v1, 8, v1\nv_lshl_add_u32 v1, v1, 2, v2\nv_lshlrev_b32 v1, 7, v1\nv_cmp_gt_u32 s[54:55], 15, v2\nv_mov_b32 v{VPF}, 0x40000000")
        e(f"s_lshr_b32 s5, s{S_J}, 1\ns_lshl_b32 s5, s5, 4\ns_add_u32 s5, s5, s{S_I}\ns_lshl_b32 s5, s5, 2\ns_add_u32 s5, s5, s{S_WV}\ns_mul_i32 s{S_PF}, s5, {9*1152}\ns_lshl_b32 s5, s3, 9\ns_add_u32 s{S_PF}, s{S_PF}, s5\ns_add_u32 s{S_PF}, s{S_PF}, 4096\nv_cndmask_b32 v{VPF}, v{VPF}, v1, s[54:55]")

    c = 0.7978845608028654; l2e = 1.4426950408889634
    k1 = -2*c*l2e; k2 = k1*0.044715
    M = []
    for st, (p, qq) in enumerate(ST1):
        if p == "S":
            for s in range(18):
                ks = 18*qq + s
                for mat in range(2):
                    o = (mat*18 + s)*1024
                    M.append(dict(acc=f"v{SAC + 16*mat}", dst=None, b=f"a[{4*ks}:{4*ks+3}]", first=(ks == 0), last=(ks == 35), st=st, rd=(o, o + 512), xs=ks, unit=8, mat=mat, ph=1))
            continue
        for s in range(9):
            ks = 9*qq + s
            for uu in range(2):
                for mat in range(2):
                    o = (mat*18 + 2*s)*1024 + uu*512
                    M.append(dict(acc=f"v{ACC + 32*uu + 16*mat}", dst=f"v{OLD + 32*uu + 16*mat}" if ks == 35 else None, b=f"a[{4*ks}:{4*ks+3}]",
                                  first=(ks == 0), last=(ks == 35), st=st, rd=(o, o + 1024), xs=ks if p == 0 else None, unit=2*p+uu, mat=mat, ph=1))
        if qq == 3:
            t = M[-8:]; M[-8:] = [t[0], t[1], t[4], t[5], t[2], t[3], t[6], t[7]]
    tacc0 = {0: f"v{ACC}", 1: f"v{ACC+16}", 2: f"v{ACC+32}", 3: f"v{ACC+48}", 4: "a0", 5: "a16", 6: "a32", 7: "a48", 8: "a64", 9: "a80"}
    def gsrc(b, w):
        if b < 3: return f"a[{GO+16*b+4*w}:{GO+16*b+4*w+3}]", ("go", 0)
        if b < 6: return f"v[{GP+16*(b-3)+4*w}:{GP+16*(b-3)+4*w+3}]", ("gp", 4*(b-3) + w)
        if b == 7: return f"v[{GT+4*w}:{GT+4*w+3}]", ("cv", 12 + w)
        if b == 8: return f"a[{GP3+4*w}:{GP3+4*w+3}]", ("gp", 12 + w)
        return (f"v[{GS+4*w}:{GS+4*w+3}]", ("go", 0)) if w < 2 else (f"a[{GPS+4*(w-2)}:{GPS+4*(w-2)+3}]", ("gp", 14 + w))
    def build2(h):
        del M[648:]; plan[:] = plan_of(h)
        tacc = dict(tacc0)
        for si, (ty, k) in enumerate(plan):
            it = []
            if ty == "K":
                for w in range(4):
                    ts = list(range(8))
                    if si in mig:
                        tm_ = 4 + 2*mig.index(si) + (w >> 1); ts.remove(tm_)
                        ts = [tm_] + ts if w % 2 == 0 else ts + [tm_]
                    for t in ts:
                        cp, uu = t >> 1, (t & 1)*512
                        it.append((t, k, w) + ((cp*1024 + uu, (3 + cp)*1024 + uu) if cp < 3 else (6*1024 + uu, 7*1024 + uu)))
            elif ty == "N":
                if k[1] != (7, 8): od = [(t, gi, w) for gi in range(2) for w in range(4) for t in range(4)]
                elif k[0] == 0 and ownf: od = [(t, 0, w) for w in range(4) for t in range(4)] + [(t, 1, w) for t in range(4) for w in range(4)]
                else: od = [(t, gi, w) for t in range(4) for gi in range(2) for w in range(4)]
                for t, gi, w in od:
                    o = gi*4096 + (t >> 1)*1024 + (t & 1)*512
                    it.append((4*k[0] + t, k[1][gi], w, o, o + 2048))
            elif ty == "X":
                for t in (9, 8):
                    for gi, b in enumerate(k):
                        for w in range(4):
                            o = gi*2048 + (t - 8)*512
                            it.append((t, b, w, o, o + 1024))
            else:
                for gi, b in enumerate(k):
                    for w in range(4): it.append((8, b, w, gi*1024, gi*1024 + 512))
            if ty == "Y":
                if h == 0 and nz: M[-y8]["mig8"] = True
                tacc[8] = tacc[0]
            for n_, (t, b, w, r0, r1) in enumerate(it):
                g = gsrc(b, w)
                M.append(dict(acc=tacc[t], dst=None, b=g[0], gsrc=g[1], first=False, last=False, st=18+si, rd=(w*9216 + r0, w*9216 + r1), xs=None, tile=t, ph=2))
                if nh and si == 7 - 2*nh and n_ == 6:
                    M[-1]["migall"] = True
                    for t_ in range(4, 8): tacc[t_] = f"v{OLD + 16*(t_ - 4)}"
                if ty == "K" and si in mig and n_ % 16 == 0:
                    M[-1]["mig"] = OLD + 16*(t - 4); tacc[t] = f"v{OLD + 16*(t - 4)}"
        for t in set(d["tile"] for d in M[648:]):
            ix = [m for m in range(648, len(M)) if M[m]["tile"] == t]
            M[ix[0]]["first"] = True; M[ix[-1]]["last"] = True
    build2(0)
    LA = 8
    def rng(r, n=16):
        return f"{r[0]}[{int(r[1:])}:{int(r[1:])+n-1}]"

    gdone = {}; tstate = {"last": [None, None]}; pairctr = [0]
    oldbusy = {}
    memq = []
    def add_gelu(unit, gacc, uacc, mg, mu, inbody):
        gb = GS if unit == 8 else GT + 8*(unit & 1)
        for k in range(8):
            ts = pairctr[0] % 2; pairctr[0] += 1
            ta, tb = T + 2*ts, T + 2*ts + 1
            ga, gb_, ua, ub = gacc + 2*k, gacc + 2*k + 1, uacc + 2*k, uacc + 2*k + 1
            prev = tstate["last"][ts]
            d0 = [(mg, 13)] + ([(prev, 0)] if prev else [])
            sa = q.add(Op(f"v_mul_f32 v{ta}, v{ga}, v{ga}", deps=d0))
            sb = q.add(Op(f"v_mul_f32 v{tb}, v{gb_}, v{gb_}", deps=d0))
            fa = q.add(Op(f"v_fma_f32 v{ta}, v{ta}, v{VK2}, v{VK1}", deps=[(sa, 0)]))
            fb = q.add(Op(f"v_fma_f32 v{tb}, v{tb}, v{VK2}, v{VK1}", deps=[(sb, 0)]))
            aa = q.add(Op(f"v_mul_f32 v{ta}, v{ga}, v{ta}", deps=[(fa, 0)]))
            ab = q.add(Op(f"v_mul_f32 v{tb}, v{gb_}, v{tb}", deps=[(fb, 0)]))
            ea = q.add(Op(f"v_exp_f32 v{ta}, v{ta}", cost=2, deps=[(aa, 0)]))
            pa = q.add(Op(f"v_mul_f32 v{ua}, v{ga}, v{ua}", deps=[(mg, 13), (mu, 13)]))
            eb = q.add(Op(f"v_exp_f32 v{tb}, v{tb}", cost=2, deps=[(ab, 0)]))
            pb = q.add(Op(f"v_mul_f32 v{ub}, v{gb_}, v{ub}", deps=[(mg, 13), (mu, 13)]))
            da = q.add(Op(f"v_fma_f32 v{ta}, v{ta}, v{VS2}, v{VS2}", deps=[(ea, 1)]))
            db = q.add(Op(f"v_fma_f32 v{tb}, v{tb}, v{VS2}, v{VS2}", deps=[(eb, 1)]))
            ra = q.add(Op(f"v_rcp_f32 v{ta}, v{ta}", cost=2, deps=[(da, 0)]))
            rb = q.add(Op(f"v_rcp_f32 v{tb}, v{tb}", cost=2, deps=[(db, 0)]))
            ya = q.add(Op(f"v_mul_f32 v{ta}, v{ua}, v{ta}", deps=[(ra, 1), (pa, 0)]))
            yb = q.add(Op(f"v_mul_f32 v{tb}, v{ub}, v{tb}", deps=[(rb, 1), (pb, 0)]))
            cv = q.add(Op(f"v_cvt_pk_bf16_f32 v{gb + k}, v{ta}, v{tb}", deps=[(ya, 0), (yb, 0)]))
            tstate["last"][ts] = cv
            fi = 2*unit + k//4
            gdone.setdefault(fi, []).append(cv)
            oldbusy.setdefault(f"v{gacc}", []).append(cv); oldbusy.setdefault(f"v{uacc}", []).append(cv)
            if k % 4 == 3:
                r = gb + k - 3
                L = []
                if unit == 8 and k == 3: L.append((f"s_add_u32 s{S_TMP}, s{S_GW}, 16384", None))
                off = (fi % 4)*1024
                L.append((f"buffer_store_dwordx4 v[{r}:{r+3}], v{VL16}, s[{S_GX}:{S_GX+3}], s{S_TMP if unit == 8 else S_GO} offen" + (f" offset:{off}" if off else "") + gst, ("gs", fi)))
                memq.append(dict(deps=list(gdone[fi]), L=L))
    outn = [0]
    VPS = 48; VLZ = 49; VPC = 50; VRC = 51; VOA = 52; VOC = 53; VHA = 54; VHC = 55; VRA = 3; VPX = 33; VLC = 39
    outdone = {}; migops = {}
    def add_out(t, acc, mo):
        prev = None; cvs = []
        if acc[0] == "a":
            a = int(acc[1:]); quad = [T, 20]
            for i in range(8):
                r0 = q.add(Op(f"v_accvgpr_read_b32 v{VK1}, a{a+2*i}", deps=[(mo, 13)] + ([(prev, 0)] if prev else [])))
                r1 = q.add(Op(f"v_accvgpr_read_b32 v{VK2}, a{a+2*i+1}", deps=[(r0, 0)]))
                prev = q.add(Op(f"v_cvt_pk_bf16_f32 v{quad[i//4] + i%4}, v{VK1}, v{VK2}", deps=[(r1, 0)])); cvs.append(prev)
        else:
            r = int(acc[1:]); quad = [r, r + 4]
            for i in range(8):
                prev = q.add(Op(f"v_cvt_pk_bf16_f32 v{r+i}, v{r+2*i}, v{r+2*i+1}", deps=[(mo, 13)] + ([(prev, 0)] if prev else []))); cvs.append(prev)
        new = []
        for h in range(2):
            L = []
            g_, fi_ = (t >> 2, 2*(t & 3) + h) if t < 8 else (t - 6, h)
            if fi_ == 0: L.append((f"s_add_u32 s{S_TMP}, s{S_PO}, {g_*8192}" if t < 9 else f"s_mov_b32 s{S_TMP}, s{S_PS}", None))
            L.append((f"buffer_store_dwordx4 v[{quad[h]}:{quad[h]+3}], v{VPS if t < 8 else (VPC if t == 8 else VPX)}, s[{S_PT}:{S_PT+3}], s{S_TMP} offen" + (f" offset:{fi_*128}" if fi_ else "") + store_flags, ("store", g_)))
            x = dict(deps=[cvs[4*h+3]], L=L); memq.append(x); new.append(x)
            if t < 9:
                y = {}
                def lw(r=quad[h], off=g_*1024 + fi_*128, y=y):
                    e.ds(f"ds_write_b128 v{V3}, v[{r}:{r+3}] offset:{off}", 10**6); y["done"] = True
                q.add(Op(lw, deps=[(cvs[4*h+3], 0)])); new.append(y)
        outdone[t] = new
    def pop_mem():
        y = memq.pop(0); y["done"] = True
        return emit_list(y["L"])
    def mem_ready():
        return memq and all(d.pos is not None for d in memq[0]["deps"])
    def reads(m):
        d = M[m]; fr = FR + 4*(m % 12); vb = TRB + perm[d["st"] % 4]
        e.ds(f"ds_read_b64_tr_b16 a[{fr}:{fr+1}], v{vb} offset:{d['rd'][0]}", m)
        e.ds(f"ds_read_b64_tr_b16 a[{fr+2}:{fr+3}], v{vb} offset:{d['rd'][1]}", m)

    early = []
    for s_ in range(36): early.append((min(min(m for m, d in enumerate(M) if d["xs"] == s_), xrate*s_), xload_instrs(s_)))
    for g in range(6):
        early.append((stat + g, [(f"s_add_u32 s{S_TMP}, s{S_SS}, {WS_ST + g*16384}", None),
                                (f"buffer_load_dwordx2 v[{TM+2+2*g}:{TM+3+2*g}], v{VZ}, s[{S_ST}:{S_ST+3}], s{S_TMP} offen" + xf, "st")]))
    early.sort(key=lambda x: x[0])
    def emit_early():
        return emit_list(early.pop(0)[1])
    def stats_ops():
        b = TM + 2
        inv = hex(f2u(1.0/576))
        txt = [lambda: e.wait_vm(lambda t: t == "st")] + f"""v_add_f32 v{b}, v{b}, v{b+2}
v_add_f32 v{b+1}, v{b+1}, v{b+3}
v_add_f32 v{b+4}, v{b+4}, v{b+6}
v_add_f32 v{b+5}, v{b+5}, v{b+7}
v_add_f32 v{b+8}, v{b+8}, v{b+10}
v_add_f32 v{b+9}, v{b+9}, v{b+11}
v_add_f32 v{b}, v{b}, v{b+4}
v_add_f32 v{b+1}, v{b+1}, v{b+5}
v_add_f32 v{b}, v{b}, v{b+8}
v_add_f32 v{b+1}, v{b+1}, v{b+9}
v_mov_b32 v{b+2}, v{b}
v_mov_b32 v{b+3}, v{b+1}
v_mov_b32 v{VONE}, 1
s_nop 0
v_permlane32_swap_b32 v{b}, v{b+2}
v_permlane32_swap_b32 v{b+1}, v{b+3}
s_nop 0
v_add_f32 v{b}, v{b}, v{b+2}
v_add_f32 v{b+1}, v{b+1}, v{b+3}
v_mul_f32 v{b}, {inv}, v{b}
v_mul_f32 v{b+1}, {inv}, v{b+1}
v_fma_f32 v{b+1}, -v{b}, v{b}, v{b+1}
v_max_f32 v{b+1}, 0, v{b+1}
v_cvt_pk_bf16_f32 v{b+1}, v{b+1}, v{b+1}
v_and_b32 v{b+1}, 0xffff0000, v{b+1}
v_add_f32 v{b+1}, {hex(f2u(1e-5))}, v{b+1}
v_cvt_pk_bf16_f32 v{b+1}, v{b+1}, v{b+1}
v_and_b32 v{b+1}, 0xffff0000, v{b+1}
v_sqrt_f32 v{b+1}, v{b+1}
s_nop 0
v_cvt_pk_bf16_f32 v{b+1}, v{b+1}, v{b+1}
v_and_b32 v{b+1}, 0xffff0000, v{b+1}
v_rcp_f32 v{b}, v{b+1}
v_mul_f32 v{VS2}, v{b+1}, v{b+1}
v_mul_f32 v{VK1}, {hex(f2u(k1))}, v{b}
v_mul_f32 v{b+1}, v{b}, v{b}
v_mul_f32 v{b}, {hex(f2u(k2))}, v{b}
v_mul_f32 v{VK2}, v{b}, v{b+1}""".split("\n")
        chain(txt)
    spins = []; tails = []
    def poll_check(val, name):
        e.wait_vm(lambda t: t == "poll" + name)
        e(f"v_readfirstlane_b32 s5, v{VF}\ns_nop 1\ns_cmp_ge_u32 s5, {val}\ns_cbranch_scc0 K3_spin{name}\nK3_ret{name}:")
        spins.append((name, val))
    def gload(kind, fi):
        L = []
        base = S_GW if kind == "go" else S_GR
        if fi % 4 == 0: L.append((f"s_add_u32 s{S_XS}, s{base}, {fi*1024}", None))
        if kind == "go": dst = f"a[{GO+4*fi}:{GO+4*fi+3}]"
        elif fi < 12: dst = f"v[{GP+4*fi}:{GP+4*fi+3}]"
        elif fi < 16: dst = f"a[{GP3+4*(fi-12)}:{GP3+4*(fi-12)+3}]"
        else: dst = f"a[{GPS+4*(fi-16)}:{GPS+4*(fi-16)+3}]"
        L.append((f"buffer_load_dwordx4 {dst}, v{VL16}, s[{S_GX}:{S_GX+3}], s{S_XS} offen" + (f" offset:{(fi%4)*1024}" if fi % 4 else "") + gld, (kind, fi)))
        return L
    ldq = []
    ftxt = f"buffer_atomic_add v{VONE}, v{VLZ}, s[{S_FL}:{S_FL+3}], s{S_FW} offen sc1"
    gpoll = f"buffer_atomic_add v{VF}, v{VLZ}, s[{S_FL}:{S_FL+3}], s{S_FR} offen sc0 sc1"
    def flag_store(): e.vmem(ftxt, "flag")
    def poll_issue(name):
        e(f"v_mov_b32 v{VF}, 0"); e.vmem(gpoll, "poll" + name); return 3
    actions = {}
    def apoll(sreg, val=0):
        return f"v_mov_b32 v{VF}, {val}\nbuffer_atomic_add v{VF}, v{VLZ}, s[{S_FL}:{S_FL+3}], s{sreg} offen sc0 sc1"
    e(f"s_lshl_b32 s5, s{S_I}, 2\ns_add_u32 s5, s5, s{S_WV}\ns_lshl_b32 s24, s5, 8\ns_add_u32 s24, s24, {WS_FA}")
    e(f"v_cmp_eq_u32 vcc, 0, v2\nv_mov_b32 v{VONE}, 1\nv_mov_b32 v1, 0x40000000\nv_cndmask_b32_e64 v{VLZ}, v1, 0, vcc")
    tm.stamp(-10)
    e("s_waitcnt vmcnt(0)")
    tm.stamp("A0")
    e(f"s_cmp_lt_i32 s23, 0\ns_cbranch_scc1 K3_ns\nbuffer_atomic_add v{VONE}, v{VLZ}, s[{S_FL}:{S_FL+3}], s23 offen sc1\nK3_ns:")
    e("s_barrier")
    LL = [(t, ("dma", st) if d else None) for st in (perm.index(3),) for t, d in dma_instrs(st)]
    k_ = [i for i, (t, d) in enumerate(LL) if d][na-1] + 1 if na else 0
    emit_list(LL[:k_])
    for m in range(LA): reads(m)
    LOC = 4*SLOT
    e(f"""s_lshl_b32 s25, s5, 1
s_add_u32 s25, s25, s3
s_lshl_b32 s25, s25, 8
s_add_u32 s25, s25, {WS_FB}
s_lshr_b32 s23, s{S_J}, 1
s_mul_i32 s4, s3, {18*1024}
s_add_u32 s48, s4, s{S_XO}
s_add_u32 s48, s48, {WS_PART}
s_lshl_b32 s99, s5, 11
s_add_u32 s99, s99, {WS_PX}
s_lshl_b32 s4, s23, 17
s_add_u32 s{S_PS}, s99, s4
s_mul_i32 s7, s{S_WV}, 2304
s_add_u32 s7, s7, {LOC}
v_bfe_u32 v{T}, v2, 2, 3
v_cmp_eq_u32 vcc, s23, v{T}
v_lshrrev_b32 v{T+1}, 5, v2
v_and_b32 v{T+2}, 3, v2
v_lshlrev_b32 v{T+2}, 4, v{T+2}
v_lshl_add_u32 v{T+1}, v{T+1}, 6, v{T+2}
v_lshl_add_u32 v{VPS}, v{T}, 10, v{T+1}
v_lshl_add_u32 v{VPX}, v{T}, 8, v{T+1}
v_add_u32 v{T+1}, s7, v{T+1}
v_mov_b32 v{T+2}, 0x30000
v_cndmask_b32_e64 v{VPS}, v{VPS}, v1, vcc
v_cndmask_b32_e64 v{VPC}, v{VPX}, v1, vcc
v_cndmask_b32_e64 v{V3}, v{T+2}, v{T+1}, vcc
v_cmp_gt_u32 vcc, 16, v2
s_lshl_b32 s4, s23, 2
s_mul_i32 s6, s3, 20""")
    for (sh, nb, VR, VL_, VO, VH, lsh, lo) in ((4, 3, VRA, VONE + 1, VOA, VHA, 10, 0), (2, 1, VRC, None, VOC, VHC, 8, 2048)):
        e(f"""v_lshrrev_b32 v{T}, {sh}, v2
v_bfe_u32 v{T+1}, v2, 1, {nb}
v_and_b32 v{T+2}, 1, v2
v_lshlrev_b32 v{VR}, 4, v{T}
v_lshl_add_u32 v{VR}, v{T+2}, 6, v{VR}
v_lshl_add_u32 v{VR}, v{T+1}, 7, v{VR}""")
        if VL_: e(f"v_add_u32 v{VL_}, s7, v{VR}")
        e(f"""s_lshl_b32 s5, s23, {lsh}
v_add_u32 v{VR}, s5, v{VR}
v_add_u32 v{T}, s4, v{T}
v_add_u32 v{T+1}, s6, v{T+1}
v_mul_u32_u24 v{VO}, 1152, v{T}
v_lshl_add_u32 v{VO}, v{T+2}, 4, v{VO}
v_lshl_add_u32 v{VO}, v{T+1}, 5, v{VO}
v_lshl_add_u32 v{T}, v{T+2}, 5, v{T}
v_lshlrev_b32 v{VH}, 4, v{T}
v_lshl_add_u32 v{VH}, v{T+1}, 10, v{VH}""")
        if VL_: e(f"s_lshl_b32 s6, s3, 1\ns_add_u32 s6, s6, 16")
    for r_ in (VRC, VOC, VHC): e(f"v_cndmask_b32_e64 v{r_}, v1, v{r_}, vcc")
    e(f"s_sub_u32 s100, s7, s5\ns_add_u32 s100, s100, 2048")
    if ctouch:
        e(f"s_getpc_b64 s[6:7]\nK3_pc:\ns_add_u32 s6, s6, K3_pdA-K3_pc\ns_addc_u32 s7, s7, 0\ns_lshr_b32 s4, s2, 3\ns_lshl_b32 s4, s4, 2\ns_add_u32 s4, s4, s{S_WV}\ns_lshl_b32 s4, s4, 9")
        e(f"v_and_b32 v2, 3, v2\nv_lshlrev_b32 v2, 7, v2\nv_add_u32 v2, s4, v2\nv_min_u32 v2, KB_last-K3_pdA, v2")
    tm.stamp("A1")
    e(apoll(24))
    emit_list(LL[k_:])
    rd = f"v_readfirstlane_b32 s5, v{VF}\ns_nop 1"
    e(f"s_waitcnt vmcnt({9-na})\n{rd}\ns_cmp_ge_u32 s5, 12\ns_cbranch_scc1 K3_pdA\nK3_plA:\n{apoll(24)}\ns_waitcnt vmcnt(0)\n{rd}")
    e(f"s_cmp_ge_u32 s5, 12\ns_cbranch_scc1 K3_pdA\ns_cmp_lg_u32 s5, 0\ns_cbranch_scc1 K3_plA\ns_sleep {slp}\ns_branch K3_plA\nK3_pdA:")
    tm.stamp(-11)
    e.vm = [("dma", perm.index(k//9)) for k in range(36)]; e.vm_done = 27 + na
    for _ in range(8): emit_early()
    for m_ in ctouch:
        actions[m_] = lambda: e.vmem(f"global_load_dword v1, v2, s[6:7]", "ct") and 2
    def hl(k):
        e(f"s_add_u32 s{S_XS}, s{S_XO}, {WS_HT + (8192 if k == 1 else 0)}")
        e.vmem(f"buffer_load_dwordx4 a[{HA+4*k}:{HA+4*k+3}], v{VHA if k < 2 else VHC}, s[{S_HC}:{S_HC+3}], s{S_XS} offen sc0 sc1", "h"); return 3
    for k in range(3): actions[hpre + hsp*k] = (lambda k=k: hl(k))
    lastm = {}
    e.wait_lg(lambda t: t <= 3)
    B0, B1, HD = 208, 640, hd
    st8 = dict(dmaq=[], dma_st=None, stats=False, lastld=-100, qempty=None, f2=f2[0], n0=9, len0=36)
    def moves(p):
        prev = None
        for i in range(16):
            prev = q.add(Op(f"v_accvgpr_write_b32 a{GO+16*p+i}, v{GT+i}", deps=[(prev, 0)] if prev else []))
        return prev
    def dma_due(left, dmaq):
        if len(dmaq) >= left: return True
        nd = sum(1 for _, isd in dmaq if isd)
        sp = dsp if st8["len0"] == 36 and st8["n0"] == 9 else (st8["len0"] - 4)/st8["n0"]
        ns = 0
        while ns < len(dmaq) and not dmaq[ns][1]: ns += 1
        return nd == 0 or left <= (nd - 1)*sp + dtail + 2*ns
    def gap(m, inbody, fillall=False):
        NM = len(M)
        d = M[m]
        dmaq = st8["dmaq"]
        deps = []
        if d["xs"] is not None and m < B0:
            while not any(t == ("x", d["xs"]) for t in e.vm): emit_early()
            e.wait_vm(lambda t: t == ("x", d["xs"]))
        if d["ph"] == 2:
            kind, fi = d["gsrc"]
            if kind == "cv":
                for o in gdone[fi]:
                    if o.pos is None: q.drain_until(o)
                    deps.append((o, 2))
            elif kind == "gp":
                while not any(t == (kind, fi) for t in e.vm):
                    assert ldq, (m, kind, fi)
                    emit_list(ldq.pop(0))
                e.wait_vm(lambda t: t == (kind, fi))
        if d["ph"] == 2:
            for o in migops.pop(d["tile"], []):
                if o.pos is None: q.drain_until(o)
                deps.append((o, 2))
            if d["tile"] == 8 and d["acc"][0] == "v": assert all(x.get("done") for x in outdone[0])
        if d["dst"]:
            for o in oldbusy.get(d["dst"], []):
                if o.pos is None: q.drain_until(o)
            oldbusy[d["dst"]] = []
        fr = FR + 4*(m % 12)
        cs = "0" if d["first"] else rng(d["acc"])
        mo = e.op(Op(f"v_mfma_f32_32x32x16_bf16 {rng(d['dst'] or d['acc'])}, a[{fr}:{fr+3}], {d['b']}, {cs}", deps=deps))
        used = 0
        if timing and not fillall:
            if m != 971: tm.stamp(m)
            if m == NM - 1: tm.stamp(971)
        if "mig" in d:
            assert not any(o.pos is None for fi in range(12, 16) for o in gdone[fi])
            migops[d["tile"]] = [q.add(Op(f"v_accvgpr_read_b32 v{d['mig']+i}, a{int(d['acc'][1:])+i}", deps=[(mo, 13)])) for i in range(16)]
        if "migall" in d:
            assert not any(o.pos is None for fi in range(12, 16) for o in gdone[fi])
            for t_ in range(4, 8): migops[t_] = [q.add(Op(f"v_accvgpr_read_b32 v{OLD+16*(t_-4)+i}, a{16*(t_-4)+i}")) for i in range(16)]
        if "mig8" in d:
            assert all(x.get("done") for x in outdone[0])
            migops[8] = [q.add(Op(f"v_accvgpr_read_b32 v{ACC+i}, a{64+i}", deps=[(mo, 2)])) for i in range(16)]
        if d["last"]:
            if d["ph"] == 1:
                lastm[(d["unit"], d["mat"])] = mo
                if d["mat"] == 1:
                    a = int((d["dst"] or d["acc"])[1:])
                    pend_gelu.append((d["unit"], a - 16, a, lastm[(d["unit"], 0)], mo))
            else:
                add_out(d["tile"], d["acc"], mo)
        if not fillall:
            while pend_gelu: add_gelu(*pend_gelu.pop(0), inbody)
        mr = m + LA
        isbar = mr < NM and M[mr]["st"] != M[mr-1]["st"]
        left = 0
        while mr + 1 + left < NM and M[mr + 1 + left]["st"] == M[min(mr, NM-1)]["st"]: left += 1
        if isbar:
            st = M[mr]["st"]
            assert not dmaq
            if e.wait_vm(lambda t: t == ("dma", st)): used += 1
            e("s_barrier"); used += 2
            if 4 <= st + 2 <= M[-1]["st"]:
                dmaq.extend(dma_instrs(st + 2, inbody)); st8["dma_st"] = st + 2
                st8["n0"] = sum(1 for _, isd in dmaq if isd); st8["len0"] = left + 1
        if mr < NM:
            reads(mr); used += 2
        if not isbar and not fillall:
            if early and early[0][0] - lead <= m and not (dmaq and len(dmaq) >= left - 2):
                used += emit_early()
            elif dmaq and dma_due(left, dmaq) and not (m in actions and len(dmaq) < left):
                t, isd = dmaq.pop(0)
                if isd: e.vmem(t, ("dma", st8["dma_st"])); used += vcost
                else: e(t); used += 1
            elif m in actions:
                pass
            elif mem_ready() and m - st8.get("lasts", -100) >= spc:
                used += pop_mem() + vcost - 1; st8["lasts"] = m
            elif ldq and m - st8["lastld"] >= (ldpace if m < st8["f2"][3] else 2):
                used += emit_list(ldq.pop(0)) + vcost - 1; st8["lastld"] = m
        if m in actions and not fillall:
            used += actions[m]()
        if "hook" in st8: used += st8["hook"](m)
        if not st8["stats"] and sum(1 for t in e.vm if t == "st") == 6 and m >= stat:
            stats_ops(); st8["stats"] = True
        needwait = (m + 1) % 4 == 0 and m + 1 < NM
        bud = (bud2 if B1 <= m < st8["f2"][0] else (bud0 if m < B0 else budget)) - used - (1 if needwait else 0)
        if B0 <= m < B1:
            rem = sum(o.cost for o in q.q); gl = 144 - (m - B0) % 144
            if rem > slack*gl: bud += 1
        if fillall: bud += 1
        if bud > 0: q.fill(bud)
        if m > 650 and not q.q and st8["qempty"] is None: st8["qempty"] = m
        if needwait: e.wait_lg(lambda t: t <= m + 4)
    pend_gelu = []
    def head(m0, p, extra=""):
        if p >= 0:
            chain(f"s_add_u32 s{S_GO}, s{S_GO}, 4096\n" + extra)
            moves(p)
        for m in range(m0, m0 + HD): gap(m, True, fillall=True)
        q.drain()
    lastS = max(st for st, x in enumerate(ST1) if x[0] == "S")
    actions[36*(lastS - 1) - LA + 2] = lambda: chain([f"v_mov_b32 v{VB+i}, v{V1+i}" for i in range(9)]) and 0
    mb = B1 - 144
    def seed():
        e.vm = [("dma", 14)]*9 + [("dma", 15)]*9; e.vm_done = 0
        e.lg = [mb + k//2 for k in range(16)]; e.lg_done = 8
        st8["dmaq"].clear(); pend_gelu.clear()
    sv = (e.lines, e.vm, e.vm_done, e.lg, e.lg_done, q.q); e.lines = []; q.q = []
    ev = [f"v_mov_b32 v{VB+i}, v{VE+i}" for i in range(3)] + [f"v_add_u32 v{VB+3+i}, {8*1152}, v{VE+i}" for i in range(3)] + \
         [f"v_add_u32 v{VB+6+i}, 384, v{r_}" for i, r_ in enumerate((VE, VP1))] + [f"v_mov_b32 v{VB+8}, 0x40000000"]
    assert korder[:2] == (0, 1)
    for p, extra in ((0, ""), (1, f"s_mov_b32 s{S_B0}, s{S_OWN}\n" + ev[0] + f"\ns_add_u32 s{S_B1}, s{S_OWN}, {64*1152}\n" + "\n".join(ev[1:4]) +
                      f"\ns_mov_b64 s[{S_W2}:{S_W2+1}], s[{S_WD}:{S_WD+1}]\n" + "\n".join(ev[4:7]) + f"\ns_mov_b32 s{S_W2+2}, s{S_WD+2}\n" + "\n".join(ev[7:]))):
        e(f"K3_head{p}:")
        tm.stamp(-1-p)
        seed(); head(mb, p, extra)
        if p == 1: e(ftxt)
        e("s_branch K3_body")
    side_lines = e.lines
    e.lines, e.vm, e.vm_done, e.lg, e.lg_done, q.q = sv
    st8["dmaq"].clear(); pend_gelu.clear(); chl[0] = None
    for m in range(B0): gap(m, False)
    assert not early and not st8["dmaq"]
    e.wait_vm(lambda t: t and t[0] == "x")
    seed(); head(mb, -1)
    k_vm = len(e.vm)
    while memq: pop_mem()
    e.vm = e.vm[:k_vm]
    e(".p2align 3\nK3_body:")
    tstate["last"] = [None, None]
    actions[mb + 40] = lambda: e(f"s_add_u32 s{S_CNT}, s{S_CNT}, 1") or 1
    def wpf():
        e.vmem(f"buffer_load_dword v1, v{VPF}, s[{S_WD}:{S_WD+3}], s{S_PF} offen", "pf")
        e(f"s_add_u32 s{S_PF}, s{S_PF}, {3*1152}"); return 1 + vcost
    if wdpf: actions[mb + 68] = wpf
    for m in range(mb + HD, B1): gap(m, True)
    q.drain()
    while memq: pop_mem()
    assert not st8["dmaq"]
    e(f"s_cmp_eq_u32 s{S_CNT}, 1\ns_cbranch_scc1 K3_head0\ns_cmp_eq_u32 s{S_CNT}, 2\ns_cbranch_scc1 K3_head1")
    if nz: e(f"s_bitcmp1_b32 s{S_J}, 0\ns_cbranch_scc1 K3_odd")
    snap = (list(e.vm), e.vm_done, list(e.lg), e.lg_done)
    base_actions = dict(actions)

    def phase2(h):
        sfx = "eo"[h]
        build2(h); NM = len(M)
        e.vm, e.vm_done, e.lg, e.lg_done = list(snap[0]), snap[1], list(snap[2]), snap[3]
        for fi in range(12, 16): gdone.pop(fi, None)
        oldbusy.clear(); outdone.clear(); migops.clear(); chl[0] = None
        actions.clear(); actions.update(base_actions)
        F2 = st8["f2"] = f2[h if nz else 1]; st8["lastld"] = -100; st8["qempty"] = None; st8["lasts"] = -100
        def act1():
            e.wait_vm(lambda t: t and t[0] == "gs" and t[1] < 12); flag_store(); return 3
        actions[f0[0]] = lambda: poll_issue("Z" + sfx)
        actions[f0[1]] = lambda: poll_check(1, "Z" + sfx) or ldq.extend(gload("gp", fi) for fi in (0, 1, 2, 3, 16, 17)) or 5
        actions[f1[0]] = act1
        actions[f1[1]] = lambda: poll_issue("A" + sfx)
        actions[f1[2]] = lambda: poll_check(2, "A" + sfx) or ldq.extend(gload("gp", fi) for fi in range(4, 12)) or 5
        def act2pre():
            q.drain()
            while memq: pop_mem()
            return 1
        def act2():
            q.drain()
            e.wait_vm(lambda t: t and t[0] == "gs"); flag_store(); return 2
        actions[F2[0]] = act2pre
        actions[F2[1]] = act2
        actions[F2[2]] = lambda: poll_issue("B" + sfx)
        actions[F2[3]] = lambda: poll_check(3, "B" + sfx) or ldq.extend(gload("gp", fi) for fi in range(12, 16)) or 5
        nst = {0: 8, 1: 8, 2: 2, 3: 2}
        sent = set(); full = {}
        def sig(g, ret=False):
            assert sum(1 for t in e.vm if t == ("store", g)) == nst[g]
            e.wait_vm(lambda t: t == ("store", g))
            r_ = {0: VONE, 1: V1 + 4, 3: V1 + 5}[g]
            e.vmem(f"buffer_atomic_add v{r_}, v{VLZ}, s[{S_FL}:{S_FL+3}], s25 offen" + (" offset:256" if g == 3 else "") + " sc1", "flag")
            sent.add(g); return 3
        def hook(m):
            for g in (3, 0, 1):
                if g not in full and sum(1 for t in e.vm if t == ("store", g)) == nst[g]: full[g] = m
                if g in full and g not in sent and (m >= full[g] + sga or (g == 1 and sgb[h] and m == NM + sgb[h] and m >= full[g] + 8)): return sig(g)
            return 0
        st8["hook"] = hook
        chain(f"s_add_u32 s{S_GO}, s{S_GO}, 4096")
        lastmv = moves(2)
        actions[690] = lambda: e("\n".join([f"v_add_u32 v{V1}, {8*1152-2048}, v{VE}", f"v_add_u32 v{V1+1}, {8*1152-2048}, v{VE+1}", f"v_subrev_u32 v{V1+2}, 2048, v{VE}"])) or 3
        actions[694] = lambda: e("\n".join([f"v_subrev_u32 v{V1+3}, 2048, v{VP1}", f"v_mov_b32 v{V1+4}, 0x100", f"v_mov_b32 v{V1+5}, 0x10000"])) or 3
        actions[698] = lambda: e("\n".join([f"v_add_u32 v{VHA}, 8192, v{VRA}", f"v_add_u32 v{VHC}, 16384, v{VRC}", f"v_add_u32 v{VLC}, s100, v{VRC}"])) or 3
        sj = lambda j: [None, 29, 30, 32, 33, 38, 39, 21][j]
        sjt = [f"s_add_u32 s4, s23, {j}\ns_and_b32 s4, s4, 7\ns_mul_i32 s4, s4, {ACT_BYTES}\ns_add_u32 s{sj(j)}, s48, s4" for j in range(1, NPART)]
        nx = 8 if (h == 1 and nz) else 0
        PBR = [ACC + 16 if ins else GP, GP if ins else ACC, OLD]
        def chk(g): return f"s_bfe_u32 s4, s5, {hex(8*g | 0x80000)}\ns_cmp_eq_u32 s4, {8 + (nx if g == 2 else 0)}"
        def pload(g, j):
            r = PBR[g] + 4*j
            return [(f"buffer_load_dwordx4 v[{r}:{r+3}], v{(VRA, VHA, VHC)[g]}, s[{S_HC}:{S_HC+3}], s{sj(j)} offen{plf}", (g, j))]
        if ins:
            actions[F2[1] + 2] = lambda: chain("\n".join(sjt)) and 0
            def pollA():
                assert 0 in sent
                e(f"v_mov_b32 v{VF}, 0"); e.vmem(f"buffer_atomic_add v{VF}, v{VLZ}, s[{S_FL}:{S_FL+3}], s25 offen sc0 sc1", "pla"); return 3
            def checkA():
                e.wait_vm(lambda t: t == "pla")
                e(f"{rd}\n{chk(0)}\ns_cbranch_scc0 K3_S{sfx}\nK3_R{sfx}:")
                tails.append(f"K3_S{sfx}:\n{apoll(25)}\ns_waitcnt vmcnt(0)\n{rd}\n{chk(0)}\ns_cbranch_scc0 K3_S{sfx}\ns_branch K3_R{sfx}")
                ldq.extend(pload(0, j) for j in range(1, NPART)); return 5
            actions[NM + ins[0]] = pollA; actions[NM + ins[1]] = checkA
        tstate["last"] = [lastmv, lastmv]
        for m in range(B1, NM): gap(m, False)
        del st8["hook"]
        while q.q or memq:
            if mem_ready(): pop_mem()
            else: q.drain_until(q.q[0])
        while ldq: emit_list(ldq.pop(0))
        e(f"; {sfx}: NM={NM} gelu queue empty at gap {st8['qempty']} stores complete {full} sent {sent}")
        tm.stamp(-12)
        own = 0x10000
        pend = [g for g in (3, 0, 1) if g not in sent and (g != 3 or (h == 0 and nz))]
        if not pend:
            e(f"v_mov_b32 v{VF}, 0"); e.vmem(f"buffer_atomic_add v{VF}, v{VLZ}, s[{S_FL}:{S_FL+3}], s25 offen sc0 sc1", "plb")
        srd(e, S_W, 26, ACT_BYTES)
        HR = GT; AC = 28
        e(f"v_mov_b32 v14, 0x3f80\nv_mov_b32 v15, 0x3f800000\ns_mov_b32 s54, 0xaaaaaaaa\ns_mov_b32 s55, 0xaaaaaaaa\nv_mov_b32 v1, 0x10000")
        for i in range(12): e(f"v_accvgpr_read_b32 v{HR+i}, a{HA+i}")
        if not ins:
            for t_ in sjt: e(t_)
        if pend:
            assert pend[-1] == 1
            for g in pend[:-1]: sig(g)
            e(f"v_mov_b32 v{VF}, 0x100"); own = 0x10100
            e.wait_vm(lambda t: t == ("store", 1))
            e.vmem(f"buffer_atomic_add v{VF}, v{VLZ}, s[{S_FL}:{S_FL+3}], s25 offen sc0 sc1", "plb")
        e.wait_vm(lambda t: t == ("store", 2))
        e.vmem(f"buffer_atomic_add v1, v{VLZ}, s[{S_FL}:{S_FL+3}], s25 offen sc0 sc1", "pl2")
        tm.stamp("B0")
        e.wait_vm(lambda t: t == "plb")
        e(f"{rd}\ns_add_u32 s5, s5, {hex(own)}")
        def red(k):
            H = HR + 4*k; O_ = 16 + 4*k
            for j in range(NPART + (nx if k == 2 else 0)):
                if j == 0: e("s_waitcnt lgkmcnt(0)")
                else: e.wait_vm(lambda t: t == (k, j))
                for d in range(4):
                    r = PBR[k] + 4*j + d
                    if j == 0: e(f"v_lshlrev_b32 v{AC+2*d}, 16, v{r}\nv_and_b32 v{AC+1+2*d}, 0xffff0000, v{r}")
                    else: e(f"v_dot2c_f32_bf16 v{AC+2*d}, v{r}, v14\nv_dot2c_f32_bf16 v{AC+1+2*d}, v{r}, v15")
            e("s_nop 1")
            for d in range(4): e(f"v_cvt_pk_bf16_f32 v{O_+d}, v{AC+2*d}, v{AC+1+2*d}")
            for d in range(4): e(f"v_lshlrev_b32 v{AC+2*d}, 16, v{H+d}\nv_and_b32 v{AC+1+2*d}, 0xffff0000, v{H+d}")
            for d in range(4): e(f"v_dot2c_f32_bf16 v{AC+2*d}, v{O_+d}, v14\nv_dot2c_f32_bf16 v{AC+1+2*d}, v{O_+d}, v15")
            e("s_nop 1")
            for d in range(4): e(f"v_cvt_pk_bf16_f32 v{O_+d}, v{AC+2*d}, v{AC+1+2*d}")
            e("s_nop 0")
            for d in range(4): e(f"v_mov_b32_dpp v{AC+d}, v{O_+d} quad_perm:[1,0,3,2] row_mask:0xf bank_mask:0xf")
            for d in range(2): e(f"v_cndmask_b32 v{O_+d}, v{O_+d}, v{AC+2+d}, s[54:55]\nv_cndmask_b32 v{O_+2+d}, v{AC+d}, v{O_+2+d}, s[54:55]")
            e.vmem(f"buffer_store_dwordx4 v[{O_}:{O_+3}], v{VOA if k < 2 else VOC}, s[{S_W}:{S_W+3}], s{S_XO} offen" + (" offset:256" if k == 1 else "") + of, "o")
        if ins: e(f"ds_read_b128 v[{PBR[0]}:{PBR[0]+3}], v{VONE+1}")
        for g in range(1 if ins else 0, 3):
            e(chk(g) + f"\ns_cbranch_scc1 K3_L{g}{sfx}")
            e(f"s_waitcnt vmcnt({7*(g - (1 if ins else 0))})\nv_readfirstlane_b32 s7, v1\ns_nop 1\ns_add_u32 s7, s7, 0x10000\ns_max_u32 s5, s5, s7\n{chk(g)}\ns_cbranch_scc1 K3_L{g}{sfx}")
            e(f"K3_P{g}{sfx}:\n{apoll(25)}\ns_waitcnt vmcnt(0)\n{rd}\n{chk(g)}\ns_cbranch_scc0 K3_P{g}{sfx}\nK3_L{g}{sfx}:")
            tm.stamp(["B1", "B2", -13][g])
            e(f"ds_read_b128 v[{PBR[g]}:{PBR[g]+3}], v{VONE+1 if g < 2 else VLC}" + (" offset:1024" if g == 1 else ""))
            for j in range(1, NPART): emit_list(pload(g, j))
            if g == 2:
                for j in range(nx):
                    r = PBR[g] + 32 + 4*j
                    e(f"s_add_u32 s4, s99, {j << 17}")
                    e.vmem(f"buffer_load_dwordx4 v[{r}:{r+3}], v{VRC}, s[{S_HC}:{S_HC+3}], s4 offen{plf}", (g, 8 + j))
        red(0); red(1); red(2)
    phase2(0)
    if nz:
        e("s_branch K3_fin\nK3_odd:")
        phase2(1)
        e("K3_fin:")
    tm.end("K3_end")
    e("K3_end:\ns_endpgm")
    e.lines += side_lines
    for name, val in spins:
        e(f"K3_spin{name}:\nv_mov_b32 v{VF}, 0\n{gpoll}\ns_waitcnt vmcnt(0)\nv_readfirstlane_b32 s5, v{VF}\ns_nop 1\ns_cmp_ge_u32 s5, {val}\ns_cbranch_scc0 K3_spin{name}\ns_branch K3_ret{name}")
    for t_ in tails: e(t_)
    e("KB_last:\ns_endpgm")
    return e.text()
```

```python
import sys
from asmgen import kernel_header, kernel_desc
from sched import Em
from tim import Tim, Diag
from kb import TP
from kf1 import gen_f1
from kf2 import gen_f2
from kf3 import gen_f3 as gen_k3
import tim
tim.WSP = 16
P = dict(C=2, timing=0, pf=1, cpf=1, tsel=3, diag=None, aslist=0)
K = {1: {}, 2: {}, 3: {"na": 3}}
for kv in sys.argv[1:]:
    k, v = kv.split("=")
    if k[0] == "k" and k[2] == ".": K[int(k[1])][k[3:]] = eval(v)
    else: P[k] = eval(v)
T = bool(P["timing"])
NAME = "sequential_preLN__linear_attn_block__geglu_ffn__prompt_kernel"
hdr = open("sequential_preLN__linear_attn_block__geglu_ffn__prompt.s.ref").read().split("; Override")[0]
print(hdr, end="")
print(f"; @launch {'kernel=' + NAME + ' ' if P['aslist'] else ''}grid=(256,1,1) block=(256,1,1) lds=160768")
print('.amdgcn_target "amdgcn-amd-amdhsa--gfx950"\n.text')
e = Em()
tm = Tim(e, 3, T)
sel = {1: ({i: i for i in range(6)}, {0: 6, 1: 7, 2: 8, 3: 9, 8: 10}, {0: 11}),
       2: ({5: 0}, {i: i + 1 for i in range(9)}, {-11: 10, 0: 11}),
       3: ({5: 0}, {2: 1, 8: 2}, {k: i + 3 for i, k in enumerate([0, 207, -2, 640, 756, 864, 971, 'B0', -13])}),
       5: ({}, {}, {k: i for i, k in enumerate([0, 72, 144, 207, -1, -2, 640, 720, 792, 864, 936, 971])}),
       6: ({}, {}, {k: i for i, k in enumerate([-2, 640, 648, 684, 720, 756, 792, 828, 864, 900, 936, 971])}),
       4: ({}, {8: 0}, {k: i + 1 for i, k in enumerate(['A0', 'A1', -11, 0, 207, 971, -12, 'B0', 'B1', 'B2', -13])})}[P["tsel"]]
if P.get('st'): sel = ({}, {}, {k: i for i, k in enumerate(P['st'])})
tps = [TP(tm, m) for m in sel]
if P["diag"]: tps = [Diag(e, *P["diag"], k, P.get("dwg", 130)) for k in (1, 2, 3)]; T = True
o0 = K[3].get("order0", "PSPSPP")
F = dict(perm=P.get('perm', [0, 1, 3, 2]), e=e, tm3=tps[2], early=[(c, o0[:i].count(c)) for i, c in enumerate(o0)])
Q = P.get("Q", 1); XM = K[3].get("xmap", 1) if Q else 0
import math
from k1 import slice_of_xcd, BIG
def jcalc(d, t):
    if XM: return f"s_bfe_u32 s{d}, s2, 0x20001\ns_lshl_b32 s{d}, s{d}, 2\ns_bfe_u32 s{t}, s2, 0x10003\ns_lshl_b32 s{t}, s{t}, 1\ns_add_u32 s{d}, s{d}, s{t}\ns_and_b32 s{t}, s2, 1\ns_add_u32 s{d}, s{d}, s{t}"
    C = P["C"]; lg = int(math.log2(C))
    return f"s_and_b32 s{d}, s2, {16//C-1}\ns_lshl_b32 s{d}, s{d}, {lg}\ns_bfe_u32 s{t}, s2, {hex(3 | (lg << 16))}\ns_add_u32 s{d}, s{d}, s{t}"
def pf(e, lines):
    if XM:
        e("s_bfe_u32 s5, s2, 0x20001\ns_mul_i32 s5, s5, 2304\ns_and_b32 s4, s2, 1\ns_mul_i32 s4, s4, 640")
        offs = []
        for ln in lines:
            if ln == 4: offs += [(512, 0), (512 + 1152, 0)]
            else: offs.append(((ln % 5)*128 + (ln // 5)*1152, 1))
    else:
        slice_of_xcd(e, 5, 2, P["C"]); e("s_mul_i32 s5, s5, 1152")
        offs = [(ln*128, 0) for ln in lines]
    e(f"s_bfe_u32 s6, s2, 0x30003\ns_mul_i32 s6, s6, {72*9216}\ns_add_u32 s5, s5, s6")
    e(f"v_mul_u32_u24 v4, 911, v0\nv_lshrrev_b32 v4, 16, v4\nv_mul_u32_u24 v3, 72, v4\nv_sub_u32 v3, v0, v3\nv_mul_u32_u24 v3, 9216, v3")
    for k in range(0, len(offs), 3):
        e(f"v_mov_b32 v12, {BIG}")
        for i, (o, par) in enumerate(offs[k:k+3]):
            e(f"v_cmp_eq_u32 vcc, {i}, v4\nv_add_u32 v13, {o}, v3\n" + ("v_add_u32 v13, s4, v13" if par else "s_nop 0") + "\nv_cndmask_b32 v12, v12, v13, vcc")
        e("buffer_load_dword v244, v12, s[52:55], s5 offen\nbuffer_load_dword v245, v12, s[56:59], s5 offen")
F["jcalc"] = jcalc; F["pf"] = pf
if Q:
    from kq3 import gen_q3 as gen_k3
left = gen_f1(e, tps[0], F, C=P["C"], prefetch=P["pf"], cpf=P["cpf"], **K[1])
gen_f2(e, tps[1], F, left, C=P["C"], prefetch=P["pf"], **K[2])
print(kernel_header(NAME) + gen_k3(timing=T, fused=F, C=P["C"], **K[3]) + kernel_desc(NAME, 512, 102, 256))
```

```python
from sched import *
from layout import *
from k3 import srd, f2u, SLOT
from k1 import mask64, smask, BIG, LBIG, slice_of_xcd
from kf1 import KVB, S_WS_, S_WO, S_X, S_RT, S_CG, S_WV, S_WL, S_SIG, WSL
import math
MXC = KVB + 4*12288

def gen_f2(e, tm, F, left, C=2, prefetch=True, p1=11, dp=11, slp=4, pf2=(1, 6, 2, 7, 3, 8), npre=44, nw1=24, lead_=1.25, nbar=9, lsp=3, xe=1, npq=5, prog=1, bla=4, p0=12, npe=0, stlate=0, alupre=0, ndma=27, mfill=2, idle=1, pfd=0, pqt=0, thr=4, xl_=1, fine=9, lf=' sc0 sc1', sf=' sc0 sc1', hop3=1):
    A = 24; O = 112; ADR = 112; RAW = 184; RD = 148; NR = 164; MIX = 180; GB = 184; ACC = 232
    VL16 = 4; TB = 8; VXA = 10; VST = 11; VSA = 12; VMX = 15; VD = 18; VLZ = 21; VF = 22
    XT = 232; XA = 200; MN = 212
    PQ = 0; WFR = 72; WB = 180
    S_RB = 35; S_WS = 36
    W = f"s[{S_WS_}:{S_WS_+3}]"
    lg = lambda x: int(math.log2(x))
    e.vm = []; e.vm_done = 0; e.lg = []; e.lg_done = 0
    e("s_load_dwordx4 s[12:15], s[0:1], 32\ns_load_dwordx4 s[40:43], s[0:1], 48")
    left, stat = left; left = list(left); nl = len(left)
    def lissue(n):
        for _ in range(n):
            if left:
                pre, t_, _ = left.pop(0)
                for p in pre: e(p)
                e(t_)
    e(f"""s_mul_i32 s{S_RB}, s{S_WV}, 12288
s_add_u32 s{S_RB}, s{S_RB}, {KVB}
s_mul_i32 s24, s{S_WV}, 12160
v_lshlrev_b32 v{VL16}, 4, v2
s_lshr_b32 s5, s{S_WV}, 1
s_lshl_b32 s6, s{S_RT}, 1
s_add_u32 s{S_WS}, s6, s5
s_lshl_b32 s5, s{S_WS}, 2
s_add_u32 s5, s5, s{S_WV}
s_xor_b32 s6, s5, 4
s_mul_i32 s25, s5, 9216
s_mul_i32 s26, s6, 9216
s_lshl_b32 s45, s{S_WV}, 5
s_add_u32 s45, s45, s{S_RT}
s_lshl_b32 s45, s45, 7
s_add_u32 s45, s45, {WS_FK}
v_cmp_eq_u32 vcc, 0, v2
v_mov_b32 v1, {BIG}
s_nop 0
v_cndmask_b32_e64 v{VLZ}, v1, 0, vcc""")
    e(f"v_and_b32 v13, 15, v2\nv_lshrrev_b32 v14, 4, v2\nv_mul_u32_u24 v3, 80, v13\nv_lshl_add_u32 v3, v14, 4, v3\nv_add_u32 v3, s{S_RB}, v3\nv_mov_b32 v16, {LBIG}")
    e(f"v_and_b32 v1, 3, v13\nv_mul_u32_u24 v17, 9, v1\nv_lshrrev_b32 v17, 1, v17\nv_sub_u32 v17, v14, v17\nv_lshlrev_b32 v17, 4, v17\nv_mul_u32_u24 v1, 1520, v1\nv_add3_u32 v17, v17, v1, s{S_RB}")
    frags = []; na = [0]; prep = []
    def addr(base, m):
        if m == 0: return None
        r = ADR + na[0]; na[0] += 1
        prep.append((r, base, m))
        return r
    zf = []
    for c, T0s in ((0, (0, 2, 4)), (1, (4, 6, 7))):
        for T0 in T0s:
            L = []
            for jj in range(2):
                T = T0 + jj
                def valid(l):
                    if c == 1 and T0 == 7 and jj == 0: return False
                    hs = 4*c + (l & 3); g = l >> 4
                    return 0 <= 4*T + g - (9*hs)//2 < 5
                L.append((addr(17, mask64(valid)), c*(4*1520 - 18*16) + 18*80 + 64*T))
            zf.append((c, T0, len(frags))); frags.append(L)
    numf = {}
    for h in range(8):
        for j in (h, h + 1):
            L = []
            for jj in range(2):
                def valid(l):
                    m, g = l & 15, l >> 4
                    return 0 <= 16*j + m - 18*h < 18 and 0 <= g + 4*jj - (h >> 1) < 5
                L.append((addr(3, mask64(valid)), h*1520 + (16*j - 18*h)*80 + (4*jj - (h >> 1))*16))
            numf[(j, h)] = len(frags); frags.append(L)
    def doprep(n):
        for _ in range(n):
            if prep:
                r, base, m = prep.pop(0)
                smask(e, 48, m); e(f"v_cndmask_b32 v{r}, v16, v{base}, s[48:49]")
    ng = 16 // C
    e(f"s_and_b32 s5, s{S_WV}, 1\ns_mul_i32 s59, s5, 96")
    e(f"v_lshrrev_b32 v1, 5, v2\nv_lshl_add_u32 v1, v1, 4, v13\nv_and_b32 v244, 1, v14")
    e(f"v_lshlrev_b32 v{VST}, 4, v1\nv_lshl_add_u32 v{VST}, v244, 9, v{VST}")
    e(f"v_cmp_eq_u32 s[48:49], 0, v244\nv_lshlrev_b32 v{VSA}, 3, v1\nv_lshlrev_b32 v{VMX}, 2, v1\nv_mov_b32 v1, {BIG}\nv_cndmask_b32 v{VSA}, v1, v{VSA}, s[48:49]")
    e(f"s_mul_i32 s51, s{S_WS}, 36864")
    e(f"v_lshrrev_b32 v245, 2, v2\nv_mul_u32_u24 v245, 192, v245\nv_and_b32 v{TB}, 3, v2\nv_lshl_add_u32 v245, v{TB}, 3, v245")
    e(f"s_add_u32 s7, s{S_WL}, s59\nv_add_u32 v{TB}, s7, v245\ns_add_u32 s7, s{S_WL}, 96\ns_sub_u32 s7, s7, s59\nv_add_u32 v{TB+1}, s7, v245\nv_add_u32 v{VD}, {2*SLOT}, v{TB}\nv_add_u32 v{VD+1}, {2*SLOT}, v{TB+1}")
    if xl_:
        for i in range(3):
            e(f"v_add_u32 v249, {64*i}, v2\nv_mul_u32_u24 v250, 10923, v249\nv_lshrrev_b32 v250, 16, v250\nv_lshlrev_b32 v249, 4, v249\nv_mul_u32_u24 v250, {1152-96}, v250")
            e(f"v_add_u32 v{246+i}, v249, v250" + (f"\nv_subrev_u32 v{246+i}, {1024*i}, v{246+i}" if i else ""))
        e(f"v_mul_u32_u24 v249, 96, v13\nv_lshl_add_u32 v249, v14, 3, v249\nv_add_u32 v249, s{S_RB}, v249")
        e(f"v_cmp_lt_u32 vcc, 19, v2\nv_add_u32 v251, s100, v{VL16}\ns_sub_u32 s5, s101, 320\nv_add_u32 v250, s5, v{VL16}\nv_cndmask_b32 v251, v251, v250, vcc\nv_cmp_lt_u32 vcc, 27, v2\nv_mov_b32 v250, {BIG}")
        e(f"v_mul_u32_u24 v252, 80, v14\nv_cndmask_b32 v251, v251, v250, vcc\nv_add_u32 v252, s{S_RB}, v252\nv_add_u32 v253, s{S_RB}, v{VMX}")
    doprep(npre)
    e(f"s_waitcnt vmcnt(0)")
    tm.stamp(0)
    e(f"s_barrier\nbuffer_atomic_add v{VF}, v23, {W}, s{S_SIG} offen sc1")
    wr = []
    for ks in range(5):
        for ct in range(6):
            r = WFR + 24*ks + (4 if ks < 4 else 2)*ct
            for i in range(2 if ks < 4 else 1):
                T_ = 2*ks + i; sl = WSL[T_//3]
                wr.append((T_, f"ds_read_b64_tr_b16 a[{r+2*i}:{r+2*i+1}], v{(TB if sl < 2 else VD) + ct//3} offset:{(sl % 2)*SLOT + (T_%3)*3072 + (ct%3)*32}"))
    alu = F['jcalc'](3, 44) + f"""
s_mul_i32 s30, s3, 576
s_and_b32 s3, s3, 1
s_xor_b32 s39, s3, 1
s_lshl_b32 s39, s39, 9
s_add_u32 s39, s39, s30
s_lshl_b32 s3, s3, 6
s_add_u32 s30, s30, s3
s_and_b32 s3, s{S_WV}, 1
s_mul_i32 s3, s3, {72*9216}
s_add_u32 s30, s30, s3
s_add_u32 s39, s39, s3
s_add_u32 s39, s39, s3
v_lshrrev_b32 v16, 2, v2
v_mul_u32_u24 v16, 9216, v16
v_and_b32 v17, 3, v2
v_lshl_add_u32 v16, v17, 4, v16
v_add_u32 v17, {16*9216-1024}, v16
v_add_u32 v23, {32*9216-2048}, v16
s_mul_i32 s31, s{S_WV}, 9216
v_bfe_u32 v{VD}, v2, 2, 3
v_mul_u32_u24 v{VD}, 9216, v{VD}
v_and_b32 v{VD+1}, 3, v2
v_lshl_add_u32 v{VD}, v{VD+1}, 4, v{VD}
v_lshrrev_b32 v{VD+1}, 5, v2
v_lshl_add_u32 v{VD}, v{VD+1}, 6, v{VD}
v_add_u32 v{VD+1}, {8*9216-1024}, v{VD}
v_add_u32 v{VD+2}, {16*9216-2048}, v{VD}"""
    gusel = f"s_cmp_lt_u32 s{S_WV}, 2\ns_cselect_b32 s12, s12, s14\ns_cselect_b32 s13, s13, s15\ns_and_b32 s13, s13, 0xffff\ns_mov_b32 s14, {576*4608*2}\ns_mov_b32 s15, 0x20000"
    def kdma(st):
        kind, qq = F["early"][F["perm"].index(st)]
        if kind == "S":
            return [([f"s_add_u32 m0, s31, {st*SLOT + i*1024}", f"s_add_u32 s44, s39, {(qq*288 + 16*i)*9216}"] if i % 3 == 0 else [],
                     f"buffer_load_dwordx4 v{(16,17,23)[i%3]}, s[12:15], s44 offen" + (f" offset:{(i%3)*1024}" if i % 3 else "") + " lds", ("dma", st), 2*dp) for i in range(9)]
        return [([f"s_add_u32 m0, s31, {st*SLOT + i*1024}", f"s_add_u32 s44, s30, {(qq*144 + 8*i)*9216}"] if i % 3 == 0 else [],
                 f"buffer_load_dwordx4 v{VD+i%3}, s[12:15], s44 offen" + (f" offset:{(i%3)*1024}" if i % 3 else "") + " lds", ("dma", st), dp) for i in range(9)]
    e(f"s_lshr_b32 s5, s2, 6\ns_cmp_eq_u32 s5, {idle}\ns_cbranch_scc1 F2_idle")
    lissue(nl)
    tdone = (27 - nl)//3
    wr1 = [t_ for T_, t_ in wr if T_ < tdone]; wr2 = [t_ for T_, t_ in wr if T_ >= tdone]
    apoll = f"v_mov_b32 v{VF}, 0\nbuffer_atomic_add v{VF}, v{VLZ}, {W}, s45 offen sc0 sc1"
    if xl_:
        e(f"s_add_u32 m0, s{S_RB}, 8192\ns_nop 0\nbuffer_load_dwordx4 v251, {W}, 0 offen{sf} lds")
        e(f"s_add_u32 m0, s{S_RB}, 9216\ns_nop 0")
        for i in range(3): e(f"buffer_load_dwordx4 v{246+i}, s[{S_X}:{S_X+3}], s99 offen" + (f" offset:{1024*i}" if i else "") + " lds")
    if stat and not stlate:
        for _, t_, _ in stat: e(t_)
    if npe: e("s_nop 1\n" + apoll)
    for t_ in wr1: e(t_)
    rdv = f"s_waitcnt vmcnt(0)\nv_readfirstlane_b32 s5, v{VF}\ns_nop 1"
    if npe: e(f"{rdv}\ns_cmp_ge_u32 s5, 0x200\ns_cbranch_scc1 F2_q\nF2_ql:\ns_sleep {slp}\n{apoll}\n{rdv}\ns_cmp_ge_u32 s5, 0x200\ns_cbranch_scc0 F2_ql\nF2_q:")
    pql = []
    for b in (1, 0):
        for q_ in range(9):
            pre = [f"s_add_u32 s29, s{25+b}, {WS_PQ + q_*1024}"] if q_ % 4 == 0 else []
            r = PQ + 36*b + 4*q_
            pql.append((pre, f"buffer_load_dwordx4 a[{r}:{r+3}], v{VL16}, {W}, s29 offen" + (f" offset:{(q_%4)*1024}" if q_ % 4 else "") + lf, ("pq", 2*b + (q_ > 4)), p0 if b == 1 else p1))
    for pre, t_, _, _ in pql[:npe]:
        for p in pre: e(p)
        e(t_)
    if stat and stlate:
        for _, t_, _ in stat: e(t_)
    e(apoll)
    xl = [f"v_accvgpr_read_b32 v{XT+k}, a{228+k}" for k in range(12)] + ["v_accvgpr_read_b32 v1, a240"] + \
         [f"v_permlane16_swap_b32 v{XT+4*k+i}, v{XT+4*k+i+2}" for k in range(3) for i in range(2)] + \
         [f"v_permlane32_swap_b32 v{XT+4*k+i}, v{XT+4*k+i+2}" for k in range(3) for i in range(2)] + \
         [f"v_accvgpr_write_b32 a{XA+k}, v{XT+k}" for k in range(12)]
    if xl_: xl = []
    sv = e.lines; e.lines = []
    assert not prep and nl <= 9
    e(alu)
    for t in range(1, 4): smask(e, 52 + 2*(t-1), mask64(lambda l: (l >> 4) < t))
    m0_ = mask64(lambda l: (l >> 4) == ((l & 15) >> 2) and (l & 2) == 0); m1_ = mask64(lambda l: (l >> 4) == ((l & 15) >> 2) and (l & 2) == 2)
    ID = 6
    e(f"s_movk_i32 s58, 0x3f80\nv_and_b32 v5, 1, v13\nv_lshlrev_b32 v5, 4, v5\nv_lshlrev_b32_e64 v5, v5, s58")
    smask(e, 48, m0_); e(f"v_cndmask_b32 v{ID}, 0, v5, s[48:49]"); smask(e, 48, m1_); e(f"v_cndmask_b32 v{ID+1}, 0, v5, s[48:49]")
    e(f"v_lshlrev_b32 v5, 3, v2\nv_add_u32 v3, s{S_RB}, v5")
    e(f"s_and_b32 s5, s{S_WV}, 2\nv_xor_b32 v14, s5, v14\nv_lshl_add_u32 v13, v14, 4, v13\ns_lshl_b32 s5, s{S_WV}, 8\ns_add_u32 s5, s5, {MXC}\nv_lshl_add_u32 v13, v13, 2, s5")
    e(f"s_lshl_b32 s5, s{S_WV}, 6\ns_and_b32 s5, s5, 128\ns_add_u32 s5, s5, {MXC}\nv_add_u32 v{VMX}, s5, v{VMX}")
    e(f"s_mul_i32 s5, s{S_CG}, 6144\ns_lshl_b32 s6, s59, 5\ns_add_u32 s5, s5, s6\ns_add_u32 s5, s5, s51\ns_add_u32 s4, s5, {WS_HC}\ns_add_u32 s3, s5, {WS_HT}")
    e(f"s_lshl_b32 s6, s{S_CG}, 1\ns_and_b32 s7, s{S_WV}, 1\ns_add_u32 s6, s6, s7\ns_lshl_b32 s6, s6, 14\ns_lshl_b32 s7, s{S_WS}, 8\ns_add_u32 s6, s6, s7\ns_add_u32 s7, s6, {WS_ST}")
    alul = e.lines; e.lines = sv
    if alupre: e.lines += alul
    e("s_waitcnt lgkmcnt(0)\n" + gusel)
    if hop3 == 0: e(f";HOP k3 {S_WV}")
    tm.stamp(1)
    rd = f"s_waitcnt vmcnt(0)\nv_readfirstlane_b32 s5, v{VF}\ns_nop 1\ns_cmp_ge_u32 s5, 0x220\ns_cbranch_scc1 F2_go"
    if pqt:
        e(f"s_mov_b32 s58, 0\nv_lshlrev_b32 v246, 7, v2\nv_cmp_gt_u32 vcc, 8, v2\nv_mov_b32 v247, {BIG}\ns_add_u32 s27, s25, {WS_PQ}\ns_add_u32 s28, s26, {WS_PQ}\nv_add_u32 v248, 8192, v246\nv_cndmask_b32 v247, v247, v248, vcc")
        tch = f"""s_cmp_lt_u32 s5, 0x200
s_cbranch_scc1 F2_nt
s_cmp_ge_u32 s5, {0x200 + pqt}
s_cbranch_scc1 F2_nt
s_cmp_lg_u32 s58, 0
s_cbranch_scc1 F2_nt
s_mov_b32 s58, 1
buffer_load_dword v248, v246, {W}, s28 offen{sf}
buffer_load_dword v248, v247, {W}, s28 offen{sf}
buffer_load_dword v248, v246, {W}, s27 offen{sf}
buffer_load_dword v248, v247, {W}, s27 offen{sf}
s_branch F2_pl
F2_nt:
"""
    else: tch = ""
    e(f"{rd}\nF2_pl:\n{apoll}\n{rd}\n{tch}s_and_b32 s6, s5, 0xff\ns_cmp_ge_u32 s6, {thr}\ns_cbranch_scc1 F2_pl\ns_sleep {slp}\ns_branch F2_pl\nF2_go:")
    tm.stamp(2)
    for i in range(12):
        if xl_ and i == 4:
            for c3 in range(3):
                for tt in range(2): e(f"ds_read_b64 a[{XA+4*c3+2*tt}:{XA+4*c3+2*tt+1}], v249 offset:{9216 + tt*1536 + c3*32}")
            for k in range(5): e(f"ds_read_b128 a[{WB+4*k}:{WB+4*k+3}], v252 offset:{8192 + 16*k}")
            e(f"ds_read_b32 v1, v253 offset:{8192 + 320}")
        if xl_ and i == 8: e("s_waitcnt lgkmcnt(0)")
        if i % 4 == 0: e(f"s_add_u32 m0, s{S_RB}, {i*1024}\ns_add_u32 s6, s24, {WS_KV + i*1024}")
        e.vmem(f"buffer_load_dwordx4 v{VL16}, {W}, s6 offen" + (f" offset:{(i%4)*1024}" if i % 4 else "") + lf + " lds", ("kv", i))
    vq = pql[npe:] + (kdma(0) + kdma(1) + kdma(2))[:ndma]
    state = {"last": 0}
    def pace(force=False):
        if vq and (force or e.n - state["last"] >= vq[0][3]):
            if vq[0][2][0] == "dma" and not state.get("ok"): return
            if vq[0][2][0] == "dma" and not state.get("bar"):
                e("s_barrier"); state["bar"] = True
            pre, t, tag, _ = vq.pop(0)
            for p in pre: e(p)
            e.vmem(t, tag); state["last"] = e.n
    for t_ in wr2: e(t_)
    if not alupre: e.lines += alul
    for l in xl: e(l)
    for _ in range(npq):
        if vq[0][2][0] == "pq": pace(True)
    e("s_waitcnt lgkmcnt(0)")
    for lq in (1, 2, 3): e(f"s_xor_b32 s5, s{S_WV}, {lq}\ns_mul_i32 s5, s5, 12288\ns_add_u32 s5, s5, {KVB}\nv_add_u32 v{8+lq-1}, s5, v5")
    order = list(range(6, 22)) + list(range(6)) if prog else list(range(22))
    def need(f):
        return 11 if f < 6 or not prog else (((f - 6)//2 + 1)*1520 - 1)//1024
    def ards(k):
        f = order[k]; rb = RAW + 8*(k % 6)
        e.wait_vm(lambda t: t == ("kv", need(f)))
        if k == 0: tm.stamp(3)
        for jj in range(2):
            ar, off = frags[f][jj]
            if ar is not None:
                e.ds(f"ds_read_b128 v[{rb+4*jj}:{rb+4*jj+3}], v{ar} offset:{off}", f)
    for k in range(bla): ards(k)
    for k in range(22):
        if k + bla < 22: ards(k + bla)
        pace()
        f = order[k]; rb = RAW + 8*(k % 6)
        e.wait_lg(lambda t: t == f)
        for jj in range(2):
            d = A + 4*f + 2*jj
            if frags[f][jj][0] is None: e(f"v_mov_b32 v{d}, 0\nv_mov_b32 v{d+1}, 0")
            else: e(f"v_cvt_pk_bf16_f32 v{d}, v{rb+4*jj}, v{rb+4*jj+1}\nv_cvt_pk_bf16_f32 v{d+1}, v{rb+4*jj+2}, v{rb+4*jj+3}")
    tm.stamp(4)
    state['ok'] = True
    q = Queue(e, window=10)
    def pqf(t, tile):
        r = PQ + 36*(t >> 1) + 18*(t & 1) + 2*tile
        return f"a[{r}:{r+3}]"
    def force(ops):
        for o in ops:
            if o.pos is None: q.drain_until(o)
    eps = hex(f2u(1e-6))
    rdops = {}; rduse = {0: [], 1: []}; ocv = {}; guse = {0: [], 1: []}
    NS = 4
    ringfree = [[] for _ in range(NS)]; mixfree = [None]*4; mixi = [0]; cnt = [0]
    def den_items(t):
        L = []
        for k, (c, T0, f) in enumerate(zf):
            def it(k=k, c=c, T0=T0, f=f):
                if k == 0:
                    while any(v[2] == ("pq", t) for v in vq): pace(True)
                    e.wait_vm(lambda x: x == ("pq", t))
                    force(rduse[t & 1]); rduse[t & 1] = []
                d = RD + 8*(t & 1) + 4*c
                o = e.op(Op(f"v_mfma_f32_16x16x32_bf16 v[{d}:{d+3}], v[{A+4*f}:{A+4*f+3}], {pqf(t, T0)}, " + ("0" if k % 3 == 0 else f"v[{d}:{d+3}]")))
                if k % 3 == 2:
                    for r in range(4):
                        o1 = q.add(Op(f"v_add_f32 v{d+r}, {eps}, v{d+r}", deps=[(o, 9)]))
                        rdops[(t, 4*c + r)] = q.add(Op(f"v_rcp_f32 v{d+r}, v{d+r}", cost=2, deps=[(o1, 0)]))
            L.append(it)
        return L
    def num_items(t):
        L = []
        for j in range(9):
            hs = [h for h in (j - 1, j) if 0 <= h < 8]
            for k, h in enumerate(hs):
                def it(j=j, k=k, h=h, last=(k == len(hs) - 1)):
                    if k == 0:
                        cnt[0] += 1
                        force(ringfree[cnt[0] % NS])
                    slot = cnt[0] % NS; d = NR + 4*slot; a = A + 4*numf[(j, h)]
                    o = e.op(Op(f"v_mfma_f32_16x16x32_bf16 v[{d}:{d+3}], v[{a}:{a+3}], {pqf(t, h)}, " + ("0" if k == 0 else f"v[{d}:{d+3}]")))
                    if not last: return
                    R = RD + 8*(t & 1)
                    muls = []; mixcache = {}
                    for r in range(4):
                        th = sum(1 for g in range(4) if 4*g + r < 2*j)
                        if th == 0: src, dp_ = R + j, [(rdops[(t, j)], 1)]
                        elif th == 4: src, dp_ = R + j - 1, [(rdops[(t, j-1)], 1)]
                        else:
                            if th not in mixcache:
                                mi = mixi[0] % 4; mixi[0] += 1
                                dd = [(rdops[(t, j)], 1), (rdops[(t, j-1)], 1)] + [(x, 0) for x in (mixfree[mi] or [])]
                                s_ = 52 + 2*(th-1)
                                mo = q.add(Op(f"v_cndmask_b32 v{MIX+mi}, v{R+j}, v{R+j-1}, s[{s_}:{s_+1}]", deps=dd))
                                mixcache[th] = (mi, mo); mixfree[mi] = []
                            mi, mo = mixcache[th]
                            src, dp_ = MIX + mi, [(mo, 0)]
                        m = q.add(Op(f"v_mul_f32 v{d+r}, v{d+r}, v{src}", deps=[(o, 9)] + dp_))
                        if th not in (0, 4): mixfree[mixcache[th][0]].append(m)
                        muls.append(m)
                    rduse[t & 1] += muls
                    od = O + 18*(t & 1) + 2*j
                    c1 = q.add(Op(f"v_cvt_pk_bf16_f32 v{od}, v{d}, v{d+1}", deps=[(muls[0], 0), (muls[1], 0)]))
                    c2 = q.add(Op(f"v_cvt_pk_bf16_f32 v{od+1}, v{d+2}, v{d+3}", deps=[(muls[2], 0), (muls[3], 0)]))
                    ringfree[slot] = [c1, c2]; ocv[(t, j)] = [c1, c2]
                L.append(it)
        return L
    mlast = {}
    def gemm_items(t, cts):
        L = []
        prev = {}
        for ks in range(5):
            for ct in cts:
                def it(ks=ks, ct=ct):
                    need = ocv[(t, 2*ks)] + (ocv[(t, 2*ks + 1)] if ks < 4 else [])
                    force(need)
                    deps = [(o, 2) for o in need]
                    if ks == 4: deps.append((prev[ct], 6))
                    n = 4 if ks < 4 else 2
                    o_ = O + 18*(t & 1) + 4*ks
                    op = "v_mfma_f32_16x16x32_bf16" if ks < 4 else "v_mfma_f32_16x16x16_bf16"
                    if ct == 6:
                        d = f"a[{MN+4*t}:{MN+4*t+3}]"; a = WB + 4*ks
                    else:
                        keep = t < 2 and ct < 3
                        dr = ACC + 12*t + 4*ct if keep else GB + 24*(t & 1) + 4*ct
                        if ks == 0 and not keep: force(guse[t & 1])
                        d = f"v[{dr}:{dr+3}]"; a = WFR + 24*ks + n*ct
                    mo = e.op(Op(f"{op} {d}, a[{a}:{a+n-1}], v[{o_}:{o_+n-1}], " + ("0" if ks == 0 else d), deps=deps))
                    prev[ct] = mo
                    if ks < 4: return
                    if ct == 6: mlast[t] = mo
                    elif keep:
                        x = XA + 4*ct + 2*t
                        q.fill(2)
                        e(f"v_mfma_f32_16x16x16_bf16 {d}, v[{ID}:{ID+1}], a[{x}:{x+1}], {d}")
                    else:
                        lq = (t >> 1)*2 + ct//3
                        c1 = q.add(Op(f"v_cvt_pk_bf16_f32 v{dr}, v{dr}, v{dr+1}", deps=[(mo, 9)]))
                        c2 = q.add(Op(f"v_cvt_pk_bf16_f32 v{dr+1}, v{dr+2}, v{dr+3}", deps=[(c1, 0)]))
                        w_ = q.add(Op(lambda dr=dr, off=lq*3072 + ((t & 1)*3 + ct % 3)*512: e.ds(f"ds_write_b64 v3, v[{dr}:{dr+1}] offset:{off}", "xw"), deps=[(c2, 0)]))
                        guse[t & 1].append(w_)
                L.append(it)
        return L
    def run(a, b=(), fill=mfill):
        a = list(a); b = list(b); na_, nb_ = len(a), len(b); ia = ib = 0
        while ia < na_ or ib < nb_:
            if ib < nb_ and (ia >= na_ or ib*na_ <= ia*nb_*lead_): b[ib](); ib += 1
            else: a[ia](); ia += 1
            pace(); q.fill(fill)
    e("s_nop 1")
    if fine:
        run(den_items(2), fill=3)
        run(num_items(2)[:fine] + den_items(3) + num_items(2)[fine:], fill=4)
    else:
        run(den_items(2) + den_items(3), fill=3)
        run(num_items(2), fill=4)
    tm.stamp(5)
    allc = [0, 1, 2, 3, 4, 5, 6]
    run(gemm_items(2, allc), num_items(3)[:6] + den_items(0) + num_items(3)[6:])
    run(gemm_items(3, allc), num_items(0)[:6] + den_items(1) + num_items(0)[6:])
    run(gemm_items(0, allc), num_items(1))
    run(gemm_items(1, [6, 3, 4, 5]))
    while vq: pace(True)
    prev = None
    for t in range(4):
        prev = q.add(Op(f"v_accvgpr_read_b32 v{16 + (t > 0)}, a{MN+4*(3-t)}", deps=[(mlast[3-t], 9)] + ([(prev, 0)] if prev else [])))
        if t: prev = q.add(Op(f"v_cndmask_b32 v16, v16, v17, s[{58-2*t}:{59-2*t}]", deps=[(prev, 0)]))
    q.add(Op(lambda: e.ds(f"ds_write_b32 v13, v16", "mw"), deps=[(prev, 0)]))
    own = gemm_items(1, [0, 1, 2])
    run(own[:nbar])
    q.drain()
    tm.stamp(6)
    e("s_waitcnt lgkmcnt(0)\ns_barrier")
    IN = 40
    for l2 in (1, 2, 3):
        for i in range(3):
            r = IN + 12*(l2-1) + 4*i
            q.add(Op(f"ds_read2st64_b64 v[{r}:{r+3}], v{8+l2-1} offset0:{l2*6 + 2*i} offset1:{l2*6 + 2*i + 1}"))
    q.add(Op(f"ds_read2st64_b32 v[104:105], v{VMX} offset0:0 offset1:1")); q.add(Op(f"ds_read2st64_b32 v[106:107], v{VMX} offset0:2 offset1:3"))
    run(own[nbar:])
    q.drain()
    tm.stamp(7)
    e("v_mov_b32 v13, 0x3f80\nv_mov_b32 v14, 0x3f800000\nv_mov_b32 v15, 0x3f803f80\nv_mov_b32 v8, 0\nv_mov_b32 v9, 0\ns_nop 2")
    e("s_waitcnt lgkmcnt(0)")
    for lq in (1, 2, 3):
        for i in range(3):
            for k in range(4):
                r = IN + 12*(lq-1) + 4*i + k; d = ACC + 2*(4*i + k)
                e(f"v_dot2c_f32_bf16 v{d}, v{r}, v13\nv_dot2c_f32_bf16 v{d+1}, v{r}, v14")
    e("v_pk_add_f32 v[104:105], v[104:105], v[106:107]\nv_add_f32 v1, v1, v104\nv_add_f32 v1, v1, v105\nv_cvt_pk_bf16_f32 v1, v1, v1\nv_and_b32 v1, 0xffff0000, v1\nv_xor_b32 v1, 0x80000000, v1")
    H = 80; HC = 92; TL = 40
    for c3 in range(3):
        for tt in range(2):
            a = ACC + 12*tt + 4*c3
            e(f"v_cvt_pk_bf16_f32 v{H+4*c3+2*tt}, v{a}, v{a+1}\nv_cvt_pk_bf16_f32 v{H+4*c3+2*tt+1}, v{a+2}, v{a+3}")
    for c3 in range(3):
        e(f"v_permlane32_swap_b32 v{H+4*c3}, v{H+4*c3+2}\nv_permlane32_swap_b32 v{H+4*c3+1}, v{H+4*c3+3}")
    for c3 in range(3):
        e(f"buffer_store_dwordx4 v[{H+4*c3}:{H+4*c3+3}], v{VST}, {W}, s3 offen" + (f" offset:{1024*c3}" if c3 else "") + sf)
        for r in range(H + 4*c3, H + 4*c3 + 4): e(f"v_dot2c_f32_bf16 v8, v{r}, v15\nv_dot2c_f32_bf16 v9, v{r}, v{r}")
    for c3 in range(3):
        for k in range(4):
            r = H + 4*c3 + k; t = TL + 8*c3 + 2*k
            e(f"v_dot2_f32_bf16 v{t}, v{r}, v13, v1\nv_dot2_f32_bf16 v{t+1}, v{r}, v14, v1")
        if c3 == 0: e("v_mov_b32 v6, v8\nv_mov_b32 v7, v9")
        if c3 == 1: e("v_permlane16_swap_b32 v6, v8\nv_permlane16_swap_b32 v7, v9")
    e(f"v_pk_add_f32 v[6:7], v[6:7], v[8:9]\nbuffer_store_dwordx2 v[6:7], v{VSA}, {W}, s7 offen{sf}")
    for c3 in range(3):
        for k in range(4): e(f"v_cvt_pk_bf16_f32 v{HC+4*c3+k}, v{TL+8*c3+2*k}, v{TL+8*c3+2*k+1}")
        e(f"buffer_store_dwordx4 v[{HC+4*c3}:{HC+4*c3+3}], v{VST}, {W}, s4 offen" + (f" offset:{1024*c3}" if c3 else "") + sf)
    tm.stamp(8)
    e(f"s_lshl_b32 s59, s{S_WS}, 8\ns_add_u32 s59, s59, {WS_FA}\ns_branch K2_done")
    e("F2_idle:\ns_waitcnt vmcnt(0) lgkmcnt(0)\ns_barrier")
    e(alu)
    if prefetch and pf2:
        srd(e, 52, 12, 576*4608*2); srd(e, 56, 14, 576*4608*2)
        F['pf'](e, pf2)
    if pfd:
        srd(e, 52, 40, 4608*576*2)
        slice_of_xcd(e, 5, 2, C)
        e(f"s_mul_i32 s5, s5, {576*1152}\ns_bfe_u32 s6, s2, 0x30003\ns_mul_i32 s6, s6, {72*1152}\ns_add_u32 s5, s5, s6\nv_mov_b32 v13, {BIG}")
        for i in range(3):
            e(f"v_add_u32 v3, {256*i}, v0\nv_lshlrev_b32 v12, 7, v3\nv_cmp_gt_u32 vcc, 648, v3\ns_nop 1\nv_cndmask_b32 v12, v13, v12, vcc\nbuffer_load_dword v244, v12, s[52:55], s5 offen")
    e(gusel)
    for st in range(3):
        for pre, t_, _, _ in kdma(st):
            for p in pre: e(p)
            e(t_)
    e("s_mov_b32 s59, -1\nK2_done:")
    F["nleft"] = 0; F["pre_stages"] = 3
```

```python
from sched import *
from layout import *
from tim import Tim
import struct, math
def f2u(x): return struct.unpack("<I", struct.pack("<f", x))[0]

def srd(e, d, b, nbytes, off=0):
    if off > 0:
        e(f"s_add_u32 s{d}, s{b}, {off}\ns_addc_u32 s{d+1}, s{b+1}, 0\ns_and_b32 s{d+1}, s{d+1}, 0xffff")
    elif off < 0:
        e(f"s_sub_u32 s{d}, s{b}, {-off}\ns_subb_u32 s{d+1}, s{b+1}, 0\ns_and_b32 s{d+1}, s{d+1}, 0xffff")
    else:
        e(f"s_mov_b32 s{d}, s{b}\ns_and_b32 s{d+1}, s{b+1}, 0xffff")
    e(f"s_mov_b32 s{d+2}, {nbytes}\ns_mov_b32 s{d+3}, 0x20000")

SLOT = 36864
STAMPS = [0, 135, -1, -2, 568, 648, 720, 792, 864, 900, 936, 971]
def gen_r3(fused, timing=False, budget=5, lead=45, bud2=6, f1=(666, 716, 738), f2=(768, 790, 824, 846),
           slack=2.25, vcost=1, ldpace=4, ldp2=4, dsp=4, dtail=1, hpre=166, hsp=2, slp=8, na=3, of=' sc1', ctouch=(), hd=7,
           order0='PSPSPP', bud0=5, xrate=4, stat=100, C=4, sga=22, wdpf=True, xat=7, bfl=44, bpl=100, spc=0, mpol=None, npre=4, r2=0):
    e = fused['e']; tm = fused['tm3']
    xf = gst = gld = store_flags = plf = ' sc0 sc1'
    assert C == 4
    TRB = 4; V1 = 8; VB = 17; VE = 26; VP1 = 29; VS = 30
    VK1 = 34; VK2 = 35; VS2 = 36; VL16 = 37; VPF = 38; VZ = 39; VF = 40; V3 = 41; VONE = 42; T = 44
    TM = 208
    SAC = 224; S_W2 = 44
    ACC = 56; OLD = 120; GT = 184; GS = 200; GP = 208
    FR = 144; GO = 192; HA = 240
    S_W = 8; S_WD = 12; S_HC = S_ST = S_PT = S_GX = S_FL = 16; S_XH = 20
    S_J = 28; S_I = 29; S_WV = 30; S_WB = 31; S_CP = 32; S_CS = 33; S_SO = 34; S_XO = 35
    S_PO = 36; S_PS = 37
    S_B0 = 38; S_B1 = 39; S_A0 = 21; S_A1 = 22; S_CNT = 49; S_GO = 50; S_XS = 51; S_SS = 52; S_PF = 53
    S_MK = 54
    S_RB = [56, 57, 54, 55]; S_SG = [58, 100]; S_TMP = 59; S_XD = 101
    S_GW = 40; S_GR = 41; S_FW = 42; S_FR = 43
    e("s_mov_b32 s23, s59\ns_mov_b64 s[26:27], s[42:43]\ns_mov_b64 s[44:45], s[40:41]\ns_mov_b64 s[40:41], s[12:13]")
    e(f"v_lshrrev_b32 v1, 6, v0\nv_and_b32 v2, 63, v0\ns_bfe_u32 s{S_I}, s2, 0x10002\ns_lshl_b32 s{S_I}, s{S_I}, 3\ns_lshr_b32 s5, s2, 5\ns_add_u32 s{S_I}, s{S_I}, s5\n{fused['jcalc'](S_J, 5)}\nv_readfirstlane_b32 s{S_WV}, v1")
    e(f"v_lshlrev_b32 v{VL16}, 4, v2")
    e(f"v_bfe_u32 v3, v2, 2, 3\nv_and_b32 v{TM}, 3, v2\nv_lshlrev_b32 v{TM}, 4, v{TM}\nv_lshrrev_b32 v{TM+1}, 5, v2\nv_lshl_add_u32 v{TM+1}, v{TM+1}, 6, v{TM}")
    e(f"s_mul_i32 s{S_WB}, s{S_WV}, 9216")
    e(f"s_and_b32 s3, s{S_J}, 1\ns_mul_i32 s6, s{S_J}, 576\ns_lshl_b32 s7, s3, 6\ns_add_u32 s{S_CP}, s6, s7")
    e(f"s_and_b32 s4, s{S_WV}, 1\ns_mul_i32 s5, s4, {72*9216}\ns_add_u32 s{S_CP}, s{S_CP}, s5")
    e(f"v_mul_u32_u24 v1, 9216, v3\nv_add_u32 v{V1}, v1, v{TM+1}")
    for i in range(1, 9): e(f"v_add_u32 v{V1+i}, {8*i*9216 - (i%3)*1024}, v{V1}")
    e(f"s_lshl_b32 s5, s{S_I}, 2\ns_add_u32 s5, s5, s{S_WV}\ns_mul_i32 s{S_XO}, s5, 36864\ns_add_u32 s{S_XH}, s{S_XO}, {WS_HC}")
    e(f"v_lshrrev_b32 v1, 5, v2\nv_lshlrev_b32 v1, 8, v1\nv_bfe_u32 v{T}, v2, 2, 2\nv_lshl_add_u32 v1, v{T}, 6, v1")
    e(f"v_bfe_u32 v{T}, v2, 4, 1\nv_lshl_add_u32 v1, v{T}, 5, v1\nv_and_b32 v{T}, 3, v2\nv_lshl_add_u32 v{TRB}, v{T}, 3, v1")
    for i in range(1, 4): e(f"v_add_u32 v{TRB+i}, {i*SLOT}, v{TRB}")
    srd(e, S_W, 40, 576*4608*2)
    srd(e, S_HC, 46, WS_BYTES)

    NST = 27
    perm = fused['perm']
    ST1 = []
    for ch in order0: ST1.append(((0 if ch == "P" else "S"), sum(1 for x in ST1 if (x[0] == "S") == (ch == "S"))))
    ST1 += [(p, q_) for p in (1, 2, 3) for q_ in range(4)]
    def bbase(b): return (S_SG[b[1]], 0) if b[0] == "s" else (S_RB[b[0]], b[1]*64*1152)
    plan = [("N", x) for x in (((0, 0), (0, 1)), ((1, 0), (1, 1)), ((2, 0), (3, 0)), ((0, 2), (2, 1)), (("s", 0), (3, 1)), (("s", 1), (1, 2)), ((2, 2), (3, 2)))]
    plan.insert(xat, ("X", [(0, k) for k in range(4)]))
    plan += [("P", 0), ("P", 1)]
    def dma_instrs(st, inbody=False):
        slot = perm[st % 4]
        L = []
        def grp(g, so, vs, sr):
            if so: L.append((so, False))
            L.append((f"s_add_u32 m0, s{S_WB}, {slot*SLOT + g*3072}", False))
            for k in range(3):
                L.append((f"buffer_load_dwordx4 v{vs[k]}, s[{sr}:{sr+3}], s{sreg} offen" + (f" offset:{k*1024}" if k else "") + " lds", True))
        sreg = S_SO
        if inbody and st < 20:
            sreg = {16: S_A0, 17: S_A1, 18: S_B0, 19: S_B1}[st]; vb = V1 if st < 18 else VB
            for g in range(3): grp(g, None, [vb+3*g, vb+3*g+1, vb+3*g+2], S_W if st < 18 else S_W2)
            L.append((f"s_add_u32 s{sreg}, s{sreg}, 128", False))
        elif st < 18:
            p, q = ST1[st]
            for g in range(3):
                if p == "S": grp(g, f"s_add_u32 s{S_SO}, s{S_CS}, {q*288*9216}" if g == 0 else None, [VB+3*g, VB+3*g+1, VB+3*g+2], S_W)
                else: grp(g, f"s_add_u32 s{S_SO}, s{S_CP}, {p*128 + q*144*9216}" if g == 0 else None, [V1+3*g, V1+3*g+1, V1+3*g+2], S_W)
        else:
            ty, k = plan[st-18]
            def so(b, extra=0): return f"s_add_u32 s{S_SO}, s{bbase(b)[0]}, {bbase(b)[1] + extra}"
            def m0(i): L.append((f"s_add_u32 m0, s{S_WB}, {slot*SLOT + i*1024}", False))
            def dm(v, i): L.append((f"buffer_load_dwordx4 v{v}, s[{S_WD}:{S_WD+3}], s{S_SO} offen" + (f" offset:{i*1024}" if i else "") + " lds", True))
            if ty == "N":
                for gi, b in enumerate(k):
                    L.append((so(b), False)); m0(4*gi)
                    dm(VE, 0); dm(VE + 1, 1); dm(V1, 2); dm(V1 + 1, 3)
            else:
                bl = k if ty == "X" else [(p, 3) for p in range(4)]
                for gi, b in enumerate(bl):
                    L.append((so(b, 128*k) if ty == "P" else f"s_add_u32 s{S_SO}, s{S_XD}, {b[1]*64*1152}", False))
                    if gi % 2 == 0: m0(2*gi); dm(VE, 0); dm(VP1, 1)
                    else: dm(V1 + 2, 2); dm(V1 + 3, 3)
                if ty == "X":
                    L.append((f"s_mov_b32 s{S_SO}, s{S_PS}", False)); m0(8); dm(VE, 0)
        return L
    def emit_list(L):
        n = 0; prev_m0 = False
        for t, tag in L:
            if tag:
                if prev_m0: e("s_nop 0"); n += 1
                e.vmem(t, tag); prev_m0 = False
            else:
                e(t); prev_m0 = "m0" in t
            n += 1
        return n
    def xload_instrs(s):
        L = []
        if s % 4 == 0: L.append((f"s_add_u32 s{S_XS}, s{S_XH}, {s*1024}", None))
        L.append((f"buffer_load_dwordx4 a[{4*s}:{4*s+3}], v{VL16}, s[{S_HC}:{S_HC+3}], s{S_XS} offen" + (f" offset:{(s%4)*1024}" if s % 4 else "") + xf, ("x", s)))
        return L
    e.vm = []; e.vm_done = 0; e.lg = []; e.lg_done = 0

    q = Queue(e, window=10)
    def emit_op(o, _orig=e.op):
        if callable(o.text):
            o.text(); o.pos = e.n - 1; return o
        return _orig(o)
    e.op = emit_op
    chl = [None]
    def chain(text, first_deps=()):
        prev = None
        for l in text.split("\n") if isinstance(text, str) else text:
            if isinstance(l, str):
                l = l.strip()
                if not l: continue
            deps = [(prev, 0)] if prev else list(first_deps) + ([(chl[0], 0)] if chl[0] and chl[0].pos is None else [])
            cost = 2 if isinstance(l, str) and re.match(r"v_(rcp|sqrt|exp|permlane)", l) else 1
            prev = q.add(Op(l, cost=cost, deps=deps))
        chl[0] = prev
        return prev
    e(f"s_lshl_b32 s{S_SS}, s5, 8\nv_and_b32 v{VZ}, 31, v2\nv_lshlrev_b32 v{VZ}, 3, v{VZ}\nv_lshrrev_b32 v1, 5, v2\nv_mul_u32_u24 v1, {6*16384}, v1\nv_add_u32 v{VZ}, v{VZ}, v1")
    srd(e, S_WD, 44, 4608*576*2 + 4096, -4096)
    e(f"s_xor_b32 s7, s3, 1\ns_lshl_b32 s7, s7, 9\ns_add_u32 s{S_CS}, s6, s7\ns_mul_i32 s4, s4, {144*9216}\ns_add_u32 s{S_CS}, s{S_CS}, s4")
    e(f"v_lshrrev_b32 v1, 2, v2\nv_mul_u32_u24 v{T}, 9216, v1\nv_add_u32 v{VB}, v{T}, v{TM}")
    for i in range(1, 9): e(f"v_add_u32 v{VB+i}, {16*i*9216 - (i%3)*1024}, v{VB}")
    e(f"s_mov_b64 s[{S_W2}:{S_W2+1}], s[{S_W}:{S_W+1}]\ns_mov_b32 s{S_W2+2}, s{S_W+2}\ns_mov_b32 s{S_W2+3}, 0x20000")
    e(f"s_mul_i32 s5, s{S_WV}, {16*1152}\ns_add_u32 s5, s5, 4096")
    e(f"v_mul_u32_u24 v{T}, 1152, v3\nv_add3_u32 v{VE}, v{T}, v{TM+1}, s5\nv_subrev_u32 v{VE+1}, {1024-128}, v{VE}\nv_add_u32 v{VP1}, {8*1152-1024}, v{VE}")
    e(f"s_lshr_b32 s5, s{S_J}, 2\ns_mul_i32 s5, s5, {1152*1152}\ns_and_b32 s4, s{S_J}, 3\ns_lshl_b32 s6, s4, 8\ns_add_u32 s6, s6, s5")
    for p in range(4):
        e(f"s_xor_b32 s7, s4, {p}\ns_mul_i32 s{S_RB[p]}, s7, {288*1152}\ns_and_b32 s7, s7, 1\ns_mul_i32 s7, s7, {32*1152}\ns_add_u32 s{S_RB[p]}, s{S_RB[p]}, s7\ns_add_u32 s{S_RB[p]}, s{S_RB[p]}, s6")
    e(f"""s_sub_u32 s{S_XD}, s{S_RB[0]}, s6
s_add_u32 s{S_XD}, s{S_XD}, s5
s_add_u32 s{S_XD}, s{S_XD}, 1024
s_lshr_b32 s4, s4, 1
s_mul_i32 s4, s4, {576*1152}
s_lshl_b32 s7, s3, 2
s_sub_u32 s7, s7, s{S_WV}
s_add_u32 s7, s7, 32
s_mul_i32 s7, s7, {8*1152}
s_add_u32 s{S_PS}, s5, s4
s_add_u32 s{S_PS}, s{S_PS}, s7
s_add_u32 s{S_PS}, s{S_PS}, 1024
s_lshl_b32 s7, s3, 1
s_xor_b32 s7, s7, s{S_WV}
s_sub_u32 s7, s7, s{S_WV}
s_add_u32 s7, s7, 16
s_mul_i32 s7, s7, {16*1152}
s_add_u32 s7, s7, s6
s_add_u32 s{S_SG[0]}, s7, s4
s_add_u32 s{S_SG[1]}, s7, {576*1152}
s_sub_u32 s{S_SG[1]}, s{S_SG[1]}, s4""")
    S_GP = [S_GW, 41, 43, 99]
    e(f"""s_lshl_b32 s5, s{S_I}, 4
s_add_u32 s5, s5, s{S_J}
s_lshl_b32 s5, s5, 2
s_add_u32 s5, s5, s{S_WV}
s_lshl_b32 s{S_FW}, s5, 6
s_add_u32 s{S_FW}, s{S_FW}, {WS_FL}
v_add_u32 v1, 1, v2
v_lshlrev_b32 v1, 2, v1
v_xor_b32 v1, s5, v1
v_cmp_gt_u32 vcc, 3, v2
v_lshlrev_b32 v1, 6, v1
v_add_u32 v1, {WS_FL}, v1
v_mov_b32 v{VS}, 0x40000000
v_cndmask_b32 v{VS}, v{VS}, v1, vcc""")
    for p in range(4): e(f"s_xor_b32 s6, s5, {4*p}\ns_mul_i32 s{S_GP[p]}, s6, 18432\ns_add_u32 s{S_GP[p]}, s{S_GP[p]}, {WS_GX}")
    e(f"""s_mov_b32 s{S_GO}, s{S_GW}
s_add_u32 s{S_A0}, s{S_CP}, {128 + 288*9216}
s_add_u32 s{S_A1}, s{S_CP}, {128 + 432*9216}
s_add_u32 s{S_B0}, s{S_CP}, 256
s_add_u32 s{S_B1}, s{S_CP}, {256 + 144*9216}
s_mov_b32 s{S_CNT}, 0""")
    if wdpf:
        e(f"s_mul_i32 s5, s{S_WV}, 42\nv_add_u32 v1, s5, v2\nv_lshlrev_b32 v1, 7, v1\nv_cmp_gt_u32 vcc, 14, v2\nv_mov_b32 v{VPF}, 0x40000000")
        e(f"s_mul_i32 s5, s{S_I}, 18\ns_mul_i32 s6, s{S_J}, 288\ns_add_u32 s5, s5, s6\ns_mul_i32 s{S_PF}, s5, 1152\ns_add_u32 s{S_PF}, s{S_PF}, 4096\nv_cndmask_b32 v{VPF}, v{VPF}, v1, vcc")

    c = 0.7978845608028654; l2e = 1.4426950408889634
    k1 = -2*c*l2e; k2 = k1*0.044715
    M = []
    for st, (p, qq) in enumerate(ST1):
        if p == "S":
            for s in range(18):
                ks = 18*qq + s
                for mat in range(2):
                    o = (mat*18 + s)*1024
                    M.append(dict(acc=f"v{SAC + 16*mat}", dst=None, b=f"a[{4*ks}:{4*ks+3}]", first=(ks == 0), last=(ks == 35), st=st, rd=(o, o + 512), xs=ks, unit=8, mat=mat, ph=1))
            continue
        for s in range(9):
            ks = 9*qq + s
            for uu in range(2):
                for mat in range(2):
                    o = (mat*18 + 2*s)*1024 + uu*512
                    M.append(dict(acc=f"v{ACC + 32*uu + 16*mat}", dst=f"v{OLD + 32*uu + 16*mat}" if ks == 35 else None, b=f"a[{4*ks}:{4*ks+3}]",
                                  first=(ks == 0), last=(ks == 35), st=st, rd=(o, o + 1024), xs=ks if p == 0 else None, unit=2*p+uu, mat=mat, ph=1))
        if qq == 3:
            t = M[-8:]; M[-8:] = [t[0], t[1], t[4], t[5], t[2], t[3], t[6], t[7]]
    tacc = {t: f"v{ACC+16*t}" for t in range(4)}; tacc[4] = f"v{OLD}"; tacc[5] = f"v{OLD+16}"
    early_f = [(p, fi) for p in (1, 2, 3) for fi in range(4)] + [(p, fi) for p in (1, 2) for fi in range(4, 8)] + [(1, 16), (1, 17)] + [(3, fi) for fi in range(4, 8)] + \
              [(p, fi) for p in (2, 3) for fi in (16, 17)] + [(p, fi) for p in (1, 2, 3) for fi in range(8, 12)]
    if npre < 12: early_f = early_f[:4] + early_f[12:16] + early_f[4:12] + early_f[16:] if npre <= 4 else early_f[:8] + early_f[12:16] + early_f[8:12] + early_f[16:]
    late_f = [(p, fi) for p in (1, 2, 3) for fi in range(12, 16)]
    greg = {}
    for n_, x in enumerate(early_f): greg[x] = f"v[{GP+4*n_}:{GP+4*n_+3}]" if n_ < 12 else f"a[{4*(n_-12)}:{4*(n_-12)+3}]"
    for n_, x in enumerate(late_f): greg[x] = f"v[{GP+4*n_}:{GP+4*n_+3}]"
    def gsrc(b, w):
        p, fi = (2*b[1] + (w >> 1), 16 + (w & 1)) if b[0] == "s" else (b[0], 4*b[1] + w)
        if p: return greg[(p, fi)], ("gp", (p, fi))
        if fi < 12: return f"a[{GO+4*fi}:{GO+4*fi+3}]", ("go", 0)
        if fi < 16: return f"v[{GT+4*(fi-12)}:{GT+4*(fi-12)+3}]", ("cv", fi)
        return f"v[{GS+4*(fi-16)}:{GS+4*(fi-16)+3}]", ("go", 0)
    for si, (ty, k) in enumerate(plan):
        it = []
        if ty == "N":
            for gi, b in enumerate(k):
                for w in range(4):
                    for t in range(4):
                        o = w*9216 + gi*4096 + (t >> 1)*1024 + (t & 1)*512
                        it.append((t, b, w, o, o + 2048))
        else:
            bl = k if ty == "X" else [(p, 3) for p in range(4)]
            for uu in range(2):
                t = 4 + uu if ty == "X" else 2*k + uu
                if ty == "X":
                    for ks in range(2): it.append((t, ("s", 0), ks, 2*ks*9216 + 8192 + uu*512, (2*ks + 1)*9216 + 8192 + uu*512))
                for gi, b in enumerate(bl):
                    for w in range(4):
                        o = w*9216 + gi*2048 + uu*512
                        it.append((t, b, w, o, o + 1024))
        for t, b, w, r0, r1 in it:
            g = gsrc(b, w)
            M.append(dict(acc=tacc[t], dst=None, b=g[0], gsrc=g[1], first=False, last=False, st=18+si, rd=(r0, r1), xs=None, tile=t, ph=2))
    for t in range(6):
        ix = [m for m in range(648, len(M)) if M[m]["tile"] == t]
        M[ix[0]]["first"] = True; M[ix[-1]]["last"] = True
    assert len(M) == 972
    LA = 8
    def rng(r, n=16):
        return f"{r[0]}[{int(r[1:])}:{int(r[1:])+n-1}]"

    gdone = {}; tstate = {"last": [None, None]}; pairctr = [0]
    oldbusy = {}
    memq = []
    def add_gelu(unit, gacc, uacc, mg, mu, inbody):
        gb = GS if unit == 8 else GT + 8*(unit & 1)
        for k in range(8):
            ts = pairctr[0] % 2; pairctr[0] += 1
            ta, tb = T + 2*ts, T + 2*ts + 1
            ga, gb_, ua, ub = gacc + 2*k, gacc + 2*k + 1, uacc + 2*k, uacc + 2*k + 1
            prev = tstate["last"][ts]
            d0 = [(mg, 13)] + ([(prev, 0)] if prev else [])
            sa = q.add(Op(f"v_mul_f32 v{ta}, v{ga}, v{ga}", deps=d0))
            sb = q.add(Op(f"v_mul_f32 v{tb}, v{gb_}, v{gb_}", deps=d0))
            fa = q.add(Op(f"v_fma_f32 v{ta}, v{ta}, v{VK2}, v{VK1}", deps=[(sa, 0)]))
            fb = q.add(Op(f"v_fma_f32 v{tb}, v{tb}, v{VK2}, v{VK1}", deps=[(sb, 0)]))
            aa = q.add(Op(f"v_mul_f32 v{ta}, v{ga}, v{ta}", deps=[(fa, 0)]))
            ab = q.add(Op(f"v_mul_f32 v{tb}, v{gb_}, v{tb}", deps=[(fb, 0)]))
            ea = q.add(Op(f"v_exp_f32 v{ta}, v{ta}", cost=2, deps=[(aa, 0)]))
            pa = q.add(Op(f"v_mul_f32 v{ua}, v{ga}, v{ua}", deps=[(mg, 13), (mu, 13)]))
            eb = q.add(Op(f"v_exp_f32 v{tb}, v{tb}", cost=2, deps=[(ab, 0)]))
            pb = q.add(Op(f"v_mul_f32 v{ub}, v{gb_}, v{ub}", deps=[(mg, 13), (mu, 13)]))
            da = q.add(Op(f"v_fma_f32 v{ta}, v{ta}, v{VS2}, v{VS2}", deps=[(ea, 1)]))
            db = q.add(Op(f"v_fma_f32 v{tb}, v{tb}, v{VS2}, v{VS2}", deps=[(eb, 1)]))
            ra = q.add(Op(f"v_rcp_f32 v{ta}, v{ta}", cost=2, deps=[(da, 0)]))
            rb = q.add(Op(f"v_rcp_f32 v{tb}, v{tb}", cost=2, deps=[(db, 0)]))
            ya = q.add(Op(f"v_mul_f32 v{ta}, v{ua}, v{ta}", deps=[(ra, 1), (pa, 0)]))
            yb = q.add(Op(f"v_mul_f32 v{tb}, v{ub}, v{tb}", deps=[(rb, 1), (pb, 0)]))
            cv = q.add(Op(f"v_cvt_pk_bf16_f32 v{gb + k}, v{ta}, v{tb}", deps=[(ya, 0), (yb, 0)]))
            tstate["last"][ts] = cv
            fi = 2*unit + k//4
            gdone.setdefault(fi, []).append(cv)
            oldbusy.setdefault(f"v{gacc}", []).append(cv); oldbusy.setdefault(f"v{uacc}", []).append(cv)
            if k % 4 == 3:
                r = gb + k - 3
                L = []
                if unit == 8 and k == 3: L.append((f"s_add_u32 s{S_TMP}, s{S_GW}, 16384", None))
                off = (fi % 4)*1024
                L.append((f"buffer_store_dwordx4 v[{r}:{r+3}], v{VL16}, s[{S_GX}:{S_GX+3}], s{S_TMP if unit == 8 else S_GO} offen" + (f" offset:{off}" if off else "") + gst, ("gs", fi)))
                memq.append(dict(deps=list(gdone[fi]), L=L))
    outn = [0]
    VPS = 48; VLZ = 49; VPC = 50; VRC = 51; VOA = 52; VOC = 53; VHA = 54; VHC = 55; VRA = 3; VPX = 33; VLC = 39
    outdone = {}; migops = {}
    def add_out(t, acc, mo):
        prev = None; cvs = []
        r = int(acc[1:])
        for i in range(8):
            prev = q.add(Op(f"v_cvt_pk_bf16_f32 v{r+i}, v{r+2*i}, v{r+2*i+1}", deps=[(mo, 13)] + ([(prev, 0)] if prev else []))); cvs.append(prev)
        new = []
        for h in range(2):
            L = []
            g_, fi_ = t >> 1, 2*(t & 1) + h
            if fi_ == 0: L.append((f"s_add_u32 s{S_TMP}, s{S_PO}, {g_*4096}" if g_ < 2 else f"s_mov_b32 s{S_TMP}, s{S_SS}", None))
            L.append((f"buffer_store_dwordx4 v[{r+4*h}:{r+4*h+3}], v{VPS if g_ < 2 else VPX}, s[{S_PT}:{S_PT+3}], s{S_TMP} offen" + (f" offset:{fi_*256}" if fi_ else "") + store_flags, ("store", g_)))
            x = dict(deps=[cvs[4*h+3]], L=L); memq.append(x); new.append(x)
            if g_ < 2:
                q.add(Op(lambda r=r+4*h, off=g_*1024 + fi_*256: e.ds(f"ds_write_b128 v{V3}, v[{r}:{r+3}] offset:{off}", 10**6), deps=[(cvs[4*h+3], 0)]))
        outdone[t] = new
    def pop_mem():
        y = memq.pop(0); y["done"] = True
        return emit_list(y["L"])
    def mem_ready():
        return memq and all(d.pos is not None for d in memq[0]["deps"])
    def reads(m):
        d = M[m]; fr = FR + 4*(m % 12); vb = TRB + perm[d["st"] % 4]
        e.ds(f"ds_read_b64_tr_b16 a[{fr}:{fr+1}], v{vb} offset:{d['rd'][0]}", m)
        e.ds(f"ds_read_b64_tr_b16 a[{fr+2}:{fr+3}], v{vb} offset:{d['rd'][1]}", m)

    early = []
    for s_ in range(36): early.append((min(min(m for m, d in enumerate(M) if d["xs"] == s_), xrate*s_), xload_instrs(s_)))
    for g in range(6):
        early.append((stat + g, [(f"s_add_u32 s{S_TMP}, s{S_SS}, {WS_ST + g*16384}", None),
                                (f"buffer_load_dwordx2 v[{TM+2+2*g}:{TM+3+2*g}], v{VZ}, s[{S_ST}:{S_ST+3}], s{S_TMP} offen" + xf, "st")]))
    early.sort(key=lambda x: x[0])
    def emit_early():
        return emit_list(early.pop(0)[1])
    def stats_ops():
        b = TM + 2
        inv = hex(f2u(1.0/576))
        txt = [lambda: e.wait_vm(lambda t: t == "st")] + f"""v_add_f32 v{b}, v{b}, v{b+2}
v_add_f32 v{b+1}, v{b+1}, v{b+3}
v_add_f32 v{b+4}, v{b+4}, v{b+6}
v_add_f32 v{b+5}, v{b+5}, v{b+7}
v_add_f32 v{b+8}, v{b+8}, v{b+10}
v_add_f32 v{b+9}, v{b+9}, v{b+11}
v_add_f32 v{b}, v{b}, v{b+4}
v_add_f32 v{b+1}, v{b+1}, v{b+5}
v_add_f32 v{b}, v{b}, v{b+8}
v_add_f32 v{b+1}, v{b+1}, v{b+9}
v_mov_b32 v{b+2}, v{b}
v_mov_b32 v{b+3}, v{b+1}
v_mov_b32 v{VONE}, 1
s_nop 0
v_permlane32_swap_b32 v{b}, v{b+2}
v_permlane32_swap_b32 v{b+1}, v{b+3}
s_nop 0
v_add_f32 v{b}, v{b}, v{b+2}
v_add_f32 v{b+1}, v{b+1}, v{b+3}
v_mul_f32 v{b}, {inv}, v{b}
v_mul_f32 v{b+1}, {inv}, v{b+1}
v_fma_f32 v{b+1}, -v{b}, v{b}, v{b+1}
v_max_f32 v{b+1}, 0, v{b+1}
v_cvt_pk_bf16_f32 v{b+1}, v{b+1}, v{b+1}
v_and_b32 v{b+1}, 0xffff0000, v{b+1}
v_add_f32 v{b+1}, {hex(f2u(1e-5))}, v{b+1}
v_cvt_pk_bf16_f32 v{b+1}, v{b+1}, v{b+1}
v_and_b32 v{b+1}, 0xffff0000, v{b+1}
v_sqrt_f32 v{b+1}, v{b+1}
s_nop 0
v_cvt_pk_bf16_f32 v{b+1}, v{b+1}, v{b+1}
v_and_b32 v{b+1}, 0xffff0000, v{b+1}
v_rcp_f32 v{b}, v{b+1}
v_mul_f32 v{VS2}, v{b+1}, v{b+1}
v_mul_f32 v{VK1}, {hex(f2u(k1))}, v{b}
v_mul_f32 v{b+1}, v{b}, v{b}
v_mul_f32 v{b}, {hex(f2u(k2))}, v{b}
v_mul_f32 v{VK2}, v{b}, v{b+1}""".split("\n")
        chain(txt)
    spins = []; tails = []
    gpoll = f"buffer_atomic_add v{VF}, v{VS}, s[{S_FL}:{S_FL+3}], 0 offen sc0 sc1"
    def gchk(val): return f"v_cmp_le_u32 vcc, {val}, v{VF}\ns_nop 1\ns_cmp_eq_u32 vcc_lo, 7"
    def poll_check(val, name):
        e.wait_vm(lambda t: t == "poll" + name)
        e(f"{gchk(val)}\ns_cbranch_scc0 K3_spin{name}\nK3_ret{name}:")
        spins.append((name, val))
    def gload(x):
        p, fi = x
        L = []
        if fi % 4 == 0: L.append((f"s_add_u32 s{S_XS}, s{S_GP[p]}, {fi*1024}", None))
        L.append((f"buffer_load_dwordx4 {greg[x]}, v{VL16}, s[{S_GX}:{S_GX+3}], s{S_XS} offen" + (f" offset:{(fi%4)*1024}" if fi % 4 else "") + gld, ("gp", x)))
        return L
    ldq = []
    ftxt = f"buffer_atomic_add v{VONE}, v{VLZ}, s[{S_FL}:{S_FL+3}], s{S_FW} offen sc1"
    def flag_store(): e.vmem(ftxt, "flag")
    def poll_issue(name):
        e(f"v_mov_b32 v{VF}, 0"); e.vmem(gpoll, "poll" + name); return 3
    actions = {}
    def apoll(sreg, val=0):
        return f"v_mov_b32 v{VF}, {val}\nbuffer_atomic_add v{VF}, v{VLZ}, s[{S_FL}:{S_FL+3}], s{sreg} offen sc0 sc1"
    e(f"s_lshl_b32 s5, s{S_I}, 2\ns_add_u32 s5, s5, s{S_WV}\ns_lshl_b32 s24, s5, 8\ns_add_u32 s24, s24, {WS_FA}")
    e(f"v_cmp_eq_u32 vcc, 0, v2\nv_mov_b32 v{VONE}, 1\nv_mov_b32 v1, 0x40000000\nv_cndmask_b32_e64 v{VLZ}, v1, 0, vcc")
    tm.stamp(-10)
    e("s_waitcnt vmcnt(0)")
    tm.stamp("A0")
    e(f"s_cmp_lt_i32 s23, 0\ns_cbranch_scc1 K3_ns\nbuffer_atomic_add v{VONE}, v{VLZ}, s[{S_FL}:{S_FL+3}], s23 offen sc1\nK3_ns:")
    e("s_barrier")
    LL = [(t, ("dma", st) if d else None) for st in (perm.index(3),) for t, d in dma_instrs(st)]
    k_ = [i for i, (t, d) in enumerate(LL) if d][na-1] + 1 if na else 0
    emit_list(LL[:k_])
    for m in range(LA): reads(m)
    LOC = 4*SLOT
    e(f"""s_and_b32 s4, s{S_J}, 3
s_lshr_b32 s23, s{S_J}, 2
s_lshl_b32 s25, s5, 2
s_add_u32 s25, s25, s4
s_lshl_b32 s48, s25, 13
s_add_u32 s48, s48, {WS_PART}
s_lshl_b32 s6, s23, 21
s_add_u32 s{S_PO}, s48, s6
s_lshl_b32 s25, s25, 7
s_add_u32 s25, s25, {WS_FB}
s_lshl_b32 s7, s{S_WV}, 11
s_add_u32 s7, s7, {LOC}
v_bfe_u32 v{T}, v2, 3, 2
v_cmp_eq_u32 vcc, s23, v{T}
v_lshrrev_b32 v{T+1}, 5, v2
v_and_b32 v{T+2}, 7, v2
v_lshlrev_b32 v{T+2}, 4, v{T+2}
v_lshl_add_u32 v{T+1}, v{T+1}, 7, v{T+2}
v_lshl_add_u32 v{VPX}, v{T}, 10, v{T+1}
v_add_u32 v{T+1}, s7, v{T+1}
v_mov_b32 v{T+2}, 0x30000
v_cndmask_b32_e64 v{VPS}, v{VPX}, v1, vcc
v_cndmask_b32_e64 v{V3}, v{T+2}, v{T+1}, vcc
v_lshrrev_b32 v{T}, 3, v2
v_bfe_u32 v{T+1}, v2, 1, 2
v_and_b32 v{T+2}, 1, v2
v_lshlrev_b32 v{VRA}, 4, v{T}
v_lshl_add_u32 v{VRA}, v{T+2}, 7, v{VRA}
v_lshl_add_u32 v{VRA}, v{T+1}, 8, v{VRA}
v_add_u32 v{VONE+1}, s7, v{VRA}
s_lshl_b32 s6, s23, 10
v_add_u32 v{VRA}, s6, v{VRA}
s_lshl_b32 s7, s23, 3
v_add_u32 v{T}, s7, v{T}
v_lshl_add_u32 v{T+1}, s4, 3, v{T+1}
v_mul_u32_u24 v{VOA}, 1152, v{T}
v_lshl_add_u32 v{VOA}, v{T+2}, 4, v{VOA}
v_lshl_add_u32 v{VOA}, v{T+1}, 5, v{VOA}
v_lshl_add_u32 v{T}, v{T+2}, 5, v{T}
v_lshlrev_b32 v{VHA}, 4, v{T}
v_lshl_add_u32 v{VHA}, v{T+1}, 10, v{VHA}
v_bfe_u32 v{T}, v2, 1, 3
v_lshlrev_b32 v{VRC}, 4, v{T}
v_lshl_add_u32 v{VRC}, v{T+2}, 7, v{VRC}
v_lshrrev_b32 v{T+1}, 4, v2
v_lshl_add_u32 v{VRC}, v{T+1}, 18, v{VRC}
s_lshl_b32 s6, s{S_J}, 8
v_add_u32 v{VRC}, s6, v{VRC}
v_cmp_gt_u32 vcc, 16, v2
v_add_u32 v{T}, s7, v{T}
s_add_u32 s4, s4, 32
v_mul_u32_u24 v{VOC}, 1152, v{T}
v_lshl_add_u32 v{VOC}, v{T+2}, 4, v{VOC}
v_lshl_add_u32 v{VOC}, s4, 5, v{VOC}
v_lshl_add_u32 v{T}, v{T+2}, 5, v{T}
v_lshlrev_b32 v{VHC}, 4, v{T}
v_lshl_add_u32 v{VHC}, s4, 10, v{VHC}
v_cndmask_b32_e64 v{VOC}, v1, v{VOC}, vcc
v_cndmask_b32_e64 v{VHC}, v1, v{VHC}, vcc""")
    if ctouch:
        e(f"s_getpc_b64 s[6:7]\nK3_pc:\ns_add_u32 s6, s6, K3_pdA-K3_pc\ns_addc_u32 s7, s7, 0\ns_lshr_b32 s4, s2, 3\ns_lshl_b32 s4, s4, 2\ns_add_u32 s4, s4, s{S_WV}\ns_lshl_b32 s4, s4, 9")
        e(f"v_and_b32 v2, 3, v2\nv_lshlrev_b32 v2, 7, v2\nv_add_u32 v2, s4, v2\nv_min_u32 v2, KB_last-K3_pdA, v2")
    tm.stamp("A1")
    e(apoll(24))
    emit_list(LL[k_:])
    rd = f"v_readfirstlane_b32 s5, v{VF}\ns_nop 1"
    e(f"s_waitcnt vmcnt({9-na})\n{rd}\ns_cmp_ge_u32 s5, 12\ns_cbranch_scc1 K3_pdA\nK3_plA:\n{apoll(24)}\ns_waitcnt vmcnt(0)\n{rd}")
    e(f"s_cmp_ge_u32 s5, 12\ns_cbranch_scc1 K3_pdA\ns_cmp_lg_u32 s5, 0\ns_cbranch_scc1 K3_plA\ns_sleep {slp}\ns_branch K3_plA\nK3_pdA:")
    tm.stamp(-11)
    e.vm = [("dma", perm.index(k//9)) for k in range(36)]; e.vm_done = 27 + na
    for _ in range(8): emit_early()
    for m_ in ctouch:
        actions[m_] = lambda: e.vmem(f"global_load_dword v1, v2, s[6:7]", "ct") and 2
    def hl(k):
        e(f"s_add_u32 s{S_XS}, s{S_XO}, {WS_HT + (4096 if k == 1 else 0)}")
        e.vmem(f"buffer_load_dwordx4 a[{HA+4*k}:{HA+4*k+3}], v{VHA if k < 2 else VHC}, s[{S_HC}:{S_HC+3}], s{S_XS} offen sc0 sc1", "h"); return 3
    for k in range(3): actions[hpre + hsp*k] = (lambda k=k: hl(k))
    lastm = {}
    e.wait_lg(lambda t: t <= 3)
    B0, B1, HD = 208, 640, hd
    st8 = dict(dmaq=[], dma_st=None, stats=False, lastld=-100, qempty=None, f2=f2, n0=9, len0=36)
    def moves(p):
        prev = None
        for i in range(16):
            prev = q.add(Op(f"v_accvgpr_write_b32 a{GO+16*p+i}, v{GT+i}", deps=[(prev, 0)] if prev else []))
        return prev
    def dma_due(left, dmaq):
        if len(dmaq) >= left: return True
        nd = sum(1 for _, isd in dmaq if isd)
        sp = dsp if st8["len0"] == 36 and st8["n0"] == 9 else (st8["len0"] - 4)/st8["n0"]
        ns = 0
        while ns < len(dmaq) and not dmaq[ns][1]: ns += 1
        return nd == 0 or left <= (nd - 1)*sp + dtail + 2*ns
    def gap(m, inbody, fillall=False):
        NM = len(M)
        d = M[m]
        dmaq = st8["dmaq"]
        deps = []
        if d["xs"] is not None and m < B0:
            while not any(t == ("x", d["xs"]) for t in e.vm): emit_early()
            e.wait_vm(lambda t: t == ("x", d["xs"]))
        if d["ph"] == 2:
            kind, fi = d["gsrc"]
            if kind == "cv":
                for o in gdone[fi]:
                    if o.pos is None: q.drain_until(o)
                    deps.append((o, 2))
            elif kind == "gp" and fi not in early_f[:npre]:
                while not any(t == (kind, fi) for t in e.vm):
                    assert ldq, (m, kind, fi)
                    emit_list(ldq.pop(0))
                e.wait_vm(lambda t: t == (kind, fi))
        if d["ph"] == 2 and d["first"] and d["tile"] >= 4:
            for fi in range(12, 16):
                for o in gdone[fi]:
                    if o.pos is None: q.drain_until(o)
        if d["dst"]:
            for o in oldbusy.get(d["dst"], []):
                if o.pos is None: q.drain_until(o)
            oldbusy[d["dst"]] = []
        fr = FR + 4*(m % 12)
        cs = "0" if d["first"] else rng(d["acc"])
        mo = e.op(Op(f"v_mfma_f32_32x32x16_bf16 {rng(d['dst'] or d['acc'])}, a[{fr}:{fr+3}], {d['b']}, {cs}", deps=deps))
        used = 0
        if timing and not fillall:
            if m != 971: tm.stamp(m)
            if m == NM - 1: tm.stamp(971)
        if d["last"]:
            if d["ph"] == 1:
                lastm[(d["unit"], d["mat"])] = mo
                if d["mat"] == 1:
                    a = int((d["dst"] or d["acc"])[1:])
                    pend_gelu.append((d["unit"], a - 16, a, lastm[(d["unit"], 0)], mo))
            else:
                add_out(d["tile"], d["acc"], mo)
        if not fillall:
            while pend_gelu: add_gelu(*pend_gelu.pop(0), inbody)
        mr = m + LA
        isbar = mr < NM and M[mr]["st"] != M[mr-1]["st"]
        left = 0
        while mr + 1 + left < NM and M[mr + 1 + left]["st"] == M[min(mr, NM-1)]["st"]: left += 1
        if isbar:
            st = M[mr]["st"]
            assert not dmaq
            if e.wait_vm(lambda t: t == ("dma", st)): used += 1
            e("s_barrier"); used += 2
            if 4 <= st + 2 <= M[-1]["st"]:
                dmaq.extend(dma_instrs(st + 2, inbody)); st8["dma_st"] = st + 2
                st8["n0"] = sum(1 for _, isd in dmaq if isd); st8["len0"] = left + 1
        if mr < NM:
            reads(mr); used += 2
        if not isbar and not fillall:
            if early and early[0][0] - lead <= m and not (dmaq and len(dmaq) >= left - 2):
                used += emit_early()
            elif dmaq and dma_due(left, dmaq) and not (m in actions and len(dmaq) < left):
                t, isd = dmaq.pop(0)
                if isd: e.vmem(t, ("dma", st8["dma_st"])); used += vcost
                else: e(t); used += 1
            elif m in actions:
                pass
            elif mem_ready() and m - st8.get("lasts", -100) >= spc:
                used += pop_mem() + vcost - 1; st8["lasts"] = m
            elif ldq and m - st8["lastld"] >= (ldpace if m < st8["f2"][3] else ldp2):
                used += emit_list(ldq.pop(0)) + vcost - 1; st8["lastld"] = m
        if m in actions and not fillall:
            used += actions[m]()
        if "hook" in st8: used += st8["hook"](m)
        if not st8["stats"] and sum(1 for t in e.vm if t == "st") == 6 and m >= stat:
            stats_ops(); st8["stats"] = True
        needwait = (m + 1) % 4 == 0 and m + 1 < NM
        bud = (bud2 if B1 <= m < st8["f2"][0] else (bud0 if m < B0 else budget)) - used - (1 if needwait else 0)
        if B0 <= m < B1:
            rem = sum(o.cost for o in q.q); gl = 144 - (m - B0) % 144
            if rem > slack*gl: bud += 1
        if fillall: bud += 1
        if bud > 0: q.fill(bud)
        if m > 650 and not q.q and st8["qempty"] is None: st8["qempty"] = m
        if needwait: e.wait_lg(lambda t: t <= m + 4)
    pend_gelu = []
    def head(m0, p, extra=""):
        if p >= 0:
            chain(f"s_add_u32 s{S_GO}, s{S_GO}, 4096\n" + extra)
            moves(p)
        pre = [gload(x) for x in early_f[:npre]] if p == 1 else []
        for m in range(m0, m0 + HD):
            gap(m, True, fillall=True)
            if pre and m == m0:
                e(f"{gchk(2)}\ns_cbranch_scc0 K3_spinY\nK3_retY:"); spins.append(("Y", 2))
            elif pre:
                for _ in range(2):
                    if pre:
                        for t_, _tag in pre.pop(0): e(t_)
        assert not pre
        q.drain()
    lastS = max(st for st, x in enumerate(ST1) if x[0] == "S")
    actions[36*(lastS - 1) - LA + 2] = lambda: chain([f"v_mov_b32 v{VB+i}, v{V1+i}" for i in range(9)]) and 0
    mb = B1 - 144
    def seed():
        e.vm = [("dma", 14)]*9 + [("dma", 15)]*9; e.vm_done = 0
        e.lg = [mb + k//2 for k in range(16)]; e.lg_done = 8
        st8["dmaq"].clear(); pend_gelu.clear()
    sv = (e.lines, e.vm, e.vm_done, e.lg, e.lg_done, q.q); e.lines = []; q.q = []
    ev = [f"v_add_u32 v{VB+i}, {((i >> 2)*64*1152 + ((i >> 1) & 1)*8*1152 + (i & 1)*128 - (i % 3)*1024) & 0xffffffff}, v{VE}" for i in range(8)] + [f"v_mov_b32 v{VB+8}, 0x40000000"]
    for p, extra in ((0, ""), (1, f"s_mov_b32 s{S_B0}, s{S_RB[0]}\n" + ev[0] + f"\ns_mov_b32 s{S_B1}, s{S_RB[1]}\n" + "\n".join(ev[1:4]) +
                      f"\ns_mov_b64 s[{S_W2}:{S_W2+1}], s[{S_WD}:{S_WD+1}]\n" + "\n".join(ev[4:7]) + f"\ns_mov_b32 s{S_W2+2}, s{S_WD+2}\n" + "\n".join(ev[7:]))):
        e(f"K3_head{p}:")
        tm.stamp(-1-p)
        seed(); head(mb, p, extra)
        e("s_branch K3_body")
    side_lines = e.lines
    e.lines, e.vm, e.vm_done, e.lg, e.lg_done, q.q = sv
    st8["dmaq"].clear(); pend_gelu.clear(); chl[0] = None
    for m in range(B0): gap(m, False)
    assert not early and not st8["dmaq"]
    e.wait_vm(lambda t: t and t[0] == "x")
    seed(); head(mb, -1)
    k_vm = len(e.vm)
    while memq: pop_mem()
    e.vm = e.vm[:k_vm]
    e(".p2align 3\nK3_body:")
    tstate["last"] = [None, None]
    actions[mb + 40] = lambda: e(f"s_add_u32 s{S_CNT}, s{S_CNT}, 1") or 1
    def wpf():
        e.vmem(f"buffer_load_dword v1, v{VPF}, s[{S_WD}:{S_WD+3}], s{S_PF} offen", "pf")
        e(f"s_add_u32 s{S_PF}, s{S_PF}, {14*128}"); return 1 + vcost
    if wdpf: actions[mb + 68] = wpf
    def blevel():
        assert e.vm_done >= 18
        e.wait_vm(lambda t: t == ("dma", 16) and False)
        flag_store(); return 2
    actions[mb + bfl] = blevel
    assert bpl < 108
    actions[mb + bpl] = lambda: poll_issue("Z")
    for m in range(mb + HD, B1): gap(m, True)
    q.drain()
    while memq: pop_mem()
    assert not st8["dmaq"]
    e(f"s_cmp_eq_u32 s{S_CNT}, 1\ns_cbranch_scc1 K3_head0\ns_cmp_eq_u32 s{S_CNT}, 2\ns_cbranch_scc1 K3_head1")
    NM = len(M)
    def act1():
        e.wait_vm(lambda t: t and t[0] == "gs" and t[1] < 12); flag_store(); return 3
    actions[641] = lambda: poll_check(3, "Z") or ldq.extend(gload(x) for x in early_f[npre:30]) or 5
    actions[f1[0]] = act1
    actions[f1[1]] = lambda: poll_issue("A")
    actions[f1[2]] = lambda: poll_check(4, "A") or ldq.extend(gload(x) for x in early_f[30:]) or 5
    def act2pre():
        q.drain()
        while memq: pop_mem()
        return 1
    def act2():
        e.wait_vm(lambda t: t and t[0] == "gs"); flag_store(); return 2
    actions[f2[0]] = act2pre
    actions[f2[1]] = act2
    actions[f2[2]] = lambda: poll_issue("B")
    actions[f2[3]] = lambda: poll_check(5, "B") or ldq.extend(gload(x) for x in late_f) or 5
    sent = set(); full = {}
    def sig(g):
        e.wait_vm(lambda t: t == ("store", g))
        e.vmem(f"buffer_atomic_add v{VONE}, v{VLZ}, s[{S_FL}:{S_FL+3}], s{25 if g == 0 else 24} offen" + (" offset:128" if g == 2 else "") + " sc1", "flag")
        sent.add(g); return 3
    def hook(m):
        for g in (2, 0):
            if g not in full and sum(1 for t in e.vm if t == ("store", g)) == 4: full[g] = m
            if g in full and g not in sent and m >= full[g] + sga: return sig(g)
        return 0
    st8["hook"] = hook
    PM = OLD + 32
    mtx = f"buffer_atomic_add v{VF}, v{VLZ}, s[{S_FL}:{S_FL+3}], s24 offen offset:128 sc0 sc1"
    def mload(k): return [(f"s_add_u32 s{S_XS}, s{S_XH}, {k << 20}", None), (f"buffer_load_dwordx4 v[{PM+4*k}:{PM+4*k+3}], v{VRC}, s[{S_HC}:{S_HC+3}], s{S_XS} offen{plf}", (2, k))]
    def mpoll():
        assert 2 in sent
        e(f"v_mov_b32 v{VF}, 0"); e.vmem(mtx, "plm"); return 3
    def mcheck():
        assert not ldq
        e.wait_vm(lambda t: t == "plm")
        e(f"{rd}\ns_cmp_eq_u32 s5, 16\ns_cbranch_scc0 K3_S\nK3_R:")
        tails.append(f"K3_S:\nv_mov_b32 v{VF}, 0\n{mtx}\ns_waitcnt vmcnt(0)\n{rd}\ns_cmp_eq_u32 s5, 16\ns_cbranch_scc0 K3_S\ns_branch K3_R")
        ldq.extend(mload(k) for k in range(4)); return 5
    if mpol: actions[NM + mpol[0]] = mpoll; actions[NM + mpol[1]] = mcheck
    e(f"v_add_u32 v{V1}, {8*1152-2048}, v{VE}\nv_add_u32 v{V1+1}, {8*1152-2048}, v{VE+1}")
    chain(f"s_add_u32 s{S_GO}, s{S_GO}, 4096")
    lastmv = moves(2)
    actions[690] = lambda: e(f"v_subrev_u32 v{V1+2}, 2048, v{VE}\nv_subrev_u32 v{V1+3}, 2048, v{VP1}\nv_add_u32 v{VHA}, 4096, v{VRA}") or 3
    actions[694] = lambda: e(f"s_lshl_b32 s{S_XH}, s{S_SS}, 4\ns_add_u32 s{S_XH}, s{S_XH}, {WS_PX}") or 2
    actions[698] = lambda: e(f"s_lshl_b32 s{S_SS}, s{S_J}, 18\ns_add_u32 s{S_SS}, s{S_SS}, s{S_XH}") or 2
    tstate["last"] = [lastmv, lastmv]
    for m in range(B1, NM): gap(m, False)
    while q.q or memq:
        if mem_ready(): pop_mem()
        else: q.drain_until(q.q[0])
    while ldq: emit_list(ldq.pop(0))
    e(f"; NM={NM} gelu queue empty at gap {st8['qempty']} stores complete {full} sent {sent}")
    tm.stamp(-12)
    if not mpol:
        if 2 not in sent: sig(2)
        e(f"v_mov_b32 v4, 0"); e.vmem(mtx.replace(f"v{VF},", "v4,"), "plm")
    own = 0x100
    if 0 in sent:
        e(f"v_mov_b32 v{VF}, 0"); e.vmem(f"buffer_atomic_add v{VF}, v{VLZ}, s[{S_FL}:{S_FL+3}], s25 offen sc0 sc1", "plb")
    srd(e, S_W, 26, ACT_BYTES)
    HR = GT; AC = 28
    e(f"v_mov_b32 v14, 0x3f80\nv_mov_b32 v15, 0x3f800000\ns_mov_b32 s54, 0xaaaaaaaa\ns_mov_b32 s55, 0xaaaaaaaa\nv_mov_b32 v1, 0x100")
    for i in range(12): e(f"v_accvgpr_read_b32 v{HR+i}, a{HA+i}")
    sj = lambda j: [None, 29, 30, 32][j]
    for j in range(1, 4): e(f"s_add_u32 s4, s23, {j}\ns_and_b32 s4, s4, 3\ns_lshl_b32 s4, s4, 21\ns_add_u32 s{sj(j)}, s48, s4")
    if 0 not in sent:
        e(f"v_mov_b32 v{VF}, 1"); own = 0x101
        e.wait_vm(lambda t: t == ("store", 0))
        e.vmem(f"buffer_atomic_add v{VF}, v{VLZ}, s[{S_FL}:{S_FL+3}], s25 offen sc0 sc1", "plb")
    PBR = [GP, GP + 16, PM]
    def red(k):
        H = HR + 4*k; O_ = 16 + 4*k
        for j in range(4):
            if j == 0 and k < 2: e("s_waitcnt lgkmcnt(0)")
            else: e.wait_vm(lambda t: t == (k, j))
            for d in range(4):
                r = PBR[k] + 4*j + d
                if j == 0: e(f"v_lshlrev_b32 v{AC+2*d}, 16, v{r}\nv_and_b32 v{AC+1+2*d}, 0xffff0000, v{r}")
                else: e(f"v_dot2c_f32_bf16 v{AC+2*d}, v{r}, v14\nv_dot2c_f32_bf16 v{AC+1+2*d}, v{r}, v15")
        e("s_nop 1")
        if k == 2:
            for op in ("v_permlane32_swap_b32", "v_permlane16_swap_b32"):
                for d in range(0, 8, 2): e(f"v_pk_mov_b32 v[{PM+d}:{PM+d+1}], v[{AC+d}:{AC+d+1}], v[{AC+d}:{AC+d+1}] op_sel:[0,1]")
                e("s_nop 0")
                for d in range(8): e(f"{op} v{AC+d}, v{PM+d}")
                for d in range(0, 8, 2): e(f"v_pk_add_f32 v[{AC+d}:{AC+d+1}], v[{AC+d}:{AC+d+1}], v[{PM+d}:{PM+d+1}]")
        for d in range(4): e(f"v_cvt_pk_bf16_f32 v{O_+d}, v{AC+2*d}, v{AC+1+2*d}")
        for d in range(4): e(f"v_lshlrev_b32 v{AC+2*d}, 16, v{H+d}\nv_and_b32 v{AC+1+2*d}, 0xffff0000, v{H+d}")
        for d in range(4): e(f"v_dot2c_f32_bf16 v{AC+2*d}, v{O_+d}, v14\nv_dot2c_f32_bf16 v{AC+1+2*d}, v{O_+d}, v15")
        e("s_nop 1")
        for d in range(4): e(f"v_cvt_pk_bf16_f32 v{O_+d}, v{AC+2*d}, v{AC+1+2*d}")
        e("s_nop 0")
        for d in range(4): e(f"v_mov_b32_dpp v{AC+d}, v{O_+d} quad_perm:[1,0,3,2] row_mask:0xf bank_mask:0xf")
        for d in range(2): e(f"v_cndmask_b32 v{O_+d}, v{O_+d}, v{AC+2+d}, s[54:55]\nv_cndmask_b32 v{O_+2+d}, v{AC+d}, v{O_+2+d}, s[54:55]")
    def ost(k): e.vmem(f"buffer_store_dwordx4 v[{16+4*k}:{19+4*k}], v{VOA if k < 2 else VOC}, s[{S_W}:{S_W+3}], s{S_XO} offen" + (" offset:128" if k == 1 else "") + of, "o")
    if mpol and r2: red(2)
    e.wait_vm(lambda t: t == ("store", 1))
    e.vmem(f"buffer_atomic_add v1, v{VLZ}, s[{S_FL}:{S_FL+3}], s25 offen sc0 sc1", "pl2")
    tm.stamp("B0")
    def younger(tag): return len(e.vm) - 1 - max(i for i, t in enumerate(e.vm) if t == tag)
    if not mpol:
        e.wait_vm(lambda t: t == "plm")
        e(f"v_readfirstlane_b32 s5, v4\ns_nop 1\ns_cmp_eq_u32 s5, 16\ns_cbranch_scc1 K3_R\nK3_S:\nv_mov_b32 v4, 0\n{mtx.replace(f'v{VF},', 'v4,')}\ns_waitcnt vmcnt(0)\nv_readfirstlane_b32 s5, v4\ns_nop 1\ns_cmp_eq_u32 s5, 16\ns_cbranch_scc0 K3_S\nK3_R:")
        for k in range(4): emit_list(mload(k))
    e.wait_vm(lambda t: t == "plb")
    e(f"{rd}\ns_add_u32 s5, s5, {hex(own)}")
    def chk(g): return f"s_bfe_u32 s4, s5, {hex(8*g | 0x80000)}\ns_cmp_eq_u32 s4, 4"
    for g in range(2):
        e(chk(g) + f"\ns_cbranch_scc1 K3_L{g}")
        e(f"s_waitcnt vmcnt({younger('pl2')})\nv_readfirstlane_b32 s7, v1\ns_nop 1\ns_add_u32 s7, s7, 0x100\ns_max_u32 s5, s5, s7\n{chk(g)}\ns_cbranch_scc1 K3_L{g}")
        e(f"K3_P{g}:\n{apoll(25)}\ns_waitcnt vmcnt(0)\n{rd}\n{chk(g)}\ns_cbranch_scc0 K3_P{g}\nK3_L{g}:")
        tm.stamp(["B1", -13][g])
        e(f"ds_read_b128 v[{PBR[g]}:{PBR[g]+3}], v{VONE+1}" + (" offset:1024" if g == 1 else ""))
        for j in range(1, 4):
            r = PBR[g] + 4*j
            e.vmem(f"buffer_load_dwordx4 v[{r}:{r+3}], v{(VRA, VHA)[g]}, s[{S_HC}:{S_HC+3}], s{sj(j)} offen{plf}", (g, j))
    if not (mpol and r2): red(2)
    ost(2); red(0); ost(0); red(1); ost(1)
    tm.end("K3_end")
    e("K3_end:\ns_endpgm")
    e.lines += side_lines
    for name, val in spins:
        e(f"K3_spin{name}:\nv_mov_b32 v{VF}, 0\n{gpoll}\ns_waitcnt vmcnt(0)\n{gchk(val)}\ns_cbranch_scc0 K3_spin{name}\ns_branch K3_ret{name}")
    for t_ in tails: e(t_)
    e("KB_last:\ns_endpgm")
    return e.text()
```

```python
import sys
from asmgen import kernel_header, kernel_desc
from sched import Em
from tim import Tim, Diag
from kb import TP
from kf1 import gen_f1
from kf2 import gen_f2
from kf3 import gen_f3 as gen_k3
import tim
tim.WSP = 16
P = dict(C=2, timing=0, pf=1, cpf=1, tsel=3, diag=None, aslist=0)
K = {1: {}, 2: {}, 3: {"na": 3}}
for kv in sys.argv[1:]:
    k, v = kv.split("=", 1)
    if k[0] == "k" and k[2] == ".": K[int(k[1])][k[3:]] = eval(v)
    else: P[k] = eval(v)
T = bool(P["timing"])
NAME = "sequential_preLN__linear_attn_block__geglu_ffn__prompt_kernel"
hdr = open("sequential_preLN__linear_attn_block__geglu_ffn__prompt.s.ref").read().split("; Override")[0]
print(hdr, end="")
print(f"; @launch {'kernel=' + NAME + ' ' if P['aslist'] else ''}grid=(256,1,1) block=(256,1,1) lds=160768")
print('.amdgcn_target "amdgcn-amd-amdhsa--gfx950"\n.text')
e = Em()
tm = Tim(e, 3, T)
sel = {1: ({i: i for i in range(6)}, {0: 6, 1: 7, 2: 8, 3: 9, 8: 10}, {0: 11}),
       2: ({5: 0}, {i: i + 1 for i in range(9)}, {-11: 10, 0: 11}),
       3: ({5: 0}, {2: 1, 8: 2}, {k: i + 3 for i, k in enumerate([0, 207, -2, 640, 756, 864, 971, 'B0', -13])}),
       5: ({}, {}, {k: i for i, k in enumerate([0, 72, 144, 207, -1, -2, 640, 720, 792, 864, 936, 971])}),
       6: ({}, {}, {k: i for i, k in enumerate([-2, 640, 648, 684, 720, 756, 792, 828, 864, 900, 936, 971])}),
       4: ({}, {8: 0}, {k: i + 1 for i, k in enumerate(['A0', 'A1', -11, 0, 207, 971, -12, 'B0', 'B1', 'B2', -13])})}[P["tsel"]]
if P.get('st'): sel = ({}, {}, {k: i for i, k in enumerate(P['st'])})
tps = [TP(tm, m) for m in sel]
if P["diag"]: tps = [Diag(e, *P["diag"], k, P.get("dwg", 130)) for k in (1, 2, 3)]; T = True
o0 = K[3].get("order0", "PSPSPP")
F = dict(perm=P.get('perm', [0, 1, 3, 2]), e=e, tm3=tps[2], early=[(c, o0[:i].count(c)) for i, c in enumerate(o0)])
Q = P.get("Q", 2); XM = K[3].get("xmap", 1) if Q == 1 else 0
if Q == 2: P["C"] = 4
import math
from k1 import slice_of_xcd, BIG
def jcalc(d, t):
    if XM: return f"s_bfe_u32 s{d}, s2, 0x20001\ns_lshl_b32 s{d}, s{d}, 2\ns_bfe_u32 s{t}, s2, 0x10003\ns_lshl_b32 s{t}, s{t}, 1\ns_add_u32 s{d}, s{d}, s{t}\ns_and_b32 s{t}, s2, 1\ns_add_u32 s{d}, s{d}, s{t}"
    C = P["C"]; lg = int(math.log2(C))
    return f"s_and_b32 s{d}, s2, {16//C-1}\ns_lshl_b32 s{d}, s{d}, {lg}\ns_bfe_u32 s{t}, s2, {hex(3 | (lg << 16))}\ns_add_u32 s{d}, s{d}, s{t}"
def pf(e, lines):
    if XM:
        e("s_bfe_u32 s5, s2, 0x20001\ns_mul_i32 s5, s5, 2304\ns_and_b32 s4, s2, 1\ns_mul_i32 s4, s4, 640")
        offs = []
        for ln in lines:
            if ln == 4: offs += [(512, 0), (512 + 1152, 0)]
            else: offs.append(((ln % 5)*128 + (ln // 5)*1152, 1))
    else:
        slice_of_xcd(e, 5, 2, P["C"]); e("s_mul_i32 s5, s5, 1152")
        offs = [(ln*128, 0) for ln in lines]
    e(f"s_bfe_u32 s6, s2, 0x30003\ns_mul_i32 s6, s6, {72*9216}\ns_add_u32 s5, s5, s6")
    e(f"v_mul_u32_u24 v4, 911, v0\nv_lshrrev_b32 v4, 16, v4\nv_mul_u32_u24 v3, 72, v4\nv_sub_u32 v3, v0, v3\nv_mul_u32_u24 v3, 9216, v3")
    for k in range(0, len(offs), 3):
        e(f"v_mov_b32 v12, {BIG}")
        for i, (o, par) in enumerate(offs[k:k+3]):
            e(f"v_cmp_eq_u32 vcc, {i}, v4\nv_add_u32 v13, {o}, v3\n" + ("v_add_u32 v13, s4, v13" if par else "s_nop 0") + "\nv_cndmask_b32 v12, v12, v13, vcc")
        e("buffer_load_dword v244, v12, s[52:55], s5 offen\nbuffer_load_dword v245, v12, s[56:59], s5 offen")
F["jcalc"] = jcalc; F["pf"] = pf
if Q == 1:
    from kq3 import gen_q3 as gen_k3
if Q == 2:
    from kr3 import gen_r3 as gen_k3
left = gen_f1(e, tps[0], F, C=P["C"], prefetch=P["pf"], cpf=P["cpf"], **K[1])
gen_f2(e, tps[1], F, left, C=P["C"], prefetch=P["pf"], **K[2])
body = gen_k3(timing=T, fused=F, C=P["C"], **K[3])
PD = P.get("pads", dict(kv=4096, q=4096, k2=2048, k3=1024))
if PD:
    from pads import add_pads
    rg = dict(kv=("F_kv_s", "F_q"), q=("F_q_s", "F_spkv"), k2=("F2_go", "K3_plA"), k3=("K3_pdA", "KB_last"))
    body = add_pads(body, '.amdgcn_target "amdgcn-amd-amdhsa--gfx950"\n.text\n', "", {k: rg[k] + (v,) for k, v in PD.items()}, 0)
print(kernel_header(NAME) + body + kernel_desc(NAME, 512, 102, 256))
```
